```python
import torch

def _softmax(x, axis=-1):
    return torch.softmax(x, dim=axis)
def _gelu(x):
    return torch.nn.functional.gelu(x, approximate="tanh")
def _silu(x):
    return torch.nn.functional.silu(x)
def _sigmoid(x):
    return torch.sigmoid(x)
def _layernorm(x, axis=-1, eps=1e-5):
    m = x.mean(dim=axis, keepdim=True)
    v = x.var(dim=axis, keepdim=True, unbiased=False)
    return (x - m) / torch.sqrt(v + eps)
def _scatter_add(tgt, idx, src, axis=0):
    return tgt.clone().index_add_(axis, idx, src)
def _segment_sum(src, seg, n):
    out = torch.zeros((n,) + src.shape[1:], dtype=src.dtype)
    return out.index_add_(0, seg, src)
def _pad(x, pw):
    flat = tuple(v for pair in reversed(pw) for v in pair)
    return torch.nn.functional.pad(x, flat)

kernel_name = 'standalone__spectral_conv_sgc__graph'

def setup_inputs():

    _w = (lambda a: (lambda t: t.to(torch.bfloat16) if t.is_floating_point() else t)(torch.as_tensor(a)))
    N, deg, D = 50000, 16, 64
    E = N * deg
    rs = (lambda lo, hi, *s: torch.randint(lo, hi, s))(0, N, E).to(torch.int64)
    rd = (lambda lo, hi, *s: torch.randint(lo, hi, s))(0, N, E).to(torch.int64)
    loop = torch.arange(N).to(torch.int64)
    src = torch.cat([rs, loop])
    dst = torch.cat([rd, loop])
    deg_cnt = torch.bincount(dst, minlength=N).to(float)
    dis = 1.0 / (lambda _x: torch.sqrt(torch.as_tensor(_x)))(deg_cnt)
    return {
        "x": _w((lambda *s: torch.randn(*s, dtype=torch.bfloat16) * 0.05)(N, D)),
        "src": _w(src),
        "dst": _w(dst),
        "norm": _w((dis[src] * dis[dst]).to(float)),
        "w": _w((lambda *s: torch.randn(*s, dtype=torch.bfloat16) * 0.05)(D, D)),
    }

def reference(x, src, dst, norm, w):
    N = x.shape[0]
    h = x
    for _ in range(2):
        msg = h[src] * norm[:, None]
        h = _segment_sum(msg, dst, N)
    return h @ w
```

```python
import sys

DIAG = "--diag" in sys.argv
OUT = [a for a in sys.argv[1:] if not a.startswith("--")][0]
OPT = dict(a[2:].split("=") for a in sys.argv[1:] if a.startswith("--") and "=" in a)

N = 50000
E = 850000
ET = 800000
TM = 5368
CH = 3128
NMAIN = CH // 4
TCH = 196
NTHR = NMAIN + TCH // 4
SLOTCAP = 24
WS_SLOTS = 0
WS_OVF = 8 << 20
OVF_STRIDE = 32768
WS_H1 = 16 << 20
WS_STAMP = 32 << 20
TABBYTES = N * 128

K1_IMG = 0
K1_LS = 132
K1_CNT = 256 * K1_LS
K1_LDS = K1_CNT + 4096
STG = 0
BINS = 65536
BSTR = 800
CAP = 96
PADOCT = BINS + 64 * BSTR
CNT = PADOCT + 64
MORE = CNT + 256
WL = MORE + 64
K2_LDS = WL + 8192
PADV = 0x40000000

WARM = int(OPT.get("warm", 0))
PF2 = int(OPT.get("pf2", 0))
PF3 = int(OPT.get("pf3", 0))
ST_SLOT = OPT.get("stslot", "")
ST_H1 = OPT.get("sth1", "")
ST_OUT = OPT.get("stout", "")
LD_IN = OPT.get("ldin", "")
LD_SLOT = OPT.get("ldslot", "")
NEXTRA = int(OPT.get("extra", 0))

L = []


def e(s=""):
    L.append(s)


def srd(d, lo, hi, nbytes, off=0):
    if off == 0:
        e(f"    s_mov_b32 s{d}, s{lo}")
        e(f"    s_and_b32 s{d+1}, s{hi}, 0xffff")
    elif off > 0:
        e(f"    s_add_u32 s{d}, s{lo}, {off}")
        e(f"    s_addc_u32 s{d+1}, s{hi}, 0")
        e(f"    s_and_b32 s{d+1}, s{d+1}, 0xffff")
    else:
        e(f"    s_sub_u32 s{d}, s{lo}, {-off}")
        e(f"    s_subb_u32 s{d+1}, s{hi}, 0")
        e(f"    s_and_b32 s{d+1}, s{d+1}, 0xffff")
    e(f"    s_mov_b32 s{d+2}, {nbytes}")
    e(f"    s_mov_b32 s{d+3}, 0x20000")


STAMP_BASE = 84


def stamp(i):
    if DIAG:
        e(f"    s_memrealtime s[{STAMP_BASE+2*i}:{STAMP_BASE+2*i+1}]")


def stamp_out(kid, name, nst):
    if not DIAG:
        return
    e("    s_waitcnt vmcnt(0) lgkmcnt(0)")
    stamp(nst - 1)
    e("    s_waitcnt lgkmcnt(0)")
    e("    s_mov_b64 exec, -1")
    e("    v_and_b32 v2, 63, v0")
    e("    v_cmp_eq_u32 vcc, 0, v2")
    e("    s_and_saveexec_b64 s[80:81], vcc")
    srd(76, 18, 19, 1 << 20, WS_STAMP + kid * (1 << 20))
    e("    v_lshrrev_b32 v2, 6, v0")
    e("    s_lshl_b32 s82, s2, 4")
    e("    v_add_u32 v2, s82, v2")
    e("    v_lshlrev_b32 v2, 6, v2")
    for i in range(nst):
        e(f"    v_mov_b32 v3, s{STAMP_BASE+2*i}")
        e(f"    buffer_store_dword v3, v2, s[76:79], 0 offen offset:{4*i}")
    e("    s_getreg_b32 s82, hwreg(HW_REG_XCC_ID)")
    e("    v_mov_b32 v3, s82")
    e("    buffer_store_dword v3, v2, s[76:79], 0 offen offset:32")
    e("    s_getreg_b32 s82, hwreg(HW_REG_HW_ID)")
    e("    v_mov_b32 v3, s82")
    e("    buffer_store_dword v3, v2, s[76:79], 0 offen offset:36")


def kernel_head(name):
    e(f".globl {name}")
    e(".p2align 8")
    e(f".type {name},@function")
    e(f"{name}:")


def k1():
    name = "sgc_bucket_kernel"
    kernel_head(name)
    stamp(0)
    e("    s_cmp_ge_u32 s2, 256")
    e("    s_cbranch_scc1 K1_END")
    e("    s_load_dwordx8 s[4:11], s[0:1], 0")
    e("    s_load_dwordx8 s[12:19], s[0:1], 32")
    e("    v_lshlrev_b32 v1, 2, v0")
    e("    v_mov_b32 v2, 0")
    e(f"    ds_write_b32 v1, v2 offset:{K1_CNT}")
    e(f"    s_mul_i32 s44, s2, {CH}")
    e(f"    s_mul_i32 s45, s2, {TCH}")
    e(f"    s_add_u32 s45, s45, {ET - 4*NMAIN}")
    e("    v_add_u32 v4, s44, v1")
    e("    v_add_u32 v5, s45, v1")
    e(f"    v_cmp_gt_u32 vcc, {NMAIN}, v0")
    e(f"    v_mov_b32 v7, {E}")
    e(f"    v_mov_b32 v3, {ET}")
    e("    v_cndmask_b32 v6, v5, v4, vcc")
    e("    v_cndmask_b32 v7, v7, v3, vcc")
    e("    v_cmp_lt_u32 s[46:47], v6, v7")
    e(f"    v_cmp_gt_u32 vcc, {NTHR}, v0")
    e("    v_sub_u32 v8, v6, v3")
    e("    s_and_b64 s[46:47], s[46:47], vcc")
    e("    v_lshlrev_b32 v4, 2, v6")
    e("    v_lshlrev_b32 v5, 1, v6")
    e("    s_waitcnt lgkmcnt(0)")
    srd(20, 6, 7, E * 4)
    srd(24, 8, 9, E * 4)
    srd(28, 10, 11, E * 2)
    srd(32, 18, 19, 256 * 256 * 128, WS_SLOTS)
    srd(36, 18, 19, 256 * OVF_STRIDE, WS_OVF)
    srd(40, 4, 5, TABBYTES)
    e("    s_mov_b64 exec, s[46:47]")
    e("    s_cbranch_execz K1_NOLOAD")
    e(f"    buffer_load_dwordx4 v[12:15], v4, s[24:27], 0 offen {LD_IN}")
    e(f"    buffer_load_dwordx4 v[16:19], v4, s[20:23], 0 offen {LD_IN}")
    e(f"    buffer_load_dwordx2 v[20:21], v5, s[28:31], 0 offen {LD_IN}")
    e("K1_NOLOAD:")
    e("    s_mov_b64 exec, -1")
    if WARM:
        per = (WARM // 128 + 31) // 32
        assert per <= 1024
        e("    s_lshr_b32 s48, s2, 3")
        e(f"    s_mul_i32 s48, s48, {per}")
        e("    v_add_u32 v9, s48, v0")
        e("    v_lshlrev_b32 v9, 7, v9")
        e(f"    v_cmp_gt_u32 vcc, {per}, v0")
        e(f"    v_mov_b32 v10, {PADV}")
        e("    s_nop 0")
        e("    v_cndmask_b32 v9, v10, v9, vcc")
        e("    buffer_load_dword v10, v9, s[40:43], 0 offen")
    e("    s_barrier")
    stamp(1)
    e("    s_mov_b64 exec, s[46:47]")
    e("    s_cbranch_execz K1_OUT")
    e("    v_mov_b32 v11, 1")
    e("    s_mov_b32 s49, 0xffff0000")
    e("    s_waitcnt vmcnt(%d)" % (3 if WARM else 2))
    for k in range(4):
        e(f"    v_mul_u32_u24 v{24+k}, {TM}, v{12+k}")
        e(f"    v_add_u32 v2, {k}, v8")
        e(f"    v_lshrrev_b32 v{28+k}, 20, v{24+k}")
        e(f"    v_cmp_ne_u32 s[{52+2*k}:{53+2*k}], v{12+k}, v2")
        e(f"    v_lshlrev_b32 v{36+k}, 2, v{28+k}")
    for k in range(4):
        e(f"    s_mov_b64 exec, s[{52+2*k}:{53+2*k}]")
        e(f"    ds_add_rtn_u32 v{32+k}, v{36+k}, v11 offset:{K1_CNT}")
    e("    s_mov_b64 exec, s[46:47]")
    e("    s_waitcnt vmcnt(%d)" % (1 if WARM else 0))
    stamp(2)
    for k in range(4):
        if k % 2 == 0:
            e(f"    v_lshl_or_b32 v{16+k}, v{20+k//2}, 16, v{16+k}")
        else:
            e(f"    v_and_or_b32 v{16+k}, v{20+k//2}, s49, v{16+k}")
        e(f"    v_lshrrev_b32 v{24+k}, 12, v{24+k}")
        e(f"    v_mul_u32_u24 v{28+k}, {K1_LS}, v{28+k}")
        e(f"    v_bfi_b32 v{24+k}, 15, v{12+k}, v{24+k}")
    e("    s_mov_b64 s[60:61], 0")
    for k in range(4):
        e(f"    s_mov_b64 exec, s[{52+2*k}:{53+2*k}]")
        e(f"    s_waitcnt lgkmcnt({min(3-k+2*k, 15)})")
        e(f"    v_cmp_gt_u32 vcc, {SLOTCAP}, v{32+k}")
        e(f"    v_and_b32 v2, 7, v{32+k}")
        e(f"    v_lshrrev_b32 v3, 3, v{32+k}")
        e(f"    s_andn2_b64 s[{52+2*k}:{53+2*k}], exec, vcc")
        e(f"    s_or_b64 s[60:61], s[60:61], s[{52+2*k}:{53+2*k}]")
        e("    s_mov_b64 exec, vcc")
        e(f"    v_lshl_add_u32 v2, v2, 4, v{28+k}")
        e("    v_lshl_add_u32 v4, v3, 2, v2")
        e("    v_add_u32 v5, v3, v2")
        e(f"    ds_write_b32 v4, v{16+k}")
        e(f"    ds_write_b8 v5, v{24+k} offset:12")
    e("    s_cmp_eq_u64 s[60:61], 0")
    e("    s_cbranch_scc1 K1_OUT")
    e("    s_lshl_b32 s62, s2, 15")
    e("    v_mov_b32 v2, 1024")
    for k in range(4):
        e(f"    s_mov_b64 exec, s[{52+2*k}:{53+2*k}]")
        e(f"    s_cbranch_execz K1_OV{k}")
        e("    v_mov_b32 v2, 1024")
        e(f"    ds_add_rtn_u32 v3, v2, v11 offset:{K1_CNT}")
        e(f"    v_mov_b32 v4, v{16+k}")
        e(f"    v_mov_b32 v5, v{12+k}")
        e("    s_waitcnt lgkmcnt(0)")
        e("    v_lshlrev_b32 v3, 3, v3")
        e("    buffer_store_dwordx2 v[4:5], v3, s[36:39], s62 offen offset:64")
        e("    s_waitcnt vmcnt(0)")
        e(f"K1_OV{k}:")
    e("K1_OUT:")
    e("    s_mov_b64 exec, -1")
    e("    v_lshrrev_b32 v2, 3, v0")
    e("    v_and_b32 v3, 7, v0")
    e(f"    v_mul_u32_u24 v4, {K1_LS}, v2")
    e("    v_lshl_add_u32 v4, v3, 4, v4")
    e(f"    v_add_u32 v5, {128*K1_LS}, v4")
    e("    v_lshlrev_b32 v6, 2, v2")
    e("    v_lshlrev_b32 v7, 15, v2")
    e("    v_lshl_add_u32 v7, v3, 4, v7")
    e("    s_lshl_b32 s62, s2, 7")
    e(f"    s_add_u32 s63, s62, {128*32768}")
    e("    s_mov_b32 s64, 0xffffff")
    e("    s_waitcnt lgkmcnt(0)")
    e("    s_barrier")
    stamp(3)
    e("    ds_read2_b32 v[12:13], v4 offset0:0 offset1:1")
    e("    ds_read2_b32 v[14:15], v4 offset0:2 offset1:3")
    e(f"    ds_read_b32 v20, v6 offset:{K1_CNT}")
    e("    ds_read2_b32 v[16:17], v5 offset0:0 offset1:1")
    e("    ds_read2_b32 v[18:19], v5 offset0:2 offset1:3")
    e(f"    ds_read_b32 v21, v6 offset:{K1_CNT+512}")
    e("    v_mov_b32 v8, 1024")
    e(f"    ds_read_b32 v22, v8 offset:{K1_CNT}")
    e("    s_waitcnt lgkmcnt(4)")
    e("    v_min_u32 v20, 255, v20")
    e("    v_lshlrev_b32 v20, 24, v20")
    e("    v_and_or_b32 v15, v15, s64, v20")
    e(f"    buffer_store_dwordx4 v[12:15], v7, s[32:35], s62 offen {ST_SLOT}")
    e("    s_waitcnt lgkmcnt(1)")
    e("    v_min_u32 v21, 255, v21")
    e("    v_lshlrev_b32 v21, 24, v21")
    e("    v_and_or_b32 v19, v19, s64, v21")
    e(f"    buffer_store_dwordx4 v[16:19], v7, s[32:35], s63 offen {ST_SLOT}")
    e("    v_cmp_eq_u32 vcc, 0, v0")
    e("    s_and_saveexec_b64 s[50:51], vcc")
    e("    s_cbranch_execz K1_FIN")
    e("    s_lshl_b32 s62, s2, 15")
    e("    v_mov_b32 v8, 0")
    e("    s_waitcnt lgkmcnt(0)")
    e("    buffer_store_dword v22, v8, s[36:39], s62 offen")
    e("K1_FIN:")
    stamp_out(0, name, 5)
    e("K1_END:")
    e("    s_endpgm")
    return name


def decode(rec, dl, s):
    ca, d0, d1 = 40 + s, 48 + s, 56 + s
    e(f"    v_and_b32 v{d0}, 0xffff, v{rec}")
    e(f"    v_and_b32 v2, 15, v{dl}")
    e(f"    v_mul_u32_u24 v{ca}, {TM}, v{d0}")
    e(f"    v_lshlrev_b32 v{d0}, 7, v{d0}")
    e(f"    v_lshrrev_b32 v{ca}, 24, v{ca}")
    e(f"    v_lshlrev_b32 v2, v2, v11")
    e(f"    v_bfi_b32 v{ca}, 12, v{ca}, v{dl}")
    e(f"    v_and_or_b32 v{d1}, v{rec}, s49, v2")
    e(f"    v_and_b32 v{ca}, 0xfc, v{ca}")


def PEND(s):
    return f"s[{52+2*s}:{53+2*s}]"


def binwrite(s, rank):
    ca, d0, d1 = 40 + s, 48 + s, 56 + s
    e(f"    v_cmp_gt_u32 vcc, {CAP}, v{rank}")
    e(f"    v_mul_u32_u24 v2, {BSTR//4}, v{ca}")
    e(f"    v_lshrrev_b32 v3, 3, v{rank}")
    e(f"    s_andn2_b64 {PEND(s)}, exec, vcc")
    e("    s_mov_b64 exec, vcc")
    e(f"    v_lshl_add_u32 v2, v{rank}, 2, v2")
    e("    v_lshl_add_u32 v2, v3, 5, v2")
    e("    v_add_u32 v2, s75, v2")
    e(f"    ds_write2_b32 v2, v{d0}, v{d1} offset0:0 offset1:8")


def fill_lds(p):
    e("    v_lshlrev_b32 v2, 4, v0")
    e(f"    v_add_u32 v2, {BINS}, v2")
    e(f"    v_mov_b32 v4, {PADV}")
    e(f"    v_mov_b32 v5, {PADV}")
    e(f"    v_mov_b32 v6, {PADV}")
    e(f"    v_mov_b32 v7, {PADV}")
    e("    ds_write_b128 v2, v[4:7]")
    e("    ds_write_b128 v2, v[4:7] offset:16384")
    e("    ds_write_b128 v2, v[4:7] offset:32768")
    npad = (CNT - BINS) // 16 - 3072
    nzero = (WL - CNT) // 16
    e(f"    v_cmp_gt_u32 vcc, {npad+nzero}, v0")
    e("    s_and_saveexec_b64 s[50:51], vcc")
    e(f"    s_cbranch_execz {p}_FILLD")
    e(f"    v_cmp_gt_u32 vcc, {npad}, v0")
    e("    s_nop 1")
    e("    v_cndmask_b32 v4, 0, v4, vcc")
    e("    v_cndmask_b32 v5, 0, v5, vcc")
    e("    v_cndmask_b32 v6, 0, v6, vcc")
    e("    v_cndmask_b32 v7, 0, v7, vcc")
    e("    ds_write_b128 v2, v[4:7] offset:49152")
    e(f"{p}_FILLD:")
    e("    s_mov_b64 exec, -1")


def k23(hop):
    name = f"sgc_hop{hop}_kernel"
    p = f"K{hop+1}"
    kernel_head(name)
    stamp(0)
    e("    s_cmp_ge_u32 s2, 256")
    e(f"    s_cbranch_scc1 {p}_END")
    e("    s_load_dwordx8 s[4:11], s[0:1], 0")
    e("    s_load_dwordx8 s[12:19], s[0:1], 32")
    e("    v_lshrrev_b32 v1, 6, v0")
    e("    v_lshlrev_b32 v8, 4, v0")
    e("    v_readfirstlane_b32 s3, v1")
    e("    s_lshl_b32 s44, s2, 15")
    e("    s_add_u32 s45, s44, 16384")
    e("    v_lshrrev_b32 v2, 4, v0")
    e("    s_lshl_b32 s48, s2, 4")
    e("    v_add_u32 v2, s48, v2")
    e("    v_mul_u32_u24 v3, 50006, v2")
    e("    v_lshrrev_b32 v3, 12, v3")
    e("    v_sub_u32 v4, v0, v3")
    e("    v_and_b32 v4, 15, v4")
    e("    v_add_u32 v9, v3, v4")
    e(f"    v_mul_u32_u24 v4, {TM}, v9")
    e("    v_lshrrev_b32 v4, 16, v4")
    e("    v_cmp_eq_u32 s[64:65], v4, v2")
    e(f"    v_cmp_gt_u32 vcc, {N}, v9")
    e("    s_and_b64 s[64:65], s[64:65], vcc")
    e("    v_cmp_gt_u32 vcc, 256, v0")
    e("    s_and_b64 s[64:65], s[64:65], vcc")
    e(f"    v_add_u32 v4, {ET}, v9")
    e("    v_lshlrev_b32 v5, 2, v4")
    e("    v_lshlrev_b32 v4, 1, v4")
    e("    s_waitcnt lgkmcnt(0)")
    srd(32, 18, 19, 256 * 256 * 128, WS_SLOTS)
    e(f"    buffer_load_dwordx4 v[12:15], v8, s[32:35], s44 offen {LD_SLOT}")
    e(f"    buffer_load_dwordx4 v[16:19], v8, s[32:35], s45 offen {LD_SLOT}")
    srd(20, 6, 7, E * 4)
    srd(24, 8, 9, E * 4)
    srd(28, 10, 11, E * 2)
    srd(36, 18, 19, 256 * OVF_STRIDE, WS_OVF)
    e("    v_mov_b32 v20, -1")
    e("    s_mov_b64 exec, s[64:65]")
    e(f"    s_cbranch_execz {p}_NOTAIL")
    e("    buffer_load_dword v20, v5, s[24:27], 0 offen")
    e("    buffer_load_dword v21, v5, s[20:23], 0 offen")
    e("    buffer_load_ushort v22, v4, s[28:31], 0 offen")
    e(f"{p}_NOTAIL:")
    e("    s_mov_b64 exec, -1")
    if hop == 1:
        srd(40, 4, 5, TABBYTES + 3072, -3072)
        srd(68, 18, 19, TABBYTES, WS_H1)
    else:
        srd(40, 18, 19, TABBYTES + 3072, WS_H1 - 3072)
        srd(68, 14, 15, TABBYTES)
        srd(20, 12, 13, 8192)
        e("    buffer_load_dwordx4 v[24:27], v8, s[20:23], 0 offen")
    PF = PF2 if hop == 1 else PF3
    if PF:
        per = (PF // 128 + 31) // 32
        assert per <= 1024
        e("    s_lshr_b32 s48, s2, 3")
        e(f"    s_mul_i32 s48, s48, {per}")
        e("    v_add_u32 v10, s48, v0")
        e("    v_lshlrev_b32 v10, 7, v10")
        e(f"    v_cmp_gt_u32 vcc, {per}, v0")
        e(f"    v_mov_b32 v31, {PADV}")
        e("    s_nop 0")
        e("    v_cndmask_b32 v10, v31, v10, vcc")
        e("    buffer_load_dword v124, v10, s[40:43], 0 offen offset:3072")
    fill_lds(p + "A")
    e("    v_mov_b32 v11, 1")
    e("    s_mov_b32 s49, 0xffff0000")
    e(f"    s_mov_b32 s75, {BINS}")
    e(f"    s_mov_b32 s74, {CNT}")
    e("    v_and_b32 v10, 7, v0")
    for i in range(16):
        e(f"    v_mov_b32 v{64+i}, 0")
    e("    v_and_b32 v2, 63, v0")
    for i in range(4):
        s = (i & 1) | ((i & 2) << 1)
        e(f"    v_xor_b32 v{80+i}, {s}, v10")
        e(f"    v_lshlrev_b32 v{80+i}, 4, v{80+i}")
        if i < 3:
            e(f"    v_add_u32 v{80+i}, {3072-1024*i}, v{80+i}")
    e("    v_and_b32 v85, 15, v0")
    e("    v_lshrrev_b32 v3, 4, v2")
    e("    v_bfe_u32 v4, v2, 3, 1")
    e("    v_lshlrev_b32 v86, 4, v4")
    e("    v_and_b32 v4, 1, v3")
    e("    v_lshlrev_b32 v5, 4, v4")
    e("    v_add_u32 v87, 32, v5")
    e("    v_xor_b32 v88, 16, v87")
    e("    v_bfe_u32 v6, v2, 2, 2")
    e("    v_and_b32 v7, 3, v2")
    e("    v_lshlrev_b32 v84, 10, v6")
    e("    v_lshl_add_u32 v84, v3, 8, v84")
    e("    v_lshl_add_u32 v84, v4, 7, v84")
    e("    v_and_b32 v5, 1, v6")
    e("    v_and_b32 v6, 2, v6")
    e("    v_lshl_or_b32 v5, v6, 1, v5")
    e("    v_xor_b32 v5, v5, v7")
    e("    v_lshl_add_u32 v84, v5, 4, v84")
    e("    v_and_b32 v7, 1, v7")
    e("    v_lshl_add_u32 v84, v7, 3, v84")
    e("    s_lshl_b32 s72, s3, 12")
    e("    v_add_u32 v84, s72, v84")
    e("    s_mov_b32 m0, s72")
    tr = {}
    nxt = 89
    for t in range(4):
        for u in range(2):
            x = 128 * u + 64 * (t >> 1) + 8 * (t & 1)
            if x == 0:
                tr[(t, u)] = 84
            else:
                e(f"    v_xor_b32 v{nxt}, {x}, v84")
                tr[(t, u)] = nxt
                nxt += 1
    if hop == 2:
        e("    s_waitcnt vmcnt(%d)" % (1 if PF else 0))
        e("    v_cmp_gt_u32 vcc, 512, v0")
        e("    s_and_saveexec_b64 s[50:51], vcc")
        e(f"    v_add_u32 v2, {WL}, v8")
        e("    ds_write_b128 v2, v[24:27]")
        e("    s_mov_b64 exec, -1")
    e("    s_waitcnt lgkmcnt(0)")
    e("    s_barrier")
    stamp(1)
    e("    s_waitcnt vmcnt(%d)" % (1 if PF else 0))
    stamp(2)
    for i in range(2):
        base = 12 + 4 * i
        e(f"    v_lshrrev_b32 v28, 24, v{base+3}")
        e("    v_sub_u32 v29, v28, v10")
        for k in range(3):
            e(f"    v_cmp_lt_i32 {PEND(3*i+k)}, {8*k}, v29")
        e(f"    v_cmp_eq_u32 vcc, 0, v10")
        e(f"    v_cmp_lt_u32 s[50:51], {SLOTCAP}, v28")
        e(f"    s_and_b64 s[{46 if i == 0 else 50}:{47 if i == 0 else 51}], s[50:51], vcc")
        for k in range(3):
            if k == 0:
                decode(base + k, base + 3, 3 * i + k)
            else:
                e(f"    v_lshrrev_b32 v30, {8*k}, v{base+3}")
                decode(base + k, 30, 3 * i + k)
    e("    s_lshl_b64 s[50:51], s[50:51], 1")
    e("    s_or_b64 s[46:47], s[46:47], s[50:51]")
    e("    v_cmp_eq_u32 vcc, v20, v9")
    e("    s_and_b64 s[64:65], s[64:65], vcc")
    e("    v_lshl_or_b32 v21, v22, 16, v21")
    e("    v_bfi_b32 v30, 15, v9, v0")
    decode(21, 30, 6)
    e(f"    s_mov_b64 {PEND(7)}, 0")
    e("    s_mov_b32 s73, 0")
    e("    s_mov_b32 s44, 0")
    e("    s_mov_b32 s45, 0")
    e(f"{p}_ROUND:")
    for s in range(7):
        e(f"    s_mov_b64 exec, {PEND(s)}")
        e(f"    v_add_u32 v2, s74, v{40+s}")
        e(f"    ds_add_rtn_u32 v{32+s}, v2, v11")
    for s in range(7):
        e(f"    s_mov_b64 exec, {PEND(s)}")
        e(f"    s_waitcnt lgkmcnt(6)")
        binwrite(s, 32 + s)
    e(f"{p}_OVL:")
    e(f"    s_mov_b64 exec, {PEND(7)}")
    e(f"    s_cbranch_execz {p}_OVNEXT")
    e("    v_add_u32 v2, s74, v47")
    e("    ds_add_rtn_u32 v39, v2, v11")
    e("    s_waitcnt lgkmcnt(0)")
    binwrite(7, 39)
    e(f"    s_cmp_lg_u64 {PEND(7)}, 0")
    e(f"    s_cbranch_scc1 {p}_OVDONE")
    e(f"{p}_OVNEXT:")
    e("    s_mov_b64 exec, -1")
    e("    s_cmp_lt_u32 s73, s44")
    e(f"    s_cbranch_scc1 {p}_OVLOAD")
    e("    s_cmp_eq_u64 s[46:47], 0")
    e(f"    s_cbranch_scc1 {p}_OVDONE")
    e("    s_ff1_i32_b64 s48, s[46:47]")
    e("    s_bitset0_b64 s[46:47], s48")
    e("    s_and_b32 s50, s48, 1")
    e("    s_lshl_b32 s50, s50, 7")
    e("    s_lshr_b32 s48, s48, 3")
    e("    s_add_u32 s48, s48, s50")
    e("    s_lshl_b32 s50, s3, 3")
    e("    s_add_u32 s48, s48, s50")
    e("    s_lshl_b32 s45, s48, 15")
    e("    s_mov_b32 s73, 0")
    e(f"{p}_OVLOAD:")
    e("    v_and_b32 v4, 63, v0")
    e("    v_add_u32 v4, s73, v4")
    e("    v_lshlrev_b32 v5, 3, v4")
    e("    v_mov_b32 v3, 0")
    e("    buffer_load_dword v6, v3, s[36:39], s45 offen")
    e("    buffer_load_dwordx2 v[28:29], v5, s[36:39], s45 offen offset:64")
    e("    s_add_u32 s73, s73, 64")
    e("    s_waitcnt vmcnt(0)")
    e("    v_readfirstlane_b32 s44, v6")
    e(f"    v_mul_u32_u24 v30, {TM}, v29")
    e("    v_lshrrev_b32 v31, 20, v30")
    e("    v_cmp_lt_u32 vcc, v4, v6")
    e(f"    v_cmp_eq_u32 {PEND(7)}, s2, v31")
    e(f"    s_and_b64 {PEND(7)}, {PEND(7)}, vcc")
    e(f"    s_min_u32 s44, s44, {4*NTHR}")
    e("    v_lshrrev_b32 v30, 12, v30")
    e("    v_bfi_b32 v30, 15, v29, v30")
    decode(28, 30, 7)
    e(f"    s_branch {p}_OVL")
    e(f"{p}_OVDONE:")
    e(f"    s_or_b64 s[50:51], {PEND(0)}, {PEND(1)}")
    for s in range(2, 8):
        e(f"    s_or_b64 s[50:51], s[50:51], {PEND(s)}")
    e("    s_mov_b64 exec, s[50:51]")
    e(f"    s_cbranch_execz {p}_NOMORE")
    e(f"    v_mov_b32 v2, {MORE}")
    e("    ds_write_b32 v2, v11")
    e(f"{p}_NOMORE:")
    e("    s_mov_b64 exec, -1")
    e("    s_lshl_b32 s48, s3, 4")
    e(f"    s_add_u32 s48, s48, {CNT}")
    e("    v_mov_b32 v2, s48")
    e(f"    v_mov_b32 v3, {MORE}")
    e("    s_waitcnt lgkmcnt(0)")
    e("    s_barrier")
    stamp(3)
    e("    ds_read_b128 v[4:7], v2")
    e("    ds_read_b32 v3, v3")
    e("    v_bfe_u32 v2, v0, 4, 2")
    e("    v_lshl_add_u32 v28, v85, 2, v2")
    e(f"    s_mul_i32 s48, s3, {4*BSTR}")
    e(f"    s_add_u32 s48, s48, {BINS}")
    e("    v_lshlrev_b32 v96, 6, v28")
    e("    v_add_u32 v96, s48, v96")
    e("    s_waitcnt lgkmcnt(0)")
    for k in range(4):
        e(f"    v_min_u32 v{4+k}, {CAP}, v{4+k}")
        e(f"    v_add_u32 v{4+k}, 7, v{4+k}")
        e(f"    v_lshrrev_b32 v{4+k}, 3, v{4+k}")
    e("    v_readfirstlane_b32 s82, v3")
    e("    v_mov_b32 v29, 0")
    for k in range(3):
        e(f"    v_add_u32 v29, v29, v{4+k}")
        e(f"    v_lshlrev_b32 v30, 6, v{4+k}")
        e("    v_cmp_ge_u32 vcc, v28, v29")
        e(f"    v_sub_u32 v30, {BSTR}, v30")
        e("    s_nop 0")
        e("    v_cndmask_b32 v30, 0, v30, vcc")
        e("    v_add_u32 v96, v96, v30")
    e("    v_add_u32 v29, v29, v7")
    e("    v_cmp_ge_u32 vcc, v28, v29")
    e(f"    v_mov_b32 v30, {PADOCT}")
    e("    v_readfirstlane_b32 s83, v29")
    e("    v_cndmask_b32 v96, v96, v30, vcc")
    e("    s_add_u32 s83, s83, 3")
    e("    s_lshr_b32 s83, s83, 2")
    e("    s_cmp_eq_u32 s83, 0")
    e(f"    s_cbranch_scc1 {p}_MAINDONE")
    e("    s_mov_b32 s48, 0x07060302")

    def read_recs():
        e("    v_add_u32_dpp v97, v96, v86 row_newbcast:0 row_mask:0xf bank_mask:0xf")
        e("    v_add_u32_dpp v98, v96, v87 row_newbcast:0 row_mask:0xf bank_mask:0xf")
        e("    v_add_u32_dpp v99, v96, v88 row_newbcast:0 row_mask:0xf bank_mask:0xf")
        e("    v_mov_b32_dpp v96, v96 row_shl:1 row_mask:0xf bank_mask:0xf")
        e("    ds_read_b128 v[100:103], v97")
        e("    ds_read_b128 v[104:107], v98")
        e("    ds_read_b128 v[108:111], v99")

    def issue_dma():
        for i in range(4):
            e(f"    v_add_u32 v{100+i}, v{100+i}, v{80+i}")
        for i in range(4):
            e(f"    buffer_load_dwordx4 v{100+i}, s[40:43], 0 offen offset:{1024*i} lds")

    def build_b():
        for j in range(8):
            e(f"    v_bfe_i32 v{116+j}, v{104+j}, v85, 1")
        for j in range(8):
            e(f"    v_and_b32 v{116+j}, v{116+j}, v{104+j}")
        for j in range(4):
            e(f"    v_perm_b32 v{112+j}, v{116+2*j+1}, v{116+2*j}, s48")

    e("    s_nop 1")
    read_recs()
    e("    s_waitcnt lgkmcnt(0)")
    issue_dma()
    build_b()
    read_recs()
    e(f"{p}_LOOP:")
    e("    s_waitcnt vmcnt(0)")
    for t in range(4):
        for u in range(2):
            e(f"    ds_read_b64_tr_b16 v[{12+4*t+2*u}:{13+4*t+2*u}], v{tr[(t,u)]}")
    e("    s_sub_u32 s83, s83, 1")
    e("    s_cmp_eq_u32 s83, 0")
    e("    s_waitcnt lgkmcnt(0)")
    e(f"    s_cbranch_scc1 {p}_LAST")
    issue_dma()
    for t in range(4):
        e(f"    v_mfma_f32_16x16x32_bf16 v[{64+4*t}:{67+4*t}], v[{12+4*t}:{15+4*t}], v[112:115], v[{64+4*t}:{67+4*t}]")
    build_b()
    read_recs()
    e(f"    s_branch {p}_LOOP")
    e(f"{p}_LAST:")
    for t in range(4):
        e(f"    v_mfma_f32_16x16x32_bf16 v[{64+4*t}:{67+4*t}], v[{12+4*t}:{15+4*t}], v[112:115], v[{64+4*t}:{67+4*t}]")
    e(f"{p}_MAINDONE:")
    e("    s_cmp_eq_u32 s82, 0")
    e(f"    s_cbranch_scc1 {p}_EPI")
    e("    s_barrier")
    fill_lds(p + "B")
    e("    s_waitcnt lgkmcnt(0)")
    e("    s_barrier")
    e(f"    s_branch {p}_ROUND")
    e(f"{p}_EPI:")
    stamp(4)
    e("    s_lshl_b32 s48, s2, 4")
    e("    s_add_u32 s48, s48, s3")
    e("    s_mul_i32 s50, s48, 50006")
    e("    s_lshr_b32 s50, s50, 12")
    e("    v_subrev_u32 v2, s50, v85")
    e("    v_and_b32 v2, 15, v2")
    e("    v_add_u32 v2, s50, v2")
    e(f"    v_mul_u32_u24 v3, {TM}, v2")
    e("    v_lshrrev_b32 v3, 16, v3")
    e("    v_cmp_eq_u32 s[52:53], s48, v3")
    e("    v_bfe_u32 v4, v0, 4, 2")
    e("    v_lshlrev_b32 v2, 7, v2")
    e("    v_lshl_add_u32 v2, v4, 4, v2")
    e("    v_and_b32 v4, 1, v4")
    e("    v_cmp_eq_u32 s[54:55], 1, v4")
    if hop == 2:
        e("    v_and_b32 v5, 63, v0")
        e("    v_lshrrev_b32 v6, 4, v5")
        e("    v_bfe_u32 v7, v5, 2, 2")
        e("    v_lshl_add_u32 v6, v6, 3, v7")
        e("    v_lshlrev_b32 v6, 7, v6")
        e("    v_and_b32 v7, 3, v5")
        e("    v_lshl_add_u32 v6, v7, 4, v6")
        e(f"    v_add_u32 v6, {WL}, v6")
        for s in range(2):
            for t in range(4):
                for u in range(2):
                    off = (32 * s + 4 * u) * 128 + 64 * (t >> 1) + 8 * (t & 1)
                    r = 80 + (s * 4 + t) * 4 + 2 * u
                    e(f"    ds_read_b64_tr_b16 v[{r}:{r+1}], v6 offset:{off}")
    e("    s_nop 7")
    for t in range(4):
        e(f"    v_cvt_pk_bf16_f32 v{12+2*t}, v{64+4*t}, v{65+4*t}")
        e(f"    v_cvt_pk_bf16_f32 v{13+2*t}, v{66+4*t}, v{67+4*t}")
    e("    s_mov_b64 exec, s[54:55]")
    e("    v_swap_b32 v12, v14")
    e("    v_swap_b32 v13, v15")
    e("    v_swap_b32 v16, v18")
    e("    v_swap_b32 v17, v19")
    if hop == 2:
        e("    s_mov_b64 exec, -1")
        e("    s_waitcnt lgkmcnt(0)")
        e("    s_nop 1")
        for t in range(4):
            e(f"    v_mfma_f32_16x16x32_bf16 v[{64+4*t}:{67+4*t}], v[{80+4*t}:{83+4*t}], v[12:15], 0")
        for t in range(4):
            e(f"    v_mfma_f32_16x16x32_bf16 v[{64+4*t}:{67+4*t}], v[{96+4*t}:{99+4*t}], v[16:19], v[{64+4*t}:{67+4*t}]")
        e("    s_nop 7")
        e("    s_nop 1")
        for t in range(4):
            e(f"    v_cvt_pk_bf16_f32 v{12+2*t}, v{64+4*t}, v{65+4*t}")
            e(f"    v_cvt_pk_bf16_f32 v{13+2*t}, v{66+4*t}, v{67+4*t}")
    e("    s_mov_b64 exec, s[52:53]")
    fl = ST_H1 if hop == 1 else ST_OUT
    e(f"    buffer_store_dwordx4 v[12:15], v2, s[68:71], 0 offen {fl}")
    e(f"    buffer_store_dwordx4 v[16:19], v2, s[68:71], 0 offen offset:64 {fl}")
    stamp_out(hop, name, 6)
    e(f"{p}_END:")
    e("    s_endpgm")
    return name


def desc(name, vg):
    e(f".amdhsa_kernel {name}")
    e(f"  .amdhsa_next_free_vgpr {vg}")
    e("  .amdhsa_next_free_sgpr 102")
    e(f"  .amdhsa_accum_offset {(vg+3)//4*4}")
    e("  .amdhsa_group_segment_fixed_size 0")
    e("  .amdhsa_kernarg_size 64")
    e("  .amdhsa_user_sgpr_count 2")
    e("  .amdhsa_user_sgpr_kernarg_segment_ptr 1")
    e("  .amdhsa_system_sgpr_workgroup_id_x 1")
    e(".end_amdhsa_kernel")


e(f"; @launch kernel=sgc_bucket_kernel grid=(256,1,1) block=(1024,1,1) lds={K1_LDS}")
e(f"; @launch kernel=sgc_hop1_kernel grid=(256,1,1) block=(1024,1,1) lds={K2_LDS}")
e(f"; @launch kernel=sgc_hop2_kernel grid=(256,1,1) block=(1024,1,1) lds={K2_LDS}")
for i in range(NEXTRA):
    e("; @launch kernel=sgc_nop_kernel grid=(256,1,1) block=(64,1,1) lds=0")
e('.amdgcn_target "amdgcn-amd-amdhsa--gfx950"')
e(".text")
names = [(k1(), 40), (k23(1), 125), (k23(2), 125)]
if NEXTRA:
    kernel_head("sgc_nop_kernel")
    e("    s_endpgm")
    names.append(("sgc_nop_kernel", 8))
e('.section .rodata,"a"')
for n, vg in names:
    e(".p2align 6")
    desc(n, vg)
open(OUT, "w").write("\n".join(L) + "\n")
```

```python
import sys

DIAG = "--diag" in sys.argv
OUT = [a for a in sys.argv[1:] if not a.startswith("--")][0]
OPT = dict(a[2:].split("=") for a in sys.argv[1:] if a.startswith("--") and "=" in a)

N = 50000
E = 850000
ET = 800000
TM = 5368
CH = 3128
NMAIN = CH // 4
TCH = 196
NTHR = NMAIN + TCH // 4
SLOTCAP = 24
WS_SLOTS = 0
WS_OVF = 8 << 20
OVF_STRIDE = 32768
WS_H1 = 16 << 20
WS_STAMP = 32 << 20
TABBYTES = N * 128

K1_IMG = 0
K1_LS = 132
K1_CNT = 256 * K1_LS
K1_LDS = K1_CNT + 4096
STG = 0
BINS = 65536
BSTR = 800
CAP = 96
PADOCT = BINS + 64 * BSTR
CNT = PADOCT + 64
MORE = CNT + 256
WL = MORE + 64
K2_LDS = WL + 8192
PADV = 0x40000000

WARM = int(OPT.get("warm", 0))
PF2 = int(OPT.get("pf2", 0))
PF3 = int(OPT.get("pf3", 0))
ST_SLOT = OPT.get("stslot", "")
ST_H1 = OPT.get("sth1", "")
ST_OUT = OPT.get("stout", "")
LD_IN = OPT.get("ldin", "")
LD_SLOT = OPT.get("ldslot", "")
NEXTRA = int(OPT.get("extra", 0))

L = []


def e(s=""):
    L.append(s)


def srd(d, lo, hi, nbytes, off=0):
    if off == 0:
        e(f"    s_mov_b32 s{d}, s{lo}")
        e(f"    s_and_b32 s{d+1}, s{hi}, 0xffff")
    elif off > 0:
        e(f"    s_add_u32 s{d}, s{lo}, {off}")
        e(f"    s_addc_u32 s{d+1}, s{hi}, 0")
        e(f"    s_and_b32 s{d+1}, s{d+1}, 0xffff")
    else:
        e(f"    s_sub_u32 s{d}, s{lo}, {-off}")
        e(f"    s_subb_u32 s{d+1}, s{hi}, 0")
        e(f"    s_and_b32 s{d+1}, s{d+1}, 0xffff")
    e(f"    s_mov_b32 s{d+2}, {nbytes}")
    e(f"    s_mov_b32 s{d+3}, 0x20000")


STAMP_BASE = 84


def stamp(i):
    if DIAG:
        e(f"    s_memrealtime s[{STAMP_BASE+2*i}:{STAMP_BASE+2*i+1}]")


def stamp_out(kid, name, nst):
    if not DIAG:
        return
    e("    s_waitcnt vmcnt(0) lgkmcnt(0)")
    stamp(nst - 1)
    e("    s_waitcnt lgkmcnt(0)")
    e("    s_mov_b64 exec, -1")
    e("    v_and_b32 v2, 63, v0")
    e("    v_cmp_eq_u32 vcc, 0, v2")
    e("    s_and_saveexec_b64 s[80:81], vcc")
    srd(76, 18, 19, 1 << 20, WS_STAMP + kid * (1 << 20))
    e("    v_lshrrev_b32 v2, 6, v0")
    e("    s_lshl_b32 s82, s2, 4")
    e("    v_add_u32 v2, s82, v2")
    e("    v_lshlrev_b32 v2, 6, v2")
    for i in range(nst):
        e(f"    v_mov_b32 v3, s{STAMP_BASE+2*i}")
        e(f"    buffer_store_dword v3, v2, s[76:79], 0 offen offset:{4*i}")
    e("    s_getreg_b32 s82, hwreg(HW_REG_XCC_ID)")
    e("    v_mov_b32 v3, s82")
    e("    buffer_store_dword v3, v2, s[76:79], 0 offen offset:32")
    e("    s_getreg_b32 s82, hwreg(HW_REG_HW_ID)")
    e("    v_mov_b32 v3, s82")
    e("    buffer_store_dword v3, v2, s[76:79], 0 offen offset:36")


def kernel_head(name):
    e(f".globl {name}")
    e(".p2align 8")
    e(f".type {name},@function")
    e(f"{name}:")


def k1():
    name = "sgc_bucket_kernel"
    kernel_head(name)
    stamp(0)
    e("    s_cmp_ge_u32 s2, 256")
    e("    s_cbranch_scc1 K1_END")
    e("    s_load_dwordx8 s[4:11], s[0:1], 0")
    e("    s_load_dwordx8 s[12:19], s[0:1], 32")
    e("    v_lshlrev_b32 v1, 2, v0")
    e("    v_mov_b32 v2, 0")
    e(f"    ds_write_b32 v1, v2 offset:{K1_CNT}")
    e(f"    s_mul_i32 s44, s2, {CH}")
    e(f"    s_mul_i32 s45, s2, {TCH}")
    e(f"    s_add_u32 s45, s45, {ET - 4*NMAIN}")
    e("    v_add_u32 v4, s44, v1")
    e("    v_add_u32 v5, s45, v1")
    e(f"    v_cmp_gt_u32 vcc, {NMAIN}, v0")
    e(f"    v_mov_b32 v7, {E}")
    e(f"    v_mov_b32 v3, {ET}")
    e("    v_cndmask_b32 v6, v5, v4, vcc")
    e("    v_cndmask_b32 v7, v7, v3, vcc")
    e("    v_cmp_lt_u32 s[46:47], v6, v7")
    e(f"    v_cmp_gt_u32 vcc, {NTHR}, v0")
    e("    v_sub_u32 v8, v6, v3")
    e("    s_and_b64 s[46:47], s[46:47], vcc")
    e("    v_lshlrev_b32 v4, 2, v6")
    e("    v_lshlrev_b32 v5, 1, v6")
    e("    s_waitcnt lgkmcnt(0)")
    srd(20, 6, 7, E * 4)
    srd(24, 8, 9, E * 4)
    srd(28, 10, 11, E * 2)
    srd(32, 18, 19, 256 * 256 * 128, WS_SLOTS)
    srd(36, 18, 19, 256 * OVF_STRIDE, WS_OVF)
    srd(40, 4, 5, TABBYTES)
    e("    s_mov_b64 exec, s[46:47]")
    e("    s_cbranch_execz K1_NOLOAD")
    e(f"    buffer_load_dwordx4 v[12:15], v4, s[24:27], 0 offen {LD_IN}")
    e(f"    buffer_load_dwordx4 v[16:19], v4, s[20:23], 0 offen {LD_IN}")
    e(f"    buffer_load_dwordx2 v[20:21], v5, s[28:31], 0 offen {LD_IN}")
    e("K1_NOLOAD:")
    e("    s_mov_b64 exec, -1")
    if WARM:
        per = (WARM // 128 + 31) // 32
        assert per <= 1024
        e("    s_lshr_b32 s48, s2, 3")
        e(f"    s_mul_i32 s48, s48, {per}")
        e("    v_add_u32 v9, s48, v0")
        e("    v_lshlrev_b32 v9, 7, v9")
        e(f"    v_cmp_gt_u32 vcc, {per}, v0")
        e(f"    v_mov_b32 v10, {PADV}")
        e("    s_nop 0")
        e("    v_cndmask_b32 v9, v10, v9, vcc")
        e("    buffer_load_dword v10, v9, s[40:43], 0 offen")
    e("    s_barrier")
    stamp(1)
    e("    s_mov_b64 exec, s[46:47]")
    e("    s_cbranch_execz K1_OUT")
    e("    v_mov_b32 v11, 1")
    e("    s_mov_b32 s49, 0xffff0000")
    e("    s_waitcnt vmcnt(%d)" % (3 if WARM else 2))
    for k in range(4):
        e(f"    v_mul_u32_u24 v{24+k}, {TM}, v{12+k}")
        e(f"    v_add_u32 v2, {k}, v8")
        e(f"    v_lshrrev_b32 v{28+k}, 20, v{24+k}")
        e(f"    v_cmp_ne_u32 s[{52+2*k}:{53+2*k}], v{12+k}, v2")
        e(f"    v_lshlrev_b32 v{36+k}, 2, v{28+k}")
    for k in range(4):
        e(f"    s_mov_b64 exec, s[{52+2*k}:{53+2*k}]")
        e(f"    ds_add_rtn_u32 v{32+k}, v{36+k}, v11 offset:{K1_CNT}")
    e("    s_mov_b64 exec, s[46:47]")
    e("    s_waitcnt vmcnt(%d)" % (1 if WARM else 0))
    stamp(2)
    for k in range(4):
        if k % 2 == 0:
            e(f"    v_lshl_or_b32 v{16+k}, v{20+k//2}, 16, v{16+k}")
        else:
            e(f"    v_and_or_b32 v{16+k}, v{20+k//2}, s49, v{16+k}")
        e(f"    v_lshrrev_b32 v{24+k}, 12, v{24+k}")
        e(f"    v_mul_u32_u24 v{28+k}, {K1_LS}, v{28+k}")
        e(f"    v_bfi_b32 v{24+k}, 15, v{12+k}, v{24+k}")
    e("    s_mov_b64 s[60:61], 0")
    for k in range(4):
        e(f"    s_mov_b64 exec, s[{52+2*k}:{53+2*k}]")
        e(f"    s_waitcnt lgkmcnt({min(3-k+2*k, 15)})")
        e(f"    v_cmp_gt_u32 vcc, {SLOTCAP}, v{32+k}")
        e(f"    v_and_b32 v2, 7, v{32+k}")
        e(f"    v_lshrrev_b32 v3, 3, v{32+k}")
        e(f"    s_andn2_b64 s[{52+2*k}:{53+2*k}], exec, vcc")
        e(f"    s_or_b64 s[60:61], s[60:61], s[{52+2*k}:{53+2*k}]")
        e("    s_mov_b64 exec, vcc")
        e(f"    v_lshl_add_u32 v2, v2, 4, v{28+k}")
        e("    v_lshl_add_u32 v4, v3, 2, v2")
        e("    v_add_u32 v5, v3, v2")
        e(f"    ds_write_b32 v4, v{16+k}")
        e(f"    ds_write_b8 v5, v{24+k} offset:12")
    e("    s_cmp_eq_u64 s[60:61], 0")
    e("    s_cbranch_scc1 K1_OUT")
    e("    s_lshl_b32 s62, s2, 15")
    e("    v_mov_b32 v2, 1024")
    for k in range(4):
        e(f"    s_mov_b64 exec, s[{52+2*k}:{53+2*k}]")
        e(f"    s_cbranch_execz K1_OV{k}")
        e("    v_mov_b32 v2, 1024")
        e(f"    ds_add_rtn_u32 v3, v2, v11 offset:{K1_CNT}")
        e(f"    v_mov_b32 v4, v{16+k}")
        e(f"    v_mov_b32 v5, v{12+k}")
        e("    s_waitcnt lgkmcnt(0)")
        e("    v_lshlrev_b32 v3, 3, v3")
        e("    buffer_store_dwordx2 v[4:5], v3, s[36:39], s62 offen offset:64")
        e("    s_waitcnt vmcnt(0)")
        e(f"K1_OV{k}:")
    e("K1_OUT:")
    e("    s_mov_b64 exec, -1")
    e("    v_lshrrev_b32 v2, 3, v0")
    e("    v_and_b32 v3, 7, v0")
    e(f"    v_mul_u32_u24 v4, {K1_LS}, v2")
    e("    v_lshl_add_u32 v4, v3, 4, v4")
    e(f"    v_add_u32 v5, {128*K1_LS}, v4")
    e("    v_lshlrev_b32 v6, 2, v2")
    e("    v_lshlrev_b32 v7, 15, v2")
    e("    v_lshl_add_u32 v7, v3, 4, v7")
    e("    s_lshl_b32 s62, s2, 7")
    e(f"    s_add_u32 s63, s62, {128*32768}")
    e("    s_mov_b32 s64, 0xffffff")
    e("    s_waitcnt lgkmcnt(0)")
    e("    s_barrier")
    stamp(3)
    e("    ds_read2_b32 v[12:13], v4 offset0:0 offset1:1")
    e("    ds_read2_b32 v[14:15], v4 offset0:2 offset1:3")
    e(f"    ds_read_b32 v20, v6 offset:{K1_CNT}")
    e("    ds_read2_b32 v[16:17], v5 offset0:0 offset1:1")
    e("    ds_read2_b32 v[18:19], v5 offset0:2 offset1:3")
    e(f"    ds_read_b32 v21, v6 offset:{K1_CNT+512}")
    e("    v_mov_b32 v8, 1024")
    e(f"    ds_read_b32 v22, v8 offset:{K1_CNT}")
    e("    s_waitcnt lgkmcnt(4)")
    e("    v_min_u32 v20, 255, v20")
    e("    v_lshlrev_b32 v20, 24, v20")
    e("    v_and_or_b32 v15, v15, s64, v20")
    e(f"    buffer_store_dwordx4 v[12:15], v7, s[32:35], s62 offen {ST_SLOT}")
    e("    s_waitcnt lgkmcnt(1)")
    e("    v_min_u32 v21, 255, v21")
    e("    v_lshlrev_b32 v21, 24, v21")
    e("    v_and_or_b32 v19, v19, s64, v21")
    e(f"    buffer_store_dwordx4 v[16:19], v7, s[32:35], s63 offen {ST_SLOT}")
    e("    v_cmp_eq_u32 vcc, 0, v0")
    e("    s_and_saveexec_b64 s[50:51], vcc")
    e("    s_cbranch_execz K1_FIN")
    e("    s_lshl_b32 s62, s2, 15")
    e("    v_mov_b32 v8, 0")
    e("    s_waitcnt lgkmcnt(0)")
    e("    buffer_store_dword v22, v8, s[36:39], s62 offen")
    e("K1_FIN:")
    stamp_out(0, name, 5)
    e("K1_END:")
    e("    s_endpgm")
    return name


def decode(rec, dl, s):
    ca, d0, d1 = 40 + s, 48 + s, 56 + s
    e(f"    v_and_b32 v{d0}, 0xffff, v{rec}")
    e(f"    v_and_b32 v2, 15, v{dl}")
    e(f"    v_mul_u32_u24 v{ca}, {TM}, v{d0}")
    e(f"    v_lshlrev_b32 v{d0}, 7, v{d0}")
    e(f"    v_lshrrev_b32 v{ca}, 24, v{ca}")
    e(f"    v_lshlrev_b32 v2, v2, v11")
    e(f"    v_bfi_b32 v{ca}, 12, v{ca}, v{dl}")
    e(f"    v_and_or_b32 v{d1}, v{rec}, s49, v2")
    e(f"    v_and_b32 v{ca}, 0xfc, v{ca}")


def PEND(s):
    return f"s[{52+2*s}:{53+2*s}]"


def binwrite(s, rank):
    ca, d0, d1 = 40 + s, 48 + s, 56 + s
    e(f"    v_cmp_gt_u32 vcc, {CAP}, v{rank}")
    e(f"    v_mul_u32_u24 v2, {BSTR//4}, v{ca}")
    e(f"    v_lshrrev_b32 v3, 3, v{rank}")
    e(f"    s_andn2_b64 {PEND(s)}, exec, vcc")
    e("    s_mov_b64 exec, vcc")
    e(f"    v_lshl_add_u32 v2, v{rank}, 2, v2")
    e("    v_lshl_add_u32 v2, v3, 5, v2")
    e("    v_add_u32 v2, s75, v2")
    e(f"    ds_write2_b32 v2, v{d0}, v{d1} offset0:0 offset1:8")


def fill_lds(p):
    e("    v_lshlrev_b32 v2, 4, v0")
    e(f"    v_add_u32 v2, {BINS}, v2")
    e(f"    v_mov_b32 v4, {PADV}")
    e(f"    v_mov_b32 v5, {PADV}")
    e(f"    v_mov_b32 v6, {PADV}")
    e(f"    v_mov_b32 v7, {PADV}")
    e("    ds_write_b128 v2, v[4:7]")
    e("    ds_write_b128 v2, v[4:7] offset:16384")
    e("    ds_write_b128 v2, v[4:7] offset:32768")
    npad = (CNT - BINS) // 16 - 3072
    nzero = (WL - CNT) // 16
    e(f"    v_cmp_gt_u32 vcc, {npad+nzero}, v0")
    e("    s_and_saveexec_b64 s[50:51], vcc")
    e(f"    s_cbranch_execz {p}_FILLD")
    e(f"    v_cmp_gt_u32 vcc, {npad}, v0")
    e("    s_nop 1")
    e("    v_cndmask_b32 v4, 0, v4, vcc")
    e("    v_cndmask_b32 v5, 0, v5, vcc")
    e("    v_cndmask_b32 v6, 0, v6, vcc")
    e("    v_cndmask_b32 v7, 0, v7, vcc")
    e("    ds_write_b128 v2, v[4:7] offset:49152")
    e(f"{p}_FILLD:")
    e("    s_mov_b64 exec, -1")


def k23(hop):
    name = f"sgc_hop{hop}_kernel"
    p = f"K{hop+1}"
    kernel_head(name)
    stamp(0)
    e("    s_cmp_ge_u32 s2, 256")
    e(f"    s_cbranch_scc1 {p}_END")
    e("    s_load_dwordx8 s[4:11], s[0:1], 0")
    e("    s_load_dwordx8 s[12:19], s[0:1], 32")
    e("    v_lshrrev_b32 v1, 6, v0")
    e("    v_lshlrev_b32 v8, 4, v0")
    e("    v_readfirstlane_b32 s3, v1")
    e("    s_lshl_b32 s44, s2, 15")
    e("    s_add_u32 s45, s44, 16384")
    e("    v_lshrrev_b32 v2, 4, v0")
    e("    s_lshl_b32 s48, s2, 4")
    e("    v_add_u32 v2, s48, v2")
    e("    v_mul_u32_u24 v3, 50006, v2")
    e("    v_lshrrev_b32 v3, 12, v3")
    e("    v_sub_u32 v4, v0, v3")
    e("    v_and_b32 v4, 15, v4")
    e("    v_add_u32 v9, v3, v4")
    e(f"    v_mul_u32_u24 v4, {TM}, v9")
    e("    v_lshrrev_b32 v4, 16, v4")
    e("    v_cmp_eq_u32 s[64:65], v4, v2")
    e(f"    v_cmp_gt_u32 vcc, {N}, v9")
    e("    s_and_b64 s[64:65], s[64:65], vcc")
    e("    v_cmp_gt_u32 vcc, 256, v0")
    e("    s_and_b64 s[64:65], s[64:65], vcc")
    e(f"    v_add_u32 v4, {ET}, v9")
    e("    v_lshlrev_b32 v5, 2, v4")
    e("    v_lshlrev_b32 v4, 1, v4")
    e("    s_waitcnt lgkmcnt(0)")
    srd(32, 18, 19, 256 * 256 * 128, WS_SLOTS)
    e(f"    buffer_load_dwordx4 v[12:15], v8, s[32:35], s44 offen {LD_SLOT}")
    e(f"    buffer_load_dwordx4 v[16:19], v8, s[32:35], s45 offen {LD_SLOT}")
    srd(20, 6, 7, E * 4)
    srd(24, 8, 9, E * 4)
    srd(28, 10, 11, E * 2)
    srd(36, 18, 19, 256 * OVF_STRIDE, WS_OVF)
    e("    v_mov_b32 v20, -1")
    e("    s_mov_b64 exec, s[64:65]")
    e(f"    s_cbranch_execz {p}_NOTAIL")
    e("    buffer_load_dword v20, v5, s[24:27], 0 offen")
    e("    buffer_load_dword v21, v5, s[20:23], 0 offen")
    e("    buffer_load_ushort v22, v4, s[28:31], 0 offen")
    e(f"{p}_NOTAIL:")
    e("    s_mov_b64 exec, -1")
    if hop == 1:
        srd(40, 4, 5, TABBYTES + 3072, -3072)
        srd(68, 18, 19, TABBYTES, WS_H1)
    else:
        srd(40, 18, 19, TABBYTES + 3072, WS_H1 - 3072)
        srd(68, 14, 15, TABBYTES)
        srd(20, 12, 13, 8192)
        e("    buffer_load_dwordx4 v[24:27], v8, s[20:23], 0 offen")
    PF = PF2 if hop == 1 else PF3
    if PF:
        per = (PF // 128 + 31) // 32
        assert per <= 1024
        e("    s_lshr_b32 s48, s2, 3")
        e(f"    s_mul_i32 s48, s48, {per}")
        e("    v_add_u32 v10, s48, v0")
        e("    v_lshlrev_b32 v10, 7, v10")
        e(f"    v_cmp_gt_u32 vcc, {per}, v0")
        e(f"    v_mov_b32 v31, {PADV}")
        e("    s_nop 0")
        e("    v_cndmask_b32 v10, v31, v10, vcc")
        e("    buffer_load_dword v124, v10, s[40:43], 0 offen offset:3072")
    fill_lds(p + "A")
    e("    v_mov_b32 v11, 1")
    e("    s_mov_b32 s49, 0xffff0000")
    e(f"    s_mov_b32 s75, {BINS}")
    e(f"    s_mov_b32 s74, {CNT}")
    e("    v_and_b32 v10, 7, v0")
    for i in range(16):
        e(f"    v_mov_b32 v{64+i}, 0")
    e("    v_and_b32 v2, 63, v0")
    for i in range(4):
        s = (i & 1) | ((i & 2) << 1)
        e(f"    v_xor_b32 v{80+i}, {s}, v10")
        e(f"    v_lshlrev_b32 v{80+i}, 4, v{80+i}")
        if i < 3:
            e(f"    v_add_u32 v{80+i}, {3072-1024*i}, v{80+i}")
    e("    v_and_b32 v85, 15, v0")
    e("    v_lshrrev_b32 v3, 4, v2")
    e("    v_bfe_u32 v4, v2, 3, 1")
    e("    v_lshlrev_b32 v86, 4, v4")
    e("    v_and_b32 v4, 1, v3")
    e("    v_lshlrev_b32 v5, 4, v4")
    e("    v_add_u32 v87, 32, v5")
    e("    v_xor_b32 v88, 16, v87")
    e("    v_bfe_u32 v6, v2, 2, 2")
    e("    v_and_b32 v7, 3, v2")
    e("    v_lshlrev_b32 v84, 10, v6")
    e("    v_lshl_add_u32 v84, v3, 8, v84")
    e("    v_lshl_add_u32 v84, v4, 7, v84")
    e("    v_and_b32 v5, 1, v6")
    e("    v_and_b32 v6, 2, v6")
    e("    v_lshl_or_b32 v5, v6, 1, v5")
    e("    v_xor_b32 v5, v5, v7")
    e("    v_lshl_add_u32 v84, v5, 4, v84")
    e("    v_and_b32 v7, 1, v7")
    e("    v_lshl_add_u32 v84, v7, 3, v84")
    e("    s_lshl_b32 s72, s3, 12")
    e("    v_add_u32 v84, s72, v84")
    e("    s_mov_b32 m0, s72")
    tr = {}
    nxt = 89
    for t in range(4):
        for u in range(2):
            x = 128 * u + 64 * (t >> 1) + 8 * (t & 1)
            if x == 0:
                tr[(t, u)] = 84
            else:
                e(f"    v_xor_b32 v{nxt}, {x}, v84")
                tr[(t, u)] = nxt
                nxt += 1
    if hop == 2:
        e("    s_waitcnt vmcnt(%d)" % (1 if PF else 0))
        e("    v_cmp_gt_u32 vcc, 512, v0")
        e("    s_and_saveexec_b64 s[50:51], vcc")
        e(f"    v_add_u32 v2, {WL}, v8")
        e("    ds_write_b128 v2, v[24:27]")
        e("    s_mov_b64 exec, -1")
    e("    s_waitcnt lgkmcnt(0)")
    e("    s_barrier")
    stamp(1)
    e("    s_waitcnt vmcnt(%d)" % (1 if PF else 0))
    stamp(2)
    for i in range(2):
        base = 12 + 4 * i
        e(f"    v_lshrrev_b32 v28, 24, v{base+3}")
        e("    v_sub_u32 v29, v28, v10")
        for k in range(3):
            e(f"    v_cmp_lt_i32 {PEND(3*i+k)}, {8*k}, v29")
        e(f"    v_cmp_eq_u32 vcc, 0, v10")
        e(f"    v_cmp_lt_u32 s[50:51], {SLOTCAP}, v28")
        e(f"    s_and_b64 s[{46 if i == 0 else 50}:{47 if i == 0 else 51}], s[50:51], vcc")
        for k in range(3):
            if k == 0:
                decode(base + k, base + 3, 3 * i + k)
            else:
                e(f"    v_lshrrev_b32 v30, {8*k}, v{base+3}")
                decode(base + k, 30, 3 * i + k)
    e("    s_lshl_b64 s[50:51], s[50:51], 1")
    e("    s_or_b64 s[46:47], s[46:47], s[50:51]")
    e("    v_cmp_eq_u32 vcc, v20, v9")
    e("    s_and_b64 s[64:65], s[64:65], vcc")
    e("    v_lshl_or_b32 v21, v22, 16, v21")
    e("    v_bfi_b32 v30, 15, v9, v0")
    decode(21, 30, 6)
    e(f"    s_mov_b64 {PEND(7)}, 0")
    e("    s_mov_b32 s73, 0")
    e("    s_mov_b32 s44, 0")
    e("    s_mov_b32 s45, 0")
    e(f"{p}_ROUND:")
    for s in range(7):
        e(f"    s_mov_b64 exec, {PEND(s)}")
        e(f"    v_add_u32 v2, s74, v{40+s}")
        e(f"    ds_add_rtn_u32 v{32+s}, v2, v11")
    for s in range(7):
        e(f"    s_mov_b64 exec, {PEND(s)}")
        e(f"    s_waitcnt lgkmcnt(6)")
        binwrite(s, 32 + s)
    e(f"{p}_OVL:")
    e(f"    s_mov_b64 exec, {PEND(7)}")
    e(f"    s_cbranch_execz {p}_OVNEXT")
    e("    v_add_u32 v2, s74, v47")
    e("    ds_add_rtn_u32 v39, v2, v11")
    e("    s_waitcnt lgkmcnt(0)")
    binwrite(7, 39)
    e(f"    s_cmp_lg_u64 {PEND(7)}, 0")
    e(f"    s_cbranch_scc1 {p}_OVDONE")
    e(f"{p}_OVNEXT:")
    e("    s_mov_b64 exec, -1")
    e("    s_cmp_lt_u32 s73, s44")
    e(f"    s_cbranch_scc1 {p}_OVLOAD")
    e("    s_cmp_eq_u64 s[46:47], 0")
    e(f"    s_cbranch_scc1 {p}_OVDONE")
    e("    s_ff1_i32_b64 s48, s[46:47]")
    e("    s_bitset0_b64 s[46:47], s48")
    e("    s_and_b32 s50, s48, 1")
    e("    s_lshl_b32 s50, s50, 7")
    e("    s_lshr_b32 s48, s48, 3")
    e("    s_add_u32 s48, s48, s50")
    e("    s_lshl_b32 s50, s3, 3")
    e("    s_add_u32 s48, s48, s50")
    e("    s_lshl_b32 s45, s48, 15")
    e("    s_mov_b32 s73, 0")
    e(f"{p}_OVLOAD:")
    e("    v_and_b32 v4, 63, v0")
    e("    v_add_u32 v4, s73, v4")
    e("    v_lshlrev_b32 v5, 3, v4")
    e("    v_mov_b32 v3, 0")
    e("    buffer_load_dword v6, v3, s[36:39], s45 offen")
    e("    buffer_load_dwordx2 v[28:29], v5, s[36:39], s45 offen offset:64")
    e("    s_add_u32 s73, s73, 64")
    e("    s_waitcnt vmcnt(0)")
    e("    v_readfirstlane_b32 s44, v6")
    e(f"    v_mul_u32_u24 v30, {TM}, v29")
    e("    v_lshrrev_b32 v31, 20, v30")
    e("    v_cmp_lt_u32 vcc, v4, v6")
    e(f"    v_cmp_eq_u32 {PEND(7)}, s2, v31")
    e(f"    s_and_b64 {PEND(7)}, {PEND(7)}, vcc")
    e(f"    s_min_u32 s44, s44, {4*NTHR}")
    e("    v_lshrrev_b32 v30, 12, v30")
    e("    v_bfi_b32 v30, 15, v29, v30")
    decode(28, 30, 7)
    e(f"    s_branch {p}_OVL")
    e(f"{p}_OVDONE:")
    e(f"    s_or_b64 s[50:51], {PEND(0)}, {PEND(1)}")
    for s in range(2, 8):
        e(f"    s_or_b64 s[50:51], s[50:51], {PEND(s)}")
    e("    s_mov_b64 exec, s[50:51]")
    e(f"    s_cbranch_execz {p}_NOMORE")
    e(f"    v_mov_b32 v2, {MORE}")
    e("    ds_write_b32 v2, v11")
    e(f"{p}_NOMORE:")
    e("    s_mov_b64 exec, -1")
    e("    s_lshl_b32 s48, s3, 4")
    e(f"    s_add_u32 s48, s48, {CNT}")
    e("    v_mov_b32 v2, s48")
    e(f"    v_mov_b32 v3, {MORE}")
    e("    s_waitcnt lgkmcnt(0)")
    e("    s_barrier")
    stamp(3)
    e("    ds_read_b128 v[4:7], v2")
    e("    ds_read_b32 v3, v3")
    e("    v_bfe_u32 v2, v0, 4, 2")
    e("    v_lshl_add_u32 v28, v85, 2, v2")
    e(f"    s_mul_i32 s48, s3, {4*BSTR}")
    e(f"    s_add_u32 s48, s48, {BINS}")
    e("    v_lshlrev_b32 v96, 6, v28")
    e("    v_add_u32 v96, s48, v96")
    e("    s_waitcnt lgkmcnt(0)")
    for k in range(4):
        e(f"    v_min_u32 v{4+k}, {CAP}, v{4+k}")
        e(f"    v_add_u32 v{4+k}, 7, v{4+k}")
        e(f"    v_lshrrev_b32 v{4+k}, 3, v{4+k}")
    e("    v_readfirstlane_b32 s82, v3")
    e("    v_mov_b32 v29, 0")
    for k in range(3):
        e(f"    v_add_u32 v29, v29, v{4+k}")
        e(f"    v_lshlrev_b32 v30, 6, v{4+k}")
        e("    v_cmp_ge_u32 vcc, v28, v29")
        e(f"    v_sub_u32 v30, {BSTR}, v30")
        e("    s_nop 0")
        e("    v_cndmask_b32 v30, 0, v30, vcc")
        e("    v_add_u32 v96, v96, v30")
    e("    v_add_u32 v29, v29, v7")
    e("    v_cmp_ge_u32 vcc, v28, v29")
    e(f"    v_mov_b32 v30, {PADOCT}")
    e("    v_readfirstlane_b32 s83, v29")
    e("    v_cndmask_b32 v96, v96, v30, vcc")
    e("    s_add_u32 s83, s83, 3")
    e("    s_lshr_b32 s83, s83, 2")
    e("    s_cmp_eq_u32 s83, 0")
    e(f"    s_cbranch_scc1 {p}_MAINDONE")
    e("    s_mov_b32 s48, 0x07060302")

    def read_recs():
        e("    v_add_u32_dpp v97, v96, v86 row_newbcast:0 row_mask:0xf bank_mask:0xf")
        e("    v_add_u32_dpp v98, v96, v87 row_newbcast:0 row_mask:0xf bank_mask:0xf")
        e("    v_add_u32_dpp v99, v96, v88 row_newbcast:0 row_mask:0xf bank_mask:0xf")
        e("    v_mov_b32_dpp v96, v96 row_shl:1 row_mask:0xf bank_mask:0xf")
        e("    ds_read_b128 v[100:103], v97")
        e("    ds_read_b128 v[104:107], v98")
        e("    ds_read_b128 v[108:111], v99")

    def issue_dma():
        for i in range(4):
            e(f"    v_add_u32 v{100+i}, v{100+i}, v{80+i}")
        for i in range(4):
            e(f"    buffer_load_dwordx4 v{100+i}, s[40:43], 0 offen offset:{1024*i} lds")

    def build_b():
        for j in range(8):
            e(f"    v_bfe_i32 v{116+j}, v{104+j}, v85, 1")
        for j in range(8):
            e(f"    v_and_b32 v{116+j}, v{116+j}, v{104+j}")
        for j in range(4):
            e(f"    v_perm_b32 v{112+j}, v{116+2*j+1}, v{116+2*j}, s48")

    e("    s_nop 1")
    read_recs()
    e("    s_waitcnt lgkmcnt(0)")
    issue_dma()
    build_b()
    read_recs()
    e(f"{p}_LOOP:")
    e("    s_waitcnt vmcnt(0)")
    for t in range(4):
        for u in range(2):
            e(f"    ds_read_b64_tr_b16 v[{12+4*t+2*u}:{13+4*t+2*u}], v{tr[(t,u)]}")
    e("    s_sub_u32 s83, s83, 1")
    e("    s_cmp_eq_u32 s83, 0")
    e("    s_waitcnt lgkmcnt(0)")
    e(f"    s_cbranch_scc1 {p}_LAST")
    issue_dma()
    for t in range(4):
        e(f"    v_mfma_f32_16x16x32_bf16 v[{64+4*t}:{67+4*t}], v[{12+4*t}:{15+4*t}], v[112:115], v[{64+4*t}:{67+4*t}]")
    build_b()
    read_recs()
    e(f"    s_branch {p}_LOOP")
    e(f"{p}_LAST:")
    for t in range(4):
        e(f"    v_mfma_f32_16x16x32_bf16 v[{64+4*t}:{67+4*t}], v[{12+4*t}:{15+4*t}], v[112:115], v[{64+4*t}:{67+4*t}]")
    e(f"{p}_MAINDONE:")
    e("    s_cmp_eq_u32 s82, 0")
    e(f"    s_cbranch_scc1 {p}_EPI")
    e("    s_barrier")
    fill_lds(p + "B")
    e("    s_waitcnt lgkmcnt(0)")
    e("    s_barrier")
    e(f"    s_branch {p}_ROUND")
    e(f"{p}_EPI:")
    stamp(4)
    e("    s_lshl_b32 s48, s2, 4")
    e("    s_add_u32 s48, s48, s3")
    e("    s_mul_i32 s50, s48, 50006")
    e("    s_lshr_b32 s50, s50, 12")
    e("    v_subrev_u32 v2, s50, v85")
    e("    v_and_b32 v2, 15, v2")
    e("    v_add_u32 v2, s50, v2")
    e(f"    v_mul_u32_u24 v3, {TM}, v2")
    e("    v_lshrrev_b32 v3, 16, v3")
    e("    v_cmp_eq_u32 s[52:53], s48, v3")
    e("    v_bfe_u32 v4, v0, 4, 2")
    e("    v_lshlrev_b32 v2, 7, v2")
    e("    v_lshl_add_u32 v2, v4, 4, v2")
    e("    v_and_b32 v4, 1, v4")
    e("    v_cmp_eq_u32 s[54:55], 1, v4")
    if hop == 2:
        e("    v_and_b32 v5, 63, v0")
        e("    v_lshrrev_b32 v6, 4, v5")
        e("    v_bfe_u32 v7, v5, 2, 2")
        e("    v_lshl_add_u32 v6, v6, 3, v7")
        e("    v_lshlrev_b32 v6, 7, v6")
        e("    v_and_b32 v7, 3, v5")
        e("    v_lshl_add_u32 v6, v7, 4, v6")
        e(f"    v_add_u32 v6, {WL}, v6")
        for s in range(2):
            for t in range(4):
                for u in range(2):
                    off = (32 * s + 4 * u) * 128 + 64 * (t >> 1) + 8 * (t & 1)
                    r = 80 + (s * 4 + t) * 4 + 2 * u
                    e(f"    ds_read_b64_tr_b16 v[{r}:{r+1}], v6 offset:{off}")
    e("    s_nop 7")
    for t in range(4):
        e(f"    v_cvt_pk_bf16_f32 v{12+2*t}, v{64+4*t}, v{65+4*t}")
        e(f"    v_cvt_pk_bf16_f32 v{13+2*t}, v{66+4*t}, v{67+4*t}")
    e("    s_mov_b64 exec, s[54:55]")
    e("    v_swap_b32 v12, v14")
    e("    v_swap_b32 v13, v15")
    e("    v_swap_b32 v16, v18")
    e("    v_swap_b32 v17, v19")
    if hop == 2:
        e("    s_mov_b64 exec, -1")
        e("    s_waitcnt lgkmcnt(0)")
        e("    s_nop 1")
        for t in range(4):
            e(f"    v_mfma_f32_16x16x32_bf16 v[{64+4*t}:{67+4*t}], v[{80+4*t}:{83+4*t}], v[12:15], 0")
        for t in range(4):
            e(f"    v_mfma_f32_16x16x32_bf16 v[{64+4*t}:{67+4*t}], v[{96+4*t}:{99+4*t}], v[16:19], v[{64+4*t}:{67+4*t}]")
        e("    s_nop 7")
        e("    s_nop 1")
        for t in range(4):
            e(f"    v_cvt_pk_bf16_f32 v{12+2*t}, v{64+4*t}, v{65+4*t}")
            e(f"    v_cvt_pk_bf16_f32 v{13+2*t}, v{66+4*t}, v{67+4*t}")
    e("    s_mov_b64 exec, s[52:53]")
    fl = ST_H1 if hop == 1 else ST_OUT
    e(f"    buffer_store_dwordx4 v[12:15], v2, s[68:71], 0 offen {fl}")
    e(f"    buffer_store_dwordx4 v[16:19], v2, s[68:71], 0 offen offset:64 {fl}")
    stamp_out(hop, name, 6)
    e(f"{p}_END:")
    e("    s_endpgm")
    return name


def desc(name, vg):
    e(f".amdhsa_kernel {name}")
    e(f"  .amdhsa_next_free_vgpr {vg}")
    e("  .amdhsa_next_free_sgpr 102")
    e(f"  .amdhsa_accum_offset {(vg+3)//4*4}")
    e("  .amdhsa_group_segment_fixed_size 0")
    e("  .amdhsa_kernarg_size 64")
    e("  .amdhsa_user_sgpr_count 2")
    e("  .amdhsa_user_sgpr_kernarg_segment_ptr 1")
    e("  .amdhsa_system_sgpr_workgroup_id_x 1")
    e(".end_amdhsa_kernel")


e(f"; @launch kernel=sgc_bucket_kernel grid=(256,1,1) block=(1024,1,1) lds={K1_LDS}")
e(f"; @launch kernel=sgc_hop1_kernel grid=(256,1,1) block=(1024,1,1) lds={K2_LDS}")
e(f"; @launch kernel=sgc_hop2_kernel grid=(256,1,1) block=(1024,1,1) lds={K2_LDS}")
for i in range(NEXTRA):
    e("; @launch kernel=sgc_nop_kernel grid=(256,1,1) block=(64,1,1) lds=0")
if OPT.get("spin"):
    e("; @launch kernel=sgc_spin_kernel grid=(1,1,1) block=(64,1,1) lds=0")
e('.amdgcn_target "amdgcn-amd-amdhsa--gfx950"')
e(".text")
names = [(k1(), 40), (k23(1), 125), (k23(2), 125)]
SPIN = OPT.get("spin")
if SPIN:
    ka, ia, kb, ib, mult = [int(v) for v in SPIN.split(",")]
    kernel_head("sgc_spin_kernel")
    e("    s_memrealtime s[30:31]")
    e("    s_cmp_ge_u32 s2, 1")
    e("    s_cbranch_scc1 SP_END")
    e("    s_load_dwordx8 s[12:19], s[0:1], 32")
    e("    v_lshlrev_b32 v1, 12, v0")
    e("    s_waitcnt lgkmcnt(0)")
    srd(20, 18, 19, 4 << 20, WS_STAMP)
    e(f"    s_mov_b32 s24, {ka << 20}")
    e(f"    s_mov_b32 s25, {(kb % 9) << 20}")
    e(f"    buffer_load_dword v2, v1, s[20:23], s24 offen offset:{4*ia}")
    e(f"    buffer_load_dword v3, v1, s[20:23], s25 offen offset:{4*ib}")
    e("    s_waitcnt vmcnt(0)")
    e("    v_subrev_u32 v2, s30, v2")
    e("    v_subrev_u32 v3, s30, v3")
    e("    s_mov_b32 s26, 0x7fffffff")
    e("    s_mov_b32 s27, 0x80000000")
    e("    s_nop 1")
    for l in range(64):
        e(f"    v_readlane_b32 s28, v2, {l}")
        e(f"    v_readlane_b32 s29, v3, {l}")
        e("    s_min_i32 s26, s26, s28")
        e("    s_max_i32 s27, s27, s29")
    if kb == 9:
        e("    s_mov_b32 s27, 0")
    e("    s_sub_i32 s26, s27, s26")
    e("    s_max_i32 s26, s26, 0")
    e("    s_min_i32 s26, s26, 20000")
    e(f"    s_mul_i32 s26, s26, {mult}")
    e("    s_add_u32 s26, s26, 300")
    e("SP_LOOP:")
    e("    s_memrealtime s[28:29]")
    e("    s_waitcnt lgkmcnt(0)")
    e("    s_sub_u32 s28, s28, s30")
    e("    s_cmp_lt_u32 s28, s26")
    e("    s_cbranch_scc1 SP_LOOP")
    e("SP_END:")
    e("    s_endpgm")
    names.append(("sgc_spin_kernel", 8))
if NEXTRA:
    kernel_head("sgc_nop_kernel")
    e("    s_endpgm")
    names.append(("sgc_nop_kernel", 8))
e('.section .rodata,"a"')
for n, vg in names:
    e(".p2align 6")
    desc(n, vg)
open(OUT, "w").write("\n".join(L) + "\n")
```

```python
import sys

OUT = [a for a in sys.argv[1:] if not a.startswith("--")][0]
OPT = dict(a[2:].split("=") for a in sys.argv[1:] if a.startswith("--") and "=" in a)
NAME = "standalone__spectral_conv_sgc__graph_kernel"
DEFST = "start,a_bar1,a_bar2,g1_exit,b_lines,b_bar1,b_bar2,h1_done,h1_st,g2_exit,h2_done,end"
STL = OPT.get("st", DEFST if "--diag" in sys.argv else "").split(",")
STL = [s for s in STL if s]
DIAG = len(STL) > 0


def I(name, dflt):
    return int(OPT.get(name, dflt))


N = 50000
E = 850000
ET = 800000
TM = 5368
CH = 3128
NMAIN = CH // 4
TCH = 196
NTHR = NMAIN + TCH // 4
SLOTCAP = 24
NINL = 7
WS_SLOTS = 0
WS_OVT = 8 << 20
WS_FLAG = WS_OVT + 65536
WS_H1 = WS_OVT + (1 << 20)
WS_OVF = 16 << 20
OVF_STRIDE = 32768
WS_STAMP = 32 << 20
TABBYTES = N * 128
PADV = 0x40000000

K1_LS = 132
K1_CNT = 256 * K1_LS
K1_OVC = 1024
K1_OVT = K1_CNT + 4096
K1_NON = K1_OVT + 64
LISTS = 65536
CAPT = 320
TSTR = CAPT * 8
CNTB = LISTS + 16 * TSTR + 256
BASES = CNTB + 1024
MORE = BASES + 1024
WL = MORE + 64
LDS = WL + 8192

SC = OPT.get("sc", "sc1")
SCF = OPT.get("scf", "sc1")
SCH = OPT.get("sch", SC)
LD_IN = OPT.get("ldin", "")
LD_SL = OPT.get("ldsl", SC)
ST_OUT = OPT.get("stout", "")
SPINMAX = 20000000
NREP = I("nrep", 8)
LSTR = I("lstr", 128)
NB = I("nb", 8)
TOUCH = I("touch", 1)
PFS = I("pfstep", 80)
PF = [I("pf0", 0), I("pf1", 0), I("pf2", 0), I("pf3", 0)]
PF4 = I("pf4", 0)
PRIO = I("prio", 0)
ACKW = I("ackw", 1)
TORN = I("torn", 0)
PFH = I("pfh", 0)

L = []


def e(s=""):
    L.append(s)


def srd(d, lo, hi, nbytes, off=0):
    if off == 0:
        e(f"    s_mov_b32 s{d}, s{lo}")
        e(f"    s_and_b32 s{d+1}, s{hi}, 0xffff")
    elif off > 0:
        e(f"    s_add_u32 s{d}, s{lo}, {off}")
        e(f"    s_addc_u32 s{d+1}, s{hi}, 0")
        e(f"    s_and_b32 s{d+1}, s{d+1}, 0xffff")
    else:
        e(f"    s_sub_u32 s{d}, s{lo}, {-off}")
        e(f"    s_subb_u32 s{d+1}, s{hi}, 0")
        e(f"    s_and_b32 s{d+1}, s{d+1}, 0xffff")
    e(f"    s_mov_b32 s{d+2}, {nbytes}")
    e(f"    s_mov_b32 s{d+3}, 0x20000")


S_SRC, S_DST, S_NRM, S_WS, S_OVF, S_GAT, S_STO, S_DBG = 20, 24, 28, 32, 36, 40, 44, 48
WSBYTES = WS_H1


def R(d):
    return f"s[{d}:{d+3}]"


STAMP_BASE = 78


def stamp(name):
    if "c_" + name in STL:
        i = STL.index("c_" + name)
        e(f"    s_memtime s[{STAMP_BASE+2*i}:{STAMP_BASE+2*i+1}]")
    if name in STL:
        i = STL.index(name)
        e(f"    s_memrealtime s[{STAMP_BASE+2*i}:{STAMP_BASE+2*i+1}]")


def stamp2(n1, n2):
    if n1 in STL or n2 in STL:
        n = len(L)
        e("    s_bitcmp1_b32 s71, 0")
        e(f"    s_cbranch_scc1 ST{n}_B")
        stamp(n1)
        e(f"    s_branch ST{n}_C")
        e(f"ST{n}_B:")
        stamp(n2)
        e(f"ST{n}_C:")


def stamp_out():
    if not DIAG:
        return
    e("    s_waitcnt vmcnt(0) lgkmcnt(0)")
    stamp("end")
    e("    s_waitcnt lgkmcnt(0)")
    e("    s_mov_b64 exec, 1")
    srd(20, 18, 19, 1 << 20, WS_STAMP - (I("wsoff", 0) << 20))
    e("    s_lshl_b32 s76, s2, 4")
    e("    s_add_u32 s76, s76, s3")
    e("    s_lshl_b32 s76, s76, 6")
    e("    v_mov_b32 v2, s76")
    for i in range(len(STL)):
        e(f"    v_mov_b32 v3, s{STAMP_BASE+2*i}")
        e(f"    buffer_store_dword v3, v2, s[20:23], 0 offen offset:{4*i}")
    e("    s_getreg_b32 s76, hwreg(HW_REG_XCC_ID)")
    e("    v_mov_b32 v3, s76")
    e("    buffer_store_dword v3, v2, s[20:23], 0 offen offset:56")
    e("    v_mov_b32 v3, s16")
    e("    buffer_store_dword v3, v2, s[20:23], 0 offen offset:60")
    e("    v_mov_b32 v3, s17")
    e("    buffer_store_dword v3, v2, s[20:23], 0 offen offset:52")


def PEND(s):
    return f"s[{52+2*s}:{53+2*s}]"


pf_base = [0]


def prefetch(cnt, nwaves=16, wave0=0):
    if cnt == 0:
        return 0
    nops = (cnt + 63) // 64
    e("    s_lshr_b32 s76, s2, 3")
    e(f"    s_mul_i32 s76, s76, {nwaves}")
    e("    s_add_u32 s76, s76, s3")
    e(f"    s_mul_i32 s76, s76, {cnt}")
    e(f"    s_add_u32 s76, s76, {pf_base[0] - wave0*cnt}")
    for o in range(nops):
        n = min(64, cnt - 64 * o)
        e("    v_and_b32 v2, 63, v0")
        e("    v_add_u32 v2, s76, v2")
        e("    v_lshrrev_b32 v3, 5, v2")
        e("    v_and_b32 v2, 31, v2")
        e(f"    v_mul_u32_u24 v3, {PFS}, v3")
        e("    v_add_lshl_u32 v2, v2, v3, 7")
        if n < 64:
            e(f"    s_mov_b32 exec_lo, {((1 << n) - 1) & 0xffffffff}")
            e(f"    s_mov_b32 exec_hi, {((1 << n) - 1) >> 32}")
        e(f"    buffer_load_dword v126, v2, {R(S_GAT)}, 0 offen offset:3072")
        if n < 64:
            e("    s_mov_b64 exec, -1")
        if o + 1 < nops:
            e("    s_add_u32 s76, s76, 64")
    pf_base[0] += 32 * nwaves * cnt
    return nops


def grid_barrier(p, idx, pfa, pfb):
    rstr = 64 * LSTR
    fb = WS_FLAG + idx * NREP * rstr
    n = prefetch(pfa)
    e(f"    s_waitcnt vmcnt({n})")
    stamp(p + "_ack")
    e("    s_barrier")
    if idx == 0:
        e("    s_cmp_lt_u32 s3, 13")
        e("    s_cbranch_scc1 G1_NOW")
        e(f"    v_subrev_u32 v2, {13*64}, v0")
        e("    v_lshlrev_b32 v2, 4, v2")
        e(f"    v_cmp_gt_u32 vcc, 2048, v2")
        e(f"    v_add_u32 v2, {WL}, v2")
        e("    ds_write_b128 v2, v[100:103]")
        e("    ds_write_b128 v2, v[104:107] offset:3072")
        e("    s_and_saveexec_b64 s[76:77], vcc")
        e("    ds_write_b128 v2, v[108:111] offset:6144")
        e("    s_mov_b64 exec, -1")
        e("G1_NOW:")
    e("    s_cmp_lg_u32 s3, 0")
    e(f"    s_cbranch_scc1 {p}_WAIT")
    stamp(p + "_arr")
    if idx == 0:
        e(f"    s_mov_b32 s76, {SPINMAX}")
        e(f"{p}_NONCE:")
        e("    v_cmp_ne_u32 vcc, 0, v125")
        e(f"    s_cbranch_vccnz {p}_GOTN")
        e("    v_mov_b32 v2, 0")
        e(f"    buffer_load_dword v125, v2, {R(S_DBG)}, 0 offen {SCF}")
        e("    s_sub_u32 s76, s76, 1")
        e("    s_cmp_eq_u32 s76, 0")
        e("    s_waitcnt vmcnt(0)")
        e(f"    s_cbranch_scc0 {p}_NONCE")
        e(f"{p}_GOTN:")
    e("    s_lshr_b32 s76, s2, 2")
    e(f"    s_mul_i32 s76, s76, {LSTR}")
    e("    s_and_b32 s77, s2, 3")
    e("    s_lshl_b32 s77, s77, 2")
    e("    s_add_u32 s76, s76, s77")
    e(f"    s_add_u32 s76, s76, {fb}")
    e(f"    v_mul_u32_u24 v2, {rstr}, v0")
    e(f"    s_mov_b32 exec_lo, {((1 << NREP) - 1) & 0xffffffff}")
    e(f"    s_mov_b32 exec_hi, {((1 << NREP) - 1) >> 32}")
    e(f"    buffer_store_dword v125, v2, {R(S_WS)}, s76 offen {SCF}")
    e("    s_mov_b64 exec, -1")
    prefetch(pfb, 1, 0)
    e("    s_getreg_b32 s77, hwreg(HW_REG_XCC_ID, 0, 4)")
    e(f"    s_and_b32 s77, s77, {NREP-1}")
    e(f"    s_mul_i32 s77, s77, {rstr}")
    e(f"    s_add_u32 s77, s77, {fb}")
    e(f"    v_mul_u32_u24 v8, {LSTR}, v0")
    e(f"    s_mov_b32 s76, {SPINMAX}")
    e(f"{p}_POLL:")
    e(f"    buffer_load_dwordx4 v[4:7], v8, {R(S_WS)}, s77 offen {SCF}")
    e("    s_sub_u32 s76, s76, 1")
    e("    s_cmp_eq_u32 s76, 0")
    e("    s_waitcnt vmcnt(0)")
    e(f"    s_cbranch_scc1 {p}_WAIT")
    e("    v_xor_b32 v4, v4, v125")
    e("    v_xor_b32 v5, v5, v125")
    e("    v_xor_b32 v6, v6, v125")
    e("    v_xor_b32 v7, v7, v125")
    e("    v_or3_b32 v4, v4, v5, v6")
    e("    v_or_b32 v4, v4, v7")
    e("    v_cmp_ne_u32 vcc, 0, v4")
    e(f"    s_cbranch_vccnz {p}_POLL")
    e(f"{p}_WAIT:")
    e("    s_barrier")
    stamp(p + "_exit")


def decode_key(rec, meta, k, s):
    ca = 40 + s
    e(f"    v_bfe_u32 v2, v{rec}, 12, 4")
    e(f"    v_and_b32_sdwa v3, v{meta}, v99 dst_sel:DWORD dst_unused:UNUSED_PAD src0_sel:BYTE_{k} src1_sel:DWORD")
    e(f"    v_or_b32 v2, v2, v3")
    e(f"    v_lshl_add_u32 v{ca}, v2, 2, s0")


def decode_data(rec, meta, k, s):
    d0, d1 = 48 + s, 56 + s
    e(f"    v_lshlrev_b32_sdwa v{d0}, v124, v{rec} dst_sel:DWORD dst_unused:UNUSED_PAD src0_sel:DWORD src1_sel:WORD_0")
    if OPT.get("srcmask"):
        e(f"    v_and_b32 v{d0}, {OPT['srcmask']}, v{d0}")
    e(f"    v_mov_b32 v{d1}, v{rec}")
    e(f"    v_lshlrev_b16_sdwa v{d1}, v{meta}, v1 dst_sel:WORD_0 dst_unused:UNUSED_PRESERVE src0_sel:BYTE_{k} src1_sel:DWORD")


def decode_full(rec, dst, s):
    e(f"    v_mul_u32_u24 v30, {TM}, v{dst}")
    e("    v_lshrrev_b32 v30, 12, v30")
    e(f"    v_bfi_b32 v30, 15, v{dst}, v30")
    decode_key(rec, 30, 0, s)
    decode_data(rec, 30, 0, s)


def zero_b_counters(n):
    e("    v_lshlrev_b32 v2, 2, v0")
    e(f"    v_add_u32 v2, {CNTB}, v2")
    e("    v_mov_b32 v3, 0")
    e(f"    v_cmp_gt_u32 vcc, {n}, v0")
    e("    s_and_saveexec_b64 s[76:77], vcc")
    e("    ds_write_b32 v2, v3")
    e("    s_mov_b64 exec, -1")


def body():
    e(f".globl {NAME}")
    e(".p2align 8")
    e(f".type {NAME},@function")
    e(f"{NAME}:")
    stamp("start")
    e("    s_cmp_ge_u32 s2, 256")
    e("    s_cbranch_scc1 END")
    e("    s_load_dwordx8 s[4:11], s[0:1], 0")
    e("    s_load_dwordx8 s[12:19], s[0:1], 32")
    e("    v_lshlrev_b32 v9, 2, v0")
    e("    v_lshrrev_b32 v3, 6, v0")
    e(f"    s_mul_i32 s68, s2, {CH}")
    e(f"    s_mul_i32 s69, s2, {TCH}")
    e("    v_readfirstlane_b32 s3, v3")
    e(f"    s_add_u32 s69, s69, {ET - 4*NMAIN}")
    e("    v_add_u32 v4, s68, v9")
    e("    v_add_u32 v5, s69, v9")
    e(f"    v_cmp_gt_u32 vcc, {NMAIN}, v0")
    e(f"    v_mov_b32 v7, {E}")
    e(f"    v_mov_b32 v3, {ET}")
    e("    v_cndmask_b32 v6, v5, v4, vcc")
    e("    v_cndmask_b32 v7, v7, v3, vcc")
    e("    v_cmp_lt_u32 s[72:73], v6, v7")
    e(f"    v_cmp_gt_u32 vcc, {NTHR}, v0")
    e("    v_sub_u32 v8, v6, v3")
    e("    s_and_b64 s[72:73], s[72:73], vcc")
    e(f"    v_mov_b32 v3, {1 << 24}")
    e("    v_cndmask_b32 v6, v3, v6, s[72:73]")
    e("    v_lshlrev_b32 v4, 2, v6")
    e("    v_lshlrev_b32 v5, 1, v6")
    e("    s_waitcnt lgkmcnt(0)")
    if I("wsoff", 0):
        e(f"    s_add_u32 s18, s18, {I('wsoff', 0) << 20}")
        e("    s_addc_u32 s19, s19, 0")
    srd(S_DST, 8, 9, E * 4)
    srd(S_SRC, 6, 7, E * 4)
    srd(S_NRM, 10, 11, E * 2)
    e("    s_cmp_ge_u32 s3, 13")
    e("    s_cbranch_scc1 A_HELP")
    e(f"    buffer_load_dwordx4 v[12:15], v4, {R(S_DST)}, 0 offen {LD_IN}")
    e(f"    buffer_load_dwordx4 v[16:19], v4, {R(S_SRC)}, 0 offen {LD_IN}")
    e(f"    buffer_load_dwordx2 v[20:21], v5, {R(S_NRM)}, 0 offen {LD_IN}")
    stamp("a_issue")
    srd(S_DBG, 16, 17, 256)
    e("    s_branch A_BAR")
    e("A_HELP:")
    srd(S_DBG, 16, 17, 256)
    e("    s_cmp_lg_u32 s2, 0")
    e("    s_cbranch_scc1 A_NONONCE")
    e("    s_cmp_lg_u32 s3, 13")
    e("    s_cbranch_scc1 A_NONONCE")
    e("    s_memrealtime s[76:77]")
    e("    v_mov_b32 v2, 0")
    e("    s_waitcnt lgkmcnt(0)")
    e("    s_mul_i32 s68, s76, 0x9e3779b1")
    e("    s_mul_hi_u32 s69, s76, 0x9e3779b1")
    e("    s_xor_b32 s68, s68, s69")
    e("    s_xor_b32 s68, s68, s77")
    e("    s_mul_i32 s69, s68, 0x85ebca6b")
    e("    s_mul_hi_u32 s70, s68, 0x85ebca6b")
    e("    s_xor_b32 s69, s69, s70")
    e("    s_or_b32 s68, s68, 1")
    e("    v_mov_b32 v4, s68")
    e("    v_mov_b32 v5, s69")
    e("    s_mov_b64 exec, 1")
    e(f"    buffer_store_dwordx2 v[4:5], v2, {R(S_DBG)}, 0 offen {SCF}")
    e("    s_mov_b64 exec, -1")
    e("A_NONONCE:")
    srd(S_STO, 12, 13, 8192)
    e(f"    v_subrev_u32 v2, {13*64}, v0")
    e("    v_lshlrev_b32 v2, 4, v2")
    e(f"    buffer_load_dwordx4 v[100:103], v2, {R(S_STO)}, 0 offen")
    e(f"    buffer_load_dwordx4 v[104:107], v2, {R(S_STO)}, 0 offen offset:3072")
    e("    v_add_u32 v3, 6144, v2")
    e(f"    buffer_load_dwordx4 v[108:111], v3, {R(S_STO)}, 0 offen")
    e("A_BAR:")
    e("    v_mov_b32 v2, 0")
    e(f"    ds_write_b32 v9, v2 offset:{K1_CNT}")
    e("    v_mov_b32 v24, -1")
    e("    v_mov_b32 v25, -1")
    e("    v_mov_b32 v26, -1")
    e("    v_mov_b32 v27, -1")
    e("    v_lshlrev_b32 v2, 4, v0")
    e("    ds_write_b128 v2, v[24:27]")
    e("    ds_write_b128 v2, v[24:27] offset:16384")
    e("    s_cmp_lg_u32 s3, 15")
    e("    s_cbranch_scc1 A_INITD")
    e(f"    ds_write_b128 v2, v[24:27] offset:{32768 - 15*1024}")
    e("    v_and_b32 v4, 60, v9")
    e("    v_mov_b32 v2, 0xffff")
    e(f"    ds_write_b32 v4, v2 offset:{K1_OVT}")
    e("A_INITD:")
    e("    s_waitcnt lgkmcnt(0)")
    e("    s_barrier")
    stamp("a_bar1")
    srd(S_WS, 18, 19, WSBYTES, 0)
    srd(S_OVF, 18, 19, 256 * OVF_STRIDE, WS_OVF)
    srd(S_GAT, 4, 5, TABBYTES + 3072, -3072)
    srd(S_STO, 18, 19, TABBYTES, WS_H1)
    e("    v_mov_b32 v1, 1")
    e("    v_mov_b32 v99, 0xf0")
    e("    v_mov_b32 v124, 7")
    e(f"    s_mov_b32 s0, {CNTB}")
    e("    s_mov_b32 s1, 0x07060302")
    e("    s_mov_b32 s71, 0")
    e("    s_mov_b64 s[12:13], 0")
    e("    s_cmp_ge_u32 s3, 4")
    e("    s_cbranch_scc1 A_NOTAIL")
    e("    v_lshrrev_b32 v2, 4, v0")
    e("    s_lshl_b32 s76, s2, 4")
    e("    v_add_u32 v2, s76, v2")
    e("    v_mul_u32_u24 v3, 50006, v2")
    e("    v_lshrrev_b32 v3, 12, v3")
    e("    v_sub_u32 v4, v0, v3")
    e("    v_and_b32 v4, 15, v4")
    e("    v_add_u32 v123, v3, v4")
    e(f"    v_mul_u32_u24 v4, {TM}, v123")
    e("    v_lshrrev_b32 v4, 16, v4")
    e("    v_cmp_eq_u32 s[12:13], v4, v2")
    e(f"    v_cmp_gt_u32 vcc, {N}, v123")
    e(f"    v_add_u32 v4, {ET}, v123")
    e("    v_lshlrev_b32 v5, 2, v4")
    e("    v_lshlrev_b32 v4, 1, v4")
    e("    s_and_b64 s[12:13], s[12:13], vcc")
    e(f"    buffer_load_dword v120, v5, {R(S_DST)}, 0 offen")
    e(f"    buffer_load_dword v121, v5, {R(S_SRC)}, 0 offen")
    e(f"    buffer_load_ushort v122, v4, {R(S_NRM)}, 0 offen")
    e("A_NOTAIL:")
    if TOUCH:
        e("    s_cmp_lg_u32 s3, 14")
        e("    s_cbranch_scc1 A_NOTOUCH")
        e("    v_and_b32 v2, 63, v0")
        e("    v_lshlrev_b32 v2, 18, v2")
        e(f"    buffer_load_dword v126, v2, {R(S_WS)}, 0 offen sc1")
        e(f"    buffer_load_dword v126, v2, {R(S_STO)}, 0 offen sc1")
        e(f"    buffer_load_dword v126, v2, {R(S_GAT)}, 0 offen offset:3072")
        e("A_NOTOUCH:")
    if PF[0]:
        e("    s_cmp_lg_u32 s3, 15")
        e("    s_cbranch_scc1 A_NOPF")
        prefetch(PF[0], 1, 15)
        e("A_NOPF:")
    zero_b_counters((WL - CNTB) // 4)
    e("    v_and_b32 v10, 7, v0")
    e("    v_and_b32 v2, 63, v0")
    e("    v_bfe_u32 v3, v2, 4, 1")
    e("    v_xor_b32 v3, v3, v10")
    e("    v_lshlrev_b32 v83, 4, v3")
    e("    v_add_u32 v80, 3072, v83")
    e("    v_add_u32 v82, 1024, v83")
    e("    v_xor_b32 v83, 64, v83")
    e("    v_add_u32 v81, 2048, v83")
    e("    v_and_b32 v92, 15, v0")
    e("    v_lshrrev_b32 v11, 4, v2")
    e("    v_bfe_u32 v6, v2, 2, 2")
    e("    v_and_b32 v7, 3, v2")
    e("    v_lshl_add_u32 v84, v11, 3, v6")
    e("    v_lshlrev_b32 v84, 7, v84")
    e("    v_lshrrev_b32 v6, 1, v6")
    e("    v_and_b32 v4, 1, v11")
    e("    v_lshl_or_b32 v6, v4, 2, v6")
    e("    v_xor_b32 v6, v6, v7")
    e("    v_lshl_add_u32 v84, v6, 4, v84")
    e("    v_and_b32 v4, 1, v7")
    e("    v_lshl_add_u32 v84, v4, 3, v84")
    e("    s_lshl_b32 s76, s3, 12")
    e("    v_add_u32 v84, s76, v84")
    e("    s_mov_b32 m0, s76")
    e("    v_xor_b32 v85, 8, v84")
    e("    v_xor_b32 v86, 64, v84")
    e("    v_xor_b32 v87, 72, v84")
    e(f"    s_mul_i32 s76, s3, {TSTR}")
    e(f"    s_add_u32 s76, s76, {LISTS}")
    e("    v_lshrrev_b32 v4, 3, v2")
    e("    v_lshl_add_u32 v88, v4, 2, s76")
    e(f"    s_add_u32 s76, s76, {CAPT*4}")
    e("    v_lshl_add_u32 v89, v11, 5, s76")
    e("    v_cmp_lt_u32 vcc, 0, v7")
    e("    v_cmp_lt_u32 s[76:77], 1, v7")
    e("    v_lshrrev_b32 v4, 2, v2")
    e("    v_cndmask_b32 v95, 0, -1, vcc")
    e("    v_cndmask_b32 v96, 0, -1, s[76:77]")
    e("    v_cmp_lt_u32 vcc, 2, v7")
    e(f"    v_mul_u32_u24 v98, {TSTR}, v4")
    e(f"    v_add_u32 v98, {LISTS}, v98")
    e("    v_cndmask_b32 v97, 0, -1, vcc")
    e("    v_lshlrev_b32 v90, 4, v2")
    e(f"    v_add_u32 v90, {CNTB}, v90")
    for i in range(16):
        e(f"    v_mov_b32 v{64+i}, 0")
    e("    s_cmp_lt_u32 s3, 13")
    e("    s_cbranch_scc1 A_EDGES")
    e("    s_cmp_lg_u32 s3, 13")
    e("    s_cbranch_scc1 A_OUT")
    e(f"    s_mov_b32 s76, {SPINMAX}")
    e("    v_mov_b32 v2, 0")
    e("A_NPOLL:")
    e(f"    buffer_load_dwordx2 v[4:5], v2, {R(S_DBG)}, 0 offen {SCF}")
    e("    s_sub_u32 s76, s76, 1")
    e("    s_cmp_eq_u32 s76, 0")
    e("    s_waitcnt vmcnt(0)")
    e("    s_cbranch_scc1 A_NGOT")
    e("    v_cmp_eq_u32 vcc, 0, v4")
    e("    s_cbranch_vccnz A_NPOLL")
    e("A_NGOT:")
    e(f"    ds_write_b64 v2, v[4:5] offset:{K1_NON}")
    e("    s_branch A_OUT")
    e("A_EDGES:")
    e("    s_mov_b64 exec, s[72:73]")
    e("    s_mov_b32 s70, 0xffff0000")
    stamp("a_setup")
    e("    s_cmp_ge_u32 s3, 4")
    e("    s_cbranch_scc1 A_W2")
    e("    s_waitcnt vmcnt(5)")
    e("    s_branch A_W5")
    e("A_W2:")
    e("    s_waitcnt vmcnt(2)")
    e("A_W5:")
    stamp("a_dst")
    for k in range(4):
        e(f"    v_mul_u32_u24 v{24+k}, {TM}, v{12+k}")
        e(f"    v_add_u32 v2, {k}, v8")
        e(f"    v_lshrrev_b32 v{28+k}, 20, v{24+k}")
        e(f"    v_cmp_ne_u32 s[{52+2*k}:{53+2*k}], v{12+k}, v2")
        e(f"    v_lshlrev_b32 v{36+k}, 2, v{28+k}")
    for k in range(4):
        e(f"    s_mov_b64 exec, s[{52+2*k}:{53+2*k}]")
        e(f"    ds_add_rtn_u32 v{32+k}, v{36+k}, v1 offset:{K1_CNT}")
    e("    s_mov_b64 exec, s[72:73]")
    for k in range(4):
        e(f"    v_lshrrev_b32 v{24+k}, 12, v{24+k}")
        e(f"    v_mul_u32_u24 v{28+k}, {K1_LS}, v{28+k}")
        e(f"    v_bfi_b32 v{24+k}, 15, v{12+k}, v{24+k}")
    e("    s_mov_b64 s[60:61], 0")
    for k in range(4):
        e(f"    s_mov_b64 exec, s[{52+2*k}:{53+2*k}]")
        e(f"    s_waitcnt lgkmcnt(3)")
        e(f"    v_cmp_gt_u32 vcc, {SLOTCAP}, v{32+k}")
        e(f"    v_and_b32 v2, 7, v{32+k}")
        e(f"    v_lshrrev_b32 v3, 3, v{32+k}")
        e(f"    s_andn2_b64 s[{52+2*k}:{53+2*k}], exec, vcc")
        e(f"    s_or_b64 s[60:61], s[60:61], s[{52+2*k}:{53+2*k}]")
        e(f"    s_mov_b64 s[{4+2*k}:{5+2*k}], vcc")
        e("    s_mov_b64 exec, vcc")
        e(f"    v_lshl_add_u32 v2, v2, 4, v{28+k}")
        e(f"    v_lshl_add_u32 v{36+k}, v3, 2, v2")
        e("    v_add_u32 v5, v3, v2")
        e(f"    ds_write_b8 v5, v{24+k} offset:12")
    e("    s_mov_b64 exec, s[72:73]")
    e("    s_waitcnt vmcnt(0)")
    stamp("a_all")
    for k in range(4):
        if k % 2 == 0:
            e(f"    v_lshl_or_b32 v{16+k}, v{20+k//2}, 16, v{16+k}")
        else:
            e(f"    v_and_or_b32 v{16+k}, v{20+k//2}, s70, v{16+k}")
    for k in range(4):
        e(f"    s_mov_b64 exec, s[{4+2*k}:{5+2*k}]")
        e(f"    ds_write_b32 v{36+k}, v{16+k}")
    e("    s_cmp_eq_u64 s[60:61], 0")
    e("    s_cbranch_scc1 A_OUT")
    e("    s_lshl_b32 s62, s2, 15")
    for k in range(4):
        e(f"    s_mov_b64 exec, s[{52+2*k}:{53+2*k}]")
        e(f"    s_cbranch_execz A_OV{k}")
        e(f"    v_mov_b32 v2, {K1_OVC}")
        e(f"    ds_add_rtn_u32 v3, v2, v1 offset:{K1_CNT}")
        e(f"    v_mov_b32 v4, v{16+k}")
        e(f"    v_mov_b32 v5, v{12+k}")
        e("    s_waitcnt lgkmcnt(0)")
        e(f"    v_cmp_gt_u32 vcc, {NINL}, v3")
        e("    v_lshlrev_b32 v3, 3, v3")
        e("    s_andn2_b64 s[76:77], exec, vcc")
        e("    s_mov_b64 exec, vcc")
        e(f"    ds_write_b64 v3, v[4:5] offset:{K1_OVT}")
        e("    s_mov_b64 exec, s[76:77]")
        e(f"    s_cbranch_execz A_OV{k}")
        e(f"    buffer_store_dwordx2 v[4:5], v3, {R(S_OVF)}, s62 offen {SC}")
        e("    s_waitcnt vmcnt(0)")
        e(f"A_OV{k}:")
    e("A_OUT:")
    e("    s_mov_b64 exec, -1")
    e("    v_lshrrev_b32 v2, 3, v0")
    e(f"    v_mul_u32_u24 v4, {K1_LS}, v2")
    e("    v_lshl_add_u32 v4, v10, 4, v4")
    e(f"    v_add_u32 v5, {128*K1_LS}, v4")
    e("    v_lshlrev_b32 v7, 15, v2")
    e("    v_lshl_add_u32 v7, v10, 4, v7")
    if I("skew", 1):
        e(f"    v_mul_u32_u24 v3, {I('skew', 1)}, v2")
        e("    v_add_u32 v3, s2, v3")
        e("    v_and_b32 v3, 255, v3")
        e("    v_lshl_add_u32 v7, v3, 7, v7")
        e("    s_mov_b32 s62, 0")
        e(f"    s_mov_b32 s63, {128*32768}")
    else:
        e("    s_lshl_b32 s62, s2, 7")
        e(f"    s_add_u32 s63, s62, {128*32768}")
    e("    s_mov_b32 s64, 0xffffff")
    e("    v_and_b32 v6, 6, v10")
    e("    s_waitcnt lgkmcnt(0)")
    e("    s_barrier")
    stamp("a_bar2")
    e(f"    ds_read_u8 v127, v10 offset:{K1_NON}")
    e("    ds_read2_b32 v[12:13], v4 offset0:0 offset1:1")
    e("    ds_read2_b32 v[14:15], v4 offset0:2 offset1:3")
    e("    ds_read2_b32 v[16:17], v5 offset0:0 offset1:1")
    e("    ds_read2_b32 v[18:19], v5 offset0:2 offset1:3")
    e(f"    ds_read_u16 v91, v6 offset:{K1_NON}")
    e("    v_mov_b32 v8, 0")
    e(f"    ds_read_b32 v125, v8 offset:{K1_NON}")
    e("    s_waitcnt lgkmcnt(6)")
    e("    v_lshlrev_b32 v20, 24, v127")
    e("    s_waitcnt lgkmcnt(4)")
    e("    v_and_or_b32 v15, v15, s64, v20")
    e(f"    buffer_store_dwordx4 v[12:15], v7, {R(S_WS)}, s62 offen {SC}")
    e("    s_waitcnt lgkmcnt(2)")
    e("    v_and_or_b32 v19, v19, s64, v20")
    e(f"    buffer_store_dwordx4 v[16:19], v7, {R(S_WS)}, s63 offen {SC}")
    e("    s_cmp_lg_u32 s3, 15")
    e("    s_cbranch_scc1 A_FIN")
    e("    s_mov_b64 exec, 0xff")
    e("    v_lshlrev_b32 v2, 3, v10")
    e(f"    ds_read_b64 v[24:25], v2 offset:{K1_OVT}")
    e(f"    ds_read_b32 v22, v8 offset:{K1_CNT+K1_OVC}")
    e("    v_cmp_eq_u32 vcc, 7, v10")
    e("    s_lshl_b32 s62, s2, 6")
    e(f"    s_add_u32 s62, s62, {WS_OVT}")
    e("    s_waitcnt lgkmcnt(0)")
    e("    v_cndmask_b32 v24, v24, v22, vcc")
    e("    v_lshl_or_b32 v25, v91, 16, v25")
    e(f"    buffer_store_dwordx2 v[24:25], v2, {R(S_WS)}, s62 offen {SC}")
    e("A_FIN:")
    e("    s_mov_b64 exec, -1")
    stamp("a_st")
    e("    s_cmp_ge_u32 s3, 4")
    e("    s_cbranch_scc1 A_TD")
    e("    v_cmp_eq_u32 vcc, v120, v123")
    e("    v_lshl_or_b32 v121, v122, 16, v121")
    e("    s_and_b64 s[12:13], s[12:13], vcc")
    decode_key(121, 0, 0, 6)
    decode_data(121, 0, 0, 6)
    e("A_TD:")
    e("    v_lshlrev_b32 v9, 4, v0")
    e("    v_lshlrev_b32 v31, 3, v0")
    e("    s_waitcnt lgkmcnt(0)")
    e("    v_mov_b32 v120, v91")
    e("    s_cmp_lt_u32 s3, 13")
    e("    s_cbranch_scc1 G1_NOW")
    e(f"    v_subrev_u32 v2, {13*64}, v0")
    e("    v_lshlrev_b32 v2, 4, v2")
    e(f"    v_cmp_gt_u32 vcc, 2048, v2")
    e(f"    v_add_u32 v2, {WL}, v2")
    e("    s_waitcnt vmcnt(0)")
    e("    ds_write_b128 v2, v[100:103]")
    e("    ds_write_b128 v2, v[104:107] offset:3072")
    e("    s_and_saveexec_b64 s[76:77], vcc")
    e("    ds_write_b128 v2, v[108:111] offset:6144")
    e("    s_mov_b64 exec, -1")
    e("G1_NOW:")
    if ACKW:
        e("    s_waitcnt vmcnt(0)")
    stamp("g1_ack")
    if ACKW >= 2:
        e("    s_barrier")
    if ACKW >= 3:
        e(f"    s_mov_b32 s70, {WS_OVT}")
        e(f"    s_mov_b32 s74, {WS_OVT + 8192}")
        e(f"    s_mov_b32 s75, {SPINMAX}")
        e("P_POLL:")
        e(f"    buffer_load_dwordx2 v[116:117], v31, {R(S_WS)}, s70 offen {SC}")
        e(f"    buffer_load_dwordx2 v[118:119], v31, {R(S_WS)}, s74 offen {SC}")
        e("    s_sub_u32 s75, s75, 1")
        e("    s_cmp_eq_u32 s75, 0")
        e("    s_waitcnt vmcnt(0)")
        e("    s_cbranch_scc1 P_DONE")
        e("    v_cmp_ne_u32_sdwa vcc, v117, v120 src0_sel:WORD_1 src1_sel:DWORD")
        e("    v_cmp_ne_u32_sdwa s[76:77], v119, v120 src0_sel:WORD_1 src1_sel:DWORD")
        e("    s_or_b64 vcc, vcc, s[76:77]")
        e("    s_cbranch_scc1 P_POLL")
        e("P_DONE:")
    stamp("g1_exit")
    if TORN:
        e("    s_mov_b32 s16, 0")
        e("    s_mov_b32 s17, 0")

    e("COLLECT:")
    e("    s_lshl_b32 s68, s2, 15")
    e("    s_add_u32 s69, s68, 16384")
    e(f"    s_mov_b32 s70, {WS_OVT}")
    e(f"    s_mov_b32 s74, {WS_OVT + 8192}")
    e(f"    buffer_load_dwordx4 v[12:15], v9, {R(S_WS)}, s68 offen {LD_SL}")
    e(f"    buffer_load_dwordx4 v[16:19], v9, {R(S_WS)}, s69 offen {LD_SL}")
    e(f"    buffer_load_dwordx2 v[116:117], v31, {R(S_WS)}, s70 offen {SC}")
    e(f"    buffer_load_dwordx2 v[118:119], v31, {R(S_WS)}, s74 offen {SC}")
    e(f"    s_mov_b64 {PEND(6)}, s[12:13]")
    e(f"    s_mov_b64 {PEND(7)}, 0")
    e(f"    s_mov_b32 s75, {SPINMAX}")
    e("    s_movk_i32 s11, 0xffff")
    e(f"    s_mov_b64 exec, {PEND(6)}")
    e("    ds_add_rtn_u32 v38, v46, v1")
    e("    s_mov_b64 exec, -1")
    for i in range(2):
        base = 12 + 4 * i
        e(f"    s_waitcnt vmcnt({3-i})")
        e(f"C_CHK{i}:")
        e(f"    v_cmp_ne_u32_sdwa vcc, v{base+3}, v127 src0_sel:BYTE_3 src1_sel:DWORD")
        e(f"    s_cbranch_vccnz C_RETRY{i}")
        e(f"C_OK{i}:")
        if i == 0:
            stamp("b_lines")
        else:
            stamp("b_lines1")
        for k in range(3):
            e(f"    v_cmp_ne_u16 {PEND(3*i+k)}, s11, v{base+k}")
        for k in range(3):
            decode_key(base + k, base + 3, k, 3 * i + k)
        for k in range(3):
            s = 3 * i + k
            e(f"    s_mov_b64 exec, {PEND(s)}")
            e(f"    ds_add_rtn_u32 v{32+s}, v{40+s}, v1")
        e("    s_mov_b64 exec, -1")
        for k in range(3):
            decode_data(base + k, base + 3, k, 3 * i + k)
    e("    s_waitcnt vmcnt(0)")
    e("C_CHK2:")
    e("    v_cmp_ne_u32_sdwa vcc, v117, v120 src0_sel:WORD_1 src1_sel:DWORD")
    e("    v_cmp_ne_u32_sdwa s[76:77], v119, v120 src0_sel:WORD_1 src1_sel:DWORD")
    e("    s_or_b64 vcc, vcc, s[76:77]")
    e("    s_cbranch_scc1 C_RETRY2")
    e("C_OK2:")
    e("    v_and_b32 v117, 0xffff, v117")
    e("    v_and_b32 v119, 0xffff, v119")
    e(f"    v_mul_u32_u24 v2, {TM}, v117")
    e(f"    v_mul_u32_u24 v3, {TM}, v119")
    e("    v_cmp_eq_u32 s[74:75], 7, v10")
    e(f"    v_cmp_lt_u32 s[72:73], {NINL}, v116")
    e(f"    v_cmp_lt_u32 vcc, {NINL}, v118")
    e("    v_lshrrev_b32 v2, 20, v2")
    e("    v_lshrrev_b32 v3, 20, v3")
    e("    v_cmp_eq_u32 s[4:5], s2, v2")
    e("    v_cmp_eq_u32 s[6:7], s2, v3")
    e("    s_and_b64 s[72:73], s[72:73], s[74:75]")
    e("    s_and_b64 vcc, vcc, s[74:75]")
    e("    s_lshr_b64 s[72:73], s[72:73], 1")
    e("    s_or_b64 s[72:73], s[72:73], vcc")
    e("    s_mov_b32 s68, 0")
    e("    s_mov_b32 s69, 0")
    e("    s_mov_b32 s70, 0")
    e("    s_or_b64 s[76:77], s[4:5], s[6:7]")
    e("    s_or_b64 s[76:77], s[76:77], s[72:73]")
    e("    s_cbranch_scc1 EXTRA")
    e("CDONE:")
    e("    s_waitcnt lgkmcnt(0)")
    e("    s_barrier")
    stamp2("b_bar1", "")
    e("    ds_read_b128 v[4:7], v90")
    prefetch(PF4)
    e("    s_lshl_b32 s76, s3, 2")
    e("    s_add_u32 s76, s76, 3")
    e("    s_waitcnt lgkmcnt(0)")
    e("    v_add_u32 v5, v4, v5")
    e("    v_add_u32 v6, v5, v6")
    e("    v_add_u32 v7, v6, v7")
    e("    s_nop 1")
    e("    v_and_b32_dpp v28, v7, v95 quad_perm:[0,0,0,0] row_mask:0xf bank_mask:0xf")
    e("    v_and_b32_dpp v29, v7, v96 quad_perm:[1,1,1,1] row_mask:0xf bank_mask:0xf")
    e("    v_and_b32_dpp v30, v7, v97 quad_perm:[2,2,2,2] row_mask:0xf bank_mask:0xf")
    e("    v_add3_u32 v28, v28, v29, v30")
    e("    v_add_u32 v7, v28, v7")
    e("    v_lshl_add_u32 v28, v28, 2, v98")
    e(f"    v_cmp_lt_u32 vcc, {CAPT}, v7")
    e("    v_lshl_add_u32 v29, v4, 2, v28")
    e("    v_lshl_add_u32 v30, v5, 2, v28")
    e("    v_lshl_add_u32 v31, v6, 2, v28")
    e("    v_readlane_b32 s74, v7, s76")
    e("    ds_write_b128 v90, v[28:31] offset:1024")
    for s in range(8):
        e(f"    s_mov_b64 exec, {PEND(s)}")
        e(f"    ds_read_b32 v{20+s}, v{40+s} offset:1024")
    e("    s_mov_b64 exec, -1")
    e(f"    s_min_u32 s74, s74, {CAPT}")
    e("    v_and_b32 v2, 63, v0")
    e("    v_add_u32 v2, s74, v2")
    e("    s_add_u32 s76, s74, 31")
    e("    s_andn2_b32 s76, s76, 31")
    e(f"    s_mul_i32 s77, s3, {TSTR}")
    e(f"    s_add_u32 s77, s77, {LISTS}")
    e("    s_cbranch_vccnz SLOWW")
    for s in range(8):
        e(f"    s_mov_b64 exec, {PEND(s)}")
        e("    s_waitcnt lgkmcnt(7)")
        e(f"    v_lshl_add_u32 v{20+s}, v{32+s}, 2, v{20+s}")
        e(f"    ds_write2st64_b32 v{20+s}, v{48+s}, v{56+s} offset0:0 offset1:5")
        e(f"    s_mov_b64 {PEND(s)}, 0")
    e("WDONE:")
    e("    s_mov_b64 exec, -1")
    e("    v_cmp_gt_u32 vcc, s76, v2")
    e("    v_lshl_add_u32 v2, v2, 2, s77")
    e(f"    v_mov_b32 v3, {PADV}")
    e(f"    v_mov_b32 v4, {MORE}")
    e("    s_mov_b64 exec, vcc")
    e("    ds_write2st64_b32 v2, v3, v3 offset0:0 offset1:5")
    e("    s_mov_b64 exec, -1")
    e("    s_waitcnt lgkmcnt(0)")
    e("    s_barrier")
    stamp2("b_bar2", "")
    e("    ds_read_b32 v8, v4")

    def next_k():
        e("    s_mov_b32 s8, 1")
        e("    s_cmp_gt_i32 s9, s10")
        e("    s_addc_u32 s8, s8, 0")
        e("    s_lshl_b32 s11, s10, 1")
        e("    s_cmp_gt_i32 s9, s11")
        e("    s_addc_u32 s8, s8, 0")
        e("    s_add_i32 s11, s11, s10")
        e("    s_cmp_gt_i32 s9, s11")
        e("    s_addc_u32 s8, s8, 0")
        e("    s_min_i32 s8, s8, s9")
        e("    s_sub_i32 s9, s9, s8")
        e("    s_sub_i32 s10, s10, 1")
        e("    s_lshl_b32 s11, s8, 5")

    def read_recs(adv):
        e("    ds_read2_b32 v[100:101], v93 offset0:0 offset1:8")
        e("    ds_read2_b32 v[102:103], v93 offset0:16 offset1:24")
        e("    ds_read_b128 v[104:107], v94")
        e("    ds_read_b128 v[108:111], v94 offset:16")
        e(f"    v_add_u32 v93, {adv}, v93")
        e(f"    v_add_u32 v94, {adv}, v94")

    def dma(i):
        e(f"    buffer_load_dwordx4 v{100+i}, {R(S_GAT)}, 0 offen offset:{1024*i} lds")

    def addr():
        for i in range(4):
            e(f"    v_add_u32 v{100+i}, v{100+i}, v{80+i}")

    def build_b(w):
        for j in range(8):
            e(f"    v_bfe_i32 v{32+j}, v{104+j}, v92, {w}")
        for j in range(8):
            e(f"    v_and_b32 v{32+j}, v{32+j}, v{104+j}")
        for j in range(4):
            e(f"    v_perm_b32 v{112+j}, v{32+2*j+1}, v{32+2*j}, s1")

    def mfmas():
        for t in range(4):
            e(f"    v_mfma_f32_16x16x32_bf16 v[{64+4*t}:{67+4*t}], v[{12+4*t}:{15+4*t}], v[112:115], v[{64+4*t}:{67+4*t}]")

    e("MAIN:")
    if PRIO == 1:
        for g in range(1, 4):
            e(f"    s_cmp_lt_u32 s3, {4*g}")
            e("    s_cbranch_scc1 PRIOD")
            e(f"    s_setprio {g}")
        e("PRIOD:")
    e("    s_cmp_eq_u32 s74, 0")
    e("    s_cbranch_scc1 MAINDONE")
    e("    v_mov_b32 v93, v88")
    e("    v_mov_b32 v94, v89")
    read_recs(128)
    e("    s_add_u32 s9, s74, 7")
    e("    s_lshr_b32 s9, s9, 3")
    e("    s_sub_i32 s9, s9, 4")
    e("    s_max_i32 s9, s9, 0")
    e(f"    s_mov_b32 s10, {NB-1}")
    e("    s_waitcnt lgkmcnt(2)")
    addr()
    for i in range(4):
        dma(i)
    next_k()
    e("    s_waitcnt lgkmcnt(0)")
    build_b("1")
    read_recs("s11")
    e("LOOP:")
    e("    v_cmp_gt_u32 vcc, s8, v11")
    if PRIO == 3:
        e("    s_setprio 3")
    e("    s_waitcnt vmcnt(0)")
    for t in range(4):
        for u in range(2):
            e(f"    ds_read_b64_tr_b16 v[{12+4*t+2*u}:{13+4*t+2*u}], v{84+t} offset:{512*u}")
    e("    s_cmp_eq_u32 s8, 0")
    e("    v_cndmask_b32 v91, 0, v1, vcc")
    e("    s_waitcnt lgkmcnt(8)")
    addr()
    e("    s_waitcnt lgkmcnt(0)")
    e("    s_cbranch_scc1 LAST")
    dma(0)
    e("    s_cmp_eq_u32 s8, 1")
    e("    s_cbranch_scc1 DMAD")
    dma(1)
    e("    s_cmp_eq_u32 s8, 2")
    e("    s_cbranch_scc1 DMAD")
    dma(2)
    e("    s_cmp_eq_u32 s8, 3")
    e("    s_cbranch_scc1 DMAD")
    dma(3)
    e("DMAD:")
    if PRIO == 2:
        e("    s_lshr_b32 s11, s3, 2")
        e("    s_add_u32 s11, s11, s10")
        e("    s_and_b32 s11, s11, 3")
        e("    s_setprio 0")
        for g in range(1, 4):
            e(f"    s_cmp_lt_u32 s11, {g}")
            e("    s_cbranch_scc1 PRIOD")
            e(f"    s_setprio {g}")
        e("PRIOD:")
    if PRIO == 3:
        e("    s_setprio 0")
    mfmas()
    next_k()
    build_b("v91")
    read_recs("s11")
    e("    s_branch LOOP")
    e("LAST:")
    mfmas()
    e("MAINDONE:")
    e("    s_waitcnt lgkmcnt(0)")
    e("    v_readfirstlane_b32 s75, v8")
    e("    s_cmp_eq_u32 s75, 0")
    e("    s_cbranch_scc1 EPI")
    e("    s_or_b32 s71, s71, 2")
    e("    s_barrier")
    zero_b_counters((WL - CNTB) // 4)
    e("    s_waitcnt lgkmcnt(0)")
    e("    s_barrier")
    for s in range(7):
        e(f"    s_mov_b64 exec, {PEND(s)}")
        e(f"    ds_add_rtn_u32 v{32+s}, v{40+s}, v1")
    e("EXTRA:")
    for m, r in (("s[4:5]", 116), ("s[6:7]", 118)):
        e(f"    s_andn2_b64 exec, {m}, {PEND(7)}")
        e(f"    s_andn2_b64 {m}, {m}, exec")
        e(f"    s_or_b64 {PEND(7)}, {PEND(7)}, exec")
        decode_full(r, r + 1, 7)
    e("    s_mov_b64 exec, -1")
    e("    s_or_b64 s[76:77], s[4:5], s[6:7]")
    e("    s_cbranch_scc1 OVFULL")
    e("    s_mov_b32 s75, 0")
    e("OVL:")
    e("    s_cmp_lt_u32 s68, s69")
    e("    s_cbranch_scc1 OVLOAD")
    e("    s_cmp_eq_u64 s[72:73], 0")
    e("    s_cbranch_scc1 OVDONE")
    e("    s_ff1_i32_b64 s76, s[72:73]")
    e("    s_bitset0_b64 s[72:73], s76")
    e("    s_or_b32 s77, s76, 7")
    e("    v_readlane_b32 s68, v116, s77")
    e("    v_readlane_b32 s69, v118, s77")
    e("    s_bitcmp1_b32 s76, 0")
    e("    s_cselect_b32 s69, s69, s68")
    e(f"    s_min_u32 s69, s69, {4*NTHR}")
    e("    s_and_b32 s77, s76, 1")
    e("    s_lshl_b32 s77, s77, 7")
    e("    s_lshr_b32 s76, s76, 3")
    e("    s_add_u32 s76, s76, s77")
    e("    s_lshl_b32 s77, s3, 3")
    e("    s_add_u32 s76, s76, s77")
    e("    s_lshl_b32 s70, s76, 15")
    e(f"    s_mov_b32 s68, {NINL}")
    e("OVLOAD:")
    e("    v_add_u32 v4, s75, v0")
    e("    v_and_b32 v4, 63, v4")
    e("    v_add_u32 v4, s68, v4")
    e("    v_lshlrev_b32 v5, 3, v4")
    e(f"    buffer_load_dwordx2 v[28:29], v5, {R(S_OVF)}, s70 offen {SC}")
    e("    s_waitcnt vmcnt(0)")
    e(f"    v_mul_u32_u24 v30, {TM}, v29")
    e("    v_lshrrev_b32 v31, 20, v30")
    e("    v_cmp_gt_u32 vcc, s69, v4")
    e("    v_cmp_eq_u32 s[76:77], s2, v31")
    e("    s_and_b64 vcc, s[76:77], vcc")
    e(f"    s_and_b64 s[76:77], vcc, {PEND(7)}")
    e("    s_cbranch_scc1 OVFULL")
    e(f"    s_or_b64 {PEND(7)}, {PEND(7)}, vcc")
    e("    s_add_u32 s68, s68, 64")
    e("    s_add_u32 s75, s75, 16")
    e("    s_mov_b64 exec, vcc")
    decode_full(28, 29, 7)
    e("    s_mov_b64 exec, -1")
    e("    s_branch OVL")
    e("OVFULL:")
    e(f"    v_mov_b32 v2, {MORE}")
    e("    ds_write_b32 v2, v1")
    e("OVDONE:")
    e(f"    s_mov_b64 exec, {PEND(7)}")
    e("    ds_add_rtn_u32 v39, v47, v1")
    e("    s_mov_b64 exec, -1")
    e("    s_branch CDONE")
    for i in range(2):
        base = 12 + 4 * i
        e(f"C_RETRY{i}:")
        if TORN:
            for h in ("vcc_lo", "vcc_hi"):
                for bb in range(4):
                    n = len(L)
                    e(f"    s_bfe_u32 s76, {h}, {(8 << 16) | (8*bb)}")
                    e("    s_cmp_eq_u32 s76, 0")
                    e(f"    s_cbranch_scc1 TN{n}")
                    e("    s_cmp_eq_u32 s76, 0xff")
                    e(f"    s_cbranch_scc1 TN{n}")
                    e("    s_add_u32 s16, s16, 1")
                    e("    s_cmp_eq_u32 s76, 0x0f")
                    e(f"    s_cbranch_scc1 TN{n}")
                    e("    s_cmp_eq_u32 s76, 0xf0")
                    e(f"    s_cbranch_scc1 TN{n}")
                    e("    s_add_u32 s17, s17, 1")
                    e(f"TN{n}:")
            e("    s_add_u32 s16, s16, 0x10000")
        e(f"    buffer_load_dwordx4 v[{base}:{base+3}], v9, {R(S_WS)}, s{68+i} offen {LD_SL}")
        e("    s_sub_u32 s75, s75, 1")
        e("    s_cmp_eq_u32 s75, 0")
        e("    s_waitcnt vmcnt(0)")
        e(f"    s_cbranch_scc0 C_CHK{i}")
        e("    s_mov_b32 s75, 1000")
        e(f"    s_branch C_OK{i}")
    e("C_RETRY2:")
    e(f"    buffer_load_dwordx2 v[116:117], v31, {R(S_WS)}, s70 offen {SC}")
    e(f"    buffer_load_dwordx2 v[118:119], v31, {R(S_WS)}, s74 offen {SC}")
    e("    s_sub_u32 s75, s75, 1")
    e("    s_cmp_eq_u32 s75, 0")
    e("    s_waitcnt vmcnt(0)")
    e("    s_cbranch_scc0 C_CHK2")
    e("    s_branch C_OK2")
    e("SLOWW:")
    e("    s_waitcnt lgkmcnt(0)")
    for s in range(8):
        e(f"    s_mov_b64 exec, {PEND(s)}")
        e(f"    v_lshl_add_u32 v{20+s}, v{32+s}, 2, v{20+s}")
        e(f"    v_subrev_u32 v3, s0, v{40+s}")
        e("    v_lshrrev_b32 v3, 6, v3")
        e(f"    v_mul_u32_u24 v3, {TSTR}, v3")
        e(f"    v_add_u32 v3, {LISTS + CAPT*4}, v3")
        e(f"    v_cmp_lt_u32 vcc, v{20+s}, v3")
        e(f"    s_andn2_b64 {PEND(s)}, exec, vcc")
        e("    s_mov_b64 exec, vcc")
        e(f"    ds_write2st64_b32 v{20+s}, v{48+s}, v{56+s} offset0:0 offset1:5")
    e("    s_mov_b64 exec, -1")
    e(f"    v_mov_b32 v3, {MORE}")
    e("    ds_write_b32 v3, v1")
    e("    s_branch WDONE")

    e("EPI:")
    if PRIO:
        e("    s_setprio 0")
    stamp2("h1_done", "h2_done")
    e("    s_lshl_b32 s76, s2, 4")
    e("    s_add_u32 s76, s76, s3")
    e("    s_mul_i32 s77, s76, 50006")
    e("    s_lshr_b32 s77, s77, 12")
    e("    v_subrev_u32 v2, s77, v92")
    e("    v_and_b32 v2, 15, v2")
    e("    v_add_u32 v2, s77, v2")
    e(f"    v_mul_u32_u24 v3, {TM}, v2")
    e("    v_lshrrev_b32 v3, 16, v3")
    e("    v_cmp_eq_u32 s[52:53], s76, v3")
    e("    v_lshlrev_b32 v2, 7, v2")
    e("    v_lshl_add_u32 v2, v11, 4, v2")
    e("    v_and_b32 v5, 1, v11")
    e("    v_cmp_eq_u32 s[54:55], 1, v5")
    for t in range(4):
        e(f"    v_cvt_pk_bf16_f32 v{12+2*t}, v{64+4*t}, v{65+4*t}")
        e(f"    v_cvt_pk_bf16_f32 v{13+2*t}, v{66+4*t}, v{67+4*t}")
    e("    s_mov_b64 exec, s[54:55]")
    e("    v_swap_b32 v12, v14")
    e("    v_swap_b32 v13, v15")
    e("    v_swap_b32 v16, v18")
    e("    v_swap_b32 v17, v19")
    e("    s_bitcmp1_b32 s71, 0")
    e("    s_cbranch_scc1 FINAL")
    e("    s_mov_b64 exec, s[52:53]")
    e(f"    buffer_store_dwordx4 v[12:15], v2, {R(S_STO)}, 0 offen {SCH}")
    e(f"    buffer_store_dwordx4 v[16:19], v2, {R(S_STO)}, 0 offen offset:64 {SCH}")
    e("    s_mov_b64 exec, -1")
    stamp("h1_st")
    srd(S_GAT, 18, 19, TABBYTES + 3072, WS_H1 - 3072)
    e("    s_or_b32 s71, s71, 1")
    zero_b_counters(256)
    for i in range(16):
        e(f"    v_mov_b32 v{64+i}, 0")
    e("    v_lshlrev_b32 v9, 4, v0")
    e("    v_lshlrev_b32 v31, 3, v0")
    e("    s_waitcnt lgkmcnt(0)")
    grid_barrier("g2", 1, 0, 0)
    e("    v_mov_b32 v8, 0")
    e("    s_bitcmp0_b32 s71, 1")
    e("    s_cbranch_scc1 MAIN")
    e("    s_branch COLLECT")
    e("FINAL:")
    e("    s_mov_b64 exec, -1")
    srd(S_STO, 14, 15, TABBYTES)
    e("    v_bfe_u32 v7, v0, 2, 2")
    e("    v_lshl_add_u32 v6, v11, 3, v7")
    e("    v_lshlrev_b32 v6, 7, v6")
    e("    v_and_b32 v7, 3, v0")
    e("    v_lshl_add_u32 v6, v7, 4, v6")
    e(f"    v_add_u32 v6, {WL}, v6")
    for s in range(2):
        for t in range(4):
            for u in range(2):
                off = (32 * s + 4 * u) * 128 + 64 * (t >> 1) + 8 * (t & 1)
                r = 80 + (s * 4 + t) * 4 + 2 * u
                e(f"    ds_read_b64_tr_b16 v[{r}:{r+1}], v6 offset:{off}")
    e("    s_waitcnt lgkmcnt(8)")
    for t in range(4):
        e(f"    v_mfma_f32_16x16x32_bf16 v[{64+4*t}:{67+4*t}], v[{80+4*t}:{83+4*t}], v[12:15], 0")
    e("    s_waitcnt lgkmcnt(0)")
    for t in range(4):
        e(f"    v_mfma_f32_16x16x32_bf16 v[{64+4*t}:{67+4*t}], v[{96+4*t}:{99+4*t}], v[16:19], v[{64+4*t}:{67+4*t}]")
    e("    s_nop 7")
    e("    s_nop 1")
    for t in range(4):
        e(f"    v_cvt_pk_bf16_f32 v{12+2*t}, v{64+4*t}, v{65+4*t}")
        e(f"    v_cvt_pk_bf16_f32 v{13+2*t}, v{66+4*t}, v{67+4*t}")
    e("    s_mov_b64 exec, s[52:53]")
    e(f"    buffer_store_dwordx4 v[12:15], v2, {R(S_STO)}, 0 offen {ST_OUT}")
    e(f"    buffer_store_dwordx4 v[16:19], v2, {R(S_STO)}, 0 offen offset:64 {ST_OUT}")
    stamp_out()
    e("END:")
    e("    s_endpgm")


e(f"; @launch grid=(256,1,1) block=(1024,1,1) lds={LDS}")
e('.amdgcn_target "amdgcn-amd-amdhsa--gfx950"')
e(".text")
body()
e('.section .rodata,"a"')
e(".p2align 6")
e(f".amdhsa_kernel {NAME}")
e("  .amdhsa_next_free_vgpr 128")
e("  .amdhsa_next_free_sgpr 102")
e("  .amdhsa_accum_offset 128")
e("  .amdhsa_group_segment_fixed_size 0")
e("  .amdhsa_kernarg_size 64")
e("  .amdhsa_user_sgpr_count 2")
e("  .amdhsa_user_sgpr_kernarg_segment_ptr 1")
e("  .amdhsa_system_sgpr_workgroup_id_x 1")
e(".end_amdhsa_kernel")
open(OUT, "w").write("\n".join(L) + "\n")
```

```python
import sys

OUT = [a for a in sys.argv[1:] if not a.startswith("--")][0]
OPT = dict(a[2:].split("=") for a in sys.argv[1:] if a.startswith("--") and "=" in a)
NAME = "standalone__spectral_conv_sgc__graph_kernel"
DEFST = "start,a_bar1,a_bar2,g1_exit,b_lines,b_bar1,b_bar2,h1_done,h1_st,g2_exit,h2_done,end"
STL = OPT.get("st", DEFST if "--diag" in sys.argv else "").split(",")
STL = [s for s in STL if s]
DIAG = len(STL) > 0


def I(name, dflt):
    return int(OPT.get(name, dflt))


N = 50000
E = 850000
ET = 800000
TM = 5368
CH = 3128
NMAIN = CH // 4
TCH = 196
NTHR = NMAIN + TCH // 4
SLOTCAP = 24
NINL = 7
WS_SLOTS = 0
WS_OVT = 8 << 20
WS_FLAG = WS_OVT + 65536
WS_H1 = WS_OVT + (1 << 20)
WS_OVF = 16 << 20
OVF_STRIDE = 32768
WS_STAMP = 32 << 20
TABBYTES = N * 128
PADV = 0x40000000

K1_LS = 132
K1_CNT = 256 * K1_LS
K1_OVC = 1024
K1_OVT = K1_CNT + 4096
K1_NON = K1_OVT + 64
LISTS = 65536
CAPT = 320
TSTR = CAPT * 8
CNTB = LISTS + 16 * TSTR + 256
BASES = CNTB + 1024
MORE = BASES + 1024
WL = MORE + 64
LDS = WL + 8192

SC = OPT.get("sc", "sc1")
SCF = OPT.get("scf", "sc1")
SCH = OPT.get("sch", SC)
LD_IN = OPT.get("ldin", "")
LD_SL = OPT.get("ldsl", SC)
ST_OUT = OPT.get("stout", "")
SPINMAX = 20000000
NREP = I("nrep", 8)
LSTR = I("lstr", 128)
NB = I("nb", 8)
TOUCH = I("touch", 1)
PFS = I("pfstep", 80)
PF = [I("pf0", 0), I("pf1", 0), I("pf2", 0), I("pf3", 0)]
PF4 = I("pf4", 0)
PRIO = I("prio", 0)
ACKW = I("ackw", 1)
TORN = I("torn", 0)
PFH = I("pfh", 0)

L = []


def e(s=""):
    L.append(s)


def srd(d, lo, hi, nbytes, off=0):
    if off == 0:
        e(f"    s_mov_b32 s{d}, s{lo}")
        e(f"    s_and_b32 s{d+1}, s{hi}, 0xffff")
    elif off > 0:
        e(f"    s_add_u32 s{d}, s{lo}, {off}")
        e(f"    s_addc_u32 s{d+1}, s{hi}, 0")
        e(f"    s_and_b32 s{d+1}, s{d+1}, 0xffff")
    else:
        e(f"    s_sub_u32 s{d}, s{lo}, {-off}")
        e(f"    s_subb_u32 s{d+1}, s{hi}, 0")
        e(f"    s_and_b32 s{d+1}, s{d+1}, 0xffff")
    e(f"    s_mov_b32 s{d+2}, {nbytes}")
    e(f"    s_mov_b32 s{d+3}, 0x20000")


S_SRC, S_DST, S_NRM, S_WS, S_OVF, S_GAT, S_STO, S_DBG = 20, 24, 28, 32, 36, 40, 44, 48
WSBYTES = WS_H1


def R(d):
    return f"s[{d}:{d+3}]"


STAMP_BASE = 78


def stamp(name):
    if "c_" + name in STL:
        i = STL.index("c_" + name)
        e(f"    s_memtime s[{STAMP_BASE+2*i}:{STAMP_BASE+2*i+1}]")
    if name in STL:
        i = STL.index(name)
        e(f"    s_memrealtime s[{STAMP_BASE+2*i}:{STAMP_BASE+2*i+1}]")


def stamp2(n1, n2):
    if n1 in STL or n2 in STL:
        n = len(L)
        e("    s_bitcmp1_b32 s71, 0")
        e(f"    s_cbranch_scc1 ST{n}_B")
        stamp(n1)
        e(f"    s_branch ST{n}_C")
        e(f"ST{n}_B:")
        stamp(n2)
        e(f"ST{n}_C:")


def stamp_out():
    if not DIAG:
        return
    e("    s_waitcnt vmcnt(0) lgkmcnt(0)")
    stamp("end")
    e("    s_waitcnt lgkmcnt(0)")
    e("    s_mov_b64 exec, 1")
    srd(20, 18, 19, 1 << 20, WS_STAMP - (I("wsoff", 0) << 20))
    e("    s_lshl_b32 s76, s2, 4")
    e("    s_add_u32 s76, s76, s3")
    e("    s_lshl_b32 s76, s76, 6")
    e("    v_mov_b32 v2, s76")
    for i in range(len(STL)):
        e(f"    v_mov_b32 v3, s{STAMP_BASE+2*i}")
        e(f"    buffer_store_dword v3, v2, s[20:23], 0 offen offset:{4*i}")
    e("    s_getreg_b32 s76, hwreg(HW_REG_XCC_ID)")
    e("    v_mov_b32 v3, s76")
    e("    buffer_store_dword v3, v2, s[20:23], 0 offen offset:56")
    e("    v_mov_b32 v3, s16")
    e("    buffer_store_dword v3, v2, s[20:23], 0 offen offset:60")
    e("    v_mov_b32 v3, s17")
    e("    buffer_store_dword v3, v2, s[20:23], 0 offen offset:52")


def PEND(s):
    return f"s[{52+2*s}:{53+2*s}]"


pf_base = [0]


def prefetch(cnt, nwaves=16, wave0=0):
    if cnt == 0:
        return 0
    nops = (cnt + 63) // 64
    e("    s_lshr_b32 s76, s2, 3")
    e(f"    s_mul_i32 s76, s76, {nwaves}")
    e("    s_add_u32 s76, s76, s3")
    e(f"    s_mul_i32 s76, s76, {cnt}")
    e(f"    s_add_u32 s76, s76, {pf_base[0] - wave0*cnt}")
    for o in range(nops):
        n = min(64, cnt - 64 * o)
        e("    v_and_b32 v2, 63, v0")
        e("    v_add_u32 v2, s76, v2")
        e("    v_lshrrev_b32 v3, 5, v2")
        e("    v_and_b32 v2, 31, v2")
        e(f"    v_mul_u32_u24 v3, {PFS}, v3")
        e("    v_add_lshl_u32 v2, v2, v3, 7")
        if n < 64:
            e(f"    s_mov_b32 exec_lo, {((1 << n) - 1) & 0xffffffff}")
            e(f"    s_mov_b32 exec_hi, {((1 << n) - 1) >> 32}")
        e(f"    buffer_load_dword v126, v2, {R(S_GAT)}, 0 offen offset:3072")
        if n < 64:
            e("    s_mov_b64 exec, -1")
        if o + 1 < nops:
            e("    s_add_u32 s76, s76, 64")
    pf_base[0] += 32 * nwaves * cnt
    return nops


def grid_barrier(p, idx, pfa, pfb):
    rstr = 64 * LSTR
    fb = WS_FLAG + idx * NREP * rstr
    n = prefetch(pfa)
    e(f"    s_waitcnt vmcnt({n})")
    stamp(p + "_ack")
    e("    s_barrier")
    if idx == 0:
        e("    s_cmp_lt_u32 s3, 13")
        e("    s_cbranch_scc1 G1_NOW")
        e(f"    v_subrev_u32 v2, {13*64}, v0")
        e("    v_lshlrev_b32 v2, 4, v2")
        e(f"    v_cmp_gt_u32 vcc, 2048, v2")
        e(f"    v_add_u32 v2, {WL}, v2")
        e("    ds_write_b128 v2, v[100:103]")
        e("    ds_write_b128 v2, v[104:107] offset:3072")
        e("    s_and_saveexec_b64 s[76:77], vcc")
        e("    ds_write_b128 v2, v[108:111] offset:6144")
        e("    s_mov_b64 exec, -1")
        e("G1_NOW:")
    e("    s_cmp_lg_u32 s3, 0")
    e(f"    s_cbranch_scc1 {p}_WAIT")
    stamp(p + "_arr")
    if idx == 0:
        e(f"    s_mov_b32 s76, {SPINMAX}")
        e(f"{p}_NONCE:")
        e("    v_cmp_ne_u32 vcc, 0, v125")
        e(f"    s_cbranch_vccnz {p}_GOTN")
        e("    v_mov_b32 v2, 0")
        e(f"    buffer_load_dword v125, v2, {R(S_DBG)}, 0 offen {SCF}")
        e("    s_sub_u32 s76, s76, 1")
        e("    s_cmp_eq_u32 s76, 0")
        e("    s_waitcnt vmcnt(0)")
        e(f"    s_cbranch_scc0 {p}_NONCE")
        e(f"{p}_GOTN:")
    e("    s_lshr_b32 s76, s2, 2")
    e(f"    s_mul_i32 s76, s76, {LSTR}")
    e("    s_and_b32 s77, s2, 3")
    e("    s_lshl_b32 s77, s77, 2")
    e("    s_add_u32 s76, s76, s77")
    e(f"    s_add_u32 s76, s76, {fb}")
    e(f"    v_mul_u32_u24 v2, {rstr}, v0")
    e(f"    s_mov_b32 exec_lo, {((1 << NREP) - 1) & 0xffffffff}")
    e(f"    s_mov_b32 exec_hi, {((1 << NREP) - 1) >> 32}")
    e(f"    buffer_store_dword v125, v2, {R(S_WS)}, s76 offen {SCF}")
    e("    s_mov_b64 exec, -1")
    prefetch(pfb, 1, 0)
    e("    s_getreg_b32 s77, hwreg(HW_REG_XCC_ID, 0, 4)")
    e(f"    s_and_b32 s77, s77, {NREP-1}")
    e(f"    s_mul_i32 s77, s77, {rstr}")
    e(f"    s_add_u32 s77, s77, {fb}")
    e(f"    v_mul_u32_u24 v8, {LSTR}, v0")
    e(f"    s_mov_b32 s76, {SPINMAX}")
    e(f"{p}_POLL:")
    e(f"    buffer_load_dwordx4 v[4:7], v8, {R(S_WS)}, s77 offen {SCF}")
    e("    s_sub_u32 s76, s76, 1")
    e("    s_cmp_eq_u32 s76, 0")
    e("    s_waitcnt vmcnt(0)")
    e(f"    s_cbranch_scc1 {p}_WAIT")
    e("    v_xor_b32 v4, v4, v125")
    e("    v_xor_b32 v5, v5, v125")
    e("    v_xor_b32 v6, v6, v125")
    e("    v_xor_b32 v7, v7, v125")
    e("    v_or3_b32 v4, v4, v5, v6")
    e("    v_or_b32 v4, v4, v7")
    e("    v_cmp_ne_u32 vcc, 0, v4")
    e(f"    s_cbranch_vccnz {p}_POLL")
    e(f"{p}_WAIT:")
    e("    s_barrier")
    stamp(p + "_exit")


def decode_key(rec, meta, k, s):
    ca = 40 + s
    e(f"    v_bfe_u32 v2, v{rec}, 12, 4")
    e(f"    v_and_b32_sdwa v3, v{meta}, v99 dst_sel:DWORD dst_unused:UNUSED_PAD src0_sel:BYTE_{k} src1_sel:DWORD")
    e(f"    v_or_b32 v2, v2, v3")
    e(f"    v_lshl_add_u32 v{ca}, v2, 2, s0")


def decode_data(rec, meta, k, s):
    d0, d1 = 48 + s, 56 + s
    e(f"    v_lshlrev_b32_sdwa v{d0}, v124, v{rec} dst_sel:DWORD dst_unused:UNUSED_PAD src0_sel:DWORD src1_sel:WORD_0")
    if OPT.get("srcmask"):
        e(f"    v_and_b32 v{d0}, {OPT['srcmask']}, v{d0}")
    e(f"    v_mov_b32 v{d1}, v{rec}")
    e(f"    v_lshlrev_b16_sdwa v{d1}, v{meta}, v1 dst_sel:WORD_0 dst_unused:UNUSED_PRESERVE src0_sel:BYTE_{k} src1_sel:DWORD")


def decode_full(rec, dst, s):
    e(f"    v_mul_u32_u24 v30, {TM}, v{dst}")
    e("    v_lshrrev_b32 v30, 12, v30")
    e(f"    v_bfi_b32 v30, 15, v{dst}, v30")
    decode_key(rec, 30, 0, s)
    decode_data(rec, 30, 0, s)


def zero_b_counters(n):
    e("    v_lshlrev_b32 v2, 2, v0")
    e(f"    v_add_u32 v2, {CNTB}, v2")
    e("    v_mov_b32 v3, 0")
    e(f"    v_cmp_gt_u32 vcc, {n}, v0")
    e("    s_and_saveexec_b64 s[76:77], vcc")
    e("    ds_write_b32 v2, v3")
    e("    s_mov_b64 exec, -1")


def body():
    e(f".globl {NAME}")
    e(".p2align 8")
    e(f".type {NAME},@function")
    e(f"{NAME}:")
    stamp("start")
    e("    s_cmp_ge_u32 s2, 256")
    e("    s_cbranch_scc1 END")
    e("    s_load_dwordx8 s[4:11], s[0:1], 0")
    e("    s_load_dwordx8 s[12:19], s[0:1], 32")
    e("    v_lshlrev_b32 v9, 2, v0")
    e("    v_lshrrev_b32 v3, 6, v0")
    e(f"    s_mul_i32 s68, s2, {CH}")
    e(f"    s_mul_i32 s69, s2, {TCH}")
    e("    v_readfirstlane_b32 s3, v3")
    e(f"    s_add_u32 s69, s69, {ET - 4*NMAIN}")
    e("    v_add_u32 v4, s68, v9")
    e("    v_add_u32 v5, s69, v9")
    e(f"    v_cmp_gt_u32 vcc, {NMAIN}, v0")
    e(f"    v_mov_b32 v7, {E}")
    e(f"    v_mov_b32 v3, {ET}")
    e("    v_cndmask_b32 v6, v5, v4, vcc")
    e("    v_cndmask_b32 v7, v7, v3, vcc")
    e("    v_cmp_lt_u32 s[72:73], v6, v7")
    e(f"    v_cmp_gt_u32 vcc, {NTHR}, v0")
    e("    v_sub_u32 v8, v6, v3")
    e("    s_and_b64 s[72:73], s[72:73], vcc")
    e(f"    v_mov_b32 v3, {1 << 24}")
    e("    v_cndmask_b32 v6, v3, v6, s[72:73]")
    e("    v_lshlrev_b32 v4, 2, v6")
    e("    v_lshlrev_b32 v5, 1, v6")
    e("    s_waitcnt lgkmcnt(0)")
    if I("wsoff", 0):
        e(f"    s_add_u32 s18, s18, {I('wsoff', 0) << 20}")
        e("    s_addc_u32 s19, s19, 0")
    srd(S_DST, 8, 9, E * 4)
    srd(S_SRC, 6, 7, E * 4)
    srd(S_NRM, 10, 11, E * 2)
    e("    s_cmp_ge_u32 s3, 13")
    e("    s_cbranch_scc1 A_HELP")
    e(f"    buffer_load_dwordx4 v[12:15], v4, {R(S_DST)}, 0 offen {LD_IN}")
    e(f"    buffer_load_dwordx4 v[16:19], v4, {R(S_SRC)}, 0 offen {LD_IN}")
    e(f"    buffer_load_dwordx2 v[20:21], v5, {R(S_NRM)}, 0 offen {LD_IN}")
    stamp("a_issue")
    srd(S_DBG, 16, 17, 256)
    e("    s_branch A_BAR")
    e("A_HELP:")
    srd(S_DBG, 16, 17, 256)
    e("    s_cmp_lg_u32 s2, 0")
    e("    s_cbranch_scc1 A_NONONCE")
    e("    s_cmp_lg_u32 s3, 13")
    e("    s_cbranch_scc1 A_NONONCE")
    e("    s_memrealtime s[76:77]")
    e("    v_mov_b32 v2, 0")
    e("    s_waitcnt lgkmcnt(0)")
    e("    s_mul_i32 s68, s76, 0x9e3779b1")
    e("    s_mul_hi_u32 s69, s76, 0x9e3779b1")
    e("    s_xor_b32 s68, s68, s69")
    e("    s_xor_b32 s68, s68, s77")
    e("    s_mul_i32 s69, s68, 0x85ebca6b")
    e("    s_mul_hi_u32 s70, s68, 0x85ebca6b")
    e("    s_xor_b32 s69, s69, s70")
    e("    s_or_b32 s68, s68, 1")
    e("    v_mov_b32 v4, s68")
    e("    v_mov_b32 v5, s69")
    e("    s_mov_b64 exec, 1")
    e(f"    buffer_store_dwordx2 v[4:5], v2, {R(S_DBG)}, 0 offen {SCF}")
    e("    s_mov_b64 exec, -1")
    e("A_NONONCE:")
    srd(S_STO, 12, 13, 8192)
    e(f"    v_subrev_u32 v2, {13*64}, v0")
    e("    v_lshlrev_b32 v2, 4, v2")
    e(f"    buffer_load_dwordx4 v[100:103], v2, {R(S_STO)}, 0 offen")
    e(f"    buffer_load_dwordx4 v[104:107], v2, {R(S_STO)}, 0 offen offset:3072")
    e("    v_add_u32 v3, 6144, v2")
    e(f"    buffer_load_dwordx4 v[108:111], v3, {R(S_STO)}, 0 offen")
    e("A_BAR:")
    e("    v_mov_b32 v2, 0")
    e(f"    ds_write_b32 v9, v2 offset:{K1_CNT}")
    e("    v_mov_b32 v24, -1")
    e("    v_mov_b32 v25, -1")
    e("    v_mov_b32 v26, -1")
    e("    v_mov_b32 v27, -1")
    e("    v_lshlrev_b32 v2, 4, v0")
    e("    ds_write_b128 v2, v[24:27]")
    e("    ds_write_b128 v2, v[24:27] offset:16384")
    e("    s_cmp_lg_u32 s3, 15")
    e("    s_cbranch_scc1 A_INITD")
    e(f"    ds_write_b128 v2, v[24:27] offset:{32768 - 15*1024}")
    e("    v_and_b32 v4, 60, v9")
    e("    v_mov_b32 v2, 0xffff")
    e(f"    ds_write_b32 v4, v2 offset:{K1_OVT}")
    e("A_INITD:")
    e("    s_waitcnt lgkmcnt(0)")
    e("    s_barrier")
    stamp("a_bar1")
    srd(S_WS, 18, 19, WSBYTES, 0)
    srd(S_OVF, 18, 19, 256 * OVF_STRIDE, WS_OVF)
    srd(S_GAT, 4, 5, TABBYTES + 3072, -3072)
    srd(S_STO, 18, 19, TABBYTES, WS_H1)
    e("    v_mov_b32 v1, 1")
    e("    v_mov_b32 v99, 0xf0")
    e("    v_mov_b32 v124, 7")
    e(f"    s_mov_b32 s0, {CNTB}")
    e("    s_mov_b32 s1, 0x07060302")
    e("    s_mov_b32 s71, 0")
    e("    s_mov_b64 s[12:13], 0")
    e("    s_cmp_ge_u32 s3, 4")
    e("    s_cbranch_scc1 A_NOTAIL")
    e("    v_lshrrev_b32 v2, 4, v0")
    e("    s_lshl_b32 s76, s2, 4")
    e("    v_add_u32 v2, s76, v2")
    e("    v_mul_u32_u24 v3, 50006, v2")
    e("    v_lshrrev_b32 v3, 12, v3")
    e("    v_sub_u32 v4, v0, v3")
    e("    v_and_b32 v4, 15, v4")
    e("    v_add_u32 v123, v3, v4")
    e(f"    v_mul_u32_u24 v4, {TM}, v123")
    e("    v_lshrrev_b32 v4, 16, v4")
    e("    v_cmp_eq_u32 s[12:13], v4, v2")
    e(f"    v_cmp_gt_u32 vcc, {N}, v123")
    e(f"    v_add_u32 v4, {ET}, v123")
    e("    v_lshlrev_b32 v5, 2, v4")
    e("    v_lshlrev_b32 v4, 1, v4")
    e("    s_and_b64 s[12:13], s[12:13], vcc")
    e(f"    buffer_load_dword v120, v5, {R(S_DST)}, 0 offen")
    e(f"    buffer_load_dword v121, v5, {R(S_SRC)}, 0 offen")
    e(f"    buffer_load_ushort v122, v4, {R(S_NRM)}, 0 offen")
    e("A_NOTAIL:")
    if TOUCH:
        e("    s_cmp_lg_u32 s3, 14")
        e("    s_cbranch_scc1 A_NOTOUCH")
        e("    v_and_b32 v2, 63, v0")
        e("    v_lshlrev_b32 v2, 18, v2")
        e(f"    buffer_load_dword v126, v2, {R(S_WS)}, 0 offen sc1")
        e(f"    buffer_load_dword v126, v2, {R(S_STO)}, 0 offen sc1")
        e(f"    buffer_load_dword v126, v2, {R(S_GAT)}, 0 offen offset:3072")
        e("A_NOTOUCH:")
    if PF[0]:
        e("    s_cmp_lg_u32 s3, 15")
        e("    s_cbranch_scc1 A_NOPF")
        prefetch(PF[0], 1, 15)
        e("A_NOPF:")
    zero_b_counters((WL - CNTB) // 4)
    e("    v_and_b32 v10, 7, v0")
    e("    v_and_b32 v2, 63, v0")
    e("    v_bfe_u32 v3, v2, 4, 1")
    e("    v_xor_b32 v3, v3, v10")
    e("    v_lshlrev_b32 v83, 4, v3")
    e("    v_add_u32 v80, 3072, v83")
    e("    v_add_u32 v82, 1024, v83")
    e("    v_xor_b32 v83, 64, v83")
    e("    v_add_u32 v81, 2048, v83")
    e("    v_and_b32 v92, 15, v0")
    e("    v_lshrrev_b32 v11, 4, v2")
    e("    v_bfe_u32 v6, v2, 2, 2")
    e("    v_and_b32 v7, 3, v2")
    e("    v_lshl_add_u32 v84, v11, 3, v6")
    e("    v_lshlrev_b32 v84, 7, v84")
    e("    v_lshrrev_b32 v6, 1, v6")
    e("    v_and_b32 v4, 1, v11")
    e("    v_lshl_or_b32 v6, v4, 2, v6")
    e("    v_xor_b32 v6, v6, v7")
    e("    v_lshl_add_u32 v84, v6, 4, v84")
    e("    v_and_b32 v4, 1, v7")
    e("    v_lshl_add_u32 v84, v4, 3, v84")
    e("    s_lshl_b32 s76, s3, 12")
    e("    v_add_u32 v84, s76, v84")
    e("    s_mov_b32 m0, s76")
    e("    v_xor_b32 v85, 8, v84")
    e("    v_xor_b32 v86, 64, v84")
    e("    v_xor_b32 v87, 72, v84")
    e(f"    s_mul_i32 s76, s3, {TSTR}")
    e(f"    s_add_u32 s76, s76, {LISTS}")
    e("    v_lshrrev_b32 v4, 3, v2")
    e("    v_lshl_add_u32 v88, v4, 2, s76")
    e(f"    s_add_u32 s76, s76, {CAPT*4}")
    e("    v_lshl_add_u32 v89, v11, 5, s76")
    e("    v_cmp_lt_u32 vcc, 0, v7")
    e("    v_cmp_lt_u32 s[76:77], 1, v7")
    e("    v_lshrrev_b32 v4, 2, v2")
    e("    v_cndmask_b32 v95, 0, -1, vcc")
    e("    v_cndmask_b32 v96, 0, -1, s[76:77]")
    e("    v_cmp_lt_u32 vcc, 2, v7")
    e(f"    v_mul_u32_u24 v98, {TSTR}, v4")
    e(f"    v_add_u32 v98, {LISTS}, v98")
    e("    v_cndmask_b32 v97, 0, -1, vcc")
    e("    v_lshlrev_b32 v90, 4, v2")
    e(f"    v_add_u32 v90, {CNTB}, v90")
    for i in range(16):
        e(f"    v_mov_b32 v{64+i}, 0")
    e("    s_cmp_lt_u32 s3, 13")
    e("    s_cbranch_scc1 A_EDGES")
    e("    s_cmp_lg_u32 s3, 13")
    e("    s_cbranch_scc1 A_OUT")
    e(f"    s_mov_b32 s76, {SPINMAX}")
    e("    v_mov_b32 v2, 0")
    e("A_NPOLL:")
    e(f"    buffer_load_dwordx2 v[4:5], v2, {R(S_DBG)}, 0 offen {SCF}")
    e("    s_sub_u32 s76, s76, 1")
    e("    s_cmp_eq_u32 s76, 0")
    e("    s_waitcnt vmcnt(0)")
    e("    s_cbranch_scc1 A_NGOT")
    e("    v_cmp_eq_u32 vcc, 0, v4")
    e("    s_cbranch_vccnz A_NPOLL")
    e("A_NGOT:")
    e(f"    ds_write_b64 v2, v[4:5] offset:{K1_NON}")
    e("    s_branch A_OUT")
    e("A_EDGES:")
    e("    s_mov_b64 exec, s[72:73]")
    e("    s_mov_b32 s70, 0xffff0000")
    stamp("a_setup")
    e("    s_cmp_ge_u32 s3, 4")
    e("    s_cbranch_scc1 A_W2")
    e("    s_waitcnt vmcnt(5)")
    e("    s_branch A_W5")
    e("A_W2:")
    e("    s_waitcnt vmcnt(2)")
    e("A_W5:")
    stamp("a_dst")
    for k in range(4):
        e(f"    v_mul_u32_u24 v{24+k}, {TM}, v{12+k}")
        e(f"    v_add_u32 v2, {k}, v8")
        e(f"    v_lshrrev_b32 v{28+k}, 20, v{24+k}")
        e(f"    v_cmp_ne_u32 s[{52+2*k}:{53+2*k}], v{12+k}, v2")
        e(f"    v_lshlrev_b32 v{36+k}, 2, v{28+k}")
    for k in range(4):
        e(f"    s_mov_b64 exec, s[{52+2*k}:{53+2*k}]")
        e(f"    ds_add_rtn_u32 v{32+k}, v{36+k}, v1 offset:{K1_CNT}")
    e("    s_mov_b64 exec, s[72:73]")
    for k in range(4):
        e(f"    v_lshrrev_b32 v{24+k}, 12, v{24+k}")
        e(f"    v_mul_u32_u24 v{28+k}, {K1_LS}, v{28+k}")
        e(f"    v_bfi_b32 v{24+k}, 15, v{12+k}, v{24+k}")
    e("    s_mov_b64 s[60:61], 0")
    for k in range(4):
        e(f"    s_mov_b64 exec, s[{52+2*k}:{53+2*k}]")
        e(f"    s_waitcnt lgkmcnt(3)")
        e(f"    v_cmp_gt_u32 vcc, {SLOTCAP}, v{32+k}")
        e(f"    v_and_b32 v2, 7, v{32+k}")
        e(f"    v_lshrrev_b32 v3, 3, v{32+k}")
        e(f"    s_andn2_b64 s[{52+2*k}:{53+2*k}], exec, vcc")
        e(f"    s_or_b64 s[60:61], s[60:61], s[{52+2*k}:{53+2*k}]")
        e(f"    s_mov_b64 s[{4+2*k}:{5+2*k}], vcc")
        e("    s_mov_b64 exec, vcc")
        e(f"    v_lshl_add_u32 v2, v2, 4, v{28+k}")
        e(f"    v_lshl_add_u32 v{36+k}, v3, 2, v2")
        e("    v_add_u32 v5, v3, v2")
        e(f"    ds_write_b8 v5, v{24+k} offset:12")
    e("    s_mov_b64 exec, s[72:73]")
    e("    s_waitcnt vmcnt(0)")
    stamp("a_all")
    for k in range(4):
        if k % 2 == 0:
            e(f"    v_lshl_or_b32 v{16+k}, v{20+k//2}, 16, v{16+k}")
        else:
            e(f"    v_and_or_b32 v{16+k}, v{20+k//2}, s70, v{16+k}")
    for k in range(4):
        e(f"    s_mov_b64 exec, s[{4+2*k}:{5+2*k}]")
        e(f"    ds_write_b32 v{36+k}, v{16+k}")
    e("    s_cmp_eq_u64 s[60:61], 0")
    e("    s_cbranch_scc1 A_OUT")
    e("    s_lshl_b32 s62, s2, 15")
    for k in range(4):
        e(f"    s_mov_b64 exec, s[{52+2*k}:{53+2*k}]")
        e(f"    s_cbranch_execz A_OV{k}")
        e(f"    v_mov_b32 v2, {K1_OVC}")
        e(f"    ds_add_rtn_u32 v3, v2, v1 offset:{K1_CNT}")
        e(f"    v_mov_b32 v4, v{16+k}")
        e(f"    v_mov_b32 v5, v{12+k}")
        e("    s_waitcnt lgkmcnt(0)")
        e(f"    v_cmp_gt_u32 vcc, {NINL}, v3")
        e("    v_lshlrev_b32 v3, 3, v3")
        e("    s_andn2_b64 s[76:77], exec, vcc")
        e("    s_mov_b64 exec, vcc")
        e(f"    ds_write_b64 v3, v[4:5] offset:{K1_OVT}")
        e("    s_mov_b64 exec, s[76:77]")
        e(f"    s_cbranch_execz A_OV{k}")
        e(f"    buffer_store_dwordx2 v[4:5], v3, {R(S_OVF)}, s62 offen {SC}")
        e("    s_waitcnt vmcnt(0)")
        e(f"A_OV{k}:")
    e("A_OUT:")
    e("    s_mov_b64 exec, -1")
    e("    v_lshrrev_b32 v2, 3, v0")
    e(f"    v_mul_u32_u24 v4, {K1_LS}, v2")
    e("    v_lshl_add_u32 v4, v10, 4, v4")
    e(f"    v_add_u32 v5, {128*K1_LS}, v4")
    e("    v_lshlrev_b32 v7, 15, v2")
    e("    v_lshl_add_u32 v7, v10, 4, v7")
    if I("skew", 1):
        e(f"    v_mul_u32_u24 v3, {I('skew', 1)}, v2")
        e("    v_add_u32 v3, s2, v3")
        e("    v_and_b32 v3, 255, v3")
        e("    v_lshl_add_u32 v7, v3, 7, v7")
        e("    s_mov_b32 s62, 0")
        e(f"    s_mov_b32 s63, {128*32768}")
    else:
        e("    s_lshl_b32 s62, s2, 7")
        e(f"    s_add_u32 s63, s62, {128*32768}")
    e("    s_mov_b32 s64, 0xffffff")
    e("    v_and_b32 v6, 6, v10")
    e("    s_waitcnt lgkmcnt(0)")
    e("    s_barrier")
    stamp("a_bar2")
    e(f"    ds_read_u8 v127, v10 offset:{K1_NON}")
    e("    ds_read2_b32 v[12:13], v4 offset0:0 offset1:1")
    e("    ds_read2_b32 v[14:15], v4 offset0:2 offset1:3")
    e("    ds_read2_b32 v[16:17], v5 offset0:0 offset1:1")
    e("    ds_read2_b32 v[18:19], v5 offset0:2 offset1:3")
    e(f"    ds_read_u16 v91, v6 offset:{K1_NON}")
    e("    v_mov_b32 v8, 0")
    e(f"    ds_read_b32 v125, v8 offset:{K1_NON}")
    e("    s_waitcnt lgkmcnt(6)")
    e("    v_lshlrev_b32 v20, 24, v127")
    e("    s_waitcnt lgkmcnt(4)")
    e("    v_and_or_b32 v15, v15, s64, v20")
    e(f"    buffer_store_dwordx4 v[12:15], v7, {R(S_WS)}, s62 offen {SC}")
    e("    s_waitcnt lgkmcnt(2)")
    e("    v_and_or_b32 v19, v19, s64, v20")
    e(f"    buffer_store_dwordx4 v[16:19], v7, {R(S_WS)}, s63 offen {SC}")
    e("    s_cmp_lg_u32 s3, 15")
    e("    s_cbranch_scc1 A_FIN")
    e("    s_mov_b64 exec, 0xff")
    e("    v_lshlrev_b32 v2, 3, v10")
    e(f"    ds_read_b64 v[24:25], v2 offset:{K1_OVT}")
    e(f"    ds_read_b32 v22, v8 offset:{K1_CNT+K1_OVC}")
    e("    v_cmp_eq_u32 vcc, 7, v10")
    e("    s_lshl_b32 s62, s2, 6")
    e(f"    s_add_u32 s62, s62, {WS_OVT}")
    e("    s_waitcnt lgkmcnt(0)")
    e("    v_cndmask_b32 v24, v24, v22, vcc")
    e("    v_lshl_or_b32 v25, v91, 16, v25")
    e(f"    buffer_store_dwordx2 v[24:25], v2, {R(S_WS)}, s62 offen {SC}")
    e("A_FIN:")
    e("    s_mov_b64 exec, -1")
    stamp("a_st")
    e("    s_cmp_ge_u32 s3, 4")
    e("    s_cbranch_scc1 A_TD")
    e("    v_cmp_eq_u32 vcc, v120, v123")
    e("    v_lshl_or_b32 v121, v122, 16, v121")
    e("    s_and_b64 s[12:13], s[12:13], vcc")
    decode_key(121, 0, 0, 6)
    decode_data(121, 0, 0, 6)
    e("A_TD:")
    e("    v_lshlrev_b32 v9, 4, v0")
    e("    v_lshlrev_b32 v31, 3, v0")
    e("    s_waitcnt lgkmcnt(0)")
    e("    v_mov_b32 v120, v91")
    e("    s_cmp_lt_u32 s3, 13")
    e("    s_cbranch_scc1 G1_NOW")
    e(f"    v_subrev_u32 v2, {13*64}, v0")
    e("    v_lshlrev_b32 v2, 4, v2")
    e(f"    v_cmp_gt_u32 vcc, 2048, v2")
    e(f"    v_add_u32 v2, {WL}, v2")
    e("    s_waitcnt vmcnt(0)")
    e("    ds_write_b128 v2, v[100:103]")
    e("    ds_write_b128 v2, v[104:107] offset:3072")
    e("    s_and_saveexec_b64 s[76:77], vcc")
    e("    ds_write_b128 v2, v[108:111] offset:6144")
    e("    s_mov_b64 exec, -1")
    e("G1_NOW:")
    if ACKW:
        e("    s_waitcnt vmcnt(0)")
    stamp("g1_ack")
    if ACKW >= 2:
        e("    s_barrier")
    if ACKW >= 3:
        e(f"    s_mov_b32 s70, {WS_OVT}")
        e(f"    s_mov_b32 s74, {WS_OVT + 8192}")
        e(f"    s_mov_b32 s75, {SPINMAX}")
        e("P_POLL:")
        e(f"    buffer_load_dwordx2 v[116:117], v31, {R(S_WS)}, s70 offen {SC}")
        e(f"    buffer_load_dwordx2 v[118:119], v31, {R(S_WS)}, s74 offen {SC}")
        e("    s_sub_u32 s75, s75, 1")
        e("    s_cmp_eq_u32 s75, 0")
        e("    s_waitcnt vmcnt(0)")
        e("    s_cbranch_scc1 P_DONE")
        e("    v_cmp_ne_u32_sdwa vcc, v117, v120 src0_sel:WORD_1 src1_sel:DWORD")
        e("    v_cmp_ne_u32_sdwa s[76:77], v119, v120 src0_sel:WORD_1 src1_sel:DWORD")
        e("    s_or_b64 vcc, vcc, s[76:77]")
        e("    s_cbranch_scc1 P_POLL")
        e("P_DONE:")
    stamp("g1_exit")
    if TORN:
        e("    s_mov_b32 s16, 0")
        e("    s_mov_b32 s17, 0")

    e("COLLECT:")
    e("    s_lshl_b32 s68, s2, 15")
    e("    s_add_u32 s69, s68, 16384")
    e(f"    s_mov_b32 s70, {WS_OVT}")
    e(f"    s_mov_b32 s74, {WS_OVT + 8192}")
    e(f"    buffer_load_dwordx4 v[12:15], v9, {R(S_WS)}, s68 offen {LD_SL}")
    e(f"    buffer_load_dwordx4 v[16:19], v9, {R(S_WS)}, s69 offen {LD_SL}")
    e(f"    buffer_load_dwordx2 v[116:117], v31, {R(S_WS)}, s70 offen {SC}")
    e(f"    buffer_load_dwordx2 v[118:119], v31, {R(S_WS)}, s74 offen {SC}")
    e(f"    s_mov_b64 {PEND(6)}, s[12:13]")
    e(f"    s_mov_b64 {PEND(7)}, 0")
    e(f"    s_mov_b32 s75, {SPINMAX}")
    e("    s_movk_i32 s11, 0xffff")
    e(f"    s_mov_b64 exec, {PEND(6)}")
    e("    ds_add_rtn_u32 v38, v46, v1")
    e("    s_mov_b64 exec, -1")
    for i in range(2):
        base = 12 + 4 * i
        e(f"    s_waitcnt vmcnt({3-i})")
        e(f"C_CHK{i}:")
        e(f"    v_cmp_ne_u32_sdwa vcc, v{base+3}, v127 src0_sel:BYTE_3 src1_sel:DWORD")
        e(f"    s_cbranch_vccnz C_RETRY{i}")
        e(f"C_OK{i}:")
        if i == 0:
            stamp("b_lines")
        else:
            stamp("b_lines1")
        for k in range(3):
            e(f"    v_cmp_ne_u16 {PEND(3*i+k)}, s11, v{base+k}")
        for k in range(3):
            decode_key(base + k, base + 3, k, 3 * i + k)
        for k in range(3):
            s = 3 * i + k
            e(f"    s_mov_b64 exec, {PEND(s)}")
            e(f"    ds_add_rtn_u32 v{32+s}, v{40+s}, v1")
        e("    s_mov_b64 exec, -1")
        for k in range(3):
            decode_data(base + k, base + 3, k, 3 * i + k)
    e("    s_waitcnt vmcnt(0)")
    e("C_CHK2:")
    e("    v_cmp_ne_u32_sdwa vcc, v117, v120 src0_sel:WORD_1 src1_sel:DWORD")
    e("    v_cmp_ne_u32_sdwa s[76:77], v119, v120 src0_sel:WORD_1 src1_sel:DWORD")
    e("    s_or_b64 vcc, vcc, s[76:77]")
    e("    s_cbranch_scc1 C_RETRY2")
    e("C_OK2:")
    e("    v_and_b32 v117, 0xffff, v117")
    e("    v_and_b32 v119, 0xffff, v119")
    e(f"    v_mul_u32_u24 v2, {TM}, v117")
    e(f"    v_mul_u32_u24 v3, {TM}, v119")
    e("    v_cmp_eq_u32 s[74:75], 7, v10")
    e(f"    v_cmp_lt_u32 s[72:73], {NINL}, v116")
    e(f"    v_cmp_lt_u32 vcc, {NINL}, v118")
    e("    v_lshrrev_b32 v2, 20, v2")
    e("    v_lshrrev_b32 v3, 20, v3")
    e("    v_cmp_eq_u32 s[4:5], s2, v2")
    e("    v_cmp_eq_u32 s[6:7], s2, v3")
    e("    s_and_b64 s[72:73], s[72:73], s[74:75]")
    e("    s_and_b64 vcc, vcc, s[74:75]")
    e("    s_lshr_b64 s[72:73], s[72:73], 1")
    e("    s_or_b64 s[72:73], s[72:73], vcc")
    e("    s_mov_b32 s68, 0")
    e("    s_mov_b32 s69, 0")
    e("    s_mov_b32 s70, 0")
    e("    s_or_b64 s[76:77], s[4:5], s[6:7]")
    e("    s_or_b64 s[76:77], s[76:77], s[72:73]")
    e("    s_cbranch_scc1 EXTRA")
    e("CDONE:")
    e("    s_waitcnt lgkmcnt(0)")
    e("    s_barrier")
    stamp2("b_bar1", "")
    e("    ds_read_b128 v[4:7], v90")
    prefetch(PF4)
    e("    s_lshl_b32 s76, s3, 2")
    e("    s_add_u32 s76, s76, 3")
    e("    s_waitcnt lgkmcnt(0)")
    e("    v_add_u32 v5, v4, v5")
    e("    v_add_u32 v6, v5, v6")
    e("    v_add_u32 v7, v6, v7")
    e("    s_nop 1")
    e("    v_and_b32_dpp v28, v7, v95 quad_perm:[0,0,0,0] row_mask:0xf bank_mask:0xf")
    e("    v_and_b32_dpp v29, v7, v96 quad_perm:[1,1,1,1] row_mask:0xf bank_mask:0xf")
    e("    v_and_b32_dpp v30, v7, v97 quad_perm:[2,2,2,2] row_mask:0xf bank_mask:0xf")
    e("    v_add3_u32 v28, v28, v29, v30")
    e("    v_add_u32 v7, v28, v7")
    e("    v_lshl_add_u32 v28, v28, 2, v98")
    e(f"    v_cmp_lt_u32 vcc, {CAPT}, v7")
    e("    v_lshl_add_u32 v29, v4, 2, v28")
    e("    v_lshl_add_u32 v30, v5, 2, v28")
    e("    v_lshl_add_u32 v31, v6, 2, v28")
    e("    v_readlane_b32 s74, v7, s76")
    e("    ds_write_b128 v90, v[28:31] offset:1024")
    for s in range(8):
        e(f"    s_mov_b64 exec, {PEND(s)}")
        e(f"    ds_read_b32 v{20+s}, v{40+s} offset:1024")
    e("    s_mov_b64 exec, -1")
    e(f"    s_min_u32 s74, s74, {CAPT}")
    e("    v_and_b32 v2, 63, v0")
    e("    v_add_u32 v2, s74, v2")
    e("    s_add_u32 s76, s74, 31")
    e("    s_andn2_b32 s76, s76, 31")
    e(f"    s_mul_i32 s77, s3, {TSTR}")
    e(f"    s_add_u32 s77, s77, {LISTS}")
    e("    s_cbranch_vccnz SLOWW")
    for s in range(8):
        e(f"    s_mov_b64 exec, {PEND(s)}")
        e("    s_waitcnt lgkmcnt(7)")
        e(f"    v_lshl_add_u32 v{20+s}, v{32+s}, 2, v{20+s}")
        e(f"    ds_write2st64_b32 v{20+s}, v{48+s}, v{56+s} offset0:0 offset1:5")
        e(f"    s_mov_b64 {PEND(s)}, 0")
    e("WDONE:")
    e("    s_mov_b64 exec, -1")
    e("    v_cmp_gt_u32 vcc, s76, v2")
    e("    v_lshl_add_u32 v2, v2, 2, s77")
    e(f"    v_mov_b32 v3, {PADV}")
    e(f"    v_mov_b32 v4, {MORE}")
    e("    s_mov_b64 exec, vcc")
    e("    ds_write2st64_b32 v2, v3, v3 offset0:0 offset1:5")
    e("    s_mov_b64 exec, -1")
    e("    s_waitcnt lgkmcnt(0)")
    e("    s_barrier")
    stamp2("b_bar2", "")
    e("    ds_read_b32 v8, v4")

    def next_k():
        e("    s_mov_b32 s8, 1")
        e("    s_cmp_gt_i32 s9, s10")
        e("    s_addc_u32 s8, s8, 0")
        e("    s_lshl_b32 s11, s10, 1")
        e("    s_cmp_gt_i32 s9, s11")
        e("    s_addc_u32 s8, s8, 0")
        e("    s_add_i32 s11, s11, s10")
        e("    s_cmp_gt_i32 s9, s11")
        e("    s_addc_u32 s8, s8, 0")
        e("    s_min_i32 s8, s8, s9")
        e("    s_sub_i32 s9, s9, s8")
        e("    s_sub_i32 s10, s10, 1")
        e("    s_lshl_b32 s11, s8, 5")

    def read_recs(adv):
        e("    ds_read2_b32 v[100:101], v93 offset0:0 offset1:8")
        e("    ds_read2_b32 v[102:103], v93 offset0:16 offset1:24")
        e("    ds_read_b128 v[104:107], v94")
        e("    ds_read_b128 v[108:111], v94 offset:16")
        e(f"    v_add_u32 v93, {adv}, v93")
        e(f"    v_add_u32 v94, {adv}, v94")

    def dma(i):
        e(f"    buffer_load_dwordx4 v{100+i}, {R(S_GAT)}, 0 offen offset:{1024*i} lds")

    def addr():
        for i in range(4):
            e(f"    v_add_u32 v{100+i}, v{100+i}, v{80+i}")

    def build_b(w):
        for j in range(8):
            e(f"    v_bfe_i32 v{32+j}, v{104+j}, v92, {w}")
        for j in range(8):
            e(f"    v_and_b32 v{32+j}, v{32+j}, v{104+j}")
        for j in range(4):
            e(f"    v_perm_b32 v{112+j}, v{32+2*j+1}, v{32+2*j}, s1")

    def mfmas():
        for t in range(4):
            e(f"    v_mfma_f32_16x16x32_bf16 v[{64+4*t}:{67+4*t}], v[{12+4*t}:{15+4*t}], v[112:115], v[{64+4*t}:{67+4*t}]")

    e("MAIN:")
    if PRIO == 1:
        for g in range(1, 4):
            e(f"    s_cmp_lt_u32 s3, {4*g}")
            e("    s_cbranch_scc1 PRIOD")
            e(f"    s_setprio {g}")
        e("PRIOD:")
    e("    s_cmp_eq_u32 s74, 0")
    e("    s_cbranch_scc1 MAINDONE")
    e("    v_mov_b32 v93, v88")
    e("    v_mov_b32 v94, v89")
    read_recs(128)
    e("    s_add_u32 s9, s74, 7")
    e("    s_lshr_b32 s9, s9, 3")
    e("    s_sub_i32 s9, s9, 4")
    e("    s_max_i32 s9, s9, 0")
    e(f"    s_mov_b32 s10, {NB-1}")
    e("    s_waitcnt lgkmcnt(2)")
    addr()
    for i in range(4):
        dma(i)
    next_k()
    e("    s_waitcnt lgkmcnt(0)")
    build_b("1")
    read_recs("s11")
    e("LOOP:")
    e("    v_cmp_gt_u32 vcc, s8, v11")
    if PRIO == 3:
        e("    s_setprio 3")
    e("    s_waitcnt vmcnt(0)")
    for t in range(4):
        for u in range(2):
            e(f"    ds_read_b64_tr_b16 v[{12+4*t+2*u}:{13+4*t+2*u}], v{84+t} offset:{512*u}")
    e("    s_cmp_eq_u32 s8, 0")
    e("    v_cndmask_b32 v91, 0, v1, vcc")
    e("    s_waitcnt lgkmcnt(8)")
    addr()
    e("    s_waitcnt lgkmcnt(0)")
    e("    s_cbranch_scc1 LAST")
    dma(0)
    e("    s_cmp_eq_u32 s8, 1")
    e("    s_cbranch_scc1 DMAD")
    dma(1)
    e("    s_cmp_eq_u32 s8, 2")
    e("    s_cbranch_scc1 DMAD")
    dma(2)
    e("    s_cmp_eq_u32 s8, 3")
    e("    s_cbranch_scc1 DMAD")
    dma(3)
    e("DMAD:")
    if PRIO == 2:
        e("    s_lshr_b32 s11, s3, 2")
        e("    s_add_u32 s11, s11, s10")
        e("    s_and_b32 s11, s11, 3")
        e("    s_setprio 0")
        for g in range(1, 4):
            e(f"    s_cmp_lt_u32 s11, {g}")
            e("    s_cbranch_scc1 PRIOD")
            e(f"    s_setprio {g}")
        e("PRIOD:")
    if PRIO == 3:
        e("    s_setprio 0")
    mfmas()
    next_k()
    build_b("v91")
    read_recs("s11")
    e("    s_branch LOOP")
    e("LAST:")
    mfmas()
    e("MAINDONE:")
    e("    s_waitcnt lgkmcnt(0)")
    e("    v_readfirstlane_b32 s75, v8")
    e("    s_cmp_eq_u32 s75, 0")
    e("    s_cbranch_scc1 EPI")
    e("    s_or_b32 s71, s71, 2")
    e("    s_barrier")
    zero_b_counters((WL - CNTB) // 4)
    e("    s_waitcnt lgkmcnt(0)")
    e("    s_barrier")
    for s in range(7):
        e(f"    s_mov_b64 exec, {PEND(s)}")
        e(f"    ds_add_rtn_u32 v{32+s}, v{40+s}, v1")
    e("EXTRA:")
    for m, r in (("s[4:5]", 116), ("s[6:7]", 118)):
        e(f"    s_andn2_b64 exec, {m}, {PEND(7)}")
        e(f"    s_andn2_b64 {m}, {m}, exec")
        e(f"    s_or_b64 {PEND(7)}, {PEND(7)}, exec")
        decode_full(r, r + 1, 7)
    e("    s_mov_b64 exec, -1")
    e("    s_or_b64 s[76:77], s[4:5], s[6:7]")
    e("    s_cbranch_scc1 OVFULL")
    e("    s_mov_b32 s75, 0")
    e("OVL:")
    e("    s_cmp_lt_u32 s68, s69")
    e("    s_cbranch_scc1 OVLOAD")
    e("    s_cmp_eq_u64 s[72:73], 0")
    e("    s_cbranch_scc1 OVDONE")
    e("    s_ff1_i32_b64 s76, s[72:73]")
    e("    s_bitset0_b64 s[72:73], s76")
    e("    s_or_b32 s77, s76, 7")
    e("    v_readlane_b32 s68, v116, s77")
    e("    v_readlane_b32 s69, v118, s77")
    e("    s_bitcmp1_b32 s76, 0")
    e("    s_cselect_b32 s69, s69, s68")
    e(f"    s_min_u32 s69, s69, {4*NTHR}")
    e("    s_and_b32 s77, s76, 1")
    e("    s_lshl_b32 s77, s77, 7")
    e("    s_lshr_b32 s76, s76, 3")
    e("    s_add_u32 s76, s76, s77")
    e("    s_lshl_b32 s77, s3, 3")
    e("    s_add_u32 s76, s76, s77")
    e("    s_lshl_b32 s70, s76, 15")
    e(f"    s_mov_b32 s68, {NINL}")
    e("OVLOAD:")
    e("    v_add_u32 v4, s75, v0")
    e("    v_and_b32 v4, 63, v4")
    e("    v_add_u32 v4, s68, v4")
    e("    v_lshlrev_b32 v5, 3, v4")
    e(f"    buffer_load_dwordx2 v[28:29], v5, {R(S_OVF)}, s70 offen {SC}")
    e("    s_waitcnt vmcnt(0)")
    e(f"    v_mul_u32_u24 v30, {TM}, v29")
    e("    v_lshrrev_b32 v31, 20, v30")
    e("    v_cmp_gt_u32 vcc, s69, v4")
    e("    v_cmp_eq_u32 s[76:77], s2, v31")
    e("    s_and_b64 vcc, s[76:77], vcc")
    e(f"    s_and_b64 s[76:77], vcc, {PEND(7)}")
    e("    s_cbranch_scc1 OVFULL")
    e(f"    s_or_b64 {PEND(7)}, {PEND(7)}, vcc")
    e("    s_add_u32 s68, s68, 64")
    e("    s_add_u32 s75, s75, 16")
    e("    s_mov_b64 exec, vcc")
    decode_full(28, 29, 7)
    e("    s_mov_b64 exec, -1")
    e("    s_branch OVL")
    e("OVFULL:")
    e(f"    v_mov_b32 v2, {MORE}")
    e("    ds_write_b32 v2, v1")
    e("OVDONE:")
    e(f"    s_mov_b64 exec, {PEND(7)}")
    e("    ds_add_rtn_u32 v39, v47, v1")
    e("    s_mov_b64 exec, -1")
    e("    s_branch CDONE")
    for i in range(2):
        base = 12 + 4 * i
        e(f"C_RETRY{i}:")
        if TORN:
            for h in ("vcc_lo", "vcc_hi"):
                for bb in range(4):
                    n = len(L)
                    e(f"    s_bfe_u32 s76, {h}, {(8 << 16) | (8*bb)}")
                    e("    s_cmp_eq_u32 s76, 0")
                    e(f"    s_cbranch_scc1 TN{n}")
                    e("    s_cmp_eq_u32 s76, 0xff")
                    e(f"    s_cbranch_scc1 TN{n}")
                    e("    s_add_u32 s16, s16, 1")
                    e("    s_cmp_eq_u32 s76, 0x0f")
                    e(f"    s_cbranch_scc1 TN{n}")
                    e("    s_cmp_eq_u32 s76, 0xf0")
                    e(f"    s_cbranch_scc1 TN{n}")
                    e("    s_add_u32 s17, s17, 1")
                    e(f"TN{n}:")
            e("    s_add_u32 s16, s16, 0x10000")
        e(f"    buffer_load_dwordx4 v[{base}:{base+3}], v9, {R(S_WS)}, s{68+i} offen {LD_SL}")
        e("    s_sub_u32 s75, s75, 1")
        e("    s_cmp_eq_u32 s75, 0")
        e("    s_waitcnt vmcnt(0)")
        e(f"    s_cbranch_scc0 C_CHK{i}")
        e("    s_mov_b32 s75, 1000")
        e(f"    s_branch C_OK{i}")
    e("C_RETRY2:")
    e(f"    buffer_load_dwordx2 v[116:117], v31, {R(S_WS)}, s70 offen {SC}")
    e(f"    buffer_load_dwordx2 v[118:119], v31, {R(S_WS)}, s74 offen {SC}")
    e("    s_sub_u32 s75, s75, 1")
    e("    s_cmp_eq_u32 s75, 0")
    e("    s_waitcnt vmcnt(0)")
    e("    s_cbranch_scc0 C_CHK2")
    e("    s_branch C_OK2")
    e("SLOWW:")
    e("    s_waitcnt lgkmcnt(0)")
    for s in range(8):
        e(f"    s_mov_b64 exec, {PEND(s)}")
        e(f"    v_lshl_add_u32 v{20+s}, v{32+s}, 2, v{20+s}")
        e(f"    v_subrev_u32 v3, s0, v{40+s}")
        e("    v_lshrrev_b32 v3, 6, v3")
        e(f"    v_mul_u32_u24 v3, {TSTR}, v3")
        e(f"    v_add_u32 v3, {LISTS + CAPT*4}, v3")
        e(f"    v_cmp_lt_u32 vcc, v{20+s}, v3")
        e(f"    s_andn2_b64 {PEND(s)}, exec, vcc")
        e("    s_mov_b64 exec, vcc")
        e(f"    ds_write2st64_b32 v{20+s}, v{48+s}, v{56+s} offset0:0 offset1:5")
    e("    s_mov_b64 exec, -1")
    e(f"    v_mov_b32 v3, {MORE}")
    e("    ds_write_b32 v3, v1")
    e("    s_branch WDONE")

    e("EPI:")
    if PRIO:
        e("    s_setprio 0")
    stamp2("h1_done", "h2_done")
    e("    s_lshl_b32 s76, s2, 4")
    e("    s_add_u32 s76, s76, s3")
    e("    s_mul_i32 s77, s76, 50006")
    e("    s_lshr_b32 s77, s77, 12")
    e("    v_subrev_u32 v2, s77, v92")
    e("    v_and_b32 v2, 15, v2")
    e("    v_add_u32 v2, s77, v2")
    e(f"    v_mul_u32_u24 v3, {TM}, v2")
    e("    v_lshrrev_b32 v3, 16, v3")
    e("    v_cmp_eq_u32 s[52:53], s76, v3")
    e("    v_lshlrev_b32 v2, 7, v2")
    e("    v_lshl_add_u32 v2, v11, 4, v2")
    e("    v_and_b32 v5, 1, v11")
    e("    v_cmp_eq_u32 s[54:55], 1, v5")
    for t in range(4):
        e(f"    v_cvt_pk_bf16_f32 v{12+2*t}, v{64+4*t}, v{65+4*t}")
        e(f"    v_cvt_pk_bf16_f32 v{13+2*t}, v{66+4*t}, v{67+4*t}")
    e("    s_mov_b64 exec, s[54:55]")
    e("    v_swap_b32 v12, v14")
    e("    v_swap_b32 v13, v15")
    e("    v_swap_b32 v16, v18")
    e("    v_swap_b32 v17, v19")
    e("    s_bitcmp1_b32 s71, 0")
    e("    s_cbranch_scc1 FINAL")
    e("    s_mov_b64 exec, s[52:53]")
    e(f"    buffer_store_dwordx4 v[12:15], v2, {R(S_STO)}, 0 offen {SCH}")
    e(f"    buffer_store_dwordx4 v[16:19], v2, {R(S_STO)}, 0 offen offset:64 {SCH}")
    e("    s_mov_b64 exec, -1")
    stamp("h1_st")
    srd(S_GAT, 18, 19, TABBYTES + 3072, WS_H1 - 3072)
    e("    s_or_b32 s71, s71, 1")
    zero_b_counters(256)
    for i in range(16):
        e(f"    v_mov_b32 v{64+i}, 0")
    e("    v_lshlrev_b32 v9, 4, v0")
    e("    v_lshlrev_b32 v31, 3, v0")
    e("    s_waitcnt lgkmcnt(0)")
    grid_barrier("g2", 1, 0, 0)
    e("    v_mov_b32 v8, 0")
    e("    s_bitcmp0_b32 s71, 1")
    e("    s_cbranch_scc1 MAIN")
    e("    s_branch COLLECT")
    e("FINAL:")
    e("    s_mov_b64 exec, -1")
    srd(S_STO, 14, 15, TABBYTES)
    e("    v_bfe_u32 v7, v0, 2, 2")
    e("    v_lshl_add_u32 v6, v11, 3, v7")
    e("    v_lshlrev_b32 v6, 7, v6")
    e("    v_and_b32 v7, 3, v0")
    e("    v_lshl_add_u32 v6, v7, 4, v6")
    e(f"    v_add_u32 v6, {WL}, v6")
    for s in range(2):
        for t in range(4):
            for u in range(2):
                off = (32 * s + 4 * u) * 128 + 64 * (t >> 1) + 8 * (t & 1)
                r = 80 + (s * 4 + t) * 4 + 2 * u
                e(f"    ds_read_b64_tr_b16 v[{r}:{r+1}], v6 offset:{off}")
    e("    s_waitcnt lgkmcnt(8)")
    for t in range(4):
        e(f"    v_mfma_f32_16x16x32_bf16 v[{64+4*t}:{67+4*t}], v[{80+4*t}:{83+4*t}], v[12:15], 0")
    e("    s_waitcnt lgkmcnt(0)")
    for t in range(4):
        e(f"    v_mfma_f32_16x16x32_bf16 v[{64+4*t}:{67+4*t}], v[{96+4*t}:{99+4*t}], v[16:19], v[{64+4*t}:{67+4*t}]")
    e("    s_nop 7")
    e("    s_nop 1")
    for t in range(4):
        e(f"    v_cvt_pk_bf16_f32 v{12+2*t}, v{64+4*t}, v{65+4*t}")
        e(f"    v_cvt_pk_bf16_f32 v{13+2*t}, v{66+4*t}, v{67+4*t}")
    e("    s_mov_b64 exec, s[52:53]")
    e(f"    buffer_store_dwordx4 v[12:15], v2, {R(S_STO)}, 0 offen {ST_OUT}")
    e(f"    buffer_store_dwordx4 v[16:19], v2, {R(S_STO)}, 0 offen offset:64 {ST_OUT}")
    stamp_out()
    e("END:")
    e("    s_endpgm")


SPIN = OPT.get("spin")
if SPIN:
    e(f"; @launch kernel={NAME} grid=(256,1,1) block=(1024,1,1) lds={LDS}")
    e("; @launch kernel=sgc_spin_kernel grid=(1,1,1) block=(64,1,1) lds=0")
else:
    e(f"; @launch grid=(256,1,1) block=(1024,1,1) lds={LDS}")
e('.amdgcn_target "amdgcn-amd-amdhsa--gfx950"')
e(".text")
body()
if SPIN:
    na, nb_, mode, mult = SPIN.split(",")
    ia, ib, mode, mult = STL.index(na), STL.index(nb_), int(mode), int(mult)
    e(".globl sgc_spin_kernel")
    e(".p2align 8")
    e(".type sgc_spin_kernel,@function")
    e("sgc_spin_kernel:")
    e("    s_memrealtime s[30:31]")
    e("    s_cmp_ge_u32 s2, 1")
    e("    s_cbranch_scc1 SP_END")
    e("    s_load_dwordx8 s[12:19], s[0:1], 32")
    e("    v_lshlrev_b32 v1, 6, v0")
    e("    v_mov_b32 v4, 0x7fffffff")
    e("    v_mov_b32 v5, %s" % ("0x80000000" if mode == 0 else "0x7fffffff" if mode == 1 else "0"))
    e("    s_waitcnt lgkmcnt(0)")
    srd(20, 18, 19, 1 << 20, WS_STAMP)
    e("    s_mov_b32 s24, 0")
    e("SP_RD:")
    e(f"    buffer_load_dword v2, v1, s[20:23], s24 offen offset:{4*ia}")
    e(f"    buffer_load_dword v3, v1, s[20:23], s24 offen offset:{4*ib}")
    e("    s_add_u32 s24, s24, 4096")
    e("    s_cmp_lt_u32 s24, 0x40000")
    e("    s_waitcnt vmcnt(0)")
    e("    v_subrev_u32 v2, s30, v2")
    e("    v_subrev_u32 v3, s30, v3")
    e("    v_min_i32 v4, v4, v2")
    e("    %s v5, v5, v3" % ("v_max_i32" if mode == 0 else "v_min_i32" if mode == 1 else "v_add_u32"))
    e("    s_cbranch_scc1 SP_RD")
    e("    s_mov_b32 s26, 0x7fffffff")
    e("    s_mov_b32 s27, %s" % ("0x80000000" if mode == 0 else "0x7fffffff" if mode == 1 else "0"))
    e("    s_nop 1")
    for l in range(64):
        e(f"    v_readlane_b32 s28, v4, {l}")
        e(f"    v_readlane_b32 s29, v5, {l}")
        e("    s_min_i32 s26, s26, s28")
        e("    %s s27, s27, s29" % ("s_max_i32" if mode == 0 else "s_min_i32" if mode == 1 else "s_add_u32"))
    if mode == 2:
        e("    s_ashr_i32 s27, s27, 12")
    if mode == 3:
        e("    s_mov_b32 s27, 0")
    e("    s_sub_i32 s26, s27, s26")
    e("    s_max_i32 s26, s26, 0")
    e("    s_min_i32 s26, s26, 20000")
    e(f"    s_mul_i32 s26, s26, {mult}")
    e("    s_add_u32 s26, s26, 10000")
    e("SP_LOOP:")
    e("    s_memrealtime s[28:29]")
    e("    s_waitcnt lgkmcnt(0)")
    e("    s_sub_u32 s28, s28, s30")
    e("    s_cmp_lt_u32 s28, s26")
    e("    s_cbranch_scc1 SP_LOOP")
    e("SP_END:")
    e("    s_endpgm")
e('.section .rodata,"a"')
if SPIN:
    e(".p2align 6")
    e(".amdhsa_kernel sgc_spin_kernel")
    e("  .amdhsa_next_free_vgpr 8")
    e("  .amdhsa_next_free_sgpr 40")
    e("  .amdhsa_accum_offset 8")
    e("  .amdhsa_group_segment_fixed_size 0")
    e("  .amdhsa_kernarg_size 64")
    e("  .amdhsa_user_sgpr_count 2")
    e("  .amdhsa_user_sgpr_kernarg_segment_ptr 1")
    e("  .amdhsa_system_sgpr_workgroup_id_x 1")
    e(".end_amdhsa_kernel")
e(".p2align 6")
e(f".amdhsa_kernel {NAME}")
e("  .amdhsa_next_free_vgpr 128")
e("  .amdhsa_next_free_sgpr 102")
e("  .amdhsa_accum_offset 128")
e("  .amdhsa_group_segment_fixed_size 0")
e("  .amdhsa_kernarg_size 64")
e("  .amdhsa_user_sgpr_count 2")
e("  .amdhsa_user_sgpr_kernarg_segment_ptr 1")
e("  .amdhsa_system_sgpr_workgroup_id_x 1")
e(".end_amdhsa_kernel")
open(OUT, "w").write("\n".join(L) + "\n")
```

```python
import sys

OUT = [a for a in sys.argv[1:] if not a.startswith("--")][0]
OPT = dict(a[2:].split("=") for a in sys.argv[1:] if a.startswith("--") and "=" in a)
NAME = "standalone__spectral_conv_sgc__graph_kernel"
DEFST = "start,a_bar1,a_bar2,g1_exit,b_lines,b_bar1,b_bar2,h1_done,h1_st,g2_exit,h2_done,end"
STL = OPT.get("st", DEFST if "--diag" in sys.argv else "").split(",")
STL = [s for s in STL if s]
DIAG = len(STL) > 0


def I(name, dflt):
    return int(OPT.get(name, dflt))


N = 50000
E = 850000
ET = 800000
TM = 5368
CH = 3128
NMAIN = CH // 4
TCH = 196
NTHR = NMAIN + TCH // 4
SLOTCAP = 24
NINL = 7
WS_SLOTS = 0
WS_OVT = 8 << 20
WS_FLAG = WS_OVT + 65536
WS_H1 = WS_OVT + (1 << 20)
WS_OVF = 16 << 20
OVF_STRIDE = 32768
WS_STAMP = 32 << 20
TABBYTES = N * 128
PADV = 0x40000000

K1_LS = 132
K1_CNT = 256 * K1_LS
K1_OVC = 1024
K1_OVT = K1_CNT + 4096
K1_NON = K1_OVT + 64
LISTS = 65536
CAPT = 320
TSTR = CAPT * 8
CNTB = LISTS + 16 * TSTR + 256
BASES = CNTB + 1024
MORE = BASES + 1024
WL = MORE + 64
LDS = WL + 8192

SC = OPT.get("sc", "sc1")
SCF = OPT.get("scf", "sc1")
SCH = OPT.get("sch", SC)
LD_IN = OPT.get("ldin", "")
LD_SL = OPT.get("ldsl", SC)
ST_OUT = OPT.get("stout", "")
SPINMAX = 20000000
NREP = I("nrep", 8)
LSTR = I("lstr", 128)
NB = I("nb", 8)
TOUCH = I("touch", 1)
PFS = I("pfstep", 80)
PF = [I("pf0", 0), I("pf1", 0), I("pf2", 0), I("pf3", 0)]
PF4 = I("pf4", 0)
PRIO = I("prio", 0)
ACKW = I("ackw", 1)
TORN = I("torn", 0)
PFH = I("pfh", 0)

L = []


def e(s=""):
    L.append(s)


def srd(d, lo, hi, nbytes, off=0):
    if off == 0:
        e(f"    s_mov_b32 s{d}, s{lo}")
        e(f"    s_and_b32 s{d+1}, s{hi}, 0xffff")
    elif off > 0:
        e(f"    s_add_u32 s{d}, s{lo}, {off}")
        e(f"    s_addc_u32 s{d+1}, s{hi}, 0")
        e(f"    s_and_b32 s{d+1}, s{d+1}, 0xffff")
    else:
        e(f"    s_sub_u32 s{d}, s{lo}, {-off}")
        e(f"    s_subb_u32 s{d+1}, s{hi}, 0")
        e(f"    s_and_b32 s{d+1}, s{d+1}, 0xffff")
    e(f"    s_mov_b32 s{d+2}, {nbytes}")
    e(f"    s_mov_b32 s{d+3}, 0x20000")


S_SRC, S_DST, S_NRM, S_WS, S_OVF, S_GAT, S_STO, S_DBG = 20, 24, 28, 32, 36, 40, 44, 48
WSBYTES = WS_H1


def R(d):
    return f"s[{d}:{d+3}]"


STAMP_BASE = 78


def stamp(name):
    if "c_" + name in STL:
        i = STL.index("c_" + name)
        e(f"    s_memtime s[{STAMP_BASE+2*i}:{STAMP_BASE+2*i+1}]")
    if name in STL:
        i = STL.index(name)
        e(f"    s_memrealtime s[{STAMP_BASE+2*i}:{STAMP_BASE+2*i+1}]")


def stamp2(n1, n2):
    if n1 in STL or n2 in STL:
        n = len(L)
        e("    s_bitcmp1_b32 s71, 0")
        e(f"    s_cbranch_scc1 ST{n}_B")
        stamp(n1)
        e(f"    s_branch ST{n}_C")
        e(f"ST{n}_B:")
        stamp(n2)
        e(f"ST{n}_C:")


def stamp_out():
    if not DIAG:
        return
    e("    s_waitcnt vmcnt(0) lgkmcnt(0)")
    stamp("end")
    e("    s_waitcnt lgkmcnt(0)")
    e("    s_mov_b64 exec, 1")
    srd(20, 18, 19, 1 << 20, WS_STAMP - (I("wsoff", 0) << 20))
    e("    s_lshl_b32 s76, s2, 4")
    e("    s_add_u32 s76, s76, s3")
    e("    s_lshl_b32 s76, s76, 6")
    e("    v_mov_b32 v2, s76")
    for i in range(len(STL)):
        e(f"    v_mov_b32 v3, s{STAMP_BASE+2*i}")
        e(f"    buffer_store_dword v3, v2, s[20:23], 0 offen offset:{4*i}")
    e("    s_getreg_b32 s76, hwreg(HW_REG_XCC_ID)")
    e("    v_mov_b32 v3, s76")
    e("    buffer_store_dword v3, v2, s[20:23], 0 offen offset:56")
    e("    v_mov_b32 v3, s16")
    e("    buffer_store_dword v3, v2, s[20:23], 0 offen offset:60")
    e("    v_mov_b32 v3, s17")
    e("    buffer_store_dword v3, v2, s[20:23], 0 offen offset:52")


def PEND(s):
    return f"s[{52+2*s}:{53+2*s}]"


pf_base = [0]


def prefetch(cnt, nwaves=16, wave0=0):
    if cnt == 0:
        return 0
    nops = (cnt + 63) // 64
    e("    s_lshr_b32 s76, s2, 3")
    e(f"    s_mul_i32 s76, s76, {nwaves}")
    e("    s_add_u32 s76, s76, s3")
    e(f"    s_mul_i32 s76, s76, {cnt}")
    e(f"    s_add_u32 s76, s76, {pf_base[0] - wave0*cnt}")
    for o in range(nops):
        n = min(64, cnt - 64 * o)
        e("    v_and_b32 v2, 63, v0")
        e("    v_add_u32 v2, s76, v2")
        e("    v_lshrrev_b32 v3, 5, v2")
        e("    v_and_b32 v2, 31, v2")
        e(f"    v_mul_u32_u24 v3, {PFS}, v3")
        e("    v_add_lshl_u32 v2, v2, v3, 7")
        if n < 64:
            e(f"    s_mov_b32 exec_lo, {((1 << n) - 1) & 0xffffffff}")
            e(f"    s_mov_b32 exec_hi, {((1 << n) - 1) >> 32}")
        e(f"    buffer_load_dword v126, v2, {R(S_GAT)}, 0 offen offset:3072")
        if n < 64:
            e("    s_mov_b64 exec, -1")
        if o + 1 < nops:
            e("    s_add_u32 s76, s76, 64")
    pf_base[0] += 32 * nwaves * cnt
    return nops


def grid_barrier(p, idx, pfa, pfb):
    rstr = 64 * LSTR
    fb = WS_FLAG + idx * NREP * rstr
    n = prefetch(pfa)
    e(f"    s_waitcnt vmcnt({n})")
    stamp(p + "_ack")
    e("    s_barrier")
    if idx == 0:
        e("    s_cmp_lt_u32 s3, 13")
        e("    s_cbranch_scc1 G1_NOW")
        e(f"    v_subrev_u32 v2, {13*64}, v0")
        e("    v_lshlrev_b32 v2, 4, v2")
        e(f"    v_cmp_gt_u32 vcc, 2048, v2")
        e(f"    v_add_u32 v2, {WL}, v2")
        e("    ds_write_b128 v2, v[100:103]")
        e("    ds_write_b128 v2, v[104:107] offset:3072")
        e("    s_and_saveexec_b64 s[76:77], vcc")
        e("    ds_write_b128 v2, v[108:111] offset:6144")
        e("    s_mov_b64 exec, -1")
        e("G1_NOW:")
    e("    s_cmp_lg_u32 s3, 0")
    e(f"    s_cbranch_scc1 {p}_WAIT")
    stamp(p + "_arr")
    if idx == 0:
        e(f"    s_mov_b32 s76, {SPINMAX}")
        e(f"{p}_NONCE:")
        e("    v_cmp_ne_u32 vcc, 0, v125")
        e(f"    s_cbranch_vccnz {p}_GOTN")
        e("    v_mov_b32 v2, 0")
        e(f"    buffer_load_dword v125, v2, {R(S_DBG)}, 0 offen {SCF}")
        e("    s_sub_u32 s76, s76, 1")
        e("    s_cmp_eq_u32 s76, 0")
        e("    s_waitcnt vmcnt(0)")
        e(f"    s_cbranch_scc0 {p}_NONCE")
        e(f"{p}_GOTN:")
    e("    s_lshr_b32 s76, s2, 2")
    e(f"    s_mul_i32 s76, s76, {LSTR}")
    e("    s_and_b32 s77, s2, 3")
    e("    s_lshl_b32 s77, s77, 2")
    e("    s_add_u32 s76, s76, s77")
    e(f"    s_add_u32 s76, s76, {fb}")
    e(f"    v_mul_u32_u24 v2, {rstr}, v0")
    e(f"    s_mov_b32 exec_lo, {((1 << NREP) - 1) & 0xffffffff}")
    e(f"    s_mov_b32 exec_hi, {((1 << NREP) - 1) >> 32}")
    e(f"    buffer_store_dword v125, v2, {R(S_WS)}, s76 offen {SCF}")
    e("    s_mov_b64 exec, -1")
    prefetch(pfb, 1, 0)
    e("    s_getreg_b32 s77, hwreg(HW_REG_XCC_ID, 0, 4)")
    e(f"    s_and_b32 s77, s77, {NREP-1}")
    e(f"    s_mul_i32 s77, s77, {rstr}")
    e(f"    s_add_u32 s77, s77, {fb}")
    e(f"    v_mul_u32_u24 v8, {LSTR}, v0")
    e(f"    s_mov_b32 s76, {SPINMAX}")
    e(f"{p}_POLL:")
    e(f"    buffer_load_dwordx4 v[4:7], v8, {R(S_WS)}, s77 offen {SCF}")
    e("    s_sub_u32 s76, s76, 1")
    e("    s_cmp_eq_u32 s76, 0")
    e("    s_waitcnt vmcnt(0)")
    e(f"    s_cbranch_scc1 {p}_WAIT")
    e("    v_xor_b32 v4, v4, v125")
    e("    v_xor_b32 v5, v5, v125")
    e("    v_xor_b32 v6, v6, v125")
    e("    v_xor_b32 v7, v7, v125")
    e("    v_or3_b32 v4, v4, v5, v6")
    e("    v_or_b32 v4, v4, v7")
    e("    v_cmp_ne_u32 vcc, 0, v4")
    e(f"    s_cbranch_vccnz {p}_POLL")
    e(f"{p}_WAIT:")
    e("    s_barrier")
    stamp(p + "_exit")


def decode_key(rec, meta, k, s):
    ca = 40 + s
    e(f"    v_bfe_u32 v2, v{rec}, 12, 4")
    e(f"    v_and_b32_sdwa v3, v{meta}, v99 dst_sel:DWORD dst_unused:UNUSED_PAD src0_sel:BYTE_{k} src1_sel:DWORD")
    e(f"    v_or_b32 v2, v2, v3")
    e(f"    v_lshl_add_u32 v{ca}, v2, 2, s0")


def decode_data(rec, meta, k, s):
    d0, d1 = 48 + s, 56 + s
    e(f"    v_lshlrev_b32_sdwa v{d0}, v124, v{rec} dst_sel:DWORD dst_unused:UNUSED_PAD src0_sel:DWORD src1_sel:WORD_0")
    if OPT.get("srcmask"):
        e(f"    v_and_b32 v{d0}, {OPT['srcmask']}, v{d0}")
    e(f"    v_mov_b32 v{d1}, v{rec}")
    e(f"    v_lshlrev_b16_sdwa v{d1}, v{meta}, v1 dst_sel:WORD_0 dst_unused:UNUSED_PRESERVE src0_sel:BYTE_{k} src1_sel:DWORD")


def decode_full(rec, dst, s):
    e(f"    v_mul_u32_u24 v30, {TM}, v{dst}")
    e("    v_lshrrev_b32 v30, 12, v30")
    e(f"    v_bfi_b32 v30, 15, v{dst}, v30")
    decode_key(rec, 30, 0, s)
    decode_data(rec, 30, 0, s)


def zero_b_counters(n):
    e("    v_lshlrev_b32 v2, 2, v0")
    e(f"    v_add_u32 v2, {CNTB}, v2")
    e("    v_mov_b32 v3, 0")
    e(f"    v_cmp_gt_u32 vcc, {n}, v0")
    e("    s_and_saveexec_b64 s[76:77], vcc")
    e("    ds_write_b32 v2, v3")
    e("    s_mov_b64 exec, -1")


def body():
    e(f".globl {NAME}")
    e(".p2align 8")
    e(f".type {NAME},@function")
    e(f"{NAME}:")
    stamp("start")
    e("    s_cmp_ge_u32 s2, 256")
    e("    s_cbranch_scc1 END")
    e("    s_load_dwordx8 s[4:11], s[0:1], 0")
    e("    s_load_dwordx8 s[12:19], s[0:1], 32")
    e("    v_lshlrev_b32 v9, 2, v0")
    e("    v_lshrrev_b32 v3, 6, v0")
    e(f"    s_mul_i32 s68, s2, {CH}")
    e(f"    s_mul_i32 s69, s2, {TCH}")
    e("    v_readfirstlane_b32 s3, v3")
    e(f"    s_add_u32 s69, s69, {ET - 4*NMAIN}")
    e("    v_add_u32 v4, s68, v9")
    e("    v_add_u32 v5, s69, v9")
    e(f"    v_cmp_gt_u32 vcc, {NMAIN}, v0")
    e(f"    v_mov_b32 v7, {E}")
    e(f"    v_mov_b32 v3, {ET}")
    e("    v_cndmask_b32 v6, v5, v4, vcc")
    e("    v_cndmask_b32 v7, v7, v3, vcc")
    e("    v_cmp_lt_u32 s[72:73], v6, v7")
    e(f"    v_cmp_gt_u32 vcc, {NTHR}, v0")
    e("    v_sub_u32 v8, v6, v3")
    e("    s_and_b64 s[72:73], s[72:73], vcc")
    e(f"    v_mov_b32 v3, {1 << 24}")
    e("    v_cndmask_b32 v6, v3, v6, s[72:73]")
    e("    v_lshlrev_b32 v4, 2, v6")
    e("    v_lshlrev_b32 v5, 1, v6")
    e("    s_waitcnt lgkmcnt(0)")
    if I("wsoff", 0):
        e(f"    s_add_u32 s18, s18, {I('wsoff', 0) << 20}")
        e("    s_addc_u32 s19, s19, 0")
    srd(S_DST, 8, 9, E * 4)
    srd(S_SRC, 6, 7, E * 4)
    srd(S_NRM, 10, 11, E * 2)
    e("    s_cmp_ge_u32 s3, 13")
    e("    s_cbranch_scc1 A_HELP")
    e(f"    buffer_load_dwordx4 v[12:15], v4, {R(S_DST)}, 0 offen {LD_IN}")
    e(f"    buffer_load_dwordx4 v[16:19], v4, {R(S_SRC)}, 0 offen {LD_IN}")
    e(f"    buffer_load_dwordx2 v[20:21], v5, {R(S_NRM)}, 0 offen {LD_IN}")
    stamp("a_issue")
    srd(S_DBG, 16, 17, 256)
    e("    s_branch A_BAR")
    e("A_HELP:")
    srd(S_DBG, 16, 17, 256)
    e("    s_cmp_lg_u32 s2, 0")
    e("    s_cbranch_scc1 A_NONONCE")
    e("    s_cmp_lg_u32 s3, 13")
    e("    s_cbranch_scc1 A_NONONCE")
    e("    s_memrealtime s[76:77]")
    e("    v_mov_b32 v2, 0")
    e("    s_waitcnt lgkmcnt(0)")
    e("    s_mul_i32 s68, s76, 0x9e3779b1")
    e("    s_mul_hi_u32 s69, s76, 0x9e3779b1")
    e("    s_xor_b32 s68, s68, s69")
    e("    s_xor_b32 s68, s68, s77")
    e("    s_mul_i32 s69, s68, 0x85ebca6b")
    e("    s_mul_hi_u32 s70, s68, 0x85ebca6b")
    e("    s_xor_b32 s69, s69, s70")
    e("    s_or_b32 s68, s68, 1")
    e("    v_mov_b32 v4, s68")
    e("    v_mov_b32 v5, s69")
    e("    s_mov_b64 exec, 1")
    e(f"    buffer_store_dwordx2 v[4:5], v2, {R(S_DBG)}, 0 offen {SCF}")
    e("    s_mov_b64 exec, -1")
    e("A_NONONCE:")
    srd(S_STO, 12, 13, 8192)
    e(f"    v_subrev_u32 v2, {13*64}, v0")
    e("    v_lshlrev_b32 v2, 4, v2")
    e(f"    buffer_load_dwordx4 v[100:103], v2, {R(S_STO)}, 0 offen")
    e(f"    buffer_load_dwordx4 v[104:107], v2, {R(S_STO)}, 0 offen offset:3072")
    e("    v_add_u32 v3, 6144, v2")
    e(f"    buffer_load_dwordx4 v[108:111], v3, {R(S_STO)}, 0 offen")
    e("A_BAR:")
    e("    v_mov_b32 v2, 0")
    e(f"    ds_write_b32 v9, v2 offset:{K1_CNT}")
    e("    v_mov_b32 v24, -1")
    e("    v_mov_b32 v25, -1")
    e("    v_mov_b32 v26, -1")
    e("    v_mov_b32 v27, -1")
    e("    v_lshlrev_b32 v2, 4, v0")
    e("    ds_write_b128 v2, v[24:27]")
    e("    ds_write_b128 v2, v[24:27] offset:16384")
    e("    s_cmp_lg_u32 s3, 15")
    e("    s_cbranch_scc1 A_INITD")
    e(f"    ds_write_b128 v2, v[24:27] offset:{32768 - 15*1024}")
    e("    v_and_b32 v4, 60, v9")
    e("    v_mov_b32 v2, 0xffff")
    e(f"    ds_write_b32 v4, v2 offset:{K1_OVT}")
    e("A_INITD:")
    e("    s_waitcnt lgkmcnt(0)")
    e("    s_barrier")
    stamp("a_bar1")
    srd(S_WS, 18, 19, WSBYTES, 0)
    srd(S_OVF, 18, 19, 256 * OVF_STRIDE, WS_OVF)
    srd(S_GAT, 4, 5, TABBYTES + 3072, -3072)
    srd(S_STO, 18, 19, TABBYTES, WS_H1)
    e("    v_mov_b32 v1, 1")
    e("    v_mov_b32 v99, 0xf0")
    e("    v_mov_b32 v124, 7")
    e(f"    s_mov_b32 s0, {CNTB}")
    e("    s_mov_b32 s1, 0x07060302")
    e("    s_mov_b32 s71, 0")
    e("    s_mov_b64 s[12:13], 0")
    e("    s_cmp_ge_u32 s3, 4")
    e("    s_cbranch_scc1 A_NOTAIL")
    e("    v_lshrrev_b32 v2, 4, v0")
    e("    s_lshl_b32 s76, s2, 4")
    e("    v_add_u32 v2, s76, v2")
    e("    v_mul_u32_u24 v3, 50006, v2")
    e("    v_lshrrev_b32 v3, 12, v3")
    e("    v_sub_u32 v4, v0, v3")
    e("    v_and_b32 v4, 15, v4")
    e("    v_add_u32 v123, v3, v4")
    e(f"    v_mul_u32_u24 v4, {TM}, v123")
    e("    v_lshrrev_b32 v4, 16, v4")
    e("    v_cmp_eq_u32 s[12:13], v4, v2")
    e(f"    v_cmp_gt_u32 vcc, {N}, v123")
    e(f"    v_add_u32 v4, {ET}, v123")
    e("    v_lshlrev_b32 v5, 2, v4")
    e("    v_lshlrev_b32 v4, 1, v4")
    e("    s_and_b64 s[12:13], s[12:13], vcc")
    e(f"    buffer_load_dword v120, v5, {R(S_DST)}, 0 offen")
    e(f"    buffer_load_dword v121, v5, {R(S_SRC)}, 0 offen")
    e(f"    buffer_load_ushort v122, v4, {R(S_NRM)}, 0 offen")
    e("A_NOTAIL:")
    if TOUCH:
        e("    s_cmp_lg_u32 s3, 14")
        e("    s_cbranch_scc1 A_NOTOUCH")
        e("    v_and_b32 v2, 63, v0")
        e("    v_lshlrev_b32 v2, 18, v2")
        e(f"    buffer_load_dword v126, v2, {R(S_WS)}, 0 offen sc1")
        e(f"    buffer_load_dword v126, v2, {R(S_STO)}, 0 offen sc1")
        e(f"    buffer_load_dword v126, v2, {R(S_GAT)}, 0 offen offset:3072")
        e("A_NOTOUCH:")
    if PF[0]:
        e("    s_cmp_lg_u32 s3, 15")
        e("    s_cbranch_scc1 A_NOPF")
        prefetch(PF[0], 1, 15)
        e("A_NOPF:")
    zero_b_counters((WL - CNTB) // 4)
    e("    v_and_b32 v10, 7, v0")
    e("    v_and_b32 v2, 63, v0")
    e("    v_bfe_u32 v3, v2, 4, 1")
    e("    v_xor_b32 v3, v3, v10")
    e("    v_lshlrev_b32 v83, 4, v3")
    e("    v_add_u32 v80, 3072, v83")
    e("    v_add_u32 v82, 1024, v83")
    e("    v_xor_b32 v83, 64, v83")
    e("    v_add_u32 v81, 2048, v83")
    e("    v_and_b32 v92, 15, v0")
    e("    v_lshrrev_b32 v11, 4, v2")
    e("    v_bfe_u32 v6, v2, 2, 2")
    e("    v_and_b32 v7, 3, v2")
    e("    v_lshl_add_u32 v84, v11, 3, v6")
    e("    v_lshlrev_b32 v84, 7, v84")
    e("    v_lshrrev_b32 v6, 1, v6")
    e("    v_and_b32 v4, 1, v11")
    e("    v_lshl_or_b32 v6, v4, 2, v6")
    e("    v_xor_b32 v6, v6, v7")
    e("    v_lshl_add_u32 v84, v6, 4, v84")
    e("    v_and_b32 v4, 1, v7")
    e("    v_lshl_add_u32 v84, v4, 3, v84")
    e("    s_lshl_b32 s76, s3, 12")
    e("    v_add_u32 v84, s76, v84")
    e("    s_mov_b32 m0, s76")
    e("    v_xor_b32 v85, 8, v84")
    e("    v_xor_b32 v86, 64, v84")
    e("    v_xor_b32 v87, 72, v84")
    e(f"    s_mul_i32 s76, s3, {TSTR}")
    e(f"    s_add_u32 s76, s76, {LISTS}")
    e("    v_lshrrev_b32 v4, 3, v2")
    e("    v_lshl_add_u32 v88, v4, 2, s76")
    e(f"    s_add_u32 s76, s76, {CAPT*4}")
    e("    v_lshl_add_u32 v89, v11, 5, s76")
    e("    v_cmp_lt_u32 vcc, 0, v7")
    e("    v_cmp_lt_u32 s[76:77], 1, v7")
    e("    v_lshrrev_b32 v4, 2, v2")
    e("    v_cndmask_b32 v95, 0, -1, vcc")
    e("    v_cndmask_b32 v96, 0, -1, s[76:77]")
    e("    v_cmp_lt_u32 vcc, 2, v7")
    e(f"    v_mul_u32_u24 v98, {TSTR}, v4")
    e(f"    v_add_u32 v98, {LISTS}, v98")
    e("    v_cndmask_b32 v97, 0, -1, vcc")
    e("    v_lshlrev_b32 v90, 4, v2")
    e(f"    v_add_u32 v90, {CNTB}, v90")
    for i in range(16):
        e(f"    v_mov_b32 v{64+i}, 0")
    e("    s_cmp_lt_u32 s3, 13")
    e("    s_cbranch_scc1 A_EDGES")
    e("    s_cmp_lg_u32 s3, 13")
    e("    s_cbranch_scc1 A_OUT")
    e(f"    s_mov_b32 s76, {SPINMAX}")
    e("    v_mov_b32 v2, 0")
    e("A_NPOLL:")
    e(f"    buffer_load_dwordx2 v[4:5], v2, {R(S_DBG)}, 0 offen {SCF}")
    e("    s_sub_u32 s76, s76, 1")
    e("    s_cmp_eq_u32 s76, 0")
    e("    s_waitcnt vmcnt(0)")
    e("    s_cbranch_scc1 A_NGOT")
    e("    v_cmp_eq_u32 vcc, 0, v4")
    e("    s_cbranch_vccnz A_NPOLL")
    e("A_NGOT:")
    e(f"    ds_write_b64 v2, v[4:5] offset:{K1_NON}")
    e("    s_branch A_OUT")
    e("A_EDGES:")
    e("    s_mov_b64 exec, s[72:73]")
    e("    s_mov_b32 s70, 0xffff0000")
    stamp("a_setup")
    e("    s_cmp_ge_u32 s3, 4")
    e("    s_cbranch_scc1 A_W2")
    e("    s_waitcnt vmcnt(5)")
    e("    s_branch A_W5")
    e("A_W2:")
    e("    s_waitcnt vmcnt(2)")
    e("A_W5:")
    stamp("a_dst")
    for k in range(4):
        e(f"    v_mul_u32_u24 v{24+k}, {TM}, v{12+k}")
        e(f"    v_add_u32 v2, {k}, v8")
        e(f"    v_lshrrev_b32 v{28+k}, 20, v{24+k}")
        e(f"    v_cmp_ne_u32 s[{52+2*k}:{53+2*k}], v{12+k}, v2")
        e(f"    v_lshlrev_b32 v{36+k}, 2, v{28+k}")
    for k in range(4):
        e(f"    s_mov_b64 exec, s[{52+2*k}:{53+2*k}]")
        e(f"    ds_add_rtn_u32 v{32+k}, v{36+k}, v1 offset:{K1_CNT}")
    e("    s_mov_b64 exec, s[72:73]")
    for k in range(4):
        e(f"    v_lshrrev_b32 v{24+k}, 12, v{24+k}")
        e(f"    v_mul_u32_u24 v{28+k}, {K1_LS}, v{28+k}")
        e(f"    v_bfi_b32 v{24+k}, 15, v{12+k}, v{24+k}")
    e("    s_mov_b64 s[60:61], 0")
    for k in range(4):
        e(f"    s_mov_b64 exec, s[{52+2*k}:{53+2*k}]")
        e(f"    s_waitcnt lgkmcnt(3)")
        e(f"    v_cmp_gt_u32 vcc, {SLOTCAP}, v{32+k}")
        e(f"    v_and_b32 v2, 7, v{32+k}")
        e(f"    v_lshrrev_b32 v3, 3, v{32+k}")
        e(f"    s_andn2_b64 s[{52+2*k}:{53+2*k}], exec, vcc")
        e(f"    s_or_b64 s[60:61], s[60:61], s[{52+2*k}:{53+2*k}]")
        e(f"    s_mov_b64 s[{4+2*k}:{5+2*k}], vcc")
        e("    s_mov_b64 exec, vcc")
        e(f"    v_lshl_add_u32 v2, v2, 4, v{28+k}")
        e(f"    v_lshl_add_u32 v{36+k}, v3, 2, v2")
        e("    v_add_u32 v5, v3, v2")
        e(f"    ds_write_b8 v5, v{24+k} offset:12")
    e("    s_mov_b64 exec, s[72:73]")
    e("    s_waitcnt vmcnt(0)")
    stamp("a_all")
    for k in range(4):
        if k % 2 == 0:
            e(f"    v_lshl_or_b32 v{16+k}, v{20+k//2}, 16, v{16+k}")
        else:
            e(f"    v_and_or_b32 v{16+k}, v{20+k//2}, s70, v{16+k}")
    for k in range(4):
        e(f"    s_mov_b64 exec, s[{4+2*k}:{5+2*k}]")
        e(f"    ds_write_b32 v{36+k}, v{16+k}")
    e("    s_cmp_eq_u64 s[60:61], 0")
    e("    s_cbranch_scc1 A_OUT")
    e("    s_lshl_b32 s62, s2, 15")
    for k in range(4):
        e(f"    s_mov_b64 exec, s[{52+2*k}:{53+2*k}]")
        e(f"    s_cbranch_execz A_OV{k}")
        e(f"    v_mov_b32 v2, {K1_OVC}")
        e(f"    ds_add_rtn_u32 v3, v2, v1 offset:{K1_CNT}")
        e(f"    v_mov_b32 v4, v{16+k}")
        e(f"    v_mov_b32 v5, v{12+k}")
        e("    s_waitcnt lgkmcnt(0)")
        e(f"    v_cmp_gt_u32 vcc, {NINL}, v3")
        e("    v_lshlrev_b32 v3, 3, v3")
        e("    s_andn2_b64 s[76:77], exec, vcc")
        e("    s_mov_b64 exec, vcc")
        e(f"    ds_write_b64 v3, v[4:5] offset:{K1_OVT}")
        e("    s_mov_b64 exec, s[76:77]")
        e(f"    s_cbranch_execz A_OV{k}")
        e(f"    buffer_store_dwordx2 v[4:5], v3, {R(S_OVF)}, s62 offen {SC}")
        e("    s_waitcnt vmcnt(0)")
        e(f"A_OV{k}:")
    e("A_OUT:")
    e("    s_mov_b64 exec, -1")
    e("    v_lshrrev_b32 v2, 3, v0")
    e(f"    v_mul_u32_u24 v4, {K1_LS}, v2")
    e("    v_lshl_add_u32 v4, v10, 4, v4")
    e(f"    v_add_u32 v5, {128*K1_LS}, v4")
    e("    v_lshlrev_b32 v7, 15, v2")
    e("    v_lshl_add_u32 v7, v10, 4, v7")
    if I("skew", 1):
        e(f"    v_mul_u32_u24 v3, {I('skew', 1)}, v2")
        e("    v_add_u32 v3, s2, v3")
        e("    v_and_b32 v3, 255, v3")
        e("    v_lshl_add_u32 v7, v3, 7, v7")
        e("    s_mov_b32 s62, 0")
        e(f"    s_mov_b32 s63, {128*32768}")
    else:
        e("    s_lshl_b32 s62, s2, 7")
        e(f"    s_add_u32 s63, s62, {128*32768}")
    e("    s_mov_b32 s64, 0xffffff")
    e("    v_and_b32 v6, 6, v10")
    e("    s_waitcnt lgkmcnt(0)")
    stamp("a_pre2")
    e("    s_barrier")
    stamp("a_bar2")
    e(f"    ds_read_u8 v127, v10 offset:{K1_NON}")
    e("    ds_read2_b32 v[12:13], v4 offset0:0 offset1:1")
    e("    ds_read2_b32 v[14:15], v4 offset0:2 offset1:3")
    e("    ds_read2_b32 v[16:17], v5 offset0:0 offset1:1")
    e("    ds_read2_b32 v[18:19], v5 offset0:2 offset1:3")
    e(f"    ds_read_u16 v91, v6 offset:{K1_NON}")
    e("    v_mov_b32 v8, 0")
    e(f"    ds_read_b32 v125, v8 offset:{K1_NON}")
    e("    s_waitcnt lgkmcnt(6)")
    e("    v_lshlrev_b32 v20, 24, v127")
    e("    s_waitcnt lgkmcnt(4)")
    e("    v_and_or_b32 v15, v15, s64, v20")
    e(f"    buffer_store_dwordx4 v[12:15], v7, {R(S_WS)}, s62 offen {SC}")
    e("    s_waitcnt lgkmcnt(2)")
    e("    v_and_or_b32 v19, v19, s64, v20")
    e(f"    buffer_store_dwordx4 v[16:19], v7, {R(S_WS)}, s63 offen {SC}")
    e("    s_cmp_lg_u32 s3, 15")
    e("    s_cbranch_scc1 A_FIN")
    e("    s_mov_b64 exec, 0xff")
    e("    v_lshlrev_b32 v2, 3, v10")
    e(f"    ds_read_b64 v[24:25], v2 offset:{K1_OVT}")
    e(f"    ds_read_b32 v22, v8 offset:{K1_CNT+K1_OVC}")
    e("    v_cmp_eq_u32 vcc, 7, v10")
    e("    s_lshl_b32 s62, s2, 6")
    e(f"    s_add_u32 s62, s62, {WS_OVT}")
    e("    s_waitcnt lgkmcnt(0)")
    e("    v_cndmask_b32 v24, v24, v22, vcc")
    e("    v_lshl_or_b32 v25, v91, 16, v25")
    e(f"    buffer_store_dwordx2 v[24:25], v2, {R(S_WS)}, s62 offen {SC}")
    e("A_FIN:")
    e("    s_mov_b64 exec, -1")
    stamp("a_st")
    e("    s_cmp_ge_u32 s3, 4")
    e("    s_cbranch_scc1 A_TD")
    e("    v_cmp_eq_u32 vcc, v120, v123")
    e("    v_lshl_or_b32 v121, v122, 16, v121")
    e("    s_and_b64 s[12:13], s[12:13], vcc")
    decode_key(121, 0, 0, 6)
    decode_data(121, 0, 0, 6)
    e("A_TD:")
    e("    v_lshlrev_b32 v9, 4, v0")
    e("    v_lshlrev_b32 v31, 3, v0")
    e("    s_waitcnt lgkmcnt(0)")
    e("    v_mov_b32 v120, v91")
    e("    s_cmp_lt_u32 s3, 13")
    e("    s_cbranch_scc1 G1_NOW")
    e(f"    v_subrev_u32 v2, {13*64}, v0")
    e("    v_lshlrev_b32 v2, 4, v2")
    e(f"    v_cmp_gt_u32 vcc, 2048, v2")
    e(f"    v_add_u32 v2, {WL}, v2")
    e("    s_waitcnt vmcnt(0)")
    e("    ds_write_b128 v2, v[100:103]")
    e("    ds_write_b128 v2, v[104:107] offset:3072")
    e("    s_and_saveexec_b64 s[76:77], vcc")
    e("    ds_write_b128 v2, v[108:111] offset:6144")
    e("    s_mov_b64 exec, -1")
    e("G1_NOW:")
    if ACKW:
        e("    s_waitcnt vmcnt(0)")
    stamp("g1_ack")
    if ACKW >= 2:
        e("    s_barrier")
    if ACKW >= 3:
        e(f"    s_mov_b32 s70, {WS_OVT}")
        e(f"    s_mov_b32 s74, {WS_OVT + 8192}")
        e(f"    s_mov_b32 s75, {SPINMAX}")
        e("P_POLL:")
        e(f"    buffer_load_dwordx2 v[116:117], v31, {R(S_WS)}, s70 offen {SC}")
        e(f"    buffer_load_dwordx2 v[118:119], v31, {R(S_WS)}, s74 offen {SC}")
        e("    s_sub_u32 s75, s75, 1")
        e("    s_cmp_eq_u32 s75, 0")
        e("    s_waitcnt vmcnt(0)")
        e("    s_cbranch_scc1 P_DONE")
        e("    v_cmp_ne_u32_sdwa vcc, v117, v120 src0_sel:WORD_1 src1_sel:DWORD")
        e("    v_cmp_ne_u32_sdwa s[76:77], v119, v120 src0_sel:WORD_1 src1_sel:DWORD")
        e("    s_or_b64 vcc, vcc, s[76:77]")
        e("    s_cbranch_scc1 P_POLL")
        e("P_DONE:")
    stamp("g1_exit")
    if TORN:
        e("    s_mov_b32 s16, 0")
        e("    s_mov_b32 s17, 0")

    e("COLLECT:")
    e("    s_lshl_b32 s68, s2, 15")
    e("    s_add_u32 s69, s68, 16384")
    e(f"    s_mov_b32 s70, {WS_OVT}")
    e(f"    s_mov_b32 s74, {WS_OVT + 8192}")
    e(f"    buffer_load_dwordx4 v[12:15], v9, {R(S_WS)}, s68 offen {LD_SL}")
    e(f"    buffer_load_dwordx4 v[16:19], v9, {R(S_WS)}, s69 offen {LD_SL}")
    e(f"    buffer_load_dwordx2 v[116:117], v31, {R(S_WS)}, s70 offen {SC}")
    e(f"    buffer_load_dwordx2 v[118:119], v31, {R(S_WS)}, s74 offen {SC}")
    e(f"    s_mov_b64 {PEND(6)}, s[12:13]")
    e(f"    s_mov_b64 {PEND(7)}, 0")
    e(f"    s_mov_b32 s75, {SPINMAX}")
    e("    s_movk_i32 s11, 0xffff")
    e(f"    s_mov_b64 exec, {PEND(6)}")
    e("    ds_add_rtn_u32 v38, v46, v1")
    e("    s_mov_b64 exec, -1")
    for i in range(2):
        base = 12 + 4 * i
        e(f"    s_waitcnt vmcnt({3-i})")
        e(f"C_CHK{i}:")
        e(f"    v_cmp_ne_u32_sdwa vcc, v{base+3}, v127 src0_sel:BYTE_3 src1_sel:DWORD")
        e(f"    s_cbranch_vccnz C_RETRY{i}")
        e(f"C_OK{i}:")
        if i == 0:
            stamp("b_lines")
        else:
            stamp("b_lines1")
        for k in range(3):
            e(f"    v_cmp_ne_u16 {PEND(3*i+k)}, s11, v{base+k}")
        for k in range(3):
            decode_key(base + k, base + 3, k, 3 * i + k)
        for k in range(3):
            s = 3 * i + k
            e(f"    s_mov_b64 exec, {PEND(s)}")
            e(f"    ds_add_rtn_u32 v{32+s}, v{40+s}, v1")
        e("    s_mov_b64 exec, -1")
        for k in range(3):
            decode_data(base + k, base + 3, k, 3 * i + k)
    e("    s_waitcnt vmcnt(0)")
    e("C_CHK2:")
    e("    v_cmp_ne_u32_sdwa vcc, v117, v120 src0_sel:WORD_1 src1_sel:DWORD")
    e("    v_cmp_ne_u32_sdwa s[76:77], v119, v120 src0_sel:WORD_1 src1_sel:DWORD")
    e("    s_or_b64 vcc, vcc, s[76:77]")
    e("    s_cbranch_scc1 C_RETRY2")
    e("C_OK2:")
    e("    v_and_b32 v117, 0xffff, v117")
    e("    v_and_b32 v119, 0xffff, v119")
    e(f"    v_mul_u32_u24 v2, {TM}, v117")
    e(f"    v_mul_u32_u24 v3, {TM}, v119")
    e("    v_cmp_eq_u32 s[74:75], 7, v10")
    e(f"    v_cmp_lt_u32 s[72:73], {NINL}, v116")
    e(f"    v_cmp_lt_u32 vcc, {NINL}, v118")
    e("    v_lshrrev_b32 v2, 20, v2")
    e("    v_lshrrev_b32 v3, 20, v3")
    e("    v_cmp_eq_u32 s[4:5], s2, v2")
    e("    v_cmp_eq_u32 s[6:7], s2, v3")
    e("    s_and_b64 s[72:73], s[72:73], s[74:75]")
    e("    s_and_b64 vcc, vcc, s[74:75]")
    e("    s_lshr_b64 s[72:73], s[72:73], 1")
    e("    s_or_b64 s[72:73], s[72:73], vcc")
    e("    s_mov_b32 s68, 0")
    e("    s_mov_b32 s69, 0")
    e("    s_mov_b32 s70, 0")
    e("    s_or_b64 s[76:77], s[4:5], s[6:7]")
    e("    s_or_b64 s[76:77], s[76:77], s[72:73]")
    e("    s_cbranch_scc1 EXTRA")
    e("CDONE:")
    e("    s_waitcnt lgkmcnt(0)")
    e("    s_barrier")
    stamp2("b_bar1", "")
    e("    ds_read_b128 v[4:7], v90")
    prefetch(PF4)
    e("    s_lshl_b32 s76, s3, 2")
    e("    s_add_u32 s76, s76, 3")
    e("    s_waitcnt lgkmcnt(0)")
    e("    v_add_u32 v5, v4, v5")
    e("    v_add_u32 v6, v5, v6")
    e("    v_add_u32 v7, v6, v7")
    e("    s_nop 1")
    e("    v_and_b32_dpp v28, v7, v95 quad_perm:[0,0,0,0] row_mask:0xf bank_mask:0xf")
    e("    v_and_b32_dpp v29, v7, v96 quad_perm:[1,1,1,1] row_mask:0xf bank_mask:0xf")
    e("    v_and_b32_dpp v30, v7, v97 quad_perm:[2,2,2,2] row_mask:0xf bank_mask:0xf")
    e("    v_add3_u32 v28, v28, v29, v30")
    e("    v_add_u32 v7, v28, v7")
    e("    v_lshl_add_u32 v28, v28, 2, v98")
    e(f"    v_cmp_lt_u32 vcc, {CAPT}, v7")
    e("    v_lshl_add_u32 v29, v4, 2, v28")
    e("    v_lshl_add_u32 v30, v5, 2, v28")
    e("    v_lshl_add_u32 v31, v6, 2, v28")
    e("    v_readlane_b32 s74, v7, s76")
    e("    ds_write_b128 v90, v[28:31] offset:1024")
    for s in range(8):
        e(f"    s_mov_b64 exec, {PEND(s)}")
        e(f"    ds_read_b32 v{20+s}, v{40+s} offset:1024")
    e("    s_mov_b64 exec, -1")
    e(f"    s_min_u32 s74, s74, {CAPT}")
    e("    v_and_b32 v2, 63, v0")
    e("    v_add_u32 v2, s74, v2")
    e("    s_add_u32 s76, s74, 31")
    e("    s_andn2_b32 s76, s76, 31")
    e(f"    s_mul_i32 s77, s3, {TSTR}")
    e(f"    s_add_u32 s77, s77, {LISTS}")
    e("    s_cbranch_vccnz SLOWW")
    for s in range(8):
        e(f"    s_mov_b64 exec, {PEND(s)}")
        e("    s_waitcnt lgkmcnt(7)")
        e(f"    v_lshl_add_u32 v{20+s}, v{32+s}, 2, v{20+s}")
        e(f"    ds_write2st64_b32 v{20+s}, v{48+s}, v{56+s} offset0:0 offset1:5")
        e(f"    s_mov_b64 {PEND(s)}, 0")
    e("WDONE:")
    e("    s_mov_b64 exec, -1")
    e("    v_cmp_gt_u32 vcc, s76, v2")
    e("    v_lshl_add_u32 v2, v2, 2, s77")
    e(f"    v_mov_b32 v3, {PADV}")
    e(f"    v_mov_b32 v4, {MORE}")
    e("    s_mov_b64 exec, vcc")
    e("    ds_write2st64_b32 v2, v3, v3 offset0:0 offset1:5")
    e("    s_mov_b64 exec, -1")
    e("    s_waitcnt lgkmcnt(0)")
    e("    s_barrier")
    stamp2("b_bar2", "")
    e("    ds_read_b32 v8, v4")

    def next_k():
        e("    s_mov_b32 s8, 1")
        e("    s_cmp_gt_i32 s9, s10")
        e("    s_addc_u32 s8, s8, 0")
        e("    s_lshl_b32 s11, s10, 1")
        e("    s_cmp_gt_i32 s9, s11")
        e("    s_addc_u32 s8, s8, 0")
        e("    s_add_i32 s11, s11, s10")
        e("    s_cmp_gt_i32 s9, s11")
        e("    s_addc_u32 s8, s8, 0")
        e("    s_min_i32 s8, s8, s9")
        e("    s_sub_i32 s9, s9, s8")
        e("    s_sub_i32 s10, s10, 1")
        e("    s_lshl_b32 s11, s8, 5")

    def read_recs(adv):
        e("    ds_read2_b32 v[100:101], v93 offset0:0 offset1:8")
        e("    ds_read2_b32 v[102:103], v93 offset0:16 offset1:24")
        e("    ds_read_b128 v[104:107], v94")
        e("    ds_read_b128 v[108:111], v94 offset:16")
        e(f"    v_add_u32 v93, {adv}, v93")
        e(f"    v_add_u32 v94, {adv}, v94")

    def dma(i):
        e(f"    buffer_load_dwordx4 v{100+i}, {R(S_GAT)}, 0 offen offset:{1024*i} lds")

    def addr():
        for i in range(4):
            e(f"    v_add_u32 v{100+i}, v{100+i}, v{80+i}")

    def build_b(w):
        for j in range(8):
            e(f"    v_bfe_i32 v{32+j}, v{104+j}, v92, {w}")
        for j in range(8):
            e(f"    v_and_b32 v{32+j}, v{32+j}, v{104+j}")
        for j in range(4):
            e(f"    v_perm_b32 v{112+j}, v{32+2*j+1}, v{32+2*j}, s1")

    def mfmas():
        for t in range(4):
            e(f"    v_mfma_f32_16x16x32_bf16 v[{64+4*t}:{67+4*t}], v[{12+4*t}:{15+4*t}], v[112:115], v[{64+4*t}:{67+4*t}]")

    e("MAIN:")
    if PRIO == 1:
        for g in range(1, 4):
            e(f"    s_cmp_lt_u32 s3, {4*g}")
            e("    s_cbranch_scc1 PRIOD")
            e(f"    s_setprio {g}")
        e("PRIOD:")
    e("    s_cmp_eq_u32 s74, 0")
    e("    s_cbranch_scc1 MAINDONE")
    e("    v_mov_b32 v93, v88")
    e("    v_mov_b32 v94, v89")
    read_recs(128)
    e("    s_add_u32 s9, s74, 7")
    e("    s_lshr_b32 s9, s9, 3")
    e("    s_sub_i32 s9, s9, 4")
    e("    s_max_i32 s9, s9, 0")
    e(f"    s_mov_b32 s10, {NB-1}")
    e("    s_waitcnt lgkmcnt(2)")
    addr()
    for i in range(4):
        dma(i)
    next_k()
    e("    s_waitcnt lgkmcnt(0)")
    build_b("1")
    read_recs("s11")
    e("LOOP:")
    e("    v_cmp_gt_u32 vcc, s8, v11")
    if PRIO == 3:
        e("    s_setprio 3")
    e("    s_waitcnt vmcnt(0)")
    for t in range(4):
        for u in range(2):
            e(f"    ds_read_b64_tr_b16 v[{12+4*t+2*u}:{13+4*t+2*u}], v{84+t} offset:{512*u}")
    e("    s_cmp_eq_u32 s8, 0")
    e("    v_cndmask_b32 v91, 0, v1, vcc")
    e("    s_waitcnt lgkmcnt(8)")
    addr()
    e("    s_waitcnt lgkmcnt(0)")
    e("    s_cbranch_scc1 LAST")
    dma(0)
    e("    s_cmp_eq_u32 s8, 1")
    e("    s_cbranch_scc1 DMAD")
    dma(1)
    e("    s_cmp_eq_u32 s8, 2")
    e("    s_cbranch_scc1 DMAD")
    dma(2)
    e("    s_cmp_eq_u32 s8, 3")
    e("    s_cbranch_scc1 DMAD")
    dma(3)
    e("DMAD:")
    if PRIO == 2:
        e("    s_lshr_b32 s11, s3, 2")
        e("    s_add_u32 s11, s11, s10")
        e("    s_and_b32 s11, s11, 3")
        e("    s_setprio 0")
        for g in range(1, 4):
            e(f"    s_cmp_lt_u32 s11, {g}")
            e("    s_cbranch_scc1 PRIOD")
            e(f"    s_setprio {g}")
        e("PRIOD:")
    if PRIO == 3:
        e("    s_setprio 0")
    mfmas()
    next_k()
    build_b("v91")
    read_recs("s11")
    e("    s_branch LOOP")
    e("LAST:")
    mfmas()
    e("MAINDONE:")
    e("    s_waitcnt lgkmcnt(0)")
    e("    v_readfirstlane_b32 s75, v8")
    e("    s_cmp_eq_u32 s75, 0")
    e("    s_cbranch_scc1 EPI")
    e("    s_or_b32 s71, s71, 2")
    e("    s_barrier")
    zero_b_counters((WL - CNTB) // 4)
    e("    s_waitcnt lgkmcnt(0)")
    e("    s_barrier")
    for s in range(7):
        e(f"    s_mov_b64 exec, {PEND(s)}")
        e(f"    ds_add_rtn_u32 v{32+s}, v{40+s}, v1")
    e("EXTRA:")
    for m, r in (("s[4:5]", 116), ("s[6:7]", 118)):
        e(f"    s_andn2_b64 exec, {m}, {PEND(7)}")
        e(f"    s_andn2_b64 {m}, {m}, exec")
        e(f"    s_or_b64 {PEND(7)}, {PEND(7)}, exec")
        decode_full(r, r + 1, 7)
    e("    s_mov_b64 exec, -1")
    e("    s_or_b64 s[76:77], s[4:5], s[6:7]")
    e("    s_cbranch_scc1 OVFULL")
    e("    s_mov_b32 s75, 0")
    e("OVL:")
    e("    s_cmp_lt_u32 s68, s69")
    e("    s_cbranch_scc1 OVLOAD")
    e("    s_cmp_eq_u64 s[72:73], 0")
    e("    s_cbranch_scc1 OVDONE")
    e("    s_ff1_i32_b64 s76, s[72:73]")
    e("    s_bitset0_b64 s[72:73], s76")
    e("    s_or_b32 s77, s76, 7")
    e("    v_readlane_b32 s68, v116, s77")
    e("    v_readlane_b32 s69, v118, s77")
    e("    s_bitcmp1_b32 s76, 0")
    e("    s_cselect_b32 s69, s69, s68")
    e(f"    s_min_u32 s69, s69, {4*NTHR}")
    e("    s_and_b32 s77, s76, 1")
    e("    s_lshl_b32 s77, s77, 7")
    e("    s_lshr_b32 s76, s76, 3")
    e("    s_add_u32 s76, s76, s77")
    e("    s_lshl_b32 s77, s3, 3")
    e("    s_add_u32 s76, s76, s77")
    e("    s_lshl_b32 s70, s76, 15")
    e(f"    s_mov_b32 s68, {NINL}")
    e("OVLOAD:")
    e("    v_add_u32 v4, s75, v0")
    e("    v_and_b32 v4, 63, v4")
    e("    v_add_u32 v4, s68, v4")
    e("    v_lshlrev_b32 v5, 3, v4")
    e(f"    buffer_load_dwordx2 v[28:29], v5, {R(S_OVF)}, s70 offen {SC}")
    e("    s_waitcnt vmcnt(0)")
    e(f"    v_mul_u32_u24 v30, {TM}, v29")
    e("    v_lshrrev_b32 v31, 20, v30")
    e("    v_cmp_gt_u32 vcc, s69, v4")
    e("    v_cmp_eq_u32 s[76:77], s2, v31")
    e("    s_and_b64 vcc, s[76:77], vcc")
    e(f"    s_and_b64 s[76:77], vcc, {PEND(7)}")
    e("    s_cbranch_scc1 OVFULL")
    e(f"    s_or_b64 {PEND(7)}, {PEND(7)}, vcc")
    e("    s_add_u32 s68, s68, 64")
    e("    s_add_u32 s75, s75, 16")
    e("    s_mov_b64 exec, vcc")
    decode_full(28, 29, 7)
    e("    s_mov_b64 exec, -1")
    e("    s_branch OVL")
    e("OVFULL:")
    e(f"    v_mov_b32 v2, {MORE}")
    e("    ds_write_b32 v2, v1")
    e("OVDONE:")
    e(f"    s_mov_b64 exec, {PEND(7)}")
    e("    ds_add_rtn_u32 v39, v47, v1")
    e("    s_mov_b64 exec, -1")
    e("    s_branch CDONE")
    for i in range(2):
        base = 12 + 4 * i
        e(f"C_RETRY{i}:")
        if TORN:
            for h in ("vcc_lo", "vcc_hi"):
                for bb in range(4):
                    n = len(L)
                    e(f"    s_bfe_u32 s76, {h}, {(8 << 16) | (8*bb)}")
                    e("    s_cmp_eq_u32 s76, 0")
                    e(f"    s_cbranch_scc1 TN{n}")
                    e("    s_cmp_eq_u32 s76, 0xff")
                    e(f"    s_cbranch_scc1 TN{n}")
                    e("    s_add_u32 s16, s16, 1")
                    e("    s_cmp_eq_u32 s76, 0x0f")
                    e(f"    s_cbranch_scc1 TN{n}")
                    e("    s_cmp_eq_u32 s76, 0xf0")
                    e(f"    s_cbranch_scc1 TN{n}")
                    e("    s_add_u32 s17, s17, 1")
                    e(f"TN{n}:")
            e("    s_add_u32 s16, s16, 0x10000")
        e(f"    buffer_load_dwordx4 v[{base}:{base+3}], v9, {R(S_WS)}, s{68+i} offen {LD_SL}")
        e("    s_sub_u32 s75, s75, 1")
        e("    s_cmp_eq_u32 s75, 0")
        e("    s_waitcnt vmcnt(0)")
        e(f"    s_cbranch_scc0 C_CHK{i}")
        e("    s_mov_b32 s75, 1000")
        e(f"    s_branch C_OK{i}")
    e("C_RETRY2:")
    e(f"    buffer_load_dwordx2 v[116:117], v31, {R(S_WS)}, s70 offen {SC}")
    e(f"    buffer_load_dwordx2 v[118:119], v31, {R(S_WS)}, s74 offen {SC}")
    e("    s_sub_u32 s75, s75, 1")
    e("    s_cmp_eq_u32 s75, 0")
    e("    s_waitcnt vmcnt(0)")
    e("    s_cbranch_scc0 C_CHK2")
    e("    s_branch C_OK2")
    e("SLOWW:")
    e("    s_waitcnt lgkmcnt(0)")
    for s in range(8):
        e(f"    s_mov_b64 exec, {PEND(s)}")
        e(f"    v_lshl_add_u32 v{20+s}, v{32+s}, 2, v{20+s}")
        e(f"    v_subrev_u32 v3, s0, v{40+s}")
        e("    v_lshrrev_b32 v3, 6, v3")
        e(f"    v_mul_u32_u24 v3, {TSTR}, v3")
        e(f"    v_add_u32 v3, {LISTS + CAPT*4}, v3")
        e(f"    v_cmp_lt_u32 vcc, v{20+s}, v3")
        e(f"    s_andn2_b64 {PEND(s)}, exec, vcc")
        e("    s_mov_b64 exec, vcc")
        e(f"    ds_write2st64_b32 v{20+s}, v{48+s}, v{56+s} offset0:0 offset1:5")
    e("    s_mov_b64 exec, -1")
    e(f"    v_mov_b32 v3, {MORE}")
    e("    ds_write_b32 v3, v1")
    e("    s_branch WDONE")

    e("EPI:")
    if PRIO:
        e("    s_setprio 0")
    stamp2("h1_done", "h2_done")
    e("    s_lshl_b32 s76, s2, 4")
    e("    s_add_u32 s76, s76, s3")
    e("    s_mul_i32 s77, s76, 50006")
    e("    s_lshr_b32 s77, s77, 12")
    e("    v_subrev_u32 v2, s77, v92")
    e("    v_and_b32 v2, 15, v2")
    e("    v_add_u32 v2, s77, v2")
    e(f"    v_mul_u32_u24 v3, {TM}, v2")
    e("    v_lshrrev_b32 v3, 16, v3")
    e("    v_cmp_eq_u32 s[52:53], s76, v3")
    e("    v_lshlrev_b32 v2, 7, v2")
    e("    v_lshl_add_u32 v2, v11, 4, v2")
    e("    v_and_b32 v5, 1, v11")
    e("    v_cmp_eq_u32 s[54:55], 1, v5")
    for t in range(4):
        e(f"    v_cvt_pk_bf16_f32 v{12+2*t}, v{64+4*t}, v{65+4*t}")
        e(f"    v_cvt_pk_bf16_f32 v{13+2*t}, v{66+4*t}, v{67+4*t}")
    e("    s_mov_b64 exec, s[54:55]")
    e("    v_swap_b32 v12, v14")
    e("    v_swap_b32 v13, v15")
    e("    v_swap_b32 v16, v18")
    e("    v_swap_b32 v17, v19")
    e("    s_bitcmp1_b32 s71, 0")
    e("    s_cbranch_scc1 FINAL")
    e("    s_mov_b64 exec, s[52:53]")
    e(f"    buffer_store_dwordx4 v[12:15], v2, {R(S_STO)}, 0 offen {SCH}")
    e(f"    buffer_store_dwordx4 v[16:19], v2, {R(S_STO)}, 0 offen offset:64 {SCH}")
    e("    s_mov_b64 exec, -1")
    stamp("h1_st")
    srd(S_GAT, 18, 19, TABBYTES + 3072, WS_H1 - 3072)
    e("    s_or_b32 s71, s71, 1")
    zero_b_counters(256)
    for i in range(16):
        e(f"    v_mov_b32 v{64+i}, 0")
    e("    v_lshlrev_b32 v9, 4, v0")
    e("    v_lshlrev_b32 v31, 3, v0")
    e("    s_waitcnt lgkmcnt(0)")
    grid_barrier("g2", 1, 0, 0)
    e("    v_mov_b32 v8, 0")
    e("    s_bitcmp0_b32 s71, 1")
    e("    s_cbranch_scc1 MAIN")
    e("    s_branch COLLECT")
    e("FINAL:")
    e("    s_mov_b64 exec, -1")
    srd(S_STO, 14, 15, TABBYTES)
    e("    v_bfe_u32 v7, v0, 2, 2")
    e("    v_lshl_add_u32 v6, v11, 3, v7")
    e("    v_lshlrev_b32 v6, 7, v6")
    e("    v_and_b32 v7, 3, v0")
    e("    v_lshl_add_u32 v6, v7, 4, v6")
    e(f"    v_add_u32 v6, {WL}, v6")
    for s in range(2):
        for t in range(4):
            for u in range(2):
                off = (32 * s + 4 * u) * 128 + 64 * (t >> 1) + 8 * (t & 1)
                r = 80 + (s * 4 + t) * 4 + 2 * u
                e(f"    ds_read_b64_tr_b16 v[{r}:{r+1}], v6 offset:{off}")
    e("    s_waitcnt lgkmcnt(8)")
    for t in range(4):
        e(f"    v_mfma_f32_16x16x32_bf16 v[{64+4*t}:{67+4*t}], v[{80+4*t}:{83+4*t}], v[12:15], 0")
    e("    s_waitcnt lgkmcnt(0)")
    for t in range(4):
        e(f"    v_mfma_f32_16x16x32_bf16 v[{64+4*t}:{67+4*t}], v[{96+4*t}:{99+4*t}], v[16:19], v[{64+4*t}:{67+4*t}]")
    e("    s_nop 7")
    e("    s_nop 1")
    for t in range(4):
        e(f"    v_cvt_pk_bf16_f32 v{12+2*t}, v{64+4*t}, v{65+4*t}")
        e(f"    v_cvt_pk_bf16_f32 v{13+2*t}, v{66+4*t}, v{67+4*t}")
    e("    s_mov_b64 exec, s[52:53]")
    e(f"    buffer_store_dwordx4 v[12:15], v2, {R(S_STO)}, 0 offen {ST_OUT}")
    e(f"    buffer_store_dwordx4 v[16:19], v2, {R(S_STO)}, 0 offen offset:64 {ST_OUT}")
    stamp_out()
    e("END:")
    e("    s_endpgm")


SPIN = OPT.get("spin")
if SPIN:
    e(f"; @launch kernel={NAME} grid=(256,1,1) block=(1024,1,1) lds={LDS}")
    e("; @launch kernel=sgc_spin_kernel grid=(1,1,1) block=(64,1,1) lds=0")
else:
    e(f"; @launch grid=(256,1,1) block=(1024,1,1) lds={LDS}")
e('.amdgcn_target "amdgcn-amd-amdhsa--gfx950"')
e(".text")
body()
if SPIN:
    na, nb_, mode, mult, wlo, whi = (SPIN.split(",") + ["0", "15"])[:6]
    wlo, whi = int(wlo), int(whi)
    ia, ib, mode, mult = STL.index(na), STL.index(nb_), int(mode), int(mult)
    e(".globl sgc_spin_kernel")
    e(".p2align 8")
    e(".type sgc_spin_kernel,@function")
    e("sgc_spin_kernel:")
    e("    s_memrealtime s[30:31]")
    e("    s_cmp_ge_u32 s2, 1")
    e("    s_cbranch_scc1 SP_END")
    e("    s_load_dwordx8 s[12:19], s[0:1], 32")
    e("    v_lshlrev_b32 v1, 6, v0")
    e("    v_mov_b32 v4, 0x7fffffff")
    e("    v_mov_b32 v5, %s" % ("0x80000000" if mode == 0 else "0x7fffffff" if mode == 1 else "0"))
    e("    s_waitcnt lgkmcnt(0)")
    srd(20, 18, 19, 1 << 20, WS_STAMP)
    e("    s_mov_b32 s24, 0")
    e("SP_RD:")
    e(f"    buffer_load_dword v2, v1, s[20:23], s24 offen offset:{4*ia}")
    e(f"    buffer_load_dword v3, v1, s[20:23], s24 offen offset:{4*ib}")
    e("    s_add_u32 s24, s24, 4096")
    e("    s_cmp_lt_u32 s24, 0x40000")
    e("    s_waitcnt vmcnt(0)")
    e("    v_subrev_u32 v2, s30, v2")
    e("    v_subrev_u32 v3, s30, v3")
    e("    v_min_i32 v4, v4, v2")
    e("    %s v5, v5, v3" % ("v_max_i32" if mode == 0 else "v_min_i32" if mode == 1 else "v_add_u32"))
    e("    s_cbranch_scc1 SP_RD")
    e("    s_mov_b32 s26, 0x7fffffff")
    e("    s_mov_b32 s27, %s" % ("0x80000000" if mode == 0 else "0x7fffffff" if mode == 1 else "0"))
    e("    s_nop 1")
    for l in range(64):
        e(f"    v_readlane_b32 s28, v4, {l}")
        e(f"    v_readlane_b32 s29, v5, {l}")
        e("    s_min_i32 s26, s26, s28")
        if wlo <= (l & 15) <= whi:
            e("    %s s27, s27, s29" % ("s_max_i32" if mode == 0 else "s_min_i32" if mode == 1 else "s_add_u32"))
    if mode == 2:
        e("    s_ashr_i32 s27, s27, %d" % (8 + (whi - wlo + 1).bit_length() - 1))
    if mode == 3:
        e("    s_mov_b32 s27, 0")
    e("    s_sub_i32 s26, s27, s26")
    e("    s_max_i32 s26, s26, 0")
    e("    s_min_i32 s26, s26, 20000")
    e(f"    s_mul_i32 s26, s26, {mult}")
    e("    s_add_u32 s26, s26, 10000")
    e("SP_LOOP:")
    e("    s_memrealtime s[28:29]")
    e("    s_waitcnt lgkmcnt(0)")
    e("    s_sub_u32 s28, s28, s30")
    e("    s_cmp_lt_u32 s28, s26")
    e("    s_cbranch_scc1 SP_LOOP")
    e("SP_END:")
    e("    s_endpgm")
e('.section .rodata,"a"')
if SPIN:
    e(".p2align 6")
    e(".amdhsa_kernel sgc_spin_kernel")
    e("  .amdhsa_next_free_vgpr 8")
    e("  .amdhsa_next_free_sgpr 40")
    e("  .amdhsa_accum_offset 8")
    e("  .amdhsa_group_segment_fixed_size 0")
    e("  .amdhsa_kernarg_size 64")
    e("  .amdhsa_user_sgpr_count 2")
    e("  .amdhsa_user_sgpr_kernarg_segment_ptr 1")
    e("  .amdhsa_system_sgpr_workgroup_id_x 1")
    e(".end_amdhsa_kernel")
e(".p2align 6")
e(f".amdhsa_kernel {NAME}")
e("  .amdhsa_next_free_vgpr 128")
e("  .amdhsa_next_free_sgpr 102")
e("  .amdhsa_accum_offset 128")
e("  .amdhsa_group_segment_fixed_size 0")
e("  .amdhsa_kernarg_size 64")
e("  .amdhsa_user_sgpr_count 2")
e("  .amdhsa_user_sgpr_kernarg_segment_ptr 1")
e("  .amdhsa_system_sgpr_workgroup_id_x 1")
e(".end_amdhsa_kernel")
open(OUT, "w").write("\n".join(L) + "\n")
```

```python
import sys

OUT = [a for a in sys.argv[1:] if not a.startswith("--")][0]
OPT = dict(a[2:].split("=") for a in sys.argv[1:] if a.startswith("--") and "=" in a)
NAME = "standalone__spectral_conv_sgc__graph_kernel"
DEFST = "start,a_bar1,a_bar2,g1_exit,b_lines,b_bar1,b_bar2,h1_done,h1_st,g2_exit,h2_done,end"
STL = OPT.get("st", DEFST if "--diag" in sys.argv else "").split(",")
STL = [s for s in STL if s]
DIAG = len(STL) > 0


def I(name, dflt):
    return int(OPT.get(name, dflt))


N = 50000
E = 850000
ET = 800000
TM = 5368
CH = 3128
NMAIN = CH // 4
TCH = 196
NTHR = NMAIN + TCH // 4
SLOTCAP = 24
NINL = 7
WS_SLOTS = 0
WS_OVT = 8 << 20
WS_FLAG = WS_OVT + 65536
WS_H1 = WS_OVT + (1 << 20)
WS_OVF = 16 << 20
OVF_STRIDE = 32768
WS_STAMP = 32 << 20
TABBYTES = N * 128
PADV = 0x40000000

K1_LS = 132
K1_CNT = 256 * K1_LS
K1_OVC = 1024
K1_OVT = K1_CNT + 4096
K1_NON = K1_OVT + 64
LISTS = 65536
CAPT = 320
TSTR = CAPT * 8
CNTB = LISTS + 16 * TSTR + 256
BASES = CNTB + 1024
MORE = BASES + 1024
WL = MORE + 64
LDS = WL + 8192

SC = OPT.get("sc", "sc1")
SCF = OPT.get("scf", "sc1")
SCH = OPT.get("sch", SC)
LD_IN = OPT.get("ldin", "")
LD_SL = OPT.get("ldsl", SC)
ST_OUT = OPT.get("stout", "")
SPINMAX = 20000000
NREP = I("nrep", 8)
LSTR = I("lstr", 128)
NB = I("nb", 8)
TOUCH = I("touch", 1)
PFS = I("pfstep", 80)
PF = [I("pf0", 0), I("pf1", 0), I("pf2", 0), I("pf3", 0)]
PF4 = I("pf4", 0)
PRIO = I("prio", 0)
ACKW = I("ackw", 1)
TORN = I("torn", 0)
PFH = I("pfh", 0)

L = []


def e(s=""):
    L.append(s)


def srd(d, lo, hi, nbytes, off=0):
    if off == 0:
        e(f"    s_mov_b32 s{d}, s{lo}")
        e(f"    s_and_b32 s{d+1}, s{hi}, 0xffff")
    elif off > 0:
        e(f"    s_add_u32 s{d}, s{lo}, {off}")
        e(f"    s_addc_u32 s{d+1}, s{hi}, 0")
        e(f"    s_and_b32 s{d+1}, s{d+1}, 0xffff")
    else:
        e(f"    s_sub_u32 s{d}, s{lo}, {-off}")
        e(f"    s_subb_u32 s{d+1}, s{hi}, 0")
        e(f"    s_and_b32 s{d+1}, s{d+1}, 0xffff")
    e(f"    s_mov_b32 s{d+2}, {nbytes}")
    e(f"    s_mov_b32 s{d+3}, 0x20000")


S_SRC, S_DST, S_NRM, S_WS, S_OVF, S_GAT, S_STO, S_DBG = 20, 24, 28, 32, 36, 40, 44, 48
WSBYTES = WS_H1


def R(d):
    return f"s[{d}:{d+3}]"


STAMP_BASE = 78


def stamp(name):
    if "c_" + name in STL:
        i = STL.index("c_" + name)
        e(f"    s_memtime s[{STAMP_BASE+2*i}:{STAMP_BASE+2*i+1}]")
    if name in STL:
        i = STL.index(name)
        e(f"    s_memrealtime s[{STAMP_BASE+2*i}:{STAMP_BASE+2*i+1}]")


def stamp2(n1, n2):
    if n1 in STL or n2 in STL:
        n = len(L)
        e("    s_bitcmp1_b32 s71, 0")
        e(f"    s_cbranch_scc1 ST{n}_B")
        stamp(n1)
        e(f"    s_branch ST{n}_C")
        e(f"ST{n}_B:")
        stamp(n2)
        e(f"ST{n}_C:")


def stamp_out():
    if not DIAG:
        return
    e("    s_waitcnt vmcnt(0) lgkmcnt(0)")
    stamp("end")
    e("    s_waitcnt lgkmcnt(0)")
    if "xcc" in STL:
        i = STL.index("xcc")
        e("    s_getreg_b32 s76, hwreg(HW_REG_XCC_ID, 0, 4)")
        e("    s_sub_u32 s76, s2, s76")
        e("    s_and_b32 s76, s76, 7")
        e("    s_mul_i32 s76, s76, 200")
        e(f"    s_add_u32 s{STAMP_BASE+2*i}, s{STAMP_BASE}, s76")
    e("    s_mov_b64 exec, 1")
    srd(20, 18, 19, 1 << 20, WS_STAMP - (I("wsoff", 0) << 20))
    e("    s_lshl_b32 s76, s2, 4")
    e("    s_add_u32 s76, s76, s3")
    e("    s_lshl_b32 s76, s76, 6")
    e("    v_mov_b32 v2, s76")
    for i in range(len(STL)):
        e(f"    v_mov_b32 v3, s{STAMP_BASE+2*i}")
        e(f"    buffer_store_dword v3, v2, s[20:23], 0 offen offset:{4*i}")
    e("    s_getreg_b32 s76, hwreg(HW_REG_XCC_ID)")
    e("    v_mov_b32 v3, s76")
    e("    buffer_store_dword v3, v2, s[20:23], 0 offen offset:56")
    e("    v_mov_b32 v3, s16")
    e("    buffer_store_dword v3, v2, s[20:23], 0 offen offset:60")
    e("    v_mov_b32 v3, s17")
    e("    buffer_store_dword v3, v2, s[20:23], 0 offen offset:52")


def PEND(s):
    return f"s[{52+2*s}:{53+2*s}]"


pf_base = [0]


def prefetch(cnt, nwaves=16, wave0=0):
    if cnt == 0:
        return 0
    nops = (cnt + 63) // 64
    e("    s_lshr_b32 s76, s2, 3")
    e(f"    s_mul_i32 s76, s76, {nwaves}")
    e("    s_add_u32 s76, s76, s3")
    e(f"    s_mul_i32 s76, s76, {cnt}")
    e(f"    s_add_u32 s76, s76, {pf_base[0] - wave0*cnt}")
    for o in range(nops):
        n = min(64, cnt - 64 * o)
        e("    v_and_b32 v2, 63, v0")
        e("    v_add_u32 v2, s76, v2")
        e("    v_lshrrev_b32 v3, 5, v2")
        e("    v_and_b32 v2, 31, v2")
        e(f"    v_mul_u32_u24 v3, {PFS}, v3")
        e("    v_add_lshl_u32 v2, v2, v3, 7")
        if n < 64:
            e(f"    s_mov_b32 exec_lo, {((1 << n) - 1) & 0xffffffff}")
            e(f"    s_mov_b32 exec_hi, {((1 << n) - 1) >> 32}")
        e(f"    buffer_load_dword v126, v2, {R(S_GAT)}, 0 offen offset:3072")
        if n < 64:
            e("    s_mov_b64 exec, -1")
        if o + 1 < nops:
            e("    s_add_u32 s76, s76, 64")
    pf_base[0] += 32 * nwaves * cnt
    return nops


def grid_barrier(p, idx, pfa, pfb):
    rstr = 64 * LSTR
    fb = WS_FLAG + idx * NREP * rstr
    n = prefetch(pfa)
    e(f"    s_waitcnt vmcnt({n})")
    stamp(p + "_ack")
    e("    s_barrier")
    if idx == 0:
        e("    s_cmp_lt_u32 s3, 13")
        e("    s_cbranch_scc1 G1_NOW")
        e(f"    v_subrev_u32 v2, {13*64}, v0")
        e("    v_lshlrev_b32 v2, 4, v2")
        e(f"    v_cmp_gt_u32 vcc, 2048, v2")
        e(f"    v_add_u32 v2, {WL}, v2")
        e("    ds_write_b128 v2, v[100:103]")
        e("    ds_write_b128 v2, v[104:107] offset:3072")
        e("    s_and_saveexec_b64 s[76:77], vcc")
        e("    ds_write_b128 v2, v[108:111] offset:6144")
        e("    s_mov_b64 exec, -1")
        e("G1_NOW:")
    e("    s_cmp_lg_u32 s3, 0")
    e(f"    s_cbranch_scc1 {p}_WAIT")
    stamp(p + "_arr")
    if idx == 0:
        e(f"    s_mov_b32 s76, {SPINMAX}")
        e(f"{p}_NONCE:")
        e("    v_cmp_ne_u32 vcc, 0, v125")
        e(f"    s_cbranch_vccnz {p}_GOTN")
        e("    v_mov_b32 v2, 0")
        e(f"    buffer_load_dword v125, v2, {R(S_DBG)}, 0 offen {SCF}")
        e("    s_sub_u32 s76, s76, 1")
        e("    s_cmp_eq_u32 s76, 0")
        e("    s_waitcnt vmcnt(0)")
        e(f"    s_cbranch_scc0 {p}_NONCE")
        e(f"{p}_GOTN:")
    e("    s_lshr_b32 s76, s2, 2")
    e(f"    s_mul_i32 s76, s76, {LSTR}")
    e("    s_and_b32 s77, s2, 3")
    e("    s_lshl_b32 s77, s77, 2")
    e("    s_add_u32 s76, s76, s77")
    e(f"    s_add_u32 s76, s76, {fb}")
    e(f"    v_mul_u32_u24 v2, {rstr}, v0")
    e(f"    s_mov_b32 exec_lo, {((1 << NREP) - 1) & 0xffffffff}")
    e(f"    s_mov_b32 exec_hi, {((1 << NREP) - 1) >> 32}")
    e(f"    buffer_store_dword v125, v2, {R(S_WS)}, s76 offen {SCF}")
    e("    s_mov_b64 exec, -1")
    prefetch(pfb, 1, 0)
    e("    s_getreg_b32 s77, hwreg(HW_REG_XCC_ID, 0, 4)")
    e(f"    s_and_b32 s77, s77, {NREP-1}")
    e(f"    s_mul_i32 s77, s77, {rstr}")
    e(f"    s_add_u32 s77, s77, {fb}")
    e(f"    v_mul_u32_u24 v8, {LSTR}, v0")
    e(f"    s_mov_b32 s76, {SPINMAX}")
    e(f"{p}_POLL:")
    e(f"    buffer_load_dwordx4 v[4:7], v8, {R(S_WS)}, s77 offen {SCF}")
    e("    s_sub_u32 s76, s76, 1")
    e("    s_cmp_eq_u32 s76, 0")
    e("    s_waitcnt vmcnt(0)")
    e(f"    s_cbranch_scc1 {p}_WAIT")
    e("    v_xor_b32 v4, v4, v125")
    e("    v_xor_b32 v5, v5, v125")
    e("    v_xor_b32 v6, v6, v125")
    e("    v_xor_b32 v7, v7, v125")
    e("    v_or3_b32 v4, v4, v5, v6")
    e("    v_or_b32 v4, v4, v7")
    e("    v_cmp_ne_u32 vcc, 0, v4")
    e(f"    s_cbranch_vccnz {p}_POLL")
    e(f"{p}_WAIT:")
    e("    s_barrier")
    stamp(p + "_exit")


def decode_key(rec, meta, k, s):
    ca = 40 + s
    e(f"    v_bfe_u32 v2, v{rec}, 12, 4")
    e(f"    v_and_b32_sdwa v3, v{meta}, v99 dst_sel:DWORD dst_unused:UNUSED_PAD src0_sel:BYTE_{k} src1_sel:DWORD")
    e(f"    v_or_b32 v2, v2, v3")
    e(f"    v_lshl_add_u32 v{ca}, v2, 2, s0")


def decode_data(rec, meta, k, s):
    d0, d1 = 48 + s, 56 + s
    e(f"    v_lshlrev_b32_sdwa v{d0}, v124, v{rec} dst_sel:DWORD dst_unused:UNUSED_PAD src0_sel:DWORD src1_sel:WORD_0")
    if OPT.get("srcmask"):
        e(f"    v_and_b32 v{d0}, {OPT['srcmask']}, v{d0}")
    e(f"    v_mov_b32 v{d1}, v{rec}")
    e(f"    v_lshlrev_b16_sdwa v{d1}, v{meta}, v1 dst_sel:WORD_0 dst_unused:UNUSED_PRESERVE src0_sel:BYTE_{k} src1_sel:DWORD")


def decode_full(rec, dst, s):
    e(f"    v_mul_u32_u24 v30, {TM}, v{dst}")
    e("    v_lshrrev_b32 v30, 12, v30")
    e(f"    v_bfi_b32 v30, 15, v{dst}, v30")
    decode_key(rec, 30, 0, s)
    decode_data(rec, 30, 0, s)


def zero_b_counters(n):
    e("    v_lshlrev_b32 v2, 2, v0")
    e(f"    v_add_u32 v2, {CNTB}, v2")
    e("    v_mov_b32 v3, 0")
    e(f"    v_cmp_gt_u32 vcc, {n}, v0")
    e("    s_and_saveexec_b64 s[76:77], vcc")
    e("    ds_write_b32 v2, v3")
    e("    s_mov_b64 exec, -1")


def body():
    e(f".globl {NAME}")
    e(".p2align 8")
    e(f".type {NAME},@function")
    e(f"{NAME}:")
    stamp("start")
    e("    s_cmp_ge_u32 s2, 256")
    e("    s_cbranch_scc1 END")
    e("    s_load_dwordx8 s[4:11], s[0:1], 0")
    e("    s_load_dwordx8 s[12:19], s[0:1], 32")
    e("    v_lshlrev_b32 v9, 2, v0")
    e("    v_lshrrev_b32 v3, 6, v0")
    e(f"    s_mul_i32 s68, s2, {CH}")
    e(f"    s_mul_i32 s69, s2, {TCH}")
    e("    v_readfirstlane_b32 s3, v3")
    e(f"    s_add_u32 s69, s69, {ET - 4*NMAIN}")
    e("    v_add_u32 v4, s68, v9")
    e("    v_add_u32 v5, s69, v9")
    e(f"    v_cmp_gt_u32 vcc, {NMAIN}, v0")
    e(f"    v_mov_b32 v7, {E}")
    e(f"    v_mov_b32 v3, {ET}")
    e("    v_cndmask_b32 v6, v5, v4, vcc")
    e("    v_cndmask_b32 v7, v7, v3, vcc")
    e("    v_cmp_lt_u32 s[72:73], v6, v7")
    e(f"    v_cmp_gt_u32 vcc, {NTHR}, v0")
    e("    v_sub_u32 v8, v6, v3")
    e("    s_and_b64 s[72:73], s[72:73], vcc")
    e(f"    v_mov_b32 v3, {1 << 24}")
    e("    v_cndmask_b32 v6, v3, v6, s[72:73]")
    e("    v_lshlrev_b32 v4, 2, v6")
    e("    v_lshlrev_b32 v5, 1, v6")
    e("    s_waitcnt lgkmcnt(0)")
    if I("wsoff", 0):
        e(f"    s_add_u32 s18, s18, {I('wsoff', 0) << 20}")
        e("    s_addc_u32 s19, s19, 0")
    srd(S_DST, 8, 9, E * 4)
    srd(S_SRC, 6, 7, E * 4)
    srd(S_NRM, 10, 11, E * 2)
    e("    s_cmp_ge_u32 s3, 13")
    e("    s_cbranch_scc1 A_HELP")
    e(f"    buffer_load_dwordx4 v[12:15], v4, {R(S_DST)}, 0 offen {LD_IN}")
    e(f"    buffer_load_dwordx4 v[16:19], v4, {R(S_SRC)}, 0 offen {LD_IN}")
    e(f"    buffer_load_dwordx2 v[20:21], v5, {R(S_NRM)}, 0 offen {LD_IN}")
    stamp("a_issue")
    srd(S_DBG, 16, 17, 256)
    e("    s_branch A_BAR")
    e("A_HELP:")
    srd(S_DBG, 16, 17, 256)
    e("    s_cmp_lg_u32 s2, 0")
    e("    s_cbranch_scc1 A_NONONCE")
    e("    s_cmp_lg_u32 s3, 13")
    e("    s_cbranch_scc1 A_NONONCE")
    e("    s_memrealtime s[76:77]")
    e("    v_mov_b32 v2, 0")
    e("    s_waitcnt lgkmcnt(0)")
    e("    s_mul_i32 s68, s76, 0x9e3779b1")
    e("    s_mul_hi_u32 s69, s76, 0x9e3779b1")
    e("    s_xor_b32 s68, s68, s69")
    e("    s_xor_b32 s68, s68, s77")
    e("    s_mul_i32 s69, s68, 0x85ebca6b")
    e("    s_mul_hi_u32 s70, s68, 0x85ebca6b")
    e("    s_xor_b32 s69, s69, s70")
    e("    s_or_b32 s68, s68, 1")
    e("    v_mov_b32 v4, s68")
    e("    v_mov_b32 v5, s69")
    e("    s_mov_b64 exec, 1")
    e(f"    buffer_store_dwordx2 v[4:5], v2, {R(S_DBG)}, 0 offen {SCF}")
    e("    s_mov_b64 exec, -1")
    e("A_NONONCE:")
    srd(S_STO, 12, 13, 8192)
    e(f"    v_subrev_u32 v2, {13*64}, v0")
    e("    v_lshlrev_b32 v2, 4, v2")
    e(f"    buffer_load_dwordx4 v[100:103], v2, {R(S_STO)}, 0 offen")
    e(f"    buffer_load_dwordx4 v[104:107], v2, {R(S_STO)}, 0 offen offset:3072")
    e("    v_add_u32 v3, 6144, v2")
    e(f"    buffer_load_dwordx4 v[108:111], v3, {R(S_STO)}, 0 offen")
    e("A_BAR:")
    e("    v_mov_b32 v2, 0")
    e(f"    ds_write_b32 v9, v2 offset:{K1_CNT}")
    e("    v_mov_b32 v24, -1")
    e("    v_mov_b32 v25, -1")
    e("    v_mov_b32 v26, -1")
    e("    v_mov_b32 v27, -1")
    e("    v_lshlrev_b32 v2, 4, v0")
    e("    ds_write_b128 v2, v[24:27]")
    e("    ds_write_b128 v2, v[24:27] offset:16384")
    e("    s_cmp_lg_u32 s3, 15")
    e("    s_cbranch_scc1 A_INITD")
    e(f"    ds_write_b128 v2, v[24:27] offset:{32768 - 15*1024}")
    e("    v_and_b32 v4, 60, v9")
    e("    v_mov_b32 v2, 0xffff")
    e(f"    ds_write_b32 v4, v2 offset:{K1_OVT}")
    e("A_INITD:")
    e("    s_waitcnt lgkmcnt(0)")
    e("    s_barrier")
    stamp("a_bar1")
    srd(S_WS, 18, 19, WSBYTES, 0)
    srd(S_OVF, 18, 19, 256 * OVF_STRIDE, WS_OVF)
    srd(S_GAT, 4, 5, TABBYTES + 3072, -3072)
    srd(S_STO, 18, 19, TABBYTES, WS_H1)
    e("    v_mov_b32 v1, 1")
    e("    v_mov_b32 v99, 0xf0")
    e("    v_mov_b32 v124, 7")
    e(f"    s_mov_b32 s0, {CNTB}")
    e("    s_mov_b32 s1, 0x07060302")
    e("    s_mov_b32 s71, 0")
    e("    s_mov_b64 s[12:13], 0")
    e("    s_cmp_ge_u32 s3, 4")
    e("    s_cbranch_scc1 A_NOTAIL")
    e("    v_lshrrev_b32 v2, 4, v0")
    e("    s_lshl_b32 s76, s2, 4")
    e("    v_add_u32 v2, s76, v2")
    e("    v_mul_u32_u24 v3, 50006, v2")
    e("    v_lshrrev_b32 v3, 12, v3")
    e("    v_sub_u32 v4, v0, v3")
    e("    v_and_b32 v4, 15, v4")
    e("    v_add_u32 v123, v3, v4")
    e(f"    v_mul_u32_u24 v4, {TM}, v123")
    e("    v_lshrrev_b32 v4, 16, v4")
    e("    v_cmp_eq_u32 s[12:13], v4, v2")
    e(f"    v_cmp_gt_u32 vcc, {N}, v123")
    e(f"    v_add_u32 v4, {ET}, v123")
    e("    v_lshlrev_b32 v5, 2, v4")
    e("    v_lshlrev_b32 v4, 1, v4")
    e("    s_and_b64 s[12:13], s[12:13], vcc")
    e(f"    buffer_load_dword v120, v5, {R(S_DST)}, 0 offen")
    e(f"    buffer_load_dword v121, v5, {R(S_SRC)}, 0 offen")
    e(f"    buffer_load_ushort v122, v4, {R(S_NRM)}, 0 offen")
    e("A_NOTAIL:")
    if TOUCH:
        e("    s_cmp_lg_u32 s3, 14")
        e("    s_cbranch_scc1 A_NOTOUCH")
        e("    v_and_b32 v2, 63, v0")
        e("    v_lshlrev_b32 v2, 18, v2")
        e(f"    buffer_load_dword v126, v2, {R(S_WS)}, 0 offen sc1")
        e(f"    buffer_load_dword v126, v2, {R(S_STO)}, 0 offen sc1")
        e(f"    buffer_load_dword v126, v2, {R(S_GAT)}, 0 offen offset:3072")
        e("A_NOTOUCH:")
    if PF[0]:
        e("    s_cmp_lg_u32 s3, 15")
        e("    s_cbranch_scc1 A_NOPF")
        prefetch(PF[0], 1, 15)
        e("A_NOPF:")
    zero_b_counters((WL - CNTB) // 4)
    e("    v_and_b32 v10, 7, v0")
    e("    v_and_b32 v2, 63, v0")
    e("    v_bfe_u32 v3, v2, 4, 1")
    e("    v_xor_b32 v3, v3, v10")
    e("    v_lshlrev_b32 v83, 4, v3")
    e("    v_add_u32 v80, 3072, v83")
    e("    v_add_u32 v82, 1024, v83")
    e("    v_xor_b32 v83, 64, v83")
    e("    v_add_u32 v81, 2048, v83")
    e("    v_and_b32 v92, 15, v0")
    e("    v_lshrrev_b32 v11, 4, v2")
    e("    v_bfe_u32 v6, v2, 2, 2")
    e("    v_and_b32 v7, 3, v2")
    e("    v_lshl_add_u32 v84, v11, 3, v6")
    e("    v_lshlrev_b32 v84, 7, v84")
    e("    v_lshrrev_b32 v6, 1, v6")
    e("    v_and_b32 v4, 1, v11")
    e("    v_lshl_or_b32 v6, v4, 2, v6")
    e("    v_xor_b32 v6, v6, v7")
    e("    v_lshl_add_u32 v84, v6, 4, v84")
    e("    v_and_b32 v4, 1, v7")
    e("    v_lshl_add_u32 v84, v4, 3, v84")
    e("    s_lshl_b32 s76, s3, 12")
    e("    v_add_u32 v84, s76, v84")
    e("    s_mov_b32 m0, s76")
    e("    v_xor_b32 v85, 8, v84")
    e("    v_xor_b32 v86, 64, v84")
    e("    v_xor_b32 v87, 72, v84")
    e(f"    s_mul_i32 s76, s3, {TSTR}")
    e(f"    s_add_u32 s76, s76, {LISTS}")
    e("    v_lshrrev_b32 v4, 3, v2")
    e("    v_lshl_add_u32 v88, v4, 2, s76")
    e(f"    s_add_u32 s76, s76, {CAPT*4}")
    e("    v_lshl_add_u32 v89, v11, 5, s76")
    e("    v_cmp_lt_u32 vcc, 0, v7")
    e("    v_cmp_lt_u32 s[76:77], 1, v7")
    e("    v_lshrrev_b32 v4, 2, v2")
    e("    v_cndmask_b32 v95, 0, -1, vcc")
    e("    v_cndmask_b32 v96, 0, -1, s[76:77]")
    e("    v_cmp_lt_u32 vcc, 2, v7")
    e(f"    v_mul_u32_u24 v98, {TSTR}, v4")
    e(f"    v_add_u32 v98, {LISTS}, v98")
    e("    v_cndmask_b32 v97, 0, -1, vcc")
    e("    v_lshlrev_b32 v90, 4, v2")
    e(f"    v_add_u32 v90, {CNTB}, v90")
    for i in range(16):
        e(f"    v_mov_b32 v{64+i}, 0")
    e("    s_cmp_lt_u32 s3, 13")
    e("    s_cbranch_scc1 A_EDGES")
    e("    s_cmp_lg_u32 s3, 13")
    e("    s_cbranch_scc1 A_OUT")
    e(f"    s_mov_b32 s76, {SPINMAX}")
    e("    v_mov_b32 v2, 0")
    e("A_NPOLL:")
    e(f"    buffer_load_dwordx2 v[4:5], v2, {R(S_DBG)}, 0 offen {SCF}")
    e("    s_sub_u32 s76, s76, 1")
    e("    s_cmp_eq_u32 s76, 0")
    e("    s_waitcnt vmcnt(0)")
    e("    s_cbranch_scc1 A_NGOT")
    e("    v_cmp_eq_u32 vcc, 0, v4")
    e("    s_cbranch_vccnz A_NPOLL")
    e("A_NGOT:")
    e(f"    ds_write_b64 v2, v[4:5] offset:{K1_NON}")
    e("    s_branch A_OUT")
    e("A_EDGES:")
    e("    s_mov_b64 exec, s[72:73]")
    e("    s_mov_b32 s70, 0xffff0000")
    stamp("a_setup")
    e("    s_cmp_ge_u32 s3, 4")
    e("    s_cbranch_scc1 A_W2")
    e("    s_waitcnt vmcnt(5)")
    e("    s_branch A_W5")
    e("A_W2:")
    e("    s_waitcnt vmcnt(2)")
    e("A_W5:")
    stamp("a_dst")
    for k in range(4):
        e(f"    v_mul_u32_u24 v{24+k}, {TM}, v{12+k}")
        e(f"    v_add_u32 v2, {k}, v8")
        e(f"    v_lshrrev_b32 v{28+k}, 20, v{24+k}")
        e(f"    v_cmp_ne_u32 s[{52+2*k}:{53+2*k}], v{12+k}, v2")
        e(f"    v_lshlrev_b32 v{36+k}, 2, v{28+k}")
    for k in range(4):
        e(f"    s_mov_b64 exec, s[{52+2*k}:{53+2*k}]")
        e(f"    ds_add_rtn_u32 v{32+k}, v{36+k}, v1 offset:{K1_CNT}")
    e("    s_mov_b64 exec, s[72:73]")
    for k in range(4):
        e(f"    v_lshrrev_b32 v{24+k}, 12, v{24+k}")
        e(f"    v_mul_u32_u24 v{28+k}, {K1_LS}, v{28+k}")
        e(f"    v_bfi_b32 v{24+k}, 15, v{12+k}, v{24+k}")
    e("    s_mov_b64 s[60:61], 0")
    for k in range(4):
        e(f"    s_mov_b64 exec, s[{52+2*k}:{53+2*k}]")
        e(f"    s_waitcnt lgkmcnt(3)")
        e(f"    v_cmp_gt_u32 vcc, {SLOTCAP}, v{32+k}")
        e(f"    v_and_b32 v2, 7, v{32+k}")
        e(f"    v_lshrrev_b32 v3, 3, v{32+k}")
        e(f"    s_andn2_b64 s[{52+2*k}:{53+2*k}], exec, vcc")
        e(f"    s_or_b64 s[60:61], s[60:61], s[{52+2*k}:{53+2*k}]")
        e(f"    s_mov_b64 s[{4+2*k}:{5+2*k}], vcc")
        e("    s_mov_b64 exec, vcc")
        e(f"    v_lshl_add_u32 v2, v2, 4, v{28+k}")
        e(f"    v_lshl_add_u32 v{36+k}, v3, 2, v2")
        e("    v_add_u32 v5, v3, v2")
        e(f"    ds_write_b8 v5, v{24+k} offset:12")
    e("    s_mov_b64 exec, s[72:73]")
    e("    s_waitcnt vmcnt(0)")
    stamp("a_all")
    for k in range(4):
        if k % 2 == 0:
            e(f"    v_lshl_or_b32 v{16+k}, v{20+k//2}, 16, v{16+k}")
        else:
            e(f"    v_and_or_b32 v{16+k}, v{20+k//2}, s70, v{16+k}")
    for k in range(4):
        e(f"    s_mov_b64 exec, s[{4+2*k}:{5+2*k}]")
        e(f"    ds_write_b32 v{36+k}, v{16+k}")
    e("    s_cmp_eq_u64 s[60:61], 0")
    e("    s_cbranch_scc1 A_OUT")
    e("    s_lshl_b32 s62, s2, 15")
    for k in range(4):
        e(f"    s_mov_b64 exec, s[{52+2*k}:{53+2*k}]")
        e(f"    s_cbranch_execz A_OV{k}")
        e(f"    v_mov_b32 v2, {K1_OVC}")
        e(f"    ds_add_rtn_u32 v3, v2, v1 offset:{K1_CNT}")
        e(f"    v_mov_b32 v4, v{16+k}")
        e(f"    v_mov_b32 v5, v{12+k}")
        e("    s_waitcnt lgkmcnt(0)")
        e(f"    v_cmp_gt_u32 vcc, {NINL}, v3")
        e("    v_lshlrev_b32 v3, 3, v3")
        e("    s_andn2_b64 s[76:77], exec, vcc")
        e("    s_mov_b64 exec, vcc")
        e(f"    ds_write_b64 v3, v[4:5] offset:{K1_OVT}")
        e("    s_mov_b64 exec, s[76:77]")
        e(f"    s_cbranch_execz A_OV{k}")
        e(f"    buffer_store_dwordx2 v[4:5], v3, {R(S_OVF)}, s62 offen {SC}")
        e("    s_waitcnt vmcnt(0)")
        e(f"A_OV{k}:")
    e("A_OUT:")
    e("    s_mov_b64 exec, -1")
    e("    v_lshrrev_b32 v2, 3, v0")
    e(f"    v_mul_u32_u24 v4, {K1_LS}, v2")
    e("    v_lshl_add_u32 v4, v10, 4, v4")
    e(f"    v_add_u32 v5, {128*K1_LS}, v4")
    e("    v_lshlrev_b32 v7, 15, v2")
    e("    v_lshl_add_u32 v7, v10, 4, v7")
    if I("skew", 1):
        e(f"    v_mul_u32_u24 v3, {I('skew', 1)}, v2")
        e("    v_add_u32 v3, s2, v3")
        e("    v_and_b32 v3, 255, v3")
        e("    v_lshl_add_u32 v7, v3, 7, v7")
        e("    s_mov_b32 s62, 0")
        e(f"    s_mov_b32 s63, {128*32768}")
    else:
        e("    s_lshl_b32 s62, s2, 7")
        e(f"    s_add_u32 s63, s62, {128*32768}")
    e("    s_mov_b32 s64, 0xffffff")
    e("    v_and_b32 v6, 6, v10")
    e("    s_waitcnt lgkmcnt(0)")
    stamp("a_pre2")
    e("    s_barrier")
    stamp("a_bar2")
    e(f"    ds_read_u8 v127, v10 offset:{K1_NON}")
    e("    ds_read2_b32 v[12:13], v4 offset0:0 offset1:1")
    e("    ds_read2_b32 v[14:15], v4 offset0:2 offset1:3")
    e("    ds_read2_b32 v[16:17], v5 offset0:0 offset1:1")
    e("    ds_read2_b32 v[18:19], v5 offset0:2 offset1:3")
    e(f"    ds_read_u16 v91, v6 offset:{K1_NON}")
    e("    v_mov_b32 v8, 0")
    e(f"    ds_read_b32 v125, v8 offset:{K1_NON}")
    e("    s_waitcnt lgkmcnt(6)")
    e("    v_lshlrev_b32 v20, 24, v127")
    e("    s_waitcnt lgkmcnt(4)")
    e("    v_and_or_b32 v15, v15, s64, v20")
    e(f"    buffer_store_dwordx4 v[12:15], v7, {R(S_WS)}, s62 offen {SC}")
    e("    s_waitcnt lgkmcnt(2)")
    e("    v_and_or_b32 v19, v19, s64, v20")
    e(f"    buffer_store_dwordx4 v[16:19], v7, {R(S_WS)}, s63 offen {SC}")
    e("    s_cmp_lg_u32 s3, 15")
    e("    s_cbranch_scc1 A_FIN")
    e("    s_mov_b64 exec, 0xff")
    e("    v_lshlrev_b32 v2, 3, v10")
    e(f"    ds_read_b64 v[24:25], v2 offset:{K1_OVT}")
    e(f"    ds_read_b32 v22, v8 offset:{K1_CNT+K1_OVC}")
    e("    v_cmp_eq_u32 vcc, 7, v10")
    e("    s_lshl_b32 s62, s2, 6")
    e(f"    s_add_u32 s62, s62, {WS_OVT}")
    e("    s_waitcnt lgkmcnt(0)")
    e("    v_cndmask_b32 v24, v24, v22, vcc")
    e("    v_lshl_or_b32 v25, v91, 16, v25")
    e(f"    buffer_store_dwordx2 v[24:25], v2, {R(S_WS)}, s62 offen {SC}")
    e("A_FIN:")
    e("    s_mov_b64 exec, -1")
    stamp("a_st")
    e("    s_cmp_ge_u32 s3, 4")
    e("    s_cbranch_scc1 A_TD")
    e("    v_cmp_eq_u32 vcc, v120, v123")
    e("    v_lshl_or_b32 v121, v122, 16, v121")
    e("    s_and_b64 s[12:13], s[12:13], vcc")
    decode_key(121, 0, 0, 6)
    decode_data(121, 0, 0, 6)
    e("A_TD:")
    e("    v_lshlrev_b32 v9, 4, v0")
    e("    v_lshlrev_b32 v31, 3, v0")
    e("    s_waitcnt lgkmcnt(0)")
    e("    v_mov_b32 v120, v91")
    e("    s_cmp_lt_u32 s3, 13")
    e("    s_cbranch_scc1 G1_NOW")
    e(f"    v_subrev_u32 v2, {13*64}, v0")
    e("    v_lshlrev_b32 v2, 4, v2")
    e(f"    v_cmp_gt_u32 vcc, 2048, v2")
    e(f"    v_add_u32 v2, {WL}, v2")
    e("    s_waitcnt vmcnt(0)")
    e("    ds_write_b128 v2, v[100:103]")
    e("    ds_write_b128 v2, v[104:107] offset:3072")
    e("    s_and_saveexec_b64 s[76:77], vcc")
    e("    ds_write_b128 v2, v[108:111] offset:6144")
    e("    s_mov_b64 exec, -1")
    e("G1_NOW:")
    if ACKW:
        e("    s_waitcnt vmcnt(0)")
    stamp("g1_ack")
    if ACKW >= 2:
        e("    s_barrier")
    if ACKW >= 3:
        e(f"    s_mov_b32 s70, {WS_OVT}")
        e(f"    s_mov_b32 s74, {WS_OVT + 8192}")
        e(f"    s_mov_b32 s75, {SPINMAX}")
        e("P_POLL:")
        e(f"    buffer_load_dwordx2 v[116:117], v31, {R(S_WS)}, s70 offen {SC}")
        e(f"    buffer_load_dwordx2 v[118:119], v31, {R(S_WS)}, s74 offen {SC}")
        e("    s_sub_u32 s75, s75, 1")
        e("    s_cmp_eq_u32 s75, 0")
        e("    s_waitcnt vmcnt(0)")
        e("    s_cbranch_scc1 P_DONE")
        e("    v_cmp_ne_u32_sdwa vcc, v117, v120 src0_sel:WORD_1 src1_sel:DWORD")
        e("    v_cmp_ne_u32_sdwa s[76:77], v119, v120 src0_sel:WORD_1 src1_sel:DWORD")
        e("    s_or_b64 vcc, vcc, s[76:77]")
        e("    s_cbranch_scc1 P_POLL")
        e("P_DONE:")
    stamp("g1_exit")
    if TORN:
        e("    s_mov_b32 s16, 0")
        e("    s_mov_b32 s17, 0")

    e("COLLECT:")
    e("    s_lshl_b32 s68, s2, 15")
    e("    s_add_u32 s69, s68, 16384")
    e(f"    s_mov_b32 s70, {WS_OVT}")
    e(f"    s_mov_b32 s74, {WS_OVT + 8192}")
    e(f"    buffer_load_dwordx4 v[12:15], v9, {R(S_WS)}, s68 offen {LD_SL}")
    e(f"    buffer_load_dwordx4 v[16:19], v9, {R(S_WS)}, s69 offen {LD_SL}")
    e(f"    buffer_load_dwordx2 v[116:117], v31, {R(S_WS)}, s70 offen {SC}")
    e(f"    buffer_load_dwordx2 v[118:119], v31, {R(S_WS)}, s74 offen {SC}")
    e(f"    s_mov_b64 {PEND(6)}, s[12:13]")
    e(f"    s_mov_b64 {PEND(7)}, 0")
    e(f"    s_mov_b32 s75, {SPINMAX}")
    e("    s_movk_i32 s11, 0xffff")
    e(f"    s_mov_b64 exec, {PEND(6)}")
    e("    ds_add_rtn_u32 v38, v46, v1")
    e("    s_mov_b64 exec, -1")
    for i in range(2):
        base = 12 + 4 * i
        e(f"    s_waitcnt vmcnt({3-i})")
        e(f"C_CHK{i}:")
        e(f"    v_cmp_ne_u32_sdwa vcc, v{base+3}, v127 src0_sel:BYTE_3 src1_sel:DWORD")
        e(f"    s_cbranch_vccnz C_RETRY{i}")
        e(f"C_OK{i}:")
        if i == 0:
            stamp("b_lines")
        else:
            stamp("b_lines1")
        for k in range(3):
            e(f"    v_cmp_ne_u16 {PEND(3*i+k)}, s11, v{base+k}")
        for k in range(3):
            decode_key(base + k, base + 3, k, 3 * i + k)
        for k in range(3):
            s = 3 * i + k
            e(f"    s_mov_b64 exec, {PEND(s)}")
            e(f"    ds_add_rtn_u32 v{32+s}, v{40+s}, v1")
        e("    s_mov_b64 exec, -1")
        for k in range(3):
            decode_data(base + k, base + 3, k, 3 * i + k)
    e("    s_waitcnt vmcnt(0)")
    e("C_CHK2:")
    e("    v_cmp_ne_u32_sdwa vcc, v117, v120 src0_sel:WORD_1 src1_sel:DWORD")
    e("    v_cmp_ne_u32_sdwa s[76:77], v119, v120 src0_sel:WORD_1 src1_sel:DWORD")
    e("    s_or_b64 vcc, vcc, s[76:77]")
    e("    s_cbranch_scc1 C_RETRY2")
    e("C_OK2:")
    e("    v_and_b32 v117, 0xffff, v117")
    e("    v_and_b32 v119, 0xffff, v119")
    e(f"    v_mul_u32_u24 v2, {TM}, v117")
    e(f"    v_mul_u32_u24 v3, {TM}, v119")
    e("    v_cmp_eq_u32 s[74:75], 7, v10")
    e(f"    v_cmp_lt_u32 s[72:73], {NINL}, v116")
    e(f"    v_cmp_lt_u32 vcc, {NINL}, v118")
    e("    v_lshrrev_b32 v2, 20, v2")
    e("    v_lshrrev_b32 v3, 20, v3")
    e("    v_cmp_eq_u32 s[4:5], s2, v2")
    e("    v_cmp_eq_u32 s[6:7], s2, v3")
    e("    s_and_b64 s[72:73], s[72:73], s[74:75]")
    e("    s_and_b64 vcc, vcc, s[74:75]")
    e("    s_lshr_b64 s[72:73], s[72:73], 1")
    e("    s_or_b64 s[72:73], s[72:73], vcc")
    e("    s_mov_b32 s68, 0")
    e("    s_mov_b32 s69, 0")
    e("    s_mov_b32 s70, 0")
    e("    s_or_b64 s[76:77], s[4:5], s[6:7]")
    e("    s_or_b64 s[76:77], s[76:77], s[72:73]")
    e("    s_cbranch_scc1 EXTRA")
    e("CDONE:")
    e("    s_waitcnt lgkmcnt(0)")
    e("    s_barrier")
    stamp2("b_bar1", "")
    e("    ds_read_b128 v[4:7], v90")
    prefetch(PF4)
    e("    s_lshl_b32 s76, s3, 2")
    e("    s_add_u32 s76, s76, 3")
    e("    s_waitcnt lgkmcnt(0)")
    e("    v_add_u32 v5, v4, v5")
    e("    v_add_u32 v6, v5, v6")
    e("    v_add_u32 v7, v6, v7")
    e("    s_nop 1")
    e("    v_and_b32_dpp v28, v7, v95 quad_perm:[0,0,0,0] row_mask:0xf bank_mask:0xf")
    e("    v_and_b32_dpp v29, v7, v96 quad_perm:[1,1,1,1] row_mask:0xf bank_mask:0xf")
    e("    v_and_b32_dpp v30, v7, v97 quad_perm:[2,2,2,2] row_mask:0xf bank_mask:0xf")
    e("    v_add3_u32 v28, v28, v29, v30")
    e("    v_add_u32 v7, v28, v7")
    e("    v_lshl_add_u32 v28, v28, 2, v98")
    e(f"    v_cmp_lt_u32 vcc, {CAPT}, v7")
    e("    v_lshl_add_u32 v29, v4, 2, v28")
    e("    v_lshl_add_u32 v30, v5, 2, v28")
    e("    v_lshl_add_u32 v31, v6, 2, v28")
    e("    v_readlane_b32 s74, v7, s76")
    e("    ds_write_b128 v90, v[28:31] offset:1024")
    for s in range(8):
        e(f"    s_mov_b64 exec, {PEND(s)}")
        e(f"    ds_read_b32 v{20+s}, v{40+s} offset:1024")
    e("    s_mov_b64 exec, -1")
    e(f"    s_min_u32 s74, s74, {CAPT}")
    e("    v_and_b32 v2, 63, v0")
    e("    v_add_u32 v2, s74, v2")
    e("    s_add_u32 s76, s74, 31")
    e("    s_andn2_b32 s76, s76, 31")
    e(f"    s_mul_i32 s77, s3, {TSTR}")
    e(f"    s_add_u32 s77, s77, {LISTS}")
    e("    s_cbranch_vccnz SLOWW")
    for s in range(8):
        e(f"    s_mov_b64 exec, {PEND(s)}")
        e("    s_waitcnt lgkmcnt(7)")
        e(f"    v_lshl_add_u32 v{20+s}, v{32+s}, 2, v{20+s}")
        e(f"    ds_write2st64_b32 v{20+s}, v{48+s}, v{56+s} offset0:0 offset1:5")
        e(f"    s_mov_b64 {PEND(s)}, 0")
    e("WDONE:")
    e("    s_mov_b64 exec, -1")
    e("    v_cmp_gt_u32 vcc, s76, v2")
    e("    v_lshl_add_u32 v2, v2, 2, s77")
    e(f"    v_mov_b32 v3, {PADV}")
    e(f"    v_mov_b32 v4, {MORE}")
    e("    s_mov_b64 exec, vcc")
    e("    ds_write2st64_b32 v2, v3, v3 offset0:0 offset1:5")
    e("    s_mov_b64 exec, -1")
    e("    s_waitcnt lgkmcnt(0)")
    e("    s_barrier")
    stamp2("b_bar2", "")
    e("    ds_read_b32 v8, v4")

    def next_k():
        e("    s_mov_b32 s8, 1")
        e("    s_cmp_gt_i32 s9, s10")
        e("    s_addc_u32 s8, s8, 0")
        e("    s_lshl_b32 s11, s10, 1")
        e("    s_cmp_gt_i32 s9, s11")
        e("    s_addc_u32 s8, s8, 0")
        e("    s_add_i32 s11, s11, s10")
        e("    s_cmp_gt_i32 s9, s11")
        e("    s_addc_u32 s8, s8, 0")
        e("    s_min_i32 s8, s8, s9")
        e("    s_sub_i32 s9, s9, s8")
        e("    s_sub_i32 s10, s10, 1")
        e("    s_lshl_b32 s11, s8, 5")

    def read_recs(adv):
        e("    ds_read2_b32 v[100:101], v93 offset0:0 offset1:8")
        e("    ds_read2_b32 v[102:103], v93 offset0:16 offset1:24")
        e("    ds_read_b128 v[104:107], v94")
        e("    ds_read_b128 v[108:111], v94 offset:16")
        e(f"    v_add_u32 v93, {adv}, v93")
        e(f"    v_add_u32 v94, {adv}, v94")

    def dma(i):
        e(f"    buffer_load_dwordx4 v{100+i}, {R(S_GAT)}, 0 offen offset:{1024*i} lds")

    def addr():
        for i in range(4):
            e(f"    v_add_u32 v{100+i}, v{100+i}, v{80+i}")

    def build_b(w):
        for j in range(8):
            e(f"    v_bfe_i32 v{32+j}, v{104+j}, v92, {w}")
        for j in range(8):
            e(f"    v_and_b32 v{32+j}, v{32+j}, v{104+j}")
        for j in range(4):
            e(f"    v_perm_b32 v{112+j}, v{32+2*j+1}, v{32+2*j}, s1")

    def mfmas():
        for t in range(4):
            e(f"    v_mfma_f32_16x16x32_bf16 v[{64+4*t}:{67+4*t}], v[{12+4*t}:{15+4*t}], v[112:115], v[{64+4*t}:{67+4*t}]")

    e("MAIN:")
    if PRIO == 1:
        for g in range(1, 4):
            e(f"    s_cmp_lt_u32 s3, {4*g}")
            e("    s_cbranch_scc1 PRIOD")
            e(f"    s_setprio {g}")
        e("PRIOD:")
    e("    s_cmp_eq_u32 s74, 0")
    e("    s_cbranch_scc1 MAINDONE")
    e("    v_mov_b32 v93, v88")
    e("    v_mov_b32 v94, v89")
    read_recs(128)
    e("    s_add_u32 s9, s74, 7")
    e("    s_lshr_b32 s9, s9, 3")
    e("    s_sub_i32 s9, s9, 4")
    e("    s_max_i32 s9, s9, 0")
    e(f"    s_mov_b32 s10, {NB-1}")
    e("    s_waitcnt lgkmcnt(2)")
    addr()
    for i in range(4):
        dma(i)
    next_k()
    e("    s_waitcnt lgkmcnt(0)")
    build_b("1")
    read_recs("s11")
    e("LOOP:")
    e("    v_cmp_gt_u32 vcc, s8, v11")
    if PRIO == 3:
        e("    s_setprio 3")
    e("    s_waitcnt vmcnt(0)")
    for t in range(4):
        for u in range(2):
            e(f"    ds_read_b64_tr_b16 v[{12+4*t+2*u}:{13+4*t+2*u}], v{84+t} offset:{512*u}")
    e("    s_cmp_eq_u32 s8, 0")
    e("    v_cndmask_b32 v91, 0, v1, vcc")
    e("    s_waitcnt lgkmcnt(8)")
    addr()
    e("    s_waitcnt lgkmcnt(0)")
    e("    s_cbranch_scc1 LAST")
    dma(0)
    e("    s_cmp_eq_u32 s8, 1")
    e("    s_cbranch_scc1 DMAD")
    dma(1)
    e("    s_cmp_eq_u32 s8, 2")
    e("    s_cbranch_scc1 DMAD")
    dma(2)
    e("    s_cmp_eq_u32 s8, 3")
    e("    s_cbranch_scc1 DMAD")
    dma(3)
    e("DMAD:")
    if PRIO == 2:
        e("    s_lshr_b32 s11, s3, 2")
        e("    s_add_u32 s11, s11, s10")
        e("    s_and_b32 s11, s11, 3")
        e("    s_setprio 0")
        for g in range(1, 4):
            e(f"    s_cmp_lt_u32 s11, {g}")
            e("    s_cbranch_scc1 PRIOD")
            e(f"    s_setprio {g}")
        e("PRIOD:")
    if PRIO == 3:
        e("    s_setprio 0")
    mfmas()
    next_k()
    build_b("v91")
    read_recs("s11")
    e("    s_branch LOOP")
    e("LAST:")
    mfmas()
    e("MAINDONE:")
    e("    s_waitcnt lgkmcnt(0)")
    e("    v_readfirstlane_b32 s75, v8")
    e("    s_cmp_eq_u32 s75, 0")
    e("    s_cbranch_scc1 EPI")
    e("    s_or_b32 s71, s71, 2")
    e("    s_barrier")
    zero_b_counters((WL - CNTB) // 4)
    e("    s_waitcnt lgkmcnt(0)")
    e("    s_barrier")
    for s in range(7):
        e(f"    s_mov_b64 exec, {PEND(s)}")
        e(f"    ds_add_rtn_u32 v{32+s}, v{40+s}, v1")
    e("EXTRA:")
    for m, r in (("s[4:5]", 116), ("s[6:7]", 118)):
        e(f"    s_andn2_b64 exec, {m}, {PEND(7)}")
        e(f"    s_andn2_b64 {m}, {m}, exec")
        e(f"    s_or_b64 {PEND(7)}, {PEND(7)}, exec")
        decode_full(r, r + 1, 7)
    e("    s_mov_b64 exec, -1")
    e("    s_or_b64 s[76:77], s[4:5], s[6:7]")
    e("    s_cbranch_scc1 OVFULL")
    e("    s_mov_b32 s75, 0")
    e("OVL:")
    e("    s_cmp_lt_u32 s68, s69")
    e("    s_cbranch_scc1 OVLOAD")
    e("    s_cmp_eq_u64 s[72:73], 0")
    e("    s_cbranch_scc1 OVDONE")
    e("    s_ff1_i32_b64 s76, s[72:73]")
    e("    s_bitset0_b64 s[72:73], s76")
    e("    s_or_b32 s77, s76, 7")
    e("    v_readlane_b32 s68, v116, s77")
    e("    v_readlane_b32 s69, v118, s77")
    e("    s_bitcmp1_b32 s76, 0")
    e("    s_cselect_b32 s69, s69, s68")
    e(f"    s_min_u32 s69, s69, {4*NTHR}")
    e("    s_and_b32 s77, s76, 1")
    e("    s_lshl_b32 s77, s77, 7")
    e("    s_lshr_b32 s76, s76, 3")
    e("    s_add_u32 s76, s76, s77")
    e("    s_lshl_b32 s77, s3, 3")
    e("    s_add_u32 s76, s76, s77")
    e("    s_lshl_b32 s70, s76, 15")
    e(f"    s_mov_b32 s68, {NINL}")
    e("OVLOAD:")
    e("    v_add_u32 v4, s75, v0")
    e("    v_and_b32 v4, 63, v4")
    e("    v_add_u32 v4, s68, v4")
    e("    v_lshlrev_b32 v5, 3, v4")
    e(f"    buffer_load_dwordx2 v[28:29], v5, {R(S_OVF)}, s70 offen {SC}")
    e("    s_waitcnt vmcnt(0)")
    e(f"    v_mul_u32_u24 v30, {TM}, v29")
    e("    v_lshrrev_b32 v31, 20, v30")
    e("    v_cmp_gt_u32 vcc, s69, v4")
    e("    v_cmp_eq_u32 s[76:77], s2, v31")
    e("    s_and_b64 vcc, s[76:77], vcc")
    e(f"    s_and_b64 s[76:77], vcc, {PEND(7)}")
    e("    s_cbranch_scc1 OVFULL")
    e(f"    s_or_b64 {PEND(7)}, {PEND(7)}, vcc")
    e("    s_add_u32 s68, s68, 64")
    e("    s_add_u32 s75, s75, 16")
    e("    s_mov_b64 exec, vcc")
    decode_full(28, 29, 7)
    e("    s_mov_b64 exec, -1")
    e("    s_branch OVL")
    e("OVFULL:")
    e(f"    v_mov_b32 v2, {MORE}")
    e("    ds_write_b32 v2, v1")
    e("OVDONE:")
    e(f"    s_mov_b64 exec, {PEND(7)}")
    e("    ds_add_rtn_u32 v39, v47, v1")
    e("    s_mov_b64 exec, -1")
    e("    s_branch CDONE")
    for i in range(2):
        base = 12 + 4 * i
        e(f"C_RETRY{i}:")
        if TORN:
            for h in ("vcc_lo", "vcc_hi"):
                for bb in range(4):
                    n = len(L)
                    e(f"    s_bfe_u32 s76, {h}, {(8 << 16) | (8*bb)}")
                    e("    s_cmp_eq_u32 s76, 0")
                    e(f"    s_cbranch_scc1 TN{n}")
                    e("    s_cmp_eq_u32 s76, 0xff")
                    e(f"    s_cbranch_scc1 TN{n}")
                    e("    s_add_u32 s16, s16, 1")
                    e("    s_cmp_eq_u32 s76, 0x0f")
                    e(f"    s_cbranch_scc1 TN{n}")
                    e("    s_cmp_eq_u32 s76, 0xf0")
                    e(f"    s_cbranch_scc1 TN{n}")
                    e("    s_add_u32 s17, s17, 1")
                    e(f"TN{n}:")
            e("    s_add_u32 s16, s16, 0x10000")
        e(f"    buffer_load_dwordx4 v[{base}:{base+3}], v9, {R(S_WS)}, s{68+i} offen {LD_SL}")
        e("    s_sub_u32 s75, s75, 1")
        e("    s_cmp_eq_u32 s75, 0")
        e("    s_waitcnt vmcnt(0)")
        e(f"    s_cbranch_scc0 C_CHK{i}")
        e("    s_mov_b32 s75, 1000")
        e(f"    s_branch C_OK{i}")
    e("C_RETRY2:")
    e(f"    buffer_load_dwordx2 v[116:117], v31, {R(S_WS)}, s70 offen {SC}")
    e(f"    buffer_load_dwordx2 v[118:119], v31, {R(S_WS)}, s74 offen {SC}")
    e("    s_sub_u32 s75, s75, 1")
    e("    s_cmp_eq_u32 s75, 0")
    e("    s_waitcnt vmcnt(0)")
    e("    s_cbranch_scc0 C_CHK2")
    e("    s_branch C_OK2")
    e("SLOWW:")
    e("    s_waitcnt lgkmcnt(0)")
    for s in range(8):
        e(f"    s_mov_b64 exec, {PEND(s)}")
        e(f"    v_lshl_add_u32 v{20+s}, v{32+s}, 2, v{20+s}")
        e(f"    v_subrev_u32 v3, s0, v{40+s}")
        e("    v_lshrrev_b32 v3, 6, v3")
        e(f"    v_mul_u32_u24 v3, {TSTR}, v3")
        e(f"    v_add_u32 v3, {LISTS + CAPT*4}, v3")
        e(f"    v_cmp_lt_u32 vcc, v{20+s}, v3")
        e(f"    s_andn2_b64 {PEND(s)}, exec, vcc")
        e("    s_mov_b64 exec, vcc")
        e(f"    ds_write2st64_b32 v{20+s}, v{48+s}, v{56+s} offset0:0 offset1:5")
    e("    s_mov_b64 exec, -1")
    e(f"    v_mov_b32 v3, {MORE}")
    e("    ds_write_b32 v3, v1")
    e("    s_branch WDONE")

    e("EPI:")
    if PRIO:
        e("    s_setprio 0")
    stamp2("h1_done", "h2_done")
    e("    s_lshl_b32 s76, s2, 4")
    e("    s_add_u32 s76, s76, s3")
    e("    s_mul_i32 s77, s76, 50006")
    e("    s_lshr_b32 s77, s77, 12")
    e("    v_subrev_u32 v2, s77, v92")
    e("    v_and_b32 v2, 15, v2")
    e("    v_add_u32 v2, s77, v2")
    e(f"    v_mul_u32_u24 v3, {TM}, v2")
    e("    v_lshrrev_b32 v3, 16, v3")
    e("    v_cmp_eq_u32 s[52:53], s76, v3")
    e("    v_lshlrev_b32 v2, 7, v2")
    e("    v_lshl_add_u32 v2, v11, 4, v2")
    e("    v_and_b32 v5, 1, v11")
    e("    v_cmp_eq_u32 s[54:55], 1, v5")
    for t in range(4):
        e(f"    v_cvt_pk_bf16_f32 v{12+2*t}, v{64+4*t}, v{65+4*t}")
        e(f"    v_cvt_pk_bf16_f32 v{13+2*t}, v{66+4*t}, v{67+4*t}")
    e("    s_mov_b64 exec, s[54:55]")
    e("    v_swap_b32 v12, v14")
    e("    v_swap_b32 v13, v15")
    e("    v_swap_b32 v16, v18")
    e("    v_swap_b32 v17, v19")
    e("    s_bitcmp1_b32 s71, 0")
    e("    s_cbranch_scc1 FINAL")
    e("    s_mov_b64 exec, s[52:53]")
    e(f"    buffer_store_dwordx4 v[12:15], v2, {R(S_STO)}, 0 offen {SCH}")
    e(f"    buffer_store_dwordx4 v[16:19], v2, {R(S_STO)}, 0 offen offset:64 {SCH}")
    e("    s_mov_b64 exec, -1")
    stamp("h1_st")
    srd(S_GAT, 18, 19, TABBYTES + 3072, WS_H1 - 3072)
    e("    s_or_b32 s71, s71, 1")
    zero_b_counters(256)
    for i in range(16):
        e(f"    v_mov_b32 v{64+i}, 0")
    e("    v_lshlrev_b32 v9, 4, v0")
    e("    v_lshlrev_b32 v31, 3, v0")
    e("    s_waitcnt lgkmcnt(0)")
    grid_barrier("g2", 1, 0, 0)
    e("    v_mov_b32 v8, 0")
    e("    s_bitcmp0_b32 s71, 1")
    e("    s_cbranch_scc1 MAIN")
    e("    s_branch COLLECT")
    e("FINAL:")
    e("    s_mov_b64 exec, -1")
    srd(S_STO, 14, 15, TABBYTES)
    e("    v_bfe_u32 v7, v0, 2, 2")
    e("    v_lshl_add_u32 v6, v11, 3, v7")
    e("    v_lshlrev_b32 v6, 7, v6")
    e("    v_and_b32 v7, 3, v0")
    e("    v_lshl_add_u32 v6, v7, 4, v6")
    e(f"    v_add_u32 v6, {WL}, v6")
    for s in range(2):
        for t in range(4):
            for u in range(2):
                off = (32 * s + 4 * u) * 128 + 64 * (t >> 1) + 8 * (t & 1)
                r = 80 + (s * 4 + t) * 4 + 2 * u
                e(f"    ds_read_b64_tr_b16 v[{r}:{r+1}], v6 offset:{off}")
    e("    s_waitcnt lgkmcnt(8)")
    for t in range(4):
        e(f"    v_mfma_f32_16x16x32_bf16 v[{64+4*t}:{67+4*t}], v[{80+4*t}:{83+4*t}], v[12:15], 0")
    e("    s_waitcnt lgkmcnt(0)")
    for t in range(4):
        e(f"    v_mfma_f32_16x16x32_bf16 v[{64+4*t}:{67+4*t}], v[{96+4*t}:{99+4*t}], v[16:19], v[{64+4*t}:{67+4*t}]")
    e("    s_nop 7")
    e("    s_nop 1")
    for t in range(4):
        e(f"    v_cvt_pk_bf16_f32 v{12+2*t}, v{64+4*t}, v{65+4*t}")
        e(f"    v_cvt_pk_bf16_f32 v{13+2*t}, v{66+4*t}, v{67+4*t}")
    e("    s_mov_b64 exec, s[52:53]")
    e(f"    buffer_store_dwordx4 v[12:15], v2, {R(S_STO)}, 0 offen {ST_OUT}")
    e(f"    buffer_store_dwordx4 v[16:19], v2, {R(S_STO)}, 0 offen offset:64 {ST_OUT}")
    stamp_out()
    e("END:")
    e("    s_endpgm")


SPIN = OPT.get("spin")
if SPIN:
    e(f"; @launch kernel={NAME} grid=(256,1,1) block=(1024,1,1) lds={LDS}")
    e("; @launch kernel=sgc_spin_kernel grid=(1,1,1) block=(64,1,1) lds=0")
else:
    e(f"; @launch grid=(256,1,1) block=(1024,1,1) lds={LDS}")
e('.amdgcn_target "amdgcn-amd-amdhsa--gfx950"')
e(".text")
body()
if SPIN:
    na, nb_, mode, mult, wlo, whi = (SPIN.split(",") + ["0", "15"])[:6]
    wlo, whi = int(wlo), int(whi)
    ia, ib, mode, mult = STL.index(na), STL.index(nb_), int(mode), int(mult)
    e(".globl sgc_spin_kernel")
    e(".p2align 8")
    e(".type sgc_spin_kernel,@function")
    e("sgc_spin_kernel:")
    e("    s_memrealtime s[30:31]")
    e("    s_cmp_ge_u32 s2, 1")
    e("    s_cbranch_scc1 SP_END")
    e("    s_load_dwordx8 s[12:19], s[0:1], 32")
    e("    v_lshlrev_b32 v1, 6, v0")
    e("    v_mov_b32 v4, 0x7fffffff")
    e("    v_mov_b32 v5, %s" % ("0x80000000" if mode == 0 else "0x7fffffff" if mode == 1 else "0"))
    e("    s_waitcnt lgkmcnt(0)")
    srd(20, 18, 19, 1 << 20, WS_STAMP)
    e("    s_mov_b32 s24, 0")
    e("SP_RD:")
    e(f"    buffer_load_dword v2, v1, s[20:23], s24 offen offset:{4*ia}")
    e(f"    buffer_load_dword v3, v1, s[20:23], s24 offen offset:{4*ib}")
    e("    s_add_u32 s24, s24, 4096")
    e("    s_cmp_lt_u32 s24, 0x40000")
    e("    s_waitcnt vmcnt(0)")
    e("    v_subrev_u32 v2, s30, v2")
    e("    v_subrev_u32 v3, s30, v3")
    e("    v_min_i32 v4, v4, v2")
    e("    %s v5, v5, v3" % ("v_max_i32" if mode == 0 else "v_min_i32" if mode == 1 else "v_add_u32"))
    e("    s_cbranch_scc1 SP_RD")
    e("    s_mov_b32 s26, 0x7fffffff")
    e("    s_mov_b32 s27, %s" % ("0x80000000" if mode == 0 else "0x7fffffff" if mode == 1 else "0"))
    e("    s_nop 1")
    for l in range(64):
        e(f"    v_readlane_b32 s28, v4, {l}")
        e(f"    v_readlane_b32 s29, v5, {l}")
        e("    s_min_i32 s26, s26, s28")
        if wlo <= (l & 15) <= whi:
            e("    %s s27, s27, s29" % ("s_max_i32" if mode == 0 else "s_min_i32" if mode == 1 else "s_add_u32"))
    if mode == 2:
        e("    s_ashr_i32 s27, s27, %d" % (8 + (whi - wlo + 1).bit_length() - 1))
    if mode == 3:
        e("    s_mov_b32 s27, 0")
    e("    s_sub_i32 s26, s27, s26")
    e("    s_max_i32 s26, s26, 0")
    e("    s_min_i32 s26, s26, 20000")
    e(f"    s_mul_i32 s26, s26, {mult}")
    e("    s_add_u32 s26, s26, 10000")
    e("SP_LOOP:")
    e("    s_memrealtime s[28:29]")
    e("    s_waitcnt lgkmcnt(0)")
    e("    s_sub_u32 s28, s28, s30")
    e("    s_cmp_lt_u32 s28, s26")
    e("    s_cbranch_scc1 SP_LOOP")
    e("SP_END:")
    e("    s_endpgm")
e('.section .rodata,"a"')
if SPIN:
    e(".p2align 6")
    e(".amdhsa_kernel sgc_spin_kernel")
    e("  .amdhsa_next_free_vgpr 8")
    e("  .amdhsa_next_free_sgpr 40")
    e("  .amdhsa_accum_offset 8")
    e("  .amdhsa_group_segment_fixed_size 0")
    e("  .amdhsa_kernarg_size 64")
    e("  .amdhsa_user_sgpr_count 2")
    e("  .amdhsa_user_sgpr_kernarg_segment_ptr 1")
    e("  .amdhsa_system_sgpr_workgroup_id_x 1")
    e(".end_amdhsa_kernel")
e(".p2align 6")
e(f".amdhsa_kernel {NAME}")
e("  .amdhsa_next_free_vgpr 128")
e("  .amdhsa_next_free_sgpr 102")
e("  .amdhsa_accum_offset 128")
e("  .amdhsa_group_segment_fixed_size 0")
e("  .amdhsa_kernarg_size 64")
e("  .amdhsa_user_sgpr_count 2")
e("  .amdhsa_user_sgpr_kernarg_segment_ptr 1")
e("  .amdhsa_system_sgpr_workgroup_id_x 1")
e(".end_amdhsa_kernel")
open(OUT, "w").write("\n".join(L) + "\n")
```

```python
import sys

OUT = [a for a in sys.argv[1:] if not a.startswith("--")][0]
OPT = dict(a[2:].split("=") for a in sys.argv[1:] if a.startswith("--") and "=" in a)
NAME = "standalone__spectral_conv_sgc__graph_kernel"
DEFST = "start,a_bar1,a_bar2,g1_exit,b_lines,b_bar1,b_bar2,h1_done,h1_st,g2_exit,h2_done,end"
STL = OPT.get("st", DEFST if "--diag" in sys.argv else "").split(",")
STL = [s for s in STL if s]
DIAG = len(STL) > 0


def I(name, dflt):
    return int(OPT.get(name, dflt))


N = 50000
E = 850000
ET = 800000
TM = 5368
CH = 3128
NMAIN = CH // 4
TCH = 196
NTHR = NMAIN + TCH // 4
SLOTCAP = 24
NINL = 7
WS_SLOTS = 0
WS_OVT = 8 << 20
WS_FLAG = WS_OVT + 65536
WS_H1 = WS_OVT + (1 << 20)
WS_OVF = 16 << 20
OVF_STRIDE = 32768
WS_STAMP = 32 << 20
TABBYTES = N * 128
PADV = 0x40000000

K1_LS = 132
K1_CNT = 256 * K1_LS
K1_OVC = 1024
K1_OVT = K1_CNT + 4096
K1_NON = K1_OVT + 64
LISTS = 65536
CAPT = 320
TSTR = CAPT * 8
CNTB = LISTS + 16 * TSTR + 256
BASES = CNTB + 1024
MORE = BASES + 1024
WL = MORE + 64
LDS = WL + 8192

SC = OPT.get("sc", "sc1")
SCF = OPT.get("scf", "sc1")
SCH = OPT.get("sch", SC)
LD_IN = OPT.get("ldin", "")
LD_SL = OPT.get("ldsl", SC)
ST_OUT = OPT.get("stout", "")
SPINMAX = 20000000
NREP = I("nrep", 8)
LSTR = I("lstr", 128)
NB = I("nb", 8)
TOUCH = I("touch", 1)
PFS = I("pfstep", 80)
PF = [I("pf0", 0), I("pf1", 0), I("pf2", 0), I("pf3", 0)]
PF4 = I("pf4", 0)
PRIO = I("prio", 0)
ACKW = I("ackw", 1)
TORN = I("torn", 0)
PFH = I("pfh", 0)

L = []


def e(s=""):
    L.append(s)


def srd(d, lo, hi, nbytes, off=0):
    if off == 0:
        e(f"    s_mov_b32 s{d}, s{lo}")
        e(f"    s_and_b32 s{d+1}, s{hi}, 0xffff")
    elif off > 0:
        e(f"    s_add_u32 s{d}, s{lo}, {off}")
        e(f"    s_addc_u32 s{d+1}, s{hi}, 0")
        e(f"    s_and_b32 s{d+1}, s{d+1}, 0xffff")
    else:
        e(f"    s_sub_u32 s{d}, s{lo}, {-off}")
        e(f"    s_subb_u32 s{d+1}, s{hi}, 0")
        e(f"    s_and_b32 s{d+1}, s{d+1}, 0xffff")
    e(f"    s_mov_b32 s{d+2}, {nbytes}")
    e(f"    s_mov_b32 s{d+3}, 0x20000")


S_SRC, S_DST, S_NRM, S_WS, S_OVF, S_GAT, S_STO, S_DBG = 20, 24, 28, 32, 36, 40, 44, 48
WSBYTES = WS_H1


def R(d):
    return f"s[{d}:{d+3}]"


STAMP_BASE = 78


def stamp(name):
    if "c_" + name in STL:
        i = STL.index("c_" + name)
        e(f"    s_memtime s[{STAMP_BASE+2*i}:{STAMP_BASE+2*i+1}]")
    if name in STL:
        i = STL.index(name)
        e(f"    s_memrealtime s[{STAMP_BASE+2*i}:{STAMP_BASE+2*i+1}]")


def stamp2(n1, n2):
    if n1 in STL or n2 in STL:
        n = len(L)
        e("    s_bitcmp1_b32 s71, 0")
        e(f"    s_cbranch_scc1 ST{n}_B")
        stamp(n1)
        e(f"    s_branch ST{n}_C")
        e(f"ST{n}_B:")
        stamp(n2)
        e(f"ST{n}_C:")


def stamp_out():
    if not DIAG:
        return
    e("    s_waitcnt vmcnt(0) lgkmcnt(0)")
    stamp("end")
    e("    s_waitcnt lgkmcnt(0)")
    if "xcc" in STL:
        i = STL.index("xcc")
        e("    s_getreg_b32 s76, hwreg(HW_REG_XCC_ID, 0, 4)")
        e("    s_sub_u32 s76, s2, s76")
        e("    s_and_b32 s76, s76, 7")
        e("    s_mul_i32 s76, s76, 200")
        e(f"    s_add_u32 s{STAMP_BASE+2*i}, s{STAMP_BASE}, s76")
    e("    s_mov_b64 exec, 1")
    srd(20, 18, 19, 1 << 20, WS_STAMP - (I("wsoff", 0) << 20))
    e("    s_lshl_b32 s76, s2, 4")
    e("    s_add_u32 s76, s76, s3")
    e("    s_lshl_b32 s76, s76, 6")
    e("    v_mov_b32 v2, s76")
    for i in range(len(STL)):
        e(f"    v_mov_b32 v3, s{STAMP_BASE+2*i}")
        e(f"    buffer_store_dword v3, v2, s[20:23], 0 offen offset:{4*i}")
    e("    s_getreg_b32 s76, hwreg(HW_REG_XCC_ID)")
    e("    v_mov_b32 v3, s76")
    e("    buffer_store_dword v3, v2, s[20:23], 0 offen offset:56")
    e("    v_mov_b32 v3, s16")
    e("    buffer_store_dword v3, v2, s[20:23], 0 offen offset:60")
    e("    v_mov_b32 v3, s17")
    e("    buffer_store_dword v3, v2, s[20:23], 0 offen offset:52")


def PEND(s):
    return f"s[{52+2*s}:{53+2*s}]"


pf_base = [0]


def prefetch(cnt, nwaves=16, wave0=0):
    if cnt == 0:
        return 0
    nops = (cnt + 63) // 64
    e("    s_lshr_b32 s76, s2, 3")
    e(f"    s_mul_i32 s76, s76, {nwaves}")
    e("    s_add_u32 s76, s76, s3")
    e(f"    s_mul_i32 s76, s76, {cnt}")
    e(f"    s_add_u32 s76, s76, {pf_base[0] - wave0*cnt}")
    for o in range(nops):
        n = min(64, cnt - 64 * o)
        e("    v_and_b32 v2, 63, v0")
        e("    v_add_u32 v2, s76, v2")
        e("    v_lshrrev_b32 v3, 5, v2")
        e("    v_and_b32 v2, 31, v2")
        e(f"    v_mul_u32_u24 v3, {PFS}, v3")
        e("    v_add_lshl_u32 v2, v2, v3, 7")
        if n < 64:
            e(f"    s_mov_b32 exec_lo, {((1 << n) - 1) & 0xffffffff}")
            e(f"    s_mov_b32 exec_hi, {((1 << n) - 1) >> 32}")
        e(f"    buffer_load_dword v126, v2, {R(S_GAT)}, 0 offen offset:3072")
        if n < 64:
            e("    s_mov_b64 exec, -1")
        if o + 1 < nops:
            e("    s_add_u32 s76, s76, 64")
    pf_base[0] += 32 * nwaves * cnt
    return nops


def own_rows():
    e("    s_lshl_b32 s76, s2, 4")
    e("    s_add_u32 s76, s76, s3")
    e("    s_mul_i32 s76, s76, 50006")
    e("    s_lshr_b32 s76, s76, 12")
    e("    v_add_lshl_u32 v2, v92, s76, 7")
    e("    s_mov_b64 exec, 0x1fff")
    e(f"    buffer_load_dword v126, v2, {R(S_GAT)}, 0 offen offset:3072")
    e("    s_mov_b64 exec, -1")


def grid_barrier(p, idx, pfa, pfb):
    rstr = 64 * LSTR
    fb = WS_FLAG + idx * NREP * rstr
    n = prefetch(pfa)
    e(f"    s_waitcnt vmcnt({n})")
    stamp(p + "_ack")
    e("    s_barrier")
    if idx == 0:
        e("    s_cmp_lt_u32 s3, 13")
        e("    s_cbranch_scc1 G1_NOW")
        e(f"    v_subrev_u32 v2, {13*64}, v0")
        e("    v_lshlrev_b32 v2, 4, v2")
        e(f"    v_cmp_gt_u32 vcc, 2048, v2")
        e(f"    v_add_u32 v2, {WL}, v2")
        e("    ds_write_b128 v2, v[100:103]")
        e("    ds_write_b128 v2, v[104:107] offset:3072")
        e("    s_and_saveexec_b64 s[76:77], vcc")
        e("    ds_write_b128 v2, v[108:111] offset:6144")
        e("    s_mov_b64 exec, -1")
        e("G1_NOW:")
    e("    s_cmp_lg_u32 s3, 0")
    e(f"    s_cbranch_scc1 {p}_WAIT")
    stamp(p + "_arr")
    if idx == 0:
        e(f"    s_mov_b32 s76, {SPINMAX}")
        e(f"{p}_NONCE:")
        e("    v_cmp_ne_u32 vcc, 0, v125")
        e(f"    s_cbranch_vccnz {p}_GOTN")
        e("    v_mov_b32 v2, 0")
        e(f"    buffer_load_dword v125, v2, {R(S_DBG)}, 0 offen {SCF}")
        e("    s_sub_u32 s76, s76, 1")
        e("    s_cmp_eq_u32 s76, 0")
        e("    s_waitcnt vmcnt(0)")
        e(f"    s_cbranch_scc0 {p}_NONCE")
        e(f"{p}_GOTN:")
    e("    s_lshr_b32 s76, s2, 2")
    e(f"    s_mul_i32 s76, s76, {LSTR}")
    e("    s_and_b32 s77, s2, 3")
    e("    s_lshl_b32 s77, s77, 2")
    e("    s_add_u32 s76, s76, s77")
    e(f"    s_add_u32 s76, s76, {fb}")
    e(f"    v_mul_u32_u24 v2, {rstr}, v0")
    e(f"    s_mov_b32 exec_lo, {((1 << NREP) - 1) & 0xffffffff}")
    e(f"    s_mov_b32 exec_hi, {((1 << NREP) - 1) >> 32}")
    e(f"    buffer_store_dword v125, v2, {R(S_WS)}, s76 offen {SCF}")
    e("    s_mov_b64 exec, -1")
    prefetch(pfb, 1, 0)
    e("    s_getreg_b32 s77, hwreg(HW_REG_XCC_ID, 0, 4)")
    e(f"    s_and_b32 s77, s77, {NREP-1}")
    e(f"    s_mul_i32 s77, s77, {rstr}")
    e(f"    s_add_u32 s77, s77, {fb}")
    e(f"    v_mul_u32_u24 v8, {LSTR}, v0")
    e(f"    s_mov_b32 s76, {SPINMAX}")
    e(f"{p}_POLL:")
    e(f"    buffer_load_dwordx4 v[4:7], v8, {R(S_WS)}, s77 offen {SCF}")
    e("    s_sub_u32 s76, s76, 1")
    e("    s_cmp_eq_u32 s76, 0")
    e("    s_waitcnt vmcnt(0)")
    e(f"    s_cbranch_scc1 {p}_WAIT")
    e("    v_xor_b32 v4, v4, v125")
    e("    v_xor_b32 v5, v5, v125")
    e("    v_xor_b32 v6, v6, v125")
    e("    v_xor_b32 v7, v7, v125")
    e("    v_or3_b32 v4, v4, v5, v6")
    e("    v_or_b32 v4, v4, v7")
    e("    v_cmp_ne_u32 vcc, 0, v4")
    e(f"    s_cbranch_vccnz {p}_POLL")
    e(f"{p}_WAIT:")
    e("    s_barrier")
    stamp(p + "_exit")


def decode_key(rec, meta, k, s):
    ca = 40 + s
    e(f"    v_bfe_u32 v2, v{rec}, 12, 4")
    e(f"    v_and_b32_sdwa v3, v{meta}, v99 dst_sel:DWORD dst_unused:UNUSED_PAD src0_sel:BYTE_{k} src1_sel:DWORD")
    e(f"    v_or_b32 v2, v2, v3")
    e(f"    v_lshl_add_u32 v{ca}, v2, 2, s0")


def decode_data(rec, meta, k, s):
    d0, d1 = 48 + s, 56 + s
    e(f"    v_lshlrev_b32_sdwa v{d0}, v124, v{rec} dst_sel:DWORD dst_unused:UNUSED_PAD src0_sel:DWORD src1_sel:WORD_0")
    if OPT.get("srcmask"):
        e(f"    v_and_b32 v{d0}, {OPT['srcmask']}, v{d0}")
    e(f"    v_mov_b32 v{d1}, v{rec}")
    e(f"    v_lshlrev_b16_sdwa v{d1}, v{meta}, v1 dst_sel:WORD_0 dst_unused:UNUSED_PRESERVE src0_sel:BYTE_{k} src1_sel:DWORD")


def decode_full(rec, dst, s):
    e(f"    v_mul_u32_u24 v30, {TM}, v{dst}")
    e("    v_lshrrev_b32 v30, 12, v30")
    e(f"    v_bfi_b32 v30, 15, v{dst}, v30")
    decode_key(rec, 30, 0, s)
    decode_data(rec, 30, 0, s)


def zero_b_counters(n):
    e("    v_lshlrev_b32 v2, 2, v0")
    e(f"    v_add_u32 v2, {CNTB}, v2")
    e("    v_mov_b32 v3, 0")
    e(f"    v_cmp_gt_u32 vcc, {n}, v0")
    e("    s_and_saveexec_b64 s[76:77], vcc")
    e("    ds_write_b32 v2, v3")
    e("    s_mov_b64 exec, -1")


def body():
    e(f".globl {NAME}")
    e(".p2align 8")
    e(f".type {NAME},@function")
    e(f"{NAME}:")
    stamp("start")
    e("    s_cmp_ge_u32 s2, 256")
    e("    s_cbranch_scc1 END")
    e("    s_load_dwordx8 s[4:11], s[0:1], 0")
    e("    s_load_dwordx8 s[12:19], s[0:1], 32")
    e("    v_lshlrev_b32 v9, 2, v0")
    e("    v_lshrrev_b32 v3, 6, v0")
    e(f"    s_mul_i32 s68, s2, {CH}")
    e(f"    s_mul_i32 s69, s2, {TCH}")
    e("    v_readfirstlane_b32 s3, v3")
    e(f"    s_add_u32 s69, s69, {ET - 4*NMAIN}")
    e("    v_add_u32 v4, s68, v9")
    e("    v_add_u32 v5, s69, v9")
    e(f"    v_cmp_gt_u32 vcc, {NMAIN}, v0")
    e(f"    v_mov_b32 v7, {E}")
    e(f"    v_mov_b32 v3, {ET}")
    e("    v_cndmask_b32 v6, v5, v4, vcc")
    e("    v_cndmask_b32 v7, v7, v3, vcc")
    e("    v_cmp_lt_u32 s[72:73], v6, v7")
    e(f"    v_cmp_gt_u32 vcc, {NTHR}, v0")
    e("    v_sub_u32 v8, v6, v3")
    e("    s_and_b64 s[72:73], s[72:73], vcc")
    e(f"    v_mov_b32 v3, {1 << 24}")
    e("    v_cndmask_b32 v6, v3, v6, s[72:73]")
    e("    v_lshlrev_b32 v4, 2, v6")
    e("    v_lshlrev_b32 v5, 1, v6")
    e("    s_waitcnt lgkmcnt(0)")
    if I("wsoff", 0):
        e(f"    s_add_u32 s18, s18, {I('wsoff', 0) << 20}")
        e("    s_addc_u32 s19, s19, 0")
    srd(S_DST, 8, 9, E * 4)
    srd(S_SRC, 6, 7, E * 4)
    srd(S_NRM, 10, 11, E * 2)
    e("    s_cmp_ge_u32 s3, 13")
    e("    s_cbranch_scc1 A_HELP")
    e(f"    buffer_load_dwordx4 v[12:15], v4, {R(S_DST)}, 0 offen {LD_IN}")
    e(f"    buffer_load_dwordx4 v[16:19], v4, {R(S_SRC)}, 0 offen {LD_IN}")
    e(f"    buffer_load_dwordx2 v[20:21], v5, {R(S_NRM)}, 0 offen {LD_IN}")
    stamp("a_issue")
    srd(S_DBG, 16, 17, 256)
    e("    s_branch A_BAR")
    e("A_HELP:")
    srd(S_DBG, 16, 17, 256)
    e("    s_cmp_lg_u32 s2, 0")
    e("    s_cbranch_scc1 A_NONONCE")
    e("    s_cmp_lg_u32 s3, 13")
    e("    s_cbranch_scc1 A_NONONCE")
    e("    s_memrealtime s[76:77]")
    e("    v_mov_b32 v2, 0")
    e("    s_waitcnt lgkmcnt(0)")
    e("    s_mul_i32 s68, s76, 0x9e3779b1")
    e("    s_mul_hi_u32 s69, s76, 0x9e3779b1")
    e("    s_xor_b32 s68, s68, s69")
    e("    s_xor_b32 s68, s68, s77")
    e("    s_mul_i32 s69, s68, 0x85ebca6b")
    e("    s_mul_hi_u32 s70, s68, 0x85ebca6b")
    e("    s_xor_b32 s69, s69, s70")
    e("    s_or_b32 s68, s68, 1")
    e("    v_mov_b32 v4, s68")
    e("    v_mov_b32 v5, s69")
    e("    s_mov_b64 exec, 1")
    e(f"    buffer_store_dwordx2 v[4:5], v2, {R(S_DBG)}, 0 offen {SCF}")
    e("    s_mov_b64 exec, -1")
    e("A_NONONCE:")
    srd(S_STO, 12, 13, 8192)
    e(f"    v_subrev_u32 v2, {13*64}, v0")
    e("    v_lshlrev_b32 v2, 4, v2")
    e(f"    buffer_load_dwordx4 v[100:103], v2, {R(S_STO)}, 0 offen")
    e(f"    buffer_load_dwordx4 v[104:107], v2, {R(S_STO)}, 0 offen offset:3072")
    e("    v_add_u32 v3, 6144, v2")
    e(f"    buffer_load_dwordx4 v[108:111], v3, {R(S_STO)}, 0 offen")
    e("A_BAR:")
    e("    v_mov_b32 v2, 0")
    e(f"    ds_write_b32 v9, v2 offset:{K1_CNT}")
    e("    v_mov_b32 v24, -1")
    e("    v_mov_b32 v25, -1")
    e("    v_mov_b32 v26, -1")
    e("    v_mov_b32 v27, -1")
    e("    v_lshlrev_b32 v2, 4, v0")
    e("    ds_write_b128 v2, v[24:27]")
    e("    ds_write_b128 v2, v[24:27] offset:16384")
    e("    s_cmp_lg_u32 s3, 15")
    e("    s_cbranch_scc1 A_INITD")
    e(f"    ds_write_b128 v2, v[24:27] offset:{32768 - 15*1024}")
    e("    v_and_b32 v4, 60, v9")
    e("    v_mov_b32 v2, 0xffff")
    e(f"    ds_write_b32 v4, v2 offset:{K1_OVT}")
    e("A_INITD:")
    e("    s_waitcnt lgkmcnt(0)")
    e("    s_barrier")
    stamp("a_bar1")
    srd(S_WS, 18, 19, WSBYTES, 0)
    srd(S_OVF, 18, 19, 256 * OVF_STRIDE, WS_OVF)
    srd(S_GAT, 4, 5, TABBYTES + 3072, -3072)
    srd(S_STO, 18, 19, TABBYTES, WS_H1)
    e("    v_mov_b32 v1, 1")
    e("    v_mov_b32 v99, 0xf0")
    e("    v_mov_b32 v124, 7")
    e(f"    s_mov_b32 s0, {CNTB}")
    e("    s_mov_b32 s1, 0x07060302")
    e("    s_mov_b32 s71, 0")
    e("    s_mov_b64 s[12:13], 0")
    e("    s_cmp_ge_u32 s3, 4")
    e("    s_cbranch_scc1 A_NOTAIL")
    e("    v_lshrrev_b32 v2, 4, v0")
    e("    s_lshl_b32 s76, s2, 4")
    e("    v_add_u32 v2, s76, v2")
    e("    v_mul_u32_u24 v3, 50006, v2")
    e("    v_lshrrev_b32 v3, 12, v3")
    e("    v_sub_u32 v4, v0, v3")
    e("    v_and_b32 v4, 15, v4")
    e("    v_add_u32 v123, v3, v4")
    e(f"    v_mul_u32_u24 v4, {TM}, v123")
    e("    v_lshrrev_b32 v4, 16, v4")
    e("    v_cmp_eq_u32 s[12:13], v4, v2")
    e(f"    v_cmp_gt_u32 vcc, {N}, v123")
    e(f"    v_add_u32 v4, {ET}, v123")
    e("    v_lshlrev_b32 v5, 2, v4")
    e("    v_lshlrev_b32 v4, 1, v4")
    e("    s_and_b64 s[12:13], s[12:13], vcc")
    e(f"    buffer_load_dword v120, v5, {R(S_DST)}, 0 offen")
    e(f"    buffer_load_dword v121, v5, {R(S_SRC)}, 0 offen")
    e(f"    buffer_load_ushort v122, v4, {R(S_NRM)}, 0 offen")
    e("A_NOTAIL:")
    if TOUCH:
        e("    s_cmp_lg_u32 s3, 14")
        e("    s_cbranch_scc1 A_NOTOUCH")
        e("    v_and_b32 v2, 63, v0")
        e("    v_lshlrev_b32 v2, 18, v2")
        e(f"    buffer_load_dword v126, v2, {R(S_WS)}, 0 offen sc1")
        e(f"    buffer_load_dword v126, v2, {R(S_STO)}, 0 offen sc1")
        e(f"    buffer_load_dword v126, v2, {R(S_GAT)}, 0 offen offset:3072")
        e("A_NOTOUCH:")
    if PF[0]:
        e("    s_cmp_lg_u32 s3, 15")
        e("    s_cbranch_scc1 A_NOPF")
        prefetch(PF[0], 1, 15)
        e("A_NOPF:")
    zero_b_counters((WL - CNTB) // 4)
    e("    v_and_b32 v10, 7, v0")
    e("    v_and_b32 v2, 63, v0")
    e("    v_bfe_u32 v3, v2, 4, 1")
    e("    v_xor_b32 v3, v3, v10")
    e("    v_lshlrev_b32 v83, 4, v3")
    e("    v_add_u32 v80, 3072, v83")
    e("    v_add_u32 v82, 1024, v83")
    e("    v_xor_b32 v83, 64, v83")
    e("    v_add_u32 v81, 2048, v83")
    e("    v_and_b32 v92, 15, v0")
    e("    v_lshrrev_b32 v11, 4, v2")
    e("    v_bfe_u32 v6, v2, 2, 2")
    e("    v_and_b32 v7, 3, v2")
    e("    v_lshl_add_u32 v84, v11, 3, v6")
    e("    v_lshlrev_b32 v84, 7, v84")
    e("    v_lshrrev_b32 v6, 1, v6")
    e("    v_and_b32 v4, 1, v11")
    e("    v_lshl_or_b32 v6, v4, 2, v6")
    e("    v_xor_b32 v6, v6, v7")
    e("    v_lshl_add_u32 v84, v6, 4, v84")
    e("    v_and_b32 v4, 1, v7")
    e("    v_lshl_add_u32 v84, v4, 3, v84")
    e("    s_lshl_b32 s76, s3, 12")
    e("    v_add_u32 v84, s76, v84")
    e("    s_mov_b32 m0, s76")
    e("    v_xor_b32 v85, 8, v84")
    e("    v_xor_b32 v86, 64, v84")
    e("    v_xor_b32 v87, 72, v84")
    e(f"    s_mul_i32 s76, s3, {TSTR}")
    e(f"    s_add_u32 s76, s76, {LISTS}")
    e("    v_lshrrev_b32 v4, 3, v2")
    e("    v_lshl_add_u32 v88, v4, 2, s76")
    e(f"    s_add_u32 s76, s76, {CAPT*4}")
    e("    v_lshl_add_u32 v89, v11, 5, s76")
    e("    v_cmp_lt_u32 vcc, 0, v7")
    e("    v_cmp_lt_u32 s[76:77], 1, v7")
    e("    v_lshrrev_b32 v4, 2, v2")
    e("    v_cndmask_b32 v95, 0, -1, vcc")
    e("    v_cndmask_b32 v96, 0, -1, s[76:77]")
    e("    v_cmp_lt_u32 vcc, 2, v7")
    e(f"    v_mul_u32_u24 v98, {TSTR}, v4")
    e(f"    v_add_u32 v98, {LISTS}, v98")
    e("    v_cndmask_b32 v97, 0, -1, vcc")
    e("    v_lshlrev_b32 v90, 4, v2")
    e(f"    v_add_u32 v90, {CNTB}, v90")
    for i in range(16):
        e(f"    v_mov_b32 v{64+i}, 0")
    if I("pfx", 0) == 1:
        e("    s_cmp_lg_u32 s3, 15")
        e("    s_cbranch_scc1 A_NOX")
        e("    s_mul_i32 s76, s2, 196*128")
        e("    v_and_b32 v2, 63, v0")
        e("    v_lshlrev_b32 v2, 7, v2")
        for o in range(4):
            if o == 3:
                e("    s_mov_b64 exec, 15")
            e(f"    buffer_load_dword v126, v2, {R(S_GAT)}, s76 offen offset:3072")
            e("    s_add_u32 s76, s76, 8192")
        e("    s_mov_b64 exec, -1")
        e("A_NOX:")
    e("    s_cmp_lt_u32 s3, 13")
    e("    s_cbranch_scc1 A_EDGES")
    e("    s_cmp_lg_u32 s3, 13")
    e("    s_cbranch_scc1 A_OUT")
    e(f"    s_mov_b32 s76, {SPINMAX}")
    e("    v_mov_b32 v2, 0")
    e("A_NPOLL:")
    e(f"    buffer_load_dwordx2 v[4:5], v2, {R(S_DBG)}, 0 offen {SCF}")
    e("    s_sub_u32 s76, s76, 1")
    e("    s_cmp_eq_u32 s76, 0")
    e("    s_waitcnt vmcnt(0)")
    e("    s_cbranch_scc1 A_NGOT")
    e("    v_cmp_eq_u32 vcc, 0, v4")
    e("    s_cbranch_vccnz A_NPOLL")
    e("A_NGOT:")
    e(f"    ds_write_b64 v2, v[4:5] offset:{K1_NON}")
    e("    s_branch A_OUT")
    e("A_EDGES:")
    e("    s_mov_b64 exec, s[72:73]")
    e("    s_mov_b32 s70, 0xffff0000")
    stamp("a_setup")
    e("    s_cmp_ge_u32 s3, 4")
    e("    s_cbranch_scc1 A_W2")
    e("    s_waitcnt vmcnt(5)")
    e("    s_branch A_W5")
    e("A_W2:")
    e("    s_waitcnt vmcnt(2)")
    e("A_W5:")
    stamp("a_dst")
    for k in range(4):
        e(f"    v_mul_u32_u24 v{24+k}, {TM}, v{12+k}")
        e(f"    v_add_u32 v2, {k}, v8")
        e(f"    v_lshrrev_b32 v{28+k}, 20, v{24+k}")
        e(f"    v_cmp_ne_u32 s[{52+2*k}:{53+2*k}], v{12+k}, v2")
        e(f"    v_lshlrev_b32 v{36+k}, 2, v{28+k}")
    for k in range(4):
        e(f"    s_mov_b64 exec, s[{52+2*k}:{53+2*k}]")
        e(f"    ds_add_rtn_u32 v{32+k}, v{36+k}, v1 offset:{K1_CNT}")
    e("    s_mov_b64 exec, s[72:73]")
    for k in range(4):
        e(f"    v_lshrrev_b32 v{24+k}, 12, v{24+k}")
        e(f"    v_mul_u32_u24 v{28+k}, {K1_LS}, v{28+k}")
        e(f"    v_bfi_b32 v{24+k}, 15, v{12+k}, v{24+k}")
    e("    s_mov_b64 s[60:61], 0")
    for k in range(4):
        e(f"    s_mov_b64 exec, s[{52+2*k}:{53+2*k}]")
        e(f"    s_waitcnt lgkmcnt(3)")
        e(f"    v_cmp_gt_u32 vcc, {SLOTCAP}, v{32+k}")
        e(f"    v_and_b32 v2, 7, v{32+k}")
        e(f"    v_lshrrev_b32 v3, 3, v{32+k}")
        e(f"    s_andn2_b64 s[{52+2*k}:{53+2*k}], exec, vcc")
        e(f"    s_or_b64 s[60:61], s[60:61], s[{52+2*k}:{53+2*k}]")
        e(f"    s_mov_b64 s[{4+2*k}:{5+2*k}], vcc")
        e("    s_mov_b64 exec, vcc")
        e(f"    v_lshl_add_u32 v2, v2, 4, v{28+k}")
        e(f"    v_lshl_add_u32 v{36+k}, v3, 2, v2")
        e("    v_add_u32 v5, v3, v2")
        e(f"    ds_write_b8 v5, v{24+k} offset:12")
    e("    s_mov_b64 exec, s[72:73]")
    e("    s_waitcnt vmcnt(0)")
    stamp("a_all")
    for k in range(4):
        if k % 2 == 0:
            e(f"    v_lshl_or_b32 v{16+k}, v{20+k//2}, 16, v{16+k}")
        else:
            e(f"    v_and_or_b32 v{16+k}, v{20+k//2}, s70, v{16+k}")
    for k in range(4):
        e(f"    s_mov_b64 exec, s[{4+2*k}:{5+2*k}]")
        e(f"    ds_write_b32 v{36+k}, v{16+k}")
    e("    s_cmp_eq_u64 s[60:61], 0")
    e("    s_cbranch_scc1 A_OUT")
    e("    s_lshl_b32 s62, s2, 15")
    for k in range(4):
        e(f"    s_mov_b64 exec, s[{52+2*k}:{53+2*k}]")
        e(f"    s_cbranch_execz A_OV{k}")
        e(f"    v_mov_b32 v2, {K1_OVC}")
        e(f"    ds_add_rtn_u32 v3, v2, v1 offset:{K1_CNT}")
        e(f"    v_mov_b32 v4, v{16+k}")
        e(f"    v_mov_b32 v5, v{12+k}")
        e("    s_waitcnt lgkmcnt(0)")
        e(f"    v_cmp_gt_u32 vcc, {NINL}, v3")
        e("    v_lshlrev_b32 v3, 3, v3")
        e("    s_andn2_b64 s[76:77], exec, vcc")
        e("    s_mov_b64 exec, vcc")
        e(f"    ds_write_b64 v3, v[4:5] offset:{K1_OVT}")
        e("    s_mov_b64 exec, s[76:77]")
        e(f"    s_cbranch_execz A_OV{k}")
        e(f"    buffer_store_dwordx2 v[4:5], v3, {R(S_OVF)}, s62 offen {SC}")
        e("    s_waitcnt vmcnt(0)")
        e(f"A_OV{k}:")
    e("A_OUT:")
    e("    s_mov_b64 exec, -1")
    e("    v_lshrrev_b32 v2, 3, v0")
    e(f"    v_mul_u32_u24 v4, {K1_LS}, v2")
    e("    v_lshl_add_u32 v4, v10, 4, v4")
    e(f"    v_add_u32 v5, {128*K1_LS}, v4")
    e("    v_lshlrev_b32 v7, 15, v2")
    e("    v_lshl_add_u32 v7, v10, 4, v7")
    if I("skew", 1):
        e(f"    v_mul_u32_u24 v3, {I('skew', 1)}, v2")
        e("    v_add_u32 v3, s2, v3")
        e("    v_and_b32 v3, 255, v3")
        e("    v_lshl_add_u32 v7, v3, 7, v7")
        e("    s_mov_b32 s62, 0")
        e(f"    s_mov_b32 s63, {128*32768}")
    else:
        e("    s_lshl_b32 s62, s2, 7")
        e(f"    s_add_u32 s63, s62, {128*32768}")
    e("    s_mov_b32 s64, 0xffffff")
    e("    v_and_b32 v6, 6, v10")
    e("    s_waitcnt lgkmcnt(0)")
    stamp("a_pre2")
    e("    s_barrier")
    stamp("a_bar2")
    e(f"    ds_read_u8 v127, v10 offset:{K1_NON}")
    e("    ds_read2_b32 v[12:13], v4 offset0:0 offset1:1")
    e("    ds_read2_b32 v[14:15], v4 offset0:2 offset1:3")
    e("    ds_read2_b32 v[16:17], v5 offset0:0 offset1:1")
    e("    ds_read2_b32 v[18:19], v5 offset0:2 offset1:3")
    e(f"    ds_read_u16 v91, v6 offset:{K1_NON}")
    e("    v_mov_b32 v8, 0")
    e(f"    ds_read_b32 v125, v8 offset:{K1_NON}")
    e("    s_waitcnt lgkmcnt(6)")
    e("    v_lshlrev_b32 v20, 24, v127")
    e("    s_waitcnt lgkmcnt(4)")
    e("    v_and_or_b32 v15, v15, s64, v20")
    e(f"    buffer_store_dwordx4 v[12:15], v7, {R(S_WS)}, s62 offen {SC}")
    e("    s_waitcnt lgkmcnt(2)")
    e("    v_and_or_b32 v19, v19, s64, v20")
    e(f"    buffer_store_dwordx4 v[16:19], v7, {R(S_WS)}, s63 offen {SC}")
    e("    s_cmp_lg_u32 s3, 15")
    e("    s_cbranch_scc1 A_FIN")
    e("    s_mov_b64 exec, 0xff")
    e("    v_lshlrev_b32 v2, 3, v10")
    e(f"    ds_read_b64 v[24:25], v2 offset:{K1_OVT}")
    e(f"    ds_read_b32 v22, v8 offset:{K1_CNT+K1_OVC}")
    e("    v_cmp_eq_u32 vcc, 7, v10")
    e("    s_lshl_b32 s62, s2, 6")
    e(f"    s_add_u32 s62, s62, {WS_OVT}")
    e("    s_waitcnt lgkmcnt(0)")
    e("    v_cndmask_b32 v24, v24, v22, vcc")
    e("    v_lshl_or_b32 v25, v91, 16, v25")
    e(f"    buffer_store_dwordx2 v[24:25], v2, {R(S_WS)}, s62 offen {SC}")
    e("A_FIN:")
    e("    s_mov_b64 exec, -1")
    stamp("a_st")
    e("    s_cmp_ge_u32 s3, 4")
    e("    s_cbranch_scc1 A_TD")
    e("    v_cmp_eq_u32 vcc, v120, v123")
    e("    v_lshl_or_b32 v121, v122, 16, v121")
    e("    s_and_b64 s[12:13], s[12:13], vcc")
    decode_key(121, 0, 0, 6)
    decode_data(121, 0, 0, 6)
    e("A_TD:")
    e("    v_lshlrev_b32 v9, 4, v0")
    e("    v_lshlrev_b32 v31, 3, v0")
    e("    s_waitcnt lgkmcnt(0)")
    e("    v_mov_b32 v120, v91")
    e("    s_cmp_lt_u32 s3, 13")
    e("    s_cbranch_scc1 G1_NOW")
    e(f"    v_subrev_u32 v2, {13*64}, v0")
    e("    v_lshlrev_b32 v2, 4, v2")
    e(f"    v_cmp_gt_u32 vcc, 2048, v2")
    e(f"    v_add_u32 v2, {WL}, v2")
    e("    s_waitcnt vmcnt(0)")
    e("    ds_write_b128 v2, v[100:103]")
    e("    ds_write_b128 v2, v[104:107] offset:3072")
    e("    s_and_saveexec_b64 s[76:77], vcc")
    e("    ds_write_b128 v2, v[108:111] offset:6144")
    e("    s_mov_b64 exec, -1")
    e("G1_NOW:")
    if ACKW:
        e("    s_waitcnt vmcnt(0)")
    stamp("g1_ack")
    if ACKW >= 2:
        e("    s_barrier")
    if ACKW >= 3:
        e(f"    s_mov_b32 s70, {WS_OVT}")
        e(f"    s_mov_b32 s74, {WS_OVT + 8192}")
        e(f"    s_mov_b32 s75, {SPINMAX}")
        e("P_POLL:")
        e(f"    buffer_load_dwordx2 v[116:117], v31, {R(S_WS)}, s70 offen {SC}")
        e(f"    buffer_load_dwordx2 v[118:119], v31, {R(S_WS)}, s74 offen {SC}")
        e("    s_sub_u32 s75, s75, 1")
        e("    s_cmp_eq_u32 s75, 0")
        e("    s_waitcnt vmcnt(0)")
        e("    s_cbranch_scc1 P_DONE")
        e("    v_cmp_ne_u32_sdwa vcc, v117, v120 src0_sel:WORD_1 src1_sel:DWORD")
        e("    v_cmp_ne_u32_sdwa s[76:77], v119, v120 src0_sel:WORD_1 src1_sel:DWORD")
        e("    s_or_b64 vcc, vcc, s[76:77]")
        e("    s_cbranch_scc1 P_POLL")
        e("P_DONE:")
    stamp("g1_exit")
    if TORN:
        e("    s_mov_b32 s16, 0")
        e("    s_mov_b32 s17, 0")

    e("COLLECT:")
    e("    s_lshl_b32 s68, s2, 15")
    e("    s_add_u32 s69, s68, 16384")
    e(f"    s_mov_b32 s70, {WS_OVT}")
    e(f"    s_mov_b32 s74, {WS_OVT + 8192}")
    e(f"    buffer_load_dwordx4 v[12:15], v9, {R(S_WS)}, s68 offen {LD_SL}")
    e(f"    buffer_load_dwordx4 v[16:19], v9, {R(S_WS)}, s69 offen {LD_SL}")
    e(f"    buffer_load_dwordx2 v[116:117], v31, {R(S_WS)}, s70 offen {SC}")
    e(f"    buffer_load_dwordx2 v[118:119], v31, {R(S_WS)}, s74 offen {SC}")
    e(f"    s_mov_b64 {PEND(6)}, s[12:13]")
    e(f"    s_mov_b64 {PEND(7)}, 0")
    e(f"    s_mov_b32 s75, {SPINMAX}")
    e("    s_movk_i32 s11, 0xffff")
    e(f"    s_mov_b64 exec, {PEND(6)}")
    e("    ds_add_rtn_u32 v38, v46, v1")
    e("    s_mov_b64 exec, -1")
    for i in range(2):
        base = 12 + 4 * i
        e(f"    s_waitcnt vmcnt({3-i})")
        e(f"C_CHK{i}:")
        e(f"    v_cmp_ne_u32_sdwa vcc, v{base+3}, v127 src0_sel:BYTE_3 src1_sel:DWORD")
        e(f"    s_cbranch_vccnz C_RETRY{i}")
        e(f"C_OK{i}:")
        if i == 0:
            stamp("b_lines")
        else:
            stamp("b_lines1")
        for k in range(3):
            e(f"    v_cmp_ne_u16 {PEND(3*i+k)}, s11, v{base+k}")
        for k in range(3):
            decode_key(base + k, base + 3, k, 3 * i + k)
        for k in range(3):
            s = 3 * i + k
            e(f"    s_mov_b64 exec, {PEND(s)}")
            e(f"    ds_add_rtn_u32 v{32+s}, v{40+s}, v1")
        e("    s_mov_b64 exec, -1")
        for k in range(3):
            decode_data(base + k, base + 3, k, 3 * i + k)
    e("    s_waitcnt vmcnt(0)")
    e("C_CHK2:")
    e("    v_cmp_ne_u32_sdwa vcc, v117, v120 src0_sel:WORD_1 src1_sel:DWORD")
    e("    v_cmp_ne_u32_sdwa s[76:77], v119, v120 src0_sel:WORD_1 src1_sel:DWORD")
    e("    s_or_b64 vcc, vcc, s[76:77]")
    e("    s_cbranch_scc1 C_RETRY2")
    e("C_OK2:")
    if I("pfx", 0) == 3:
        own_rows()
    e("    v_and_b32 v117, 0xffff, v117")
    e("    v_and_b32 v119, 0xffff, v119")
    e(f"    v_mul_u32_u24 v2, {TM}, v117")
    e(f"    v_mul_u32_u24 v3, {TM}, v119")
    e("    v_cmp_eq_u32 s[74:75], 7, v10")
    e(f"    v_cmp_lt_u32 s[72:73], {NINL}, v116")
    e(f"    v_cmp_lt_u32 vcc, {NINL}, v118")
    e("    v_lshrrev_b32 v2, 20, v2")
    e("    v_lshrrev_b32 v3, 20, v3")
    e("    v_cmp_eq_u32 s[4:5], s2, v2")
    e("    v_cmp_eq_u32 s[6:7], s2, v3")
    e("    s_and_b64 s[72:73], s[72:73], s[74:75]")
    e("    s_and_b64 vcc, vcc, s[74:75]")
    e("    s_lshr_b64 s[72:73], s[72:73], 1")
    e("    s_or_b64 s[72:73], s[72:73], vcc")
    e("    s_mov_b32 s68, 0")
    e("    s_mov_b32 s69, 0")
    e("    s_mov_b32 s70, 0")
    e("    s_or_b64 s[76:77], s[4:5], s[6:7]")
    e("    s_or_b64 s[76:77], s[76:77], s[72:73]")
    e("    s_cbranch_scc1 EXTRA")
    e("CDONE:")
    e("    s_waitcnt lgkmcnt(0)")
    e("    s_barrier")
    stamp2("b_bar1", "")
    e("    ds_read_b128 v[4:7], v90")
    prefetch(PF4)
    if I("pfx", 0) == 4:
        own_rows()
    e("    s_lshl_b32 s76, s3, 2")
    e("    s_add_u32 s76, s76, 3")
    e("    s_waitcnt lgkmcnt(0)")
    e("    v_add_u32 v5, v4, v5")
    e("    v_add_u32 v6, v5, v6")
    e("    v_add_u32 v7, v6, v7")
    e("    s_nop 1")
    e("    v_and_b32_dpp v28, v7, v95 quad_perm:[0,0,0,0] row_mask:0xf bank_mask:0xf")
    e("    v_and_b32_dpp v29, v7, v96 quad_perm:[1,1,1,1] row_mask:0xf bank_mask:0xf")
    e("    v_and_b32_dpp v30, v7, v97 quad_perm:[2,2,2,2] row_mask:0xf bank_mask:0xf")
    e("    v_add3_u32 v28, v28, v29, v30")
    e("    v_add_u32 v7, v28, v7")
    e("    v_lshl_add_u32 v28, v28, 2, v98")
    e(f"    v_cmp_lt_u32 vcc, {CAPT}, v7")
    e("    v_lshl_add_u32 v29, v4, 2, v28")
    e("    v_lshl_add_u32 v30, v5, 2, v28")
    e("    v_lshl_add_u32 v31, v6, 2, v28")
    e("    v_readlane_b32 s74, v7, s76")
    e("    ds_write_b128 v90, v[28:31] offset:1024")
    for s in range(8):
        e(f"    s_mov_b64 exec, {PEND(s)}")
        e(f"    ds_read_b32 v{20+s}, v{40+s} offset:1024")
    e("    s_mov_b64 exec, -1")
    e(f"    s_min_u32 s74, s74, {CAPT}")
    e("    v_and_b32 v2, 63, v0")
    e("    v_add_u32 v2, s74, v2")
    e("    s_add_u32 s76, s74, 31")
    e("    s_andn2_b32 s76, s76, 31")
    e(f"    s_mul_i32 s77, s3, {TSTR}")
    e(f"    s_add_u32 s77, s77, {LISTS}")
    e("    s_cbranch_vccnz SLOWW")
    for s in range(8):
        e(f"    s_mov_b64 exec, {PEND(s)}")
        e("    s_waitcnt lgkmcnt(7)")
        e(f"    v_lshl_add_u32 v{20+s}, v{32+s}, 2, v{20+s}")
        e(f"    ds_write2st64_b32 v{20+s}, v{48+s}, v{56+s} offset0:0 offset1:5")
        e(f"    s_mov_b64 {PEND(s)}, 0")
    e("WDONE:")
    e("    s_mov_b64 exec, -1")
    e("    v_cmp_gt_u32 vcc, s76, v2")
    e("    v_lshl_add_u32 v2, v2, 2, s77")
    e(f"    v_mov_b32 v3, {PADV}")
    e(f"    v_mov_b32 v4, {MORE}")
    e("    s_mov_b64 exec, vcc")
    e("    ds_write2st64_b32 v2, v3, v3 offset0:0 offset1:5")
    e("    s_mov_b64 exec, -1")
    e("    s_waitcnt lgkmcnt(0)")
    e("    s_barrier")
    stamp2("b_bar2", "")
    e("    ds_read_b32 v8, v4")

    def next_k():
        e("    s_mov_b32 s8, 1")
        e("    s_cmp_gt_i32 s9, s10")
        e("    s_addc_u32 s8, s8, 0")
        e("    s_lshl_b32 s11, s10, 1")
        e("    s_cmp_gt_i32 s9, s11")
        e("    s_addc_u32 s8, s8, 0")
        e("    s_add_i32 s11, s11, s10")
        e("    s_cmp_gt_i32 s9, s11")
        e("    s_addc_u32 s8, s8, 0")
        e("    s_min_i32 s8, s8, s9")
        e("    s_sub_i32 s9, s9, s8")
        e("    s_sub_i32 s10, s10, 1")
        e("    s_lshl_b32 s11, s8, 5")

    def read_recs(adv):
        e("    ds_read2_b32 v[100:101], v93 offset0:0 offset1:8")
        e("    ds_read2_b32 v[102:103], v93 offset0:16 offset1:24")
        e("    ds_read_b128 v[104:107], v94")
        e("    ds_read_b128 v[108:111], v94 offset:16")
        e(f"    v_add_u32 v93, {adv}, v93")
        e(f"    v_add_u32 v94, {adv}, v94")

    def dma(i):
        e(f"    buffer_load_dwordx4 v{100+i}, {R(S_GAT)}, 0 offen offset:{1024*i} lds")

    def addr():
        for i in range(4):
            e(f"    v_add_u32 v{100+i}, v{100+i}, v{80+i}")

    def build_b(w):
        for j in range(8):
            e(f"    v_bfe_i32 v{32+j}, v{104+j}, v92, {w}")
        for j in range(8):
            e(f"    v_and_b32 v{32+j}, v{32+j}, v{104+j}")
        for j in range(4):
            e(f"    v_perm_b32 v{112+j}, v{32+2*j+1}, v{32+2*j}, s1")

    def mfmas():
        for t in range(4):
            e(f"    v_mfma_f32_16x16x32_bf16 v[{64+4*t}:{67+4*t}], v[{12+4*t}:{15+4*t}], v[112:115], v[{64+4*t}:{67+4*t}]")

    e("MAIN:")
    if PRIO == 1:
        for g in range(1, 4):
            e(f"    s_cmp_lt_u32 s3, {4*g}")
            e("    s_cbranch_scc1 PRIOD")
            e(f"    s_setprio {g}")
        e("PRIOD:")
    e("    s_cmp_eq_u32 s74, 0")
    e("    s_cbranch_scc1 MAINDONE")
    e("    v_mov_b32 v93, v88")
    e("    v_mov_b32 v94, v89")
    read_recs(128)
    e("    s_add_u32 s9, s74, 7")
    e("    s_lshr_b32 s9, s9, 3")
    e("    s_sub_i32 s9, s9, 4")
    e("    s_max_i32 s9, s9, 0")
    e(f"    s_mov_b32 s10, {NB-1}")
    e("    s_waitcnt lgkmcnt(2)")
    addr()
    for i in range(4):
        dma(i)
    next_k()
    e("    s_waitcnt lgkmcnt(0)")
    build_b("1")
    read_recs("s11")
    e("LOOP:")
    e("    v_cmp_gt_u32 vcc, s8, v11")
    if PRIO == 3:
        e("    s_setprio 3")
    e("    s_waitcnt vmcnt(0)")
    for t in range(4):
        for u in range(2):
            e(f"    ds_read_b64_tr_b16 v[{12+4*t+2*u}:{13+4*t+2*u}], v{84+t} offset:{512*u}")
    e("    s_cmp_eq_u32 s8, 0")
    e("    v_cndmask_b32 v91, 0, v1, vcc")
    e("    s_waitcnt lgkmcnt(8)")
    addr()
    e("    s_waitcnt lgkmcnt(0)")
    e("    s_cbranch_scc1 LAST")
    dma(0)
    e("    s_cmp_eq_u32 s8, 1")
    e("    s_cbranch_scc1 DMAD")
    dma(1)
    e("    s_cmp_eq_u32 s8, 2")
    e("    s_cbranch_scc1 DMAD")
    dma(2)
    e("    s_cmp_eq_u32 s8, 3")
    e("    s_cbranch_scc1 DMAD")
    dma(3)
    e("DMAD:")
    if PRIO == 2:
        e("    s_lshr_b32 s11, s3, 2")
        e("    s_add_u32 s11, s11, s10")
        e("    s_and_b32 s11, s11, 3")
        e("    s_setprio 0")
        for g in range(1, 4):
            e(f"    s_cmp_lt_u32 s11, {g}")
            e("    s_cbranch_scc1 PRIOD")
            e(f"    s_setprio {g}")
        e("PRIOD:")
    if PRIO == 3:
        e("    s_setprio 0")
    mfmas()
    next_k()
    build_b("v91")
    read_recs("s11")
    e("    s_branch LOOP")
    e("LAST:")
    mfmas()
    e("MAINDONE:")
    e("    s_waitcnt lgkmcnt(0)")
    e("    v_readfirstlane_b32 s75, v8")
    e("    s_cmp_eq_u32 s75, 0")
    e("    s_cbranch_scc1 EPI")
    e("    s_or_b32 s71, s71, 2")
    e("    s_barrier")
    zero_b_counters((WL - CNTB) // 4)
    e("    s_waitcnt lgkmcnt(0)")
    e("    s_barrier")
    for s in range(7):
        e(f"    s_mov_b64 exec, {PEND(s)}")
        e(f"    ds_add_rtn_u32 v{32+s}, v{40+s}, v1")
    e("EXTRA:")
    for m, r in (("s[4:5]", 116), ("s[6:7]", 118)):
        e(f"    s_andn2_b64 exec, {m}, {PEND(7)}")
        e(f"    s_andn2_b64 {m}, {m}, exec")
        e(f"    s_or_b64 {PEND(7)}, {PEND(7)}, exec")
        decode_full(r, r + 1, 7)
    e("    s_mov_b64 exec, -1")
    e("    s_or_b64 s[76:77], s[4:5], s[6:7]")
    e("    s_cbranch_scc1 OVFULL")
    e("    s_mov_b32 s75, 0")
    e("OVL:")
    e("    s_cmp_lt_u32 s68, s69")
    e("    s_cbranch_scc1 OVLOAD")
    e("    s_cmp_eq_u64 s[72:73], 0")
    e("    s_cbranch_scc1 OVDONE")
    e("    s_ff1_i32_b64 s76, s[72:73]")
    e("    s_bitset0_b64 s[72:73], s76")
    e("    s_or_b32 s77, s76, 7")
    e("    v_readlane_b32 s68, v116, s77")
    e("    v_readlane_b32 s69, v118, s77")
    e("    s_bitcmp1_b32 s76, 0")
    e("    s_cselect_b32 s69, s69, s68")
    e(f"    s_min_u32 s69, s69, {4*NTHR}")
    e("    s_and_b32 s77, s76, 1")
    e("    s_lshl_b32 s77, s77, 7")
    e("    s_lshr_b32 s76, s76, 3")
    e("    s_add_u32 s76, s76, s77")
    e("    s_lshl_b32 s77, s3, 3")
    e("    s_add_u32 s76, s76, s77")
    e("    s_lshl_b32 s70, s76, 15")
    e(f"    s_mov_b32 s68, {NINL}")
    e("OVLOAD:")
    e("    v_add_u32 v4, s75, v0")
    e("    v_and_b32 v4, 63, v4")
    e("    v_add_u32 v4, s68, v4")
    e("    v_lshlrev_b32 v5, 3, v4")
    e(f"    buffer_load_dwordx2 v[28:29], v5, {R(S_OVF)}, s70 offen {SC}")
    e("    s_waitcnt vmcnt(0)")
    e(f"    v_mul_u32_u24 v30, {TM}, v29")
    e("    v_lshrrev_b32 v31, 20, v30")
    e("    v_cmp_gt_u32 vcc, s69, v4")
    e("    v_cmp_eq_u32 s[76:77], s2, v31")
    e("    s_and_b64 vcc, s[76:77], vcc")
    e(f"    s_and_b64 s[76:77], vcc, {PEND(7)}")
    e("    s_cbranch_scc1 OVFULL")
    e(f"    s_or_b64 {PEND(7)}, {PEND(7)}, vcc")
    e("    s_add_u32 s68, s68, 64")
    e("    s_add_u32 s75, s75, 16")
    e("    s_mov_b64 exec, vcc")
    decode_full(28, 29, 7)
    e("    s_mov_b64 exec, -1")
    e("    s_branch OVL")
    e("OVFULL:")
    e(f"    v_mov_b32 v2, {MORE}")
    e("    ds_write_b32 v2, v1")
    e("OVDONE:")
    e(f"    s_mov_b64 exec, {PEND(7)}")
    e("    ds_add_rtn_u32 v39, v47, v1")
    e("    s_mov_b64 exec, -1")
    e("    s_branch CDONE")
    for i in range(2):
        base = 12 + 4 * i
        e(f"C_RETRY{i}:")
        if TORN:
            for h in ("vcc_lo", "vcc_hi"):
                for bb in range(4):
                    n = len(L)
                    e(f"    s_bfe_u32 s76, {h}, {(8 << 16) | (8*bb)}")
                    e("    s_cmp_eq_u32 s76, 0")
                    e(f"    s_cbranch_scc1 TN{n}")
                    e("    s_cmp_eq_u32 s76, 0xff")
                    e(f"    s_cbranch_scc1 TN{n}")
                    e("    s_add_u32 s16, s16, 1")
                    e("    s_cmp_eq_u32 s76, 0x0f")
                    e(f"    s_cbranch_scc1 TN{n}")
                    e("    s_cmp_eq_u32 s76, 0xf0")
                    e(f"    s_cbranch_scc1 TN{n}")
                    e("    s_add_u32 s17, s17, 1")
                    e(f"TN{n}:")
            e("    s_add_u32 s16, s16, 0x10000")
        e(f"    buffer_load_dwordx4 v[{base}:{base+3}], v9, {R(S_WS)}, s{68+i} offen {LD_SL}")
        e("    s_sub_u32 s75, s75, 1")
        e("    s_cmp_eq_u32 s75, 0")
        e("    s_waitcnt vmcnt(0)")
        e(f"    s_cbranch_scc0 C_CHK{i}")
        e("    s_mov_b32 s75, 1000")
        e(f"    s_branch C_OK{i}")
    e("C_RETRY2:")
    e(f"    buffer_load_dwordx2 v[116:117], v31, {R(S_WS)}, s70 offen {SC}")
    e(f"    buffer_load_dwordx2 v[118:119], v31, {R(S_WS)}, s74 offen {SC}")
    e("    s_sub_u32 s75, s75, 1")
    e("    s_cmp_eq_u32 s75, 0")
    e("    s_waitcnt vmcnt(0)")
    e("    s_cbranch_scc0 C_CHK2")
    e("    s_branch C_OK2")
    e("SLOWW:")
    e("    s_waitcnt lgkmcnt(0)")
    for s in range(8):
        e(f"    s_mov_b64 exec, {PEND(s)}")
        e(f"    v_lshl_add_u32 v{20+s}, v{32+s}, 2, v{20+s}")
        e(f"    v_subrev_u32 v3, s0, v{40+s}")
        e("    v_lshrrev_b32 v3, 6, v3")
        e(f"    v_mul_u32_u24 v3, {TSTR}, v3")
        e(f"    v_add_u32 v3, {LISTS + CAPT*4}, v3")
        e(f"    v_cmp_lt_u32 vcc, v{20+s}, v3")
        e(f"    s_andn2_b64 {PEND(s)}, exec, vcc")
        e("    s_mov_b64 exec, vcc")
        e(f"    ds_write2st64_b32 v{20+s}, v{48+s}, v{56+s} offset0:0 offset1:5")
    e("    s_mov_b64 exec, -1")
    e(f"    v_mov_b32 v3, {MORE}")
    e("    ds_write_b32 v3, v1")
    e("    s_branch WDONE")

    e("EPI:")
    if PRIO:
        e("    s_setprio 0")
    stamp2("h1_done", "h2_done")
    e("    s_lshl_b32 s76, s2, 4")
    e("    s_add_u32 s76, s76, s3")
    e("    s_mul_i32 s77, s76, 50006")
    e("    s_lshr_b32 s77, s77, 12")
    e("    v_subrev_u32 v2, s77, v92")
    e("    v_and_b32 v2, 15, v2")
    e("    v_add_u32 v2, s77, v2")
    e(f"    v_mul_u32_u24 v3, {TM}, v2")
    e("    v_lshrrev_b32 v3, 16, v3")
    e("    v_cmp_eq_u32 s[52:53], s76, v3")
    e("    v_lshlrev_b32 v2, 7, v2")
    e("    v_lshl_add_u32 v2, v11, 4, v2")
    e("    v_and_b32 v5, 1, v11")
    e("    v_cmp_eq_u32 s[54:55], 1, v5")
    for t in range(4):
        e(f"    v_cvt_pk_bf16_f32 v{12+2*t}, v{64+4*t}, v{65+4*t}")
        e(f"    v_cvt_pk_bf16_f32 v{13+2*t}, v{66+4*t}, v{67+4*t}")
    e("    s_mov_b64 exec, s[54:55]")
    e("    v_swap_b32 v12, v14")
    e("    v_swap_b32 v13, v15")
    e("    v_swap_b32 v16, v18")
    e("    v_swap_b32 v17, v19")
    e("    s_bitcmp1_b32 s71, 0")
    e("    s_cbranch_scc1 FINAL")
    e("    s_mov_b64 exec, s[52:53]")
    e(f"    buffer_store_dwordx4 v[12:15], v2, {R(S_STO)}, 0 offen {SCH}")
    e(f"    buffer_store_dwordx4 v[16:19], v2, {R(S_STO)}, 0 offen offset:64 {SCH}")
    e("    s_mov_b64 exec, -1")
    stamp("h1_st")
    srd(S_GAT, 18, 19, TABBYTES + 3072, WS_H1 - 3072)
    e("    s_or_b32 s71, s71, 1")
    zero_b_counters(256)
    for i in range(16):
        e(f"    v_mov_b32 v{64+i}, 0")
    e("    v_lshlrev_b32 v9, 4, v0")
    e("    v_lshlrev_b32 v31, 3, v0")
    e("    s_waitcnt lgkmcnt(0)")
    grid_barrier("g2", 1, 0, 0)
    e("    v_mov_b32 v8, 0")
    e("    s_bitcmp0_b32 s71, 1")
    e("    s_cbranch_scc1 MAIN")
    e("    s_branch COLLECT")
    e("FINAL:")
    e("    s_mov_b64 exec, -1")
    srd(S_STO, 14, 15, TABBYTES)
    e("    v_bfe_u32 v7, v0, 2, 2")
    e("    v_lshl_add_u32 v6, v11, 3, v7")
    e("    v_lshlrev_b32 v6, 7, v6")
    e("    v_and_b32 v7, 3, v0")
    e("    v_lshl_add_u32 v6, v7, 4, v6")
    e(f"    v_add_u32 v6, {WL}, v6")
    for s in range(2):
        for t in range(4):
            for u in range(2):
                off = (32 * s + 4 * u) * 128 + 64 * (t >> 1) + 8 * (t & 1)
                r = 80 + (s * 4 + t) * 4 + 2 * u
                e(f"    ds_read_b64_tr_b16 v[{r}:{r+1}], v6 offset:{off}")
    e("    s_waitcnt lgkmcnt(8)")
    for t in range(4):
        e(f"    v_mfma_f32_16x16x32_bf16 v[{64+4*t}:{67+4*t}], v[{80+4*t}:{83+4*t}], v[12:15], 0")
    e("    s_waitcnt lgkmcnt(0)")
    for t in range(4):
        e(f"    v_mfma_f32_16x16x32_bf16 v[{64+4*t}:{67+4*t}], v[{96+4*t}:{99+4*t}], v[16:19], v[{64+4*t}:{67+4*t}]")
    e("    s_nop 7")
    e("    s_nop 1")
    for t in range(4):
        e(f"    v_cvt_pk_bf16_f32 v{12+2*t}, v{64+4*t}, v{65+4*t}")
        e(f"    v_cvt_pk_bf16_f32 v{13+2*t}, v{66+4*t}, v{67+4*t}")
    e("    s_mov_b64 exec, s[52:53]")
    e(f"    buffer_store_dwordx4 v[12:15], v2, {R(S_STO)}, 0 offen {ST_OUT}")
    e(f"    buffer_store_dwordx4 v[16:19], v2, {R(S_STO)}, 0 offen offset:64 {ST_OUT}")
    stamp_out()
    e("END:")
    e("    s_endpgm")


SPIN = OPT.get("spin")
if SPIN:
    e(f"; @launch kernel={NAME} grid=(256,1,1) block=(1024,1,1) lds={LDS}")
    e("; @launch kernel=sgc_spin_kernel grid=(1,1,1) block=(64,1,1) lds=0")
else:
    e(f"; @launch grid=(256,1,1) block=(1024,1,1) lds={LDS}")
e('.amdgcn_target "amdgcn-amd-amdhsa--gfx950"')
e(".text")
body()
if SPIN:
    na, nb_, mode, mult, wlo, whi = (SPIN.split(",") + ["0", "15"])[:6]
    wlo, whi = int(wlo), int(whi)
    ia, ib, mode, mult = STL.index(na), STL.index(nb_), int(mode), int(mult)
    e(".globl sgc_spin_kernel")
    e(".p2align 8")
    e(".type sgc_spin_kernel,@function")
    e("sgc_spin_kernel:")
    e("    s_memrealtime s[30:31]")
    e("    s_cmp_ge_u32 s2, 1")
    e("    s_cbranch_scc1 SP_END")
    e("    s_load_dwordx8 s[12:19], s[0:1], 32")
    e("    v_lshlrev_b32 v1, 6, v0")
    e("    v_mov_b32 v4, 0x7fffffff")
    e("    v_mov_b32 v5, %s" % ("0x80000000" if mode == 0 else "0x7fffffff" if mode == 1 else "0"))
    e("    s_waitcnt lgkmcnt(0)")
    srd(20, 18, 19, 1 << 20, WS_STAMP)
    e("    s_mov_b32 s24, 0")
    e("SP_RD:")
    e(f"    buffer_load_dword v2, v1, s[20:23], s24 offen offset:{4*ia}")
    e(f"    buffer_load_dword v3, v1, s[20:23], s24 offen offset:{4*ib}")
    e("    s_add_u32 s24, s24, 4096")
    e("    s_cmp_lt_u32 s24, 0x40000")
    e("    s_waitcnt vmcnt(0)")
    e("    v_subrev_u32 v2, s30, v2")
    e("    v_subrev_u32 v3, s30, v3")
    e("    v_min_i32 v4, v4, v2")
    e("    %s v5, v5, v3" % ("v_max_i32" if mode == 0 else "v_min_i32" if mode == 1 else "v_add_u32"))
    e("    s_cbranch_scc1 SP_RD")
    e("    s_mov_b32 s26, 0x7fffffff")
    e("    s_mov_b32 s27, %s" % ("0x80000000" if mode == 0 else "0x7fffffff" if mode == 1 else "0"))
    e("    s_nop 1")
    for l in range(64):
        e(f"    v_readlane_b32 s28, v4, {l}")
        e(f"    v_readlane_b32 s29, v5, {l}")
        e("    s_min_i32 s26, s26, s28")
        if wlo <= (l & 15) <= whi:
            e("    %s s27, s27, s29" % ("s_max_i32" if mode == 0 else "s_min_i32" if mode == 1 else "s_add_u32"))
    if mode == 2:
        e("    s_ashr_i32 s27, s27, %d" % (8 + (whi - wlo + 1).bit_length() - 1))
    if mode == 3:
        e("    s_mov_b32 s27, 0")
    e("    s_sub_i32 s26, s27, s26")
    e("    s_max_i32 s26, s26, 0")
    e("    s_min_i32 s26, s26, 20000")
    e(f"    s_mul_i32 s26, s26, {mult}")
    e("    s_add_u32 s26, s26, 10000")
    e("SP_LOOP:")
    e("    s_memrealtime s[28:29]")
    e("    s_waitcnt lgkmcnt(0)")
    e("    s_sub_u32 s28, s28, s30")
    e("    s_cmp_lt_u32 s28, s26")
    e("    s_cbranch_scc1 SP_LOOP")
    e("SP_END:")
    e("    s_endpgm")
e('.section .rodata,"a"')
if SPIN:
    e(".p2align 6")
    e(".amdhsa_kernel sgc_spin_kernel")
    e("  .amdhsa_next_free_vgpr 8")
    e("  .amdhsa_next_free_sgpr 40")
    e("  .amdhsa_accum_offset 8")
    e("  .amdhsa_group_segment_fixed_size 0")
    e("  .amdhsa_kernarg_size 64")
    e("  .amdhsa_user_sgpr_count 2")
    e("  .amdhsa_user_sgpr_kernarg_segment_ptr 1")
    e("  .amdhsa_system_sgpr_workgroup_id_x 1")
    e(".end_amdhsa_kernel")
e(".p2align 6")
e(f".amdhsa_kernel {NAME}")
e("  .amdhsa_next_free_vgpr 128")
e("  .amdhsa_next_free_sgpr 102")
e("  .amdhsa_accum_offset 128")
e("  .amdhsa_group_segment_fixed_size 0")
e("  .amdhsa_kernarg_size 64")
e("  .amdhsa_user_sgpr_count 2")
e("  .amdhsa_user_sgpr_kernarg_segment_ptr 1")
e("  .amdhsa_system_sgpr_workgroup_id_x 1")
e(".end_amdhsa_kernel")
open(OUT, "w").write("\n".join(L) + "\n")
```

```python
import sys

OUT = [a for a in sys.argv[1:] if not a.startswith("--")][0]
OPT = dict(a[2:].split("=") for a in sys.argv[1:] if a.startswith("--") and "=" in a)
NAME = "standalone__spectral_conv_sgc__graph_kernel"
DEFST = "start,a_bar1,a_bar2,g1_exit,b_lines,b_bar1,b_bar2,h1_done,h1_st,g2_exit,h2_done,end"
STL = OPT.get("st", DEFST if "--diag" in sys.argv else "").split(",")
STL = [s for s in STL if s]
DIAG = len(STL) > 0


def I(name, dflt):
    return int(OPT.get(name, dflt))


N = 50000
E = 850000
ET = 800000
TM = 5368
CH = 3128
NMAIN = CH // 4
TCH = 196
NTHR = NMAIN + TCH // 4
SLOTCAP = 24
NINL = 7
WS_SLOTS = 0
WS_OVT = 8 << 20
WS_FLAG = WS_OVT + 65536
WS_H1 = WS_OVT + (1 << 20)
WS_OVF = 16 << 20
OVF_STRIDE = 32768
WS_STAMP = 32 << 20
TABBYTES = N * 128
PADV = 0x40000000

K1_LS = 132
K1_CNT = 256 * K1_LS
K1_OVC = 1024
K1_OVT = K1_CNT + 4096
K1_NON = K1_OVT + 64
LISTS = 65536
CAPT = 320
TSTR = CAPT * 8
CNTB = LISTS + 16 * TSTR + 256
BASES = CNTB + 1024
MORE = BASES + 1024
WL = MORE + 64
LDS = WL + 8192

SC = OPT.get("sc", "sc1")
SCF = OPT.get("scf", "sc1")
SCH = OPT.get("sch", SC)
LD_IN = OPT.get("ldin", "")
LD_SL = OPT.get("ldsl", SC)
ST_OUT = OPT.get("stout", "nt")
SPINMAX = 20000000
NREP = I("nrep", 8)
LSTR = I("lstr", 128)
NB = I("nb", 8)
TOUCH = I("touch", 1)
PFS = I("pfstep", 80)
PF = [I("pf0", 0), I("pf1", 0), I("pf2", 0), I("pf3", 0)]
PF4 = I("pf4", 0)
PRIO = I("prio", 1)
ACKW = I("ackw", 2)
TORN = I("torn", 0)
PFH = I("pfh", 1)

L = []


def e(s=""):
    L.append(s)


def srd(d, lo, hi, nbytes, off=0):
    if off == 0:
        e(f"    s_mov_b32 s{d}, s{lo}")
        e(f"    s_and_b32 s{d+1}, s{hi}, 0xffff")
    elif off > 0:
        e(f"    s_add_u32 s{d}, s{lo}, {off}")
        e(f"    s_addc_u32 s{d+1}, s{hi}, 0")
        e(f"    s_and_b32 s{d+1}, s{d+1}, 0xffff")
    else:
        e(f"    s_sub_u32 s{d}, s{lo}, {-off}")
        e(f"    s_subb_u32 s{d+1}, s{hi}, 0")
        e(f"    s_and_b32 s{d+1}, s{d+1}, 0xffff")
    e(f"    s_mov_b32 s{d+2}, {nbytes}")
    e(f"    s_mov_b32 s{d+3}, 0x20000")


S_SRC, S_DST, S_NRM, S_WS, S_OVF, S_GAT, S_STO, S_DBG = 20, 24, 28, 32, 36, 40, 44, 48
WSBYTES = WS_H1


def R(d):
    return f"s[{d}:{d+3}]"


STAMP_BASE = 78


def stamp(name):
    if "c_" + name in STL:
        i = STL.index("c_" + name)
        e(f"    s_memtime s[{STAMP_BASE+2*i}:{STAMP_BASE+2*i+1}]")
    if name in STL:
        i = STL.index(name)
        e(f"    s_memrealtime s[{STAMP_BASE+2*i}:{STAMP_BASE+2*i+1}]")


def stamp2(n1, n2):
    if n1 in STL or n2 in STL:
        n = len(L)
        e("    s_bitcmp1_b32 s71, 0")
        e(f"    s_cbranch_scc1 ST{n}_B")
        stamp(n1)
        e(f"    s_branch ST{n}_C")
        e(f"ST{n}_B:")
        stamp(n2)
        e(f"ST{n}_C:")


def stamp_out():
    if not DIAG:
        return
    e("    s_waitcnt vmcnt(0) lgkmcnt(0)")
    stamp("end")
    e("    s_waitcnt lgkmcnt(0)")
    if "xcc" in STL:
        i = STL.index("xcc")
        e("    s_getreg_b32 s76, hwreg(HW_REG_XCC_ID, 0, 4)")
        e("    s_sub_u32 s76, s2, s76")
        e("    s_and_b32 s76, s76, 7")
        e("    s_mul_i32 s76, s76, 200")
        e(f"    s_add_u32 s{STAMP_BASE+2*i}, s{STAMP_BASE}, s76")
    e("    s_mov_b64 exec, 1")
    srd(20, 18, 19, 1 << 20, WS_STAMP - (I("wsoff", 0) << 20))
    e("    s_lshl_b32 s76, s2, 4")
    e("    s_add_u32 s76, s76, s3")
    e("    s_lshl_b32 s76, s76, 6")
    e("    v_mov_b32 v2, s76")
    for i in range(len(STL)):
        e(f"    v_mov_b32 v3, s{STAMP_BASE+2*i}")
        e(f"    buffer_store_dword v3, v2, s[20:23], 0 offen offset:{4*i}")
    e("    s_getreg_b32 s76, hwreg(HW_REG_XCC_ID)")
    e("    v_mov_b32 v3, s76")
    e("    buffer_store_dword v3, v2, s[20:23], 0 offen offset:56")
    e("    v_mov_b32 v3, s16")
    e("    buffer_store_dword v3, v2, s[20:23], 0 offen offset:60")
    e("    v_mov_b32 v3, s17")
    e("    buffer_store_dword v3, v2, s[20:23], 0 offen offset:52")


def PEND(s):
    return f"s[{52+2*s}:{53+2*s}]"


pf_base = [0]


def prefetch(cnt, nwaves=16, wave0=0):
    if cnt == 0:
        return 0
    nops = (cnt + 63) // 64
    e("    s_lshr_b32 s76, s2, 3")
    e(f"    s_mul_i32 s76, s76, {nwaves}")
    e("    s_add_u32 s76, s76, s3")
    e(f"    s_mul_i32 s76, s76, {cnt}")
    e(f"    s_add_u32 s76, s76, {pf_base[0] - wave0*cnt}")
    for o in range(nops):
        n = min(64, cnt - 64 * o)
        e("    v_and_b32 v2, 63, v0")
        e("    v_add_u32 v2, s76, v2")
        e("    v_lshrrev_b32 v3, 5, v2")
        e("    v_and_b32 v2, 31, v2")
        e(f"    v_mul_u32_u24 v3, {PFS}, v3")
        e("    v_add_lshl_u32 v2, v2, v3, 7")
        if n < 64:
            e(f"    s_mov_b32 exec_lo, {((1 << n) - 1) & 0xffffffff}")
            e(f"    s_mov_b32 exec_hi, {((1 << n) - 1) >> 32}")
        e(f"    buffer_load_dword v126, v2, {R(S_GAT)}, 0 offen offset:3072")
        if n < 64:
            e("    s_mov_b64 exec, -1")
        if o + 1 < nops:
            e("    s_add_u32 s76, s76, 64")
    pf_base[0] += 32 * nwaves * cnt
    return nops


def own_rows():
    e("    s_lshl_b32 s76, s2, 4")
    e("    s_add_u32 s76, s76, s3")
    e("    s_mul_i32 s76, s76, 50006")
    e("    s_lshr_b32 s76, s76, 12")
    e("    v_add_lshl_u32 v2, v92, s76, 7")
    e("    s_mov_b64 exec, 0x1fff")
    e(f"    buffer_load_dword v126, v2, {R(S_GAT)}, 0 offen offset:3072")
    e("    s_mov_b64 exec, -1")


def own_h1():
    e("    s_and_b64 exec, s[14:15], 0xffff")
    e(f"    buffer_load_dword v126, v121, {R(S_STO)}, 0 offen sc1")
    e("    s_mov_b64 exec, -1")


def grid_barrier(p, idx, pfa, pfb):
    rstr = 64 * LSTR
    fb = WS_FLAG + idx * NREP * rstr
    n = prefetch(pfa)
    e(f"    s_waitcnt vmcnt({n})")
    stamp(p + "_ack")
    if PFH == 2:
        own_h1()
    e("    s_barrier")
    if idx == 0:
        e("    s_cmp_lt_u32 s3, 13")
        e("    s_cbranch_scc1 G1_NOW")
        e(f"    v_subrev_u32 v2, {13*64}, v0")
        e("    v_lshlrev_b32 v2, 4, v2")
        e(f"    v_cmp_gt_u32 vcc, 2048, v2")
        e(f"    v_add_u32 v2, {WL}, v2")
        e("    ds_write_b128 v2, v[100:103]")
        e("    ds_write_b128 v2, v[104:107] offset:3072")
        e("    s_and_saveexec_b64 s[76:77], vcc")
        e("    ds_write_b128 v2, v[108:111] offset:6144")
        e("    s_mov_b64 exec, -1")
        e("G1_NOW:")
    e("    s_cmp_lg_u32 s3, 0")
    e(f"    s_cbranch_scc1 {p}_OTH")
    stamp(p + "_arr")
    if idx == 0:
        e(f"    s_mov_b32 s76, {SPINMAX}")
        e(f"{p}_NONCE:")
        e("    v_cmp_ne_u32 vcc, 0, v125")
        e(f"    s_cbranch_vccnz {p}_GOTN")
        e("    v_mov_b32 v2, 0")
        e(f"    buffer_load_dword v125, v2, {R(S_DBG)}, 0 offen {SCF}")
        e("    s_sub_u32 s76, s76, 1")
        e("    s_cmp_eq_u32 s76, 0")
        e("    s_waitcnt vmcnt(0)")
        e(f"    s_cbranch_scc0 {p}_NONCE")
        e(f"{p}_GOTN:")
    e("    s_lshr_b32 s76, s2, 2")
    e(f"    s_mul_i32 s76, s76, {LSTR}")
    e("    s_and_b32 s77, s2, 3")
    e("    s_lshl_b32 s77, s77, 2")
    e("    s_add_u32 s76, s76, s77")
    e(f"    s_add_u32 s76, s76, {fb}")
    e(f"    v_mul_u32_u24 v2, {rstr}, v0")
    e(f"    s_mov_b32 exec_lo, {((1 << NREP) - 1) & 0xffffffff}")
    e(f"    s_mov_b32 exec_hi, {((1 << NREP) - 1) >> 32}")
    e(f"    buffer_store_dword v125, v2, {R(S_WS)}, s76 offen {SCF}")
    e("    s_mov_b64 exec, -1")
    if PFH == 1:
        own_h1()
    e("    s_getreg_b32 s77, hwreg(HW_REG_XCC_ID, 0, 4)")
    e(f"    s_and_b32 s77, s77, {NREP-1}")
    e(f"    s_mul_i32 s77, s77, {rstr}")
    e(f"    s_add_u32 s77, s77, {fb}")
    e(f"    v_mul_u32_u24 v8, {LSTR}, v0")
    e(f"    s_mov_b32 s76, {SPINMAX}")
    e(f"{p}_POLL:")
    e(f"    buffer_load_dwordx4 v[4:7], v8, {R(S_WS)}, s77 offen {SCF}")
    e("    s_sub_u32 s76, s76, 1")
    e("    s_cmp_eq_u32 s76, 0")
    e("    s_waitcnt vmcnt(0)")
    e(f"    s_cbranch_scc1 {p}_WAIT")
    e("    v_xor_b32 v4, v4, v125")
    e("    v_xor_b32 v5, v5, v125")
    e("    v_xor_b32 v6, v6, v125")
    e("    v_xor_b32 v7, v7, v125")
    e("    v_or3_b32 v4, v4, v5, v6")
    e("    v_or_b32 v4, v4, v7")
    e("    v_cmp_ne_u32 vcc, 0, v4")
    e(f"    s_cbranch_vccnz {p}_POLL")
    e(f"    s_branch {p}_WAIT")
    e(f"{p}_OTH:")
    if PFH == 1:
        own_h1()
    e(f"{p}_WAIT:")
    e("    s_barrier")
    stamp(p + "_exit")


def decode_key(rec, meta, k, s):
    ca = 40 + s
    e(f"    v_bfe_u32 v2, v{rec}, 12, 4")
    e(f"    v_and_b32_sdwa v3, v{meta}, v99 dst_sel:DWORD dst_unused:UNUSED_PAD src0_sel:BYTE_{k} src1_sel:DWORD")
    e(f"    v_or_b32 v2, v2, v3")
    e(f"    v_lshl_add_u32 v{ca}, v2, 2, s0")


def decode_data(rec, meta, k, s):
    d0, d1 = 48 + s, 56 + s
    e(f"    v_lshlrev_b32_sdwa v{d0}, v124, v{rec} dst_sel:DWORD dst_unused:UNUSED_PAD src0_sel:DWORD src1_sel:WORD_0")
    if OPT.get("srcmask"):
        e(f"    v_and_b32 v{d0}, {OPT['srcmask']}, v{d0}")
    e(f"    v_mov_b32 v{d1}, v{rec}")
    e(f"    v_lshlrev_b16_sdwa v{d1}, v{meta}, v1 dst_sel:WORD_0 dst_unused:UNUSED_PRESERVE src0_sel:BYTE_{k} src1_sel:DWORD")


def decode_full(rec, dst, s):
    e(f"    v_mul_u32_u24 v30, {TM}, v{dst}")
    e("    v_lshrrev_b32 v30, 12, v30")
    e(f"    v_bfi_b32 v30, 15, v{dst}, v30")
    decode_key(rec, 30, 0, s)
    decode_data(rec, 30, 0, s)


def zero_b_counters(n):
    e("    v_lshlrev_b32 v2, 2, v0")
    e(f"    v_add_u32 v2, {CNTB}, v2")
    e("    v_mov_b32 v3, 0")
    e(f"    v_cmp_gt_u32 vcc, {n}, v0")
    e("    s_and_saveexec_b64 s[76:77], vcc")
    e("    ds_write_b32 v2, v3")
    e("    s_mov_b64 exec, -1")


def body():
    e(f".globl {NAME}")
    e(".p2align 8")
    e(f".type {NAME},@function")
    e(f"{NAME}:")
    stamp("start")
    e("    s_cmp_ge_u32 s2, 256")
    e("    s_cbranch_scc1 END")
    e("    s_load_dwordx8 s[4:11], s[0:1], 0")
    e("    s_load_dwordx8 s[12:19], s[0:1], 32")
    e("    v_lshlrev_b32 v9, 2, v0")
    e("    v_lshrrev_b32 v3, 6, v0")
    e(f"    s_mul_i32 s68, s2, {CH}")
    e(f"    s_mul_i32 s69, s2, {TCH}")
    e("    v_readfirstlane_b32 s3, v3")
    e(f"    s_add_u32 s69, s69, {ET - 4*NMAIN}")
    e("    v_add_u32 v4, s68, v9")
    e("    v_add_u32 v5, s69, v9")
    e(f"    v_cmp_gt_u32 vcc, {NMAIN}, v0")
    e(f"    v_mov_b32 v7, {E}")
    e(f"    v_mov_b32 v3, {ET}")
    e("    v_cndmask_b32 v6, v5, v4, vcc")
    e("    v_cndmask_b32 v7, v7, v3, vcc")
    e("    v_cmp_lt_u32 s[72:73], v6, v7")
    e(f"    v_cmp_gt_u32 vcc, {NTHR}, v0")
    e("    v_sub_u32 v8, v6, v3")
    e("    s_and_b64 s[72:73], s[72:73], vcc")
    e(f"    v_mov_b32 v3, {1 << 24}")
    e("    v_cndmask_b32 v6, v3, v6, s[72:73]")
    e("    v_lshlrev_b32 v4, 2, v6")
    e("    v_lshlrev_b32 v5, 1, v6")
    e("    s_waitcnt lgkmcnt(0)")
    if I("wsoff", 0):
        e(f"    s_add_u32 s18, s18, {I('wsoff', 0) << 20}")
        e("    s_addc_u32 s19, s19, 0")
    srd(S_DST, 8, 9, E * 4)
    srd(S_SRC, 6, 7, E * 4)
    srd(S_NRM, 10, 11, E * 2)
    e("    s_cmp_ge_u32 s3, 13")
    e("    s_cbranch_scc1 A_HELP")
    e(f"    buffer_load_dwordx4 v[12:15], v4, {R(S_DST)}, 0 offen {LD_IN}")
    e(f"    buffer_load_dwordx4 v[16:19], v4, {R(S_SRC)}, 0 offen {LD_IN}")
    e(f"    buffer_load_dwordx2 v[20:21], v5, {R(S_NRM)}, 0 offen {LD_IN}")
    stamp("a_issue")
    srd(S_DBG, 16, 17, 256)
    e("    s_branch A_BAR")
    e("A_HELP:")
    srd(S_DBG, 16, 17, 256)
    e("    s_cmp_lg_u32 s2, 0")
    e("    s_cbranch_scc1 A_NONONCE")
    e("    s_cmp_lg_u32 s3, 13")
    e("    s_cbranch_scc1 A_NONONCE")
    e("    s_memrealtime s[76:77]")
    e("    v_mov_b32 v2, 0")
    e("    s_waitcnt lgkmcnt(0)")
    e("    s_mul_i32 s68, s76, 0x9e3779b1")
    e("    s_mul_hi_u32 s69, s76, 0x9e3779b1")
    e("    s_xor_b32 s68, s68, s69")
    e("    s_xor_b32 s68, s68, s77")
    e("    s_mul_i32 s69, s68, 0x85ebca6b")
    e("    s_mul_hi_u32 s70, s68, 0x85ebca6b")
    e("    s_xor_b32 s69, s69, s70")
    e("    s_or_b32 s68, s68, 1")
    e("    v_mov_b32 v4, s68")
    e("    v_mov_b32 v5, s69")
    e("    s_mov_b64 exec, 1")
    e(f"    buffer_store_dwordx2 v[4:5], v2, {R(S_DBG)}, 0 offen {SCF}")
    e("    s_mov_b64 exec, -1")
    e("A_NONONCE:")
    srd(S_STO, 12, 13, 8192)
    e(f"    v_subrev_u32 v2, {13*64}, v0")
    e("    v_lshlrev_b32 v2, 4, v2")
    e(f"    buffer_load_dwordx4 v[100:103], v2, {R(S_STO)}, 0 offen")
    e(f"    buffer_load_dwordx4 v[104:107], v2, {R(S_STO)}, 0 offen offset:3072")
    e("    v_add_u32 v3, 6144, v2")
    e(f"    buffer_load_dwordx4 v[108:111], v3, {R(S_STO)}, 0 offen")
    e("A_BAR:")
    e("    v_mov_b32 v2, 0")
    e(f"    ds_write_b32 v9, v2 offset:{K1_CNT}")
    e("    v_mov_b32 v24, -1")
    e("    v_mov_b32 v25, -1")
    e("    v_mov_b32 v26, -1")
    e("    v_mov_b32 v27, -1")
    e("    v_lshlrev_b32 v2, 4, v0")
    e("    ds_write_b128 v2, v[24:27]")
    e("    ds_write_b128 v2, v[24:27] offset:16384")
    e("    s_cmp_lg_u32 s3, 15")
    e("    s_cbranch_scc1 A_INITD")
    e(f"    ds_write_b128 v2, v[24:27] offset:{32768 - 15*1024}")
    e("    v_and_b32 v4, 60, v9")
    e("    v_mov_b32 v2, 0xffff")
    e(f"    ds_write_b32 v4, v2 offset:{K1_OVT}")
    e("A_INITD:")
    e("    s_waitcnt lgkmcnt(0)")
    e("    s_barrier")
    stamp("a_bar1")
    srd(S_WS, 18, 19, WSBYTES, 0)
    srd(S_OVF, 18, 19, 256 * OVF_STRIDE, WS_OVF)
    srd(S_GAT, 4, 5, TABBYTES + 3072, -3072)
    srd(S_STO, 18, 19, TABBYTES, WS_H1)
    e("    v_mov_b32 v1, 1")
    e("    v_mov_b32 v99, 0xf0")
    e("    v_mov_b32 v124, 7")
    e(f"    s_mov_b32 s0, {CNTB}")
    e("    s_mov_b32 s1, 0x07060302")
    e("    s_mov_b32 s71, 0")
    e("    s_mov_b64 s[12:13], 0")
    e("    s_cmp_ge_u32 s3, 4")
    e("    s_cbranch_scc1 A_NOTAIL")
    e("    v_lshrrev_b32 v2, 4, v0")
    e("    s_lshl_b32 s76, s2, 4")
    e("    v_add_u32 v2, s76, v2")
    e("    v_mul_u32_u24 v3, 50006, v2")
    e("    v_lshrrev_b32 v3, 12, v3")
    e("    v_sub_u32 v4, v0, v3")
    e("    v_and_b32 v4, 15, v4")
    e("    v_add_u32 v123, v3, v4")
    e(f"    v_mul_u32_u24 v4, {TM}, v123")
    e("    v_lshrrev_b32 v4, 16, v4")
    e("    v_cmp_eq_u32 s[12:13], v4, v2")
    e(f"    v_cmp_gt_u32 vcc, {N}, v123")
    e(f"    v_add_u32 v4, {ET}, v123")
    e("    v_lshlrev_b32 v5, 2, v4")
    e("    v_lshlrev_b32 v4, 1, v4")
    e("    s_and_b64 s[12:13], s[12:13], vcc")
    e(f"    buffer_load_dword v120, v5, {R(S_DST)}, 0 offen")
    e(f"    buffer_load_dword v121, v5, {R(S_SRC)}, 0 offen")
    e(f"    buffer_load_ushort v122, v4, {R(S_NRM)}, 0 offen")
    e("A_NOTAIL:")
    if TOUCH:
        e("    s_cmp_lg_u32 s3, 14")
        e("    s_cbranch_scc1 A_NOTOUCH")
        e("    v_and_b32 v2, 63, v0")
        e("    v_lshlrev_b32 v2, 18, v2")
        e(f"    buffer_load_dword v126, v2, {R(S_WS)}, 0 offen sc1")
        e(f"    buffer_load_dword v126, v2, {R(S_STO)}, 0 offen sc1")
        e(f"    buffer_load_dword v126, v2, {R(S_GAT)}, 0 offen offset:3072")
        e("A_NOTOUCH:")
    if PF[0]:
        e("    s_cmp_lg_u32 s3, 15")
        e("    s_cbranch_scc1 A_NOPF")
        prefetch(PF[0], 1, 15)
        e("A_NOPF:")
    zero_b_counters((WL - CNTB) // 4)
    e("    v_and_b32 v10, 7, v0")
    e("    v_and_b32 v2, 63, v0")
    e("    v_bfe_u32 v3, v2, 4, 1")
    e("    v_xor_b32 v3, v3, v10")
    e("    v_lshlrev_b32 v83, 4, v3")
    e("    v_add_u32 v80, 3072, v83")
    e("    v_add_u32 v82, 1024, v83")
    e("    v_xor_b32 v83, 64, v83")
    e("    v_add_u32 v81, 2048, v83")
    e("    v_and_b32 v92, 15, v0")
    e("    v_lshrrev_b32 v11, 4, v2")
    e("    v_bfe_u32 v6, v2, 2, 2")
    e("    v_and_b32 v7, 3, v2")
    e("    v_lshl_add_u32 v84, v11, 3, v6")
    e("    v_lshlrev_b32 v84, 7, v84")
    e("    v_lshrrev_b32 v6, 1, v6")
    e("    v_and_b32 v4, 1, v11")
    e("    v_lshl_or_b32 v6, v4, 2, v6")
    e("    v_xor_b32 v6, v6, v7")
    e("    v_lshl_add_u32 v84, v6, 4, v84")
    e("    v_and_b32 v4, 1, v7")
    e("    v_lshl_add_u32 v84, v4, 3, v84")
    e("    s_lshl_b32 s76, s3, 12")
    e("    v_add_u32 v84, s76, v84")
    e("    s_mov_b32 m0, s76")
    e("    v_xor_b32 v85, 8, v84")
    e("    v_xor_b32 v86, 64, v84")
    e("    v_xor_b32 v87, 72, v84")
    e(f"    s_mul_i32 s76, s3, {TSTR}")
    e(f"    s_add_u32 s76, s76, {LISTS}")
    e("    v_lshrrev_b32 v4, 3, v2")
    e("    v_lshl_add_u32 v88, v4, 2, s76")
    e(f"    s_add_u32 s76, s76, {CAPT*4}")
    e("    v_lshl_add_u32 v89, v11, 5, s76")
    e("    v_cmp_lt_u32 vcc, 0, v7")
    e("    v_cmp_lt_u32 s[76:77], 1, v7")
    e("    v_lshrrev_b32 v4, 2, v2")
    e("    v_cndmask_b32 v95, 0, -1, vcc")
    e("    v_cndmask_b32 v96, 0, -1, s[76:77]")
    e("    v_cmp_lt_u32 vcc, 2, v7")
    e(f"    v_mul_u32_u24 v98, {TSTR}, v4")
    e(f"    v_add_u32 v98, {LISTS}, v98")
    e("    v_cndmask_b32 v97, 0, -1, vcc")
    e("    v_lshlrev_b32 v90, 4, v2")
    e(f"    v_add_u32 v90, {CNTB}, v90")
    for i in range(16):
        e(f"    v_mov_b32 v{64+i}, 0")
    if I("pfx", 4) == 1:
        e("    s_cmp_lg_u32 s3, 15")
        e("    s_cbranch_scc1 A_NOX")
        e("    s_mul_i32 s76, s2, 196*128")
        e("    v_and_b32 v2, 63, v0")
        e("    v_lshlrev_b32 v2, 7, v2")
        for o in range(4):
            if o == 3:
                e("    s_mov_b64 exec, 15")
            e(f"    buffer_load_dword v126, v2, {R(S_GAT)}, s76 offen offset:3072")
            e("    s_add_u32 s76, s76, 8192")
        e("    s_mov_b64 exec, -1")
        e("A_NOX:")
    e("    s_cmp_lt_u32 s3, 13")
    e("    s_cbranch_scc1 A_EDGES")
    e("    s_cmp_lg_u32 s3, 13")
    e("    s_cbranch_scc1 A_OUT")
    e(f"    s_mov_b32 s76, {SPINMAX}")
    e("    v_mov_b32 v2, 0")
    e("A_NPOLL:")
    e(f"    buffer_load_dwordx2 v[4:5], v2, {R(S_DBG)}, 0 offen {SCF}")
    e("    s_sub_u32 s76, s76, 1")
    e("    s_cmp_eq_u32 s76, 0")
    e("    s_waitcnt vmcnt(0)")
    e("    s_cbranch_scc1 A_NGOT")
    e("    v_cmp_eq_u32 vcc, 0, v4")
    e("    s_cbranch_vccnz A_NPOLL")
    e("A_NGOT:")
    e(f"    ds_write_b64 v2, v[4:5] offset:{K1_NON}")
    e("    s_branch A_OUT")
    e("A_EDGES:")
    e("    s_mov_b64 exec, s[72:73]")
    e("    s_mov_b32 s70, 0xffff0000")
    stamp("a_setup")
    e("    s_cmp_ge_u32 s3, 4")
    e("    s_cbranch_scc1 A_W2")
    e("    s_waitcnt vmcnt(5)")
    e("    s_branch A_W5")
    e("A_W2:")
    e("    s_waitcnt vmcnt(2)")
    e("A_W5:")
    stamp("a_dst")
    for k in range(4):
        e(f"    v_mul_u32_u24 v{24+k}, {TM}, v{12+k}")
        e(f"    v_add_u32 v2, {k}, v8")
        e(f"    v_lshrrev_b32 v{28+k}, 20, v{24+k}")
        e(f"    v_cmp_ne_u32 s[{52+2*k}:{53+2*k}], v{12+k}, v2")
        e(f"    v_lshlrev_b32 v{36+k}, 2, v{28+k}")
    for k in range(4):
        e(f"    s_mov_b64 exec, s[{52+2*k}:{53+2*k}]")
        e(f"    ds_add_rtn_u32 v{32+k}, v{36+k}, v1 offset:{K1_CNT}")
    e("    s_mov_b64 exec, s[72:73]")
    for k in range(4):
        e(f"    v_lshrrev_b32 v{24+k}, 12, v{24+k}")
        e(f"    v_mul_u32_u24 v{28+k}, {K1_LS}, v{28+k}")
        e(f"    v_bfi_b32 v{24+k}, 15, v{12+k}, v{24+k}")
    e("    s_mov_b64 s[60:61], 0")
    for k in range(4):
        e(f"    s_mov_b64 exec, s[{52+2*k}:{53+2*k}]")
        e(f"    s_waitcnt lgkmcnt(3)")
        e(f"    v_cmp_gt_u32 vcc, {SLOTCAP}, v{32+k}")
        e(f"    v_and_b32 v2, 7, v{32+k}")
        e(f"    v_lshrrev_b32 v3, 3, v{32+k}")
        e(f"    s_andn2_b64 s[{52+2*k}:{53+2*k}], exec, vcc")
        e(f"    s_or_b64 s[60:61], s[60:61], s[{52+2*k}:{53+2*k}]")
        e(f"    s_mov_b64 s[{4+2*k}:{5+2*k}], vcc")
        e("    s_mov_b64 exec, vcc")
        e(f"    v_lshl_add_u32 v2, v2, 4, v{28+k}")
        e(f"    v_lshl_add_u32 v{36+k}, v3, 2, v2")
        e("    v_add_u32 v5, v3, v2")
        e(f"    ds_write_b8 v5, v{24+k} offset:12")
    e("    s_mov_b64 exec, s[72:73]")
    e("    s_waitcnt vmcnt(0)")
    stamp("a_all")
    for k in range(4):
        if k % 2 == 0:
            e(f"    v_lshl_or_b32 v{16+k}, v{20+k//2}, 16, v{16+k}")
        else:
            e(f"    v_and_or_b32 v{16+k}, v{20+k//2}, s70, v{16+k}")
    for k in range(4):
        e(f"    s_mov_b64 exec, s[{4+2*k}:{5+2*k}]")
        e(f"    ds_write_b32 v{36+k}, v{16+k}")
    e("    s_cmp_eq_u64 s[60:61], 0")
    e("    s_cbranch_scc1 A_OUT")
    e("    s_lshl_b32 s62, s2, 15")
    for k in range(4):
        e(f"    s_mov_b64 exec, s[{52+2*k}:{53+2*k}]")
        e(f"    s_cbranch_execz A_OV{k}")
        e(f"    v_mov_b32 v2, {K1_OVC}")
        e(f"    ds_add_rtn_u32 v3, v2, v1 offset:{K1_CNT}")
        e(f"    v_mov_b32 v4, v{16+k}")
        e(f"    v_mov_b32 v5, v{12+k}")
        e("    s_waitcnt lgkmcnt(0)")
        e(f"    v_cmp_gt_u32 vcc, {NINL}, v3")
        e("    v_lshlrev_b32 v3, 3, v3")
        e("    s_andn2_b64 s[76:77], exec, vcc")
        e("    s_mov_b64 exec, vcc")
        e(f"    ds_write_b64 v3, v[4:5] offset:{K1_OVT}")
        e("    s_mov_b64 exec, s[76:77]")
        e(f"    s_cbranch_execz A_OV{k}")
        e(f"    buffer_store_dwordx2 v[4:5], v3, {R(S_OVF)}, s62 offen {SC}")
        e("    s_waitcnt vmcnt(0)")
        e(f"A_OV{k}:")
    e("A_OUT:")
    e("    s_mov_b64 exec, -1")
    e("    v_lshrrev_b32 v2, 3, v0")
    e(f"    v_mul_u32_u24 v4, {K1_LS}, v2")
    e("    v_lshl_add_u32 v4, v10, 4, v4")
    e(f"    v_add_u32 v5, {128*K1_LS}, v4")
    e("    v_lshlrev_b32 v7, 15, v2")
    e("    v_lshl_add_u32 v7, v10, 4, v7")
    if I("skew", 0):
        e(f"    v_mul_u32_u24 v3, {I('skew', 0)}, v2")
        e("    v_add_u32 v3, s2, v3")
        e("    v_and_b32 v3, 255, v3")
        e("    v_lshl_add_u32 v7, v3, 7, v7")
        e("    s_mov_b32 s62, 0")
        e(f"    s_mov_b32 s63, {128*32768}")
    else:
        e("    s_lshl_b32 s62, s2, 7")
        e(f"    s_add_u32 s63, s62, {128*32768}")
    e("    s_mov_b32 s64, 0xffffff")
    e("    v_and_b32 v6, 6, v10")
    e("    s_waitcnt lgkmcnt(0)")
    stamp("a_pre2")
    e("    s_barrier")
    stamp("a_bar2")
    e(f"    ds_read_u8 v127, v10 offset:{K1_NON}")
    e("    ds_read2_b32 v[12:13], v4 offset0:0 offset1:1")
    e("    ds_read2_b32 v[14:15], v4 offset0:2 offset1:3")
    e("    ds_read2_b32 v[16:17], v5 offset0:0 offset1:1")
    e("    ds_read2_b32 v[18:19], v5 offset0:2 offset1:3")
    e(f"    ds_read_u16 v91, v6 offset:{K1_NON}")
    e("    v_mov_b32 v8, 0")
    e(f"    ds_read_b32 v125, v8 offset:{K1_NON}")
    e("    s_waitcnt lgkmcnt(6)")
    e("    v_lshlrev_b32 v20, 24, v127")
    e("    s_waitcnt lgkmcnt(4)")
    e("    v_and_or_b32 v15, v15, s64, v20")
    e(f"    buffer_store_dwordx4 v[12:15], v7, {R(S_WS)}, s62 offen {SC}")
    e("    s_waitcnt lgkmcnt(2)")
    e("    v_and_or_b32 v19, v19, s64, v20")
    e(f"    buffer_store_dwordx4 v[16:19], v7, {R(S_WS)}, s63 offen {SC}")
    e("    s_cmp_lg_u32 s3, 15")
    e("    s_cbranch_scc1 A_FIN")
    e("    s_mov_b64 exec, 0xff")
    e("    v_lshlrev_b32 v2, 3, v10")
    e(f"    ds_read_b64 v[24:25], v2 offset:{K1_OVT}")
    e(f"    ds_read_b32 v22, v8 offset:{K1_CNT+K1_OVC}")
    e("    v_cmp_eq_u32 vcc, 7, v10")
    e("    s_lshl_b32 s62, s2, 6")
    e(f"    s_add_u32 s62, s62, {WS_OVT}")
    e("    s_waitcnt lgkmcnt(0)")
    e("    v_cndmask_b32 v24, v24, v22, vcc")
    e("    v_lshl_or_b32 v25, v91, 16, v25")
    e(f"    buffer_store_dwordx2 v[24:25], v2, {R(S_WS)}, s62 offen {SC}")
    e("A_FIN:")
    e("    s_mov_b64 exec, -1")
    stamp("a_st")
    e("    s_cmp_ge_u32 s3, 4")
    e("    s_cbranch_scc1 A_TD")
    e("    v_cmp_eq_u32 vcc, v120, v123")
    e("    v_lshl_or_b32 v121, v122, 16, v121")
    e("    s_and_b64 s[12:13], s[12:13], vcc")
    decode_key(121, 0, 0, 6)
    decode_data(121, 0, 0, 6)
    e("A_TD:")
    srd(S_SRC, 14, 15, TABBYTES)
    srd(S_DST, 18, 19, TABBYTES + 3072, WS_H1 - 3072)
    e("    s_lshl_b32 s76, s2, 4")
    e("    s_add_u32 s76, s76, s3")
    e("    s_mul_i32 s77, s76, 50006")
    e("    s_lshr_b32 s77, s77, 12")
    e("    v_subrev_u32 v2, s77, v92")
    e("    v_and_b32 v2, 15, v2")
    e("    v_add_u32 v2, s77, v2")
    e(f"    v_mul_u32_u24 v3, {TM}, v2")
    e("    v_lshrrev_b32 v3, 16, v3")
    e("    v_cmp_eq_u32 s[14:15], s76, v3")
    e("    v_lshlrev_b32 v2, 7, v2")
    e("    v_lshl_add_u32 v121, v11, 4, v2")
    e("    v_and_b32 v5, 1, v11")
    e("    v_cmp_eq_u32 s[16:17], 1, v5")
    e("    v_bfe_u32 v7, v0, 2, 2")
    e("    v_lshl_add_u32 v6, v11, 3, v7")
    e("    v_lshlrev_b32 v6, 7, v6")
    e("    v_and_b32 v7, 3, v0")
    e("    v_lshl_add_u32 v6, v7, 4, v6")
    e(f"    v_add_u32 v122, {WL}, v6")
    e("    v_lshlrev_b32 v9, 4, v0")
    e("    v_lshlrev_b32 v31, 3, v0")
    e("    s_waitcnt lgkmcnt(0)")
    e("    v_mov_b32 v120, v91")
    e("    s_cmp_lt_u32 s3, 13")
    e("    s_cbranch_scc1 G1_NOW")
    e(f"    v_subrev_u32 v2, {13*64}, v0")
    e("    v_lshlrev_b32 v2, 4, v2")
    e(f"    v_cmp_gt_u32 vcc, 2048, v2")
    e(f"    v_add_u32 v2, {WL}, v2")
    e("    s_waitcnt vmcnt(0)")
    e("    ds_write_b128 v2, v[100:103]")
    e("    ds_write_b128 v2, v[104:107] offset:3072")
    e("    s_and_saveexec_b64 s[76:77], vcc")
    e("    ds_write_b128 v2, v[108:111] offset:6144")
    e("    s_mov_b64 exec, -1")
    e("G1_NOW:")
    if ACKW:
        e("    s_waitcnt vmcnt(0)")
    stamp("g1_ack")
    if ACKW >= 2:
        e("    s_barrier")
    if ACKW >= 3:
        e(f"    s_mov_b32 s70, {WS_OVT}")
        e(f"    s_mov_b32 s74, {WS_OVT + 8192}")
        e(f"    s_mov_b32 s75, {SPINMAX}")
        e("P_POLL:")
        e(f"    buffer_load_dwordx2 v[116:117], v31, {R(S_WS)}, s70 offen {SC}")
        e(f"    buffer_load_dwordx2 v[118:119], v31, {R(S_WS)}, s74 offen {SC}")
        e("    s_sub_u32 s75, s75, 1")
        e("    s_cmp_eq_u32 s75, 0")
        e("    s_waitcnt vmcnt(0)")
        e("    s_cbranch_scc1 P_DONE")
        e("    v_cmp_ne_u32_sdwa vcc, v117, v120 src0_sel:WORD_1 src1_sel:DWORD")
        e("    v_cmp_ne_u32_sdwa s[76:77], v119, v120 src0_sel:WORD_1 src1_sel:DWORD")
        e("    s_or_b64 vcc, vcc, s[76:77]")
        e("    s_cbranch_scc1 P_POLL")
        e("P_DONE:")
    stamp("g1_exit")
    if TORN:
        e("    s_mov_b32 s16, 0")
        e("    s_mov_b32 s17, 0")

    e("COLLECT:")
    e("    s_lshl_b32 s68, s2, 15")
    e("    s_add_u32 s69, s68, 16384")
    e(f"    s_mov_b32 s70, {WS_OVT}")
    e(f"    s_mov_b32 s74, {WS_OVT + 8192}")
    e(f"    buffer_load_dwordx4 v[12:15], v9, {R(S_WS)}, s68 offen {LD_SL}")
    e(f"    buffer_load_dwordx4 v[16:19], v9, {R(S_WS)}, s69 offen {LD_SL}")
    e(f"    buffer_load_dwordx2 v[116:117], v31, {R(S_WS)}, s70 offen {SC}")
    e(f"    buffer_load_dwordx2 v[118:119], v31, {R(S_WS)}, s74 offen {SC}")
    e(f"    s_mov_b64 {PEND(6)}, s[12:13]")
    e(f"    s_mov_b64 {PEND(7)}, 0")
    e(f"    s_mov_b32 s75, {SPINMAX}")
    e("    s_movk_i32 s11, 0xffff")
    e(f"    s_mov_b64 exec, {PEND(6)}")
    e("    ds_add_rtn_u32 v38, v46, v1")
    e("    s_mov_b64 exec, -1")
    for i in range(2):
        base = 12 + 4 * i
        e(f"    s_waitcnt vmcnt({3-i})")
        e(f"C_CHK{i}:")
        e(f"    v_cmp_ne_u32_sdwa vcc, v{base+3}, v127 src0_sel:BYTE_3 src1_sel:DWORD")
        e(f"    s_cbranch_vccnz C_RETRY{i}")
        e(f"C_OK{i}:")
        if i == 0:
            stamp("b_lines")
        else:
            stamp("b_lines1")
        for k in range(3):
            e(f"    v_cmp_ne_u16 {PEND(3*i+k)}, s11, v{base+k}")
        for k in range(3):
            decode_key(base + k, base + 3, k, 3 * i + k)
        for k in range(3):
            s = 3 * i + k
            e(f"    s_mov_b64 exec, {PEND(s)}")
            e(f"    ds_add_rtn_u32 v{32+s}, v{40+s}, v1")
        e("    s_mov_b64 exec, -1")
        for k in range(3):
            decode_data(base + k, base + 3, k, 3 * i + k)
    e("    s_waitcnt vmcnt(0)")
    e("C_CHK2:")
    e("    v_cmp_ne_u32_sdwa vcc, v117, v120 src0_sel:WORD_1 src1_sel:DWORD")
    e("    v_cmp_ne_u32_sdwa s[76:77], v119, v120 src0_sel:WORD_1 src1_sel:DWORD")
    e("    s_or_b64 vcc, vcc, s[76:77]")
    e("    s_cbranch_scc1 C_RETRY2")
    e("C_OK2:")
    if I("pfx", 4) == 3:
        own_rows()
    e("    v_and_b32 v117, 0xffff, v117")
    e("    v_and_b32 v119, 0xffff, v119")
    e(f"    v_mul_u32_u24 v2, {TM}, v117")
    e(f"    v_mul_u32_u24 v3, {TM}, v119")
    e("    v_cmp_eq_u32 s[74:75], 7, v10")
    e(f"    v_cmp_lt_u32 s[72:73], {NINL}, v116")
    e(f"    v_cmp_lt_u32 vcc, {NINL}, v118")
    e("    v_lshrrev_b32 v2, 20, v2")
    e("    v_lshrrev_b32 v3, 20, v3")
    e("    v_cmp_eq_u32 s[4:5], s2, v2")
    e("    v_cmp_eq_u32 s[6:7], s2, v3")
    e("    s_and_b64 s[72:73], s[72:73], s[74:75]")
    e("    s_and_b64 vcc, vcc, s[74:75]")
    e("    s_lshr_b64 s[72:73], s[72:73], 1")
    e("    s_or_b64 s[72:73], s[72:73], vcc")
    e("    s_mov_b32 s68, 0")
    e("    s_mov_b32 s69, 0")
    e("    s_mov_b32 s70, 0")
    e("    s_or_b64 s[76:77], s[4:5], s[6:7]")
    e("    s_or_b64 s[76:77], s[76:77], s[72:73]")
    e("    s_cbranch_scc1 EXTRA")
    e("CDONE:")
    e("    s_waitcnt lgkmcnt(0)")
    e("    s_barrier")
    stamp2("b_bar1", "")
    e("    ds_read_b128 v[4:7], v90")
    prefetch(PF4)
    if I("pfx", 4) == 4:
        own_rows()
    e("    s_lshl_b32 s76, s3, 2")
    e("    s_add_u32 s76, s76, 3")
    e("    s_waitcnt lgkmcnt(0)")
    e("    v_add_u32 v5, v4, v5")
    e("    v_add_u32 v6, v5, v6")
    e("    v_add_u32 v7, v6, v7")
    e("    s_nop 1")
    e("    v_and_b32_dpp v28, v7, v95 quad_perm:[0,0,0,0] row_mask:0xf bank_mask:0xf")
    e("    v_and_b32_dpp v29, v7, v96 quad_perm:[1,1,1,1] row_mask:0xf bank_mask:0xf")
    e("    v_and_b32_dpp v30, v7, v97 quad_perm:[2,2,2,2] row_mask:0xf bank_mask:0xf")
    e("    v_add3_u32 v28, v28, v29, v30")
    e("    v_add_u32 v7, v28, v7")
    e("    v_lshl_add_u32 v28, v28, 2, v98")
    e(f"    v_cmp_lt_u32 vcc, {CAPT}, v7")
    e("    v_lshl_add_u32 v29, v4, 2, v28")
    e("    v_lshl_add_u32 v30, v5, 2, v28")
    e("    v_lshl_add_u32 v31, v6, 2, v28")
    e("    v_readlane_b32 s74, v7, s76")
    e("    ds_write_b128 v90, v[28:31] offset:1024")
    for s in range(8):
        e(f"    s_mov_b64 exec, {PEND(s)}")
        e(f"    ds_read_b32 v{20+s}, v{40+s} offset:1024")
    e("    s_mov_b64 exec, -1")
    e(f"    s_min_u32 s74, s74, {CAPT}")
    e("    v_and_b32 v2, 63, v0")
    e("    v_add_u32 v2, s74, v2")
    e("    s_add_u32 s76, s74, 31")
    e("    s_andn2_b32 s76, s76, 31")
    e(f"    s_mul_i32 s77, s3, {TSTR}")
    e(f"    s_add_u32 s77, s77, {LISTS}")
    e("    s_cbranch_vccnz SLOWW")
    for s in range(8):
        e(f"    s_mov_b64 exec, {PEND(s)}")
        e("    s_waitcnt lgkmcnt(7)")
        e(f"    v_lshl_add_u32 v{20+s}, v{32+s}, 2, v{20+s}")
        e(f"    ds_write2st64_b32 v{20+s}, v{48+s}, v{56+s} offset0:0 offset1:5")
        e(f"    s_mov_b64 {PEND(s)}, 0")
    e("WDONE:")
    e("    s_mov_b64 exec, -1")
    e("    v_cmp_gt_u32 vcc, s76, v2")
    e("    v_lshl_add_u32 v2, v2, 2, s77")
    e(f"    v_mov_b32 v3, {PADV}")
    e(f"    v_mov_b32 v4, {MORE}")
    e("    s_mov_b64 exec, vcc")
    e("    ds_write2st64_b32 v2, v3, v3 offset0:0 offset1:5")
    e("    s_mov_b64 exec, -1")
    e("    s_waitcnt lgkmcnt(0)")
    e("    s_barrier")
    stamp2("b_bar2", "")
    e("    ds_read_b32 v8, v4")

    def next_k():
        e("    s_mov_b32 s8, 1")
        e("    s_cmp_gt_i32 s9, s10")
        e("    s_addc_u32 s8, s8, 0")
        e("    s_lshl_b32 s11, s10, 1")
        e("    s_cmp_gt_i32 s9, s11")
        e("    s_addc_u32 s8, s8, 0")
        e("    s_add_i32 s11, s11, s10")
        e("    s_cmp_gt_i32 s9, s11")
        e("    s_addc_u32 s8, s8, 0")
        e("    s_min_i32 s8, s8, s9")
        e("    s_sub_i32 s9, s9, s8")
        e("    s_sub_i32 s10, s10, 1")
        e("    s_lshl_b32 s11, s8, 5")

    def read_recs(adv):
        e("    ds_read2_b32 v[100:101], v93 offset0:0 offset1:8")
        e("    ds_read2_b32 v[102:103], v93 offset0:16 offset1:24")
        e("    ds_read_b128 v[104:107], v94")
        e("    ds_read_b128 v[108:111], v94 offset:16")
        e(f"    v_add_u32 v93, {adv}, v93")
        e(f"    v_add_u32 v94, {adv}, v94")

    def dma(i):
        e(f"    buffer_load_dwordx4 v{100+i}, {R(S_GAT)}, 0 offen offset:{1024*i} lds")

    def addr():
        for i in range(4):
            e(f"    v_add_u32 v{100+i}, v{100+i}, v{80+i}")

    def build_b(w):
        for j in range(8):
            e(f"    v_bfe_i32 v{32+j}, v{104+j}, v92, {w}")
        for j in range(8):
            e(f"    v_and_b32 v{32+j}, v{32+j}, v{104+j}")
        for j in range(4):
            e(f"    v_perm_b32 v{112+j}, v{32+2*j+1}, v{32+2*j}, s1")

    def mfmas():
        for t in range(4):
            e(f"    v_mfma_f32_16x16x32_bf16 v[{64+4*t}:{67+4*t}], v[{12+4*t}:{15+4*t}], v[112:115], v[{64+4*t}:{67+4*t}]")

    e("MAIN:")
    if I("nomain", 0):
        e("    s_branch MAINDONE")
    if PRIO == 1:
        for g in range(1, 4):
            e(f"    s_cmp_lt_u32 s3, {4*g}")
            e("    s_cbranch_scc1 PRIOD")
            e(f"    s_setprio {g}")
        e("PRIOD:")
    e("    s_cmp_eq_u32 s74, 0")
    e("    s_cbranch_scc1 MAINDONE")
    e("    v_mov_b32 v93, v88")
    e("    v_mov_b32 v94, v89")
    read_recs(128)
    e("    s_add_u32 s9, s74, 7")
    e("    s_lshr_b32 s9, s9, 3")
    e("    s_sub_i32 s9, s9, 4")
    e("    s_max_i32 s9, s9, 0")
    e(f"    s_mov_b32 s10, {NB-1}")
    e("    s_waitcnt lgkmcnt(2)")
    addr()
    for i in range(4):
        dma(i)
    next_k()
    e("    s_waitcnt lgkmcnt(0)")
    build_b("1")
    read_recs("s11")
    e("LOOP:")
    e("    v_cmp_gt_u32 vcc, s8, v11")
    if PRIO == 3:
        e("    s_setprio 3")
    e("    s_waitcnt vmcnt(0)")
    for t in range(4):
        for u in range(2):
            if I("notr", 0):
                e(f"    ds_read_b32 v{12+4*t+2*u}, v1")
            else:
                e(f"    ds_read_b64_tr_b16 v[{12+4*t+2*u}:{13+4*t+2*u}], v{84+t} offset:{512*u}")
    e("    s_cmp_eq_u32 s8, 0")
    e("    v_cndmask_b32 v91, 0, v1, vcc")
    e("    s_waitcnt lgkmcnt(8)")
    addr()
    e("    s_waitcnt lgkmcnt(0)")
    e("    s_cbranch_scc1 LAST")
    dma(0)
    e("    s_cmp_eq_u32 s8, 1")
    e("    s_cbranch_scc1 DMAD")
    dma(1)
    e("    s_cmp_eq_u32 s8, 2")
    e("    s_cbranch_scc1 DMAD")
    dma(2)
    e("    s_cmp_eq_u32 s8, 3")
    e("    s_cbranch_scc1 DMAD")
    dma(3)
    e("DMAD:")
    if PRIO == 2:
        e("    s_lshr_b32 s11, s3, 2")
        e("    s_add_u32 s11, s11, s10")
        e("    s_and_b32 s11, s11, 3")
        e("    s_setprio 0")
        for g in range(1, 4):
            e(f"    s_cmp_lt_u32 s11, {g}")
            e("    s_cbranch_scc1 PRIOD")
            e(f"    s_setprio {g}")
        e("PRIOD:")
    if PRIO == 3:
        e("    s_setprio 0")
    mfmas()
    next_k()
    build_b("v91")
    read_recs("s11")
    e("    s_branch LOOP")
    e("LAST:")
    mfmas()
    e("MAINDONE:")
    e("    s_waitcnt lgkmcnt(0)")
    e("    v_readfirstlane_b32 s75, v8")
    e("    s_cmp_eq_u32 s75, 0")
    e("    s_cbranch_scc1 EPI")
    e("    s_or_b32 s71, s71, 2")
    e("    s_barrier")
    zero_b_counters((WL - CNTB) // 4)
    e("    s_waitcnt lgkmcnt(0)")
    e("    s_barrier")
    for s in range(7):
        e(f"    s_mov_b64 exec, {PEND(s)}")
        e(f"    ds_add_rtn_u32 v{32+s}, v{40+s}, v1")
    e("EXTRA:")
    for m, r in (("s[4:5]", 116), ("s[6:7]", 118)):
        e(f"    s_andn2_b64 exec, {m}, {PEND(7)}")
        e(f"    s_andn2_b64 {m}, {m}, exec")
        e(f"    s_or_b64 {PEND(7)}, {PEND(7)}, exec")
        decode_full(r, r + 1, 7)
    e("    s_mov_b64 exec, -1")
    e("    s_or_b64 s[76:77], s[4:5], s[6:7]")
    e("    s_cbranch_scc1 OVFULL")
    e("    s_mov_b32 s75, 0")
    e("OVL:")
    e("    s_cmp_lt_u32 s68, s69")
    e("    s_cbranch_scc1 OVLOAD")
    e("    s_cmp_eq_u64 s[72:73], 0")
    e("    s_cbranch_scc1 OVDONE")
    e("    s_ff1_i32_b64 s76, s[72:73]")
    e("    s_bitset0_b64 s[72:73], s76")
    e("    s_or_b32 s77, s76, 7")
    e("    v_readlane_b32 s68, v116, s77")
    e("    v_readlane_b32 s69, v118, s77")
    e("    s_bitcmp1_b32 s76, 0")
    e("    s_cselect_b32 s69, s69, s68")
    e(f"    s_min_u32 s69, s69, {4*NTHR}")
    e("    s_and_b32 s77, s76, 1")
    e("    s_lshl_b32 s77, s77, 7")
    e("    s_lshr_b32 s76, s76, 3")
    e("    s_add_u32 s76, s76, s77")
    e("    s_lshl_b32 s77, s3, 3")
    e("    s_add_u32 s76, s76, s77")
    e("    s_lshl_b32 s70, s76, 15")
    e(f"    s_mov_b32 s68, {NINL}")
    e("OVLOAD:")
    e("    v_add_u32 v4, s75, v0")
    e("    v_and_b32 v4, 63, v4")
    e("    v_add_u32 v4, s68, v4")
    e("    v_lshlrev_b32 v5, 3, v4")
    e(f"    buffer_load_dwordx2 v[28:29], v5, {R(S_OVF)}, s70 offen {SC}")
    e("    s_waitcnt vmcnt(0)")
    e(f"    v_mul_u32_u24 v30, {TM}, v29")
    e("    v_lshrrev_b32 v31, 20, v30")
    e("    v_cmp_gt_u32 vcc, s69, v4")
    e("    v_cmp_eq_u32 s[76:77], s2, v31")
    e("    s_and_b64 vcc, s[76:77], vcc")
    e(f"    s_and_b64 s[76:77], vcc, {PEND(7)}")
    e("    s_cbranch_scc1 OVFULL")
    e(f"    s_or_b64 {PEND(7)}, {PEND(7)}, vcc")
    e("    s_add_u32 s68, s68, 64")
    e("    s_add_u32 s75, s75, 16")
    e("    s_mov_b64 exec, vcc")
    decode_full(28, 29, 7)
    e("    s_mov_b64 exec, -1")
    e("    s_branch OVL")
    e("OVFULL:")
    e(f"    v_mov_b32 v2, {MORE}")
    e("    ds_write_b32 v2, v1")
    e("OVDONE:")
    e(f"    s_mov_b64 exec, {PEND(7)}")
    e("    ds_add_rtn_u32 v39, v47, v1")
    e("    s_mov_b64 exec, -1")
    e("    s_branch CDONE")
    for i in range(2):
        base = 12 + 4 * i
        e(f"C_RETRY{i}:")
        if TORN:
            for h in ("vcc_lo", "vcc_hi"):
                for bb in range(4):
                    n = len(L)
                    e(f"    s_bfe_u32 s76, {h}, {(8 << 16) | (8*bb)}")
                    e("    s_cmp_eq_u32 s76, 0")
                    e(f"    s_cbranch_scc1 TN{n}")
                    e("    s_cmp_eq_u32 s76, 0xff")
                    e(f"    s_cbranch_scc1 TN{n}")
                    e("    s_add_u32 s16, s16, 1")
                    e("    s_cmp_eq_u32 s76, 0x0f")
                    e(f"    s_cbranch_scc1 TN{n}")
                    e("    s_cmp_eq_u32 s76, 0xf0")
                    e(f"    s_cbranch_scc1 TN{n}")
                    e("    s_add_u32 s17, s17, 1")
                    e(f"TN{n}:")
            e("    s_add_u32 s16, s16, 0x10000")
        e(f"    buffer_load_dwordx4 v[{base}:{base+3}], v9, {R(S_WS)}, s{68+i} offen {LD_SL}")
        e("    s_sub_u32 s75, s75, 1")
        e("    s_cmp_eq_u32 s75, 0")
        e("    s_waitcnt vmcnt(0)")
        e(f"    s_cbranch_scc0 C_CHK{i}")
        e("    s_mov_b32 s75, 1000")
        e(f"    s_branch C_OK{i}")
    e("C_RETRY2:")
    e(f"    buffer_load_dwordx2 v[116:117], v31, {R(S_WS)}, s70 offen {SC}")
    e(f"    buffer_load_dwordx2 v[118:119], v31, {R(S_WS)}, s74 offen {SC}")
    e("    s_sub_u32 s75, s75, 1")
    e("    s_cmp_eq_u32 s75, 0")
    e("    s_waitcnt vmcnt(0)")
    e("    s_cbranch_scc0 C_CHK2")
    e("    s_branch C_OK2")
    e("SLOWW:")
    e("    s_waitcnt lgkmcnt(0)")
    for s in range(8):
        e(f"    s_mov_b64 exec, {PEND(s)}")
        e(f"    v_lshl_add_u32 v{20+s}, v{32+s}, 2, v{20+s}")
        e(f"    v_subrev_u32 v3, s0, v{40+s}")
        e("    v_lshrrev_b32 v3, 6, v3")
        e(f"    v_mul_u32_u24 v3, {TSTR}, v3")
        e(f"    v_add_u32 v3, {LISTS + CAPT*4}, v3")
        e(f"    v_cmp_lt_u32 vcc, v{20+s}, v3")
        e(f"    s_andn2_b64 {PEND(s)}, exec, vcc")
        e("    s_mov_b64 exec, vcc")
        e(f"    ds_write2st64_b32 v{20+s}, v{48+s}, v{56+s} offset0:0 offset1:5")
    e("    s_mov_b64 exec, -1")
    e(f"    v_mov_b32 v3, {MORE}")
    e("    ds_write_b32 v3, v1")
    e("    s_branch WDONE")

    e("EPI:")
    if PRIO:
        e("    s_setprio 0")
    stamp2("h1_done", "h2_done")
    WREG = [40, 44, 48, 52, 56, 60, 24, 116]
    WREG = [40, 44, 48, 52, 56, 60, 28, 116]

    def w_frags():
        for s_ in range(2):
            for t in range(4):
                for u in range(2):
                    off = (32 * s_ + 4 * u) * 128 + 64 * (t >> 1) + 8 * (t & 1)
                    r = WREG[s_ * 4 + t] + 2 * u
                    e(f"    ds_read_b64_tr_b16 v[{r}:{r+1}], v122 offset:{off}")

    e("    s_nop 4")
    for t in range(4):
        e(f"    v_cvt_pk_bf16_f32 v{12+2*t}, v{64+4*t}, v{65+4*t}")
        e(f"    v_cvt_pk_bf16_f32 v{13+2*t}, v{66+4*t}, v{67+4*t}")
    e("    s_mov_b64 exec, s[16:17]")
    e("    v_swap_b32 v12, v14")
    e("    v_swap_b32 v13, v15")
    e("    v_swap_b32 v16, v18")
    e("    v_swap_b32 v17, v19")
    e("    s_bitcmp1_b32 s71, 0")
    e("    s_cbranch_scc1 FINAL")
    e("    s_mov_b64 exec, s[14:15]")
    e(f"    buffer_store_dwordx4 v[12:15], v121, {R(S_STO)}, 0 offen {SCH}")
    e(f"    buffer_store_dwordx4 v[16:19], v121, {R(S_STO)}, 0 offen offset:64 {SCH}")
    e("    s_mov_b64 exec, -1")
    stamp("h1_st")
    e(f"    s_mov_b32 s{S_GAT}, s{S_DST}")
    e(f"    s_mov_b32 s{S_GAT+1}, s{S_DST+1}")
    e("    s_or_b32 s71, s71, 1")
    for i in range(16):
        e(f"    v_mov_b32 v{64+i}, 0")
    e("    s_bitcmp1_b32 s71, 1")
    e("    s_cbranch_scc1 E_IRR")
    w_frags()
    e("    s_branch E_BAR")
    e("E_IRR:")
    zero_b_counters(256)
    e("    v_lshlrev_b32 v9, 4, v0")
    e("    v_lshlrev_b32 v31, 3, v0")
    e("    s_waitcnt lgkmcnt(0)")
    e("E_BAR:")
    grid_barrier("g2", 1, 0, 0)
    e("    v_mov_b32 v8, 0")
    e("    s_bitcmp0_b32 s71, 1")
    e("    s_cbranch_scc1 MAIN")
    e("    s_branch COLLECT")
    e("FINAL:")
    e("    s_mov_b64 exec, -1")
    e("    s_bitcmp0_b32 s71, 1")
    e("    s_cbranch_scc1 F_HAVEW")
    w_frags()
    e("    s_waitcnt lgkmcnt(0)")
    e("F_HAVEW:")
    for t in range(4):
        w = WREG[t]
        e(f"    v_mfma_f32_16x16x32_bf16 v[{64+4*t}:{67+4*t}], v[{w}:{w+3}], v[12:15], 0")
    for t in range(4):
        w = WREG[4 + t]
        e(f"    v_mfma_f32_16x16x32_bf16 v[{64+4*t}:{67+4*t}], v[{w}:{w+3}], v[16:19], v[{64+4*t}:{67+4*t}]")
    e("    s_nop 4")
    for t in range(4):
        if t:
            e("    s_nop 1")
        e(f"    v_cvt_pk_bf16_f32 v{12+2*t}, v{64+4*t}, v{65+4*t}")
        e(f"    v_cvt_pk_bf16_f32 v{13+2*t}, v{66+4*t}, v{67+4*t}")
    e("    s_mov_b64 exec, s[14:15]")
    e(f"    buffer_store_dwordx4 v[12:15], v121, {R(S_SRC)}, 0 offen {ST_OUT}")
    e(f"    buffer_store_dwordx4 v[16:19], v121, {R(S_SRC)}, 0 offen offset:64 {ST_OUT}")
    stamp_out()
    e("END:")
    e("    s_endpgm")


SPIN = OPT.get("spin")
if SPIN:
    e(f"; @launch kernel={NAME} grid=(256,1,1) block=(1024,1,1) lds={LDS}")
    e("; @launch kernel=sgc_spin_kernel grid=(1,1,1) block=(64,1,1) lds=0")
else:
    e(f"; @launch grid=(256,1,1) block=(1024,1,1) lds={LDS}")
e('.amdgcn_target "amdgcn-amd-amdhsa--gfx950"')
e(".text")
body()
if SPIN:
    na, nb_, mode, mult, wlo, whi = (SPIN.split(",") + ["0", "15"])[:6]
    wlo, whi = int(wlo), int(whi)
    ia, ib, mode, mult = STL.index(na), STL.index(nb_), int(mode), int(mult)
    e(".globl sgc_spin_kernel")
    e(".p2align 8")
    e(".type sgc_spin_kernel,@function")
    e("sgc_spin_kernel:")
    e("    s_memrealtime s[30:31]")
    e("    s_cmp_ge_u32 s2, 1")
    e("    s_cbranch_scc1 SP_END")
    e("    s_load_dwordx8 s[12:19], s[0:1], 32")
    e("    v_lshlrev_b32 v1, 6, v0")
    e("    v_mov_b32 v4, 0x7fffffff")
    e("    v_mov_b32 v5, %s" % ("0x80000000" if mode == 0 else "0x7fffffff" if mode == 1 else "0"))
    e("    s_waitcnt lgkmcnt(0)")
    srd(20, 18, 19, 1 << 20, WS_STAMP)
    e("    s_mov_b32 s24, 0")
    e("SP_RD:")
    e(f"    buffer_load_dword v2, v1, s[20:23], s24 offen offset:{4*ia}")
    e(f"    buffer_load_dword v3, v1, s[20:23], s24 offen offset:{4*ib}")
    e("    s_add_u32 s24, s24, 4096")
    e("    s_cmp_lt_u32 s24, 0x40000")
    e("    s_waitcnt vmcnt(0)")
    e("    v_subrev_u32 v2, s30, v2")
    e("    v_subrev_u32 v3, s30, v3")
    e("    v_min_i32 v4, v4, v2")
    e("    %s v5, v5, v3" % ("v_max_i32" if mode == 0 else "v_min_i32" if mode == 1 else "v_add_u32"))
    e("    s_cbranch_scc1 SP_RD")
    e("    s_mov_b32 s26, 0x7fffffff")
    e("    s_mov_b32 s27, %s" % ("0x80000000" if mode == 0 else "0x7fffffff" if mode == 1 else "0"))
    e("    s_nop 1")
    for l in range(64):
        e(f"    v_readlane_b32 s28, v4, {l}")
        e(f"    v_readlane_b32 s29, v5, {l}")
        e("    s_min_i32 s26, s26, s28")
        if wlo <= (l & 15) <= whi:
            e("    %s s27, s27, s29" % ("s_max_i32" if mode == 0 else "s_min_i32" if mode == 1 else "s_add_u32"))
    if mode == 2:
        e("    s_ashr_i32 s27, s27, %d" % (8 + (whi - wlo + 1).bit_length() - 1))
    if mode == 3:
        e("    s_mov_b32 s27, 0")
    e("    s_sub_i32 s26, s27, s26")
    e("    s_max_i32 s26, s26, 0")
    e("    s_min_i32 s26, s26, 20000")
    e(f"    s_mul_i32 s26, s26, {mult}")
    e("    s_add_u32 s26, s26, 10000")
    e("SP_LOOP:")
    e("    s_memrealtime s[28:29]")
    e("    s_waitcnt lgkmcnt(0)")
    e("    s_sub_u32 s28, s28, s30")
    e("    s_cmp_lt_u32 s28, s26")
    e("    s_cbranch_scc1 SP_LOOP")
    e("SP_END:")
    e("    s_endpgm")
e('.section .rodata,"a"')
if SPIN:
    e(".p2align 6")
    e(".amdhsa_kernel sgc_spin_kernel")
    e("  .amdhsa_next_free_vgpr 8")
    e("  .amdhsa_next_free_sgpr 40")
    e("  .amdhsa_accum_offset 8")
    e("  .amdhsa_group_segment_fixed_size 0")
    e("  .amdhsa_kernarg_size 64")
    e("  .amdhsa_user_sgpr_count 2")
    e("  .amdhsa_user_sgpr_kernarg_segment_ptr 1")
    e("  .amdhsa_system_sgpr_workgroup_id_x 1")
    e(".end_amdhsa_kernel")
e(".p2align 6")
e(f".amdhsa_kernel {NAME}")
e("  .amdhsa_next_free_vgpr 128")
e("  .amdhsa_next_free_sgpr 102")
e("  .amdhsa_accum_offset 128")
e("  .amdhsa_group_segment_fixed_size 0")
e("  .amdhsa_kernarg_size 64")
e("  .amdhsa_user_sgpr_count 2")
e("  .amdhsa_user_sgpr_kernarg_segment_ptr 1")
e("  .amdhsa_system_sgpr_workgroup_id_x 1")
e(".end_amdhsa_kernel")
open(OUT, "w").write("\n".join(L) + "\n")
```

```python
import sys

OUT = [a for a in sys.argv[1:] if not a.startswith("--")][0]
OPT = dict(a[2:].split("=") for a in sys.argv[1:] if a.startswith("--") and "=" in a)
NAME = "standalone__spectral_conv_sgc__graph_kernel"
DEFST = "start,a_bar1,a_bar2,g1_exit,b_lines,b_bar1,b_bar2,h1_done,h1_st,g2_exit,h2_done,end"
STL = OPT.get("st", DEFST if "--diag" in sys.argv else "").split(",")
STL = [s for s in STL if s]
DIAG = len(STL) > 0


def I(name, dflt):
    return int(OPT.get(name, dflt))


N = 50000
E = 850000
ET = 800000
TM = 5368
CH = 3128
NMAIN = CH // 4
TCH = 196
NTHR = NMAIN + TCH // 4
SLOTCAP = 24
NINL = 7
WS_SLOTS = 0
WS_OVT = 8 << 20
WS_FLAG = WS_OVT + 65536
WS_H1 = WS_OVT + (1 << 20)
WS_OVF = 16 << 20
OVF_STRIDE = 32768
WS_STAMP = 32 << 20
TABBYTES = N * 128
PADV = 0x40000000

K1_LS = 132
K1_CNT = 256 * K1_LS
K1_OVC = 1024
K1_OVT = K1_CNT + 4096
K1_NON = K1_OVT + 64
LISTS = 65536
CAPT = 320
TSTR = CAPT * 8
CNTB = LISTS + 16 * TSTR + 256
BASES = CNTB + 1024
MORE = BASES + 1024
WL = MORE + 64
LDS = WL + 8192

SC = OPT.get("sc", "sc1")
SCF = OPT.get("scf", "sc1")
SCH = OPT.get("sch", SC)
LD_IN = OPT.get("ldin", "")
LD_SL = OPT.get("ldsl", SC)
ST_OUT = OPT.get("stout", "nt")
SPINMAX = 20000000
NREP = I("nrep", 8)
LSTR = I("lstr", 128)
NB = I("nb", 8)
TOUCH = I("touch", 1)
PFS = I("pfstep", 80)
PF = [I("pf0", 0), I("pf1", 0), I("pf2", 0), I("pf3", 0)]
PF4 = I("pf4", 0)
PRIO = I("prio", 1)
ACKW = I("ackw", 2)
TORN = I("torn", 0)
PFH = I("pfh", 1)

L = []


def e(s=""):
    L.append(s)


def srd(d, lo, hi, nbytes, off=0):
    if off == 0:
        e(f"    s_mov_b32 s{d}, s{lo}")
        e(f"    s_and_b32 s{d+1}, s{hi}, 0xffff")
    elif off > 0:
        e(f"    s_add_u32 s{d}, s{lo}, {off}")
        e(f"    s_addc_u32 s{d+1}, s{hi}, 0")
        e(f"    s_and_b32 s{d+1}, s{d+1}, 0xffff")
    else:
        e(f"    s_sub_u32 s{d}, s{lo}, {-off}")
        e(f"    s_subb_u32 s{d+1}, s{hi}, 0")
        e(f"    s_and_b32 s{d+1}, s{d+1}, 0xffff")
    e(f"    s_mov_b32 s{d+2}, {nbytes}")
    e(f"    s_mov_b32 s{d+3}, 0x20000")


S_SRC, S_DST, S_NRM, S_WS, S_OVF, S_GAT, S_STO, S_DBG = 20, 24, 28, 32, 36, 40, 44, 48
WSBYTES = WS_H1


def R(d):
    return f"s[{d}:{d+3}]"


STAMP_BASE = 78


def stamp(name):
    if "c_" + name in STL:
        i = STL.index("c_" + name)
        e(f"    s_memtime s[{STAMP_BASE+2*i}:{STAMP_BASE+2*i+1}]")
    if name in STL:
        i = STL.index(name)
        e(f"    s_memrealtime s[{STAMP_BASE+2*i}:{STAMP_BASE+2*i+1}]")


def stamp2(n1, n2):
    if n1 in STL or n2 in STL:
        n = len(L)
        e("    s_bitcmp1_b32 s71, 0")
        e(f"    s_cbranch_scc1 ST{n}_B")
        stamp(n1)
        e(f"    s_branch ST{n}_C")
        e(f"ST{n}_B:")
        stamp(n2)
        e(f"ST{n}_C:")


def stamp_out():
    if not DIAG:
        return
    e("    s_waitcnt vmcnt(0) lgkmcnt(0)")
    stamp("end")
    e("    s_waitcnt lgkmcnt(0)")
    if "xcc" in STL:
        i = STL.index("xcc")
        e("    s_getreg_b32 s76, hwreg(HW_REG_XCC_ID, 0, 4)")
        e("    s_sub_u32 s76, s2, s76")
        e("    s_and_b32 s76, s76, 7")
        e("    s_mul_i32 s76, s76, 200")
        e(f"    s_add_u32 s{STAMP_BASE+2*i}, s{STAMP_BASE}, s76")
    e("    s_mov_b64 exec, 1")
    e("    s_nop 4")
    srd(20, 18, 19, 1 << 20, WS_STAMP - (I("wsoff", 0) << 20))
    e("    s_lshl_b32 s76, s2, 4")
    e("    s_add_u32 s76, s76, s3")
    e("    s_lshl_b32 s76, s76, 6")
    e("    v_mov_b32 v2, s76")
    for i in range(len(STL)):
        e(f"    v_mov_b32 v3, s{STAMP_BASE+2*i}")
        e(f"    buffer_store_dword v3, v2, s[20:23], 0 offen offset:{4*i}")
    e("    s_getreg_b32 s76, hwreg(HW_REG_XCC_ID)")
    e("    v_mov_b32 v3, s76")
    e("    buffer_store_dword v3, v2, s[20:23], 0 offen offset:56")
    e("    v_mov_b32 v3, s74")
    e("    buffer_store_dword v3, v2, s[20:23], 0 offen offset:60")
    e("    v_mov_b32 v3, s17")
    e("    buffer_store_dword v3, v2, s[20:23], 0 offen offset:52")


def PEND(s):
    return f"s[{52+2*s}:{53+2*s}]"


pf_base = [0]


def prefetch(cnt, nwaves=16, wave0=0):
    if cnt == 0:
        return 0
    nops = (cnt + 63) // 64
    e("    s_lshr_b32 s76, s2, 3")
    e(f"    s_mul_i32 s76, s76, {nwaves}")
    e("    s_add_u32 s76, s76, s3")
    e(f"    s_mul_i32 s76, s76, {cnt}")
    e(f"    s_add_u32 s76, s76, {pf_base[0] - wave0*cnt}")
    for o in range(nops):
        n = min(64, cnt - 64 * o)
        e("    v_and_b32 v2, 63, v0")
        e("    v_add_u32 v2, s76, v2")
        e("    v_lshrrev_b32 v3, 5, v2")
        e("    v_and_b32 v2, 31, v2")
        e(f"    v_mul_u32_u24 v3, {PFS}, v3")
        e("    v_add_lshl_u32 v2, v2, v3, 7")
        if n < 64:
            e(f"    s_mov_b32 exec_lo, {((1 << n) - 1) & 0xffffffff}")
            e(f"    s_mov_b32 exec_hi, {((1 << n) - 1) >> 32}")
        e(f"    buffer_load_dword v126, v2, {R(S_GAT)}, 0 offen offset:3072")
        if n < 64:
            e("    s_mov_b64 exec, -1")
        if o + 1 < nops:
            e("    s_add_u32 s76, s76, 64")
    pf_base[0] += 32 * nwaves * cnt
    return nops


def own_rows():
    e("    s_lshl_b32 s76, s2, 4")
    e("    s_add_u32 s76, s76, s3")
    e("    s_mul_i32 s76, s76, 50006")
    e("    s_lshr_b32 s76, s76, 12")
    e("    v_add_lshl_u32 v2, v92, s76, 7")
    e("    s_mov_b64 exec, 0x1fff")
    e(f"    buffer_load_dword v126, v2, {R(S_GAT)}, 0 offen offset:3072")
    e("    s_mov_b64 exec, -1")


def scalar_touch(mode):
    e("    s_lshl_b32 s76, s2, 4")
    e("    s_add_u32 s76, s76, s3")
    e("    s_mul_i32 s76, s76, 50006")
    e("    s_lshr_b32 s76, s76, 12")
    e(f"    s_min_u32 s76, s76, {N-13}")
    e("    s_lshl_b32 s76, s76, 7")
    e(f"    s_add_u32 s50, s{S_GAT}, s76")
    e(f"    s_addc_u32 s51, s{S_GAT+1}, 0")
    for i in range(13):
        if mode == 1:
            e(f"    s_load_dword s48, s[50:51], {3072 + 128*i}")
        else:
            e(f"    s_load_dwordx2 s[48:49], s[50:51], {3072 + 128*i + 60}")


def share_rows():
    e("    s_mul_i32 s76, s2, 196")
    e("    s_mul_i32 s77, s3, 15")
    e("    s_add_u32 s76, s76, s77")
    e("    s_mov_b64 exec, 0xffff")
    e("    v_add_lshl_u32 v2, v92, s76, 7")
    e("    s_cmp_eq_u32 s3, 12")
    e("    s_cselect_b32 exec_lo, exec_lo, 0x7fff")
    e(f"    buffer_load_dword v126, v2, {R(S_GAT)}, 0 offen offset:3072")


def own_h1():
    e("    s_and_b64 exec, s[14:15], 0xffff")
    e(f"    buffer_load_dword v126, v121, {R(S_STO)}, 0 offen sc1")
    e("    s_mov_b64 exec, -1")


def grid_barrier(p, idx, pfa, pfb):
    rstr = 64 * LSTR
    fb = WS_FLAG + idx * NREP * rstr
    n = prefetch(pfa)
    e(f"    s_waitcnt vmcnt({n})")
    stamp(p + "_ack")
    if PFH == 2:
        own_h1()
    e("    s_barrier")
    if idx == 0:
        e("    s_cmp_lt_u32 s3, 13")
        e("    s_cbranch_scc1 G1_NOW")
        e(f"    v_subrev_u32 v2, {13*64}, v0")
        e("    v_lshlrev_b32 v2, 4, v2")
        e(f"    v_cmp_gt_u32 vcc, 2048, v2")
        e(f"    v_add_u32 v2, {WL}, v2")
        e("    ds_write_b128 v2, v[100:103]")
        e("    ds_write_b128 v2, v[104:107] offset:3072")
        e("    s_and_saveexec_b64 s[76:77], vcc")
        e("    ds_write_b128 v2, v[108:111] offset:6144")
        e("    s_mov_b64 exec, -1")
        e("G1_NOW:")
    e("    s_cmp_lg_u32 s3, 0")
    e(f"    s_cbranch_scc1 {p}_OTH")
    stamp(p + "_arr")
    if idx == 0:
        e(f"    s_mov_b32 s76, {SPINMAX}")
        e(f"{p}_NONCE:")
        e("    v_cmp_ne_u32 vcc, 0, v125")
        e(f"    s_cbranch_vccnz {p}_GOTN")
        e("    v_mov_b32 v2, 0")
        e(f"    buffer_load_dword v125, v2, {R(S_DBG)}, 0 offen {SCF}")
        e("    s_sub_u32 s76, s76, 1")
        e("    s_cmp_eq_u32 s76, 0")
        e("    s_waitcnt vmcnt(0)")
        e(f"    s_cbranch_scc0 {p}_NONCE")
        e(f"{p}_GOTN:")
    e("    s_lshr_b32 s76, s2, 2")
    e(f"    s_mul_i32 s76, s76, {LSTR}")
    e("    s_and_b32 s77, s2, 3")
    e("    s_lshl_b32 s77, s77, 2")
    e("    s_add_u32 s76, s76, s77")
    e(f"    s_add_u32 s76, s76, {fb}")
    e(f"    v_mul_u32_u24 v2, {rstr}, v0")
    e(f"    s_mov_b32 exec_lo, {((1 << NREP) - 1) & 0xffffffff}")
    e(f"    s_mov_b32 exec_hi, {((1 << NREP) - 1) >> 32}")
    e(f"    buffer_store_dword v125, v2, {R(S_WS)}, s76 offen {SCF}")
    e("    s_mov_b64 exec, -1")
    if PFH == 1:
        own_h1()
    e("    s_getreg_b32 s77, hwreg(HW_REG_XCC_ID, 0, 4)")
    e(f"    s_and_b32 s77, s77, {NREP-1}")
    e(f"    s_mul_i32 s77, s77, {rstr}")
    e(f"    s_add_u32 s77, s77, {fb}")
    e(f"    v_mul_u32_u24 v8, {LSTR}, v0")
    e(f"    s_mov_b32 s76, {SPINMAX}")
    e(f"{p}_POLL:")
    e(f"    buffer_load_dwordx4 v[4:7], v8, {R(S_WS)}, s77 offen {SCF}")
    e("    s_sub_u32 s76, s76, 1")
    e("    s_cmp_eq_u32 s76, 0")
    e("    s_waitcnt vmcnt(0)")
    e(f"    s_cbranch_scc1 {p}_WAIT")
    e("    v_xor_b32 v4, v4, v125")
    e("    v_xor_b32 v5, v5, v125")
    e("    v_xor_b32 v6, v6, v125")
    e("    v_xor_b32 v7, v7, v125")
    e("    v_or3_b32 v4, v4, v5, v6")
    e("    v_or_b32 v4, v4, v7")
    e("    v_cmp_ne_u32 vcc, 0, v4")
    e(f"    s_cbranch_vccnz {p}_POLL")
    e(f"    s_branch {p}_WAIT")
    e(f"{p}_OTH:")
    if PFH == 1:
        own_h1()
    e(f"{p}_WAIT:")
    e("    s_barrier")
    stamp(p + "_exit")


def decode_key(rec, meta, k, s):
    ca = 40 + s
    e(f"    v_bfe_u32 v2, v{rec}, 12, 4")
    e(f"    v_and_b32_sdwa v3, v{meta}, v99 dst_sel:DWORD dst_unused:UNUSED_PAD src0_sel:BYTE_{k} src1_sel:DWORD")
    e(f"    v_or_b32 v2, v2, v3")
    e(f"    v_lshl_add_u32 v{ca}, v2, 2, s0")


def decode_data(rec, meta, k, s):
    d0, d1 = 48 + s, 56 + s
    e(f"    v_lshlrev_b32_sdwa v{d0}, v124, v{rec} dst_sel:DWORD dst_unused:UNUSED_PAD src0_sel:DWORD src1_sel:WORD_0")
    if OPT.get("srcmask"):
        e(f"    v_and_b32 v{d0}, {OPT['srcmask']}, v{d0}")
    e(f"    v_mov_b32 v{d1}, v{rec}")
    e(f"    v_lshlrev_b16_sdwa v{d1}, v{meta}, v1 dst_sel:WORD_0 dst_unused:UNUSED_PRESERVE src0_sel:BYTE_{k} src1_sel:DWORD")


def decode_full(rec, dst, s):
    e(f"    v_mul_u32_u24 v30, {TM}, v{dst}")
    e("    v_lshrrev_b32 v30, 12, v30")
    e(f"    v_bfi_b32 v30, 15, v{dst}, v30")
    decode_key(rec, 30, 0, s)
    decode_data(rec, 30, 0, s)


def zero_b_counters(n):
    e("    v_lshlrev_b32 v2, 2, v0")
    e(f"    v_add_u32 v2, {CNTB}, v2")
    e("    v_mov_b32 v3, 0")
    e(f"    v_cmp_gt_u32 vcc, {n}, v0")
    e("    s_and_saveexec_b64 s[76:77], vcc")
    e("    ds_write_b32 v2, v3")
    e("    s_mov_b64 exec, -1")


def body():
    e(f".globl {NAME}")
    e(".p2align 8")
    e(f".type {NAME},@function")
    e(f"{NAME}:")
    stamp("start")
    e("    s_cmp_ge_u32 s2, 256")
    e("    s_cbranch_scc1 END")
    e("    s_load_dwordx8 s[4:11], s[0:1], 0")
    e("    s_load_dwordx8 s[12:19], s[0:1], 32")
    e("    v_lshlrev_b32 v9, 2, v0")
    e("    v_lshrrev_b32 v3, 6, v0")
    e(f"    s_mul_i32 s68, s2, {CH}")
    e(f"    s_mul_i32 s69, s2, {TCH}")
    e("    v_readfirstlane_b32 s3, v3")
    e(f"    s_add_u32 s69, s69, {ET - 4*NMAIN}")
    e("    v_add_u32 v4, s68, v9")
    e("    v_add_u32 v5, s69, v9")
    e(f"    v_cmp_gt_u32 vcc, {NMAIN}, v0")
    e(f"    v_mov_b32 v7, {E}")
    e(f"    v_mov_b32 v3, {ET}")
    e("    v_cndmask_b32 v6, v5, v4, vcc")
    e("    v_cndmask_b32 v7, v7, v3, vcc")
    e("    v_cmp_lt_u32 s[72:73], v6, v7")
    e(f"    v_cmp_gt_u32 vcc, {NTHR}, v0")
    e("    v_sub_u32 v8, v6, v3")
    e("    s_and_b64 s[72:73], s[72:73], vcc")
    e(f"    v_mov_b32 v3, {1 << 24}")
    e("    v_cndmask_b32 v6, v3, v6, s[72:73]")
    e("    v_lshlrev_b32 v4, 2, v6")
    e("    v_lshlrev_b32 v5, 1, v6")
    e("    s_waitcnt lgkmcnt(0)")
    if I("wsoff", 0):
        e(f"    s_add_u32 s18, s18, {I('wsoff', 0) << 20}")
        e("    s_addc_u32 s19, s19, 0")
    srd(S_DST, 8, 9, E * 4)
    srd(S_SRC, 6, 7, E * 4)
    srd(S_NRM, 10, 11, E * 2)
    e("    s_cmp_ge_u32 s3, 13")
    e("    s_cbranch_scc1 A_HELP")
    e(f"    buffer_load_dwordx4 v[12:15], v4, {R(S_DST)}, 0 offen {LD_IN}")
    e(f"    buffer_load_dwordx4 v[16:19], v4, {R(S_SRC)}, 0 offen {LD_IN}")
    e(f"    buffer_load_dwordx2 v[20:21], v5, {R(S_NRM)}, 0 offen {LD_IN}")
    stamp("a_issue")
    srd(S_DBG, 16, 17, 256)
    e("    s_branch A_BAR")
    e("A_HELP:")
    srd(S_DBG, 16, 17, 256)
    e("    s_cmp_lg_u32 s2, 0")
    e("    s_cbranch_scc1 A_NONONCE")
    e("    s_cmp_lg_u32 s3, 13")
    e("    s_cbranch_scc1 A_NONONCE")
    e("    s_memrealtime s[76:77]")
    e("    v_mov_b32 v2, 0")
    e("    s_waitcnt lgkmcnt(0)")
    e("    s_mul_i32 s68, s76, 0x9e3779b1")
    e("    s_mul_hi_u32 s69, s76, 0x9e3779b1")
    e("    s_xor_b32 s68, s68, s69")
    e("    s_xor_b32 s68, s68, s77")
    e("    s_mul_i32 s69, s68, 0x85ebca6b")
    e("    s_mul_hi_u32 s70, s68, 0x85ebca6b")
    e("    s_xor_b32 s69, s69, s70")
    e("    s_or_b32 s68, s68, 1")
    e("    v_mov_b32 v4, s68")
    e("    v_mov_b32 v5, s69")
    e("    s_mov_b64 exec, 1")
    e(f"    buffer_store_dwordx2 v[4:5], v2, {R(S_DBG)}, 0 offen {SCF}")
    e("    s_mov_b64 exec, -1")
    e("A_NONONCE:")
    srd(S_STO, 12, 13, 8192)
    e(f"    v_subrev_u32 v2, {13*64}, v0")
    e("    v_lshlrev_b32 v2, 4, v2")
    e(f"    buffer_load_dwordx4 v[100:103], v2, {R(S_STO)}, 0 offen")
    e(f"    buffer_load_dwordx4 v[104:107], v2, {R(S_STO)}, 0 offen offset:3072")
    e("    v_add_u32 v3, 6144, v2")
    e(f"    buffer_load_dwordx4 v[108:111], v3, {R(S_STO)}, 0 offen")
    e("A_BAR:")
    e("    v_mov_b32 v2, 0")
    e(f"    ds_write_b32 v9, v2 offset:{K1_CNT}")
    e("    v_mov_b32 v24, -1")
    e("    v_mov_b32 v25, -1")
    e("    v_mov_b32 v26, -1")
    e("    v_mov_b32 v27, -1")
    e("    v_lshlrev_b32 v2, 4, v0")
    e("    ds_write_b128 v2, v[24:27]")
    e("    ds_write_b128 v2, v[24:27] offset:16384")
    e("    s_cmp_lg_u32 s3, 15")
    e("    s_cbranch_scc1 A_INITD")
    e(f"    ds_write_b128 v2, v[24:27] offset:{32768 - 15*1024}")
    e("    v_and_b32 v4, 60, v9")
    e("    v_mov_b32 v2, 0xffff")
    e(f"    ds_write_b32 v4, v2 offset:{K1_OVT}")
    e("A_INITD:")
    e("    s_waitcnt lgkmcnt(0)")
    e("    s_barrier")
    stamp("a_bar1")
    srd(S_WS, 18, 19, WSBYTES, 0)
    srd(S_OVF, 18, 19, 256 * OVF_STRIDE, WS_OVF)
    srd(S_GAT, 4, 5, TABBYTES + 3072, -3072)
    srd(S_STO, 18, 19, TABBYTES, WS_H1)
    e("    v_mov_b32 v1, 1")
    e("    v_mov_b32 v99, 0xf0")
    e("    v_mov_b32 v124, 7")
    e(f"    s_mov_b32 s0, {CNTB}")
    e("    s_mov_b32 s1, 0x07060302")
    e("    s_mov_b32 s71, 0")
    e("    s_mov_b64 s[12:13], 0")
    e("    s_cmp_ge_u32 s3, 4")
    e("    s_cbranch_scc1 A_NOTAIL")
    e("    v_lshrrev_b32 v2, 4, v0")
    e("    s_lshl_b32 s76, s2, 4")
    e("    v_add_u32 v2, s76, v2")
    e("    v_mul_u32_u24 v3, 50006, v2")
    e("    v_lshrrev_b32 v3, 12, v3")
    e("    v_sub_u32 v4, v0, v3")
    e("    v_and_b32 v4, 15, v4")
    e("    v_add_u32 v123, v3, v4")
    e(f"    v_mul_u32_u24 v4, {TM}, v123")
    e("    v_lshrrev_b32 v4, 16, v4")
    e("    v_cmp_eq_u32 s[12:13], v4, v2")
    e(f"    v_cmp_gt_u32 vcc, {N}, v123")
    e(f"    v_add_u32 v4, {ET}, v123")
    e("    v_lshlrev_b32 v5, 2, v4")
    e("    v_lshlrev_b32 v4, 1, v4")
    e("    s_and_b64 s[12:13], s[12:13], vcc")
    e(f"    buffer_load_dword v120, v5, {R(S_DST)}, 0 offen")
    e(f"    buffer_load_dword v121, v5, {R(S_SRC)}, 0 offen")
    e(f"    buffer_load_ushort v122, v4, {R(S_NRM)}, 0 offen")
    e("A_NOTAIL:")
    if TOUCH:
        e("    s_cmp_lg_u32 s3, 14")
        e("    s_cbranch_scc1 A_NOTOUCH")
        e("    v_and_b32 v2, 63, v0")
        e("    v_lshlrev_b32 v2, 18, v2")
        e(f"    buffer_load_dword v126, v2, {R(S_WS)}, 0 offen sc1")
        e(f"    buffer_load_dword v126, v2, {R(S_STO)}, 0 offen sc1")
        e(f"    buffer_load_dword v126, v2, {R(S_GAT)}, 0 offen offset:3072")
        e("A_NOTOUCH:")
    if I("poison", 0):
        e("    s_cmp_lt_u32 s3, 13")
        e("    s_cbranch_scc1 A_NOPOI")
        e(f"    v_subrev_u32 v2, {13*64}, v0")
        e("    v_lshlrev_b32 v2, 4, v2")
        if I("poison", 0) & 1:
            e("    s_mul_i32 s76, s2, 24576")
            for o in range(8):
                e(f"    buffer_store_dwordx4 v[24:27], v2, {R(S_STO)}, s76 offen sc1")
                e("    s_add_u32 s76, s76, 3072")
        if I("poison", 0) & 2:
            e("    s_lshl_b32 s76, s2, 15")
            for o in range(10):
                e(f"    buffer_store_dwordx4 v[24:27], v2, {R(S_WS)}, s76 offen sc1")
                e("    s_add_u32 s76, s76, 3072")
        e("A_NOPOI:")
    if PF[0]:
        e("    s_cmp_lg_u32 s3, 15")
        e("    s_cbranch_scc1 A_NOPF")
        prefetch(PF[0], 1, 15)
        e("A_NOPF:")
    zero_b_counters((WL - CNTB) // 4)
    e("    v_and_b32 v10, 7, v0")
    e("    v_and_b32 v2, 63, v0")
    e("    v_bfe_u32 v3, v2, 4, 1")
    e("    v_xor_b32 v3, v3, v10")
    e("    v_lshlrev_b32 v83, 4, v3")
    e("    v_add_u32 v80, 3072, v83")
    e("    v_add_u32 v82, 1024, v83")
    e("    v_xor_b32 v83, 64, v83")
    e("    v_add_u32 v81, 2048, v83")
    e("    v_and_b32 v92, 15, v0")
    e("    v_lshrrev_b32 v11, 4, v2")
    e("    v_bfe_u32 v6, v2, 2, 2")
    e("    v_and_b32 v7, 3, v2")
    e("    v_lshl_add_u32 v84, v11, 3, v6")
    e("    v_lshlrev_b32 v84, 7, v84")
    e("    v_lshrrev_b32 v6, 1, v6")
    e("    v_and_b32 v4, 1, v11")
    e("    v_lshl_or_b32 v6, v4, 2, v6")
    e("    v_xor_b32 v6, v6, v7")
    e("    v_lshl_add_u32 v84, v6, 4, v84")
    e("    v_and_b32 v4, 1, v7")
    e("    v_lshl_add_u32 v84, v4, 3, v84")
    e("    s_lshl_b32 s76, s3, 12")
    e("    v_add_u32 v84, s76, v84")
    e("    s_mov_b32 m0, s76")
    e("    v_xor_b32 v85, 8, v84")
    e("    v_xor_b32 v86, 64, v84")
    e("    v_xor_b32 v87, 72, v84")
    e(f"    s_mul_i32 s76, s3, {TSTR}")
    e(f"    s_add_u32 s76, s76, {LISTS}")
    e("    v_lshrrev_b32 v4, 3, v2")
    e("    v_lshl_add_u32 v88, v4, 2, s76")
    e(f"    s_add_u32 s76, s76, {CAPT*4}")
    e("    v_lshl_add_u32 v89, v11, 5, s76")
    e("    v_cmp_lt_u32 vcc, 0, v7")
    e("    v_cmp_lt_u32 s[76:77], 1, v7")
    e("    v_lshrrev_b32 v4, 2, v2")
    e("    v_cndmask_b32 v95, 0, -1, vcc")
    e("    v_cndmask_b32 v96, 0, -1, s[76:77]")
    e("    v_cmp_lt_u32 vcc, 2, v7")
    e(f"    v_mul_u32_u24 v98, {TSTR}, v4")
    e(f"    v_add_u32 v98, {LISTS}, v98")
    e("    v_cndmask_b32 v97, 0, -1, vcc")
    e("    v_lshlrev_b32 v90, 4, v2")
    e(f"    v_add_u32 v90, {CNTB}, v90")
    for i in range(16):
        e(f"    v_mov_b32 v{64+i}, 0")
    if I("pfx", 4) == 1:
        e("    s_cmp_lg_u32 s3, 15")
        e("    s_cbranch_scc1 A_NOX")
        e("    s_mul_i32 s76, s2, 196*128")
        e("    v_and_b32 v2, 63, v0")
        e("    v_lshlrev_b32 v2, 7, v2")
        for o in range(4):
            if o == 3:
                e("    s_mov_b64 exec, 15")
            e(f"    buffer_load_dword v126, v2, {R(S_GAT)}, s76 offen offset:3072")
            e("    s_add_u32 s76, s76, 8192")
        e("    s_mov_b64 exec, -1")
        e("A_NOX:")
    e("    s_cmp_lt_u32 s3, 13")
    e("    s_cbranch_scc1 A_EDGES")
    e("    s_cmp_lg_u32 s3, 13")
    e("    s_cbranch_scc1 A_OUT")
    e(f"    s_mov_b32 s76, {SPINMAX}")
    e("    v_mov_b32 v2, 0")
    e("A_NPOLL:")
    e(f"    buffer_load_dwordx2 v[4:5], v2, {R(S_DBG)}, 0 offen {SCF}")
    e("    s_sub_u32 s76, s76, 1")
    e("    s_cmp_eq_u32 s76, 0")
    e("    s_waitcnt vmcnt(0)")
    e("    s_cbranch_scc1 A_NGOT")
    e("    v_cmp_eq_u32 vcc, 0, v4")
    e("    s_cbranch_vccnz A_NPOLL")
    e("A_NGOT:")
    e(f"    ds_write_b64 v2, v[4:5] offset:{K1_NON}")
    e("    s_branch A_OUT")
    e("A_EDGES:")
    e("    s_mov_b64 exec, s[72:73]")
    e("    s_mov_b32 s70, 0xffff0000")
    stamp("a_setup")
    e("    s_cmp_ge_u32 s3, 4")
    e("    s_cbranch_scc1 A_W2")
    e("    s_waitcnt vmcnt(5)")
    e("    s_branch A_W5")
    e("A_W2:")
    e("    s_waitcnt vmcnt(2)")
    e("A_W5:")
    stamp("a_dst")
    for k in range(4):
        e(f"    v_mul_u32_u24 v{24+k}, {TM}, v{12+k}")
        e(f"    v_add_u32 v2, {k}, v8")
        e(f"    v_lshrrev_b32 v{28+k}, 20, v{24+k}")
        e(f"    v_cmp_ne_u32 s[{52+2*k}:{53+2*k}], v{12+k}, v2")
        e(f"    v_lshlrev_b32 v{36+k}, 2, v{28+k}")
    for k in range(4):
        e(f"    s_mov_b64 exec, s[{52+2*k}:{53+2*k}]")
        e(f"    ds_add_rtn_u32 v{32+k}, v{36+k}, v1 offset:{K1_CNT}")
    e("    s_mov_b64 exec, s[72:73]")
    for k in range(4):
        e(f"    v_lshrrev_b32 v{24+k}, 12, v{24+k}")
        e(f"    v_mul_u32_u24 v{28+k}, {K1_LS}, v{28+k}")
        e(f"    v_bfi_b32 v{24+k}, 15, v{12+k}, v{24+k}")
    e("    s_mov_b64 s[60:61], 0")
    for k in range(4):
        e(f"    s_mov_b64 exec, s[{52+2*k}:{53+2*k}]")
        e(f"    s_waitcnt lgkmcnt(3)")
        e(f"    v_cmp_gt_u32 vcc, {SLOTCAP}, v{32+k}")
        e(f"    v_and_b32 v2, 7, v{32+k}")
        e(f"    v_lshrrev_b32 v3, 3, v{32+k}")
        e(f"    s_andn2_b64 s[{52+2*k}:{53+2*k}], exec, vcc")
        e(f"    s_or_b64 s[60:61], s[60:61], s[{52+2*k}:{53+2*k}]")
        e(f"    s_mov_b64 s[{4+2*k}:{5+2*k}], vcc")
        e("    s_mov_b64 exec, vcc")
        e(f"    v_lshl_add_u32 v2, v2, 4, v{28+k}")
        e(f"    v_lshl_add_u32 v{36+k}, v3, 2, v2")
        e("    v_add_u32 v5, v3, v2")
        e(f"    ds_write_b8 v5, v{24+k} offset:12")
    e("    s_mov_b64 exec, s[72:73]")
    e("    s_waitcnt vmcnt(0)")
    stamp("a_all")
    if I("pfa", 0) == 1:
        share_rows()
        e("    s_mov_b64 exec, s[72:73]")
    for k in range(4):
        if k % 2 == 0:
            e(f"    v_lshl_or_b32 v{16+k}, v{20+k//2}, 16, v{16+k}")
        else:
            e(f"    v_and_or_b32 v{16+k}, v{20+k//2}, s70, v{16+k}")
    for k in range(4):
        e(f"    s_mov_b64 exec, s[{4+2*k}:{5+2*k}]")
        e(f"    ds_write_b32 v{36+k}, v{16+k}")
    e("    s_cmp_eq_u64 s[60:61], 0")
    e("    s_cbranch_scc1 A_OUT")
    e("    s_lshl_b32 s62, s2, 15")
    for k in range(4):
        e(f"    s_mov_b64 exec, s[{52+2*k}:{53+2*k}]")
        e(f"    s_cbranch_execz A_OV{k}")
        e(f"    v_mov_b32 v2, {K1_OVC}")
        e(f"    ds_add_rtn_u32 v3, v2, v1 offset:{K1_CNT}")
        e(f"    v_mov_b32 v4, v{16+k}")
        e(f"    v_mov_b32 v5, v{12+k}")
        e("    s_waitcnt lgkmcnt(0)")
        e(f"    v_cmp_gt_u32 vcc, {NINL}, v3")
        e("    v_lshlrev_b32 v3, 3, v3")
        e("    s_andn2_b64 s[76:77], exec, vcc")
        e("    s_mov_b64 exec, vcc")
        e(f"    ds_write_b64 v3, v[4:5] offset:{K1_OVT}")
        e("    s_mov_b64 exec, s[76:77]")
        e(f"    s_cbranch_execz A_OV{k}")
        e(f"    buffer_store_dwordx2 v[4:5], v3, {R(S_OVF)}, s62 offen {SC}")
        e("    s_waitcnt vmcnt(0)")
        e(f"A_OV{k}:")
    e("A_OUT:")
    e("    s_mov_b64 exec, -1")
    STG = I("stag", 16)
    e("    v_lshrrev_b32 v2, 3, v0")
    if STG >= 0:
        e("    s_lshl_b32 s62, s3, 3")
        e("    v_add_u32 v2, s62, v2")
    DB_ = 8 if STG >= 0 else 128
    e(f"    v_mul_u32_u24 v4, {K1_LS}, v2")
    e("    v_lshl_add_u32 v4, v10, 4, v4")
    e(f"    v_add_u32 v5, {DB_*K1_LS}, v4")
    e("    v_lshlrev_b32 v7, 15, v2")
    e("    v_lshl_add_u32 v7, v10, 4, v7")
    e("    s_lshl_b32 s62, s2, 7")
    e(f"    s_add_u32 s63, s62, {DB_*32768}")
    e("    s_mov_b32 s64, 0xffffff")
    e("    v_and_b32 v6, 6, v10")
    e("    s_waitcnt lgkmcnt(0)")
    stamp("a_pre2")
    e("    s_barrier")
    stamp("a_bar2")
    if I("pfa", 0) == 2:
        own_rows()
    e(f"    ds_read_u8 v127, v10 offset:{K1_NON}")
    e("    ds_read2_b32 v[12:13], v4 offset0:0 offset1:1")
    e("    ds_read2_b32 v[14:15], v4 offset0:2 offset1:3")
    e("    ds_read2_b32 v[16:17], v5 offset0:0 offset1:1")
    e("    ds_read2_b32 v[18:19], v5 offset0:2 offset1:3")
    e(f"    ds_read_u16 v91, v6 offset:{K1_NON}")
    e("    v_mov_b32 v8, 0")
    e(f"    ds_read_b32 v125, v8 offset:{K1_NON}")
    e("    s_waitcnt lgkmcnt(6)")
    e("    v_lshlrev_b32 v20, 24, v127")
    e("    s_waitcnt lgkmcnt(4)")
    e("    v_and_or_b32 v15, v15, s64, v20")
    e(f"    buffer_store_dwordx4 v[12:15], v7, {R(S_WS)}, s62 offen {SC}")
    e("    s_waitcnt lgkmcnt(2)")
    e("    v_and_or_b32 v19, v19, s64, v20")
    e(f"    buffer_store_dwordx4 v[16:19], v7, {R(S_WS)}, s63 offen {SC}")
    e(f"    s_cmp_lg_u32 s3, {4 if STG >= 0 else 12}")
    e("    s_cbranch_scc1 A_FIN")
    e("    s_mov_b64 exec, 0xff")
    e("    v_lshlrev_b32 v2, 3, v10")
    e(f"    ds_read_b64 v[24:25], v2 offset:{K1_OVT}")
    e(f"    ds_read_b32 v22, v8 offset:{K1_CNT+K1_OVC}")
    e("    v_cmp_eq_u32 vcc, 7, v10")
    e("    s_lshl_b32 s62, s2, 6")
    e(f"    s_add_u32 s62, s62, {WS_OVT}")
    e("    s_waitcnt lgkmcnt(0)")
    e("    v_cndmask_b32 v24, v24, v22, vcc")
    e("    v_lshl_or_b32 v25, v91, 16, v25")
    e(f"    buffer_store_dwordx2 v[24:25], v2, {R(S_WS)}, s62 offen {SC}")
    e("A_FIN:")
    e("    s_mov_b64 exec, -1")
    stamp("a_st")
    e("    s_cmp_ge_u32 s3, 4")
    e("    s_cbranch_scc1 A_TD")
    e("    v_cmp_eq_u32 vcc, v120, v123")
    e("    v_lshl_or_b32 v121, v122, 16, v121")
    e("    s_and_b64 s[12:13], s[12:13], vcc")
    decode_key(121, 0, 0, 6)
    decode_data(121, 0, 0, 6)
    e("A_TD:")
    srd(S_SRC, 14, 15, TABBYTES)
    srd(S_DST, 18, 19, TABBYTES + 3072, WS_H1 - 3072)
    e("    s_lshl_b32 s76, s2, 4")
    e("    s_add_u32 s76, s76, s3")
    e("    s_mul_i32 s77, s76, 50006")
    e("    s_lshr_b32 s77, s77, 12")
    e("    v_subrev_u32 v2, s77, v92")
    e("    v_and_b32 v2, 15, v2")
    e("    v_add_u32 v2, s77, v2")
    e(f"    v_mul_u32_u24 v3, {TM}, v2")
    e("    v_lshrrev_b32 v3, 16, v3")
    e("    v_cmp_eq_u32 s[14:15], s76, v3")
    e("    v_lshlrev_b32 v2, 7, v2")
    e("    v_lshl_add_u32 v121, v11, 4, v2")
    e("    v_and_b32 v5, 1, v11")
    e("    v_cmp_eq_u32 s[16:17], 1, v5")
    e("    v_bfe_u32 v7, v0, 2, 2")
    e("    v_lshl_add_u32 v6, v11, 3, v7")
    e("    v_lshlrev_b32 v6, 7, v6")
    e("    v_and_b32 v7, 3, v0")
    e("    v_lshl_add_u32 v6, v7, 4, v6")
    e(f"    v_add_u32 v122, {WL}, v6")
    e("    v_lshlrev_b32 v9, 4, v0")
    e("    v_lshlrev_b32 v31, 3, v0")
    e("    s_waitcnt lgkmcnt(0)")
    e("    v_mov_b32 v120, v91")
    if I("spf", 0):
        scalar_touch(I("spf", 0))
    e("    s_cmp_lt_u32 s3, 13")
    e("    s_cbranch_scc1 G1_NOW")
    e(f"    v_subrev_u32 v2, {13*64}, v0")
    e("    v_lshlrev_b32 v2, 4, v2")
    e(f"    v_cmp_gt_u32 vcc, 2048, v2")
    e(f"    v_add_u32 v2, {WL}, v2")
    e("    s_waitcnt vmcnt(2)")
    e("    ds_write_b128 v2, v[100:103]")
    e("    ds_write_b128 v2, v[104:107] offset:3072")
    e("    s_and_saveexec_b64 s[76:77], vcc")
    e("    ds_write_b128 v2, v[108:111] offset:6144")
    e("    s_mov_b64 exec, -1")
    e("G1_NOW:")
    if STG >= 0:
        e("    s_lshr_b32 s76, s2, 4")
        e(f"    s_add_u32 s76, s76, {STG}")
        e("    s_cmp_gt_u32 s3, s76")
        e("    s_cbranch_scc1 G1_NOACK")
    if ACKW:
        e("    s_waitcnt vmcnt(0)")
    e("G1_NOACK:")
    stamp("g1_ack")
    if I("spf2", 0):
        scalar_touch(I("spf2", 0))
    if ACKW >= 2:
        e("    s_barrier")
    if ACKW >= 3:
        e(f"    s_mov_b32 s70, {WS_OVT}")
        e(f"    s_mov_b32 s74, {WS_OVT + 8192}")
        e(f"    s_mov_b32 s75, {SPINMAX}")
        e("P_POLL:")
        e(f"    buffer_load_dwordx2 v[116:117], v31, {R(S_WS)}, s70 offen {SC}")
        e(f"    buffer_load_dwordx2 v[118:119], v31, {R(S_WS)}, s74 offen {SC}")
        e("    s_sub_u32 s75, s75, 1")
        e("    s_cmp_eq_u32 s75, 0")
        e("    s_waitcnt vmcnt(0)")
        e("    s_cbranch_scc1 P_DONE")
        e("    v_cmp_ne_u32_sdwa vcc, v117, v120 src0_sel:WORD_1 src1_sel:DWORD")
        e("    v_cmp_ne_u32_sdwa s[76:77], v119, v120 src0_sel:WORD_1 src1_sel:DWORD")
        e("    s_or_b64 vcc, vcc, s[76:77]")
        e("    s_cbranch_scc1 P_POLL")
        e("P_DONE:")
    stamp("g1_exit")
    if TORN:
        e("    s_mov_b32 s16, 0")
        e("    s_mov_b32 s17, 0")

    e("COLLECT:")
    if I("pmaj", 0):
        e("    v_lshrrev_b32 v9, 3, v0")
        e("    v_lshlrev_b32 v9, 15, v9")
        e("    v_lshl_add_u32 v9, v10, 4, v9")
        e("    s_lshl_b32 s68, s2, 7")
        e(f"    s_add_u32 s69, s68, {128*32768}")
    else:
        e("    s_lshl_b32 s68, s2, 15")
        e("    s_add_u32 s69, s68, 16384")
    e(f"    s_mov_b32 s70, {WS_OVT}")
    e(f"    s_mov_b32 s74, {WS_OVT + 8192}")
    e(f"    buffer_load_dwordx4 v[12:15], v9, {R(S_WS)}, s68 offen {LD_SL}")
    e(f"    buffer_load_dwordx4 v[16:19], v9, {R(S_WS)}, s69 offen {LD_SL}")
    e(f"    buffer_load_dwordx2 v[116:117], v31, {R(S_WS)}, s70 offen {SC}")
    e(f"    buffer_load_dwordx2 v[118:119], v31, {R(S_WS)}, s74 offen {SC}")
    e(f"    s_mov_b64 {PEND(6)}, s[12:13]")
    e(f"    s_mov_b64 {PEND(7)}, 0")
    e(f"    s_mov_b32 s75, {SPINMAX}")
    e("    s_movk_i32 s11, 0xffff")
    e(f"    s_mov_b64 exec, {PEND(6)}")
    e("    ds_add_rtn_u32 v38, v46, v1")
    e("    s_mov_b64 exec, -1")
    for i in range(2):
        base = 12 + 4 * i
        e(f"    s_waitcnt vmcnt({3-i})")
        e(f"C_CHK{i}:")
        e(f"    v_cmp_ne_u32_sdwa vcc, v{base+3}, v127 src0_sel:BYTE_3 src1_sel:DWORD")
        e(f"    s_cbranch_vccnz C_RETRY{i}")
        e(f"C_OK{i}:")
        if i == 0:
            stamp("b_lines")
        else:
            stamp("b_lines1")
        for k in range(3):
            e(f"    v_cmp_ne_u16 {PEND(3*i+k)}, s11, v{base+k}")
        for k in range(3):
            decode_key(base + k, base + 3, k, 3 * i + k)
        for k in range(3):
            s = 3 * i + k
            e(f"    s_mov_b64 exec, {PEND(s)}")
            e(f"    ds_add_rtn_u32 v{32+s}, v{40+s}, v1")
        e("    s_mov_b64 exec, -1")
        for k in range(3):
            decode_data(base + k, base + 3, k, 3 * i + k)
    e("    s_waitcnt vmcnt(0)")
    e("C_CHK2:")
    e("    v_cmp_ne_u32_sdwa vcc, v117, v120 src0_sel:WORD_1 src1_sel:DWORD")
    e("    v_cmp_ne_u32_sdwa s[76:77], v119, v120 src0_sel:WORD_1 src1_sel:DWORD")
    e("    s_or_b64 vcc, vcc, s[76:77]")
    e("    s_cbranch_scc1 C_RETRY2")
    e("C_OK2:")
    if I("pfx", 4) == 3:
        own_rows()
    e("    v_and_b32 v117, 0xffff, v117")
    e("    v_and_b32 v119, 0xffff, v119")
    e(f"    v_mul_u32_u24 v2, {TM}, v117")
    e(f"    v_mul_u32_u24 v3, {TM}, v119")
    e("    v_cmp_eq_u32 s[74:75], 7, v10")
    e(f"    v_cmp_lt_u32 s[72:73], {NINL}, v116")
    e(f"    v_cmp_lt_u32 vcc, {NINL}, v118")
    e("    v_lshrrev_b32 v2, 20, v2")
    e("    v_lshrrev_b32 v3, 20, v3")
    e("    v_cmp_eq_u32 s[4:5], s2, v2")
    e("    v_cmp_eq_u32 s[6:7], s2, v3")
    e("    s_and_b64 s[72:73], s[72:73], s[74:75]")
    e("    s_and_b64 vcc, vcc, s[74:75]")
    e("    s_lshr_b64 s[72:73], s[72:73], 1")
    e("    s_or_b64 s[72:73], s[72:73], vcc")
    e("    s_mov_b32 s68, 0")
    e("    s_mov_b32 s69, 0")
    e("    s_mov_b32 s70, 0")
    e("    s_or_b64 s[76:77], s[4:5], s[6:7]")
    e("    s_or_b64 s[76:77], s[76:77], s[72:73]")
    e("    s_cbranch_scc1 EXTRA")
    e("CDONE:")
    e("    s_waitcnt lgkmcnt(0)")
    e("    s_barrier")
    stamp2("b_bar1", "")
    e("    ds_read_b128 v[4:7], v90")
    prefetch(PF4)
    if I("pfx", 4) == 4:
        own_rows()
    e("    s_lshl_b32 s76, s3, 2")
    e("    s_add_u32 s76, s76, 3")
    e("    s_waitcnt lgkmcnt(0)")
    e("    v_add_u32 v5, v4, v5")
    e("    v_add_u32 v6, v5, v6")
    e("    v_add_u32 v7, v6, v7")
    e("    s_nop 1")
    e("    v_and_b32_dpp v28, v7, v95 quad_perm:[0,0,0,0] row_mask:0xf bank_mask:0xf")
    e("    v_and_b32_dpp v29, v7, v96 quad_perm:[1,1,1,1] row_mask:0xf bank_mask:0xf")
    e("    v_and_b32_dpp v30, v7, v97 quad_perm:[2,2,2,2] row_mask:0xf bank_mask:0xf")
    e("    v_add3_u32 v28, v28, v29, v30")
    e("    v_add_u32 v7, v28, v7")
    e("    v_lshl_add_u32 v28, v28, 2, v98")
    e(f"    v_cmp_lt_u32 vcc, {CAPT}, v7")
    e("    v_lshl_add_u32 v29, v4, 2, v28")
    e("    v_lshl_add_u32 v30, v5, 2, v28")
    e("    v_lshl_add_u32 v31, v6, 2, v28")
    e("    v_readlane_b32 s74, v7, s76")
    e("    ds_write_b128 v90, v[28:31] offset:1024")
    for s in range(8):
        e(f"    s_mov_b64 exec, {PEND(s)}")
        e(f"    ds_read_b32 v{20+s}, v{40+s} offset:1024")
    e("    s_mov_b64 exec, -1")
    e(f"    s_min_u32 s74, s74, {CAPT}")
    e("    v_and_b32 v2, 63, v0")
    e("    v_add_u32 v2, s74, v2")
    e("    s_add_u32 s76, s74, 31")
    e("    s_andn2_b32 s76, s76, 31")
    e(f"    s_mul_i32 s77, s3, {TSTR}")
    e(f"    s_add_u32 s77, s77, {LISTS}")
    e("    s_cbranch_vccnz SLOWW")
    for s in range(8):
        e(f"    s_mov_b64 exec, {PEND(s)}")
        e("    s_waitcnt lgkmcnt(7)")
        e(f"    v_lshl_add_u32 v{20+s}, v{32+s}, 2, v{20+s}")
        e(f"    ds_write2st64_b32 v{20+s}, v{48+s}, v{56+s} offset0:0 offset1:5")
        e(f"    s_mov_b64 {PEND(s)}, 0")
    e("WDONE:")
    e("    s_mov_b64 exec, -1")
    e("    v_cmp_gt_u32 vcc, s76, v2")
    e("    v_lshl_add_u32 v2, v2, 2, s77")
    e(f"    v_mov_b32 v3, {PADV}")
    e(f"    v_mov_b32 v4, {MORE}")
    e("    s_mov_b64 exec, vcc")
    e("    ds_write2st64_b32 v2, v3, v3 offset0:0 offset1:5")
    e("    s_mov_b64 exec, -1")
    e("    s_waitcnt lgkmcnt(0)")
    e("    s_barrier")
    stamp2("b_bar2", "")
    e("    ds_read_b32 v8, v4")

    def next_k():
        e("    s_mov_b32 s8, 1")
        e("    s_cmp_gt_i32 s9, s10")
        e("    s_addc_u32 s8, s8, 0")
        e("    s_lshl_b32 s11, s10, 1")
        e("    s_cmp_gt_i32 s9, s11")
        e("    s_addc_u32 s8, s8, 0")
        e("    s_add_i32 s11, s11, s10")
        e("    s_cmp_gt_i32 s9, s11")
        e("    s_addc_u32 s8, s8, 0")
        e("    s_min_i32 s8, s8, s9")
        e("    s_sub_i32 s9, s9, s8")
        e("    s_sub_i32 s10, s10, 1")
        e("    s_lshl_b32 s11, s8, 5")

    def read_recs(adv):
        e("    ds_read2_b32 v[100:101], v93 offset0:0 offset1:8")
        e("    ds_read2_b32 v[102:103], v93 offset0:16 offset1:24")
        e("    ds_read_b128 v[104:107], v94")
        e("    ds_read_b128 v[108:111], v94 offset:16")
        e(f"    v_add_u32 v93, {adv}, v93")
        e(f"    v_add_u32 v94, {adv}, v94")

    def dma(i):
        e(f"    buffer_load_dwordx4 v{100+i}, {R(S_GAT)}, 0 offen offset:{1024*i} lds")

    def addr():
        for i in range(4):
            e(f"    v_add_u32 v{100+i}, v{100+i}, v{80+i}")

    def build_b(w):
        for j in range(8):
            e(f"    v_bfe_i32 v{32+j}, v{104+j}, v92, {w}")
        for j in range(8):
            e(f"    v_and_b32 v{32+j}, v{32+j}, v{104+j}")
        for j in range(4):
            e(f"    v_perm_b32 v{112+j}, v{32+2*j+1}, v{32+2*j}, s1")

    def mfmas():
        for t in range(4):
            e(f"    v_mfma_f32_16x16x32_bf16 v[{64+4*t}:{67+4*t}], v[{12+4*t}:{15+4*t}], v[112:115], v[{64+4*t}:{67+4*t}]")

    e("MAIN:")
    if I("nomain", 0):
        e("    s_branch MAINDONE")
    if PRIO == 1:
        for g in range(1, 4):
            e(f"    s_cmp_lt_u32 s3, {4*g}")
            e("    s_cbranch_scc1 PRIOD")
            e(f"    s_setprio {g}")
        e("PRIOD:")
    e("    s_cmp_eq_u32 s74, 0")
    e("    s_cbranch_scc1 MAINDONE")
    e("    v_mov_b32 v93, v88")
    e("    v_mov_b32 v94, v89")
    read_recs(128)
    e("    s_add_u32 s9, s74, 7")
    e("    s_lshr_b32 s9, s9, 3")
    e("    s_sub_i32 s9, s9, 4")
    e("    s_max_i32 s9, s9, 0")
    e(f"    s_mov_b32 s10, {NB-1}")
    e("    s_waitcnt lgkmcnt(2)")
    addr()
    for i in range(4):
        dma(i)
    next_k()
    e("    s_waitcnt lgkmcnt(0)")
    build_b("1")
    read_recs("s11")
    e("LOOP:")
    e("    v_cmp_gt_u32 vcc, s8, v11")
    if PRIO == 3:
        e("    s_setprio 3")
    e("    s_waitcnt vmcnt(0)")
    for t in range(4):
        for u in range(2):
            if I("notr", 0):
                e(f"    ds_read_b32 v{12+4*t+2*u}, v1")
            else:
                e(f"    ds_read_b64_tr_b16 v[{12+4*t+2*u}:{13+4*t+2*u}], v{84+t} offset:{512*u}")
    e("    s_cmp_eq_u32 s8, 0")
    e("    v_cndmask_b32 v91, 0, v1, vcc")
    e("    s_waitcnt lgkmcnt(8)")
    addr()
    e("    s_waitcnt lgkmcnt(0)")
    e("    s_cbranch_scc1 LAST")
    dma(0)
    e("    s_cmp_eq_u32 s8, 1")
    e("    s_cbranch_scc1 DMAD")
    dma(1)
    e("    s_cmp_eq_u32 s8, 2")
    e("    s_cbranch_scc1 DMAD")
    dma(2)
    e("    s_cmp_eq_u32 s8, 3")
    e("    s_cbranch_scc1 DMAD")
    dma(3)
    e("DMAD:")
    if PRIO == 2:
        e("    s_lshr_b32 s11, s3, 2")
        e("    s_add_u32 s11, s11, s10")
        e("    s_and_b32 s11, s11, 3")
        e("    s_setprio 0")
        for g in range(1, 4):
            e(f"    s_cmp_lt_u32 s11, {g}")
            e("    s_cbranch_scc1 PRIOD")
            e(f"    s_setprio {g}")
        e("PRIOD:")
    if PRIO == 3:
        e("    s_setprio 0")
    mfmas()
    next_k()
    build_b("v91")
    read_recs("s11")
    e("    s_branch LOOP")
    e("LAST:")
    mfmas()
    e("MAINDONE:")
    e("    s_waitcnt lgkmcnt(0)")
    e("    v_readfirstlane_b32 s75, v8")
    e("    s_cmp_eq_u32 s75, 0")
    e("    s_cbranch_scc1 EPI")
    e("    s_or_b32 s71, s71, 2")
    e("    s_barrier")
    zero_b_counters((WL - CNTB) // 4)
    e("    s_waitcnt lgkmcnt(0)")
    e("    s_barrier")
    for s in range(7):
        e(f"    s_mov_b64 exec, {PEND(s)}")
        e(f"    ds_add_rtn_u32 v{32+s}, v{40+s}, v1")
    e("EXTRA:")
    for m, r in (("s[4:5]", 116), ("s[6:7]", 118)):
        e(f"    s_andn2_b64 exec, {m}, {PEND(7)}")
        e(f"    s_andn2_b64 {m}, {m}, exec")
        e(f"    s_or_b64 {PEND(7)}, {PEND(7)}, exec")
        decode_full(r, r + 1, 7)
    e("    s_mov_b64 exec, -1")
    e("    s_or_b64 s[76:77], s[4:5], s[6:7]")
    e("    s_cbranch_scc1 OVFULL")
    e("    s_mov_b32 s75, 0")
    e("OVL:")
    e("    s_cmp_lt_u32 s68, s69")
    e("    s_cbranch_scc1 OVLOAD")
    e("    s_cmp_eq_u64 s[72:73], 0")
    e("    s_cbranch_scc1 OVDONE")
    e("    s_ff1_i32_b64 s76, s[72:73]")
    e("    s_bitset0_b64 s[72:73], s76")
    e("    s_or_b32 s77, s76, 7")
    e("    v_readlane_b32 s68, v116, s77")
    e("    v_readlane_b32 s69, v118, s77")
    e("    s_bitcmp1_b32 s76, 0")
    e("    s_cselect_b32 s69, s69, s68")
    e(f"    s_min_u32 s69, s69, {4*NTHR}")
    e("    s_and_b32 s77, s76, 1")
    e("    s_lshl_b32 s77, s77, 7")
    e("    s_lshr_b32 s76, s76, 3")
    e("    s_add_u32 s76, s76, s77")
    e("    s_lshl_b32 s77, s3, 3")
    e("    s_add_u32 s76, s76, s77")
    e("    s_lshl_b32 s70, s76, 15")
    e(f"    s_mov_b32 s68, {NINL}")
    e("OVLOAD:")
    e("    v_add_u32 v4, s75, v0")
    e("    v_and_b32 v4, 63, v4")
    e("    v_add_u32 v4, s68, v4")
    e("    v_lshlrev_b32 v5, 3, v4")
    e(f"    buffer_load_dwordx2 v[28:29], v5, {R(S_OVF)}, s70 offen {SC}")
    e("    s_waitcnt vmcnt(0)")
    e(f"    v_mul_u32_u24 v30, {TM}, v29")
    e("    v_lshrrev_b32 v31, 20, v30")
    e("    v_cmp_gt_u32 vcc, s69, v4")
    e("    v_cmp_eq_u32 s[76:77], s2, v31")
    e("    s_and_b64 vcc, s[76:77], vcc")
    e(f"    s_and_b64 s[76:77], vcc, {PEND(7)}")
    e("    s_cbranch_scc1 OVFULL")
    e(f"    s_or_b64 {PEND(7)}, {PEND(7)}, vcc")
    e("    s_add_u32 s68, s68, 64")
    e("    s_add_u32 s75, s75, 16")
    e("    s_mov_b64 exec, vcc")
    decode_full(28, 29, 7)
    e("    s_mov_b64 exec, -1")
    e("    s_branch OVL")
    e("OVFULL:")
    e(f"    v_mov_b32 v2, {MORE}")
    e("    ds_write_b32 v2, v1")
    e("OVDONE:")
    e(f"    s_mov_b64 exec, {PEND(7)}")
    e("    ds_add_rtn_u32 v39, v47, v1")
    e("    s_mov_b64 exec, -1")
    e("    s_branch CDONE")
    for i in range(2):
        base = 12 + 4 * i
        e(f"C_RETRY{i}:")
        if TORN:
            for h in ("vcc_lo", "vcc_hi"):
                for bb in range(4):
                    n = len(L)
                    e(f"    s_bfe_u32 s76, {h}, {(8 << 16) | (8*bb)}")
                    e("    s_cmp_eq_u32 s76, 0")
                    e(f"    s_cbranch_scc1 TN{n}")
                    e("    s_cmp_eq_u32 s76, 0xff")
                    e(f"    s_cbranch_scc1 TN{n}")
                    e("    s_add_u32 s16, s16, 1")
                    e("    s_cmp_eq_u32 s76, 0x0f")
                    e(f"    s_cbranch_scc1 TN{n}")
                    e("    s_cmp_eq_u32 s76, 0xf0")
                    e(f"    s_cbranch_scc1 TN{n}")
                    e("    s_add_u32 s17, s17, 1")
                    e(f"TN{n}:")
            e("    s_add_u32 s16, s16, 0x10000")
        e(f"    buffer_load_dwordx4 v[{base}:{base+3}], v9, {R(S_WS)}, s{68+i} offen {LD_SL}")
        e("    s_sub_u32 s75, s75, 1")
        e("    s_cmp_eq_u32 s75, 0")
        e("    s_waitcnt vmcnt(0)")
        e(f"    s_cbranch_scc0 C_CHK{i}")
        e("    s_mov_b32 s75, 1000")
        e(f"    s_branch C_OK{i}")
    e("C_RETRY2:")
    e(f"    buffer_load_dwordx2 v[116:117], v31, {R(S_WS)}, s70 offen {SC}")
    e(f"    buffer_load_dwordx2 v[118:119], v31, {R(S_WS)}, s74 offen {SC}")
    e("    s_sub_u32 s75, s75, 1")
    e("    s_cmp_eq_u32 s75, 0")
    e("    s_waitcnt vmcnt(0)")
    e("    s_cbranch_scc0 C_CHK2")
    e("    s_branch C_OK2")
    e("SLOWW:")
    e("    s_waitcnt lgkmcnt(0)")
    for s in range(8):
        e(f"    s_mov_b64 exec, {PEND(s)}")
        e(f"    v_lshl_add_u32 v{20+s}, v{32+s}, 2, v{20+s}")
        e(f"    v_subrev_u32 v3, s0, v{40+s}")
        e("    v_lshrrev_b32 v3, 6, v3")
        e(f"    v_mul_u32_u24 v3, {TSTR}, v3")
        e(f"    v_add_u32 v3, {LISTS + CAPT*4}, v3")
        e(f"    v_cmp_lt_u32 vcc, v{20+s}, v3")
        e(f"    s_andn2_b64 {PEND(s)}, exec, vcc")
        e("    s_mov_b64 exec, vcc")
        e(f"    ds_write2st64_b32 v{20+s}, v{48+s}, v{56+s} offset0:0 offset1:5")
    e("    s_mov_b64 exec, -1")
    e(f"    v_mov_b32 v3, {MORE}")
    e("    ds_write_b32 v3, v1")
    e("    s_branch WDONE")

    e("EPI:")
    if PRIO:
        e("    s_setprio 0")
    stamp2("h1_done", "h2_done")
    WREG = [40, 44, 48, 52, 56, 60, 24, 116]
    WREG = [40, 44, 48, 52, 56, 60, 28, 116]

    def w_frags():
        for s_ in range(2):
            for t in range(4):
                for u in range(2):
                    off = (32 * s_ + 4 * u) * 128 + 64 * (t >> 1) + 8 * (t & 1)
                    r = WREG[s_ * 4 + t] + 2 * u
                    e(f"    ds_read_b64_tr_b16 v[{r}:{r+1}], v122 offset:{off}")

    e("    s_nop 4")
    for t in range(4):
        e(f"    v_cvt_pk_bf16_f32 v{12+2*t}, v{64+4*t}, v{65+4*t}")
        e(f"    v_cvt_pk_bf16_f32 v{13+2*t}, v{66+4*t}, v{67+4*t}")
    e("    s_mov_b64 exec, s[16:17]")
    e("    v_swap_b32 v12, v14")
    e("    v_swap_b32 v13, v15")
    e("    v_swap_b32 v16, v18")
    e("    v_swap_b32 v17, v19")
    e("    s_bitcmp1_b32 s71, 0")
    e("    s_cbranch_scc1 FINAL")
    e("    s_mov_b64 exec, s[14:15]")
    e(f"    buffer_store_dwordx4 v[12:15], v121, {R(S_STO)}, 0 offen {SCH}")
    e(f"    buffer_store_dwordx4 v[16:19], v121, {R(S_STO)}, 0 offen offset:64 {SCH}")
    e("    s_mov_b64 exec, -1")
    stamp("h1_st")
    e(f"    s_mov_b32 s{S_GAT}, s{S_DST}")
    e(f"    s_mov_b32 s{S_GAT+1}, s{S_DST+1}")
    e("    s_or_b32 s71, s71, 1")
    for i in range(16):
        e(f"    v_mov_b32 v{64+i}, 0")
    e("    s_bitcmp1_b32 s71, 1")
    e("    s_cbranch_scc1 E_IRR")
    w_frags()
    e("    s_branch E_BAR")
    e("E_IRR:")
    zero_b_counters(256)
    e("    v_lshlrev_b32 v9, 4, v0")
    e("    v_lshlrev_b32 v31, 3, v0")
    e("    s_waitcnt lgkmcnt(0)")
    e("E_BAR:")
    grid_barrier("g2", 1, 0, 0)
    e("    v_mov_b32 v8, 0")
    e("    s_bitcmp0_b32 s71, 1")
    e("    s_cbranch_scc1 MAIN")
    e("    s_branch COLLECT")
    e("FINAL:")
    e("    s_mov_b64 exec, -1")
    e("    s_bitcmp0_b32 s71, 1")
    e("    s_cbranch_scc1 F_HAVEW")
    w_frags()
    e("    s_waitcnt lgkmcnt(0)")
    e("F_HAVEW:")
    for t in range(4):
        w = WREG[t]
        e(f"    v_mfma_f32_16x16x32_bf16 v[{64+4*t}:{67+4*t}], v[{w}:{w+3}], v[12:15], 0")
    for t in range(4):
        w = WREG[4 + t]
        e(f"    v_mfma_f32_16x16x32_bf16 v[{64+4*t}:{67+4*t}], v[{w}:{w+3}], v[16:19], v[{64+4*t}:{67+4*t}]")
    e("    s_nop 4")
    for t in range(4):
        if t:
            e("    s_nop 1")
        e(f"    v_cvt_pk_bf16_f32 v{12+2*t}, v{64+4*t}, v{65+4*t}")
        e(f"    v_cvt_pk_bf16_f32 v{13+2*t}, v{66+4*t}, v{67+4*t}")
    e("    s_mov_b64 exec, s[14:15]")
    e(f"    buffer_store_dwordx4 v[12:15], v121, {R(S_SRC)}, 0 offen {ST_OUT}")
    e(f"    buffer_store_dwordx4 v[16:19], v121, {R(S_SRC)}, 0 offen offset:64 {ST_OUT}")
    stamp_out()
    e("END:")
    e("    s_endpgm")


SPIN = OPT.get("spin")
if SPIN:
    e(f"; @launch kernel={NAME} grid=(256,1,1) block=(1024,1,1) lds={LDS}")
    e("; @launch kernel=sgc_spin_kernel grid=(1,1,1) block=(64,1,1) lds=0")
else:
    e(f"; @launch grid=(256,1,1) block=(1024,1,1) lds={LDS}")
e('.amdgcn_target "amdgcn-amd-amdhsa--gfx950"')
e(".text")
body()
if SPIN:
    na, nb_, mode, mult, wlo, whi = (SPIN.split(",") + ["0", "15"])[:6]
    wlo, whi = int(wlo), int(whi)
    ia, ib, mode, mult = STL.index(na), STL.index(nb_), int(mode), int(mult)
    e(".globl sgc_spin_kernel")
    e(".p2align 8")
    e(".type sgc_spin_kernel,@function")
    e("sgc_spin_kernel:")
    e("    s_memrealtime s[30:31]")
    e("    s_cmp_ge_u32 s2, 1")
    e("    s_cbranch_scc1 SP_END")
    e("    s_load_dwordx8 s[12:19], s[0:1], 32")
    e("    v_lshlrev_b32 v1, 6, v0")
    e("    v_mov_b32 v4, 0x7fffffff")
    e("    v_mov_b32 v5, %s" % ("0x80000000" if mode == 0 else "0x7fffffff" if mode == 1 else "0"))
    e("    s_waitcnt lgkmcnt(0)")
    srd(20, 18, 19, 1 << 20, WS_STAMP)
    e("    s_mov_b32 s24, 0")
    e("SP_RD:")
    e(f"    buffer_load_dword v2, v1, s[20:23], s24 offen offset:{4*ia}")
    e(f"    buffer_load_dword v3, v1, s[20:23], s24 offen offset:{4*ib}")
    e("    s_add_u32 s24, s24, 4096")
    e("    s_cmp_lt_u32 s24, 0x40000")
    e("    s_waitcnt vmcnt(0)")
    e("    v_subrev_u32 v2, s30, v2")
    e("    v_subrev_u32 v3, s30, v3")
    e("    v_min_i32 v4, v4, v2")
    e("    %s v5, v5, v3" % ("v_max_i32" if mode == 0 else "v_min_i32" if mode == 1 else "v_add_u32"))
    e("    s_cbranch_scc1 SP_RD")
    e("    s_mov_b32 s26, 0x7fffffff")
    e("    s_mov_b32 s27, %s" % ("0x80000000" if mode == 0 else "0x7fffffff" if mode == 1 else "0"))
    e("    s_nop 1")
    for l in range(64):
        e(f"    v_readlane_b32 s28, v4, {l}")
        e(f"    v_readlane_b32 s29, v5, {l}")
        e("    s_min_i32 s26, s26, s28")
        if wlo <= (l & 15) <= whi:
            e("    %s s27, s27, s29" % ("s_max_i32" if mode == 0 else "s_min_i32" if mode == 1 else "s_add_u32"))
    if mode == 2:
        e("    s_ashr_i32 s27, s27, %d" % (8 + (whi - wlo + 1).bit_length() - 1))
    if mode == 3:
        e("    s_mov_b32 s27, 0")
    e("    s_sub_i32 s26, s27, s26")
    e("    s_max_i32 s26, s26, 0")
    e("    s_min_i32 s26, s26, 20000")
    e(f"    s_mul_i32 s26, s26, {mult}")
    e("    s_add_u32 s26, s26, 10000")
    e("SP_LOOP:")
    e("    s_memrealtime s[28:29]")
    e("    s_waitcnt lgkmcnt(0)")
    e("    s_sub_u32 s28, s28, s30")
    e("    s_cmp_lt_u32 s28, s26")
    e("    s_cbranch_scc1 SP_LOOP")
    e("SP_END:")
    e("    s_endpgm")
e('.section .rodata,"a"')
if SPIN:
    e(".p2align 6")
    e(".amdhsa_kernel sgc_spin_kernel")
    e("  .amdhsa_next_free_vgpr 8")
    e("  .amdhsa_next_free_sgpr 40")
    e("  .amdhsa_accum_offset 8")
    e("  .amdhsa_group_segment_fixed_size 0")
    e("  .amdhsa_kernarg_size 64")
    e("  .amdhsa_user_sgpr_count 2")
    e("  .amdhsa_user_sgpr_kernarg_segment_ptr 1")
    e("  .amdhsa_system_sgpr_workgroup_id_x 1")
    e(".end_amdhsa_kernel")
e(".p2align 6")
e(f".amdhsa_kernel {NAME}")
e("  .amdhsa_next_free_vgpr 128")
e("  .amdhsa_next_free_sgpr 102")
e("  .amdhsa_accum_offset 128")
e("  .amdhsa_group_segment_fixed_size 0")
e("  .amdhsa_kernarg_size 64")
e("  .amdhsa_user_sgpr_count 2")
e("  .amdhsa_user_sgpr_kernarg_segment_ptr 1")
e("  .amdhsa_system_sgpr_workgroup_id_x 1")
e(".end_amdhsa_kernel")
open(OUT, "w").write("\n".join(L) + "\n")
```

```python
import sys

OUT = [a for a in sys.argv[1:] if not a.startswith("--")][0]
OPT = dict(a[2:].split("=") for a in sys.argv[1:] if a.startswith("--") and "=" in a)
NAME = "standalone__spectral_conv_sgc__graph_kernel"
DEFST = "start,a_bar1,a_bar2,g1_exit,b_lines,b_bar1,b_bar2,h1_done,g2_ack,g2_exit,h2_done,end"
STL = OPT.get("st", DEFST if "--diag" in sys.argv else "").split(",")
STL = [s for s in STL if s]
DIAG = len(STL) > 0


def I(name, dflt):
    return int(OPT.get(name, dflt))


N = 50000
E = 850000
ET = 800000
TM = 5368
CHMAX = 13 * 256
SLOTCAP = 24
NINL = 7
WS_OVT = 8 << 20
WS_FLAG = WS_OVT + 65536
WS_H1 = WS_OVT + (1 << 20)
WS_OVF = 16 << 20
OVF_STRIDE = 32768
WS_STAMP = 32 << 20
TABBYTES = N * 128
PADV = 0x40000000

K1_LS = 132
K1_CNT = 256 * K1_LS
K1_OVC = 1024
K1_OVT = K1_CNT + 4096
K1_NON = K1_OVT + 64
LISTS = 65536
CAPT = 320
TSTR = CAPT * 8
CNTB = LISTS + 16 * TSTR + 256
BASES = CNTB + 1024
MORE = BASES + 1024
WL = MORE + 64
LDS = WL + 8192

SC = "sc1"
ST_OUT = OPT.get("stout", "nt")
SPINMAX = 20000000
NREP = 8
LSTR = 128
NB = I("nb", 8)
TSH = I("tsh", 20)
PFS = I("pfstep", 80)
PF4 = I("pf4", 0)
PRIO = I("prio", 1)

L = []


def e(s=""):
    L.append(s)


def srd(d, lo, hi, nbytes, off=0):
    if off == 0:
        e(f"    s_mov_b32 s{d}, s{lo}")
        e(f"    s_mov_b32 s{d+1}, s{hi}")
    elif off > 0:
        e(f"    s_add_u32 s{d}, s{lo}, {off}")
        e(f"    s_addc_u32 s{d+1}, s{hi}, 0")
    else:
        e(f"    s_sub_u32 s{d}, s{lo}, {-off}")
        e(f"    s_subb_u32 s{d+1}, s{hi}, 0")
    e(f"    s_mov_b32 s{d+2}, {nbytes}")
    e(f"    s_mov_b32 s{d+3}, s23")


S_SRC, S_DST, S_NRM, S_WS, S_OVF, S_GAT, S_STO, S_DBG = 20, 24, 28, 32, 36, 40, 44, 48
S_OUT, S_GH = S_SRC, S_DST


def R(d):
    return f"s[{d}:{d+3}]"


STAMP_BASE = 78


def stamp(name):
    if "c_" + name in STL:
        i = STL.index("c_" + name)
        e(f"    s_memtime s[{STAMP_BASE+2*i}:{STAMP_BASE+2*i+1}]")
    if name in STL:
        i = STL.index(name)
        e(f"    s_memrealtime s[{STAMP_BASE+2*i}:{STAMP_BASE+2*i+1}]")


def stamp2(n1, n2):
    if n1 in STL or n2 in STL:
        n = len(L)
        e("    s_bitcmp1_b32 s71, 0")
        e(f"    s_cbranch_scc1 ST{n}_B")
        stamp(n1)
        e(f"    s_branch ST{n}_C")
        e(f"ST{n}_B:")
        stamp(n2)
        e(f"ST{n}_C:")


def stamp_out():
    if not DIAG:
        return
    e("    s_waitcnt vmcnt(0) lgkmcnt(0)")
    stamp("end")
    e("    s_waitcnt lgkmcnt(0)")
    e("    s_mov_b64 exec, 1")
    srd(28, 18, 19, 1 << 20, WS_STAMP)
    e("    s_lshl_b32 s76, s2, 4")
    e("    s_add_u32 s76, s76, s3")
    e("    s_lshl_b32 s76, s76, 6")
    e("    v_mov_b32 v2, s76")
    for i in range(len(STL)):
        e(f"    v_mov_b32 v3, s{STAMP_BASE+2*i}")
        e(f"    buffer_store_dword v3, v2, s[28:31], 0 offen offset:{4*i}")
    e("    s_getreg_b32 s76, hwreg(HW_REG_XCC_ID)")
    e("    v_mov_b32 v3, s76")
    e("    buffer_store_dword v3, v2, s[28:31], 0 offen offset:56")
    e("    v_mov_b32 v3, s74")
    e("    buffer_store_dword v3, v2, s[28:31], 0 offen offset:60")


def PEND(s):
    return f"s[{52+2*s}:{53+2*s}]"


def prefetch_common(cnt):
    if cnt == 0:
        return
    e("    s_lshr_b32 s76, s2, 3")
    e("    s_lshl_b32 s76, s76, 4")
    e("    s_add_u32 s76, s76, s3")
    e(f"    s_mul_i32 s76, s76, {cnt}")
    e("    v_and_b32 v2, 63, v0")
    e("    v_add_u32 v2, s76, v2")
    e("    v_lshrrev_b32 v3, 5, v2")
    e("    v_and_b32 v2, 31, v2")
    e(f"    v_mul_u32_u24 v3, {PFS}, v3")
    e("    v_add_lshl_u32 v2, v2, v3, 7")
    e(f"    s_mov_b32 exec_lo, {((1 << cnt) - 1) & 0xffffffff}")
    e(f"    s_mov_b32 exec_hi, {((1 << cnt) - 1) >> 32}")
    e(f"    buffer_load_dword v126, v2, {R(S_GAT)}, 0 offen offset:3072")
    e("    s_mov_b64 exec, -1")


def own_rows(srdn, flags):
    e("    s_and_b64 exec, s[14:15], 0xffff")
    e(f"    buffer_load_dword v126, v121, {R(srdn)}, 0 offen {flags}")
    e("    s_mov_b64 exec, -1")


def grid_barrier(p):
    rstr = 64 * LSTR
    e("    s_waitcnt vmcnt(0)")
    stamp(p + "_ack")
    e("    s_barrier")
    e("    s_cmp_lg_u32 s3, 0")
    e(f"    s_cbranch_scc1 {p}_OTH")
    stamp(p + "_arr")
    e(f"    s_mov_b64 exec, {(1 << NREP) - 1}")
    e(f"    buffer_store_dword v125, v2, {R(S_WS)}, s76 offen sc1")
    own_rows(S_STO, "sc1")
    e(f"    s_mov_b32 s76, {SPINMAX}")
    e(f"{p}_POLL:")
    e(f"    buffer_load_dwordx4 v[4:7], v8, {R(S_WS)}, s77 offen sc1")
    e("    s_sub_u32 s76, s76, 1")
    e("    s_cmp_eq_u32 s76, 0")
    e("    s_waitcnt vmcnt(0)")
    e(f"    s_cbranch_scc1 {p}_WAIT")
    e("    v_xor_b32 v4, v4, v125")
    e("    v_xor_b32 v5, v5, v125")
    e("    v_xor_b32 v6, v6, v125")
    e("    v_xor_b32 v7, v7, v125")
    e("    v_or3_b32 v4, v4, v5, v6")
    e("    v_or_b32 v4, v4, v7")
    e("    v_cmp_ne_u32 vcc, 0, v4")
    e(f"    s_cbranch_vccnz {p}_POLL")
    e(f"    s_branch {p}_WAIT")
    e(f"{p}_OTH:")
    own_rows(S_STO, "sc1")
    e(f"{p}_WAIT:")
    e("    s_barrier")
    stamp(p + "_exit")


def barrier_addrs():
    rstr = 64 * LSTR
    e("    s_lshr_b32 s76, s2, 2")
    e(f"    s_mul_i32 s76, s76, {LSTR}")
    e("    s_and_b32 s77, s2, 3")
    e("    s_lshl_b32 s77, s77, 2")
    e("    s_add_u32 s76, s76, s77")
    e(f"    s_add_u32 s76, s76, {WS_FLAG}")
    e(f"    v_mul_u32_u24 v2, {rstr}, v0")
    e("    s_getreg_b32 s77, hwreg(HW_REG_XCC_ID, 0, 4)")
    e(f"    s_and_b32 s77, s77, {NREP-1}")
    e(f"    s_mul_i32 s77, s77, {rstr}")
    e(f"    s_add_u32 s77, s77, {WS_FLAG}")
    e(f"    v_mul_u32_u24 v8, {LSTR}, v0")


def decode_key(rec, meta, k, s):
    ca = 40 + s
    e(f"    v_bfe_u32 v2, v{rec}, 12, 4")
    e(f"    v_and_b32_sdwa v3, v{meta}, v99 dst_sel:DWORD dst_unused:UNUSED_PAD src0_sel:BYTE_{k} src1_sel:DWORD")
    e(f"    v_or_b32 v2, v2, v3")
    e(f"    v_lshl_add_u32 v{ca}, v2, 2, s0")


def decode_data(rec, meta, k, s):
    d0, d1 = 48 + s, 56 + s
    e(f"    v_lshlrev_b32_sdwa v{d0}, v124, v{rec} dst_sel:DWORD dst_unused:UNUSED_PAD src0_sel:DWORD src1_sel:WORD_0")
    if OPT.get("srcmask"):
        e(f"    v_and_b32 v{d0}, {OPT['srcmask']}, v{d0}")
    e(f"    v_mov_b32 v{d1}, v{rec}")
    e(f"    v_lshlrev_b16_sdwa v{d1}, v{meta}, v1 dst_sel:WORD_0 dst_unused:UNUSED_PRESERVE src0_sel:BYTE_{k} src1_sel:DWORD")


def decode_full(rec, dst, s):
    e(f"    v_mul_u32_u24 v30, {TM}, v{dst}")
    e("    v_lshrrev_b32 v30, 12, v30")
    e(f"    v_bfi_b32 v30, 15, v{dst}, v30")
    decode_key(rec, 30, 0, s)
    decode_data(rec, 30, 0, s)


def zero_b_counters(n):
    e("    v_lshlrev_b32 v2, 2, v0")
    e(f"    v_add_u32 v2, {CNTB}, v2")
    e("    v_mov_b32 v3, 0")
    e(f"    v_cmp_gt_u32 vcc, {n}, v0")
    e("    s_and_saveexec_b64 s[76:77], vcc")
    e("    ds_write_b32 v2, v3")
    e("    s_mov_b64 exec, -1")


def phase_a():
    stamp("start")
    e("    s_load_dwordx2 s[24:25], s[0:1], 16")
    e("    s_load_dwordx2 s[20:21], s[0:1], 8")
    e("    s_load_dwordx2 s[28:29], s[0:1], 24")
    if I("cpf", 1):
        e("    s_getpc_b64 s[6:7]")
        e("CPF_PC:")
        e("    v_cmp_gt_u32 vcc, (CODE_END-CPF_PC)/128, v0")
        e("    v_lshlrev_b32 v2, 7, v0")
        e("    s_and_saveexec_b64 s[8:9], vcc")
        e("    s_cbranch_execz CPF_D")
        e("    global_load_dword v126, v2, s[6:7] offset:124")
        e("CPF_D:")
        e("    s_mov_b64 exec, -1")
    e("    s_cmp_ge_u32 s2, 256")
    e("    s_cbranch_scc1 END")
    e("    v_lshrrev_b32 v3, 6, v0")
    e("    v_and_b32 v2, 63, v0")
    e("    s_mov_b32 s23, 0x20000")
    e(f"    s_mov_b32 s22, {E*4}")
    e("    v_lshlrev_b32 v4, 18, v3")
    e("    s_mov_b64 s[26:27], s[22:23]")
    e("    v_lshl_or_b32 v4, v2, 4, v4")
    e("    s_lshr_b32 s30, s22, 1")
    e("    s_mov_b32 s31, s23")
    e("    v_lshrrev_b32 v5, 1, v4")
    e("    s_lshl_b32 s68, s2, 10")
    e("    s_lshl_b32 s69, s2, 9")
    e("    s_waitcnt lgkmcnt(0)")
    e(f"    buffer_load_dwordx4 v[12:15], v4, {R(S_DST)}, s68 offen")
    e(f"    buffer_load_dwordx4 v[16:19], v4, {R(S_SRC)}, s68 offen")
    e(f"    buffer_load_dwordx2 v[20:21], v5, {R(S_NRM)}, s69 offen")
    stamp("a_issue")
    e("    s_load_dwordx8 s[12:19], s[0:1], 32")
    e("    s_load_dwordx2 s[4:5], s[0:1], 0")
    e("    v_readfirstlane_b32 s3, v3")
    e("    v_lshlrev_b32 v9, 2, v0")
    e("    v_mov_b32 v6, 0")
    e(f"    ds_write_b32 v9, v6 offset:{K1_CNT}")
    e("    v_mov_b32 v24, -1")
    e("    v_mov_b32 v25, -1")
    e("    v_mov_b32 v26, -1")
    e("    v_mov_b32 v27, -1")
    e("    v_lshlrev_b32 v7, 4, v0")
    e("    ds_write_b128 v7, v[24:27]")
    e("    ds_write_b128 v7, v[24:27] offset:16384")
    e("    v_add_u32 v4, s68, v4")
    e("    v_lshrrev_b32 v8, 2, v4")
    e(f"    v_cmp_gt_u32 s[72:73], s22, v4")
    e(f"    v_subrev_u32 v8, {ET}, v8")
    e("    v_mov_b32 v1, 1")
    e("    v_and_b32 v10, 7, v0")
    e("    s_cmp_lt_u32 s3, 12")
    e("    s_cbranch_scc1 A_BAR")
    e("    s_memrealtime s[76:77]")
    e("    s_cmp_lg_u32 s3, 15")
    e("    s_cbranch_scc1 A_H1")
    e(f"    ds_write_b128 v7, v[24:27] offset:{32768 - 15*1024}")
    e("    v_and_b32 v5, 60, v9")
    e("    v_mov_b32 v7, 0xffff")
    e(f"    ds_write_b32 v5, v7 offset:{K1_OVT}")
    e("A_H1:")
    e("    s_lshl_b32 s70, s2, 4")
    e("    s_add_u32 s70, s70, s3")
    e("    s_cmp_lg_u32 s70, 13")
    e("    s_cbranch_scc1 A_BAR")
    e("    s_waitcnt lgkmcnt(0)")
    srd(S_DBG, 16, 17, 256)
    e("    s_mul_i32 s68, s76, 0x9e3779b1")
    e("    s_mul_hi_u32 s69, s76, 0x9e3779b1")
    e("    s_xor_b32 s68, s68, s69")
    e("    s_xor_b32 s68, s68, s77")
    e("    s_mul_i32 s69, s68, 0x85ebca6b")
    e("    s_mul_hi_u32 s70, s68, 0x85ebca6b")
    e("    s_xor_b32 s69, s69, s70")
    e("    s_or_b32 s68, s68, 1")
    e("    v_mov_b32 v24, s68")
    e("    v_mov_b32 v25, s69")
    e("    s_mov_b64 exec, 1")
    e(f"    buffer_store_dwordx2 v[24:25], v6, {R(S_DBG)}, 0 offen sc1")
    e("    s_mov_b64 exec, -1")
    e("A_BAR:")
    e("    s_waitcnt lgkmcnt(0)")
    e("    s_barrier")
    stamp("a_bar1")
    srd(S_WS, 18, 19, WS_H1 + TABBYTES, 0)
    e("    s_cmp_lt_u32 s3, 12")
    e("    s_cbranch_scc1 A_EDGES")
    e("    v_bfe_u32 v2, v0, 4, 4")
    e("    s_lshl_b32 s76, s2, 4")
    e("    v_add_u32 v2, s76, v2")
    e("    v_mul_u32_u24 v3, 50006, v2")
    e("    v_lshrrev_b32 v3, 12, v3")
    e("    v_sub_u32 v4, v0, v3")
    e("    v_and_b32 v4, 15, v4")
    e("    v_add_u32 v115, v3, v4")
    e(f"    v_add_u32 v4, {ET}, v115")
    e("    v_lshlrev_b32 v5, 2, v4")
    e("    v_lshlrev_b32 v4, 1, v4")
    e(f"    buffer_load_dword v112, v5, {R(S_DST)}, 0 offen")
    e(f"    buffer_load_dword v113, v5, {R(S_SRC)}, 0 offen")
    e(f"    buffer_load_ushort v114, v4, {R(S_NRM)}, 0 offen")
    e(f"    v_mul_u32_u24 v4, {TM}, v115")
    e("    v_lshrrev_b32 v4, 16, v4")
    e("    v_cmp_eq_u32 s[66:67], v4, v2")
    e(f"    v_cmp_gt_u32 vcc, {N}, v115")
    e("    s_and_b64 s[66:67], s[66:67], vcc")
    e("    s_cmp_eq_u32 s3, 12")
    e("    s_cbranch_scc1 A_EDGES12")
    srd(S_STO, 12, 13, 8192)
    e(f"    v_subrev_u32 v2, {13*64}, v0")
    e("    v_lshlrev_b32 v2, 4, v2")
    e(f"    buffer_load_dwordx4 v[100:103], v2, {R(S_STO)}, 0 offen")
    e(f"    buffer_load_dwordx4 v[104:107], v2, {R(S_STO)}, 0 offen offset:3072")
    e("    v_add_u32 v3, 6144, v2")
    e(f"    buffer_load_dwordx4 v[108:111], v3, {R(S_STO)}, 0 offen")
    e("    s_cmp_eq_u32 s3, 13")
    e("    s_cbranch_scc1 A_NONCE")
    e("    s_cmp_eq_u32 s3, 15")
    e("    s_cbranch_scc1 A_OUT")
    e("    v_and_b32 v2, 63, v0")
    e(f"    v_lshlrev_b32 v2, {TSH}, v2")
    e(f"    buffer_load_dword v126, v2, {R(S_WS)}, 0 offen sc1")
    srd(S_GAT, 4, 5, TABBYTES)
    e(f"    buffer_load_dword v126, v2, {R(S_GAT)}, 0 offen")
    srd(S_OVF, 14, 15, TABBYTES)
    e(f"    buffer_load_dword v126, v2, {R(S_OVF)}, 0 offen sc1")
    e("    s_branch A_OUT")
    e("A_NONCE:")
    srd(S_DBG, 16, 17, 256)
    e(f"    s_mov_b32 s76, {SPINMAX}")
    e("A_NPOLL:")
    e(f"    buffer_load_dwordx2 v[4:5], v6, {R(S_DBG)}, 0 offen sc1")
    e("    s_sub_u32 s76, s76, 1")
    e("    s_cmp_eq_u32 s76, 0")
    e("    s_waitcnt vmcnt(0)")
    e("    s_cbranch_scc1 A_NGOT")
    e("    v_cmp_eq_u32 vcc, 0, v4")
    e("    s_cbranch_vccnz A_NPOLL")
    e("A_NGOT:")
    e(f"    ds_write_b64 v6, v[4:5] offset:{K1_NON}")
    e("    s_branch A_OUT")
    e("A_EDGES12:")
    e("    s_waitcnt vmcnt(5)")
    e("    s_branch A_EDGES2")
    e("A_EDGES:")
    e("    s_waitcnt vmcnt(2)")
    e("A_EDGES2:")
    e("    s_mov_b64 exec, s[72:73]")
    e("    s_mov_b32 s70, 0xffff0000")
    stamp("a_dst")
    for k in range(4):
        e(f"    v_mul_u32_u24 v{24+k}, {TM}, v{12+k}")
        e(f"    v_add_u32 v2, {k}, v8")
        e(f"    v_lshrrev_b32 v{28+k}, 20, v{24+k}")
        e(f"    v_cmp_ne_u32 s[{52+2*k}:{53+2*k}], v{12+k}, v2")
        e(f"    v_lshlrev_b32 v{36+k}, 2, v{28+k}")
    for k in range(4):
        e(f"    s_mov_b64 exec, s[{52+2*k}:{53+2*k}]")
        e(f"    ds_add_rtn_u32 v{32+k}, v{36+k}, v1 offset:{K1_CNT}")
    e("    s_mov_b64 exec, s[72:73]")
    for k in range(4):
        e(f"    v_lshrrev_b32 v{24+k}, 12, v{24+k}")
        e(f"    v_mul_u32_u24 v{28+k}, {K1_LS}, v{28+k}")
        e(f"    v_bfi_b32 v{24+k}, 15, v{12+k}, v{24+k}")
    e("    s_mov_b64 s[60:61], 0")
    FIT = ["s[6:7]", "s[8:9]", "s[10:11]", "s[62:63]"]
    for k in range(4):
        e(f"    s_mov_b64 exec, s[{52+2*k}:{53+2*k}]")
        e(f"    s_waitcnt lgkmcnt(3)")
        e(f"    v_cmp_gt_u32 vcc, {SLOTCAP}, v{32+k}")
        e(f"    v_and_b32 v2, 7, v{32+k}")
        e(f"    v_lshrrev_b32 v3, 3, v{32+k}")
        e(f"    s_andn2_b64 s[{52+2*k}:{53+2*k}], exec, vcc")
        e(f"    s_or_b64 s[60:61], s[60:61], s[{52+2*k}:{53+2*k}]")
        e(f"    s_mov_b64 {FIT[k]}, vcc")
        e("    s_mov_b64 exec, vcc")
        e(f"    v_lshl_add_u32 v2, v2, 4, v{28+k}")
        e(f"    v_lshl_add_u32 v{36+k}, v3, 2, v2")
        e("    v_add_u32 v5, v3, v2")
        e(f"    ds_write_b8 v5, v{24+k} offset:12")
    e("    s_mov_b64 exec, s[72:73]")
    e("    s_cmp_eq_u32 s3, 12")
    e("    s_waitcnt vmcnt(3)")
    e("    s_cbranch_scc1 A_ALL")
    e("    s_waitcnt vmcnt(0)")
    e("A_ALL:")
    stamp("a_all")
    for k in range(4):
        if k % 2 == 0:
            e(f"    v_lshl_or_b32 v{16+k}, v{20+k//2}, 16, v{16+k}")
        else:
            e(f"    v_and_or_b32 v{16+k}, v{20+k//2}, s70, v{16+k}")
    for k in range(4):
        e(f"    s_mov_b64 exec, {FIT[k]}")
        e(f"    ds_write_b32 v{36+k}, v{16+k}")
    e("    s_cmp_lg_u64 s[60:61], 0")
    e("    s_cbranch_scc1 A_OVER")
    e("A_OUT:")
    e("    s_mov_b64 exec, -1")
    e("    v_lshrrev_b32 v2, 3, v0")
    e("    s_lshl_b32 s62, s3, 3")
    e("    v_add_u32 v2, s62, v2")
    e(f"    v_mul_u32_u24 v4, {K1_LS}, v2")
    e("    v_lshl_add_u32 v4, v10, 4, v4")
    e(f"    v_add_u32 v5, {8*K1_LS}, v4")
    e("    v_lshlrev_b32 v7, 15, v2")
    e("    v_lshl_add_u32 v7, v10, 4, v7")
    e("    s_lshl_b32 s62, s2, 7")
    e(f"    s_add_u32 s63, s62, {8*32768}")
    e("    s_mov_b32 s64, 0xffffff")
    e("    v_and_b32 v3, 6, v10")
    e("    s_waitcnt lgkmcnt(0)")
    stamp("a_pre2")
    e("    s_barrier")
    stamp("a_bar2")
    e(f"    ds_read_u8 v127, v10 offset:{K1_NON}")
    e("    ds_read2_b32 v[12:13], v4 offset0:0 offset1:1")
    e("    ds_read2_b32 v[14:15], v4 offset0:2 offset1:3")
    e("    ds_read2_b32 v[16:17], v5 offset0:0 offset1:1")
    e("    ds_read2_b32 v[18:19], v5 offset0:2 offset1:3")
    e(f"    ds_read_u16 v120, v3 offset:{K1_NON}")
    e(f"    ds_read_b32 v125, v6 offset:{K1_NON}")
    e("    s_waitcnt lgkmcnt(6)")
    e("    v_lshlrev_b32 v20, 24, v127")
    e("    s_waitcnt lgkmcnt(4)")
    e("    v_and_or_b32 v15, v15, s64, v20")
    e(f"    buffer_store_dwordx4 v[12:15], v7, {R(S_WS)}, s62 offen {SC}")
    e("    s_waitcnt lgkmcnt(2)")
    e("    v_and_or_b32 v19, v19, s64, v20")
    e(f"    buffer_store_dwordx4 v[16:19], v7, {R(S_WS)}, s63 offen {SC}")
    e(f"    s_cmp_lg_u32 s3, {I('ovtw', 0)}")
    e("    s_cbranch_scc1 A_FIN")
    e("    s_mov_b64 exec, 0xff")
    e("    v_lshlrev_b32 v2, 3, v10")
    e(f"    ds_read_b64 v[24:25], v2 offset:{K1_OVT}")
    e(f"    ds_read_b32 v22, v6 offset:{K1_CNT+K1_OVC}")
    e("    v_cmp_eq_u32 vcc, 7, v10")
    e("    s_lshl_b32 s62, s2, 6")
    e(f"    s_add_u32 s62, s62, {WS_OVT}")
    e("    s_waitcnt lgkmcnt(0)")
    e("    v_cndmask_b32 v24, v24, v22, vcc")
    e("    v_lshl_or_b32 v25, v120, 16, v25")
    e(f"    buffer_store_dwordx2 v[24:25], v2, {R(S_WS)}, s62 offen {SC}")
    e("    s_mov_b64 exec, -1")
    e("A_FIN:")
    stamp("a_st")


def a_overflow():
    e("A_OVER:")
    srd(S_OVF, 18, 19, 256 * OVF_STRIDE, WS_OVF)
    e("    s_lshl_b32 s62, s2, 15")
    for k in range(4):
        e(f"    s_mov_b64 exec, s[{52+2*k}:{53+2*k}]")
        e(f"    s_cbranch_execz A_OV{k}")
        e(f"    v_mov_b32 v2, {K1_OVC}")
        e(f"    ds_add_rtn_u32 v3, v2, v1 offset:{K1_CNT}")
        e(f"    v_mov_b32 v4, v{16+k}")
        e(f"    v_mov_b32 v5, v{12+k}")
        e("    s_waitcnt lgkmcnt(0)")
        e(f"    v_cmp_gt_u32 vcc, {NINL}, v3")
        e("    v_lshlrev_b32 v3, 3, v3")
        e("    s_andn2_b64 s[76:77], exec, vcc")
        e("    s_mov_b64 exec, vcc")
        e(f"    ds_write_b64 v3, v[4:5] offset:{K1_OVT}")
        e("    s_mov_b64 exec, s[76:77]")
        e(f"    s_cbranch_execz A_OV{k}")
        e(f"    buffer_store_dwordx2 v[4:5], v3, {R(S_OVF)}, s62 offen {SC}")
        e("    s_waitcnt vmcnt(0)")
        e(f"A_OV{k}:")
    e("    s_branch A_OUT")


def setup():
    srd(S_OVF, 18, 19, 256 * OVF_STRIDE, WS_OVF)
    srd(S_GAT, 4, 5, TABBYTES + 3072, -3072)
    srd(S_STO, 18, 19, TABBYTES, WS_H1)
    e("    s_mov_b32 s20, s14")
    e("    s_mov_b32 s21, s15")
    e(f"    s_mov_b32 s22, {TABBYTES}")
    e(f"    s_add_u32 s24, s18, {WS_H1 - 3072}")
    e("    s_addc_u32 s25, s19, 0")
    e("    v_mov_b32 v99, 0xf0")
    e("    v_mov_b32 v124, 7")
    e(f"    s_mov_b32 s0, {CNTB}")
    e("    s_mov_b32 s1, 0x07060302")
    e("    s_mov_b32 s71, 0")
    zero_b_counters((WL - CNTB) // 4)
    e("    v_and_b32 v2, 63, v0")
    e("    v_bfe_u32 v3, v2, 4, 1")
    e("    v_xor_b32 v3, v3, v10")
    e("    v_lshlrev_b32 v83, 4, v3")
    e("    v_add_u32 v80, 3072, v83")
    e("    v_add_u32 v82, 1024, v83")
    e("    v_xor_b32 v83, 64, v83")
    e("    v_add_u32 v81, 2048, v83")
    e("    v_and_b32 v92, 15, v0")
    e("    v_lshrrev_b32 v11, 4, v2")
    e("    v_bfe_u32 v6, v2, 2, 2")
    e("    v_and_b32 v7, 3, v2")
    e("    v_lshl_add_u32 v84, v11, 3, v6")
    e("    v_lshlrev_b32 v84, 7, v84")
    e("    v_lshl_add_u32 v122, v7, 4, v84")
    e(f"    v_add_u32 v122, {WL}, v122")
    e("    v_lshrrev_b32 v6, 1, v6")
    e("    v_and_b32 v4, 1, v11")
    e("    v_cmp_eq_u32 s[16:17], 1, v4")
    e("    v_lshl_or_b32 v6, v4, 2, v6")
    e("    v_xor_b32 v6, v6, v7")
    e("    v_lshl_add_u32 v84, v6, 4, v84")
    e("    v_and_b32 v4, 1, v7")
    e("    v_lshl_add_u32 v84, v4, 3, v84")
    e("    s_lshl_b32 s76, s3, 12")
    e("    v_add_u32 v84, s76, v84")
    e("    s_mov_b32 m0, s76")
    e("    v_xor_b32 v85, 8, v84")
    e("    v_xor_b32 v86, 64, v84")
    e("    v_xor_b32 v87, 72, v84")
    e(f"    s_mul_i32 s76, s3, {TSTR}")
    e(f"    s_add_u32 s76, s76, {LISTS}")
    e("    v_lshrrev_b32 v4, 3, v2")
    e("    v_lshl_add_u32 v88, v4, 2, s76")
    e("    v_lshl_add_u32 v123, v2, 2, s76")
    e(f"    s_add_u32 s76, s76, {CAPT*4}")
    e("    v_lshl_add_u32 v89, v11, 5, s76")
    e("    v_cmp_lt_u32 vcc, 0, v7")
    e("    v_cmp_lt_u32 s[76:77], 1, v7")
    e("    v_lshrrev_b32 v4, 2, v2")
    e("    v_cndmask_b32 v95, 0, -1, vcc")
    e("    v_cndmask_b32 v96, 0, -1, s[76:77]")
    e("    v_cmp_lt_u32 vcc, 2, v7")
    e(f"    v_mul_u32_u24 v98, {TSTR}, v4")
    e(f"    v_add_u32 v98, {LISTS}, v98")
    e("    v_cndmask_b32 v97, 0, -1, vcc")
    e("    v_lshlrev_b32 v90, 4, v2")
    e(f"    v_add_u32 v90, {CNTB}, v90")
    for i in range(16):
        e(f"    v_mov_b32 v{64+i}, 0")
    e("    s_lshl_b32 s76, s2, 4")
    e("    s_add_u32 s76, s76, s3")
    e("    s_mul_i32 s77, s76, 50006")
    e("    s_lshr_b32 s77, s77, 12")
    e("    v_subrev_u32 v2, s77, v92")
    e("    v_and_b32 v2, 15, v2")
    e("    v_add_u32 v2, s77, v2")
    e(f"    v_mul_u32_u24 v3, {TM}, v2")
    e("    v_lshrrev_b32 v3, 16, v3")
    e("    v_cmp_eq_u32 s[14:15], s76, v3")
    e("    v_lshlrev_b32 v2, 7, v2")
    e("    v_lshl_add_u32 v121, v11, 4, v2")
    e("    v_lshlrev_b32 v9, 4, v0")
    e("    v_lshlrev_b32 v31, 3, v0")
    e("    s_mov_b64 s[12:13], 0")
    e("    s_cmp_lt_u32 s3, 12")
    e("    s_cbranch_scc1 S_DONE")
    e("    s_waitcnt vmcnt(2)")
    e("    v_cmp_eq_u32 vcc, v112, v115")
    e("    v_lshl_or_b32 v113, v114, 16, v113")
    e("    s_and_b64 s[12:13], s[66:67], vcc")
    decode_key(113, 0, 0, 6)
    decode_data(113, 0, 0, 6)
    e("    s_cmp_eq_u32 s3, 12")
    e("    s_cbranch_scc1 S_DONE")
    e(f"    v_subrev_u32 v2, {13*64}, v0")
    e("    v_lshlrev_b32 v2, 4, v2")
    e(f"    v_cmp_gt_u32 vcc, 2048, v2")
    e(f"    v_add_u32 v2, {WL}, v2")
    e("    ds_write_b128 v2, v[100:103]")
    e("    ds_write_b128 v2, v[104:107] offset:3072")
    e("    s_and_saveexec_b64 s[76:77], vcc")
    e("    ds_write_b128 v2, v[108:111] offset:6144")
    e("    s_mov_b64 exec, -1")
    e("S_DONE:")


COMMON = [0, 1, 3, 4]
RARE = [2, 5, 6, 7]


def body():
    e(f".globl {NAME}")
    e(".p2align 8")
    e(f".type {NAME},@function")
    e(f"{NAME}:")
    phase_a()
    setup()
    e("    s_waitcnt vmcnt(0) lgkmcnt(0)")
    stamp("g1_ack")
    e("    s_barrier")
    stamp("g1_exit")

    e("COLLECT:")
    e("    s_lshl_b32 s68, s2, 15")
    e("    s_add_u32 s69, s68, 16384")
    e(f"    s_mov_b32 s70, {WS_OVT}")
    e(f"    s_mov_b32 s74, {WS_OVT + 8192}")
    e(f"    buffer_load_dwordx4 v[12:15], v9, {R(S_WS)}, s68 offen {SC}")
    e(f"    buffer_load_dwordx4 v[16:19], v9, {R(S_WS)}, s69 offen {SC}")
    e(f"    buffer_load_dwordx2 v[116:117], v31, {R(S_WS)}, s70 offen {SC}")
    e(f"    buffer_load_dwordx2 v[118:119], v31, {R(S_WS)}, s74 offen {SC}")
    e(f"    s_mov_b64 {PEND(6)}, s[12:13]")
    e(f"    s_mov_b64 {PEND(7)}, 0")
    e(f"    s_mov_b32 s75, {SPINMAX}")
    e("    s_movk_i32 s11, 0xffff")
    e(f"    s_mov_b64 exec, {PEND(6)}")
    e("    s_cbranch_execz C_NT")
    e("    ds_add_rtn_u32 v38, v46, v1")
    e("C_NT:")
    e("    s_mov_b64 exec, -1")
    for i in range(2):
        base = 12 + 4 * i
        e(f"    s_waitcnt vmcnt({3-i})")
        e(f"C_CHK{i}:")
        e(f"    v_cmp_ne_u32_sdwa vcc, v{base+3}, v127 src0_sel:BYTE_3 src1_sel:DWORD")
        e(f"    s_cbranch_vccnz C_RETRY{i}")
        e(f"C_OK{i}:")
        stamp("b_lines" if i == 0 else "b_lines1")
        for k in range(3):
            e(f"    v_cmp_ne_u16 {PEND(3*i+k)}, s11, v{base+k}")
        for k in range(2):
            decode_key(base + k, base + 3, k, 3 * i + k)
        for k in range(2):
            s = 3 * i + k
            e(f"    s_mov_b64 exec, {PEND(s)}")
            e(f"    ds_add_rtn_u32 v{32+s}, v{40+s}, v1")
        s = 3 * i + 2
        e(f"    s_mov_b64 exec, {PEND(s)}")
        e(f"    s_cbranch_execz C_N2{i}")
        decode_key(base + 2, base + 3, 2, s)
        e(f"    ds_add_rtn_u32 v{32+s}, v{40+s}, v1")
        decode_data(base + 2, base + 3, 2, s)
        e(f"C_N2{i}:")
        e("    s_mov_b64 exec, -1")
        for k in range(2):
            decode_data(base + k, base + 3, k, 3 * i + k)
    e("    s_waitcnt vmcnt(0)")
    e("C_CHK2:")
    e("    v_cmp_ne_u32_sdwa vcc, v117, v120 src0_sel:WORD_1 src1_sel:DWORD")
    e("    v_cmp_ne_u32_sdwa s[76:77], v119, v120 src0_sel:WORD_1 src1_sel:DWORD")
    e("    s_or_b64 vcc, vcc, s[76:77]")
    e("    s_cbranch_scc1 C_RETRY2")
    e("C_OK2:")
    e("    v_and_b32 v117, 0xffff, v117")
    e("    v_and_b32 v119, 0xffff, v119")
    e(f"    v_mul_u32_u24 v2, {TM}, v117")
    e(f"    v_mul_u32_u24 v3, {TM}, v119")
    e("    v_cmp_eq_u32 s[74:75], 7, v10")
    e(f"    v_cmp_lt_u32 s[72:73], {NINL}, v116")
    e(f"    v_cmp_lt_u32 vcc, {NINL}, v118")
    e("    v_lshrrev_b32 v2, 20, v2")
    e("    v_lshrrev_b32 v3, 20, v3")
    e("    v_cmp_eq_u32 s[4:5], s2, v2")
    e("    v_cmp_eq_u32 s[6:7], s2, v3")
    e("    s_and_b64 s[72:73], s[72:73], s[74:75]")
    e("    s_and_b64 vcc, vcc, s[74:75]")
    e("    s_lshr_b64 s[72:73], s[72:73], 1")
    e("    s_or_b64 s[72:73], s[72:73], vcc")
    e("    s_mov_b64 s[68:69], 0")
    e("    s_or_b64 s[76:77], s[4:5], s[6:7]")
    e("    s_or_b64 s[76:77], s[76:77], s[72:73]")
    e("    s_cbranch_scc1 EXTRA")
    e("CDONE:")
    e("    s_lshl_b32 s75, s3, 2")
    e("    s_add_u32 s75, s75, 3")
    e("    s_waitcnt lgkmcnt(0)")
    e("    s_barrier")
    stamp2("b_bar1", "")
    e("    ds_read_b128 v[4:7], v90")
    prefetch_common(PF4)
    if I("pfx", 1):
        own_rows(S_GAT, "offset:3072")
    e("    s_waitcnt lgkmcnt(0)")
    e("    v_add_u32 v5, v4, v5")
    e("    v_add_u32 v6, v5, v6")
    e("    v_add_u32 v7, v6, v7")
    e("    s_nop 1")
    e("    v_and_b32_dpp v28, v7, v95 quad_perm:[0,0,0,0] row_mask:0xf bank_mask:0xf")
    e("    v_and_b32_dpp v29, v7, v96 quad_perm:[1,1,1,1] row_mask:0xf bank_mask:0xf")
    e("    v_and_b32_dpp v30, v7, v97 quad_perm:[2,2,2,2] row_mask:0xf bank_mask:0xf")
    e("    v_add3_u32 v28, v28, v29, v30")
    e("    v_add_u32 v7, v28, v7")
    e("    v_lshl_add_u32 v28, v28, 2, v98")
    e(f"    v_cmp_lt_u32 vcc, {CAPT}, v7")
    e("    v_lshl_add_u32 v29, v4, 2, v28")
    e("    v_lshl_add_u32 v30, v5, 2, v28")
    e("    v_lshl_add_u32 v31, v6, 2, v28")
    e("    v_readlane_b32 s74, v7, s75")
    e("    ds_write_b128 v90, v[28:31] offset:1024")
    for s in RARE:
        e(f"    s_mov_b64 exec, {PEND(s)}")
        e(f"    s_cbranch_execz P_R{s}")
        e(f"    ds_read_b32 v{20+s}, v{40+s} offset:1024")
        e(f"P_R{s}:")
    for s in COMMON:
        e(f"    s_mov_b64 exec, {PEND(s)}")
        e(f"    ds_read_b32 v{20+s}, v{40+s} offset:1024")
    e(f"    s_min_u32 s74, s74, {CAPT}")
    e("    s_cbranch_vccnz SLOWW")
    for s in COMMON:
        e(f"    s_mov_b64 exec, {PEND(s)}")
        e("    s_waitcnt lgkmcnt(3)")
        e(f"    v_lshl_add_u32 v{20+s}, v{32+s}, 2, v{20+s}")
        e(f"    ds_write2st64_b32 v{20+s}, v{48+s}, v{56+s} offset0:0 offset1:5")
        e(f"    s_mov_b64 {PEND(s)}, 0")
    for s in RARE:
        e(f"    s_mov_b64 exec, {PEND(s)}")
        e(f"    s_cbranch_execz P_W{s}")
        e(f"    v_lshl_add_u32 v{20+s}, v{32+s}, 2, v{20+s}")
        e(f"    ds_write2st64_b32 v{20+s}, v{48+s}, v{56+s} offset0:0 offset1:5")
        e(f"    s_mov_b64 {PEND(s)}, 0")
        e(f"P_W{s}:")
    e("WDONE:")
    e("    s_sub_u32 s76, 0, s74")
    e("    s_and_b32 s76, s76, 31")
    e("    s_bfm_b64 exec, s76, 0")
    e("    s_lshl_b32 s77, s74, 2")
    e("    v_add_u32 v2, s77, v123")
    e(f"    v_mov_b32 v3, {PADV}")
    e("    ds_write2st64_b32 v2, v3, v3 offset0:0 offset1:5")
    e("    s_mov_b64 exec, -1")
    e(f"    v_mov_b32 v4, {MORE}")
    e("    s_waitcnt lgkmcnt(0)")
    e("    s_barrier")
    stamp2("b_bar2", "")
    e("    ds_read_b32 v8, v4")

    def next_k():
        e("    s_mov_b32 s8, 1")
        e("    s_cmp_gt_i32 s9, s10")
        e("    s_addc_u32 s8, s8, 0")
        e("    s_lshl_b32 s11, s10, 1")
        e("    s_cmp_gt_i32 s9, s11")
        e("    s_addc_u32 s8, s8, 0")
        e("    s_add_i32 s11, s11, s10")
        e("    s_cmp_gt_i32 s9, s11")
        e("    s_addc_u32 s8, s8, 0")
        e("    s_min_i32 s8, s8, s9")
        e("    s_sub_i32 s9, s9, s8")
        e("    s_sub_i32 s10, s10, 1")
        e("    s_lshl_b32 s11, s8, 5")

    def read_recs(a, b, adv):
        e(f"    ds_read2_b32 v[100:101], v{a} offset0:0 offset1:8")
        e(f"    ds_read2_b32 v[102:103], v{a} offset0:16 offset1:24")
        e(f"    ds_read_b128 v[104:107], v{b}")
        e(f"    ds_read_b128 v[108:111], v{b} offset:16")
        e(f"    v_add_u32 v93, {adv}, v{a}")
        e(f"    v_add_u32 v94, {adv}, v{b}")

    def dma(i):
        e(f"    buffer_load_dwordx4 v{100+i}, {R(S_GAT)}, 0 offen offset:{1024*i} lds")

    def addr():
        for i in range(4):
            e(f"    v_add_u32 v{100+i}, v{100+i}, v{80+i}")

    def build_b(w):
        for j in range(8):
            e(f"    v_bfe_i32 v{32+j}, v{104+j}, v92, {w}")
        for j in range(8):
            e(f"    v_and_b32 v{32+j}, v{32+j}, v{104+j}")
        for j in range(4):
            e(f"    v_perm_b32 v{112+j}, v{32+2*j+1}, v{32+2*j}, s1")

    def mfmas():
        for t in range(4):
            e(f"    v_mfma_f32_16x16x32_bf16 v[{64+4*t}:{67+4*t}], v[{12+4*t}:{15+4*t}], v[112:115], v[{64+4*t}:{67+4*t}]")

    e("MAIN:")
    e("    s_cmp_eq_u32 s74, 0")
    e("    s_cbranch_scc1 MAINDONE")
    read_recs(88, 89, 128)
    if PRIO == 1:
        for g in range(1, 4):
            e(f"    s_cmp_lt_u32 s3, {4*g}")
            e("    s_cbranch_scc1 PRIOD")
            e(f"    s_setprio {g}")
        e("PRIOD:")
    e("    s_add_u32 s9, s74, 7")
    e("    s_lshr_b32 s9, s9, 3")
    e("    s_sub_i32 s9, s9, 4")
    e("    s_max_i32 s9, s9, 0")
    e(f"    s_mov_b32 s10, {NB-1}")
    e("    s_waitcnt lgkmcnt(2)")
    addr()
    for i in range(4):
        dma(i)
    next_k()
    e("    s_waitcnt lgkmcnt(0)")
    build_b("1")
    read_recs(93, 94, "s11")
    e("LOOP:")
    e("    v_cmp_gt_u32 vcc, s8, v11")
    e("    s_waitcnt vmcnt(0)")
    for t in range(4):
        for u in range(2):
            e(f"    ds_read_b64_tr_b16 v[{12+4*t+2*u}:{13+4*t+2*u}], v{84+t} offset:{512*u}")
    e("    s_cmp_eq_u32 s8, 0")
    e("    v_cndmask_b32 v91, 0, v1, vcc")
    e("    s_waitcnt lgkmcnt(8)")
    addr()
    e("    s_waitcnt lgkmcnt(0)")
    e("    s_cbranch_scc1 LAST")
    dma(0)
    e("    s_cmp_eq_u32 s8, 1")
    e("    s_cbranch_scc1 DMAD")
    dma(1)
    e("    s_cmp_eq_u32 s8, 2")
    e("    s_cbranch_scc1 DMAD")
    dma(2)
    e("    s_cmp_eq_u32 s8, 3")
    e("    s_cbranch_scc1 DMAD")
    dma(3)
    e("DMAD:")
    mfmas()
    next_k()
    build_b("v91")
    read_recs(93, 94, "s11")
    e("    s_branch LOOP")
    e("LAST:")
    mfmas()
    e("MAINDONE:")
    e("    s_waitcnt lgkmcnt(0)")
    e("    v_readfirstlane_b32 s75, v8")
    e("    s_cmp_lg_u32 s75, 0")
    e("    s_cbranch_scc1 AGAIN")

    if PRIO:
        e("    s_setprio 0")
    stamp2("h1_done", "h2_done")
    WREG = [40, 44, 48, 52, 56, 60, 28, 116]

    def w_frags():
        for s_ in range(2):
            for t in range(4):
                for u in range(2):
                    off = (32 * s_ + 4 * u) * 128 + 64 * (t >> 1) + 8 * (t & 1)
                    r = WREG[s_ * 4 + t] + 2 * u
                    e(f"    ds_read_b64_tr_b16 v[{r}:{r+1}], v122 offset:{off}")

    e("    s_nop 1")
    for t in range(4):
        e(f"    v_cvt_pk_bf16_f32 v{12+2*t}, v{64+4*t}, v{65+4*t}")
        e(f"    v_cvt_pk_bf16_f32 v{13+2*t}, v{66+4*t}, v{67+4*t}")
    e("    s_mov_b64 exec, s[16:17]")
    e("    v_swap_b32 v12, v14")
    e("    v_swap_b32 v13, v15")
    e("    v_swap_b32 v16, v18")
    e("    v_swap_b32 v17, v19")
    e("    s_bitcmp1_b32 s71, 0")
    e("    s_cbranch_scc1 FINAL")
    e("    s_mov_b64 exec, s[14:15]")
    e(f"    buffer_store_dwordx4 v[12:15], v121, {R(S_STO)}, 0 offen {SC}")
    e(f"    buffer_store_dwordx4 v[16:19], v121, {R(S_STO)}, 0 offen offset:64 {SC}")
    e("    s_mov_b64 exec, -1")
    stamp("h1_st")
    e(f"    s_mov_b32 s{S_GAT}, s{S_GH}")
    e(f"    s_mov_b32 s{S_GAT+1}, s{S_GH+1}")
    e("    s_or_b32 s71, s71, 1")
    for i in range(16):
        e(f"    v_mov_b32 v{64+i}, 0")
    e("    s_bitcmp1_b32 s71, 1")
    e("    s_cbranch_scc1 E_IRR")
    w_frags()
    e("E_BAR:")
    barrier_addrs()
    grid_barrier("g2")
    e("    v_mov_b32 v8, 0")
    e("    s_bitcmp0_b32 s71, 1")
    e("    s_cbranch_scc1 MAIN")
    e("    s_branch COLLECT")
    e("FINAL:")
    e("    s_mov_b64 exec, -1")
    e("    s_bitcmp1_b32 s71, 1")
    e("    s_cbranch_scc1 F_GETW")
    e("F_HAVEW:")
    for t in range(4):
        w = WREG[t]
        e(f"    v_mfma_f32_16x16x32_bf16 v[{64+4*t}:{67+4*t}], v[{w}:{w+3}], v[12:15], 0")
    for t in range(4):
        w = WREG[4 + t]
        e(f"    v_mfma_f32_16x16x32_bf16 v[{64+4*t}:{67+4*t}], v[{w}:{w+3}], v[16:19], v[{64+4*t}:{67+4*t}]")
    e("    s_nop 4")
    for t in range(4):
        if t:
            e("    s_nop 1")
        e(f"    v_cvt_pk_bf16_f32 v{12+2*t}, v{64+4*t}, v{65+4*t}")
        e(f"    v_cvt_pk_bf16_f32 v{13+2*t}, v{66+4*t}, v{67+4*t}")
    e("    s_mov_b64 exec, s[14:15]")
    e(f"    buffer_store_dwordx4 v[12:15], v121, {R(S_OUT)}, 0 offen {ST_OUT}")
    e(f"    buffer_store_dwordx4 v[16:19], v121, {R(S_OUT)}, 0 offen offset:64 {ST_OUT}")
    stamp_out()
    e("END:")
    e("    s_endpgm")

    for i in range(2):
        base = 12 + 4 * i
        e(f"C_RETRY{i}:")
        e(f"    buffer_load_dwordx4 v[{base}:{base+3}], v9, {R(S_WS)}, s{68+i} offen {SC}")
        e("    s_sub_u32 s75, s75, 1")
        e("    s_cmp_eq_u32 s75, 0")
        e("    s_waitcnt vmcnt(0)")
        e(f"    s_cbranch_scc0 C_CHK{i}")
        e("    s_mov_b32 s75, 1000")
        e(f"    s_branch C_OK{i}")
    e("C_RETRY2:")
    e(f"    buffer_load_dwordx2 v[116:117], v31, {R(S_WS)}, s70 offen {SC}")
    e(f"    buffer_load_dwordx2 v[118:119], v31, {R(S_WS)}, s74 offen {SC}")
    e("    s_sub_u32 s75, s75, 1")
    e("    s_cmp_eq_u32 s75, 0")
    e("    s_waitcnt vmcnt(0)")
    e("    s_cbranch_scc0 C_CHK2")
    e("    s_branch C_OK2")
    a_overflow()
    e("AGAIN:")
    e("    s_or_b32 s71, s71, 2")
    e("    s_barrier")
    zero_b_counters((WL - CNTB) // 4)
    e("    s_waitcnt lgkmcnt(0)")
    e("    s_barrier")
    for s in range(7):
        e(f"    s_mov_b64 exec, {PEND(s)}")
        e(f"    ds_add_rtn_u32 v{32+s}, v{40+s}, v1")
    e("EXTRA:")
    for m, r in (("s[4:5]", 116), ("s[6:7]", 118)):
        e(f"    s_andn2_b64 exec, {m}, {PEND(7)}")
        e(f"    s_andn2_b64 {m}, {m}, exec")
        e(f"    s_or_b64 {PEND(7)}, {PEND(7)}, exec")
        decode_full(r, r + 1, 7)
    e("    s_mov_b64 exec, -1")
    e("    s_or_b64 s[76:77], s[4:5], s[6:7]")
    e("    s_cbranch_scc1 OVFULL")
    e("    s_mov_b32 s75, 0")
    e("OVL:")
    e("    s_cmp_lt_u32 s68, s69")
    e("    s_cbranch_scc1 OVLOAD")
    e("    s_cmp_eq_u64 s[72:73], 0")
    e("    s_cbranch_scc1 OVDONE")
    e("    s_ff1_i32_b64 s76, s[72:73]")
    e("    s_bitset0_b64 s[72:73], s76")
    e("    s_or_b32 s77, s76, 7")
    e("    v_readlane_b32 s68, v116, s77")
    e("    v_readlane_b32 s69, v118, s77")
    e("    s_bitcmp1_b32 s76, 0")
    e("    s_cselect_b32 s69, s69, s68")
    e(f"    s_min_u32 s69, s69, {CHMAX}")
    e("    s_and_b32 s77, s76, 1")
    e("    s_lshl_b32 s77, s77, 7")
    e("    s_lshr_b32 s76, s76, 3")
    e("    s_add_u32 s76, s76, s77")
    e("    s_lshl_b32 s77, s3, 3")
    e("    s_add_u32 s76, s76, s77")
    e("    s_lshl_b32 s70, s76, 15")
    e(f"    s_mov_b32 s68, {NINL}")
    e("OVLOAD:")
    e("    v_add_u32 v4, s75, v0")
    e("    v_and_b32 v4, 63, v4")
    e("    v_add_u32 v4, s68, v4")
    e("    v_lshlrev_b32 v5, 3, v4")
    e(f"    buffer_load_dwordx2 v[28:29], v5, {R(S_OVF)}, s70 offen {SC}")
    e("    s_waitcnt vmcnt(0)")
    e(f"    v_mul_u32_u24 v30, {TM}, v29")
    e("    v_lshrrev_b32 v31, 20, v30")
    e("    v_cmp_gt_u32 vcc, s69, v4")
    e("    v_cmp_eq_u32 s[76:77], s2, v31")
    e("    s_and_b64 vcc, s[76:77], vcc")
    e(f"    s_and_b64 s[76:77], vcc, {PEND(7)}")
    e("    s_cbranch_scc1 OVFULL")
    e(f"    s_or_b64 {PEND(7)}, {PEND(7)}, vcc")
    e("    s_add_u32 s68, s68, 64")
    e("    s_add_u32 s75, s75, 16")
    e("    s_mov_b64 exec, vcc")
    decode_full(28, 29, 7)
    e("    s_mov_b64 exec, -1")
    e("    s_branch OVL")
    e("OVFULL:")
    e(f"    v_mov_b32 v2, {MORE}")
    e("    ds_write_b32 v2, v1")
    e("OVDONE:")
    e(f"    s_mov_b64 exec, {PEND(7)}")
    e("    ds_add_rtn_u32 v39, v47, v1")
    e("    s_mov_b64 exec, -1")
    e("    s_branch CDONE")
    e("SLOWW:")
    e("    s_waitcnt lgkmcnt(0)")
    for s in range(8):
        e(f"    s_mov_b64 exec, {PEND(s)}")
        e(f"    v_lshl_add_u32 v{20+s}, v{32+s}, 2, v{20+s}")
        e(f"    v_subrev_u32 v3, s0, v{40+s}")
        e("    v_lshrrev_b32 v3, 6, v3")
        e(f"    v_mul_u32_u24 v3, {TSTR}, v3")
        e(f"    v_add_u32 v3, {LISTS + CAPT*4}, v3")
        e(f"    v_cmp_lt_u32 vcc, v{20+s}, v3")
        e(f"    s_andn2_b64 {PEND(s)}, exec, vcc")
        e("    s_mov_b64 exec, vcc")
        e(f"    ds_write2st64_b32 v{20+s}, v{48+s}, v{56+s} offset0:0 offset1:5")
    e("    s_mov_b64 exec, -1")
    e(f"    v_mov_b32 v3, {MORE}")
    e("    ds_write_b32 v3, v1")
    e("    s_branch WDONE")
    e("E_IRR:")
    zero_b_counters(256)
    e("    v_lshlrev_b32 v9, 4, v0")
    e("    v_lshlrev_b32 v31, 3, v0")
    e("    s_waitcnt lgkmcnt(0)")
    e("    s_branch E_BAR")
    e("F_GETW:")
    w_frags()
    e("    s_waitcnt lgkmcnt(0)")
    e("    s_branch F_HAVEW")
    e("CODE_END:")


def spin_kernel():
    na, nb_, mode, mult, wlo, whi = (SPIN.split(",") + ["0", "15"])[:6]
    wlo, whi = int(wlo), int(whi)
    ia, ib, mode, mult = STL.index(na), STL.index(nb_), int(mode), int(mult)
    init = "0x80000000" if mode == 0 else "0x7fffffff" if mode == 1 else "0"
    e(".globl sgc_spin_kernel")
    e(".p2align 8")
    e(".type sgc_spin_kernel,@function")
    e("sgc_spin_kernel:")
    e("    s_memrealtime s[30:31]")
    e("    s_cmp_ge_u32 s2, 1")
    e("    s_cbranch_scc1 SP_END")
    e("    s_load_dwordx8 s[12:19], s[0:1], 32")
    e("    v_lshlrev_b32 v1, 6, v0")
    e("    v_mov_b32 v4, 0x7fffffff")
    e(f"    v_mov_b32 v5, {init}")
    e("    s_mov_b32 s23, 0x20000")
    e("    s_waitcnt lgkmcnt(0)")
    srd(20, 18, 19, 1 << 20, WS_STAMP)
    e("    s_mov_b32 s24, 0")
    e("SP_RD:")
    e(f"    buffer_load_dword v2, v1, s[20:23], s24 offen offset:{4*ia}")
    e(f"    buffer_load_dword v3, v1, s[20:23], s24 offen offset:{4*ib}")
    e("    s_add_u32 s24, s24, 4096")
    e("    s_cmp_lt_u32 s24, 0x40000")
    e("    s_waitcnt vmcnt(0)")
    e("    v_subrev_u32 v2, s30, v2")
    e("    v_subrev_u32 v3, s30, v3")
    e("    v_min_i32 v4, v4, v2")
    e("    %s v5, v5, v3" % ("v_max_i32" if mode == 0 else "v_min_i32" if mode == 1 else "v_add_u32"))
    e("    s_cbranch_scc1 SP_RD")
    e("    s_mov_b32 s26, 0x7fffffff")
    e(f"    s_mov_b32 s27, {init}")
    e("    s_nop 1")
    for l in range(64):
        e(f"    v_readlane_b32 s28, v4, {l}")
        e(f"    v_readlane_b32 s29, v5, {l}")
        e("    s_min_i32 s26, s26, s28")
        if wlo <= (l & 15) <= whi:
            e("    %s s27, s27, s29" % ("s_max_i32" if mode == 0 else "s_min_i32" if mode == 1 else "s_add_u32"))
    if mode == 2:
        e("    s_ashr_i32 s27, s27, %d" % (8 + (whi - wlo + 1).bit_length() - 1))
    e("    s_sub_i32 s26, s27, s26")
    e("    s_max_i32 s26, s26, 0")
    e("    s_min_i32 s26, s26, 20000")
    e(f"    s_mul_i32 s26, s26, {mult}")
    e("    s_add_u32 s26, s26, 10000")
    e("SP_LOOP:")
    e("    s_memrealtime s[28:29]")
    e("    s_waitcnt lgkmcnt(0)")
    e("    s_sub_u32 s28, s28, s30")
    e("    s_cmp_lt_u32 s28, s26")
    e("    s_cbranch_scc1 SP_LOOP")
    e("SP_END:")
    e("    s_endpgm")


def desc(name, vg, sg):
    e(".p2align 6")
    e(f".amdhsa_kernel {name}")
    e(f"  .amdhsa_next_free_vgpr {vg}")
    e(f"  .amdhsa_next_free_sgpr {sg}")
    e(f"  .amdhsa_accum_offset {vg}")
    e("  .amdhsa_group_segment_fixed_size 0")
    e("  .amdhsa_kernarg_size 64")
    e("  .amdhsa_user_sgpr_count 2")
    e("  .amdhsa_user_sgpr_kernarg_segment_ptr 1")
    e("  .amdhsa_system_sgpr_workgroup_id_x 1")
    e(".end_amdhsa_kernel")


SPIN = OPT.get("spin")
if SPIN:
    e(f"; @launch kernel={NAME} grid=(256,1,1) block=(1024,1,1) lds={LDS}")
    e("; @launch kernel=sgc_spin_kernel grid=(1,1,1) block=(64,1,1) lds=0")
else:
    e(f"; @launch grid=(256,1,1) block=(1024,1,1) lds={LDS}")
e('.amdgcn_target "amdgcn-amd-amdhsa--gfx950"')
e(".text")
body()
if SPIN:
    spin_kernel()
e('.section .rodata,"a"')
if SPIN:
    desc("sgc_spin_kernel", 8, 40)
desc(NAME, 128, 102 if DIAG else 78)
open(OUT, "w").write("\n".join(L) + "\n")
```

```python
import sys

OUT = [a for a in sys.argv[1:] if not a.startswith("--")][0]
OPT = dict(a[2:].split("=") for a in sys.argv[1:] if a.startswith("--") and "=" in a)
NAME = "standalone__spectral_conv_sgc__graph_kernel"
DEFST = "start,a_bar1,a_bar2,g1_exit,b_lines,b_bar1,b_bar2,h1_done,g2_ack,g2_exit,h2_done,end"
STL = OPT.get("st", DEFST if "--diag" in sys.argv else "").split(",")
STL = [s for s in STL if s]
DIAG = len(STL) > 0


def I(name, dflt):
    return int(OPT.get(name, dflt))


N = 50000
E = 850000
ET = 800000
TM = 5368
CHMAX = 13 * 256
SLOTCAP = 24
NINL = 7
WS_OVT = 8 << 20
WS_FLAG = WS_OVT + 131072
WS_H1 = WS_OVT + (1 << 20)
WS_OVF = 16 << 20
OVF_STRIDE = 32768
WS_STAMP = 32 << 20
TABBYTES = N * 128
PADV = 0x40000000

K1_LS = 132
K1_CNT = 256 * K1_LS
K1_OVC = 1024
K1_OVT = K1_CNT + 4096
K1_NON = K1_OVT + 64
LISTS = 65536
CAPT = 320
TSTR = CAPT * 8
CNTB = LISTS + 16 * TSTR + 256
BASES = CNTB + 1024
MORE = BASES + 1024
WL = MORE + 64
LDS = WL + 8192

SC = "sc1"
ST_OUT = OPT.get("stout", "nt")
SPINMAX = I("spinmax", 20000000)
NREP = 8
LSTR = 128
NB = I("nb", 8)
TSH = I("tsh", 20)
PFS = I("pfstep", 80)
PF4 = I("pf4", 0)
PRIO = I("prio", 1)
GATE = I("gate", 2)

L = []


def e(s=""):
    L.append(s)


def srd(d, lo, hi, nbytes, off=0):
    if off == 0:
        e(f"    s_mov_b32 s{d}, s{lo}")
        e(f"    s_mov_b32 s{d+1}, s{hi}")
    elif off > 0:
        e(f"    s_add_u32 s{d}, s{lo}, {off}")
        e(f"    s_addc_u32 s{d+1}, s{hi}, 0")
    else:
        e(f"    s_sub_u32 s{d}, s{lo}, {-off}")
        e(f"    s_subb_u32 s{d+1}, s{hi}, 0")
    e(f"    s_mov_b32 s{d+2}, {nbytes}")
    e(f"    s_mov_b32 s{d+3}, s23")


S_SRC, S_DST, S_NRM, S_WS, S_OVF, S_GAT, S_STO, S_DBG = 20, 24, 28, 32, 36, 40, 44, 48
S_OUT, S_GH = S_SRC, S_DST


def R(d):
    return f"s[{d}:{d+3}]"


STAMP_BASE = 78


def stamp(name):
    if "c_" + name in STL:
        i = STL.index("c_" + name)
        e(f"    s_memtime s[{STAMP_BASE+2*i}:{STAMP_BASE+2*i+1}]")
    if name in STL:
        i = STL.index(name)
        e(f"    s_memrealtime s[{STAMP_BASE+2*i}:{STAMP_BASE+2*i+1}]")


def stamp2(n1, n2):
    if n1 in STL or n2 in STL:
        n = len(L)
        e("    s_bitcmp1_b32 s71, 0")
        e(f"    s_cbranch_scc1 ST{n}_B")
        stamp(n1)
        e(f"    s_branch ST{n}_C")
        e(f"ST{n}_B:")
        stamp(n2)
        e(f"ST{n}_C:")


def stamp_out():
    if not DIAG:
        return
    e("    s_waitcnt vmcnt(0) lgkmcnt(0)")
    stamp("end")
    e("    s_waitcnt lgkmcnt(0)")
    e("    s_mov_b64 exec, 1")
    srd(28, 18, 19, 1 << 20, WS_STAMP)
    e("    s_lshl_b32 s76, s2, 4")
    e("    s_add_u32 s76, s76, s3")
    e("    s_lshl_b32 s76, s76, 6")
    e("    v_mov_b32 v2, s76")
    for i in range(len(STL)):
        e(f"    v_mov_b32 v3, s{STAMP_BASE+2*i}")
        e(f"    buffer_store_dword v3, v2, s[28:31], 0 offen offset:{4*i}")
    e("    s_getreg_b32 s76, hwreg(HW_REG_XCC_ID)")
    e("    v_mov_b32 v3, s76")
    e("    buffer_store_dword v3, v2, s[28:31], 0 offen offset:56")
    e("    s_lshl_b32 s76, s48, 16")
    e("    s_or_b32 s76, s76, s74")
    e("    v_mov_b32 v3, s76")
    e("    buffer_store_dword v3, v2, s[28:31], 0 offen offset:60")
    e("    v_mov_b32 v3, s50")
    e("    buffer_store_dword v3, v2, s[28:31], 0 offen offset:48")
    e("    v_mov_b32 v3, s51")
    e("    buffer_store_dword v3, v2, s[28:31], 0 offen offset:52")


def PEND(s):
    return f"s[{52+2*s}:{53+2*s}]"


def prefetch_common(cnt):
    if cnt == 0:
        return
    e("    s_lshr_b32 s76, s2, 3")
    e("    s_lshl_b32 s76, s76, 4")
    e("    s_add_u32 s76, s76, s3")
    e(f"    s_mul_i32 s76, s76, {cnt}")
    e("    v_and_b32 v2, 63, v0")
    e("    v_add_u32 v2, s76, v2")
    e("    v_lshrrev_b32 v3, 5, v2")
    e("    v_and_b32 v2, 31, v2")
    e(f"    v_mul_u32_u24 v3, {PFS}, v3")
    e("    v_add_lshl_u32 v2, v2, v3, 7")
    e(f"    s_mov_b32 exec_lo, {((1 << cnt) - 1) & 0xffffffff}")
    e(f"    s_mov_b32 exec_hi, {((1 << cnt) - 1) >> 32}")
    e(f"    buffer_load_dword v126, v2, {R(S_GAT)}, 0 offen offset:3072")
    e("    s_mov_b64 exec, -1")


def own_rows(srdn, flags):
    e("    s_and_b64 exec, s[14:15], 0xffff")
    e(f"    buffer_load_dword v126, v121, {R(srdn)}, 0 offen {flags}")
    e("    s_mov_b64 exec, -1")


def grid_barrier(p):
    rstr = 64 * LSTR
    e("    s_waitcnt vmcnt(0)")
    stamp(p + "_ack")
    e("    s_barrier")
    e("    s_cmp_lg_u32 s3, 0")
    e(f"    s_cbranch_scc1 {p}_OTH")
    stamp(p + "_arr")
    e(f"    s_mov_b64 exec, {(1 << NREP) - 1}")
    e(f"    buffer_store_dword v125, v2, {R(S_WS)}, s76 offen sc1")
    own_rows(S_STO, "sc1")
    e(f"    s_mov_b32 s76, {SPINMAX}")
    e(f"{p}_POLL:")
    e(f"    buffer_load_dwordx4 v[4:7], v8, {R(S_WS)}, s77 offen sc1")
    e("    s_sub_u32 s76, s76, 1")
    e("    s_cmp_eq_u32 s76, 0")
    e("    s_waitcnt vmcnt(0)")
    e(f"    s_cbranch_scc1 {p}_WAIT")
    e("    v_xor_b32 v4, v4, v125")
    e("    v_xor_b32 v5, v5, v125")
    e("    v_xor_b32 v6, v6, v125")
    e("    v_xor_b32 v7, v7, v125")
    e("    v_or3_b32 v4, v4, v5, v6")
    e("    v_or_b32 v4, v4, v7")
    e("    v_cmp_ne_u32 vcc, 0, v4")
    e(f"    s_cbranch_vccnz {p}_POLL")
    e(f"    s_branch {p}_WAIT")
    e(f"{p}_OTH:")
    own_rows(S_STO, "sc1")
    e(f"{p}_WAIT:")
    e("    s_barrier")
    stamp(p + "_exit")


def barrier_addrs():
    rstr = 64 * LSTR
    e("    s_lshr_b32 s76, s2, 2")
    e(f"    s_mul_i32 s76, s76, {LSTR}")
    e("    s_and_b32 s77, s2, 3")
    e("    s_lshl_b32 s77, s77, 2")
    e("    s_add_u32 s76, s76, s77")
    e(f"    s_add_u32 s76, s76, {WS_FLAG}")
    e(f"    v_mul_u32_u24 v2, {rstr}, v0")
    e("    s_getreg_b32 s77, hwreg(HW_REG_XCC_ID, 0, 4)")
    e(f"    s_and_b32 s77, s77, {NREP-1}")
    e(f"    s_mul_i32 s77, s77, {rstr}")
    e(f"    s_add_u32 s77, s77, {WS_FLAG}")
    e(f"    v_mul_u32_u24 v8, {LSTR}, v0")


def decode_key(rec, meta, k, s):
    ca = 40 + s
    e(f"    v_bfe_u32 v2, v{rec}, 12, 4")
    e(f"    v_and_b32_sdwa v3, v{meta}, v99 dst_sel:DWORD dst_unused:UNUSED_PAD src0_sel:BYTE_{k} src1_sel:DWORD")
    e(f"    v_or_b32 v2, v2, v3")
    e(f"    v_lshl_add_u32 v{ca}, v2, 2, s0")


def decode_data(rec, meta, k, s):
    d0, d1 = 48 + s, 56 + s
    e(f"    v_lshlrev_b32_sdwa v{d0}, v124, v{rec} dst_sel:DWORD dst_unused:UNUSED_PAD src0_sel:DWORD src1_sel:WORD_0")
    if OPT.get("srcmask"):
        e(f"    v_and_b32 v{d0}, {OPT['srcmask']}, v{d0}")
    e(f"    v_mov_b32 v{d1}, v{rec}")
    e(f"    v_lshlrev_b16_sdwa v{d1}, v{meta}, v1 dst_sel:WORD_0 dst_unused:UNUSED_PRESERVE src0_sel:BYTE_{k} src1_sel:DWORD")


def decode_full(rec, dst, s):
    e(f"    v_mul_u32_u24 v30, {TM}, v{dst}")
    e("    v_lshrrev_b32 v30, 12, v30")
    e(f"    v_bfi_b32 v30, 15, v{dst}, v30")
    decode_key(rec, 30, 0, s)
    decode_data(rec, 30, 0, s)


def zero_b_counters(n):
    e("    v_lshlrev_b32 v2, 2, v0")
    e(f"    v_add_u32 v2, {CNTB}, v2")
    e("    v_mov_b32 v3, 0")
    e(f"    v_cmp_gt_u32 vcc, {n}, v0")
    e("    s_and_saveexec_b64 s[76:77], vcc")
    e("    ds_write_b32 v2, v3")
    e("    s_mov_b64 exec, -1")


def phase_a():
    stamp("start")
    e("    s_load_dwordx2 s[24:25], s[0:1], 16")
    e("    s_load_dwordx2 s[20:21], s[0:1], 8")
    e("    s_load_dwordx2 s[28:29], s[0:1], 24")
    if I("cpf", 1):
        e("    s_getpc_b64 s[6:7]")
        e("CPF_PC:")
        e("    v_cmp_gt_u32 vcc, (CODE_END-CPF_PC)/128, v0")
        e("    v_lshlrev_b32 v2, 7, v0")
        e("    s_and_saveexec_b64 s[8:9], vcc")
        e("    s_cbranch_execz CPF_D")
        e("    global_load_dword v126, v2, s[6:7] offset:124")
        e("CPF_D:")
        e("    s_mov_b64 exec, -1")
    e("    s_cmp_ge_u32 s2, 256")
    e("    s_cbranch_scc1 END")
    e("    v_lshrrev_b32 v3, 6, v0")
    e("    v_and_b32 v2, 63, v0")
    e("    s_mov_b32 s23, 0x20000")
    e(f"    s_mov_b32 s22, {E*4}")
    e("    v_lshlrev_b32 v4, 18, v3")
    e("    s_mov_b64 s[26:27], s[22:23]")
    e("    v_lshl_or_b32 v4, v2, 4, v4")
    e("    s_lshr_b32 s30, s22, 1")
    e("    s_mov_b32 s31, s23")
    e("    v_lshrrev_b32 v5, 1, v4")
    e("    s_lshl_b32 s68, s2, 10")
    e("    v_cmp_gt_u32 vcc, 13, v3")
    e("    s_lshl_b32 s69, s2, 9")
    e("    s_waitcnt lgkmcnt(0)")
    e("    s_cbranch_vccz A_NOLD")
    e(f"    buffer_load_dwordx4 v[12:15], v4, {R(S_DST)}, s68 offen")
    e(f"    buffer_load_dwordx4 v[16:19], v4, {R(S_SRC)}, s68 offen")
    e(f"    buffer_load_dwordx2 v[20:21], v5, {R(S_NRM)}, s69 offen")
    e("A_NOLD:")
    stamp("a_issue")
    e("    s_load_dwordx8 s[12:19], s[0:1], 32")
    e("    s_load_dwordx2 s[4:5], s[0:1], 0")
    e("    v_readfirstlane_b32 s3, v3")
    e("    v_lshlrev_b32 v9, 2, v0")
    e("    v_mov_b32 v6, 0")
    e(f"    ds_write_b32 v9, v6 offset:{K1_CNT}")
    e("    v_mov_b32 v24, -1")
    e("    v_mov_b32 v25, -1")
    e("    v_mov_b32 v26, -1")
    e("    v_mov_b32 v27, -1")
    e("    v_lshlrev_b32 v7, 4, v0")
    e("    ds_write_b128 v7, v[24:27]")
    e("    ds_write_b128 v7, v[24:27] offset:16384")
    e("    v_add_u32 v4, s68, v4")
    e("    v_lshrrev_b32 v8, 2, v4")
    e(f"    v_cmp_gt_u32 s[72:73], s22, v4")
    e(f"    v_subrev_u32 v8, {ET}, v8")
    e("    v_mov_b32 v1, 1")
    e("    v_and_b32 v10, 7, v0")
    e("    s_cmp_lt_u32 s3, 13")
    e("    s_cbranch_scc1 A_BAR")
    e("    s_cmp_lt_u32 s3, 14")
    e("    s_cbranch_scc1 A_H13")
    e("    s_cmp_eq_u32 s3, 14")
    e("    s_cbranch_scc1 A_H14")
    e(f"    ds_write_b128 v7, v[24:27] offset:{32768 - 15*1024}")
    e("    v_and_b32 v5, 60, v9")
    e("    v_mov_b32 v7, 0xffff")
    e(f"    ds_write_b32 v5, v7 offset:{K1_OVT}")
    e("    s_branch A_BAR")
    e("A_H14:")
    e(f"    v_lshlrev_b32 v2, {TSH}, v2")
    e("    s_waitcnt lgkmcnt(0)")
    srd(S_WS, 18, 19, WS_H1 + TABBYTES, 0)
    if I("wstouch", 1):
        e(f"    buffer_load_dword v126, v2, {R(S_WS)}, 0 offen sc1")
    srd(S_GAT, 4, 5, TABBYTES)
    e(f"    buffer_load_dword v126, v2, {R(S_GAT)}, 0 offen")
    srd(S_OVF, 14, 15, TABBYTES)
    e(f"    buffer_load_dword v126, v2, {R(S_OVF)}, 0 offen sc1")
    e("    s_branch A_BAR")
    e("A_H13:")
    e(f"    s_mov_b32 s76, {WS_FLAG}")
    e("    s_lshl_b32 s77, s2, 9")
    e(f"    s_add_u32 s77, s77, {WS_OVT}")
    e("    v_lshlrev_b32 v2, 7, v2")
    e("    s_waitcnt lgkmcnt(0)")
    srd(S_WS, 18, 19, WS_H1 + TABBYTES, 0)
    e(f"    buffer_load_dword v125, v6, {R(S_WS)}, s76 offen sc1")
    if I("ptouch", 3) & 1:
        e("    s_mov_b64 exec, 15")
        e(f"    buffer_load_dword v126, v2, {R(S_WS)}, s77 offen sc1")
        e("    s_mov_b64 exec, -1")
    e("A_BAR:")
    e("    s_waitcnt lgkmcnt(0)")
    e("    s_barrier")
    stamp("a_bar1")
    srd(S_WS, 18, 19, WS_H1 + TABBYTES, 0)
    e("    s_cmp_lt_u32 s3, 12")
    e("    s_cbranch_scc1 A_EDGES")
    e("    v_bfe_u32 v2, v0, 4, 4")
    e("    s_lshl_b32 s76, s2, 4")
    e("    v_add_u32 v2, s76, v2")
    e("    v_mul_u32_u24 v3, 50006, v2")
    e("    v_lshrrev_b32 v3, 12, v3")
    e("    v_sub_u32 v4, v0, v3")
    e("    v_and_b32 v4, 15, v4")
    e("    v_add_u32 v115, v3, v4")
    e(f"    v_add_u32 v4, {ET}, v115")
    e("    v_lshlrev_b32 v5, 2, v4")
    e("    v_lshlrev_b32 v4, 1, v4")
    e(f"    buffer_load_dword v112, v5, {R(S_DST)}, 0 offen")
    e(f"    buffer_load_dword v113, v5, {R(S_SRC)}, 0 offen")
    e(f"    buffer_load_ushort v114, v4, {R(S_NRM)}, 0 offen")
    e(f"    v_mul_u32_u24 v4, {TM}, v115")
    e("    v_lshrrev_b32 v4, 16, v4")
    e("    v_cmp_eq_u32 s[66:67], v4, v2")
    e(f"    v_cmp_gt_u32 vcc, {N}, v115")
    e("    s_and_b64 s[66:67], s[66:67], vcc")
    e("    s_cmp_eq_u32 s3, 12")
    e("    s_cbranch_scc1 A_EDGES12")
    srd(S_STO, 12, 13, 8192)
    e(f"    v_subrev_u32 v2, {13*64}, v0")
    e("    v_lshlrev_b32 v2, 4, v2")
    e(f"    buffer_load_dwordx4 v[100:103], v2, {R(S_STO)}, 0 offen")
    e(f"    buffer_load_dwordx4 v[104:107], v2, {R(S_STO)}, 0 offen offset:3072")
    e("    v_add_u32 v3, 6144, v2")
    e(f"    buffer_load_dwordx4 v[108:111], v3, {R(S_STO)}, 0 offen")
    e("    s_cmp_lg_u32 s3, 13")
    e("    s_cbranch_scc1 A_OUT")
    e(f"    s_waitcnt vmcnt({6 + (I('ptouch', 3) & 1)})")
    e("    v_add_u32 v125, 0x01010101, v125")
    e(f"    ds_write2_b32 v6, v125, v125 offset0:{K1_NON//4 - 0} offset1:{K1_NON//4 + 1}" if K1_NON // 4 < 255 else f"    v_mov_b32 v4, v125")
    e("    v_mov_b32 v5, v125")
    e(f"    ds_write_b64 v6, v[4:5] offset:{K1_NON}")
    e("    s_branch A_OUT")
    e("A_EDGES12:")
    e("    s_waitcnt vmcnt(5)")
    e("    s_branch A_EDGES2")
    e("A_EDGES:")
    e("    s_waitcnt vmcnt(2)")
    e("A_EDGES2:")
    e("    s_mov_b64 exec, s[72:73]")
    e("    s_mov_b32 s70, 0xffff0000")
    stamp("a_dst")
    for k in range(4):
        e(f"    v_mul_u32_u24 v{24+k}, {TM}, v{12+k}")
        e(f"    v_add_u32 v2, {k}, v8")
        e(f"    v_lshrrev_b32 v{28+k}, 20, v{24+k}")
        e(f"    v_cmp_ne_u32 s[{52+2*k}:{53+2*k}], v{12+k}, v2")
        e(f"    v_lshlrev_b32 v{36+k}, 2, v{28+k}")
    for k in range(4):
        e(f"    s_mov_b64 exec, s[{52+2*k}:{53+2*k}]")
        e(f"    ds_add_rtn_u32 v{32+k}, v{36+k}, v1 offset:{K1_CNT}")
    e("    s_mov_b64 exec, s[72:73]")
    for k in range(4):
        e(f"    v_lshrrev_b32 v{24+k}, 12, v{24+k}")
        e(f"    v_mul_u32_u24 v{28+k}, {K1_LS}, v{28+k}")
        e(f"    v_bfi_b32 v{24+k}, 15, v{12+k}, v{24+k}")
    e("    s_mov_b64 s[60:61], 0")
    FIT = ["s[6:7]", "s[8:9]", "s[10:11]", "s[62:63]"]
    for k in range(4):
        e(f"    s_mov_b64 exec, s[{52+2*k}:{53+2*k}]")
        e(f"    s_waitcnt lgkmcnt(3)")
        e(f"    v_cmp_gt_u32 vcc, {SLOTCAP}, v{32+k}")
        e(f"    v_and_b32 v2, 7, v{32+k}")
        e(f"    v_lshrrev_b32 v3, 3, v{32+k}")
        e(f"    s_andn2_b64 s[{52+2*k}:{53+2*k}], exec, vcc")
        e(f"    s_or_b64 s[60:61], s[60:61], s[{52+2*k}:{53+2*k}]")
        e(f"    s_mov_b64 {FIT[k]}, vcc")
        e("    s_mov_b64 exec, vcc")
        e(f"    v_lshl_add_u32 v2, v2, 4, v{28+k}")
        e(f"    v_lshl_add_u32 v{36+k}, v3, 2, v2")
        e("    v_add_u32 v5, v3, v2")
        e(f"    ds_write_b8 v5, v{24+k} offset:12")
    e("    s_mov_b64 exec, s[72:73]")
    e("    s_cmp_eq_u32 s3, 12")
    e("    s_waitcnt vmcnt(3)")
    e("    s_cbranch_scc1 A_ALL")
    e("    s_waitcnt vmcnt(0)")
    e("A_ALL:")
    stamp("a_all")
    for k in range(4):
        if k % 2 == 0:
            e(f"    v_lshl_or_b32 v{16+k}, v{20+k//2}, 16, v{16+k}")
        else:
            e(f"    v_and_or_b32 v{16+k}, v{20+k//2}, s70, v{16+k}")
    for k in range(4):
        e(f"    s_mov_b64 exec, {FIT[k]}")
        e(f"    ds_write_b32 v{36+k}, v{16+k}")
    e("    s_cmp_lg_u64 s[60:61], 0")
    e("    s_cbranch_scc1 A_OVER")
    e("A_OUT:")
    e("    s_mov_b64 exec, -1")
    e("    v_lshrrev_b32 v2, 3, v0")
    e("    s_lshl_b32 s62, s3, 3")
    e("    v_add_u32 v2, s62, v2")
    e(f"    v_mul_u32_u24 v4, {K1_LS}, v2")
    e("    v_lshl_add_u32 v4, v10, 4, v4")
    e(f"    v_add_u32 v5, {8*K1_LS}, v4")
    e("    v_lshlrev_b32 v7, 15, v2")
    e("    v_lshl_add_u32 v7, v10, 4, v7")
    e("    s_lshl_b32 s62, s2, 7")
    e(f"    s_add_u32 s63, s62, {8*32768}")
    e("    s_mov_b32 s64, 0xffffff")
    e("    v_and_b32 v3, 6, v10")
    e("    s_waitcnt lgkmcnt(0)")
    stamp("a_pre2")
    e("    s_barrier")
    stamp("a_bar2")
    e(f"    ds_read_u8 v127, v10 offset:{K1_NON}")
    e("    ds_read2_b32 v[12:13], v4 offset0:0 offset1:1")
    e("    ds_read2_b32 v[14:15], v4 offset0:2 offset1:3")
    e("    ds_read2_b32 v[16:17], v5 offset0:0 offset1:1")
    e("    ds_read2_b32 v[18:19], v5 offset0:2 offset1:3")
    e(f"    ds_read_u16 v120, v3 offset:{K1_NON}")
    e(f"    ds_read_b32 v125, v6 offset:{K1_NON}")
    e("    s_waitcnt lgkmcnt(6)")
    e("    v_lshlrev_b32 v20, 24, v127")
    e("    s_waitcnt lgkmcnt(4)")
    e("    v_and_or_b32 v15, v15, s64, v20")
    e(f"    buffer_store_dwordx4 v[12:15], v7, {R(S_WS)}, s62 offen {SC}")
    e("    s_waitcnt lgkmcnt(2)")
    e("    v_and_or_b32 v19, v19, s64, v20")
    e(f"    buffer_store_dwordx4 v[16:19], v7, {R(S_WS)}, s63 offen {SC}")
    e(f"    s_cmp_lg_u32 s3, {I('ovtw', 0)}")
    e("    s_cbranch_scc1 A_FIN")
    e("    v_lshlrev_b32 v2, 3, v10")
    e(f"    ds_read_b64 v[24:25], v2 offset:{K1_OVT}")
    e("    v_bfe_u32 v3, v0, 3, 3")
    e("    v_lshl_add_u32 v2, v3, 14, v2")
    e(f"    ds_read_b32 v22, v6 offset:{K1_CNT+K1_OVC}")
    e("    v_cmp_eq_u32 vcc, 7, v10")
    e("    s_lshl_b32 s62, s2, 6")
    e(f"    s_add_u32 s62, s62, {WS_OVT}")
    e("    s_waitcnt lgkmcnt(0)")
    e("    v_cndmask_b32 v24, v24, v22, vcc")
    e("    v_lshl_or_b32 v25, v120, 16, v25")
    e(f"    buffer_store_dwordx2 v[24:25], v2, {R(S_WS)}, s62 offen {SC}")
    e("A_FIN:")
    stamp("a_st")


def a_overflow():
    e("A_OVER:")
    srd(S_OVF, 18, 19, 256 * OVF_STRIDE, WS_OVF)
    e("    s_lshl_b32 s62, s2, 15")
    for k in range(4):
        e(f"    s_mov_b64 exec, s[{52+2*k}:{53+2*k}]")
        e(f"    s_cbranch_execz A_OV{k}")
        e(f"    v_mov_b32 v2, {K1_OVC}")
        e(f"    ds_add_rtn_u32 v3, v2, v1 offset:{K1_CNT}")
        e(f"    v_mov_b32 v4, v{16+k}")
        e(f"    v_mov_b32 v5, v{12+k}")
        e("    s_waitcnt lgkmcnt(0)")
        e(f"    v_cmp_gt_u32 vcc, {NINL}, v3")
        e("    v_lshlrev_b32 v3, 3, v3")
        e("    s_andn2_b64 s[76:77], exec, vcc")
        e("    s_mov_b64 exec, vcc")
        e(f"    ds_write_b64 v3, v[4:5] offset:{K1_OVT}")
        e("    s_mov_b64 exec, s[76:77]")
        e(f"    s_cbranch_execz A_OV{k}")
        e(f"    buffer_store_dwordx2 v[4:5], v3, {R(S_OVF)}, s62 offen {SC}")
        e("    s_waitcnt vmcnt(0)")
        e(f"A_OV{k}:")
    e("    s_branch A_OUT")


def setup():
    srd(S_OVF, 18, 19, 256 * OVF_STRIDE, WS_OVF)
    srd(S_GAT, 4, 5, TABBYTES + 3072, -3072)
    srd(S_STO, 18, 19, TABBYTES, WS_H1)
    e("    s_mov_b32 s20, s14")
    e("    s_mov_b32 s21, s15")
    e(f"    s_mov_b32 s22, {TABBYTES}")
    e(f"    s_add_u32 s24, s18, {WS_H1 - 3072}")
    e("    s_addc_u32 s25, s19, 0")
    e("    v_mov_b32 v99, 0xf0")
    e("    v_mov_b32 v124, 7")
    e(f"    s_mov_b32 s0, {CNTB}")
    e("    s_mov_b32 s1, 0x07060302")
    e("    s_mov_b32 s71, 0")
    if DIAG:
        e("    s_mov_b32 s48, 0")
        e("    s_mov_b64 s[50:51], 0")
    zero_b_counters((WL - CNTB) // 4)
    e("    v_and_b32 v2, 63, v0")
    e("    v_bfe_u32 v3, v2, 4, 1")
    e("    v_xor_b32 v3, v3, v10")
    e("    v_lshlrev_b32 v83, 4, v3")
    e("    v_add_u32 v80, 3072, v83")
    e("    v_add_u32 v82, 1024, v83")
    e("    v_xor_b32 v83, 64, v83")
    e("    v_add_u32 v81, 2048, v83")
    e("    v_and_b32 v92, 15, v0")
    e("    v_lshrrev_b32 v11, 4, v2")
    e("    v_bfe_u32 v6, v2, 2, 2")
    e("    v_and_b32 v7, 3, v2")
    e("    v_lshl_add_u32 v84, v11, 3, v6")
    e("    v_lshlrev_b32 v84, 7, v84")
    e("    v_lshl_add_u32 v122, v7, 4, v84")
    e(f"    v_add_u32 v122, {WL}, v122")
    e("    v_lshrrev_b32 v6, 1, v6")
    e("    v_and_b32 v4, 1, v11")
    e("    v_cmp_eq_u32 s[16:17], 1, v4")
    e("    v_lshl_or_b32 v6, v4, 2, v6")
    e("    v_xor_b32 v6, v6, v7")
    e("    v_lshl_add_u32 v84, v6, 4, v84")
    e("    v_and_b32 v4, 1, v7")
    e("    v_lshl_add_u32 v84, v4, 3, v84")
    e("    s_lshl_b32 s76, s3, 12")
    e("    v_add_u32 v84, s76, v84")
    e("    s_mov_b32 m0, s76")
    e("    v_xor_b32 v85, 8, v84")
    e("    v_xor_b32 v86, 64, v84")
    e("    v_xor_b32 v87, 72, v84")
    e(f"    s_mul_i32 s76, s3, {TSTR}")
    e(f"    s_add_u32 s76, s76, {LISTS}")
    e("    v_lshrrev_b32 v4, 3, v2")
    e("    v_lshl_add_u32 v88, v4, 2, s76")
    e("    v_lshl_add_u32 v123, v2, 2, s76")
    e(f"    s_add_u32 s76, s76, {CAPT*4}")
    e("    v_lshl_add_u32 v89, v11, 5, s76")
    e("    v_cmp_lt_u32 vcc, 0, v7")
    e("    v_cmp_lt_u32 s[76:77], 1, v7")
    e("    v_lshrrev_b32 v4, 2, v2")
    e("    v_cndmask_b32 v95, 0, -1, vcc")
    e("    v_cndmask_b32 v96, 0, -1, s[76:77]")
    e("    v_cmp_lt_u32 vcc, 2, v7")
    e(f"    v_mul_u32_u24 v98, {TSTR}, v4")
    e(f"    v_add_u32 v98, {LISTS}, v98")
    e("    v_cndmask_b32 v97, 0, -1, vcc")
    e("    v_lshlrev_b32 v90, 4, v2")
    e(f"    v_add_u32 v90, {CNTB}, v90")
    for i in range(16):
        e(f"    v_mov_b32 v{64+i}, 0")
    e("    s_lshl_b32 s76, s2, 4")
    e("    s_add_u32 s76, s76, s3")
    e("    s_mul_i32 s77, s76, 50006")
    e("    s_lshr_b32 s77, s77, 12")
    e("    v_subrev_u32 v2, s77, v92")
    e("    v_and_b32 v2, 15, v2")
    e("    v_add_u32 v2, s77, v2")
    e(f"    v_mul_u32_u24 v3, {TM}, v2")
    e("    v_lshrrev_b32 v3, 16, v3")
    e("    v_cmp_eq_u32 s[14:15], s76, v3")
    e("    v_lshlrev_b32 v2, 7, v2")
    e("    v_lshl_add_u32 v121, v11, 4, v2")
    e("    v_lshlrev_b32 v9, 4, v0")
    e("    v_lshlrev_b32 v31, 3, v0")
    e("    s_mov_b64 s[12:13], 0")
    e("    s_cmp_lt_u32 s3, 12")
    e("    s_cbranch_scc1 S_DONE")
    e("    s_waitcnt vmcnt(2)")
    e("    v_cmp_eq_u32 vcc, v112, v115")
    e("    v_lshl_or_b32 v113, v114, 16, v113")
    e("    s_and_b64 s[12:13], s[66:67], vcc")
    decode_key(113, 0, 0, 6)
    decode_data(113, 0, 0, 6)
    e("    s_cmp_eq_u32 s3, 12")
    e("    s_cbranch_scc1 S_DONE")
    e(f"    v_subrev_u32 v2, {13*64}, v0")
    e("    v_lshlrev_b32 v2, 4, v2")
    e(f"    v_cmp_gt_u32 vcc, 2048, v2")
    e(f"    v_add_u32 v2, {WL}, v2")
    e("    ds_write_b128 v2, v[100:103]")
    e("    ds_write_b128 v2, v[104:107] offset:3072")
    e("    s_and_saveexec_b64 s[76:77], vcc")
    e("    ds_write_b128 v2, v[108:111] offset:6144")
    e("    s_mov_b64 exec, -1")
    e("S_DONE:")


COMMON = [0, 1, 3, 4]
RARE = [2, 5, 6, 7]


def body():
    e(f".globl {NAME}")
    e(".p2align 8")
    e(f".type {NAME},@function")
    e(f"{NAME}:")
    phase_a()
    setup()
    e("    s_getreg_b32 s30, hwreg(HW_REG_XCC_ID, 0, 4)")
    e("    s_and_b32 s30, s30, 7")
    e("    s_lshl_b32 s30, s30, 14")
    e(f"    s_add_u32 s30, s30, {WS_OVT}")
    e("    s_add_u32 s31, s30, 8192")
    if I("noovtack", 0):
        e(f"    s_cmp_eq_u32 s3, {I('ovtw', 0)}")
        e("    s_waitcnt vmcnt(1) lgkmcnt(0)")
        e("    s_cbranch_scc1 G1_ACKD")
    e("    s_waitcnt vmcnt(0) lgkmcnt(0)")
    e("G1_ACKD:")
    stamp("g1_ack")
    if GATE == 1:
        e(f"    buffer_load_dwordx2 v[116:117], v31, {R(S_WS)}, s30 offen {SC}")
        e(f"    buffer_load_dwordx2 v[118:119], v31, {R(S_WS)}, s31 offen {SC}")
    e("    s_barrier")
    stamp("g1_exit")
    if GATE == 1:
        e("    s_branch COLLECT1")

    e("COLLECT:")
    if GATE:
        e(f"    buffer_load_dwordx2 v[116:117], v31, {R(S_WS)}, s30 offen {SC}")
        e(f"    buffer_load_dwordx2 v[118:119], v31, {R(S_WS)}, s31 offen {SC}")
    e("COLLECT1:")
    e("    s_lshl_b32 s68, s2, 15")
    e("    s_add_u32 s69, s68, 16384")
    e(f"    s_mov_b32 s75, {SPINMAX}")
    if GATE:
        e("    s_waitcnt vmcnt(0)")
        e("C_CHK2:")
        e("    v_cmp_ne_u32_sdwa vcc, v117, v120 src0_sel:WORD_1 src1_sel:DWORD")
        e("    v_cmp_ne_u32_sdwa s[76:77], v119, v120 src0_sel:WORD_1 src1_sel:DWORD")
        e("    s_or_b64 vcc, vcc, s[76:77]")
        e("    s_cbranch_scc1 C_RETRY2")
        e("C_OK2:")
        stamp("b_gate")
    e(f"    buffer_load_dwordx4 v[12:15], v9, {R(S_WS)}, s68 offen {SC}")
    e(f"    buffer_load_dwordx4 v[16:19], v9, {R(S_WS)}, s69 offen {SC}")
    if not GATE:
        e(f"    buffer_load_dwordx2 v[116:117], v31, {R(S_WS)}, s30 offen {SC}")
        e(f"    buffer_load_dwordx2 v[118:119], v31, {R(S_WS)}, s31 offen {SC}")

    def ovt_masks():
        e("    v_and_b32 v117, 0xffff, v117")
        e("    v_and_b32 v119, 0xffff, v119")
        e(f"    v_mul_u32_u24 v2, {TM}, v117")
        e(f"    v_mul_u32_u24 v3, {TM}, v119")
        e("    v_cmp_eq_u32 s[8:9], 7, v10")
        e(f"    v_cmp_lt_u32 s[72:73], {NINL}, v116")
        e(f"    v_cmp_lt_u32 vcc, {NINL}, v118")
        e("    v_lshrrev_b32 v2, 20, v2")
        e("    v_lshrrev_b32 v3, 20, v3")
        e("    v_cmp_eq_u32 s[4:5], s2, v2")
        e("    v_cmp_eq_u32 s[6:7], s2, v3")
        e("    s_and_b64 s[72:73], s[72:73], s[8:9]")
        e("    s_and_b64 vcc, vcc, s[8:9]")
        e("    s_lshr_b64 s[72:73], s[72:73], 1")
        e("    s_or_b64 s[72:73], s[72:73], vcc")
    if GATE:
        ovt_masks()
    e(f"    s_mov_b64 {PEND(6)}, s[12:13]")
    e(f"    s_mov_b64 {PEND(7)}, 0")
    e("    s_movk_i32 s11, 0xffff")
    e(f"    s_mov_b64 exec, {PEND(6)}")
    e("    s_cbranch_execz C_NT")
    e("    ds_add_rtn_u32 v38, v46, v1")
    e("C_NT:")
    e("    s_mov_b64 exec, -1")
    for i in range(2):
        base = 12 + 4 * i
        e(f"    s_waitcnt vmcnt({(1 if GATE else 3)-i})")
        e(f"C_CHK{i}:")
        e(f"    v_cmp_ne_u32_sdwa vcc, v{base+3}, v127 src0_sel:BYTE_3 src1_sel:DWORD")
        e(f"    s_cbranch_vccnz C_RETRY{i}")
        e(f"C_OK{i}:")
        stamp("b_lines" if i == 0 else "b_lines1")
        for k in range(3):
            e(f"    v_cmp_ne_u16 {PEND(3*i+k)}, s11, v{base+k}")
        for k in range(2):
            decode_key(base + k, base + 3, k, 3 * i + k)
        for k in range(2):
            s = 3 * i + k
            e(f"    s_mov_b64 exec, {PEND(s)}")
            e(f"    ds_add_rtn_u32 v{32+s}, v{40+s}, v1")
        s = 3 * i + 2
        e(f"    s_mov_b64 exec, {PEND(s)}")
        e(f"    s_cbranch_execz C_N2{i}")
        decode_key(base + 2, base + 3, 2, s)
        e(f"    ds_add_rtn_u32 v{32+s}, v{40+s}, v1")
        decode_data(base + 2, base + 3, 2, s)
        e(f"C_N2{i}:")
        e("    s_mov_b64 exec, -1")
        for k in range(2):
            decode_data(base + k, base + 3, k, 3 * i + k)
    if not GATE:
        e("    s_waitcnt vmcnt(0)")
        e("C_CHK2:")
        e("    v_cmp_ne_u32_sdwa vcc, v117, v120 src0_sel:WORD_1 src1_sel:DWORD")
        e("    v_cmp_ne_u32_sdwa s[76:77], v119, v120 src0_sel:WORD_1 src1_sel:DWORD")
        e("    s_or_b64 vcc, vcc, s[76:77]")
        e("    s_cbranch_scc1 C_RETRY2")
        e("C_OK2:")
        ovt_masks()
    e("    s_mov_b64 s[68:69], 0")
    e("    s_or_b64 s[76:77], s[4:5], s[6:7]")
    e("    s_or_b64 s[76:77], s[76:77], s[72:73]")
    e("    s_cbranch_scc1 EXTRA")
    e("CDONE:")
    e("    s_lshl_b32 s75, s3, 2")
    e("    s_add_u32 s75, s75, 3")
    e("    s_waitcnt lgkmcnt(0)")
    e("    s_barrier")
    stamp2("b_bar1", "")
    e("    ds_read_b128 v[4:7], v90")
    prefetch_common(PF4)
    if I("ptouch", 3) & 2:
        e("    s_cmp_lg_u32 s3, 15")
        e("    s_cbranch_scc1 PT_D")
        e("    s_lshl_b32 s76, s2, 8")
        e(f"    s_add_u32 s76, s76, {WS_FLAG}")
        e("    v_lshlrev_b32 v2, 7, v92")
        e("    s_mov_b64 exec, 3")
        e(f"    buffer_load_dword v126, v2, {R(S_WS)}, s76 offen sc1")
        e("    s_mov_b64 exec, -1")
        e("PT_D:")
    if I("pfx", 1):
        own_rows(S_GAT, "offset:3072")
    e("    s_waitcnt lgkmcnt(0)")
    e("    v_add_u32 v5, v4, v5")
    e("    v_add_u32 v6, v5, v6")
    e("    v_add_u32 v7, v6, v7")
    e("    s_nop 1")
    e("    v_and_b32_dpp v28, v7, v95 quad_perm:[0,0,0,0] row_mask:0xf bank_mask:0xf")
    e("    v_and_b32_dpp v29, v7, v96 quad_perm:[1,1,1,1] row_mask:0xf bank_mask:0xf")
    e("    v_and_b32_dpp v30, v7, v97 quad_perm:[2,2,2,2] row_mask:0xf bank_mask:0xf")
    e("    v_add3_u32 v28, v28, v29, v30")
    e("    v_add_u32 v7, v28, v7")
    e("    v_lshl_add_u32 v28, v28, 2, v98")
    e(f"    v_cmp_lt_u32 vcc, {CAPT}, v7")
    e("    v_lshl_add_u32 v29, v4, 2, v28")
    e("    v_lshl_add_u32 v30, v5, 2, v28")
    e("    v_lshl_add_u32 v31, v6, 2, v28")
    e("    v_readlane_b32 s74, v7, s75")
    e("    ds_write_b128 v90, v[28:31] offset:1024")
    for s in RARE:
        e(f"    s_mov_b64 exec, {PEND(s)}")
        e(f"    s_cbranch_execz P_R{s}")
        e(f"    ds_read_b32 v{20+s}, v{40+s} offset:1024")
        e(f"P_R{s}:")
    for s in COMMON:
        e(f"    s_mov_b64 exec, {PEND(s)}")
        e(f"    ds_read_b32 v{20+s}, v{40+s} offset:1024")
    e(f"    s_min_u32 s74, s74, {CAPT}")
    e("    s_cbranch_vccnz SLOWW")
    for s in COMMON:
        e(f"    s_mov_b64 exec, {PEND(s)}")
        e("    s_waitcnt lgkmcnt(3)")
        e(f"    v_lshl_add_u32 v{20+s}, v{32+s}, 2, v{20+s}")
        e(f"    ds_write2st64_b32 v{20+s}, v{48+s}, v{56+s} offset0:0 offset1:5")
        e(f"    s_mov_b64 {PEND(s)}, 0")
    for s in RARE:
        e(f"    s_mov_b64 exec, {PEND(s)}")
        e(f"    s_cbranch_execz P_W{s}")
        e(f"    v_lshl_add_u32 v{20+s}, v{32+s}, 2, v{20+s}")
        e(f"    ds_write2st64_b32 v{20+s}, v{48+s}, v{56+s} offset0:0 offset1:5")
        e(f"    s_mov_b64 {PEND(s)}, 0")
        e(f"P_W{s}:")
    e("WDONE:")
    e("    s_sub_u32 s76, 0, s74")
    e("    s_and_b32 s76, s76, 31")
    e("    s_bfm_b64 exec, s76, 0")
    e("    s_lshl_b32 s77, s74, 2")
    e("    v_add_u32 v2, s77, v123")
    e(f"    v_mov_b32 v3, {PADV}")
    e("    ds_write2st64_b32 v2, v3, v3 offset0:0 offset1:5")
    e("    s_mov_b64 exec, -1")
    e(f"    v_mov_b32 v4, {MORE}")
    e("    s_waitcnt lgkmcnt(0)")
    e("    s_barrier")
    stamp2("b_bar2", "")
    e("    ds_read_b32 v8, v4")

    def next_k():
        e("    s_mov_b32 s8, 1")
        e("    s_cmp_gt_i32 s9, s10")
        e("    s_addc_u32 s8, s8, 0")
        e("    s_lshl_b32 s11, s10, 1")
        e("    s_cmp_gt_i32 s9, s11")
        e("    s_addc_u32 s8, s8, 0")
        e("    s_add_i32 s11, s11, s10")
        e("    s_cmp_gt_i32 s9, s11")
        e("    s_addc_u32 s8, s8, 0")
        e("    s_min_i32 s8, s8, s9")
        e("    s_sub_i32 s9, s9, s8")
        e("    s_sub_i32 s10, s10, 1")
        e("    s_lshl_b32 s11, s8, 5")

    def read_recs(a, b, adv):
        e(f"    ds_read2_b32 v[100:101], v{a} offset0:0 offset1:8")
        e(f"    ds_read2_b32 v[102:103], v{a} offset0:16 offset1:24")
        e(f"    ds_read_b128 v[104:107], v{b}")
        e(f"    ds_read_b128 v[108:111], v{b} offset:16")
        e(f"    v_add_u32 v93, {adv}, v{a}")
        e(f"    v_add_u32 v94, {adv}, v{b}")

    def dma(i):
        e(f"    buffer_load_dwordx4 v{100+i}, {R(S_GAT)}, 0 offen offset:{1024*i} lds")

    def addr():
        for i in range(4):
            e(f"    v_add_u32 v{100+i}, v{100+i}, v{80+i}")

    def build_b(w):
        for j in range(8):
            e(f"    v_bfe_i32 v{32+j}, v{104+j}, v92, {w}")
        for j in range(8):
            e(f"    v_and_b32 v{32+j}, v{32+j}, v{104+j}")
        for j in range(4):
            e(f"    v_perm_b32 v{112+j}, v{32+2*j+1}, v{32+2*j}, s1")

    def mfmas():
        for t in range(4):
            e(f"    v_mfma_f32_16x16x32_bf16 v[{64+4*t}:{67+4*t}], v[{12+4*t}:{15+4*t}], v[112:115], v[{64+4*t}:{67+4*t}]")

    e("MAIN:")
    e("    s_cmp_eq_u32 s74, 0")
    e("    s_cbranch_scc1 MAINDONE")
    read_recs(88, 89, 128)
    if PRIO == 1:
        for g in range(1, 4):
            e(f"    s_cmp_lt_u32 s3, {4*g}")
            e("    s_cbranch_scc1 PRIOD")
            e(f"    s_setprio {g}")
        e("PRIOD:")
    e("    s_add_u32 s9, s74, 7")
    e("    s_lshr_b32 s9, s9, 3")
    e("    s_sub_i32 s9, s9, 4")
    e("    s_max_i32 s9, s9, 0")
    e(f"    s_mov_b32 s10, {NB-1}")
    e("    s_waitcnt lgkmcnt(2)")
    addr()
    for i in range(4):
        dma(i)
    next_k()
    e("    s_waitcnt lgkmcnt(0)")
    build_b("1")
    read_recs(93, 94, "s11")
    e("LOOP:")
    e("    v_cmp_gt_u32 vcc, s8, v11")
    e("    s_waitcnt vmcnt(0)")
    for t in range(4):
        for u in range(2):
            e(f"    ds_read_b64_tr_b16 v[{12+4*t+2*u}:{13+4*t+2*u}], v{84+t} offset:{512*u}")
    e("    s_cmp_eq_u32 s8, 0")
    e("    v_cndmask_b32 v91, 0, v1, vcc")
    e("    s_waitcnt lgkmcnt(8)")
    addr()
    e("    s_waitcnt lgkmcnt(0)")
    e("    s_cbranch_scc1 LAST")
    dma(0)
    e("    s_cmp_eq_u32 s8, 1")
    e("    s_cbranch_scc1 DMAD")
    dma(1)
    e("    s_cmp_eq_u32 s8, 2")
    e("    s_cbranch_scc1 DMAD")
    dma(2)
    e("    s_cmp_eq_u32 s8, 3")
    e("    s_cbranch_scc1 DMAD")
    dma(3)
    e("DMAD:")
    mfmas()
    next_k()
    build_b("v91")
    read_recs(93, 94, "s11")
    e("    s_branch LOOP")
    e("LAST:")
    mfmas()
    e("MAINDONE:")
    e("    s_waitcnt lgkmcnt(0)")
    e("    v_readfirstlane_b32 s75, v8")
    e("    s_cmp_lg_u32 s75, 0")
    e("    s_cbranch_scc1 AGAIN")

    if PRIO:
        e("    s_setprio 0")
    stamp2("h1_done", "h2_done")
    WREG = [40, 44, 48, 52, 56, 60, 28, 116]

    def w_frags():
        for s_ in range(2):
            for t in range(4):
                for u in range(2):
                    off = (32 * s_ + 4 * u) * 128 + 64 * (t >> 1) + 8 * (t & 1)
                    r = WREG[s_ * 4 + t] + 2 * u
                    e(f"    ds_read_b64_tr_b16 v[{r}:{r+1}], v122 offset:{off}")

    e("    s_nop 1")
    for t in range(4):
        e(f"    v_cvt_pk_bf16_f32 v{12+2*t}, v{64+4*t}, v{65+4*t}")
        e(f"    v_cvt_pk_bf16_f32 v{13+2*t}, v{66+4*t}, v{67+4*t}")
    e("    s_mov_b64 exec, s[16:17]")
    e("    v_swap_b32 v12, v14")
    e("    v_swap_b32 v13, v15")
    e("    v_swap_b32 v16, v18")
    e("    v_swap_b32 v17, v19")
    e("    s_bitcmp1_b32 s71, 0")
    e("    s_cbranch_scc1 FINAL")
    e("    s_mov_b64 exec, s[14:15]")
    e(f"    buffer_store_dwordx4 v[12:15], v121, {R(S_STO)}, 0 offen {SC}")
    e(f"    buffer_store_dwordx4 v[16:19], v121, {R(S_STO)}, 0 offen offset:64 {SC}")
    e("    s_mov_b64 exec, -1")
    stamp("h1_st")
    e(f"    s_mov_b32 s{S_GAT}, s{S_GH}")
    e(f"    s_mov_b32 s{S_GAT+1}, s{S_GH+1}")
    e("    s_or_b32 s71, s71, 1")
    for i in range(16):
        e(f"    v_mov_b32 v{64+i}, 0")
    e("    s_bitcmp1_b32 s71, 1")
    e("    s_cbranch_scc1 E_IRR")
    w_frags()
    e("E_BAR:")
    barrier_addrs()
    grid_barrier("g2")
    e("    v_mov_b32 v8, 0")
    e("    s_bitcmp0_b32 s71, 1")
    e("    s_cbranch_scc1 MAIN")
    e("    s_branch COLLECT")
    e("FINAL:")
    e("    s_mov_b64 exec, -1")
    e("    s_bitcmp1_b32 s71, 1")
    e("    s_cbranch_scc1 F_GETW")
    e("F_HAVEW:")
    for t in range(4):
        w = WREG[t]
        e(f"    v_mfma_f32_16x16x32_bf16 v[{64+4*t}:{67+4*t}], v[{w}:{w+3}], v[12:15], 0")
    for t in range(4):
        w = WREG[4 + t]
        e(f"    v_mfma_f32_16x16x32_bf16 v[{64+4*t}:{67+4*t}], v[{w}:{w+3}], v[16:19], v[{64+4*t}:{67+4*t}]")
    e("    s_nop 4")
    for t in range(4):
        if t:
            e("    s_nop 1")
        e(f"    v_cvt_pk_bf16_f32 v{12+2*t}, v{64+4*t}, v{65+4*t}")
        e(f"    v_cvt_pk_bf16_f32 v{13+2*t}, v{66+4*t}, v{67+4*t}")
    e("    s_mov_b64 exec, s[14:15]")
    e(f"    buffer_store_dwordx4 v[12:15], v121, {R(S_OUT)}, 0 offen {ST_OUT}")
    e(f"    buffer_store_dwordx4 v[16:19], v121, {R(S_OUT)}, 0 offen offset:64 {ST_OUT}")
    stamp_out()
    e("END:")
    e("    s_endpgm")

    for i in range(2):
        base = 12 + 4 * i
        e(f"C_RETRY{i}:")
        e(f"    buffer_load_dwordx4 v[{base}:{base+3}], v9, {R(S_WS)}, s{68+i} offen {SC}")
        e("    s_sub_u32 s75, s75, 1")
        e("    s_cmp_eq_u32 s75, 0")
        e("    s_waitcnt vmcnt(0)")
        e(f"    s_cbranch_scc0 C_CHK{i}")
        e("    s_mov_b32 s75, 1000")
        if DIAG:
            e(f"    s_or_b32 s48, s48, {1 << i}")
            e("    s_mov_b64 s[50:51], vcc")
        e(f"    s_branch C_OK{i}")
    e("C_RETRY2:")
    if I("bo", 4):
        e(f"    s_sleep {I('bo', 4)}")
    e(f"    buffer_load_dwordx2 v[116:117], v31, {R(S_WS)}, s30 offen {SC}")
    e(f"    buffer_load_dwordx2 v[118:119], v31, {R(S_WS)}, s31 offen {SC}")
    e("    s_sub_u32 s75, s75, 1")
    e("    s_cmp_eq_u32 s75, 0")
    e("    s_waitcnt vmcnt(0)")
    e("    s_cbranch_scc0 C_CHK2")
    e("    s_mov_b32 s75, 1000")
    if DIAG:
        e("    s_or_b32 s48, s48, 4")
        e("    s_mov_b64 s[50:51], vcc")
    e("    s_branch C_OK2")
    a_overflow()
    e("AGAIN:")
    e("    s_or_b32 s71, s71, 2")
    e("    s_barrier")
    zero_b_counters((WL - CNTB) // 4)
    e("    s_waitcnt lgkmcnt(0)")
    e("    s_barrier")
    for s in range(7):
        e(f"    s_mov_b64 exec, {PEND(s)}")
        e(f"    ds_add_rtn_u32 v{32+s}, v{40+s}, v1")
    e("EXTRA:")
    for m, r in (("s[4:5]", 116), ("s[6:7]", 118)):
        e(f"    s_andn2_b64 exec, {m}, {PEND(7)}")
        e(f"    s_andn2_b64 {m}, {m}, exec")
        e(f"    s_or_b64 {PEND(7)}, {PEND(7)}, exec")
        decode_full(r, r + 1, 7)
    e("    s_mov_b64 exec, -1")
    e("    s_or_b64 s[76:77], s[4:5], s[6:7]")
    e("    s_cbranch_scc1 OVFULL")
    e("    s_mov_b32 s75, 0")
    e("OVL:")
    e("    s_cmp_lt_u32 s68, s69")
    e("    s_cbranch_scc1 OVLOAD")
    e("    s_cmp_eq_u64 s[72:73], 0")
    e("    s_cbranch_scc1 OVDONE")
    e("    s_ff1_i32_b64 s76, s[72:73]")
    e("    s_bitset0_b64 s[72:73], s76")
    e("    s_or_b32 s77, s76, 7")
    e("    v_readlane_b32 s68, v116, s77")
    e("    v_readlane_b32 s69, v118, s77")
    e("    s_bitcmp1_b32 s76, 0")
    e("    s_cselect_b32 s69, s69, s68")
    e(f"    s_min_u32 s69, s69, {CHMAX}")
    e("    s_and_b32 s77, s76, 1")
    e("    s_lshl_b32 s77, s77, 7")
    e("    s_lshr_b32 s76, s76, 3")
    e("    s_add_u32 s76, s76, s77")
    e("    s_lshl_b32 s77, s3, 3")
    e("    s_add_u32 s76, s76, s77")
    e("    s_lshl_b32 s70, s76, 15")
    e(f"    s_mov_b32 s68, {NINL}")
    e("OVLOAD:")
    e("    v_add_u32 v4, s75, v0")
    e("    v_and_b32 v4, 63, v4")
    e("    v_add_u32 v4, s68, v4")
    e("    v_lshlrev_b32 v5, 3, v4")
    e(f"    buffer_load_dwordx2 v[28:29], v5, {R(S_OVF)}, s70 offen {SC}")
    e("    s_waitcnt vmcnt(0)")
    e(f"    v_mul_u32_u24 v30, {TM}, v29")
    e("    v_lshrrev_b32 v31, 20, v30")
    e("    v_cmp_gt_u32 vcc, s69, v4")
    e("    v_cmp_eq_u32 s[76:77], s2, v31")
    e("    s_and_b64 vcc, s[76:77], vcc")
    e(f"    s_and_b64 s[76:77], vcc, {PEND(7)}")
    e("    s_cbranch_scc1 OVFULL")
    e(f"    s_or_b64 {PEND(7)}, {PEND(7)}, vcc")
    e("    s_add_u32 s68, s68, 64")
    e("    s_add_u32 s75, s75, 16")
    e("    s_mov_b64 exec, vcc")
    decode_full(28, 29, 7)
    e("    s_mov_b64 exec, -1")
    e("    s_branch OVL")
    e("OVFULL:")
    e(f"    v_mov_b32 v2, {MORE}")
    e("    ds_write_b32 v2, v1")
    e("OVDONE:")
    e(f"    s_mov_b64 exec, {PEND(7)}")
    e("    ds_add_rtn_u32 v39, v47, v1")
    e("    s_mov_b64 exec, -1")
    e("    s_branch CDONE")
    e("SLOWW:")
    e("    s_waitcnt lgkmcnt(0)")
    for s in range(8):
        e(f"    s_mov_b64 exec, {PEND(s)}")
        e(f"    v_lshl_add_u32 v{20+s}, v{32+s}, 2, v{20+s}")
        e(f"    v_subrev_u32 v3, s0, v{40+s}")
        e("    v_lshrrev_b32 v3, 6, v3")
        e(f"    v_mul_u32_u24 v3, {TSTR}, v3")
        e(f"    v_add_u32 v3, {LISTS + CAPT*4}, v3")
        e(f"    v_cmp_lt_u32 vcc, v{20+s}, v3")
        e(f"    s_andn2_b64 {PEND(s)}, exec, vcc")
        e("    s_mov_b64 exec, vcc")
        e(f"    ds_write2st64_b32 v{20+s}, v{48+s}, v{56+s} offset0:0 offset1:5")
    e("    s_mov_b64 exec, -1")
    e(f"    v_mov_b32 v3, {MORE}")
    e("    ds_write_b32 v3, v1")
    e("    s_branch WDONE")
    e("E_IRR:")
    zero_b_counters(256)
    e("    v_lshlrev_b32 v9, 4, v0")
    e("    v_lshlrev_b32 v31, 3, v0")
    e("    s_waitcnt lgkmcnt(0)")
    e("    s_branch E_BAR")
    e("F_GETW:")
    w_frags()
    e("    s_waitcnt lgkmcnt(0)")
    e("    s_branch F_HAVEW")
    e("CODE_END:")


def spin_kernel():
    na, nb_, mode, mult, wlo, whi = (SPIN.split(",") + ["0", "15"])[:6]
    wlo, whi = int(wlo), int(whi)
    ia, ib, mode, mult = STL.index(na), STL.index(nb_), int(mode), int(mult)
    init = "0x80000000" if mode == 0 else "0x7fffffff" if mode == 1 else "0"
    e(".globl sgc_spin_kernel")
    e(".p2align 8")
    e(".type sgc_spin_kernel,@function")
    e("sgc_spin_kernel:")
    e("    s_memrealtime s[30:31]")
    e("    s_cmp_ge_u32 s2, 1")
    e("    s_cbranch_scc1 SP_END")
    e("    s_load_dwordx8 s[12:19], s[0:1], 32")
    e("    v_lshlrev_b32 v1, 6, v0")
    e("    v_mov_b32 v4, 0x7fffffff")
    e(f"    v_mov_b32 v5, {init}")
    e("    s_mov_b32 s23, 0x20000")
    e("    s_waitcnt lgkmcnt(0)")
    srd(20, 18, 19, 1 << 20, WS_STAMP)
    e("    s_mov_b32 s24, 0")
    e("SP_RD:")
    e(f"    buffer_load_dword v2, v1, s[20:23], s24 offen offset:{4*ia}")
    e(f"    buffer_load_dword v3, v1, s[20:23], s24 offen offset:{4*ib}")
    e("    s_add_u32 s24, s24, 4096")
    e("    s_cmp_lt_u32 s24, 0x40000")
    e("    s_waitcnt vmcnt(0)")
    e("    v_subrev_u32 v2, s30, v2")
    e("    v_subrev_u32 v3, s30, v3")
    e("    v_min_i32 v4, v4, v2")
    e("    %s v5, v5, v3" % ("v_max_i32" if mode == 0 else "v_min_i32" if mode == 1 else "v_add_u32"))
    e("    s_cbranch_scc1 SP_RD")
    e("    s_mov_b32 s26, 0x7fffffff")
    e(f"    s_mov_b32 s27, {init}")
    e("    s_nop 1")
    for l in range(64):
        e(f"    v_readlane_b32 s28, v4, {l}")
        e(f"    v_readlane_b32 s29, v5, {l}")
        e("    s_min_i32 s26, s26, s28")
        if wlo <= (l & 15) <= whi:
            e("    %s s27, s27, s29" % ("s_max_i32" if mode == 0 else "s_min_i32" if mode == 1 else "s_add_u32"))
    if mode == 2:
        e("    s_ashr_i32 s27, s27, %d" % (8 + (whi - wlo + 1).bit_length() - 1))
    e("    s_sub_i32 s26, s27, s26")
    e("    s_max_i32 s26, s26, 0")
    e("    s_min_i32 s26, s26, 20000")
    e(f"    s_mul_i32 s26, s26, {mult}")
    e("    s_add_u32 s26, s26, 10000")
    e("SP_LOOP:")
    e("    s_memrealtime s[28:29]")
    e("    s_waitcnt lgkmcnt(0)")
    e("    s_sub_u32 s28, s28, s30")
    e("    s_cmp_lt_u32 s28, s26")
    e("    s_cbranch_scc1 SP_LOOP")
    e("SP_END:")
    e("    s_endpgm")


def desc(name, vg, sg):
    e(".p2align 6")
    e(f".amdhsa_kernel {name}")
    e(f"  .amdhsa_next_free_vgpr {vg}")
    e(f"  .amdhsa_next_free_sgpr {sg}")
    e(f"  .amdhsa_accum_offset {vg}")
    e("  .amdhsa_group_segment_fixed_size 0")
    e("  .amdhsa_kernarg_size 64")
    e("  .amdhsa_user_sgpr_count 2")
    e("  .amdhsa_user_sgpr_kernarg_segment_ptr 1")
    e("  .amdhsa_system_sgpr_workgroup_id_x 1")
    e(".end_amdhsa_kernel")


SPIN = OPT.get("spin")
if SPIN:
    e(f"; @launch kernel={NAME} grid=(256,1,1) block=(1024,1,1) lds={LDS}")
    e("; @launch kernel=sgc_spin_kernel grid=(1,1,1) block=(64,1,1) lds=0")
else:
    e(f"; @launch grid=(256,1,1) block=(1024,1,1) lds={LDS}")
e('.amdgcn_target "amdgcn-amd-amdhsa--gfx950"')
e(".text")
body()
if SPIN:
    spin_kernel()
e('.section .rodata,"a"')
if SPIN:
    desc("sgc_spin_kernel", 8, 40)
desc(NAME, 128, 102 if DIAG else 78)
open(OUT, "w").write("\n".join(L) + "\n")
```

```python
import sys

OUT = [a for a in sys.argv[1:] if not a.startswith("--")][0]
OPT = dict(a[2:].split("=") for a in sys.argv[1:] if a.startswith("--") and "=" in a)
NAME = "standalone__spectral_conv_sgc__graph_kernel"
DEFST = "start,a_bar1,a_bar2,g1_exit,b_lines,b_bar1,b_bar2,h1_done,g2_ack,g2_exit,h2_done,end"
STL = OPT.get("st", DEFST if "--diag" in sys.argv else "").split(",")
STL = [s for s in STL if s]
DIAG = len(STL) > 0


def I(name, dflt):
    return int(OPT.get(name, dflt))


N = 50000
E = 850000
ET = 800000
TM = 5368
CHMAX = 13 * 256
SLOTCAP = 24
NINL = 7
WS_OVT = 8 << 20
WS_FLAG = WS_OVT + 131072
WS_H1 = WS_OVT + (1 << 20)
WS_OVF = 16 << 20
OVF_STRIDE = 32768
WS_STAMP = 32 << 20
TABBYTES = N * 128
PADV = 0x40000000

K1_LS = 132
K1_CNT = 256 * K1_LS
K1_OVC = 1024
K1_OVT = K1_CNT + 4096
K1_NON = K1_OVT + 64
RING = int(OPT.get("ring", 0))
KMAX = 3 if RING else 4
STGW = 3072 if RING else 4096
BUFB = 16 * STGW
LISTS = 2 * BUFB if RING else 65536
CAPT = 320
TSTR = CAPT * 8
CNTB = LISTS + 16 * TSTR + 256
BASES = CNTB + 1024
MORE = BASES + 1024
WL = MORE + 64
LDS = WL + 8192

SC = "sc1"
ST_OUT = OPT.get("stout", "nt")
SPINMAX = I("spinmax", 20000000)
NREP = 8
LSTR = 128
NB = I("nb", 10 if RING else 8)
TSH = I("tsh", 20)
PFS = I("pfstep", 80)
PF4 = I("pf4", 0)
PRIO = I("prio", 1)
GATE = I("gate", 2)
OPTB = I("optb", 0)
FL2 = 65536

L = []


def e(s=""):
    L.append(s)


def srd(d, lo, hi, nbytes, off=0):
    if off == 0:
        e(f"    s_mov_b32 s{d}, s{lo}")
        e(f"    s_mov_b32 s{d+1}, s{hi}")
    elif off > 0:
        e(f"    s_add_u32 s{d}, s{lo}, {off}")
        e(f"    s_addc_u32 s{d+1}, s{hi}, 0")
    else:
        e(f"    s_sub_u32 s{d}, s{lo}, {-off}")
        e(f"    s_subb_u32 s{d+1}, s{hi}, 0")
    e(f"    s_mov_b32 s{d+2}, {nbytes}")
    e(f"    s_mov_b32 s{d+3}, s23")


S_SRC, S_DST, S_NRM, S_WS, S_OVF, S_GAT, S_STO, S_DBG = 20, 24, 28, 32, 36, 40, 44, 48
S_OUT, S_GH = S_SRC, S_DST


def R(d):
    return f"s[{d}:{d+3}]"


STAMP_BASE = 78


def stamp(name):
    if "c_" + name in STL:
        i = STL.index("c_" + name)
        e(f"    s_memtime s[{STAMP_BASE+2*i}:{STAMP_BASE+2*i+1}]")
    if name in STL:
        i = STL.index(name)
        e(f"    s_memrealtime s[{STAMP_BASE+2*i}:{STAMP_BASE+2*i+1}]")


def stamp2(n1, n2):
    if n1 in STL or n2 in STL:
        n = len(L)
        e("    s_bitcmp1_b32 s71, 0")
        e(f"    s_cbranch_scc1 ST{n}_B")
        stamp(n1)
        e(f"    s_branch ST{n}_C")
        e(f"ST{n}_B:")
        stamp(n2)
        e(f"ST{n}_C:")


def stamp_out():
    if not DIAG:
        return
    e("    s_waitcnt vmcnt(0) lgkmcnt(0)")
    stamp("end")
    e("    s_waitcnt lgkmcnt(0)")
    e("    s_mov_b64 exec, 1")
    srd(28, 18, 19, 1 << 20, WS_STAMP)
    e("    s_lshl_b32 s76, s2, 4")
    e("    s_add_u32 s76, s76, s3")
    e("    s_lshl_b32 s76, s76, 6")
    e("    v_mov_b32 v2, s76")
    for i in range(len(STL)):
        e(f"    v_mov_b32 v3, s{STAMP_BASE+2*i}")
        e(f"    buffer_store_dword v3, v2, s[28:31], 0 offen offset:{4*i}")
    e("    s_getreg_b32 s76, hwreg(HW_REG_XCC_ID)")
    e("    v_mov_b32 v3, s76")
    e("    buffer_store_dword v3, v2, s[28:31], 0 offen offset:56")
    e("    s_lshl_b32 s76, s48, 16")
    e("    s_or_b32 s76, s76, s74")
    e("    v_mov_b32 v3, s76")
    e("    buffer_store_dword v3, v2, s[28:31], 0 offen offset:60")
    e("    v_mov_b32 v3, s50")
    e("    buffer_store_dword v3, v2, s[28:31], 0 offen offset:48")
    e("    v_mov_b32 v3, s51")
    e("    buffer_store_dword v3, v2, s[28:31], 0 offen offset:52")


def PEND(s):
    return f"s[{52+2*s}:{53+2*s}]"


def prefetch_common(cnt):
    if cnt == 0:
        return
    e("    s_lshr_b32 s76, s2, 3")
    e("    s_lshl_b32 s76, s76, 4")
    e("    s_add_u32 s76, s76, s3")
    e(f"    s_mul_i32 s76, s76, {cnt}")
    e("    v_and_b32 v2, 63, v0")
    e("    v_add_u32 v2, s76, v2")
    e("    v_lshrrev_b32 v3, 5, v2")
    e("    v_and_b32 v2, 31, v2")
    e(f"    v_mul_u32_u24 v3, {PFS}, v3")
    e("    v_add_lshl_u32 v2, v2, v3, 7")
    e(f"    s_mov_b32 exec_lo, {((1 << cnt) - 1) & 0xffffffff}")
    e(f"    s_mov_b32 exec_hi, {((1 << cnt) - 1) >> 32}")
    e(f"    buffer_load_dword v126, v2, {R(S_GAT)}, 0 offen offset:3072")
    e("    s_mov_b64 exec, -1")


def own_rows(srdn, flags):
    e("    s_and_b64 exec, s[14:15], 0xffff")
    e(f"    buffer_load_dword v126, v121, {R(srdn)}, 0 offen {flags}")
    e("    s_mov_b64 exec, -1")


def poison():
    n = len(L)
    e("    s_bitcmp1_b32 s71, 0")
    e(f"    s_cbranch_scc1 POI{n}")
    for i in range(4):
        e(f"    v_mov_b32 v{100+i}, -1")
    e("    s_mov_b64 exec, s[14:15]")
    e(f"    buffer_store_dwordx4 v[100:103], v121, {R(S_STO)}, 0 offen sc1")
    e(f"    buffer_store_dwordx4 v[100:103], v121, {R(S_STO)}, 0 offen offset:64 sc1")
    e("    s_mov_b64 exec, -1")
    e(f"POI{n}:")


def poll_flags(p, done):
    e(f"    s_mov_b32 s75, {SPINMAX}")
    e(f"{p}_POLL:")
    e(f"    buffer_load_dwordx4 v[4:7], v8, {R(S_WS)}, s77 offen sc1")
    e("    s_sub_u32 s75, s75, 1")
    e("    s_cmp_eq_u32 s75, 0")
    e("    s_waitcnt vmcnt(0)")
    e(f"    s_cbranch_scc1 {done}")
    e("    v_xor_b32 v4, v4, v125")
    e("    v_xor_b32 v5, v5, v125")
    e("    v_xor_b32 v6, v6, v125")
    e("    v_xor_b32 v7, v7, v125")
    e("    v_or3_b32 v4, v4, v5, v6")
    e("    v_or_b32 v4, v4, v7")
    e("    v_cmp_ne_u32 vcc, 0, v4")
    e(f"    s_cbranch_vccnz {p}_POLL")


def grid_barrier(p, book):
    if not OPTB:
        book()
        e("    s_waitcnt vmcnt(0)")
        stamp(p + "_ack")
    e("    s_barrier")
    e("    s_cmp_lg_u32 s3, 0")
    e(f"    s_cbranch_scc1 {p}_NOF")
    stamp(p + "_arr")
    e(f"    s_mov_b64 exec, {(1 << NREP) - 1}")
    e(f"    buffer_store_dword v125, v2, {R(S_WS)}, s76 offen sc1")
    e("    s_mov_b64 exec, -1")
    e(f"{p}_NOF:")
    if OPTB:
        book()
        e("    s_waitcnt vmcnt(0)")
        stamp(p + "_ack")
    own_rows(S_STO, "sc1")
    e(f"    s_cmp_lg_u32 s3, {I('pollw', 0)}")
    e(f"    s_cbranch_scc1 {p}_WAIT")
    poll_flags(p, p + "_WAIT")
    e(f"{p}_WAIT:")
    e("    s_barrier")
    stamp(p + "_exit")
    if OPTB:
        e("    s_cmp_lg_u32 s3, 0")
        e(f"    s_cbranch_scc1 {p}_F2")
        e(f"    s_add_u32 s76, s76, {FL2}")
        e(f"    s_mov_b64 exec, {(1 << NREP) - 1}")
        e(f"    buffer_store_dword v125, v2, {R(S_WS)}, s76 offen sc1")
        e("    s_mov_b64 exec, -1")
        e(f"{p}_F2:")


def barrier_addrs():
    rstr = 64 * LSTR
    e("    s_lshr_b32 s76, s2, 2")
    e(f"    s_mul_i32 s76, s76, {LSTR}")
    e("    s_and_b32 s77, s2, 3")
    e("    s_lshl_b32 s77, s77, 2")
    e("    s_add_u32 s76, s76, s77")
    e(f"    s_add_u32 s76, s76, {WS_FLAG}")
    e(f"    v_mul_u32_u24 v2, {rstr}, v0")
    e("    s_getreg_b32 s77, hwreg(HW_REG_XCC_ID, 0, 4)")
    e(f"    s_and_b32 s77, s77, {NREP-1}")
    e(f"    s_mul_i32 s77, s77, {rstr}")
    e(f"    s_add_u32 s77, s77, {WS_FLAG}")
    e("    v_and_b32 v8, 63, v0")
    e(f"    v_mul_u32_u24 v8, {LSTR}, v8")


def decode_key(rec, meta, k, s):
    ca = 40 + s
    if I("rot", 6250):
        e(f"    v_add_u32 v2, s27, v{rec}")
        e(f"    v_bfe_u32 v2, v2, 12, 4")
    else:
        e(f"    v_bfe_u32 v2, v{rec}, 12, 4")
    e(f"    v_and_b32_sdwa v3, v{meta}, v99 dst_sel:DWORD dst_unused:UNUSED_PAD src0_sel:BYTE_{k} src1_sel:DWORD")
    e(f"    v_or_b32 v2, v2, v3")
    e(f"    v_lshl_add_u32 v{ca}, v2, 2, s0")


def decode_data(rec, meta, k, s):
    d0, d1 = 48 + s, 56 + s
    e(f"    v_lshlrev_b32_sdwa v{d0}, v124, v{rec} dst_sel:DWORD dst_unused:UNUSED_PAD src0_sel:DWORD src1_sel:WORD_0")
    if OPT.get("srcmask"):
        e(f"    v_and_b32 v{d0}, {OPT['srcmask']}, v{d0}")
    e(f"    v_mov_b32 v{d1}, v{rec}")
    e(f"    v_lshlrev_b16_sdwa v{d1}, v{meta}, v1 dst_sel:WORD_0 dst_unused:UNUSED_PRESERVE src0_sel:BYTE_{k} src1_sel:DWORD")


def decode_full(rec, dst, s):
    e(f"    v_mul_u32_u24 v30, {TM}, v{dst}")
    e("    v_lshrrev_b32 v30, 12, v30")
    e(f"    v_bfi_b32 v30, 15, v{dst}, v30")
    decode_key(rec, 30, 0, s)
    decode_data(rec, 30, 0, s)


def zero_b_counters(n):
    e("    v_lshlrev_b32 v2, 2, v0")
    e(f"    v_add_u32 v2, {CNTB}, v2")
    e("    v_mov_b32 v3, 0")
    e(f"    v_cmp_gt_u32 vcc, {n}, v0")
    e("    s_and_saveexec_b64 s[76:77], vcc")
    e("    ds_write_b32 v2, v3")
    e("    s_mov_b64 exec, -1")


def phase_a():
    stamp("start")
    e("    s_load_dwordx2 s[24:25], s[0:1], 16")
    e("    s_load_dwordx2 s[20:21], s[0:1], 8")
    e("    s_load_dwordx2 s[28:29], s[0:1], 24")
    if I("cpf", 1):
        e("    s_getpc_b64 s[6:7]")
        e("CPF_PC:")
        e("    v_cmp_gt_u32 vcc, (CODE_END-CPF_PC)/128, v0")
        e("    v_lshlrev_b32 v2, 7, v0")
        e("    s_and_saveexec_b64 s[8:9], vcc")
        e("    s_cbranch_execz CPF_D")
        e("    global_load_dword v126, v2, s[6:7] offset:124")
        e("CPF_D:")
        e("    s_mov_b64 exec, -1")
    e("    s_cmp_ge_u32 s2, 256")
    e("    s_cbranch_scc1 END")
    e("    v_lshrrev_b32 v3, 6, v0")
    e("    v_and_b32 v2, 63, v0")
    e("    s_mov_b32 s23, 0x20000")
    e(f"    s_mov_b32 s22, {E*4}")
    e("    v_lshlrev_b32 v4, 18, v3")
    e("    s_mov_b64 s[26:27], s[22:23]")
    e("    v_lshl_or_b32 v4, v2, 4, v4")
    e("    s_lshr_b32 s30, s22, 1")
    e("    s_mov_b32 s31, s23")
    e("    v_lshrrev_b32 v5, 1, v4")
    e("    s_lshl_b32 s68, s2, 10")
    e("    v_cmp_gt_u32 vcc, 13, v3")
    e("    s_lshl_b32 s69, s2, 9")
    e("    s_waitcnt lgkmcnt(0)")
    e("    s_cbranch_vccz A_NOLD")
    LI = OPT.get("ldin", "")
    e(f"    buffer_load_dwordx4 v[12:15], v4, {R(S_DST)}, s68 offen {LI}")
    e(f"    buffer_load_dwordx4 v[16:19], v4, {R(S_SRC)}, s68 offen {LI}")
    e(f"    buffer_load_dwordx2 v[20:21], v5, {R(S_NRM)}, s69 offen {LI}")
    e("A_NOLD:")
    stamp("a_issue")
    e("    s_load_dwordx8 s[12:19], s[0:1], 32")
    e("    s_load_dwordx2 s[4:5], s[0:1], 0")
    e("    v_readfirstlane_b32 s3, v3")
    e("    v_lshlrev_b32 v9, 2, v0")
    e("    v_mov_b32 v6, 0")
    e(f"    ds_write_b32 v9, v6 offset:{K1_CNT}")
    e("    v_mov_b32 v24, -1")
    e("    v_mov_b32 v25, -1")
    e("    v_mov_b32 v26, -1")
    e("    v_mov_b32 v27, -1")
    e("    v_lshlrev_b32 v7, 4, v0")
    e("    ds_write_b128 v7, v[24:27]")
    e("    ds_write_b128 v7, v[24:27] offset:16384")
    e("    v_add_u32 v4, s68, v4")
    e("    v_lshrrev_b32 v8, 2, v4")
    e(f"    v_cmp_gt_u32 s[72:73], s22, v4")
    e(f"    v_subrev_u32 v8, {ET}, v8")
    e("    v_mov_b32 v1, 1")
    e("    v_and_b32 v10, 7, v0")
    e("    s_cmp_lt_u32 s3, 13")
    e("    s_cbranch_scc1 A_BAR")
    e("    s_cmp_lt_u32 s3, 14")
    e("    s_cbranch_scc1 A_H13")
    e("    s_cmp_eq_u32 s3, 14")
    e("    s_cbranch_scc1 A_H14")
    e(f"    ds_write_b128 v7, v[24:27] offset:{32768 - 15*1024}")
    e("    v_and_b32 v5, 60, v9")
    e("    v_mov_b32 v7, 0xffff")
    e(f"    ds_write_b32 v5, v7 offset:{K1_OVT}")
    e("    s_branch A_BAR")
    e("A_H14:")
    e(f"    v_lshlrev_b32 v2, {TSH}, v2")
    e("    s_waitcnt lgkmcnt(0)")
    srd(S_WS, 18, 19, WS_H1 + TABBYTES, 0)
    if I("wstouch", 1):
        e(f"    buffer_load_dword v126, v2, {R(S_WS)}, 0 offen sc1")
    srd(S_GAT, 4, 5, TABBYTES)
    e(f"    buffer_load_dword v126, v2, {R(S_GAT)}, 0 offen")
    srd(S_OVF, 14, 15, TABBYTES)
    e(f"    buffer_load_dword v126, v2, {R(S_OVF)}, 0 offen sc1")
    e("    s_branch A_BAR")
    e("A_H13:")
    e(f"    s_mov_b32 s76, {WS_FLAG}")
    e("    s_lshl_b32 s77, s2, 9")
    e(f"    s_add_u32 s77, s77, {WS_OVT}")
    e("    v_lshlrev_b32 v2, 7, v2")
    e("    s_waitcnt lgkmcnt(0)")
    srd(S_WS, 18, 19, WS_H1 + TABBYTES, 0)
    e(f"    buffer_load_dword v125, v6, {R(S_WS)}, s76 offen sc1")
    if I("ptouch", 3) & 1:
        e("    s_mov_b64 exec, 15")
        e(f"    buffer_load_dword v126, v2, {R(S_WS)}, s77 offen sc1")
        e("    s_mov_b64 exec, -1")
    e("A_BAR:")
    e("    s_waitcnt lgkmcnt(0)")
    e("    s_barrier")
    stamp("a_bar1")
    srd(S_WS, 18, 19, WS_H1 + TABBYTES, 0)
    if I("perm", 1):
        e("    s_lshr_b32 s76, s2, 6")
        e("    s_add_u32 s77, s76, s2")
        e("    s_and_b32 s77, s77, 7")
        e("    s_lshl_b32 s77, s77, 5")
        e("    s_add_u32 s77, s77, s76")
        e("    s_bfe_u32 s76, s2, 0x30003")
        e("    s_lshl_b32 s76, s76, 2")
        e("    s_add_u32 s65, s77, s76")
    else:
        e("    s_mov_b32 s65, s2")
    e("    s_cmp_lt_u32 s3, 12")
    e("    s_cbranch_scc1 A_EDGES")
    e("    v_bfe_u32 v2, v0, 4, 4")
    e("    s_lshl_b32 s76, s65, 4")
    e("    v_add_u32 v2, s76, v2")
    e("    v_mul_u32_u24 v3, 50006, v2")
    e("    v_lshrrev_b32 v3, 12, v3")
    e("    v_sub_u32 v4, v0, v3")
    e("    v_and_b32 v4, 15, v4")
    e("    v_add_u32 v115, v3, v4")
    e(f"    v_add_u32 v4, {ET}, v115")
    e("    v_lshlrev_b32 v5, 2, v4")
    e("    v_lshlrev_b32 v4, 1, v4")
    e(f"    buffer_load_dword v112, v5, {R(S_DST)}, 0 offen")
    e(f"    buffer_load_dword v113, v5, {R(S_SRC)}, 0 offen")
    e(f"    buffer_load_ushort v114, v4, {R(S_NRM)}, 0 offen")
    e(f"    v_mul_u32_u24 v4, {TM}, v115")
    e("    v_lshrrev_b32 v4, 16, v4")
    e("    v_cmp_eq_u32 s[66:67], v4, v2")
    e(f"    v_cmp_gt_u32 vcc, {N}, v115")
    e("    s_and_b64 s[66:67], s[66:67], vcc")
    e("    s_cmp_eq_u32 s3, 12")
    e("    s_cbranch_scc1 A_EDGES12")
    srd(S_STO, 12, 13, 8192)
    e(f"    v_subrev_u32 v2, {13*64}, v0")
    e("    v_lshlrev_b32 v2, 4, v2")
    e(f"    buffer_load_dwordx4 v[100:103], v2, {R(S_STO)}, 0 offen")
    e(f"    buffer_load_dwordx4 v[104:107], v2, {R(S_STO)}, 0 offen offset:3072")
    e("    v_add_u32 v3, 6144, v2")
    e(f"    buffer_load_dwordx4 v[108:111], v3, {R(S_STO)}, 0 offen")
    e("    s_cmp_lg_u32 s3, 13")
    e("    s_cbranch_scc1 A_OUT")
    e(f"    s_waitcnt vmcnt({6 + (I('ptouch', 3) & 1)})")
    e("    v_add_u32 v125, 0x01010101, v125")
    e(f"    ds_write2_b32 v6, v125, v125 offset0:{K1_NON//4 - 0} offset1:{K1_NON//4 + 1}" if K1_NON // 4 < 255 else f"    v_mov_b32 v4, v125")
    e("    v_mov_b32 v5, v125")
    e(f"    ds_write_b64 v6, v[4:5] offset:{K1_NON}")
    e("    s_branch A_OUT")
    e("A_EDGES12:")
    e("    s_waitcnt vmcnt(5)")
    e("    s_branch A_EDGES2")
    e("A_EDGES:")
    e("    s_waitcnt vmcnt(2)")
    e("A_EDGES2:")
    e("    s_mov_b64 exec, s[72:73]")
    e("    s_mov_b32 s70, 0xffff0000")
    stamp("a_dst")
    for k in range(4):
        e(f"    v_mul_u32_u24 v{24+k}, {TM}, v{12+k}")
        e(f"    v_add_u32 v2, {k}, v8")
        e(f"    v_lshrrev_b32 v{28+k}, 20, v{24+k}")
        e(f"    v_cmp_ne_u32 s[{52+2*k}:{53+2*k}], v{12+k}, v2")
        e(f"    v_lshlrev_b32 v{36+k}, 2, v{28+k}")
    for k in range(4):
        e(f"    s_mov_b64 exec, s[{52+2*k}:{53+2*k}]")
        e(f"    ds_add_rtn_u32 v{32+k}, v{36+k}, v1 offset:{K1_CNT}")
    e("    s_mov_b64 exec, s[72:73]")
    for k in range(4):
        e(f"    v_lshrrev_b32 v{24+k}, 12, v{24+k}")
        e(f"    v_mul_u32_u24 v{28+k}, {K1_LS}, v{28+k}")
        e(f"    v_bfi_b32 v{24+k}, 15, v{12+k}, v{24+k}")
    e("    s_mov_b64 s[60:61], 0")
    FIT = ["s[6:7]", "s[8:9]", "s[10:11]", "s[62:63]"]
    for k in range(4):
        e(f"    s_mov_b64 exec, s[{52+2*k}:{53+2*k}]")
        e(f"    s_waitcnt lgkmcnt(3)")
        e(f"    v_cmp_gt_u32 vcc, {SLOTCAP}, v{32+k}")
        e(f"    v_and_b32 v2, 7, v{32+k}")
        e(f"    v_lshrrev_b32 v3, 3, v{32+k}")
        e(f"    s_andn2_b64 s[{52+2*k}:{53+2*k}], exec, vcc")
        e(f"    s_or_b64 s[60:61], s[60:61], s[{52+2*k}:{53+2*k}]")
        e(f"    s_mov_b64 {FIT[k]}, vcc")
        e("    s_mov_b64 exec, vcc")
        e(f"    v_lshl_add_u32 v2, v2, 4, v{28+k}")
        e(f"    v_lshl_add_u32 v{36+k}, v3, 2, v2")
        e("    v_add_u32 v5, v3, v2")
        e(f"    ds_write_b8 v5, v{24+k} offset:12")
    e("    s_mov_b64 exec, s[72:73]")
    e("    s_cmp_eq_u32 s3, 12")
    e("    s_waitcnt vmcnt(3)")
    e("    s_cbranch_scc1 A_ALL")
    e("    s_waitcnt vmcnt(0)")
    e("A_ALL:")
    stamp("a_all")
    for k in range(4):
        if k % 2 == 0:
            e(f"    v_lshl_or_b32 v{16+k}, v{20+k//2}, 16, v{16+k}")
        else:
            e(f"    v_and_or_b32 v{16+k}, v{20+k//2}, s70, v{16+k}")
    for k in range(4):
        e(f"    s_mov_b64 exec, {FIT[k]}")
        e(f"    ds_write_b32 v{36+k}, v{16+k}")
    e("    s_cmp_lg_u64 s[60:61], 0")
    e("    s_cbranch_scc1 A_OVER")
    e("A_OUT:")
    e("    s_mov_b64 exec, -1")
    e("    v_lshrrev_b32 v2, 3, v0")
    e("    s_lshl_b32 s62, s3, 3")
    e("    v_add_u32 v2, s62, v2")
    e(f"    v_mul_u32_u24 v4, {K1_LS}, v2")
    e("    v_lshl_add_u32 v4, v10, 4, v4")
    e(f"    v_add_u32 v5, {8*K1_LS}, v4")
    e("    v_lshlrev_b32 v7, 15, v2")
    e("    v_lshl_add_u32 v7, v10, 4, v7")
    e("    s_lshl_b32 s62, s2, 7")
    e(f"    s_add_u32 s63, s62, {8*32768}")
    e("    s_mov_b32 s64, 0xffffff")
    e("    v_and_b32 v3, 6, v10")
    e("    s_waitcnt lgkmcnt(0)")
    stamp("a_pre2")
    e("    s_barrier")
    stamp("a_bar2")
    e(f"    ds_read_u8 v127, v10 offset:{K1_NON}")
    e("    ds_read2_b32 v[12:13], v4 offset0:0 offset1:1")
    e("    ds_read2_b32 v[14:15], v4 offset0:2 offset1:3")
    e("    ds_read2_b32 v[16:17], v5 offset0:0 offset1:1")
    e("    ds_read2_b32 v[18:19], v5 offset0:2 offset1:3")
    e(f"    ds_read_u16 v120, v3 offset:{K1_NON}")
    e(f"    ds_read_b32 v125, v6 offset:{K1_NON}")
    e("    s_waitcnt lgkmcnt(6)")
    e("    v_lshlrev_b32 v20, 24, v127")
    e("    s_waitcnt lgkmcnt(4)")
    e("    v_and_or_b32 v15, v15, s64, v20")
    e(f"    buffer_store_dwordx4 v[12:15], v7, {R(S_WS)}, s62 offen {SC}")
    e("    s_waitcnt lgkmcnt(2)")
    e("    v_and_or_b32 v19, v19, s64, v20")
    e(f"    buffer_store_dwordx4 v[16:19], v7, {R(S_WS)}, s63 offen {SC}")
    e(f"    s_cmp_lg_u32 s3, {I('ovtw', 0)}")
    e("    s_cbranch_scc1 A_FIN")
    e("    v_lshlrev_b32 v2, 3, v10")
    e(f"    ds_read_b64 v[24:25], v2 offset:{K1_OVT}")
    e("    v_bfe_u32 v3, v0, 3, 3")
    e("    v_lshl_add_u32 v2, v3, 14, v2")
    e(f"    ds_read_b32 v22, v6 offset:{K1_CNT+K1_OVC}")
    e("    v_cmp_eq_u32 vcc, 7, v10")
    e("    s_lshl_b32 s62, s2, 6")
    e(f"    s_add_u32 s62, s62, {WS_OVT}")
    e("    s_waitcnt lgkmcnt(0)")
    e("    v_cndmask_b32 v24, v24, v22, vcc")
    e("    v_lshl_or_b32 v25, v120, 16, v25")
    e(f"    buffer_store_dwordx2 v[24:25], v2, {R(S_WS)}, s62 offen {SC}")
    e("A_FIN:")
    stamp("a_st")


def a_overflow():
    e("A_OVER:")
    srd(S_OVF, 18, 19, 256 * OVF_STRIDE, WS_OVF)
    e("    s_lshl_b32 s62, s2, 15")
    for k in range(4):
        e(f"    s_mov_b64 exec, s[{52+2*k}:{53+2*k}]")
        e(f"    s_cbranch_execz A_OV{k}")
        e(f"    v_mov_b32 v2, {K1_OVC}")
        e(f"    ds_add_rtn_u32 v3, v2, v1 offset:{K1_CNT}")
        e(f"    v_mov_b32 v4, v{16+k}")
        e(f"    v_mov_b32 v5, v{12+k}")
        e("    s_waitcnt lgkmcnt(0)")
        e(f"    v_cmp_gt_u32 vcc, {NINL}, v3")
        e("    v_lshlrev_b32 v3, 3, v3")
        e("    s_andn2_b64 s[76:77], exec, vcc")
        e("    s_mov_b64 exec, vcc")
        e(f"    ds_write_b64 v3, v[4:5] offset:{K1_OVT}")
        e("    s_mov_b64 exec, s[76:77]")
        e(f"    s_cbranch_execz A_OV{k}")
        e(f"    buffer_store_dwordx2 v[4:5], v3, {R(S_OVF)}, s62 offen {SC}")
        e("    s_waitcnt vmcnt(0)")
        e(f"A_OV{k}:")
    e("    s_branch A_OUT")


def setup():
    srd(S_OVF, 18, 19, 256 * OVF_STRIDE, WS_OVF)
    srd(S_GAT, 4, 5, TABBYTES + 3072, -3072)
    srd(S_STO, 18, 19, TABBYTES, WS_H1)
    e("    s_mov_b32 s20, s14")
    e("    s_mov_b32 s21, s15")
    e(f"    s_mov_b32 s22, {TABBYTES}")
    e(f"    s_add_u32 s24, s18, {WS_H1 - 3072}")
    e("    s_addc_u32 s25, s19, 0")
    if I("rot", 6250):
        e("    s_and_b32 s27, s2, 7")
        e(f"    s_mul_i32 s27, s27, {I('rot', 6250)}")
        e("    s_sub_u32 s27, 0x10000, s27")
    e("    s_mov_b32 s2, s65")
    e("    v_mov_b32 v99, 0xf0")
    e("    v_mov_b32 v124, 7")
    e(f"    s_mov_b32 s0, {CNTB}")
    e("    s_mov_b32 s1, 0x07060302")
    e("    s_mov_b32 s71, 0")
    if DIAG:
        e("    s_mov_b32 s48, 0")
        e("    s_mov_b64 s[50:51], 0")
    zero_b_counters((WL - CNTB) // 4)
    e("    v_and_b32 v2, 63, v0")
    e("    v_bfe_u32 v3, v2, 4, 1")
    e("    v_xor_b32 v3, v3, v10")
    e("    v_lshlrev_b32 v83, 4, v3")
    e("    v_add_u32 v80, 3072, v83")
    e("    v_add_u32 v82, 1024, v83")
    e("    v_xor_b32 v83, 64, v83")
    e("    v_add_u32 v81, 2048, v83")
    e("    v_and_b32 v92, 15, v0")
    e("    v_lshrrev_b32 v11, 4, v2")
    e("    v_bfe_u32 v6, v2, 2, 2")
    e("    v_and_b32 v7, 3, v2")
    e("    v_lshl_add_u32 v84, v11, 3, v6")
    e("    v_lshlrev_b32 v84, 7, v84")
    e("    v_lshl_add_u32 v122, v7, 4, v84")
    e(f"    v_add_u32 v122, {WL}, v122")
    if RING:
        e("    v_cmp_eq_u32 vcc, 3, v11")
        e("    v_subrev_u32 v4, 2048, v84")
        e("    s_nop 0")
        e("    v_cndmask_b32 v84, v84, v4, vcc")
    e("    v_lshrrev_b32 v6, 1, v6")
    e("    v_and_b32 v4, 1, v11")
    e("    v_cmp_eq_u32 s[16:17], 1, v4")
    e("    v_lshl_or_b32 v6, v4, 2, v6")
    e("    v_xor_b32 v6, v6, v7")
    e("    v_lshl_add_u32 v84, v6, 4, v84")
    e("    v_and_b32 v4, 1, v7")
    e("    v_lshl_add_u32 v84, v4, 3, v84")
    e(f"    s_mul_i32 s28, s3, {STGW}")
    e("    v_add_u32 v84, s28, v84")
    e("    s_mov_b32 m0, s28")
    e(f"    s_add_u32 s29, s28, {BUFB}")
    e("    v_xor_b32 v85, 8, v84")
    e("    v_xor_b32 v86, 64, v84")
    e("    v_xor_b32 v87, 72, v84")
    e(f"    s_mul_i32 s76, s3, {TSTR}")
    e(f"    s_add_u32 s76, s76, {LISTS}")
    e("    v_lshrrev_b32 v4, 3, v2")
    e("    v_lshl_add_u32 v88, v4, 2, s76")
    e("    v_lshl_add_u32 v123, v2, 2, s76")
    e(f"    s_add_u32 s76, s76, {CAPT*4}")
    e("    v_lshl_add_u32 v89, v11, 5, s76")
    e("    v_cmp_lt_u32 vcc, 0, v7")
    e("    v_cmp_lt_u32 s[76:77], 1, v7")
    e("    v_lshrrev_b32 v4, 2, v2")
    e("    v_cndmask_b32 v95, 0, -1, vcc")
    e("    v_cndmask_b32 v96, 0, -1, s[76:77]")
    e("    v_cmp_lt_u32 vcc, 2, v7")
    e(f"    v_mul_u32_u24 v98, {TSTR}, v4")
    e(f"    v_add_u32 v98, {LISTS}, v98")
    e("    v_cndmask_b32 v97, 0, -1, vcc")
    e("    v_lshlrev_b32 v90, 4, v2")
    e(f"    v_add_u32 v90, {CNTB}, v90")
    for i in range(16):
        e(f"    v_mov_b32 v{64+i}, 0")
    e("    s_lshl_b32 s76, s2, 4")
    e("    s_add_u32 s76, s76, s3")
    e("    s_mul_i32 s77, s76, 50006")
    e("    s_lshr_b32 s77, s77, 12")
    e("    v_subrev_u32 v2, s77, v92")
    e("    v_and_b32 v2, 15, v2")
    e("    v_add_u32 v2, s77, v2")
    e(f"    v_mul_u32_u24 v3, {TM}, v2")
    e("    v_lshrrev_b32 v3, 16, v3")
    e("    v_cmp_eq_u32 s[14:15], s76, v3")
    e("    v_lshlrev_b32 v2, 7, v2")
    e("    v_lshl_add_u32 v121, v11, 4, v2")
    e("    v_lshlrev_b32 v9, 4, v0")
    e("    v_lshlrev_b32 v31, 3, v0")
    e("    s_mov_b64 s[12:13], 0")
    e("    s_cmp_lt_u32 s3, 12")
    e("    s_cbranch_scc1 S_DONE")
    e("    s_waitcnt vmcnt(%d)" % (3 if I("pfw", 0) else 2))
    e("    v_cmp_eq_u32 vcc, v112, v115")
    e("    v_lshl_or_b32 v113, v114, 16, v113")
    e("    s_and_b64 s[12:13], s[66:67], vcc")
    decode_key(113, 0, 0, 6)
    decode_data(113, 0, 0, 6)
    e("    s_cmp_eq_u32 s3, 12")
    e("    s_cbranch_scc1 S_DONE")
    e(f"    v_subrev_u32 v2, {13*64}, v0")
    e("    v_lshlrev_b32 v2, 4, v2")
    e(f"    v_cmp_gt_u32 vcc, 2048, v2")
    e(f"    v_add_u32 v2, {WL}, v2")
    e("    ds_write_b128 v2, v[100:103]")
    e("    ds_write_b128 v2, v[104:107] offset:3072")
    e("    s_and_saveexec_b64 s[76:77], vcc")
    e("    ds_write_b128 v2, v[108:111] offset:6144")
    e("    s_mov_b64 exec, -1")
    e("S_DONE:")


COMMON = [0, 1, 3, 4]
RARE = [2, 5, 6, 7]


def body():
    e(f".globl {NAME}")
    e(".p2align 8")
    e(f".type {NAME},@function")
    e(f"{NAME}:")
    phase_a()
    PFW = I("pfw", 0)
    if PFW:
        srd(S_GAT, 4, 5, TABBYTES + 3072, -3072)
        e("    s_lshl_b32 s76, s2, 4")
        e("    s_add_u32 s76, s76, s3")
        e(f"    s_add_u32 s76, s76, {16 * I('pfwo', 0)}")
        e("    s_and_b32 s76, s76, 4095")
        e("    s_mul_i32 s76, s76, 50006")
        e("    s_lshr_b32 s76, s76, 12")
        e("    v_and_b32 v2, 63, v0")
        e("    v_add_lshl_u32 v2, v2, s76, 7")
        if I("pfwb", 1):
            e("    s_barrier")
        e(f"    s_mov_b64 exec, {(1 << PFW) - 1}")
        e(f"    buffer_load_dword v126, v2, {R(S_GAT)}, 0 offen offset:3072")
        e("    s_mov_b64 exec, -1")
    setup()
    e("    s_getreg_b32 s30, hwreg(HW_REG_XCC_ID, 0, 4)")
    e("    s_and_b32 s30, s30, 7")
    e("    s_lshl_b32 s30, s30, 14")
    e(f"    s_add_u32 s30, s30, {WS_OVT}")
    e("    s_add_u32 s31, s30, 8192")
    if I("noovtack", 0):
        e(f"    s_cmp_eq_u32 s3, {I('ovtw', 0)}")
        e("    s_waitcnt vmcnt(1) lgkmcnt(0)")
        e("    s_cbranch_scc1 G1_ACKD")
    e("    s_waitcnt vmcnt(%d) lgkmcnt(0)" % (1 if I("pfw", 0) else 0))
    e("G1_ACKD:")
    stamp("g1_ack")
    if GATE == 1:
        e(f"    buffer_load_dwordx2 v[116:117], v31, {R(S_WS)}, s30 offen {SC}")
        e(f"    buffer_load_dwordx2 v[118:119], v31, {R(S_WS)}, s31 offen {SC}")
    e("    s_barrier")
    stamp("g1_exit")
    if GATE == 1:
        e("    s_branch COLLECT1")

    e("COLLECT:")
    if GATE:
        e(f"    buffer_load_dwordx2 v[116:117], v31, {R(S_WS)}, s30 offen {SC}")
        e(f"    buffer_load_dwordx2 v[118:119], v31, {R(S_WS)}, s31 offen {SC}")
    e("COLLECT1:")
    e("    s_lshl_b32 s68, s2, 15")
    e("    s_add_u32 s69, s68, 16384")
    e(f"    s_mov_b32 s75, {SPINMAX}")
    if GATE:
        e("    s_waitcnt vmcnt(0)")
        e("C_CHK2:")
        e("    v_cmp_ne_u32_sdwa vcc, v117, v120 src0_sel:WORD_1 src1_sel:DWORD")
        e("    v_cmp_ne_u32_sdwa s[76:77], v119, v120 src0_sel:WORD_1 src1_sel:DWORD")
        e("    s_or_b64 vcc, vcc, s[76:77]")
        e("    s_cbranch_scc1 C_RETRY2")
        e("C_OK2:")
        stamp("b_gate")
    LS = OPT.get("ldsl", SC)
    e(f"    buffer_load_dwordx4 v[12:15], v9, {R(S_WS)}, s68 offen {LS}")
    e(f"    buffer_load_dwordx4 v[16:19], v9, {R(S_WS)}, s69 offen {LS}")
    if not GATE:
        e(f"    buffer_load_dwordx2 v[116:117], v31, {R(S_WS)}, s30 offen {SC}")
        e(f"    buffer_load_dwordx2 v[118:119], v31, {R(S_WS)}, s31 offen {SC}")

    def ovt_masks():
        e("    v_and_b32 v117, 0xffff, v117")
        e("    v_and_b32 v119, 0xffff, v119")
        e(f"    v_mul_u32_u24 v2, {TM}, v117")
        e(f"    v_mul_u32_u24 v3, {TM}, v119")
        e("    v_cmp_eq_u32 s[8:9], 7, v10")
        e(f"    v_cmp_lt_u32 s[72:73], {NINL}, v116")
        e(f"    v_cmp_lt_u32 vcc, {NINL}, v118")
        e("    v_lshrrev_b32 v2, 20, v2")
        e("    v_lshrrev_b32 v3, 20, v3")
        e("    v_cmp_eq_u32 s[4:5], s2, v2")
        e("    v_cmp_eq_u32 s[6:7], s2, v3")
        e("    s_and_b64 s[72:73], s[72:73], s[8:9]")
        e("    s_and_b64 vcc, vcc, s[8:9]")
        e("    s_lshr_b64 s[72:73], s[72:73], 1")
        e("    s_or_b64 s[72:73], s[72:73], vcc")
    if GATE:
        ovt_masks()
    e(f"    s_mov_b64 {PEND(6)}, s[12:13]")
    e(f"    s_mov_b64 {PEND(7)}, 0")
    e("    s_movk_i32 s11, 0xffff")
    e(f"    s_mov_b64 exec, {PEND(6)}")
    e("    s_cbranch_execz C_NT")
    e("    ds_add_rtn_u32 v38, v46, v1")
    e("C_NT:")
    e("    s_mov_b64 exec, -1")
    for i in range(2):
        base = 12 + 4 * i
        e(f"    s_waitcnt vmcnt({(1 if GATE else 3)-i})")
        e(f"C_CHK{i}:")
        e(f"    v_cmp_ne_u32_sdwa vcc, v{base+3}, v127 src0_sel:BYTE_3 src1_sel:DWORD")
        e(f"    s_cbranch_vccnz C_RETRY{i}")
        e(f"C_OK{i}:")
        stamp("b_lines" if i == 0 else "b_lines1")
        for k in range(3):
            e(f"    v_cmp_ne_u16 {PEND(3*i+k)}, s11, v{base+k}")
        for k in range(2):
            decode_key(base + k, base + 3, k, 3 * i + k)
        for k in range(2):
            s = 3 * i + k
            e(f"    s_mov_b64 exec, {PEND(s)}")
            e(f"    ds_add_rtn_u32 v{32+s}, v{40+s}, v1")
        s = 3 * i + 2
        e(f"    s_mov_b64 exec, {PEND(s)}")
        e(f"    s_cbranch_execz C_N2{i}")
        decode_key(base + 2, base + 3, 2, s)
        e(f"    ds_add_rtn_u32 v{32+s}, v{40+s}, v1")
        decode_data(base + 2, base + 3, 2, s)
        e(f"C_N2{i}:")
        e("    s_mov_b64 exec, -1")
        for k in range(2):
            decode_data(base + k, base + 3, k, 3 * i + k)
    if not GATE:
        e("    s_waitcnt vmcnt(0)")
        e("C_CHK2:")
        e("    v_cmp_ne_u32_sdwa vcc, v117, v120 src0_sel:WORD_1 src1_sel:DWORD")
        e("    v_cmp_ne_u32_sdwa s[76:77], v119, v120 src0_sel:WORD_1 src1_sel:DWORD")
        e("    s_or_b64 vcc, vcc, s[76:77]")
        e("    s_cbranch_scc1 C_RETRY2")
        e("C_OK2:")
        ovt_masks()
    e("    s_mov_b64 s[68:69], 0")
    e("    s_or_b64 s[76:77], s[4:5], s[6:7]")
    e("    s_or_b64 s[76:77], s[76:77], s[72:73]")
    e("    s_cbranch_scc1 EXTRA")
    e("CDONE:")
    e("    s_lshl_b32 s75, s3, 2")
    e("    s_add_u32 s75, s75, 3")
    e("    s_waitcnt lgkmcnt(0)")
    e("    s_barrier")
    stamp2("b_bar1", "")
    e("    ds_read_b128 v[4:7], v90")
    prefetch_common(PF4)
    if I("ptouch", 3) & 2:
        e("    s_cmp_lg_u32 s3, 15")
        e("    s_cbranch_scc1 PT_D")
        e("    s_lshl_b32 s76, s2, 8")
        e(f"    s_add_u32 s76, s76, {WS_FLAG}")
        e("    v_lshlrev_b32 v2, 7, v92")
        e("    s_mov_b64 exec, 3")
        e(f"    buffer_load_dword v126, v2, {R(S_WS)}, s76 offen sc1")
        e("    s_mov_b64 exec, -1")
        e("PT_D:")
    if OPTB and I("poiw", 2) == 0:
        poison()
    if I("pfx", 1):
        own_rows(S_GAT, "offset:3072")
    if OPTB and I("poiw", 2) == 1:
        poison()
    e("    s_waitcnt lgkmcnt(0)")
    e("    v_add_u32 v5, v4, v5")
    e("    v_add_u32 v6, v5, v6")
    e("    v_add_u32 v7, v6, v7")
    e("    s_nop 1")
    e("    v_and_b32_dpp v28, v7, v95 quad_perm:[0,0,0,0] row_mask:0xf bank_mask:0xf")
    e("    v_and_b32_dpp v29, v7, v96 quad_perm:[1,1,1,1] row_mask:0xf bank_mask:0xf")
    e("    v_and_b32_dpp v30, v7, v97 quad_perm:[2,2,2,2] row_mask:0xf bank_mask:0xf")
    e("    v_add3_u32 v28, v28, v29, v30")
    e("    v_add_u32 v7, v28, v7")
    e("    v_lshl_add_u32 v28, v28, 2, v98")
    e(f"    v_cmp_lt_u32 vcc, {CAPT}, v7")
    e("    v_lshl_add_u32 v29, v4, 2, v28")
    e("    v_lshl_add_u32 v30, v5, 2, v28")
    e("    v_lshl_add_u32 v31, v6, 2, v28")
    e("    v_readlane_b32 s74, v7, s75")
    e("    ds_write_b128 v90, v[28:31] offset:1024")
    for s in RARE:
        e(f"    s_mov_b64 exec, {PEND(s)}")
        e(f"    s_cbranch_execz P_R{s}")
        e(f"    ds_read_b32 v{20+s}, v{40+s} offset:1024")
        e(f"P_R{s}:")
    for s in COMMON:
        e(f"    s_mov_b64 exec, {PEND(s)}")
        e(f"    ds_read_b32 v{20+s}, v{40+s} offset:1024")
    e(f"    s_min_u32 s74, s74, {CAPT}")
    e("    s_cbranch_vccnz SLOWW")
    for s in COMMON:
        e(f"    s_mov_b64 exec, {PEND(s)}")
        e("    s_waitcnt lgkmcnt(3)")
        e(f"    v_lshl_add_u32 v{20+s}, v{32+s}, 2, v{20+s}")
        e(f"    ds_write2st64_b32 v{20+s}, v{48+s}, v{56+s} offset0:0 offset1:5")
        e(f"    s_mov_b64 {PEND(s)}, 0")
    for s in RARE:
        e(f"    s_mov_b64 exec, {PEND(s)}")
        e(f"    s_cbranch_execz P_W{s}")
        e(f"    v_lshl_add_u32 v{20+s}, v{32+s}, 2, v{20+s}")
        e(f"    ds_write2st64_b32 v{20+s}, v{48+s}, v{56+s} offset0:0 offset1:5")
        e(f"    s_mov_b64 {PEND(s)}, 0")
        e(f"P_W{s}:")
    e("WDONE:")
    if RING:
        e("    s_add_u32 s76, s74, 7")
        e("    s_andn2_b32 s76, s76, 7")
        e("    s_max_u32 s76, s76, 48")
        e("    s_sub_u32 s76, s76, s74")
    else:
        e("    s_sub_u32 s76, 0, s74")
        e("    s_and_b32 s76, s76, 31")
    e("    s_bfm_b64 exec, s76, 0")
    e("    s_lshl_b32 s77, s74, 2")
    e("    v_add_u32 v2, s77, v123")
    e(f"    v_mov_b32 v3, {PADV}")
    e("    ds_write2st64_b32 v2, v3, v3 offset0:0 offset1:5")
    e("    s_mov_b64 exec, -1")
    e(f"    v_mov_b32 v4, {MORE}")
    e("    s_waitcnt lgkmcnt(0)")
    e("    s_barrier")
    stamp2("b_bar2", "")
    e("    ds_read_b32 v8, v4")

    def next_k():
        e("    s_mov_b32 s8, 1")
        e("    s_cmp_gt_i32 s9, s10")
        e("    s_addc_u32 s8, s8, 0")
        e("    s_lshl_b32 s11, s10, 1")
        e("    s_cmp_gt_i32 s9, s11")
        e("    s_addc_u32 s8, s8, 0")
        if KMAX == 4:
            e("    s_add_i32 s11, s11, s10")
            e("    s_cmp_gt_i32 s9, s11")
            e("    s_addc_u32 s8, s8, 0")
        e("    s_min_i32 s8, s8, s9")
        e("    s_sub_i32 s9, s9, s8")
        e("    s_sub_i32 s10, s10, 1")
        e("    s_lshl_b32 s11, s8, 5")

    def read_recs(a, b, adv):
        e(f"    ds_read2_b32 v[100:101], v{a} offset0:0 offset1:8")
        if KMAX == 4:
            e(f"    ds_read2_b32 v[102:103], v{a} offset0:16 offset1:24")
        else:
            e(f"    ds_read_b32 v102, v{a} offset:64")
        e(f"    ds_read_b128 v[104:107], v{b}")
        e(f"    ds_read_b128 v[108:111], v{b} offset:16")
        e(f"    v_add_u32 v93, {adv}, v{a}")
        e(f"    v_add_u32 v94, {adv}, v{b}")

    def dma(i):
        e(f"    buffer_load_dwordx4 v{100+i}, {R(S_GAT)}, 0 offen offset:{1024*i} lds")

    def addr():
        for i in range(KMAX):
            e(f"    v_add_u32 v{100+i}, v{100+i}, v{80+i}")

    def build_b(w, breg=112):
        for j in range(8):
            e(f"    v_bfe_i32 v{32+j}, v{104+j}, v92, {w}")
        for j in range(8):
            e(f"    v_and_b32 v{32+j}, v{32+j}, v{104+j}")
        for j in range(4):
            e(f"    v_perm_b32 v{breg+j}, v{32+2*j+1}, v{32+2*j}, s1")

    def mfmas(breg=112):
        for t in range(4):
            e(f"    v_mfma_f32_16x16x32_bf16 v[{64+4*t}:{67+4*t}], v[{12+4*t}:{15+4*t}], v[{breg}:{breg+3}], v[{64+4*t}:{67+4*t}]")

    def trs(off):
        for t in range(4):
            for u in range(2):
                e(f"    ds_read_b64_tr_b16 v[{12+4*t+2*u}:{13+4*t+2*u}], v{84+t} offset:{off+512*u}")

    e("MAIN:")
    e("    s_cmp_eq_u32 s74, 0")
    e("    s_cbranch_scc1 EMPTY" if OPTB and I("poiw", 2) == 2 else "    s_cbranch_scc1 MAINDONE")
    read_recs(88, 89, 32 * KMAX)
    if PRIO == 1:
        for g in range(1, 4):
            e(f"    s_cmp_lt_u32 s3, {4*g}")
            e("    s_cbranch_scc1 PRIOD")
            e(f"    s_setprio {g}")
        e("PRIOD:")
    e("    s_add_u32 s9, s74, 7")
    e("    s_lshr_b32 s9, s9, 3")
    e(f"    s_sub_i32 s9, s9, {KMAX}")
    e("    s_max_i32 s9, s9, 0")
    e(f"    s_mov_b32 s10, {NB-1}")
    if RING:
        e("    s_mov_b32 m0, s28")
        e("    v_cmp_gt_u32 vcc, 3, v11")
    e("    s_waitcnt lgkmcnt(2)")
    addr()
    for i in range(KMAX):
        dma(i)
    next_k()
    if not RING:
        e("    s_waitcnt lgkmcnt(0)")
        build_b("1")
        read_recs(93, 94, "s11")
        if OPTB and I("poiw", 2) == 2:
            e("    s_bitcmp1_b32 s71, 0")
            e("    s_cbranch_scc1 LOOP")
            for i in range(4):
                e(f"    v_mov_b32 v{4+i}, -1")
            e("    s_mov_b64 exec, s[14:15]")
            e(f"    buffer_store_dwordx4 v[4:7], v121, {R(S_STO)}, 0 offen sc1")
            e(f"    buffer_store_dwordx4 v[4:7], v121, {R(S_STO)}, 0 offen offset:64 sc1")
            e("    s_mov_b64 exec, -1")
            e("    s_waitcnt vmcnt(2)")
            e("    s_branch LOOPB")
        e("LOOP:")
        e("    s_waitcnt vmcnt(0)")
        e("LOOPB:")
        e("    v_cmp_gt_u32 vcc, s8, v11")
        trs(0)
        e("    s_cmp_eq_u32 s8, 0")
        e("    v_cndmask_b32 v91, 0, v1, vcc")
        e("    s_waitcnt lgkmcnt(8)")
        addr()
        e("    s_waitcnt lgkmcnt(0)")
        e("    s_cbranch_scc1 LAST")
        dma(0)
        e("    s_cmp_eq_u32 s8, 1")
        e("    s_cbranch_scc1 DMAD")
        dma(1)
        e("    s_cmp_eq_u32 s8, 2")
        e("    s_cbranch_scc1 DMAD")
        dma(2)
        e("    s_cmp_eq_u32 s8, 3")
        e("    s_cbranch_scc1 DMAD")
        dma(3)
        e("DMAD:")
        mfmas()
        next_k()
        build_b("v91")
        read_recs(93, 94, "s11")
        e("    s_branch LOOP")
        e("LAST:")
        mfmas()
    else:
        BR = [112, 4]
        e("    v_cndmask_b32 v91, 0, v1, vcc")
        e("    s_mov_b32 s26, 3")
        e("    s_waitcnt lgkmcnt(0)")
        build_b("v91", BR[0])
        read_recs(93, 94, "s11")
        e("    s_mov_b32 m0, s29")
        e("    s_waitcnt lgkmcnt(2)")
        addr()
        for par in range(2):
            e(f"LOOP{par}:")
            e("    v_cmp_gt_u32 vcc, s8, v11")
            e("    s_cmp_eq_u32 s8, 0")
            e("    s_waitcnt vmcnt(0)")
            e(f"    s_cbranch_scc1 LAST{par}")
            dma(0)
            e("    s_cmp_eq_u32 s26, 1")
            e(f"    s_cbranch_scc1 DMAD{par}")
            dma(1)
            e("    s_cmp_eq_u32 s26, 2")
            e(f"    s_cbranch_scc1 DMAD{par}")
            dma(2)
            e(f"DMAD{par}:")
            trs(BUFB * par)
            e("    v_cndmask_b32 v91, 0, v1, vcc")
            next_k()
            e("    s_mov_b32 s26, s8")
            e(f"    s_mov_b32 m0, s{28 + par}")
            e("    s_waitcnt lgkmcnt(8)")
            build_b("v91", BR[1 - par])
            read_recs(93, 94, "s11")
            e("    s_waitcnt lgkmcnt(4)")
            mfmas(BR[par])
            e("    s_waitcnt lgkmcnt(2)")
            addr()
        e("    s_branch LOOP0")
        e("LAST1:")
        trs(BUFB)
        e("    s_waitcnt lgkmcnt(0)")
        mfmas(BR[1])
        e("    s_branch MAINDONE")
        e("LAST0:")
        trs(0)
        e("    s_waitcnt lgkmcnt(0)")
        mfmas(BR[0])
    e("MAINDONE:")
    e("    s_waitcnt lgkmcnt(0)")
    e("    v_readfirstlane_b32 s75, v8")
    e("    s_cmp_lg_u32 s75, 0")
    e("    s_cbranch_scc1 AGAIN")

    if PRIO:
        e("    s_setprio 0")
    stamp2("h1_done", "h2_done")
    WREG = [40, 44, 48, 52, 56, 60, 28, 116]

    def w_frags():
        for s_ in range(2):
            for t in range(4):
                for u in range(2):
                    off = (32 * s_ + 4 * u) * 128 + 64 * (t >> 1) + 8 * (t & 1)
                    r = WREG[s_ * 4 + t] + 2 * u
                    e(f"    ds_read_b64_tr_b16 v[{r}:{r+1}], v122 offset:{off}")

    e("    s_waitcnt vmcnt(0)")
    e("    s_nop 0")
    for t in range(4):
        e(f"    v_cvt_pk_bf16_f32 v{12+2*t}, v{64+4*t}, v{65+4*t}")
        e(f"    v_cvt_pk_bf16_f32 v{13+2*t}, v{66+4*t}, v{67+4*t}")
    if OPTB:
        e("    v_cmp_u_f32 vcc, v64, v72")
    e("    s_mov_b64 exec, s[16:17]")
    e("    v_swap_b32 v12, v14")
    e("    v_swap_b32 v13, v15")
    e("    v_swap_b32 v16, v18")
    e("    v_swap_b32 v17, v19")
    e("    s_bitcmp1_b32 s71, 0")
    e("    s_cbranch_scc1 FINAL")
    e("    s_mov_b64 exec, s[14:15]")
    e(f"    buffer_store_dwordx4 v[12:15], v121, {R(S_STO)}, 0 offen {SC}")
    e(f"    buffer_store_dwordx4 v[16:19], v121, {R(S_STO)}, 0 offen offset:64 {SC}")
    e("    s_mov_b64 exec, -1")
    stamp("h1_st")

    def book():
        e(f"    s_mov_b32 s{S_GAT}, s{S_GH}")
        e(f"    s_mov_b32 s{S_GAT+1}, s{S_GH+1}")
        e("    s_or_b32 s71, s71, 1")
        for i in range(16):
            e(f"    v_mov_b32 v{64+i}, 0")
        e("    s_bitcmp1_b32 s71, 1")
        e("    s_cbranch_scc1 E_IRR")
        w_frags()
        e("E_BAR:")
    barrier_addrs()
    grid_barrier("g2", book)
    e("    v_mov_b32 v8, 0")
    e("    s_bitcmp0_b32 s71, 1")
    e("    s_cbranch_scc1 MAIN")
    e("    s_branch E_IRR2" if OPTB else "    s_branch COLLECT")
    e("FINAL:")
    e("    s_mov_b64 exec, -1")
    if OPTB:
        e("    s_cbranch_vccnz REDO")
        e("F_OK:")
    e("    s_bitcmp1_b32 s71, 1")
    e("    s_cbranch_scc1 F_GETW")
    e("F_HAVEW:")
    for t in range(4):
        w = WREG[t]
        e(f"    v_mfma_f32_16x16x32_bf16 v[{64+4*t}:{67+4*t}], v[{w}:{w+3}], v[12:15], 0")
    for t in range(4):
        w = WREG[4 + t]
        e(f"    v_mfma_f32_16x16x32_bf16 v[{64+4*t}:{67+4*t}], v[{w}:{w+3}], v[16:19], v[{64+4*t}:{67+4*t}]")
    e("    s_nop 4")
    for t in range(4):
        if t:
            e("    s_nop 1")
        e(f"    v_cvt_pk_bf16_f32 v{12+2*t}, v{64+4*t}, v{65+4*t}")
        e(f"    v_cvt_pk_bf16_f32 v{13+2*t}, v{66+4*t}, v{67+4*t}")
    e("    s_mov_b64 exec, s[14:15]")
    e(f"    buffer_store_dwordx4 v[12:15], v121, {R(S_OUT)}, 0 offen {ST_OUT}")
    e(f"    buffer_store_dwordx4 v[16:19], v121, {R(S_OUT)}, 0 offen offset:64 {ST_OUT}")
    stamp_out()
    e("END:")
    e("    s_endpgm")

    for i in range(2):
        base = 12 + 4 * i
        e(f"C_RETRY{i}:")
        e(f"    buffer_load_dwordx4 v[{base}:{base+3}], v9, {R(S_WS)}, s{68+i} offen {SC}")
        e("    s_sub_u32 s75, s75, 1")
        e("    s_cmp_eq_u32 s75, 0")
        e("    s_waitcnt vmcnt(0)")
        e(f"    s_cbranch_scc0 C_CHK{i}")
        e("    s_mov_b32 s75, 1000")
        if DIAG:
            e(f"    s_or_b32 s48, s48, {1 << i}")
            e("    s_mov_b64 s[50:51], vcc")
        e(f"    s_branch C_OK{i}")
    e("C_RETRY2:")
    if I("bo", 4):
        e(f"    s_sleep {I('bo', 4)}")
    e(f"    buffer_load_dwordx2 v[116:117], v31, {R(S_WS)}, s30 offen {SC}")
    e(f"    buffer_load_dwordx2 v[118:119], v31, {R(S_WS)}, s31 offen {SC}")
    e("    s_sub_u32 s75, s75, 1")
    e("    s_cmp_eq_u32 s75, 0")
    e("    s_waitcnt vmcnt(0)")
    e("    s_cbranch_scc0 C_CHK2")
    e("    s_mov_b32 s75, 1000")
    if DIAG:
        e("    s_or_b32 s48, s48, 4")
        e("    s_mov_b64 s[50:51], vcc")
    e("    s_branch C_OK2")
    a_overflow()
    e("AGAIN:")
    e("    s_or_b32 s71, s71, 2")
    e("    s_barrier")
    zero_b_counters((WL - CNTB) // 4)
    e("    s_waitcnt lgkmcnt(0)")
    e("    s_barrier")
    for s in range(7):
        e(f"    s_mov_b64 exec, {PEND(s)}")
        e(f"    ds_add_rtn_u32 v{32+s}, v{40+s}, v1")
    e("EXTRA:")
    for m, r in (("s[4:5]", 116), ("s[6:7]", 118)):
        e(f"    s_andn2_b64 exec, {m}, {PEND(7)}")
        e(f"    s_andn2_b64 {m}, {m}, exec")
        e(f"    s_or_b64 {PEND(7)}, {PEND(7)}, exec")
        decode_full(r, r + 1, 7)
    e("    s_mov_b64 exec, -1")
    e("    s_or_b64 s[76:77], s[4:5], s[6:7]")
    e("    s_cbranch_scc1 OVFULL")
    e("    s_mov_b32 s75, 0")
    e("OVL:")
    e("    s_cmp_lt_u32 s68, s69")
    e("    s_cbranch_scc1 OVLOAD")
    e("    s_cmp_eq_u64 s[72:73], 0")
    e("    s_cbranch_scc1 OVDONE")
    e("    s_ff1_i32_b64 s76, s[72:73]")
    e("    s_bitset0_b64 s[72:73], s76")
    e("    s_or_b32 s77, s76, 7")
    e("    v_readlane_b32 s68, v116, s77")
    e("    v_readlane_b32 s69, v118, s77")
    e("    s_bitcmp1_b32 s76, 0")
    e("    s_cselect_b32 s69, s69, s68")
    e(f"    s_min_u32 s69, s69, {CHMAX}")
    e("    s_and_b32 s77, s76, 1")
    e("    s_lshl_b32 s77, s77, 7")
    e("    s_lshr_b32 s76, s76, 3")
    e("    s_add_u32 s76, s76, s77")
    e("    s_lshl_b32 s77, s3, 3")
    e("    s_add_u32 s76, s76, s77")
    e("    s_lshl_b32 s70, s76, 15")
    e(f"    s_mov_b32 s68, {NINL}")
    e("OVLOAD:")
    e("    v_add_u32 v4, s75, v0")
    e("    v_and_b32 v4, 63, v4")
    e("    v_add_u32 v4, s68, v4")
    e("    v_lshlrev_b32 v5, 3, v4")
    e(f"    buffer_load_dwordx2 v[28:29], v5, {R(S_OVF)}, s70 offen {SC}")
    e("    s_waitcnt vmcnt(0)")
    e(f"    v_mul_u32_u24 v30, {TM}, v29")
    e("    v_lshrrev_b32 v31, 20, v30")
    e("    v_cmp_gt_u32 vcc, s69, v4")
    e("    v_cmp_eq_u32 s[76:77], s2, v31")
    e("    s_and_b64 vcc, s[76:77], vcc")
    e(f"    s_and_b64 s[76:77], vcc, {PEND(7)}")
    e("    s_cbranch_scc1 OVFULL")
    e(f"    s_or_b64 {PEND(7)}, {PEND(7)}, vcc")
    e("    s_add_u32 s68, s68, 64")
    e("    s_add_u32 s75, s75, 16")
    e("    s_mov_b64 exec, vcc")
    decode_full(28, 29, 7)
    e("    s_mov_b64 exec, -1")
    e("    s_branch OVL")
    e("OVFULL:")
    e(f"    v_mov_b32 v2, {MORE}")
    e("    ds_write_b32 v2, v1")
    e("OVDONE:")
    e(f"    s_mov_b64 exec, {PEND(7)}")
    e("    ds_add_rtn_u32 v39, v47, v1")
    e("    s_mov_b64 exec, -1")
    e("    s_branch CDONE")
    e("SLOWW:")
    e("    s_waitcnt lgkmcnt(0)")
    for s in range(8):
        e(f"    s_mov_b64 exec, {PEND(s)}")
        e(f"    v_lshl_add_u32 v{20+s}, v{32+s}, 2, v{20+s}")
        e(f"    v_subrev_u32 v3, s0, v{40+s}")
        e("    v_lshrrev_b32 v3, 6, v3")
        e(f"    v_mul_u32_u24 v3, {TSTR}, v3")
        e(f"    v_add_u32 v3, {LISTS + CAPT*4}, v3")
        e(f"    v_cmp_lt_u32 vcc, v{20+s}, v3")
        e(f"    s_andn2_b64 {PEND(s)}, exec, vcc")
        e("    s_mov_b64 exec, vcc")
        e(f"    ds_write2st64_b32 v{20+s}, v{48+s}, v{56+s} offset0:0 offset1:5")
    e("    s_mov_b64 exec, -1")
    e(f"    v_mov_b32 v3, {MORE}")
    e("    ds_write_b32 v3, v1")
    e("    s_branch WDONE")
    e("E_IRR:")
    zero_b_counters(256)
    barrier_addrs()
    e("    v_lshlrev_b32 v9, 4, v0")
    e("    v_lshlrev_b32 v31, 3, v0")
    e("    s_waitcnt lgkmcnt(0)")
    e("    s_branch E_BAR")
    if OPTB:
        e("E_IRR2:")
        e("    s_or_b32 s71, s71, 4")
        barrier_addrs()
        e(f"    s_add_u32 s77, s77, {FL2}")
        poll_flags("g3", "COLLECT")
        e("    s_branch COLLECT")
        e("REDO:")
        e("    s_bitcmp1_b32 s71, 2")
        e("    s_cbranch_scc1 F_OK")
        e("    s_or_b32 s71, s71, 4")
        if DIAG:
            e("    s_or_b32 s48, s48, 8")
        barrier_addrs()
        e(f"    s_add_u32 s77, s77, {FL2}")
        poll_flags("g4", "REDO2")
        e("REDO2:")
        e("    buffer_inv sc1")
        for i in range(16):
            e(f"    v_mov_b32 v{64+i}, 0")
        e("    v_mov_b32 v8, 0")
        e("    s_waitcnt vmcnt(0)")
        e("    s_branch MAIN")
    if OPTB and I("poiw", 2) == 2:
        e("EMPTY:")
        poison()
        e("    s_branch MAINDONE")
    e("F_GETW:")
    w_frags()
    e("    s_waitcnt lgkmcnt(0)")
    e("    s_branch F_HAVEW")
    e("CODE_END:")


def spin_kernel():
    na, nb_, mode, mult, wlo, whi = (SPIN.split(",") + ["0", "15"])[:6]
    wlo, whi = int(wlo), int(whi)
    ia, ib, mode, mult = STL.index(na), STL.index(nb_), int(mode), int(mult)
    init = "0x80000000" if mode == 0 else "0x7fffffff" if mode == 1 else "0"
    e(".globl sgc_spin_kernel")
    e(".p2align 8")
    e(".type sgc_spin_kernel,@function")
    e("sgc_spin_kernel:")
    e("    s_memrealtime s[30:31]")
    e("    s_cmp_ge_u32 s2, 1")
    e("    s_cbranch_scc1 SP_END")
    e("    s_load_dwordx8 s[12:19], s[0:1], 32")
    e("    v_lshlrev_b32 v1, 6, v0")
    e("    v_mov_b32 v4, 0x7fffffff")
    e(f"    v_mov_b32 v5, {init}")
    e("    s_mov_b32 s23, 0x20000")
    e("    s_waitcnt lgkmcnt(0)")
    srd(20, 18, 19, 1 << 20, WS_STAMP)
    e("    s_mov_b32 s24, 0")
    e("SP_RD:")
    e(f"    buffer_load_dword v2, v1, s[20:23], s24 offen offset:{4*ia}")
    e(f"    buffer_load_dword v3, v1, s[20:23], s24 offen offset:{4*ib}")
    e("    s_add_u32 s24, s24, 4096")
    e("    s_cmp_lt_u32 s24, 0x40000")
    e("    s_waitcnt vmcnt(0)")
    e("    v_subrev_u32 v2, s30, v2")
    e("    v_subrev_u32 v3, s30, v3")
    e("    v_min_i32 v4, v4, v2")
    e("    %s v5, v5, v3" % ("v_max_i32" if mode == 0 else "v_min_i32" if mode == 1 else "v_add_u32"))
    e("    s_cbranch_scc1 SP_RD")
    e("    s_mov_b32 s26, 0x7fffffff")
    e(f"    s_mov_b32 s27, {init}")
    e("    s_nop 1")
    for l in range(64):
        e(f"    v_readlane_b32 s28, v4, {l}")
        e(f"    v_readlane_b32 s29, v5, {l}")
        e("    s_min_i32 s26, s26, s28")
        if wlo <= (l & 15) <= whi:
            e("    %s s27, s27, s29" % ("s_max_i32" if mode == 0 else "s_min_i32" if mode == 1 else "s_add_u32"))
    if mode == 2:
        e("    s_ashr_i32 s27, s27, %d" % (8 + (whi - wlo + 1).bit_length() - 1))
    e("    s_sub_i32 s26, s27, s26")
    e("    s_max_i32 s26, s26, 0")
    e("    s_min_i32 s26, s26, 20000")
    e(f"    s_mul_i32 s26, s26, {mult}")
    e("    s_add_u32 s26, s26, 10000")
    e("SP_LOOP:")
    e("    s_memrealtime s[28:29]")
    e("    s_waitcnt lgkmcnt(0)")
    e("    s_sub_u32 s28, s28, s30")
    e("    s_cmp_lt_u32 s28, s26")
    e("    s_cbranch_scc1 SP_LOOP")
    e("SP_END:")
    e("    s_endpgm")


def desc(name, vg, sg):
    e(".p2align 6")
    e(f".amdhsa_kernel {name}")
    e(f"  .amdhsa_next_free_vgpr {vg}")
    e(f"  .amdhsa_next_free_sgpr {sg}")
    e(f"  .amdhsa_accum_offset {vg}")
    e("  .amdhsa_group_segment_fixed_size 0")
    e("  .amdhsa_kernarg_size 64")
    e("  .amdhsa_user_sgpr_count 2")
    e("  .amdhsa_user_sgpr_kernarg_segment_ptr 1")
    e("  .amdhsa_system_sgpr_workgroup_id_x 1")
    e(".end_amdhsa_kernel")


SPIN = OPT.get("spin")
if SPIN:
    e(f"; @launch kernel={NAME} grid=(256,1,1) block=(1024,1,1) lds={LDS}")
    e("; @launch kernel=sgc_spin_kernel grid=(1,1,1) block=(64,1,1) lds=0")
else:
    e(f"; @launch grid=(256,1,1) block=(1024,1,1) lds={LDS}")
e('.amdgcn_target "amdgcn-amd-amdhsa--gfx950"')
e(".text")
body()
if SPIN:
    spin_kernel()
e('.section .rodata,"a"')
if SPIN:
    desc("sgc_spin_kernel", 8, 40)
desc(NAME, 128, 102 if DIAG else 78)
open(OUT, "w").write("\n".join(L) + "\n")
```

```python
import sys

OUT = [a for a in sys.argv[1:] if not a.startswith("--")][0]
OPT = dict(a[2:].split("=") for a in sys.argv[1:] if a.startswith("--") and "=" in a)
NAME = "standalone__spectral_conv_sgc__graph_kernel"
DEFST = "start,a_bar1,a_bar2,g1_exit,b_lines,b_bar1,b_bar2,h1_done,g2_ack,g2_exit,h2_done,end"
STL = OPT.get("st", DEFST if "--diag" in sys.argv else "").split(",")
STL = [s for s in STL if s]
DIAG = len(STL) > 0


def I(name, dflt):
    return int(OPT.get(name, dflt))


N = 50000
E = 850000
ET = 800000
TM = 5368
CHMAX = 13 * 256
SLOTCAP = 24
NINL = 7
WS_OVT = 8 << 20
WS_FLAG = WS_OVT + 131072
WS_H1 = WS_OVT + (1 << 20)
WS_OVF = 16 << 20
OVF_STRIDE = 32768
WS_STAMP = 32 << 20
TABBYTES = N * 128
PADV = 0x40000000

K1_LS = 132
K1_CNT = 256 * K1_LS
K1_OVC = 1024
K1_OVT = K1_CNT + 4096
K1_NON = K1_OVT + 64
K1_MSK = K1_NON + 16
K1_DONE = 1028
RING = int(OPT.get("ring", 0))
KMAX = 3 if RING else 4
STGW = 3072 if RING else 4096
BUFB = 16 * STGW
LISTS = 2 * BUFB if RING else 65536
CAPT = 320
TSTR = CAPT * 8
CNTB = LISTS + 16 * TSTR + 256
BASES = CNTB + 1024
MORE = BASES + 1024
WL = MORE + 64
SELFN = WL + 8192
LDS = SELFN + 1024

SC = "sc1"
ST_OUT = OPT.get("stout", "nt")
SPINMAX = I("spinmax", 20000000)
NREP = 8
LSTR = 128
NB = I("nb", 10 if RING else 8)
TSH = I("tsh", 20)
PFS = I("pfstep", 80)
PF4 = I("pf4", 0)
PRIO = I("prio", 1)
GATE = I("gate", 2)
OPTB = I("optb", 0)
SELF = I("self", 1)
FL2 = 65536

L = []


def e(s=""):
    L.append(s)


def srd(d, lo, hi, nbytes, off=0):
    if off == 0:
        e(f"    s_mov_b32 s{d}, s{lo}")
        e(f"    s_mov_b32 s{d+1}, s{hi}")
    elif off > 0:
        e(f"    s_add_u32 s{d}, s{lo}, {off}")
        e(f"    s_addc_u32 s{d+1}, s{hi}, 0")
    else:
        e(f"    s_sub_u32 s{d}, s{lo}, {-off}")
        e(f"    s_subb_u32 s{d+1}, s{hi}, 0")
    e(f"    s_mov_b32 s{d+2}, {nbytes}")
    e(f"    s_mov_b32 s{d+3}, s23")


S_SRC, S_DST, S_NRM, S_WS, S_OVF, S_GAT, S_STO, S_DBG = 20, 24, 28, 32, 36, 40, 44, 48
S_OUT, S_GH = S_SRC, S_DST


def R(d):
    return f"s[{d}:{d+3}]"


STAMP_BASE = 78


def stamp(name):
    if "c_" + name in STL:
        i = STL.index("c_" + name)
        e(f"    s_memtime s[{STAMP_BASE+2*i}:{STAMP_BASE+2*i+1}]")
    if name in STL:
        i = STL.index(name)
        e(f"    s_memrealtime s[{STAMP_BASE+2*i}:{STAMP_BASE+2*i+1}]")


def stamp2(n1, n2):
    if n1 in STL or n2 in STL:
        n = len(L)
        e("    s_bitcmp1_b32 s71, 0")
        e(f"    s_cbranch_scc1 ST{n}_B")
        stamp(n1)
        e(f"    s_branch ST{n}_C")
        e(f"ST{n}_B:")
        stamp(n2)
        e(f"ST{n}_C:")


def stamp_out():
    if not DIAG:
        return
    e("    s_waitcnt vmcnt(0) lgkmcnt(0)")
    stamp("end")
    e("    s_waitcnt lgkmcnt(0)")
    e("    s_mov_b64 exec, 1")
    srd(28, 18, 19, 1 << 20, WS_STAMP)
    e("    s_lshl_b32 s76, s2, 4")
    e("    s_add_u32 s76, s76, s3")
    e("    s_lshl_b32 s76, s76, 6")
    e("    v_mov_b32 v2, s76")
    for i in range(len(STL)):
        e(f"    v_mov_b32 v3, s{STAMP_BASE+2*i}")
        e(f"    buffer_store_dword v3, v2, s[28:31], 0 offen offset:{4*i}")
    e("    s_getreg_b32 s76, hwreg(HW_REG_XCC_ID)")
    e("    v_mov_b32 v3, s76")
    e("    buffer_store_dword v3, v2, s[28:31], 0 offen offset:56")
    e("    s_lshl_b32 s76, s48, 16")
    e("    s_or_b32 s76, s76, s74")
    e("    v_mov_b32 v3, s76")
    e("    buffer_store_dword v3, v2, s[28:31], 0 offen offset:60")
    e("    v_mov_b32 v3, s50")
    e("    buffer_store_dword v3, v2, s[28:31], 0 offen offset:48")
    e("    v_mov_b32 v3, s51")
    e("    buffer_store_dword v3, v2, s[28:31], 0 offen offset:52")


def PEND(s):
    return f"s[{52+2*s}:{53+2*s}]"


def prefetch_common(cnt):
    if cnt == 0:
        return
    e("    s_lshr_b32 s76, s2, 3")
    e("    s_lshl_b32 s76, s76, 4")
    e("    s_add_u32 s76, s76, s3")
    e(f"    s_mul_i32 s76, s76, {cnt}")
    e("    v_and_b32 v2, 63, v0")
    e("    v_add_u32 v2, s76, v2")
    e("    v_lshrrev_b32 v3, 5, v2")
    e("    v_and_b32 v2, 31, v2")
    e(f"    v_mul_u32_u24 v3, {PFS}, v3")
    e("    v_add_lshl_u32 v2, v2, v3, 7")
    e(f"    s_mov_b32 exec_lo, {((1 << cnt) - 1) & 0xffffffff}")
    e(f"    s_mov_b32 exec_hi, {((1 << cnt) - 1) >> 32}")
    e(f"    buffer_load_dword v126, v2, {R(S_GAT)}, 0 offen offset:3072")
    e("    s_mov_b64 exec, -1")


def own_rows(srdn, flags):
    e("    s_and_b64 exec, s[14:15], 0xffff")
    e(f"    buffer_load_dword v3, v121, {R(srdn)}, 0 offen {flags}")
    e("    s_mov_b64 exec, -1")


def own_x():
    e("    s_bitcmp1_b32 s71, 3")
    e("    s_cbranch_scc1 NOOWN")
    e("    s_mov_b64 exec, s[14:15]")
    e(f"    buffer_load_dwordx4 v[64:67], v121, {R(S_GAT)}, 0 offen offset:3072")
    e(f"    buffer_load_dwordx4 v[68:71], v121, {R(S_GAT)}, 0 offen offset:3136")
    e("NOOWN:")
    e("    s_mov_b64 exec, -1")


def self_init(b=64):
    e("    s_mov_b64 exec, s[16:17]")
    e(f"    v_swap_b32 v{b}, v{b+2}")
    e(f"    v_swap_b32 v{b+1}, v{b+3}")
    e(f"    v_swap_b32 v{b+4}, v{b+6}")
    e(f"    v_swap_b32 v{b+5}, v{b+7}")
    e("    s_mov_b64 exec, -1")
    for i in reversed(range(8)):
        e(f"    v_and_b32 v{65+2*i}, 0xffff0000, v{b+i}")
        e(f"    v_lshlrev_b32 v{64+2*i}, 16, v{b+i}")
    for i in range(16):
        e(f"    v_mul_f32 v{64+i}, v126, v{64+i}")


def poison():
    n = len(L)
    e("    s_bitcmp1_b32 s71, 0")
    e(f"    s_cbranch_scc1 POI{n}")
    for i in range(4):
        e(f"    v_mov_b32 v{100+i}, -1")
    e("    s_mov_b64 exec, s[14:15]")
    e(f"    buffer_store_dwordx4 v[100:103], v121, {R(S_STO)}, 0 offen sc1")
    e(f"    buffer_store_dwordx4 v[100:103], v121, {R(S_STO)}, 0 offen offset:64 sc1")
    e("    s_mov_b64 exec, -1")
    e(f"POI{n}:")


def poll_flags(p, done):
    e(f"    s_mov_b32 s75, {SPINMAX}")
    e(f"{p}_POLL:")
    e(f"    buffer_load_dwordx4 v[4:7], v8, {R(S_WS)}, s77 offen sc1")
    e("    s_sub_u32 s75, s75, 1")
    e("    s_cmp_eq_u32 s75, 0")
    e("    s_waitcnt vmcnt(0)")
    e(f"    s_cbranch_scc1 {done}")
    e("    v_xor_b32 v4, v4, v125")
    e("    v_xor_b32 v5, v5, v125")
    e("    v_xor_b32 v6, v6, v125")
    e("    v_xor_b32 v7, v7, v125")
    e("    v_or3_b32 v4, v4, v5, v6")
    e("    v_or_b32 v4, v4, v7")
    e("    v_cmp_ne_u32 vcc, 0, v4")
    e(f"    s_cbranch_vccnz {p}_POLL")


def grid_barrier(p, book):
    if not OPTB:
        book()
        e("    s_waitcnt vmcnt(0)")
        stamp(p + "_ack")
    e("    s_barrier")
    e("    s_cmp_lg_u32 s3, 0")
    e(f"    s_cbranch_scc1 {p}_NOF")
    stamp(p + "_arr")
    e(f"    s_mov_b64 exec, {(1 << NREP) - 1}")
    e(f"    buffer_store_dword v125, v2, {R(S_WS)}, s76 offen sc1")
    e("    s_mov_b64 exec, -1")
    e(f"{p}_NOF:")
    if OPTB:
        book()
        e("    s_waitcnt vmcnt(0)")
        stamp(p + "_ack")
    own_rows(S_STO, "sc1")
    e(f"    s_cmp_lg_u32 s3, {I('pollw', 0)}")
    e(f"    s_cbranch_scc1 {p}_WAIT")
    poll_flags(p, p + "_WAIT")
    e(f"{p}_WAIT:")
    e("    s_barrier")
    stamp(p + "_exit")
    if OPTB:
        e("    s_cmp_lg_u32 s3, 0")
        e(f"    s_cbranch_scc1 {p}_F2")
        e(f"    s_add_u32 s76, s76, {FL2}")
        e(f"    s_mov_b64 exec, {(1 << NREP) - 1}")
        e(f"    buffer_store_dword v125, v2, {R(S_WS)}, s76 offen sc1")
        e("    s_mov_b64 exec, -1")
        e(f"{p}_F2:")


def barrier_addrs():
    rstr = 64 * LSTR
    e("    s_lshr_b32 s76, s2, 2")
    e(f"    s_mul_i32 s76, s76, {LSTR}")
    e("    s_and_b32 s77, s2, 3")
    e("    s_lshl_b32 s77, s77, 2")
    e("    s_add_u32 s76, s76, s77")
    e(f"    s_add_u32 s76, s76, {WS_FLAG}")
    e(f"    v_mul_u32_u24 v2, {rstr}, v0")
    e("    s_getreg_b32 s77, hwreg(HW_REG_XCC_ID, 0, 4)")
    e(f"    s_and_b32 s77, s77, {NREP-1}")
    e(f"    s_mul_i32 s77, s77, {rstr}")
    e(f"    s_add_u32 s77, s77, {WS_FLAG}")
    e("    v_and_b32 v8, 63, v0")
    e(f"    v_mul_u32_u24 v8, {LSTR}, v8")


def decode_key(rec, meta, k, s):
    ca = 40 + s
    if I("rot", 6250):
        e(f"    v_add_u32 v2, s27, v{rec}")
        e(f"    v_bfe_u32 v2, v2, 12, 4")
    else:
        e(f"    v_bfe_u32 v2, v{rec}, 12, 4")
    e(f"    v_and_b32_sdwa v3, v{meta}, v99 dst_sel:DWORD dst_unused:UNUSED_PAD src0_sel:BYTE_{k} src1_sel:DWORD")
    e(f"    v_or_b32 v2, v2, v3")
    e(f"    v_lshl_add_u32 v{ca}, v2, 2, s0")


def decode_data(rec, meta, k, s):
    d0, d1 = 48 + s, 56 + s
    e(f"    v_lshlrev_b32_sdwa v{d0}, v124, v{rec} dst_sel:DWORD dst_unused:UNUSED_PAD src0_sel:DWORD src1_sel:WORD_0")
    if OPT.get("srcmask"):
        e(f"    v_and_b32 v{d0}, {OPT['srcmask']}, v{d0}")
    e(f"    v_mov_b32 v{d1}, v{rec}")
    e(f"    v_lshlrev_b16_sdwa v{d1}, v{meta}, v1 dst_sel:WORD_0 dst_unused:UNUSED_PRESERVE src0_sel:BYTE_{k} src1_sel:DWORD")


def decode_full(rec, dst, s):
    e(f"    v_mul_u32_u24 v30, {TM}, v{dst}")
    e("    v_lshrrev_b32 v30, 12, v30")
    e(f"    v_bfi_b32 v30, 15, v{dst}, v30")
    decode_key(rec, 30, 0, s)
    decode_data(rec, 30, 0, s)


def zero_b_counters(n):
    e("    v_lshlrev_b32 v2, 2, v0")
    e(f"    v_add_u32 v2, {CNTB}, v2")
    e("    v_mov_b32 v3, 0")
    e(f"    v_cmp_gt_u32 vcc, {n}, v0")
    e("    s_and_saveexec_b64 s[76:77], vcc")
    e("    ds_write_b32 v2, v3")
    e("    s_mov_b64 exec, -1")


def phase_a():
    stamp("start")
    e("    s_load_dwordx2 s[24:25], s[0:1], 16")
    e("    s_load_dwordx2 s[20:21], s[0:1], 8")
    e("    s_load_dwordx2 s[28:29], s[0:1], 24")
    e("    s_load_dwordx2 s[10:11], s[0:1], 56")
    if I("cpf", 1):
        e("    s_getpc_b64 s[6:7]")
        e("CPF_PC:")
        e("    v_cmp_gt_u32 vcc, (CODE_END-CPF_PC)/128, v0")
        e("    v_lshlrev_b32 v2, 7, v0")
        e("    s_and_saveexec_b64 s[8:9], vcc")
        e("    s_cbranch_execz CPF_D")
        e("    global_load_dword v126, v2, s[6:7] offset:124")
        e(f"    v_mov_b32 v2, {WS_FLAG}")
        e("    s_waitcnt lgkmcnt(0)")
        e("    global_load_dword v125, v2, s[10:11] sc1")
        e("CPF_D:")
        e("    s_mov_b64 exec, -1")
    e("    s_cmp_ge_u32 s2, 256")
    e("    s_cbranch_scc1 END")
    e("    v_lshrrev_b32 v3, 6, v0")
    e("    v_and_b32 v2, 63, v0")
    e("    s_mov_b32 s23, 0x20000")
    e(f"    s_mov_b32 s22, {E*4}")
    e("    v_lshlrev_b32 v4, 18, v3")
    e("    s_mov_b64 s[26:27], s[22:23]")
    e("    v_lshl_or_b32 v4, v2, 4, v4")
    e("    s_lshr_b32 s30, s22, 1")
    e("    s_mov_b32 s31, s23")
    e("    v_lshrrev_b32 v5, 1, v4")
    e("    s_lshl_b32 s68, s2, 10")
    e("    v_cmp_gt_u32 vcc, 13, v3")
    e("    s_lshl_b32 s69, s2, 9")
    e("    s_waitcnt lgkmcnt(0)")
    e("    s_cbranch_vccz A_NOLD")
    LI = OPT.get("ldin", "")
    e(f"    buffer_load_dwordx4 v[12:15], v4, {R(S_DST)}, s68 offen {LI}")
    e(f"    buffer_load_dwordx4 v[16:19], v4, {R(S_SRC)}, s68 offen {LI}")
    e(f"    buffer_load_dwordx2 v[20:21], v5, {R(S_NRM)}, s69 offen {LI}")
    e("A_NOLD:")
    stamp("a_issue")
    e("    s_load_dwordx8 s[12:19], s[0:1], 32")
    e("    s_load_dwordx2 s[4:5], s[0:1], 0")
    e("    v_readfirstlane_b32 s3, v3")
    e("    v_lshlrev_b32 v9, 2, v0")
    e("    v_mov_b32 v6, 0")
    e(f"    ds_write_b32 v9, v6 offset:{K1_CNT}")
    e("    v_mov_b32 v24, -1")
    e("    v_mov_b32 v25, -1")
    e("    v_mov_b32 v26, -1")
    e("    v_mov_b32 v27, -1")
    e("    v_lshlrev_b32 v7, 4, v0")
    e("    ds_write_b128 v7, v[24:27]")
    e("    ds_write_b128 v7, v[24:27] offset:16384")
    e("    v_add_u32 v4, s68, v4")
    e("    v_lshrrev_b32 v8, 2, v4")
    e(f"    v_cmp_gt_u32 s[72:73], s22, v4")
    e(f"    v_subrev_u32 v8, {ET}, v8")
    e("    v_mov_b32 v1, 1")
    e("    v_and_b32 v10, 7, v0")
    e("    s_cmp_lt_u32 s3, 13")
    e("    s_cbranch_scc1 A_BAR")
    e("    s_cmp_lt_u32 s3, 14")
    e("    s_cbranch_scc1 A_H13")
    e("    s_cmp_eq_u32 s3, 14")
    e("    s_cbranch_scc1 A_H14")
    e(f"    ds_write_b128 v7, v[24:27] offset:{32768 - 15*1024}")
    e("    v_and_b32 v5, 60, v9")
    e("    v_mov_b32 v7, 0xffff")
    e(f"    ds_write_b32 v5, v7 offset:{K1_OVT}")
    e("    s_branch A_BAR")
    e("A_H14:")
    e(f"    v_lshlrev_b32 v2, {TSH}, v2")
    e("    s_waitcnt lgkmcnt(0)")
    srd(S_WS, 18, 19, WS_H1 + TABBYTES, 0)
    if I("wstouch", 1):
        e(f"    buffer_load_dword v126, v2, {R(S_WS)}, 0 offen sc1")
    srd(S_GAT, 4, 5, TABBYTES)
    e(f"    buffer_load_dword v126, v2, {R(S_GAT)}, 0 offen")
    srd(S_OVF, 14, 15, TABBYTES)
    e(f"    buffer_load_dword v126, v2, {R(S_OVF)}, 0 offen sc1")
    e("    s_branch A_BAR")
    e("A_H13:")
    e("    s_lshl_b32 s77, s2, 9")
    e(f"    s_add_u32 s77, s77, {WS_OVT}")
    e("    v_lshlrev_b32 v2, 7, v2")
    e("    s_waitcnt lgkmcnt(0)")
    srd(S_WS, 18, 19, WS_H1 + TABBYTES, 0)
    if I("ptouch", 3) & 1:
        e("    s_mov_b64 exec, 15")
        e(f"    buffer_load_dword v126, v2, {R(S_WS)}, s77 offen sc1")
        e("    s_mov_b64 exec, -1")
    e("A_BAR:")
    e("    s_setprio 2")
    e("    s_waitcnt lgkmcnt(0)")
    e("    s_barrier")
    stamp("a_bar1")
    srd(S_WS, 18, 19, WS_H1 + TABBYTES, 0)
    if I("perm", 1):
        e("    s_lshr_b32 s76, s2, 6")
        e("    s_add_u32 s77, s76, s2")
        e("    s_and_b32 s77, s77, 7")
        e("    s_lshl_b32 s77, s77, 5")
        e("    s_add_u32 s77, s77, s76")
        e("    s_bfe_u32 s76, s2, 0x30003")
        e("    s_lshl_b32 s76, s76, 2")
        e("    s_add_u32 s65, s77, s76")
    else:
        e("    s_mov_b32 s65, s2")
    e("    s_cmp_lt_u32 s3, 12")
    e("    s_cbranch_scc1 A_SETUP")
    e("    v_bfe_u32 v2, v0, 4, 4")
    e("    s_lshl_b32 s76, s65, 4")
    e("    v_add_u32 v2, s76, v2")
    e("    v_mul_u32_u24 v3, 50006, v2")
    e("    v_lshrrev_b32 v3, 12, v3")
    e("    v_sub_u32 v4, v0, v3")
    e("    v_and_b32 v4, 15, v4")
    e("    v_add_u32 v115, v3, v4")
    e(f"    v_add_u32 v4, {ET}, v115")
    e("    v_lshlrev_b32 v5, 2, v4")
    e("    v_lshlrev_b32 v4, 1, v4")
    e(f"    buffer_load_dword v112, v5, {R(S_DST)}, 0 offen")
    e(f"    buffer_load_dword v113, v5, {R(S_SRC)}, 0 offen")
    e(f"    buffer_load_ushort v114, v4, {R(S_NRM)}, 0 offen")
    e(f"    v_mul_u32_u24 v4, {TM}, v115")
    e("    v_lshrrev_b32 v4, 16, v4")
    e("    v_cmp_eq_u32 s[66:67], v4, v2")
    e(f"    v_cmp_gt_u32 vcc, {N}, v115")
    e("    s_and_b64 s[66:67], s[66:67], vcc")
    e("    s_cmp_eq_u32 s3, 12")
    e("    s_cbranch_scc1 A_SETUP")
    srd(S_STO, 12, 13, 8192)
    e(f"    v_subrev_u32 v2, {13*64}, v0")
    e("    v_lshlrev_b32 v2, 4, v2")
    e(f"    buffer_load_dwordx4 v[100:103], v2, {R(S_STO)}, 0 offen")
    e(f"    buffer_load_dwordx4 v[104:107], v2, {R(S_STO)}, 0 offen offset:3072")
    e("    v_add_u32 v3, 6144, v2")
    e(f"    buffer_load_dwordx4 v[108:111], v3, {R(S_STO)}, 0 offen")
    e("A_SETUP:")
    e("    s_setprio 0")
    e("    s_lshr_b32 s76, s3, 1")
    e("    s_add_u32 s76, s76, s2")
    e("    s_and_b32 s76, s76, 7")
    e("    s_lshl_b32 s74, s2, 15")
    e("    s_lshl_b32 s77, s76, 12")
    e("    s_add_u32 s74, s74, s77")
    e("    s_lshl_b32 s77, s76, 2")
    e("    v_mov_b32 v49, s77")
    e("    s_and_b32 s75, s3, 1")
    e("    s_lshl_b32 s75, s75, 1")
    e("    v_bfe_u32 v2, v0, 3, 3")
    e("    v_lshlrev_b32 v48, 4, v10")
    e("    v_cmp_lt_u32 vcc, 3, v10")
    e(f"    v_mul_u32_u24 v3, {4*K1_LS}, v2")
    e("    v_add_u32 v3, v3, v48")
    for st in range(2):
        e("    s_add_u32 s77, s76, s75")
        e("    s_and_b32 s77, s77, 7")
        e("    s_lshl_b32 s77, s77, 5")
        e("    s_add_u32 s77, s77, s75")
        e(f"    s_mul_i32 s77, s77, {K1_LS}")
        e(f"    v_add_u32 v{40+st}, s77, v3")
        e(f"    v_lshl_add_u32 v{46+st}, s75, 3, v2")
        e(f"    v_lshlrev_b32 v{44+st}, v{46+st}, v1")
        e(f"    v_add_u32 v{42+st}, -1, v{44+st}")
        e(f"    v_cndmask_b32 v{44+st}, 0, v{44+st}, vcc")
        e("    s_add_u32 s75, s75, 1")
    e("    v_and_b32 v50, 6, v10")
    e("    v_lshlrev_b32 v51, 3, v10")
    e("    v_lshl_add_u32 v52, v2, 14, v51")
    e("    v_lshlrev_b32 v53, 2, v2")
    e("    s_lshl_b32 s75, s2, 6")
    e(f"    s_add_u32 s75, s75, {WS_OVT}")
    e("    s_mov_b32 s64, 0xffffff")
    PA = I("pa", 1)
    if PA == 1:
        for g in range(1, 4):
            e(f"    s_cmp_lt_u32 s3, {4*g}")
            e("    s_cbranch_scc1 A_PRD")
            e(f"    s_setprio {g}")
        e("A_PRD:")
    e("    s_cmp_lt_u32 s3, 12")
    e("    s_cbranch_scc1 A_EDGES")
    e("    s_cmp_eq_u32 s3, 12")
    e("    s_cbranch_scc1 A_EDGES12")
    e("    s_cmp_lg_u32 s3, 15")
    e("    s_cbranch_scc1 A_OUT")
    e("A_MASKS:")
    e("    v_bfe_u32 v2, v0, 3, 2")
    e("    v_bfe_u32 v3, v0, 5, 1")
    e("    v_add_u32 v3, v3, v2")
    e("    v_lshl_add_u32 v3, v3, 5, v2")
    e("    v_lshl_add_u32 v3, v10, 2, v3")
    e("    v_lshlrev_b32 v12, 2, v3")
    for n in range(1, 4):
        e(f"    v_add_u32 v{12+n}, 256, v{11+n}")
        e(f"    v_and_b32 v{12+n}, 1023, v{12+n}")
    e("    v_lshlrev_b32 v7, 2, v10")
    e("A_MPOLL:")
    e(f"    ds_read_b32 v2, v6 offset:{K1_CNT+K1_DONE}")
    e("    s_waitcnt lgkmcnt(0)")
    e("    v_cmp_gt_u32 vcc, 13, v2")
    e("    s_cbranch_vccnz A_MPOLL")
    for n in range(4):
        e(f"    ds_read_b32 v{16+n}, v{12+n} offset:{K1_CNT}")
    for n in range(4):
        e(f"    s_waitcnt lgkmcnt({3-n})")
        e(f"    v_cmp_lt_u32 s[{52+2*n}:{53+2*n}], 12, v{16+n}")
    e("    s_nop 1")
    for n in range(8):
        e(f"    v_writelane_b32 v2, s{52+n}, {n}")
    e("    s_mov_b64 exec, 0xff")
    e("    v_bcnt_u32_b32 v3, v2, 0")
    e("    v_add_u32 v4, 1, v2")
    e("    v_bfe_i32 v3, v3, 0, 1")
    e("    v_bfi_b32 v4, v2, 0, v4")
    e("    v_and_or_b32 v2, v4, v3, v2")
    e(f"    ds_write_b32 v7, v2 offset:{K1_MSK}")
    e("    s_branch A_OUT")
    e("A_EDGES12:")
    e("    s_waitcnt vmcnt(5)")
    e("    s_branch A_EDGES2")
    e("A_EDGES:")
    e("    s_waitcnt vmcnt(2)")
    e("    s_cmp_lg_u32 s3, 0")
    e("    s_cbranch_scc1 A_EDGES2")
    e("    s_mov_b64 exec, 1")
    e("    v_add_u32 v4, 0x01010101, v125")
    e("    v_add_u32 v5, 0x01010101, v125")
    e(f"    ds_write_b64 v6, v[4:5] offset:{K1_NON}")
    e("A_EDGES2:")
    e("    s_mov_b64 exec, s[72:73]")
    e("    s_mov_b32 s70, 0xffff0000")
    stamp("a_dst")
    for k in range(4):
        e(f"    v_mul_u32_u24 v{24+k}, {TM}, v{12+k}")
        e(f"    v_add_u32 v2, {k}, v8")
        e(f"    v_lshrrev_b32 v{28+k}, 20, v{24+k}")
        e(f"    v_cmp_ne_u32 s[{52+2*k}:{53+2*k}], v{12+k}, v2")
        e(f"    v_lshlrev_b32 v{36+k}, 2, v{28+k}")
    for k in range(4):
        e(f"    s_mov_b64 exec, s[{52+2*k}:{53+2*k}]")
        e(f"    ds_add_rtn_u32 v{32+k}, v{36+k}, v1 offset:{K1_CNT}")
    e("    s_mov_b64 exec, 1")
    e(f"    ds_add_u32 v6, v1 offset:{K1_CNT+K1_DONE}")
    e("    s_mov_b64 exec, s[72:73]")
    for k in range(4):
        e(f"    v_lshrrev_b32 v{24+k}, 12, v{24+k}")
        e(f"    v_mul_u32_u24 v{28+k}, {K1_LS}, v{28+k}")
        e(f"    v_bfi_b32 v{24+k}, 15, v{12+k}, v{24+k}")
    e("    s_mov_b64 s[60:61], 0")
    FIT = ["s[6:7]", "s[8:9]", "s[10:11]", "s[62:63]"]
    for k in range(4):
        e(f"    s_mov_b64 exec, s[{52+2*k}:{53+2*k}]")
        e(f"    s_waitcnt lgkmcnt(4)")
        e(f"    v_cmp_le_u32 s[76:77], 12, v{32+k}")
        e(f"    v_cmp_gt_u32 vcc, {SLOTCAP}, v{32+k}")
        e(f"    v_add_u32 v2, -12, v{32+k}")
        e(f"    v_add_u32 v3, 64, v{28+k}")
        e(f"    s_andn2_b64 s[{52+2*k}:{53+2*k}], exec, vcc")
        e(f"    s_or_b64 s[60:61], s[60:61], s[{52+2*k}:{53+2*k}]")
        e(f"    s_mov_b64 {FIT[k]}, vcc")
        e("    s_mov_b64 exec, vcc")
        e(f"    v_cndmask_b32 v2, v{32+k}, v2, s[76:77]")
        e(f"    v_cndmask_b32 v3, v{28+k}, v3, s[76:77]")
        e("    v_and_b32 v4, 3, v2")
        e("    v_lshrrev_b32 v2, 2, v2")
        e("    v_lshl_add_u32 v3, v4, 4, v3")
        e(f"    v_lshl_add_u32 v{36+k}, v2, 2, v3")
        e("    v_add_u32 v5, v2, v3")
        e(f"    ds_write_b8 v5, v{24+k} offset:12")
    e("    s_mov_b64 exec, s[72:73]")
    e("    s_cmp_eq_u32 s3, 12")
    e("    s_waitcnt vmcnt(3)")
    e("    s_cbranch_scc1 A_ALL")
    e("    s_waitcnt vmcnt(0)")
    e("A_ALL:")
    stamp("a_all")
    for k in range(4):
        if k % 2 == 0:
            e(f"    v_lshl_or_b32 v{16+k}, v{20+k//2}, 16, v{16+k}")
        else:
            e(f"    v_and_or_b32 v{16+k}, v{20+k//2}, s70, v{16+k}")
    for k in range(4):
        e(f"    s_mov_b64 exec, {FIT[k]}")
        e(f"    ds_write_b32 v{36+k}, v{16+k}")
    e("    s_cmp_lg_u64 s[60:61], 0")
    e("    s_cbranch_scc1 A_OVER")
    e("A_OUT:")
    if I("po", 1):
        e("    s_setprio 3")
    e("    s_mov_b64 exec, -1")
    e("    s_waitcnt lgkmcnt(0)")
    stamp("a_pre2")
    e("    s_barrier")
    stamp("a_bar2")
    e(f"    ds_read_b32 v21, v49 offset:{K1_MSK}")
    e(f"    ds_read_u8 v127, v10 offset:{K1_NON}")
    e("    ds_read2_b32 v[12:13], v40 offset0:0 offset1:1")
    e("    ds_read2_b32 v[14:15], v40 offset0:2 offset1:3")
    e("    ds_read2_b32 v[16:17], v41 offset0:0 offset1:1")
    e("    ds_read2_b32 v[18:19], v41 offset0:2 offset1:3")
    e(f"    ds_read_u16 v120, v50 offset:{K1_NON}")
    e(f"    ds_read_b32 v125, v6 offset:{K1_NON}")
    e("    s_cmp_lg_u32 s3, 0")
    e("    s_cbranch_scc1 A_O1")
    e(f"    ds_read_b64 v[24:25], v51 offset:{K1_OVT}")
    e(f"    ds_read_b32 v22, v6 offset:{K1_CNT+K1_OVC}")
    e(f"    ds_read_b32 v23, v53 offset:{K1_MSK}")
    e("    v_cmp_eq_u32 vcc, 7, v10")
    e("    s_waitcnt lgkmcnt(0)")
    e("    v_or_b32 v22, 0xf000, v22")
    e("    v_cndmask_b32 v24, v24, v23, vcc")
    e("    v_cndmask_b32 v25, v25, v22, vcc")
    e("    v_lshl_or_b32 v25, v120, 16, v25")
    e(f"    buffer_store_dwordx2 v[24:25], v52, {R(S_WS)}, s75 offen {SC}")
    e("A_O1:")
    e("    s_waitcnt lgkmcnt(7)")
    for st in range(2):
        e(f"    v_and_b32 v2, v21, v{42+st}")
        e(f"    v_and_b32 v3, v21, v{44+st}")
        e(f"    v_bcnt_u32_b32 v2, v2, v{46+st}")
        e(f"    v_cmp_eq_u32 s[{52+2*st}:{53+2*st}], v3, v{44+st}")
        e(f"    v_lshl_add_u32 v{42+st}, v2, 6, v48")
    e("    s_waitcnt lgkmcnt(6)")
    e("    v_lshlrev_b32 v20, 24, v127")
    e("    s_waitcnt lgkmcnt(4)")
    e("    v_and_or_b32 v15, v15, s64, v20")
    e("    s_mov_b64 exec, s[52:53]")
    e(f"    buffer_store_dwordx4 v[12:15], v42, {R(S_WS)}, s74 offen {SC}")
    e("    s_mov_b64 exec, s[54:55]")
    e("    s_waitcnt lgkmcnt(2)")
    e("    v_and_or_b32 v19, v19, s64, v20")
    e(f"    buffer_store_dwordx4 v[16:19], v43, {R(S_WS)}, s74 offen {SC}")
    e("    s_mov_b64 exec, -1")
    e("A_FIN:")
    e("    s_setprio 0")
    stamp("a_st")


def a_overflow():
    e("A_OVER:")
    srd(S_OVF, 18, 19, 256 * OVF_STRIDE, WS_OVF)
    e("    s_lshl_b32 s62, s2, 15")
    for k in range(4):
        e(f"    s_mov_b64 exec, s[{52+2*k}:{53+2*k}]")
        e(f"    s_cbranch_execz A_OV{k}")
        e(f"    v_mov_b32 v2, {K1_OVC}")
        e(f"    ds_add_rtn_u32 v3, v2, v1 offset:{K1_CNT}")
        e(f"    v_mov_b32 v4, v{16+k}")
        e(f"    v_mov_b32 v5, v{12+k}")
        e("    s_waitcnt lgkmcnt(0)")
        e(f"    v_cmp_gt_u32 vcc, {NINL}, v3")
        e("    v_lshlrev_b32 v3, 3, v3")
        e("    s_andn2_b64 s[76:77], exec, vcc")
        e("    s_mov_b64 exec, vcc")
        e(f"    ds_write_b64 v3, v[4:5] offset:{K1_OVT}")
        e("    s_mov_b64 exec, s[76:77]")
        e(f"    s_cbranch_execz A_OV{k}")
        e(f"    buffer_store_dwordx2 v[4:5], v3, {R(S_OVF)}, s62 offen {SC}")
        e("    s_waitcnt vmcnt(0)")
        e(f"A_OV{k}:")
    e("    s_branch A_OUT")


def setup1():
    srd(S_OVF, 18, 19, 256 * OVF_STRIDE, WS_OVF)
    srd(S_GAT, 4, 5, TABBYTES + 3072, -3072)
    srd(S_STO, 18, 19, TABBYTES, WS_H1)
    e("    s_mov_b32 s20, s14")
    e("    s_mov_b32 s21, s15")
    e(f"    s_mov_b32 s22, {TABBYTES}")
    e(f"    s_add_u32 s24, s18, {WS_H1 - 3072}")
    e("    s_addc_u32 s25, s19, 0")
    if I("rot", 6250):
        e("    s_and_b32 s27, s2, 7")
        e(f"    s_mul_i32 s27, s27, {I('rot', 6250)}")
        e("    s_sub_u32 s27, 0x10000, s27")
    e("    s_and_b32 s29, s2, 7")
    e("    s_lshl_b32 s30, s29, 14")
    e(f"    s_add_u32 s30, s30, {WS_OVT}")
    e("    s_add_u32 s31, s30, 8192")
    e("    s_lshl_b32 s29, s29, 12")
    e("    s_lshr_b32 s26, s2, 3")
    e("    s_bfm_b32 s49, s26, 0")
    e("    s_mov_b32 s2, s65")
    e("    v_mov_b32 v99, 0xf0")
    e("    v_mov_b32 v124, 7")
    e(f"    s_mov_b32 s0, {CNTB}")
    e("    s_mov_b32 s1, 0x07060302")
    e("    s_mov_b32 s71, 0")
    if DIAG:
        e("    s_mov_b32 s48, 0")
        e("    s_mov_b64 s[50:51], 0")
    zero_b_counters((WL - CNTB) // 4)
    e("    v_and_b32 v2, 63, v0")
    e("    v_bfe_u32 v3, v2, 4, 1")
    e("    v_xor_b32 v3, v3, v10")
    e("    v_lshlrev_b32 v83, 4, v3")
    e("    v_add_u32 v80, 3072, v83")
    e("    v_add_u32 v82, 1024, v83")
    e("    v_xor_b32 v83, 64, v83")
    e("    v_add_u32 v81, 2048, v83")
    e("    v_and_b32 v92, 15, v0")
    e("    v_lshrrev_b32 v11, 4, v2")
    e("    v_bfe_u32 v54, v2, 2, 2")
    e("    v_and_b32 v55, 3, v2")
    e("    v_lshl_add_u32 v84, v11, 3, v54")
    e("    v_lshlrev_b32 v84, 7, v84")
    e("    v_lshl_add_u32 v122, v55, 4, v84")
    e(f"    v_add_u32 v122, {WL}, v122")
    if RING:
        e("    v_cmp_eq_u32 vcc, 3, v11")
        e("    v_subrev_u32 v4, 2048, v84")
        e("    s_nop 0")
        e("    v_cndmask_b32 v84, v84, v4, vcc")
    e("    v_lshrrev_b32 v54, 1, v54")
    e("    v_and_b32 v4, 1, v11")
    e("    v_cmp_eq_u32 s[16:17], 1, v4")
    e("    v_lshl_or_b32 v54, v4, 2, v54")
    e("    v_xor_b32 v54, v54, v55")
    e("    v_lshl_add_u32 v84, v54, 4, v84")
    e("    v_and_b32 v4, 1, v55")
    e("    v_lshl_add_u32 v84, v4, 3, v84")
    e(f"    s_mul_i32 s28, s3, {STGW}")
    e("    v_add_u32 v84, s28, v84")
    e("    s_mov_b32 m0, s28")
    assert not RING
    e("    v_xor_b32 v85, 8, v84")
    e("    v_xor_b32 v86, 64, v84")
    e("    v_xor_b32 v87, 72, v84")
    e(f"    s_mul_i32 s76, s3, {TSTR}")
    e(f"    s_add_u32 s76, s76, {LISTS}")
    e("    v_lshrrev_b32 v4, 3, v2")
    e("    v_lshl_add_u32 v88, v4, 2, s76")
    e("    v_lshl_add_u32 v123, v2, 2, s76")
    e(f"    s_add_u32 s76, s76, {CAPT*4}")
    e("    v_lshl_add_u32 v89, v11, 5, s76")
    e("    v_cmp_lt_u32 vcc, 0, v55")
    e("    v_cmp_lt_u32 s[76:77], 1, v55")
    e("    v_lshrrev_b32 v4, 2, v2")
    e("    v_cndmask_b32 v95, 0, -1, vcc")
    e("    v_cndmask_b32 v96, 0, -1, s[76:77]")
    e("    v_cmp_lt_u32 vcc, 2, v55")
    e(f"    v_mul_u32_u24 v98, {TSTR}, v4")
    e(f"    v_add_u32 v98, {LISTS}, v98")
    e("    v_cndmask_b32 v97, 0, -1, vcc")
    e("    v_lshlrev_b32 v90, 4, v2")
    e(f"    v_add_u32 v90, {CNTB}, v90")
    if not SELF:
        for i in range(16):
            e(f"    v_mov_b32 v{64+i}, 0")
    e("    s_lshl_b32 s76, s2, 4")
    e("    s_add_u32 s76, s76, s3")
    e("    s_mul_i32 s77, s76, 50006")
    e("    s_lshr_b32 s77, s77, 12")
    e("    v_subrev_u32 v2, s77, v92")
    e("    v_and_b32 v2, 15, v2")
    e("    v_add_u32 v2, s77, v2")
    e(f"    v_mul_u32_u24 v3, {TM}, v2")
    e("    v_lshrrev_b32 v3, 16, v3")
    e("    v_cmp_eq_u32 s[14:15], s76, v3")
    e("    v_lshlrev_b32 v2, 7, v2")
    e("    v_lshl_add_u32 v121, v11, 4, v2")
    e("    v_lshrrev_b32 v9, 3, v0")
    e("    v_lshlrev_b32 v9, 15, v9")
    e("    v_lshl_add_u32 v9, v10, 4, v9")
    e("    v_lshlrev_b32 v93, 3, v0")


def setup():
    e("    s_mov_b64 s[12:13], 0")
    e("    s_cmp_lt_u32 s3, 12")
    e("    s_cbranch_scc1 S_DONE")
    if I("ovtw", 0) >= 12:
        e(f"    s_cmp_eq_u32 s3, {I('ovtw', 0)}")
        e("    s_waitcnt vmcnt(3)")
        e("    s_cbranch_scc1 S_T")
    e("    s_waitcnt vmcnt(%d)" % (3 if I("pfw", 0) else 2))
    e("S_T:")
    e("    v_cmp_eq_u32 vcc, v112, v115")
    if SELF:
        e("    v_cmp_eq_u32 s[76:77], v113, v115")
        e("    v_lshlrev_b32 v3, 16, v114")
        e("    v_and_b32 v2, 255, v0")
    e("    v_lshl_or_b32 v113, v114, 16, v113")
    e("    s_and_b64 s[12:13], s[66:67], vcc")
    if SELF:
        e("    s_and_b64 vcc, s[12:13], s[76:77]")
        e("    s_andn2_b64 s[12:13], s[12:13], s[76:77]")
        e("    v_lshlrev_b32 v2, 2, v2")
        e("    v_cndmask_b32 v3, 0, v3, vcc")
        e(f"    v_add_u32 v2, {SELFN}, v2")
        e("    ds_write_b32 v2, v3")
    decode_key(113, 0, 0, 6)
    decode_data(113, 0, 0, 6)
    e("    s_cmp_eq_u32 s3, 12")
    e("    s_cbranch_scc1 S_DONE")
    e(f"    v_subrev_u32 v2, {13*64}, v0")
    e("    v_lshlrev_b32 v2, 4, v2")
    e(f"    v_cmp_gt_u32 vcc, 2048, v2")
    e(f"    v_add_u32 v2, {WL}, v2")
    e("    ds_write_b128 v2, v[100:103]")
    e("    ds_write_b128 v2, v[104:107] offset:3072")
    e("    s_and_saveexec_b64 s[76:77], vcc")
    e("    ds_write_b128 v2, v[108:111] offset:6144")
    e("    s_mov_b64 exec, -1")
    e("S_DONE:")
    stamp("s_done")


COMMON = [0, 1, 2, 3, 4, 5]
RARE = [6, 7]


def body():
    e(f".globl {NAME}")
    e(".p2align 8")
    e(f".type {NAME},@function")
    e(f"{NAME}:")
    phase_a()
    PFW = I("pfw", 0)
    if PFW:
        srd(S_GAT, 4, 5, TABBYTES + 3072, -3072)
        e("    s_lshl_b32 s76, s2, 4")
        e("    s_add_u32 s76, s76, s3")
        e(f"    s_add_u32 s76, s76, {16 * I('pfwo', 0)}")
        e("    s_and_b32 s76, s76, 4095")
        e("    s_mul_i32 s76, s76, 50006")
        e("    s_lshr_b32 s76, s76, 12")
        e("    v_and_b32 v2, 63, v0")
        e("    v_add_lshl_u32 v2, v2, s76, 7")
        if I("pfwb", 1):
            e("    s_barrier")
        e(f"    s_mov_b64 exec, {(1 << PFW) - 1}")
        e(f"    buffer_load_dword v126, v2, {R(S_GAT)}, 0 offen offset:3072")
        e("    s_mov_b64 exec, -1")
    setup1()
    setup()
    if I("noovtack", 0):
        e(f"    s_cmp_eq_u32 s3, {I('ovtw', 0)}")
        e("    s_waitcnt vmcnt(1) lgkmcnt(0)")
        e("    s_cbranch_scc1 G1_ACKD")
    if I("ackb", 1):
        e("    s_waitcnt vmcnt(%d) lgkmcnt(0)" % (1 if I("pfw", 0) else 0))
    else:
        e("    s_waitcnt lgkmcnt(0)")
    e("G1_ACKD:")
    e("    s_lshl_b32 s76, s3, 6")
    e(f"    s_add_u32 s76, s76, {SELFN}")
    e("    v_lshl_add_u32 v126, v92, 2, s76")
    stamp("g1_ack")
    if GATE == 1:
        e(f"    buffer_load_dwordx2 v[116:117], v93, {R(S_WS)}, s30 offen {SC}")
        e(f"    buffer_load_dwordx2 v[118:119], v93, {R(S_WS)}, s31 offen {SC}")
    e("    s_barrier")
    stamp("g1_exit")
    e("    ds_read_b32 v126, v126")
    if GATE == 1:
        e("    s_branch COLLECT1")

    e("COLLECT:")
    if GATE:
        e(f"    buffer_load_dwordx2 v[116:117], v93, {R(S_WS)}, s30 offen {SC}")
        e(f"    buffer_load_dwordx2 v[118:119], v93, {R(S_WS)}, s31 offen {SC}")
    e("COLLECT1:")
    e("    s_mov_b32 s68, s29")
    e(f"    s_add_u32 s69, s68, {128*32768}")
    e(f"    s_mov_b32 s75, {SPINMAX}")
    e("    v_cmp_gt_u32 s[8:9], 4, v10")
    e("    s_waitcnt vmcnt(0)")
    if I("b2", 0):
        e("    s_barrier")
    e("C_CHK2:")
    e("    v_cmp_ne_u32_sdwa vcc, v117, v120 src0_sel:WORD_1 src1_sel:DWORD")
    e("    v_cmp_ne_u32_sdwa s[76:77], v119, v120 src0_sel:WORD_1 src1_sel:DWORD")
    e("    v_mov_b32_dpp v4, v116 quad_perm:[3,3,3,3] row_mask:0xf bank_mask:0xf")
    e("    v_mov_b32_dpp v5, v118 quad_perm:[3,3,3,3] row_mask:0xf bank_mask:0xf")
    e("    s_or_b64 vcc, vcc, s[76:77]")
    e("    s_cbranch_scc1 C_RETRY2")
    e("C_OK2:")
    stamp("b_gate")
    e("    v_mov_b32_dpp v4, v4 row_half_mirror row_mask:0xf bank_mask:0x5")
    e("    v_mov_b32_dpp v5, v5 row_half_mirror row_mask:0xf bank_mask:0x5")
    ACT = ["s[62:63]", "s[10:11]"]
    for i in range(2):
        e(f"    v_and_b32 v2, s49, v{4+i}")
        e(f"    v_bfe_u32 v3, v{4+i}, s26, 1")
        e("    v_bcnt_u32_b32 v2, v2, s26")
        e("    v_cmp_eq_u32 vcc, 1, v3")
        e(f"    v_lshl_add_u32 v{6+i}, v2, 6, v9")
        e(f"    s_or_b64 exec, vcc, s[8:9]")
        e(f"    buffer_load_dwordx4 v[{12+4*i}:{15+4*i}], v{6+i}, {R(S_WS)}, s{68+i} offen {SC}")
        e(f"    s_mov_b64 {ACT[i]}, exec")
        e("    s_mov_b64 exec, -1")

    def ovt_masks():
        e("    v_and_b32 v117, 0xffff, v117")
        e("    v_and_b32 v119, 0xffff, v119")
        e(f"    v_mul_u32_u24 v2, {TM}, v117")
        e(f"    v_mul_u32_u24 v3, {TM}, v119")
        e("    v_cmp_eq_u32 s[8:9], 7, v10")
        e(f"    s_mov_b32 s76, {0xf000 + NINL}")
        e(f"    v_cmp_lt_u32 s[72:73], s76, v117")
        e(f"    v_cmp_lt_u32 vcc, s76, v119")
        e("    v_lshrrev_b32 v2, 20, v2")
        e("    v_lshrrev_b32 v3, 20, v3")
        e("    v_cmp_eq_u32 s[4:5], s2, v2")
        e("    v_cmp_eq_u32 s[6:7], s2, v3")
        e("    s_and_b64 s[72:73], s[72:73], s[8:9]")
        e("    s_and_b64 vcc, vcc, s[8:9]")
        e("    s_lshr_b64 s[72:73], s[72:73], 1")
        e("    s_or_b64 s[72:73], s[72:73], vcc")
    if GATE:
        ovt_masks()
    e(f"    s_mov_b64 {PEND(6)}, s[12:13]")
    e(f"    s_mov_b64 {PEND(7)}, 0")
    e("    s_movk_i32 s70, 0xffff")
    e(f"    s_mov_b64 exec, {PEND(6)}")
    e("    s_cbranch_execz C_NT")
    e("    ds_add_rtn_u32 v38, v46, v1")
    e("C_NT:")
    e("    s_mov_b64 exec, -1")
    for i in range(2):
        base = 12 + 4 * i
        e(f"    s_mov_b64 exec, {ACT[i]}")
        e(f"    s_waitcnt vmcnt({1-i})")
        e(f"C_CHK{i}:")
        e(f"    v_cmp_ne_u32_sdwa vcc, v{base+3}, v127 src0_sel:BYTE_3 src1_sel:DWORD")
        e(f"    s_cbranch_vccnz C_RETRY{i}")
        e(f"C_OK{i}:")
        stamp("b_lines" if i == 0 else "b_lines1")
        for k in range(3):
            e(f"    v_cmp_ne_u16 {PEND(3*i+k)}, s70, v{base+k}")
        if i == 1 and I("early", 0):
            own_x()
        for k in range(3):
            decode_key(base + k, base + 3, k, 3 * i + k)
        for k in range(3):
            s_ = 3 * i + k
            e(f"    s_mov_b64 exec, {PEND(s_)}")
            e(f"    ds_add_rtn_u32 v{32+s_}, v{40+s_}, v1")
        e("    s_mov_b64 exec, -1")
        for k in range(3):
            decode_data(base + k, base + 3, k, 3 * i + k)
    if not GATE:
        e("    s_waitcnt vmcnt(0)")
        e("C_CHK2:")
        e("    v_cmp_ne_u32_sdwa vcc, v117, v120 src0_sel:WORD_1 src1_sel:DWORD")
        e("    v_cmp_ne_u32_sdwa s[76:77], v119, v120 src0_sel:WORD_1 src1_sel:DWORD")
        e("    s_or_b64 vcc, vcc, s[76:77]")
        e("    s_cbranch_scc1 C_RETRY2")
        e("C_OK2:")
        ovt_masks()
    e("    s_mov_b64 s[68:69], 0")
    e("    s_or_b64 s[76:77], s[4:5], s[6:7]")
    e("    s_or_b64 s[76:77], s[76:77], s[72:73]")
    e("    s_cbranch_scc1 EXTRA")
    e("CDONE:")
    e("    s_lshl_b32 s75, s3, 2")
    e("    s_add_u32 s75, s75, 3")
    e("    s_waitcnt lgkmcnt(0)")
    e("    s_barrier")
    stamp2("b_bar1", "")
    e("    ds_read_b128 v[4:7], v90")
    prefetch_common(PF4)
    if I("ptouch", 3) & 2:
        e("    s_cmp_lg_u32 s3, 15")
        e("    s_cbranch_scc1 PT_D")
        e("    s_lshl_b32 s76, s2, 8")
        e(f"    s_add_u32 s76, s76, {WS_FLAG}")
        e("    v_lshlrev_b32 v2, 7, v92")
        e("    s_mov_b64 exec, 3")
        e(f"    buffer_load_dword v91, v2, {R(S_WS)}, s76 offen sc1")
        e("    s_mov_b64 exec, -1")
        e("PT_D:")
    if OPTB and I("poiw", 2) == 0:
        poison()
    if SELF:
        if not I("early", 0):
            own_x()
    elif I("pfx", 1):
        own_rows(S_GAT, "offset:3072")
    if OPTB and I("poiw", 2) == 1:
        poison()
    e("    s_waitcnt lgkmcnt(0)")
    e("    v_add_u32 v5, v4, v5")
    e("    v_add_u32 v6, v5, v6")
    e("    v_add_u32 v7, v6, v7")
    e("    s_nop 1")
    e("    v_and_b32_dpp v28, v7, v95 quad_perm:[0,0,0,0] row_mask:0xf bank_mask:0xf")
    e("    v_and_b32_dpp v29, v7, v96 quad_perm:[1,1,1,1] row_mask:0xf bank_mask:0xf")
    e("    v_and_b32_dpp v30, v7, v97 quad_perm:[2,2,2,2] row_mask:0xf bank_mask:0xf")
    e("    v_add3_u32 v28, v28, v29, v30")
    e("    v_add_u32 v7, v28, v7")
    e("    v_lshl_add_u32 v28, v28, 2, v98")
    e(f"    v_cmp_lt_u32 vcc, {CAPT}, v7")
    e("    v_lshl_add_u32 v29, v4, 2, v28")
    e("    v_lshl_add_u32 v30, v5, 2, v28")
    e("    v_lshl_add_u32 v31, v6, 2, v28")
    e("    v_readlane_b32 s74, v7, s75")
    e("    ds_write_b128 v90, v[28:31] offset:1024")
    for s in RARE:
        e(f"    s_mov_b64 exec, {PEND(s)}")
        e(f"    s_cbranch_execz P_R{s}")
        e(f"    ds_read_b32 v{20+s}, v{40+s} offset:1024")
        e(f"P_R{s}:")
    for s in COMMON:
        e(f"    s_mov_b64 exec, {PEND(s)}")
        e(f"    ds_read_b32 v{20+s}, v{40+s} offset:1024")
    e(f"    s_min_u32 s74, s74, {CAPT}")
    e("    s_cbranch_vccnz SLOWW")
    for s in COMMON:
        e(f"    s_mov_b64 exec, {PEND(s)}")
        e(f"    s_waitcnt lgkmcnt({len(COMMON)-1})")
        e(f"    v_lshl_add_u32 v{20+s}, v{32+s}, 2, v{20+s}")
        e(f"    ds_write2st64_b32 v{20+s}, v{48+s}, v{56+s} offset0:0 offset1:5")
        e(f"    s_mov_b64 {PEND(s)}, 0")
    for s in RARE:
        e(f"    s_mov_b64 exec, {PEND(s)}")
        e(f"    s_cbranch_execz P_W{s}")
        e(f"    v_lshl_add_u32 v{20+s}, v{32+s}, 2, v{20+s}")
        e(f"    ds_write2st64_b32 v{20+s}, v{48+s}, v{56+s} offset0:0 offset1:5")
        e(f"    s_mov_b64 {PEND(s)}, 0")
        e(f"P_W{s}:")
    e("WDONE:")
    if RING:
        e("    s_add_u32 s76, s74, 7")
        e("    s_andn2_b32 s76, s76, 7")
        e("    s_max_u32 s76, s76, 48")
        e("    s_sub_u32 s76, s76, s74")
    else:
        e("    s_sub_u32 s76, 0, s74")
        e("    s_and_b32 s76, s76, 31")
    e("    s_bfm_b64 exec, s76, 0")
    e("    s_lshl_b32 s77, s74, 2")
    e("    v_add_u32 v2, s77, v123")
    e(f"    v_mov_b32 v3, {PADV}")
    e("    ds_write2st64_b32 v2, v3, v3 offset0:0 offset1:5")
    e("    s_mov_b64 exec, -1")
    e(f"    v_mov_b32 v4, {MORE}")
    e("    s_waitcnt lgkmcnt(0)")
    e("    s_barrier")
    stamp2("b_bar2", "")
    e("    ds_read_b32 v8, v4")

    def next_k():
        e("    s_mov_b32 s8, 1")
        e("    s_cmp_gt_i32 s9, s10")
        e("    s_addc_u32 s8, s8, 0")
        e("    s_lshl_b32 s11, s10, 1")
        e("    s_cmp_gt_i32 s9, s11")
        e("    s_addc_u32 s8, s8, 0")
        if KMAX == 4:
            e("    s_add_i32 s11, s11, s10")
            e("    s_cmp_gt_i32 s9, s11")
            e("    s_addc_u32 s8, s8, 0")
        e("    s_min_i32 s8, s8, s9")
        e("    s_sub_i32 s9, s9, s8")
        e("    s_sub_i32 s10, s10, 1")
        e("    s_lshl_b32 s11, s8, 5")

    def read_recs(a, b, adv):
        e(f"    ds_read2_b32 v[100:101], v{a} offset0:0 offset1:8")
        if KMAX == 4:
            e(f"    ds_read2_b32 v[102:103], v{a} offset0:16 offset1:24")
        else:
            e(f"    ds_read_b32 v102, v{a} offset:64")
        e(f"    ds_read_b128 v[104:107], v{b}")
        e(f"    ds_read_b128 v[108:111], v{b} offset:16")
        e(f"    v_add_u32 v93, {adv}, v{a}")
        e(f"    v_add_u32 v94, {adv}, v{b}")

    def dma(i):
        e(f"    buffer_load_dwordx4 v{100+i}, {R(S_GAT)}, 0 offen offset:{1024*i} lds")

    def addr():
        for i in range(KMAX):
            e(f"    v_add_u32 v{100+i}, v{100+i}, v{80+i}")

    def build_b(w, breg=112):
        for j in range(8):
            e(f"    v_bfe_i32 v{32+j}, v{104+j}, v92, {w}")
        for j in range(8):
            e(f"    v_and_b32 v{32+j}, v{32+j}, v{104+j}")
        for j in range(4):
            e(f"    v_perm_b32 v{breg+j}, v{32+2*j+1}, v{32+2*j}, s1")

    def mfmas(breg=112):
        for t in range(4):
            e(f"    v_mfma_f32_16x16x32_bf16 v[{64+4*t}:{67+4*t}], v[{12+4*t}:{15+4*t}], v[{breg}:{breg+3}], v[{64+4*t}:{67+4*t}]")

    def trs(off):
        for t in range(4):
            for u in range(2):
                e(f"    ds_read_b64_tr_b16 v[{12+4*t+2*u}:{13+4*t+2*u}], v{84+t} offset:{off+512*u}")

    e("MAIN:")
    e("    s_cmp_eq_u32 s74, 0")
    e("    s_cbranch_scc1 EMPTY")
    read_recs(88, 89, 32 * KMAX)
    if PRIO == 1:
        for g in range(1, 4):
            e(f"    s_cmp_lt_u32 s3, {4*g}")
            e("    s_cbranch_scc1 PRIOD")
            e(f"    s_setprio {g}")
        e("PRIOD:")
    e("    s_add_u32 s9, s74, 7")
    e("    s_lshr_b32 s9, s9, 3")
    e(f"    s_sub_i32 s9, s9, {KMAX}")
    e("    s_max_i32 s9, s9, 0")
    e(f"    s_mov_b32 s10, {NB-1}")
    if RING:
        e("    s_mov_b32 m0, s28")
        e("    v_cmp_gt_u32 vcc, 3, v11")
    e("    s_waitcnt lgkmcnt(2)")
    addr()
    for i in range(KMAX):
        dma(i)
    next_k()
    if not RING:
        e("    s_waitcnt lgkmcnt(0)")
        build_b("1")
        read_recs(93, 94, "s11")
        if SELF:
            e("    s_bitcmp1_b32 s71, 3")
            e("    s_cbranch_scc1 LOOP")
            e("    s_or_b32 s71, s71, 8")
            e("    s_waitcnt vmcnt(4)")
            self_init()
        if OPTB and I("poiw", 2) == 2:
            e("    s_bitcmp1_b32 s71, 0")
            e("    s_cbranch_scc1 LOOP")
            for i in range(4):
                e(f"    v_mov_b32 v{4+i}, -1")
            e("    s_mov_b64 exec, s[14:15]")
            e(f"    buffer_store_dwordx4 v[4:7], v121, {R(S_STO)}, 0 offen sc1")
            e(f"    buffer_store_dwordx4 v[4:7], v121, {R(S_STO)}, 0 offen offset:64 sc1")
            e("    s_mov_b64 exec, -1")
            e("    s_waitcnt vmcnt(2)")
            e("    s_branch LOOPB")
        e("LOOP:")
        e("    s_waitcnt vmcnt(0)")
        e("LOOPB:")
        e("    v_cmp_gt_u32 vcc, s8, v11")
        trs(0)
        e("    s_cmp_eq_u32 s8, 0")
        e("    v_cndmask_b32 v91, 0, v1, vcc")
        e("    s_waitcnt lgkmcnt(8)")
        addr()
        e("    s_waitcnt lgkmcnt(0)")
        e("    s_cbranch_scc1 LAST")
        dma(0)
        e("    s_cmp_eq_u32 s8, 1")
        e("    s_cbranch_scc1 DMAD")
        dma(1)
        e("    s_cmp_eq_u32 s8, 2")
        e("    s_cbranch_scc1 DMAD")
        dma(2)
        e("    s_cmp_eq_u32 s8, 3")
        e("    s_cbranch_scc1 DMAD")
        dma(3)
        e("DMAD:")
        mfmas()
        next_k()
        build_b("v91")
        read_recs(93, 94, "s11")
        e("    s_branch LOOP")
        e("LAST:")
        mfmas()
    else:
        BR = [112, 4]
        e("    v_cndmask_b32 v91, 0, v1, vcc")
        e("    s_mov_b32 s26, 3")
        e("    s_waitcnt lgkmcnt(0)")
        build_b("v91", BR[0])
        read_recs(93, 94, "s11")
        e("    s_mov_b32 m0, s29")
        e("    s_waitcnt lgkmcnt(2)")
        addr()
        for par in range(2):
            e(f"LOOP{par}:")
            e("    v_cmp_gt_u32 vcc, s8, v11")
            e("    s_cmp_eq_u32 s8, 0")
            e("    s_waitcnt vmcnt(0)")
            e(f"    s_cbranch_scc1 LAST{par}")
            dma(0)
            e("    s_cmp_eq_u32 s26, 1")
            e(f"    s_cbranch_scc1 DMAD{par}")
            dma(1)
            e("    s_cmp_eq_u32 s26, 2")
            e(f"    s_cbranch_scc1 DMAD{par}")
            dma(2)
            e(f"DMAD{par}:")
            trs(BUFB * par)
            e("    v_cndmask_b32 v91, 0, v1, vcc")
            next_k()
            e("    s_mov_b32 s26, s8")
            e(f"    s_mov_b32 m0, s{28 + par}")
            e("    s_waitcnt lgkmcnt(8)")
            build_b("v91", BR[1 - par])
            read_recs(93, 94, "s11")
            e("    s_waitcnt lgkmcnt(4)")
            mfmas(BR[par])
            e("    s_waitcnt lgkmcnt(2)")
            addr()
        e("    s_branch LOOP0")
        e("LAST1:")
        trs(BUFB)
        e("    s_waitcnt lgkmcnt(0)")
        mfmas(BR[1])
        e("    s_branch MAINDONE")
        e("LAST0:")
        trs(0)
        e("    s_waitcnt lgkmcnt(0)")
        mfmas(BR[0])
    e("MAINDONE:")
    e("    s_waitcnt lgkmcnt(0)")
    e("    v_readfirstlane_b32 s75, v8")
    e("    s_cmp_lg_u32 s75, 0")
    e("    s_cbranch_scc1 AGAIN")

    if PRIO:
        e("    s_setprio 0")
    stamp2("h1_done", "h2_done")
    WREG = [40, 44, 48, 52, 56, 60, 28, 116]

    def w_frags():
        for s_ in range(2):
            for t in range(4):
                for u in range(2):
                    off = (32 * s_ + 4 * u) * 128 + 64 * (t >> 1) + 8 * (t & 1)
                    r = WREG[s_ * 4 + t] + 2 * u
                    e(f"    ds_read_b64_tr_b16 v[{r}:{r+1}], v122 offset:{off}")

    e("    s_waitcnt vmcnt(0)")
    e("    s_nop 0")
    for t in range(4):
        e(f"    v_cvt_pk_bf16_f32 v{12+2*t}, v{64+4*t}, v{65+4*t}")
        e(f"    v_cvt_pk_bf16_f32 v{13+2*t}, v{66+4*t}, v{67+4*t}")
    if OPTB:
        e("    v_cmp_u_f32 vcc, v64, v72")
    e("    s_mov_b64 exec, s[16:17]")
    e("    v_swap_b32 v12, v14")
    e("    v_swap_b32 v13, v15")
    e("    v_swap_b32 v16, v18")
    e("    v_swap_b32 v17, v19")
    e("    s_bitcmp1_b32 s71, 0")
    e("    s_cbranch_scc1 FINAL")
    e("    s_mov_b64 exec, s[14:15]")
    e(f"    buffer_store_dwordx4 v[12:15], v121, {R(S_STO)}, 0 offen {SC}")
    e(f"    buffer_store_dwordx4 v[16:19], v121, {R(S_STO)}, 0 offen offset:64 {SC}")
    e("    s_mov_b64 exec, -1")
    stamp("h1_st")

    def book():
        e(f"    s_mov_b32 s{S_GAT}, s{S_GH}")
        e(f"    s_mov_b32 s{S_GAT+1}, s{S_GH+1}")
        e("    s_or_b32 s71, s71, 1")
        self_init(12)
        e("    s_bitcmp1_b32 s71, 1")
        e("    s_cbranch_scc1 E_IRR")
        w_frags()
        e("E_BAR:")
    barrier_addrs()
    grid_barrier("g2", book)
    e("    v_mov_b32 v8, 0")
    e("    s_bitcmp0_b32 s71, 1")
    e("    s_cbranch_scc1 MAIN")
    e("    s_branch E_IRR2" if OPTB else "    s_branch COLLECT")
    e("FINAL:")
    e("    s_mov_b64 exec, -1")
    if OPTB:
        e("    s_cbranch_vccnz REDO")
        e("F_OK:")
    e("    s_bitcmp1_b32 s71, 1")
    e("    s_cbranch_scc1 F_GETW")
    e("F_HAVEW:")
    for t in range(4):
        w = WREG[t]
        e(f"    v_mfma_f32_16x16x32_bf16 v[{64+4*t}:{67+4*t}], v[{w}:{w+3}], v[12:15], 0")
    for t in range(4):
        w = WREG[4 + t]
        e(f"    v_mfma_f32_16x16x32_bf16 v[{64+4*t}:{67+4*t}], v[{w}:{w+3}], v[16:19], v[{64+4*t}:{67+4*t}]")
    e("    s_nop 4")
    for t in range(4):
        if t:
            e("    s_nop 1")
        e(f"    v_cvt_pk_bf16_f32 v{12+2*t}, v{64+4*t}, v{65+4*t}")
        e(f"    v_cvt_pk_bf16_f32 v{13+2*t}, v{66+4*t}, v{67+4*t}")
    e("    s_mov_b64 exec, s[14:15]")
    e(f"    buffer_store_dwordx4 v[12:15], v121, {R(S_OUT)}, 0 offen {ST_OUT}")
    e(f"    buffer_store_dwordx4 v[16:19], v121, {R(S_OUT)}, 0 offen offset:64 {ST_OUT}")
    stamp_out()
    e("END:")
    e("    s_endpgm")

    for i in range(2):
        base = 12 + 4 * i
        e(f"C_RETRY{i}:")
        e(f"    buffer_load_dwordx4 v[{base}:{base+3}], v{6+i}, {R(S_WS)}, s{68+i} offen {SC}")
        e("    s_sub_u32 s75, s75, 1")
        e("    s_cmp_eq_u32 s75, 0")
        e("    s_waitcnt vmcnt(0)")
        e(f"    s_cbranch_scc0 C_CHK{i}")
        e("    s_mov_b32 s75, 1000")
        if DIAG:
            e(f"    s_or_b32 s48, s48, {1 << i}")
            e("    s_mov_b64 s[50:51], vcc")
        e(f"    s_branch C_OK{i}")
    e("C_RETRY2:")
    if I("bo", 4):
        e(f"    s_sleep {I('bo', 4)}")
    e(f"    buffer_load_dwordx2 v[116:117], v93, {R(S_WS)}, s30 offen {SC}")
    e(f"    buffer_load_dwordx2 v[118:119], v93, {R(S_WS)}, s31 offen {SC}")
    e("    s_sub_u32 s75, s75, 1")
    e("    s_cmp_eq_u32 s75, 0")
    e("    s_waitcnt vmcnt(0)")
    e("    s_cbranch_scc0 C_CHK2")
    e("    s_mov_b32 s75, 1000")
    if DIAG:
        e("    s_or_b32 s48, s48, 4")
        e("    s_mov_b64 s[50:51], vcc")
    e("    s_branch C_OK2")
    a_overflow()
    e("AGAIN:")
    e("    s_or_b32 s71, s71, 2")
    e("    s_barrier")
    zero_b_counters((WL - CNTB) // 4)
    e("    s_waitcnt lgkmcnt(0)")
    e("    s_barrier")
    for s in range(7):
        e(f"    s_mov_b64 exec, {PEND(s)}")
        e(f"    ds_add_rtn_u32 v{32+s}, v{40+s}, v1")
    e("EXTRA:")
    for m, r in (("s[4:5]", 116), ("s[6:7]", 118)):
        e(f"    s_andn2_b64 exec, {m}, {PEND(7)}")
        e(f"    s_andn2_b64 {m}, {m}, exec")
        e(f"    s_or_b64 {PEND(7)}, {PEND(7)}, exec")
        decode_full(r, r + 1, 7)
    e("    s_mov_b64 exec, -1")
    e("    s_or_b64 s[76:77], s[4:5], s[6:7]")
    e("    s_cbranch_scc1 OVFULL")
    e("    s_mov_b32 s75, 0")
    e("OVL:")
    e("    s_cmp_lt_u32 s68, s69")
    e("    s_cbranch_scc1 OVLOAD")
    e("    s_cmp_eq_u64 s[72:73], 0")
    e("    s_cbranch_scc1 OVDONE")
    e("    s_ff1_i32_b64 s76, s[72:73]")
    e("    s_bitset0_b64 s[72:73], s76")
    e("    s_or_b32 s77, s76, 7")
    e("    v_readlane_b32 s68, v117, s77")
    e("    v_readlane_b32 s69, v119, s77")
    e("    s_bitcmp1_b32 s76, 0")
    e("    s_cselect_b32 s69, s69, s68")
    e("    s_and_b32 s69, s69, 0xfff")
    e(f"    s_min_u32 s69, s69, {CHMAX}")
    e("    s_and_b32 s77, s76, 1")
    e("    s_lshl_b32 s77, s77, 7")
    e("    s_lshr_b32 s76, s76, 3")
    e("    s_add_u32 s76, s76, s77")
    e("    s_lshl_b32 s77, s3, 3")
    e("    s_add_u32 s76, s76, s77")
    e("    s_lshl_b32 s70, s76, 15")
    e(f"    s_mov_b32 s68, {NINL}")
    e("OVLOAD:")
    e("    v_add_u32 v4, s75, v0")
    e("    v_and_b32 v4, 63, v4")
    e("    v_add_u32 v4, s68, v4")
    e("    v_lshlrev_b32 v5, 3, v4")
    e(f"    buffer_load_dwordx2 v[28:29], v5, {R(S_OVF)}, s70 offen {SC}")
    e("    s_waitcnt vmcnt(0)")
    e(f"    v_mul_u32_u24 v30, {TM}, v29")
    e("    v_lshrrev_b32 v31, 20, v30")
    e("    v_cmp_gt_u32 vcc, s69, v4")
    e("    v_cmp_eq_u32 s[76:77], s2, v31")
    e("    s_and_b64 vcc, s[76:77], vcc")
    e(f"    s_and_b64 s[76:77], vcc, {PEND(7)}")
    e("    s_cbranch_scc1 OVFULL")
    e(f"    s_or_b64 {PEND(7)}, {PEND(7)}, vcc")
    e("    s_add_u32 s68, s68, 64")
    e("    s_add_u32 s75, s75, 16")
    e("    s_mov_b64 exec, vcc")
    decode_full(28, 29, 7)
    e("    s_mov_b64 exec, -1")
    e("    s_branch OVL")
    e("OVFULL:")
    e(f"    v_mov_b32 v2, {MORE}")
    e("    ds_write_b32 v2, v1")
    e("OVDONE:")
    e(f"    s_mov_b64 exec, {PEND(7)}")
    e("    ds_add_rtn_u32 v39, v47, v1")
    e("    s_mov_b64 exec, -1")
    e("    s_branch CDONE")
    e("SLOWW:")
    e("    s_waitcnt lgkmcnt(0)")
    for s in range(8):
        e(f"    s_mov_b64 exec, {PEND(s)}")
        e(f"    v_lshl_add_u32 v{20+s}, v{32+s}, 2, v{20+s}")
        e(f"    v_subrev_u32 v3, s0, v{40+s}")
        e("    v_lshrrev_b32 v3, 6, v3")
        e(f"    v_mul_u32_u24 v3, {TSTR}, v3")
        e(f"    v_add_u32 v3, {LISTS + CAPT*4}, v3")
        e(f"    v_cmp_lt_u32 vcc, v{20+s}, v3")
        e(f"    s_andn2_b64 {PEND(s)}, exec, vcc")
        e("    s_mov_b64 exec, vcc")
        e(f"    ds_write2st64_b32 v{20+s}, v{48+s}, v{56+s} offset0:0 offset1:5")
    e("    s_mov_b64 exec, -1")
    e(f"    v_mov_b32 v3, {MORE}")
    e("    ds_write_b32 v3, v1")
    e("    s_branch WDONE")
    e("E_IRR:")
    zero_b_counters(256)
    barrier_addrs()
    e("    v_lshrrev_b32 v9, 3, v0")
    e("    v_lshlrev_b32 v9, 15, v9")
    e("    v_lshl_add_u32 v9, v10, 4, v9")
    e("    v_lshlrev_b32 v93, 3, v0")
    e("    s_waitcnt lgkmcnt(0)")
    e("    s_branch E_BAR")
    if OPTB:
        e("E_IRR2:")
        e("    s_or_b32 s71, s71, 4")
        barrier_addrs()
        e(f"    s_add_u32 s77, s77, {FL2}")
        poll_flags("g3", "COLLECT")
        e("    s_branch COLLECT")
        e("REDO:")
        e("    s_bitcmp1_b32 s71, 2")
        e("    s_cbranch_scc1 F_OK")
        e("    s_or_b32 s71, s71, 4")
        if DIAG:
            e("    s_or_b32 s48, s48, 8")
        barrier_addrs()
        e(f"    s_add_u32 s77, s77, {FL2}")
        poll_flags("g4", "REDO2")
        e("REDO2:")
        e("    buffer_inv sc1")
        for i in range(16):
            e(f"    v_mov_b32 v{64+i}, 0")
        e("    v_mov_b32 v8, 0")
        e("    s_waitcnt vmcnt(0)")
        e("    s_branch MAIN")
    e("EMPTY:")
    if SELF:
        e("    s_bitcmp1_b32 s71, 3")
        e("    s_cbranch_scc1 MAINDONE")
        e("    s_or_b32 s71, s71, 8")
        e("    s_waitcnt vmcnt(0)")
        self_init()
    e("    s_branch MAINDONE")
    e("F_GETW:")
    w_frags()
    e("    s_waitcnt lgkmcnt(0)")
    e("    s_branch F_HAVEW")
    e("CODE_END:")


def spin_kernel():
    na, nb_, mode, mult, wlo, whi = (SPIN.split(",") + ["0", "15"])[:6]
    wlo, whi = int(wlo), int(whi)
    ia, ib, mode, mult = STL.index(na), STL.index(nb_), int(mode), int(mult)
    init = "0x80000000" if mode == 0 else "0x7fffffff" if mode == 1 else "0"
    e(".globl sgc_spin_kernel")
    e(".p2align 8")
    e(".type sgc_spin_kernel,@function")
    e("sgc_spin_kernel:")
    e("    s_memrealtime s[30:31]")
    e("    s_cmp_ge_u32 s2, 1")
    e("    s_cbranch_scc1 SP_END")
    e("    s_load_dwordx8 s[12:19], s[0:1], 32")
    e("    v_lshlrev_b32 v1, 6, v0")
    e("    v_mov_b32 v4, 0x7fffffff")
    e(f"    v_mov_b32 v5, {init}")
    e("    s_mov_b32 s23, 0x20000")
    e("    s_waitcnt lgkmcnt(0)")
    srd(20, 18, 19, 1 << 20, WS_STAMP)
    e("    s_mov_b32 s24, 0")
    e("SP_RD:")
    e(f"    buffer_load_dword v2, v1, s[20:23], s24 offen offset:{4*ia}")
    e(f"    buffer_load_dword v3, v1, s[20:23], s24 offen offset:{4*ib}")
    e("    s_add_u32 s24, s24, 4096")
    e("    s_cmp_lt_u32 s24, 0x40000")
    e("    s_waitcnt vmcnt(0)")
    e("    v_subrev_u32 v2, s30, v2")
    e("    v_subrev_u32 v3, s30, v3")
    e("    v_min_i32 v4, v4, v2")
    e("    %s v5, v5, v3" % ("v_max_i32" if mode == 0 else "v_min_i32" if mode == 1 else "v_add_u32"))
    e("    s_cbranch_scc1 SP_RD")
    e("    s_mov_b32 s26, 0x7fffffff")
    e(f"    s_mov_b32 s27, {init}")
    e("    s_nop 1")
    for l in range(64):
        e(f"    v_readlane_b32 s28, v4, {l}")
        e(f"    v_readlane_b32 s29, v5, {l}")
        e("    s_min_i32 s26, s26, s28")
        if wlo <= (l & 15) <= whi:
            e("    %s s27, s27, s29" % ("s_max_i32" if mode == 0 else "s_min_i32" if mode == 1 else "s_add_u32"))
    if mode == 2:
        e("    s_ashr_i32 s27, s27, %d" % (8 + (whi - wlo + 1).bit_length() - 1))
    e("    s_sub_i32 s26, s27, s26")
    e("    s_max_i32 s26, s26, 0")
    e("    s_min_i32 s26, s26, 20000")
    e(f"    s_mul_i32 s26, s26, {mult}")
    e("    s_add_u32 s26, s26, 10000")
    e("SP_LOOP:")
    e("    s_memrealtime s[28:29]")
    e("    s_waitcnt lgkmcnt(0)")
    e("    s_sub_u32 s28, s28, s30")
    e("    s_cmp_lt_u32 s28, s26")
    e("    s_cbranch_scc1 SP_LOOP")
    e("SP_END:")
    e("    s_endpgm")


def desc(name, vg, sg):
    e(".p2align 6")
    e(f".amdhsa_kernel {name}")
    e(f"  .amdhsa_next_free_vgpr {vg}")
    e(f"  .amdhsa_next_free_sgpr {sg}")
    e(f"  .amdhsa_accum_offset {vg}")
    e("  .amdhsa_group_segment_fixed_size 0")
    e("  .amdhsa_kernarg_size 64")
    e("  .amdhsa_user_sgpr_count 2")
    e("  .amdhsa_user_sgpr_kernarg_segment_ptr 1")
    e("  .amdhsa_system_sgpr_workgroup_id_x 1")
    e(".end_amdhsa_kernel")


SPIN = OPT.get("spin")
if SPIN:
    e(f"; @launch kernel={NAME} grid=(256,1,1) block=(1024,1,1) lds={LDS}")
    e("; @launch kernel=sgc_spin_kernel grid=(1,1,1) block=(64,1,1) lds=0")
else:
    e(f"; @launch grid=(256,1,1) block=(1024,1,1) lds={LDS}")
e('.amdgcn_target "amdgcn-amd-amdhsa--gfx950"')
e(".text")
body()
if SPIN:
    spin_kernel()
e('.section .rodata,"a"')
if SPIN:
    desc("sgc_spin_kernel", 8, 40)
desc(NAME, 128, 102 if DIAG else 78)
open(OUT, "w").write("\n".join(L) + "\n")
```

```python
import sys

OUT = [a for a in sys.argv[1:] if not a.startswith("--")][0]
OPT = dict(a[2:].split("=") for a in sys.argv[1:] if a.startswith("--") and "=" in a)
NAME = "standalone__spectral_conv_sgc__graph_kernel"
DEFST = "start,a_bar2,g1_exit,b_gate,b_lines,b_bar1,b_bar2,h1_done,g2_exit,h2_done,end"
STL = OPT.get("st", DEFST if "--diag" in sys.argv else "").split(",")
STL = [s for s in STL if s]
DIAG = len(STL) > 0


def I(name, dflt):
    return int(OPT.get(name, dflt))


N = 50000
E = 850000
ET = 800000
TM = 5368
CHMAX = 13 * 256
SLOTCAP = 24
NINL = 7
WS_OVT = 8 << 20
WS_FLAG = WS_OVT + 131072
WS_H1 = WS_OVT + (1 << 20)
WS_OVF = 16 << 20
OVF_STRIDE = 32768
WS_STAMP = 32 << 20
TABBYTES = N * 128
PADV = 0x40000000

K1_LS = 132
K1_CNT = 256 * K1_LS
K1_OVC = 1024
K1_DONE = 1028
K1_OVT = K1_CNT + 4096
K1_NON = K1_OVT + 64
K1_MSK = K1_NON + 16
LISTS = 65536
CAPT = 320
TSTR = CAPT * 8
CNTB = LISTS + 16 * TSTR + 256
BASES = CNTB + 1024
MORE = BASES + 1024
WL = MORE + 128
assert WL % 128 == 0
SELFN = WL + 8192
LDS = SELFN + 1024

SC = "sc1"
ST_OUT = OPT.get("stout", "sc1")
SPINMAX = I("spinmax", 20000000)
NB = I("nb", 8)
TSH = I("tsh", 20)
ROT = I("rot", 6250)
SP = I("sp", 1)
EARLY = I("early", 0)

L = []


def e(s=""):
    L.append(s)


def srd(d, lo, hi, nbytes, off=0):
    if off == 0:
        e(f"    s_mov_b64 s[{d}:{d+1}], s[{lo}:{hi}]")
    elif off > 0:
        e(f"    s_add_u32 s{d}, s{lo}, {off}")
        e(f"    s_addc_u32 s{d+1}, s{hi}, 0")
    else:
        e(f"    s_sub_u32 s{d}, s{lo}, {-off}")
        e(f"    s_subb_u32 s{d+1}, s{hi}, 0")
    e(f"    s_mov_b32 s{d+2}, {nbytes}")
    e(f"    s_mov_b32 s{d+3}, s23")


S_SRC, S_DST, S_NRM, S_WS, S_OVF, S_GAT, S_STO = 20, 24, 28, 32, 36, 40, 44
S_OUT, S_GH = S_SRC, S_DST


def R(d):
    return f"s[{d}:{d+3}]"


STAMP_BASE = 78


def stamp(name):
    if name in STL:
        i = STL.index(name)
        e(f"    s_memrealtime s[{STAMP_BASE+2*i}:{STAMP_BASE+2*i+1}]")


def stamp2(n1, n2):
    if n1 in STL or n2 in STL:
        n = len(L)
        e("    s_bitcmp1_b32 s71, 0")
        e(f"    s_cbranch_scc1 ST{n}_B")
        stamp(n1)
        e(f"    s_branch ST{n}_C")
        e(f"ST{n}_B:")
        stamp(n2)
        e(f"ST{n}_C:")


def stamp_out():
    if not DIAG:
        return
    e("    s_waitcnt vmcnt(0) lgkmcnt(0)")
    stamp("end")
    e("    s_waitcnt lgkmcnt(0)")
    e("    s_mov_b64 exec, 1")
    srd(28, 18, 19, 1 << 20, WS_STAMP)
    e("    s_lshl_b32 s76, s2, 4")
    e("    s_add_u32 s76, s76, s3")
    e("    s_lshl_b32 s76, s76, 6")
    e("    v_mov_b32 v2, s76")
    for i in range(len(STL)):
        e(f"    v_mov_b32 v3, s{STAMP_BASE+2*i}")
        e(f"    buffer_store_dword v3, v2, s[28:31], 0 offen offset:{4*i}")
    e("    s_getreg_b32 s76, hwreg(HW_REG_XCC_ID)")
    e("    v_mov_b32 v3, s76")
    e("    buffer_store_dword v3, v2, s[28:31], 0 offen offset:56")
    e("    s_lshl_b32 s76, s48, 16")
    e("    s_or_b32 s76, s76, s74")
    e("    v_mov_b32 v3, s76")
    e("    buffer_store_dword v3, v2, s[28:31], 0 offen offset:60")
    e("    v_mov_b32 v3, s50")
    e("    buffer_store_dword v3, v2, s[28:31], 0 offen offset:48")
    e("    v_mov_b32 v3, s51")
    e("    buffer_store_dword v3, v2, s[28:31], 0 offen offset:52")


def PEND(s):
    return f"s[{52+2*s}:{53+2*s}]"


def prio_by_age(lbl):
    for g in range(1, 4):
        e(f"    s_cmp_lt_u32 s3, {4*g}")
        e(f"    s_cbranch_scc1 {lbl}")
        e(f"    s_setprio {g}")
    e(f"{lbl}:")


def decode_key(rec, meta, k, s):
    ca = 40 + s
    e(f"    v_add_u32 v2, s27, v{rec}")
    e(f"    v_and_b32_sdwa v3, v{meta}, v99 dst_sel:DWORD dst_unused:UNUSED_PAD src0_sel:BYTE_{k} src1_sel:DWORD")
    e("    v_bfe_u32 v2, v2, 12, 4")
    e("    v_or_b32 v2, v2, v3")
    e(f"    v_lshl_add_u32 v{ca}, v2, 2, s0")


def decode_data(rec, meta, k, s):
    d0, d1 = 48 + s, 56 + s
    e(f"    v_lshlrev_b32_sdwa v{d0}, v124, v{rec} dst_sel:DWORD dst_unused:UNUSED_PAD src0_sel:DWORD src1_sel:WORD_0")
    e(f"    v_mov_b32 v{d1}, v{rec}")
    e(f"    v_lshlrev_b16_sdwa v{d1}, v{meta}, v1 dst_sel:WORD_0 dst_unused:UNUSED_PRESERVE src0_sel:BYTE_{k} src1_sel:DWORD")


def decode_full(rec, dst, s):
    e(f"    v_mul_u32_u24 v30, {TM}, v{dst}")
    e("    v_lshrrev_b32 v30, 12, v30")
    e(f"    v_bfi_b32 v30, 15, v{dst}, v30")
    decode_key(rec, 30, 0, s)
    decode_data(rec, 30, 0, s)


def zero_b_counters(n):
    e("    v_lshlrev_b32 v2, 2, v0")
    e(f"    v_add_u32 v2, {CNTB}, v2")
    e("    v_mov_b32 v3, 0")
    e(f"    v_cmp_gt_u32 vcc, {n}, v0")
    e("    s_and_saveexec_b64 s[76:77], vcc")
    e("    ds_write_b32 v2, v3")
    e("    s_mov_b64 exec, -1")


def collect_addrs():
    e("    v_lshrrev_b32 v9, 3, v0")
    e("    v_lshlrev_b32 v9, 15, v9")
    e("    v_lshl_add_u32 v9, v10, 4, v9")
    e("    v_lshlrev_b32 v93, 3, v0")


def own_x():
    e("    s_bitcmp1_b32 s71, 3")
    e("    s_cbranch_scc1 NOOWN")
    e("    s_mov_b64 exec, s[14:15]")
    e(f"    buffer_load_dwordx4 v[64:67], v121, {R(S_GAT)}, 0 offen offset:3072")
    e(f"    buffer_load_dwordx4 v[68:71], v121, {R(S_GAT)}, 0 offen offset:3136")
    e("NOOWN:")
    e("    s_mov_b64 exec, -1")


def self_init(b):
    e("    s_mov_b64 exec, s[16:17]")
    e(f"    v_swap_b32 v{b}, v{b+2}")
    e(f"    v_swap_b32 v{b+1}, v{b+3}")
    e(f"    v_swap_b32 v{b+4}, v{b+6}")
    e(f"    v_swap_b32 v{b+5}, v{b+7}")
    e("    s_mov_b64 exec, -1")
    for i in reversed(range(8)):
        e(f"    v_and_b32 v{65+2*i}, 0xffff0000, v{b+i}")
        e(f"    v_lshlrev_b32 v{64+2*i}, 16, v{b+i}")
    for i in range(16):
        e(f"    v_mul_f32 v{64+i}, v126, v{64+i}")


def phase_a():
    stamp("start")
    e("    s_load_dwordx2 s[24:25], s[0:1], 16")
    e("    s_load_dwordx2 s[20:21], s[0:1], 8")
    e("    s_load_dwordx2 s[28:29], s[0:1], 24")
    e("    s_load_dwordx2 s[10:11], s[0:1], 56")
    e("    s_getpc_b64 s[6:7]")
    e("CPF_PC:")
    e("    v_cmp_gt_u32 vcc, (CODE_END-CPF_PC)/128, v0")
    e("    v_lshlrev_b32 v2, 7, v0")
    e("    s_and_saveexec_b64 s[8:9], vcc")
    e("    s_cbranch_execz CPF_D")
    e("    global_load_dword v126, v2, s[6:7] offset:124")
    e(f"    v_mov_b32 v2, {WS_FLAG}")
    e("    s_waitcnt lgkmcnt(0)")
    e("    global_load_dword v125, v2, s[10:11] sc1")
    e("CPF_D:")
    e("    s_mov_b64 exec, -1")
    e("    s_cmp_ge_u32 s2, 256")
    e("    s_cbranch_scc1 END")
    e("    v_lshrrev_b32 v3, 6, v0")
    e("    v_and_b32 v2, 63, v0")
    e("    s_mov_b32 s23, 0x20000")
    e(f"    s_mov_b32 s22, {E*4}")
    e("    v_lshlrev_b32 v4, 18, v3")
    e("    s_mov_b64 s[26:27], s[22:23]")
    e("    v_lshl_or_b32 v4, v2, 4, v4")
    e("    s_lshr_b32 s30, s22, 1")
    e("    s_mov_b32 s31, s23")
    e("    v_lshrrev_b32 v5, 1, v4")
    e("    s_lshl_b32 s68, s2, 10")
    e("    v_cmp_gt_u32 vcc, 13, v3")
    e("    s_lshl_b32 s69, s2, 9")
    e("    s_waitcnt lgkmcnt(0)")
    e("    s_cbranch_vccz A_NOLD")
    LI = OPT.get("ldin", "")
    e(f"    buffer_load_dwordx4 v[12:15], v4, {R(S_DST)}, s68 offen {LI}")
    e(f"    buffer_load_dwordx4 v[16:19], v4, {R(S_SRC)}, s68 offen {LI}")
    e(f"    buffer_load_dwordx2 v[20:21], v5, {R(S_NRM)}, s69 offen {LI}")
    e("A_NOLD:")
    stamp("a_issue")
    e("    s_load_dwordx8 s[12:19], s[0:1], 32")
    e("    s_load_dwordx2 s[4:5], s[0:1], 0")
    e("    v_readfirstlane_b32 s3, v3")
    e("    v_lshlrev_b32 v9, 2, v0")
    e("    v_mov_b32 v6, 0")
    e(f"    ds_write_b32 v9, v6 offset:{K1_CNT}")
    for i in range(4):
        e(f"    v_mov_b32 v{24+i}, -1")
    e("    v_lshlrev_b32 v7, 4, v0")
    e("    ds_write_b128 v7, v[24:27]")
    e("    ds_write_b128 v7, v[24:27] offset:16384")
    e("    v_add_u32 v4, s68, v4")
    e("    v_lshrrev_b32 v8, 2, v4")
    e("    v_cmp_gt_u32 s[72:73], s22, v4")
    e(f"    v_subrev_u32 v8, {ET}, v8")
    e("    v_mov_b32 v1, 1")
    e("    v_and_b32 v10, 7, v0")
    srd(S_WS, 10, 11, WS_H1 + TABBYTES)
    e("    s_cmp_lt_u32 s3, 13")
    e("    s_cbranch_scc1 A_BAR")
    e("    s_cmp_lt_u32 s3, 14")
    e("    s_cbranch_scc1 A_H13")
    e("    s_cmp_eq_u32 s3, 14")
    e("    s_cbranch_scc1 A_H14")
    e(f"    ds_write_b128 v7, v[24:27] offset:{32768 - 15*1024}")
    e("    v_and_b32 v5, 60, v9")
    e("    v_mov_b32 v7, 0xffff")
    e(f"    ds_write_b32 v5, v7 offset:{K1_OVT}")
    e("    s_branch A_BAR")
    e("A_H14:")
    e(f"    v_lshlrev_b32 v2, {TSH}, v2")
    e(f"    buffer_load_dword v126, v2, {R(S_WS)}, 0 offen sc1")
    e("    s_waitcnt lgkmcnt(0)")
    srd(S_GAT, 4, 5, TABBYTES)
    e(f"    buffer_load_dword v126, v2, {R(S_GAT)}, 0 offen")
    srd(S_OVF, 14, 15, TABBYTES)
    e(f"    buffer_load_dword v126, v2, {R(S_OVF)}, 0 offen sc1")
    e("    s_branch A_BAR")
    e("A_H13:")
    e("    s_lshl_b32 s77, s2, 9")
    e(f"    s_add_u32 s77, s77, {WS_OVT}")
    e("    v_lshlrev_b32 v2, 7, v2")
    e("    s_mov_b64 exec, 15")
    e(f"    buffer_load_dword v126, v2, {R(S_WS)}, s77 offen sc1")
    e("    s_mov_b64 exec, -1")
    e("A_BAR:")
    e("    s_lshr_b32 s76, s2, 6")
    e("    s_add_u32 s77, s76, s2")
    e("    s_and_b32 s77, s77, 7")
    e("    s_lshl_b32 s77, s77, 5")
    e("    s_add_u32 s77, s77, s76")
    e("    s_bfe_u32 s76, s2, 0x30003")
    e("    s_lshl_b32 s76, s76, 2")
    e("    s_add_u32 s65, s77, s76")
    prio_by_age("A_PRD")
    e("    s_waitcnt lgkmcnt(0)")
    e("    s_barrier")
    stamp("a_bar1")
    e("    s_cmp_lt_u32 s3, 12")
    e("    s_cbranch_scc1 A_SETUP")
    e("    v_bfe_u32 v2, v0, 4, 4")
    e("    s_lshl_b32 s76, s65, 4")
    e("    v_add_u32 v2, s76, v2")
    e("    v_mul_u32_u24 v3, 50006, v2")
    e("    v_lshrrev_b32 v3, 12, v3")
    e("    v_sub_u32 v4, v0, v3")
    e("    v_and_b32 v4, 15, v4")
    e("    v_add_u32 v115, v3, v4")
    e(f"    v_add_u32 v4, {ET}, v115")
    e("    v_lshlrev_b32 v5, 2, v4")
    e("    v_lshlrev_b32 v4, 1, v4")
    e(f"    buffer_load_dword v112, v5, {R(S_DST)}, 0 offen")
    e(f"    buffer_load_dword v113, v5, {R(S_SRC)}, 0 offen")
    e(f"    buffer_load_ushort v114, v4, {R(S_NRM)}, 0 offen")
    e(f"    v_mul_u32_u24 v4, {TM}, v115")
    e("    v_lshrrev_b32 v4, 16, v4")
    e("    v_cmp_eq_u32 s[66:67], v4, v2")
    e(f"    v_cmp_gt_u32 vcc, {N}, v115")
    e("    s_and_b64 s[66:67], s[66:67], vcc")
    e("    s_cmp_eq_u32 s3, 12")
    e("    s_cbranch_scc1 A_SETUP")
    srd(S_STO, 12, 13, 8192)
    e(f"    v_subrev_u32 v2, {13*64}, v0")
    e("    v_lshlrev_b32 v2, 4, v2")
    e(f"    buffer_load_dwordx4 v[100:103], v2, {R(S_STO)}, 0 offen")
    e(f"    buffer_load_dwordx4 v[104:107], v2, {R(S_STO)}, 0 offen offset:3072")
    e("    v_add_u32 v3, 6144, v2")
    e(f"    buffer_load_dwordx4 v[108:111], v3, {R(S_STO)}, 0 offen")
    e("A_SETUP:")
    e("    s_lshr_b32 s76, s3, 1")
    e("    s_add_u32 s76, s76, s2")
    e("    s_and_b32 s76, s76, 7")
    e("    s_lshl_b32 s74, s2, 15")
    e("    s_lshl_b32 s77, s76, 12")
    e("    s_add_u32 s74, s74, s77")
    e("    s_lshl_b32 s77, s76, 2")
    e("    v_mov_b32 v49, s77")
    e("    s_and_b32 s75, s3, 1")
    e("    s_lshl_b32 s75, s75, 1")
    e("    v_bfe_u32 v2, v0, 3, 3")
    e("    v_lshlrev_b32 v48, 4, v10")
    e("    v_cmp_lt_u32 vcc, 3, v10")
    e(f"    v_mul_u32_u24 v3, {4*K1_LS}, v2")
    e("    v_add_u32 v3, v3, v48")
    for st in range(2):
        e("    s_add_u32 s77, s76, s75")
        e("    s_and_b32 s77, s77, 7")
        e("    s_lshl_b32 s77, s77, 5")
        e("    s_add_u32 s77, s77, s75")
        e(f"    s_mul_i32 s77, s77, {K1_LS}")
        e(f"    v_add_u32 v{40+st}, s77, v3")
        e(f"    v_lshl_add_u32 v{46+st}, s75, 3, v2")
        e(f"    v_lshlrev_b32 v{44+st}, v{46+st}, v1")
        e(f"    v_add_u32 v{42+st}, -1, v{44+st}")
        e(f"    v_cndmask_b32 v{44+st}, 0, v{44+st}, vcc")
        e("    s_add_u32 s75, s75, 1")
    e("    v_and_b32 v50, 6, v10")
    e("    v_lshlrev_b32 v51, 3, v10")
    e("    v_lshl_add_u32 v52, v2, 14, v51")
    e("    s_mov_b32 s64, 0xffffff")
    e("    s_cmp_lt_u32 s3, 12")
    e("    s_cbranch_scc1 A_EDGES")
    e("    s_cmp_eq_u32 s3, 12")
    e("    s_cbranch_scc1 A_EDGES12")
    e("    s_cmp_lg_u32 s3, 15")
    e("    s_cbranch_scc1 A_OUT")
    e("    v_bfe_u32 v2, v0, 3, 2")
    e("    v_bfe_u32 v3, v0, 5, 1")
    e("    v_add_u32 v3, v3, v2")
    e("    v_lshl_add_u32 v3, v3, 5, v2")
    e("    v_lshl_add_u32 v3, v10, 2, v3")
    e("    v_lshlrev_b32 v12, 2, v3")
    for n in range(1, 4):
        e(f"    v_add_u32 v{12+n}, 256, v{11+n}")
        e(f"    v_and_b32 v{12+n}, 1023, v{12+n}")
    e("    v_lshlrev_b32 v7, 2, v10")
    e("A_MPOLL:")
    e(f"    ds_read_b32 v2, v6 offset:{K1_CNT+K1_DONE}")
    e("    s_waitcnt lgkmcnt(0)")
    e("    v_cmp_gt_u32 vcc, 13, v2")
    e("    s_cbranch_vccnz A_MPOLL")
    for n in range(4):
        e(f"    ds_read_b32 v{16+n}, v{12+n} offset:{K1_CNT}")
    for n in range(4):
        e(f"    s_waitcnt lgkmcnt({3-n})")
        e(f"    v_cmp_lt_u32 s[{52+2*n}:{53+2*n}], 12, v{16+n}")
    e("    s_nop 1")
    for n in range(8):
        e(f"    v_writelane_b32 v2, s{52+n}, {n}")
    e("    s_mov_b64 exec, 0xff")
    e("    v_bcnt_u32_b32 v3, v2, 0")
    e("    v_add_u32 v4, 1, v2")
    e("    v_bfe_i32 v3, v3, 0, 1")
    e("    v_bfi_b32 v4, v2, 0, v4")
    e("    v_and_or_b32 v2, v4, v3, v2")
    e(f"    ds_write_b32 v7, v2 offset:{K1_MSK}")
    e("    s_branch A_OUT")
    e("A_EDGES12:")
    e("    s_waitcnt vmcnt(5)")
    e("    s_branch A_EDGES2")
    e("A_EDGES:")
    e("    s_cmp_lg_u32 s3, 0")
    e("    s_waitcnt vmcnt(2)")
    e("    s_cbranch_scc1 A_EDGES2")
    e("    v_lshlrev_b32 v53, 2, v2")
    e("    s_lshl_b32 s75, s2, 6")
    e(f"    s_add_u32 s75, s75, {WS_OVT}")
    e("    s_mov_b64 exec, 1")
    e("    v_add_u32 v4, 0x01010101, v125")
    e("    v_add_u32 v5, 0x01010101, v125")
    e(f"    ds_write_b64 v6, v[4:5] offset:{K1_NON}")
    e("A_EDGES2:")
    e("    s_mov_b64 exec, s[72:73]")
    stamp("a_dst")
    for k in range(4):
        e(f"    v_mul_u32_u24 v{24+k}, {TM}, v{12+k}")
        e(f"    v_sub_u32 v2, v{12+k}, v8")
        e(f"    v_lshrrev_b32 v{28+k}, 20, v{24+k}")
        e(f"    v_cmp_ne_u32 s[{52+2*k}:{53+2*k}], {k}, v2")
        e(f"    v_lshlrev_b32 v{36+k}, 2, v{28+k}")
    for k in range(4):
        e(f"    s_mov_b64 exec, s[{52+2*k}:{53+2*k}]")
        e(f"    ds_add_rtn_u32 v{32+k}, v{36+k}, v1 offset:{K1_CNT}")
    e("    s_mov_b64 exec, 1")
    e(f"    ds_add_u32 v6, v1 offset:{K1_CNT+K1_DONE}")
    e("    s_mov_b64 exec, s[72:73]")
    for k in range(4):
        e(f"    v_lshrrev_b32 v{24+k}, 12, v{24+k}")
        e(f"    v_mul_u32_u24 v{28+k}, {K1_LS}, v{28+k}")
        e(f"    v_bfi_b32 v{24+k}, 15, v{12+k}, v{24+k}")
    e("    s_mov_b32 s70, 0xffff0000")
    FIT = ["s[6:7]", "s[8:9]", "s[10:11]", "s[62:63]"]
    for k in range(4):
        e(f"    s_mov_b64 exec, s[{52+2*k}:{53+2*k}]")
        e("    s_waitcnt lgkmcnt(4)")
        e(f"    v_cmp_le_u32 vcc, 12, v{32+k}")
        e(f"    v_cmp_gt_u32 {FIT[k]}, {SLOTCAP}, v{32+k}")
        e(f"    v_and_b32 v4, 3, v{32+k}")
        e(f"    v_lshrrev_b32 v2, 2, v{32+k}")
        e("    v_cndmask_b32 v3, 0, 61, vcc")
        e(f"    v_lshl_add_u32 v4, v4, 4, v{28+k}")
        e(f"    s_mov_b64 exec, {FIT[k]}")
        e("    v_add3_u32 v5, v4, v3, v2")
        e("    v_cndmask_b32 v3, 0, 52, vcc")
        e("    v_lshl_add_u32 v4, v2, 2, v4")
        e(f"    ds_write_b8 v5, v{24+k} offset:12")
        e(f"    v_add_u32 v{36+k}, v4, v3")
    for k in range(4):
        e(f"    s_andn2_b64 s[{52+2*k}:{53+2*k}], s[{52+2*k}:{53+2*k}], {FIT[k]}")
    e("    s_or_b64 s[60:61], s[52:53], s[54:55]")
    e("    s_or_b64 s[76:77], s[56:57], s[58:59]")
    e("    s_or_b64 s[60:61], s[60:61], s[76:77]")
    e("    s_mov_b64 exec, s[72:73]")
    e("    s_cmp_eq_u32 s3, 12")
    e("    s_waitcnt vmcnt(3)")
    e("    s_cbranch_scc1 A_ALL")
    e("    s_waitcnt vmcnt(0)")
    e("A_ALL:")
    stamp("a_all")
    for k in range(4):
        if k % 2 == 0:
            e(f"    v_lshl_or_b32 v{16+k}, v{20+k//2}, 16, v{16+k}")
        else:
            e(f"    v_and_or_b32 v{16+k}, v{20+k//2}, s70, v{16+k}")
    for k in range(4):
        e(f"    s_mov_b64 exec, {FIT[k]}")
        e(f"    ds_write_b32 v{36+k}, v{16+k}")
    e("    s_cmp_lg_u64 s[60:61], 0")
    e("    s_cbranch_scc1 A_OVER")
    e("A_OUT:")
    e("    s_setprio 3")
    e("    s_mov_b64 exec, -1")
    e("    s_cmp_lg_u32 s3, 0")
    e("    s_waitcnt lgkmcnt(0)")
    stamp("a_pre2")
    e("    s_barrier")
    stamp("a_bar2")
    e(f"    ds_read_u16 v120, v50 offset:{K1_NON}")
    e("    s_cbranch_scc1 A_O1")
    e(f"    ds_read_b64 v[24:25], v51 offset:{K1_OVT}")
    e(f"    ds_read_b32 v22, v6 offset:{K1_CNT+K1_OVC}")
    e(f"    ds_read_b32 v23, v53 offset:{K1_MSK}")
    e("    v_cmp_eq_u32 vcc, 7, v10")
    e("    s_waitcnt lgkmcnt(0)")
    e("    v_or_b32 v22, 0xf000, v22")
    e("    v_cndmask_b32 v24, v24, v23, vcc")
    e("    v_cndmask_b32 v25, v25, v22, vcc")
    e("    v_lshl_or_b32 v25, v120, 16, v25")
    e(f"    buffer_store_dwordx2 v[24:25], v52, {R(S_WS)}, s75 offen {SC}")
    e("A_O1:")
    e(f"    ds_read_b32 v21, v49 offset:{K1_MSK}")
    e(f"    ds_read_u8 v127, v10 offset:{K1_NON}")
    e("    ds_read2_b32 v[12:13], v40 offset0:0 offset1:1")
    e("    ds_read2_b32 v[14:15], v40 offset0:2 offset1:3")
    e("    ds_read2_b32 v[16:17], v41 offset0:0 offset1:1")
    e("    ds_read2_b32 v[18:19], v41 offset0:2 offset1:3")
    e("    s_waitcnt lgkmcnt(5)")
    for st in range(2):
        e(f"    v_and_b32 v2, v21, v{42+st}")
        e(f"    v_and_b32 v3, v21, v{44+st}")
        e(f"    v_bcnt_u32_b32 v2, v2, v{46+st}")
        e(f"    v_cmp_eq_u32 s[{52+2*st}:{53+2*st}], v3, v{44+st}")
        e(f"    v_lshl_add_u32 v{42+st}, v2, 6, v48")
    e("    s_waitcnt lgkmcnt(4)")
    e("    v_lshlrev_b32 v20, 24, v127")
    e("    s_waitcnt lgkmcnt(2)")
    e("    v_and_or_b32 v15, v15, s64, v20")
    e("    s_mov_b64 exec, s[52:53]")
    e(f"    buffer_store_dwordx4 v[12:15], v42, {R(S_WS)}, s74 offen {SC}")
    e("    s_mov_b64 exec, s[54:55]")
    e("    s_waitcnt lgkmcnt(0)")
    e("    v_and_or_b32 v19, v19, s64, v20")
    e(f"    buffer_store_dwordx4 v[16:19], v43, {R(S_WS)}, s74 offen {SC}")
    e("    s_setprio 0")
    e("    s_mov_b64 exec, -1")
    stamp("a_st")
    e(f"    ds_read_b32 v125, v6 offset:{K1_NON}")


def a_overflow():
    e("A_OVER:")
    srd(S_OVF, 18, 19, 256 * OVF_STRIDE, WS_OVF)
    e("    s_lshl_b32 s62, s2, 15")
    for k in range(4):
        e(f"    s_mov_b64 exec, s[{52+2*k}:{53+2*k}]")
        e(f"    s_cbranch_execz A_OV{k}")
        e(f"    ds_add_rtn_u32 v3, v6, v1 offset:{K1_CNT+K1_OVC}")
        e(f"    v_mov_b32 v4, v{16+k}")
        e(f"    v_mov_b32 v5, v{12+k}")
        e("    s_waitcnt lgkmcnt(0)")
        e(f"    v_cmp_gt_u32 vcc, {NINL}, v3")
        e("    v_lshlrev_b32 v3, 3, v3")
        e("    s_andn2_b64 s[76:77], exec, vcc")
        e("    s_mov_b64 exec, vcc")
        e(f"    ds_write_b64 v3, v[4:5] offset:{K1_OVT}")
        e("    s_mov_b64 exec, s[76:77]")
        e(f"    s_cbranch_execz A_OV{k}")
        e(f"    buffer_store_dwordx2 v[4:5], v3, {R(S_OVF)}, s62 offen {SC}")
        e("    s_waitcnt vmcnt(0)")
        e(f"A_OV{k}:")
    e("    s_branch A_OUT")


def setup1():
    e("    s_and_b32 s29, s2, 7")
    e(f"    s_mul_i32 s27, s29, {ROT}")
    e("    s_sub_u32 s27, 0x10000, s27")
    e("    s_lshl_b32 s30, s29, 14")
    e(f"    s_add_u32 s30, s30, {WS_OVT}")
    e("    s_add_u32 s31, s30, 8192")
    e("    s_lshl_b32 s29, s29, 12")
    e("    s_lshr_b32 s26, s2, 3")
    e("    s_bfm_b32 s49, s26, 0")
    e("    s_mov_b32 s2, s65")
    e("    v_mov_b32 v99, 0xf0")
    e("    v_mov_b32 v124, 7")
    e(f"    s_mov_b32 s0, {CNTB}")
    e("    s_mov_b32 s1, 0x07060302")
    e("    s_mov_b32 s71, 0")
    if DIAG:
        e("    s_mov_b32 s48, 0")
        e("    s_mov_b64 s[50:51], 0")
    zero_b_counters((WL - CNTB) // 4)
    collect_addrs()
    srd(S_OVF, 18, 19, 256 * OVF_STRIDE, WS_OVF)
    srd(S_GAT, 4, 5, TABBYTES + 3072, -3072)
    srd(S_STO, 18, 19, TABBYTES, WS_H1)
    e("    s_mov_b64 s[20:21], s[14:15]")
    e(f"    s_mov_b32 s22, {TABBYTES}")
    e(f"    s_add_u32 s24, s18, {WS_H1 - 3072}")
    e("    s_addc_u32 s25, s19, 0")


def setup2():
    e("    v_and_b32 v2, 63, v0")
    e("    v_bfe_u32 v3, v2, 4, 1")
    e("    v_cmp_eq_u32 s[16:17], 1, v3")
    e("    v_xor_b32 v22, v3, v10")
    e("    v_lshlrev_b32 v83, 4, v22")
    e("    v_add_u32 v80, 3072, v83")
    e("    v_add_u32 v82, 1024, v83")
    e("    v_xor_b32 v83, 64, v83")
    e("    v_add_u32 v81, 2048, v83")
    e("    v_and_b32 v92, 15, v0")
    e("    v_lshrrev_b32 v11, 4, v2")
    e("    v_bfe_u32 v20, v2, 2, 2")
    e("    v_and_b32 v21, 3, v2")
    e("    v_lshl_add_u32 v84, v11, 3, v20")
    e("    v_lshlrev_b32 v84, 7, v84")
    e("    v_lshrrev_b32 v20, 1, v20")
    e("    v_lshl_or_b32 v20, v3, 2, v20")
    e("    v_xor_b32 v20, v20, v21")
    e("    v_lshl_add_u32 v84, v20, 4, v84")
    e("    v_and_b32 v22, 1, v21")
    e("    s_lshl_b32 s76, s3, 12")
    e("    v_lshl_add_u32 v84, v22, 3, v84")
    e("    s_mov_b32 m0, s76")
    e(f"    v_add_u32 v122, {WL}, v84")
    e("    v_add_u32 v84, s76, v84")
    e(f"    s_mul_i32 s76, s3, {TSTR}")
    e("    v_xor_b32 v85, 8, v84")
    e("    v_xor_b32 v86, 64, v84")
    e("    v_xor_b32 v87, 72, v84")
    e(f"    s_add_u32 s76, s76, {LISTS}")
    e("    v_lshrrev_b32 v22, 3, v2")
    e("    v_lshl_add_u32 v88, v22, 2, s76")
    e("    v_lshl_add_u32 v123, v2, 2, s76")
    e(f"    s_add_u32 s76, s76, {CAPT*4}")
    e("    v_lshl_add_u32 v89, v11, 5, s76")
    e("    v_sub_u32 v95, 0, v21")
    e("    v_sub_u32 v96, 1, v21")
    e("    v_sub_u32 v97, 2, v21")
    e("    v_ashrrev_i32 v95, 31, v95")
    e("    v_ashrrev_i32 v96, 31, v96")
    e("    v_ashrrev_i32 v97, 31, v97")
    e("    v_lshrrev_b32 v22, 2, v2")
    e(f"    v_mul_u32_u24 v98, {TSTR}, v22")
    e(f"    v_add_u32 v98, {LISTS}, v98")
    e("    v_lshl_add_u32 v90, v2, 4, s0")
    e("    s_lshl_b32 s76, s2, 4")
    e("    s_add_u32 s76, s76, s3")
    e("    s_mul_i32 s77, s76, 50006")
    e("    s_lshr_b32 s77, s77, 12")
    e("    v_subrev_u32 v2, s77, v92")
    e("    v_and_b32 v2, 15, v2")
    e("    v_add_u32 v2, s77, v2")
    e(f"    v_mul_u32_u24 v3, {TM}, v2")
    e("    v_lshrrev_b32 v3, 16, v3")
    e("    v_cmp_eq_u32 s[14:15], s76, v3")
    e("    v_lshlrev_b32 v2, 7, v2")
    e("    v_lshl_add_u32 v121, v11, 4, v2")


def setup3():
    e("    s_mov_b64 s[12:13], 0")
    e("    s_cmp_lt_u32 s3, 12")
    e("    s_cbranch_scc1 S_DONE")
    e("    s_waitcnt vmcnt(2)")
    e("    v_cmp_eq_u32 vcc, v112, v115")
    e("    v_cmp_eq_u32 s[76:77], v113, v115")
    e("    v_lshlrev_b32 v3, 16, v114")
    e("    v_and_b32 v2, 255, v0")
    e("    v_or_b32 v113, v3, v113")
    e("    s_and_b64 s[12:13], s[66:67], vcc")
    e("    s_and_b64 vcc, s[12:13], s[76:77]")
    e("    s_andn2_b64 s[12:13], s[12:13], s[76:77]")
    e("    v_lshlrev_b32 v2, 2, v2")
    e("    v_cndmask_b32 v3, 0, v3, vcc")
    e(f"    v_add_u32 v2, {SELFN}, v2")
    e("    ds_write_b32 v2, v3")
    e("    s_cbranch_scc0 S_NT")
    decode_key(113, 0, 0, 6)
    decode_data(113, 0, 0, 6)
    e("S_NT:")
    e("    s_cmp_eq_u32 s3, 12")
    e("    s_cbranch_scc1 S_DONE")
    e(f"    v_subrev_u32 v2, {13*64}, v0")
    e("    v_bfe_u32 v3, v2, 4, 1")
    e("    v_bfe_u32 v20, v2, 6, 1")
    e("    v_lshl_or_b32 v3, v20, 2, v3")
    e("    v_cmp_gt_u32 vcc, 128, v2")
    e("    v_xor_b32 v2, v2, v3")
    e("    v_lshlrev_b32 v2, 4, v2")
    e(f"    v_add_u32 v2, {WL}, v2")
    e("    v_xor_b32 v3, 64, v2")
    e("    s_mov_b32 exec_lo, 0xaaaaaaaa")
    e("    s_mov_b32 exec_hi, exec_lo")
    for b in (100, 104, 108):
        e(f"    v_swap_b32 v{b}, v{b+2}")
        e(f"    v_swap_b32 v{b+1}, v{b+3}")
    e("    s_mov_b64 exec, -1")
    e("    ds_write_b128 v2, v[100:103]")
    e("    ds_write_b128 v3, v[104:107] offset:3072")
    e("    s_and_saveexec_b64 s[76:77], vcc")
    e("    ds_write_b128 v2, v[108:111] offset:6144")
    e("    s_mov_b64 exec, -1")
    e("S_DONE:")
    stamp("s_done")


def barrier_addrs():
    e("    s_lshr_b32 s76, s2, 2")
    e("    s_lshl_b32 s76, s76, 7")
    e("    s_and_b32 s77, s2, 3")
    e("    s_lshl_b32 s77, s77, 2")
    e("    s_add_u32 s76, s76, s77")
    e(f"    s_add_u32 s76, s76, {WS_FLAG}")
    e("    v_lshlrev_b32 v2, 13, v0")
    e("    s_getreg_b32 s77, hwreg(HW_REG_XCC_ID, 0, 3)")
    e("    s_lshl_b32 s77, s77, 13")
    e(f"    s_add_u32 s77, s77, {WS_FLAG}")
    e("    v_lshlrev_b32 v8, 7, v0")


COMMON = [0, 1, 2, 3, 4, 5]
RARE = [6, 7]
ACT = ["s[62:63]", "s[10:11]"]
WREG = [40, 44, 48, 52, 56, 60, 28, 116]


def w_frags():
    e("    v_xor_b32 v5, 8, v122")
    e("    v_xor_b32 v6, 64, v122")
    e("    v_xor_b32 v7, 72, v122")
    for s_ in range(2):
        for t in range(4):
            for u in range(2):
                r = WREG[s_ * 4 + t] + 2 * u
                e(f"    ds_read_b64_tr_b16 v[{r}:{r+1}], v{4+t if t else 122} offset:{4096*s_ + 512*u}")


def load_headers():
    e(f"    buffer_load_dwordx2 v[116:117], v93, {R(S_WS)}, s30 offen {SC}")
    e(f"    buffer_load_dwordx2 v[118:119], v93, {R(S_WS)}, s31 offen {SC}")


def phase_b():
    e("COLLECT:")
    load_headers()
    e("    s_mov_b32 s68, s29")
    e(f"    s_add_u32 s69, s68, {128*32768}")
    e(f"    s_mov_b32 s75, {SPINMAX}")
    e("    v_cmp_gt_u32 s[8:9], 4, v10")
    if SP == 1:
        setup2()
    e("    s_waitcnt vmcnt(0)")
    e("C_CHK2:")
    e("    v_cmp_ne_u32_sdwa vcc, v117, v120 src0_sel:WORD_1 src1_sel:DWORD")
    e("    v_cmp_ne_u32_sdwa s[76:77], v119, v120 src0_sel:WORD_1 src1_sel:DWORD")
    e("    v_mov_b32_dpp v4, v116 quad_perm:[3,3,3,3] row_mask:0xf bank_mask:0xf")
    e("    v_mov_b32_dpp v5, v118 quad_perm:[3,3,3,3] row_mask:0xf bank_mask:0xf")
    e("    s_or_b64 vcc, vcc, s[76:77]")
    e("    s_cbranch_scc1 C_RETRY2")
    e("C_OK2:")
    stamp("b_gate")
    e("    v_mov_b32_dpp v4, v4 row_half_mirror row_mask:0xf bank_mask:0x5")
    e("    v_mov_b32_dpp v5, v5 row_half_mirror row_mask:0xf bank_mask:0x5")
    for i in range(2):
        e(f"    v_and_b32 v2, s49, v{4+i}")
        e(f"    v_bfe_u32 v3, v{4+i}, s26, 1")
        e("    v_bcnt_u32_b32 v2, v2, s26")
        e("    v_cmp_eq_u32 vcc, 1, v3")
        e(f"    v_lshl_add_u32 v{6+i}, v2, 6, v9")
        e("    s_or_b64 exec, vcc, s[8:9]")
        e(f"    buffer_load_dwordx4 v[{12+4*i}:{15+4*i}], v{6+i}, {R(S_WS)}, s{68+i} offen {SC}")
        e(f"    s_mov_b64 {ACT[i]}, exec")
        e("    s_mov_b64 exec, -1")
    if I("pc", 1):
        e("    s_setprio 0")
    if SP >= 1:
        if SP == 2:
            setup2()
        e("    s_cmp_lg_u32 s71, 0")
        e("    s_cbranch_scc1 LATE_D")
        setup3()
        e("LATE_D:")
    e("    v_and_b32 v117, 0xffff, v117")
    e("    v_and_b32 v119, 0xffff, v119")
    e(f"    v_mul_u32_u24 v2, {TM}, v117")
    e(f"    v_mul_u32_u24 v3, {TM}, v119")
    e("    v_cmp_eq_u32 s[8:9], 7, v10")
    e(f"    s_mov_b32 s76, {0xf000 + NINL}")
    e("    v_cmp_lt_u32 s[72:73], s76, v117")
    e("    v_cmp_lt_u32 vcc, s76, v119")
    e("    v_lshrrev_b32 v2, 20, v2")
    e("    v_lshrrev_b32 v3, 20, v3")
    e("    v_cmp_eq_u32 s[4:5], s2, v2")
    e("    v_cmp_eq_u32 s[6:7], s2, v3")
    e("    s_and_b64 s[72:73], s[72:73], s[8:9]")
    e("    s_and_b64 vcc, vcc, s[8:9]")
    e("    s_lshr_b64 s[72:73], s[72:73], 1")
    e("    s_or_b64 s[72:73], s[72:73], vcc")
    e(f"    s_mov_b64 {PEND(7)}, 0")
    e("    s_movk_i32 s70, 0xffff")
    e(f"    s_mov_b64 {PEND(6)}, s[12:13]")
    e("    s_mov_b64 exec, s[12:13]")
    e("    s_cbranch_execz C_NT")
    e("    ds_add_rtn_u32 v38, v46, v1")
    e("C_NT:")
    for i in range(2):
        base = 12 + 4 * i
        e(f"    s_mov_b64 exec, {ACT[i]}")
        e(f"    s_waitcnt vmcnt({1-i})")
        e(f"C_CHK{i}:")
        e(f"    v_cmp_ne_u32_sdwa vcc, v{base+3}, v127 src0_sel:BYTE_3 src1_sel:DWORD")
        e(f"    s_cbranch_vccnz C_RETRY{i}")
        e(f"C_OK{i}:")
        stamp("b_lines" if i == 0 else "b_lines1")
        for k in range(3):
            e(f"    v_cmp_ne_u16 {PEND(3*i+k)}, s70, v{base+k}")
        if i == 1 and EARLY:
            own_x()
        for k in range(3):
            decode_key(base + k, base + 3, k, 3 * i + k)
        for k in range(3):
            s_ = 3 * i + k
            e(f"    s_mov_b64 exec, {PEND(s_)}")
            e(f"    ds_add_rtn_u32 v{32+s_}, v{40+s_}, v1")
    e("    s_mov_b64 exec, -1")
    for i in range(2):
        base = 12 + 4 * i
        for k in range(3):
            decode_data(base + k, base + 3, k, 3 * i + k)
    e("    s_mov_b64 s[68:69], 0")
    e("    s_or_b64 s[76:77], s[4:5], s[6:7]")
    e("    s_or_b64 s[76:77], s[76:77], s[72:73]")
    e("    s_cbranch_scc1 EXTRA")
    e("CDONE:")
    e("    s_lshl_b32 s75, s3, 2")
    e("    s_add_u32 s75, s75, 3")
    e("    s_waitcnt lgkmcnt(0)")
    e("    s_barrier")
    stamp2("b_bar1", "")
    e("    ds_read_b128 v[4:7], v90")
    if not EARLY:
        own_x()
    e("    s_cmp_lg_u32 s3, 15")
    e("    s_cbranch_scc1 PT_D")
    e("    s_lshl_b32 s76, s2, 8")
    e(f"    s_add_u32 s76, s76, {WS_FLAG}")
    e("    v_lshlrev_b32 v2, 7, v92")
    e("    s_mov_b64 exec, 3")
    e(f"    buffer_load_dword v91, v2, {R(S_WS)}, s76 offen sc1")
    e("    s_mov_b64 exec, -1")
    e("PT_D:")
    e("    s_waitcnt lgkmcnt(0)")
    e("    v_add_u32 v5, v4, v5")
    e("    v_add3_u32 v7, v5, v6, v7")
    e("    v_add_u32 v6, v5, v6")
    e("    s_nop 0")
    e("    v_and_b32_dpp v28, v7, v95 quad_perm:[0,0,0,0] row_mask:0xf bank_mask:0xf")
    e("    v_and_b32_dpp v29, v7, v96 quad_perm:[1,1,1,1] row_mask:0xf bank_mask:0xf")
    e("    v_and_b32_dpp v30, v7, v97 quad_perm:[2,2,2,2] row_mask:0xf bank_mask:0xf")
    e("    v_add3_u32 v28, v28, v29, v30")
    e("    v_add_u32 v7, v28, v7")
    e("    v_lshl_add_u32 v28, v28, 2, v98")
    e(f"    v_cmp_lt_u32 vcc, {CAPT}, v7")
    e("    v_lshl_add_u32 v29, v4, 2, v28")
    e("    v_lshl_add_u32 v30, v5, 2, v28")
    e("    v_lshl_add_u32 v31, v6, 2, v28")
    e("    v_readlane_b32 s74, v7, s75")
    e("    ds_write_b128 v90, v[28:31] offset:1024")
    e(f"    s_or_b64 s[76:77], {PEND(6)}, {PEND(7)}")
    e("    s_cbranch_scc0 P_NR")
    for s in RARE:
        e(f"    s_mov_b64 exec, {PEND(s)}")
        e(f"    ds_read_b32 v{20+s}, v{40+s} offset:1024")
    e("P_NR:")
    for s in COMMON:
        e(f"    s_mov_b64 exec, {PEND(s)}")
        e(f"    ds_read_b32 v{20+s}, v{40+s} offset:1024")
    e(f"    s_min_u32 s74, s74, {CAPT}")
    e("    s_cbranch_vccnz SLOWW")
    for s in COMMON:
        e(f"    s_mov_b64 exec, {PEND(s)}")
        e(f"    s_waitcnt lgkmcnt({len(COMMON)-1})")
        e(f"    v_lshl_add_u32 v{20+s}, v{32+s}, 2, v{20+s}")
        e(f"    ds_write2st64_b32 v{20+s}, v{48+s}, v{56+s} offset0:0 offset1:5")
    e("    s_cmp_eq_u64 s[76:77], 0")
    e("    s_cbranch_scc1 P_NW")
    for s in RARE:
        e(f"    s_mov_b64 exec, {PEND(s)}")
        e(f"    v_lshl_add_u32 v{20+s}, v{32+s}, 2, v{20+s}")
        e(f"    ds_write2st64_b32 v{20+s}, v{48+s}, v{56+s} offset0:0 offset1:5")
    e("P_NW:")
    for s in range(8):
        e(f"    s_mov_b64 {PEND(s)}, 0")
    e("WDONE:")
    e("    s_sub_u32 s76, 0, s74")
    e("    s_and_b32 s76, s76, 31")
    e("    s_bfm_b64 exec, s76, 0")
    e("    s_lshl_b32 s77, s74, 2")
    e("    v_add_u32 v2, s77, v123")
    e(f"    v_mov_b32 v3, {PADV}")
    e("    ds_write2st64_b32 v2, v3, v3 offset0:0 offset1:5")
    e("    s_mov_b64 exec, -1")
    e(f"    v_mov_b32 v4, {MORE}")
    e("    s_lshl_b32 s76, s3, 6")
    e(f"    s_add_u32 s76, s76, {SELFN}")
    e("    v_lshl_add_u32 v5, v92, 2, s76")
    e("    ds_read_b32 v126, v5")
    e("    s_waitcnt lgkmcnt(0)")
    e("    s_barrier")
    stamp2("b_bar2", "")
    e("    ds_read_b32 v8, v4")


def main_loop():
    def next_k():
        e("    s_mov_b32 s8, 1")
        e("    s_cmp_gt_i32 s9, s10")
        e("    s_addc_u32 s8, s8, 0")
        e("    s_lshl_b32 s11, s10, 1")
        e("    s_cmp_gt_i32 s9, s11")
        e("    s_addc_u32 s8, s8, 0")
        e("    s_add_i32 s11, s11, s10")
        e("    s_cmp_gt_i32 s9, s11")
        e("    s_addc_u32 s8, s8, 0")
        e("    s_min_i32 s8, s8, s9")
        e("    s_sub_i32 s9, s9, s8")
        e("    s_sub_i32 s10, s10, 1")
        e("    s_lshl_b32 s11, s8, 5")

    def read_recs(a, b, adv):
        e(f"    ds_read2_b32 v[100:101], v{a} offset0:0 offset1:8")
        e(f"    ds_read2_b32 v[102:103], v{a} offset0:16 offset1:24")
        e(f"    ds_read_b128 v[104:107], v{b}")
        e(f"    ds_read_b128 v[108:111], v{b} offset:16")
        e(f"    v_add_u32 v93, {adv}, v{a}")
        e(f"    v_add_u32 v94, {adv}, v{b}")

    def dma(i):
        e(f"    buffer_load_dwordx4 v{100+i}, {R(S_GAT)}, 0 offen offset:{1024*i} lds")

    def addr():
        for i in range(4):
            e(f"    v_add_u32 v{100+i}, v{100+i}, v{80+i}")

    def build_b(w):
        for j in range(8):
            e(f"    v_bfe_i32 v{32+j}, v{104+j}, v92, {w}")
        for j in range(8):
            e(f"    v_and_b32 v{32+j}, v{32+j}, v{104+j}")
        for j in range(4):
            e(f"    v_perm_b32 v{112+j}, v{32+2*j+1}, v{32+2*j}, s1")

    def mfmas():
        for t in range(4):
            e(f"    v_mfma_f32_16x16x32_bf16 v[{64+4*t}:{67+4*t}], v[{12+4*t}:{15+4*t}], v[112:115], v[{64+4*t}:{67+4*t}]")

    e("MAIN:")
    e("    s_cmp_eq_u32 s74, 0")
    e("    s_cbranch_scc1 EMPTY")
    read_recs(88, 89, 128)
    e("    s_waitcnt lgkmcnt(2)")
    addr()
    e("MAIN2:")
    for i in range(4):
        dma(i)
    prio_by_age("PRIOD")
    e("    s_add_u32 s9, s74, 7")
    e("    s_lshr_b32 s9, s9, 3")
    e("    s_sub_i32 s9, s9, 4")
    e("    s_max_i32 s9, s9, 0")
    e(f"    s_mov_b32 s10, {NB-1}")
    next_k()
    e("    s_waitcnt lgkmcnt(0)")
    build_b("1")
    read_recs(93, 94, "s11")
    e("    s_bitcmp1_b32 s71, 3")
    e("    s_cbranch_scc1 LOOP")
    e("    s_or_b32 s71, s71, 8")
    if I("wearly", 0):
        e("    v_readfirstlane_b32 s75, v8")
        e("    s_cmp_lg_u32 s75, 0")
        e("    s_cbranch_scc1 NOWF")
        e("    s_or_b32 s71, s71, 16")
        w_frags()
        e("NOWF:")
    e("    s_waitcnt vmcnt(4)")
    self_init(64)
    e("LOOP:")
    e("    v_cmp_gt_u32 vcc, s8, v11")
    e("    s_waitcnt vmcnt(0)")
    for t in range(4):
        for u in range(2):
            e(f"    ds_read_b64_tr_b16 v[{12+4*t+2*u}:{13+4*t+2*u}], v{84+t} offset:{512*u}")
    e("    s_cmp_eq_u32 s8, 0")
    e("    v_cndmask_b32 v91, 0, v1, vcc")
    e("    s_waitcnt lgkmcnt(8)")
    addr()
    e("    s_waitcnt lgkmcnt(0)")
    e("    s_cbranch_scc1 LAST")
    dma(0)
    e("    s_cmp_eq_u32 s8, 1")
    e("    s_cbranch_scc1 DMAD")
    dma(1)
    e("    s_cmp_eq_u32 s8, 2")
    e("    s_cbranch_scc1 DMAD")
    dma(2)
    e("    s_cmp_eq_u32 s8, 3")
    e("    s_cbranch_scc1 DMAD")
    dma(3)
    e("DMAD:")
    mfmas()
    next_k()
    build_b("v91")
    read_recs(93, 94, "s11")
    e("    s_branch LOOP")
    e("LAST:")
    mfmas()
    e("MAINDONE:")
    e("    v_readfirstlane_b32 s75, v8")
    e("    s_cmp_lg_u32 s75, 0")
    e("    s_cbranch_scc1 AGAIN")

    stamp2("h1_done", "h2_done")
    e("    s_nop 2")
    for t in range(4):
        e(f"    v_cvt_pk_bf16_f32 v{12+2*t}, v{64+4*t}, v{65+4*t}")
        e(f"    v_cvt_pk_bf16_f32 v{13+2*t}, v{66+4*t}, v{67+4*t}")
    e("    s_mov_b64 exec, s[16:17]")
    e("    v_swap_b32 v12, v14")
    e("    v_swap_b32 v13, v15")
    e("    v_swap_b32 v16, v18")
    e("    v_swap_b32 v17, v19")
    e("    s_bitcmp1_b32 s71, 0")
    e("    s_cbranch_scc1 FINAL")
    e("    s_mov_b64 exec, s[14:15]")
    e(f"    buffer_store_dwordx4 v[12:15], v121, {R(S_STO)}, 0 offen {SC}")
    e(f"    buffer_store_dwordx4 v[16:19], v121, {R(S_STO)}, 0 offen offset:64 {SC}")
    e("    s_setprio 0")
    e("    s_mov_b64 exec, -1")
    stamp("h1_st")
    def book():
        e(f"    s_mov_b64 s[{S_GAT}:{S_GAT+1}], s[{S_GH}:{S_GH+1}]")
        e("    s_or_b32 s71, s71, 1")
        self_init(12)
        e("    s_bitcmp1_b32 s71, 1")
        e("    s_cbranch_scc1 E_IRR")
        if not I("wearly", 0):
            e("    s_or_b32 s71, s71, 16")
            w_frags()
        read_recs(88, 89, 128)
        e("    s_waitcnt lgkmcnt(2)")
        addr()
        e("E_BAR:")
    BL = I("booklate", 1)
    if not BL:
        book()
    barrier_addrs()
    e("    s_waitcnt vmcnt(0)")
    stamp("g2_ack")
    e("    s_barrier")
    e("    s_cmp_lg_u32 s3, 0")
    e("    s_cbranch_scc1 G2_NOF")
    stamp("g2_arr")
    e("    s_mov_b64 exec, 0xff")
    e(f"    buffer_store_dword v125, v2, {R(S_WS)}, s76 offen sc1")
    e("G2_NOF:")
    e("    s_mov_b32 exec_hi, 0")
    e(f"    s_and_b32 exec_lo, s14, {OPT.get('ownm', '0xffff')}")
    if OPT.get('ownm', '0xffff') != '0':
        e(f"    buffer_load_dword v91, v121, {R(S_STO)}, 0 offen sc1")
    e("    s_mov_b64 exec, -1")
    if BL:
        if I("pp", 1):
            e("    s_cmp_lg_u32 s3, 0")
            e("    s_cbranch_scc1 G2_NP")
            e("    s_setprio 3")
            e("G2_NP:")
        book()
    e("    s_cmp_lg_u32 s3, 0")
    e("    s_cbranch_scc1 G2_WAIT")
    e(f"    s_mov_b32 s75, {SPINMAX}")
    e("G2_POLL:")
    e(f"    buffer_load_dwordx4 v[4:7], v8, {R(S_WS)}, s77 offen sc1")
    e("    s_sub_u32 s75, s75, 1")
    e("    s_cmp_eq_u32 s75, 0")
    e("    s_waitcnt vmcnt(0)")
    e("    s_cbranch_scc1 G2_WAIT")
    e("    v_xor_b32 v4, v4, v125")
    e("    v_xor_b32 v5, v5, v125")
    e("    v_xor_b32 v6, v6, v125")
    e("    v_xor_b32 v7, v7, v125")
    e("    v_or3_b32 v4, v4, v5, v6")
    e("    v_or_b32 v4, v4, v7")
    e("    v_cmp_ne_u32 vcc, 0, v4")
    if I("shrink", 1):
        e("    s_and_b64 exec, exec, vcc")
        e("    s_cbranch_scc1 G2_POLL")
    else:
        e("    s_cbranch_vccnz G2_POLL")
    e("G2_WAIT:")
    e("    s_mov_b64 exec, -1")
    if I("pp", 1):
        e("    s_setprio 0")
    e("    v_mov_b32 v8, 0")
    e("    s_and_b32 s76, s71, 2")
    e("    s_cselect_b32 s76, 0, s74")
    e("    s_cmp_lg_u32 s76, 0")
    e("    s_barrier")
    stamp("g2_exit")
    e("    s_cbranch_scc1 MAIN2")
    e("    s_bitcmp0_b32 s71, 1")
    e("    s_cbranch_scc1 MAIN")
    e("    s_branch COLLECT")
    e("FINAL:")
    e("    s_mov_b64 exec, -1")
    e("    s_bitcmp0_b32 s71, 4")
    e("    s_cbranch_scc1 F_GETW")
    e("F_HAVEW:")
    for t in range(4):
        w = WREG[t]
        e(f"    v_mfma_f32_16x16x32_bf16 v[{64+4*t}:{67+4*t}], v[{w}:{w+3}], v[12:15], 0")
    for t in range(4):
        w = WREG[4 + t]
        e(f"    v_mfma_f32_16x16x32_bf16 v[{64+4*t}:{67+4*t}], v[{w}:{w+3}], v[16:19], v[{64+4*t}:{67+4*t}]")
    e("    s_nop 4")
    for t in range(4):
        if t:
            e("    s_nop 1")
        e(f"    v_cvt_pk_bf16_f32 v{12+2*t}, v{64+4*t}, v{65+4*t}")
        e(f"    v_cvt_pk_bf16_f32 v{13+2*t}, v{66+4*t}, v{67+4*t}")
    e("    s_mov_b64 exec, s[14:15]")
    e(f"    buffer_store_dwordx4 v[12:15], v121, {R(S_OUT)}, 0 offen {ST_OUT}")
    e(f"    buffer_store_dwordx4 v[16:19], v121, {R(S_OUT)}, 0 offen offset:64 {ST_OUT}")
    stamp_out()
    e("END:")
    e("    s_endpgm")


def out_of_line():
    for i in range(2):
        base = 12 + 4 * i
        e(f"C_RETRY{i}:")
        e(f"    buffer_load_dwordx4 v[{base}:{base+3}], v{6+i}, {R(S_WS)}, s{68+i} offen {SC}")
        e("    s_sub_u32 s75, s75, 1")
        e("    s_cmp_eq_u32 s75, 0")
        e("    s_waitcnt vmcnt(0)")
        e(f"    s_cbranch_scc0 C_CHK{i}")
        e("    s_mov_b32 s75, 1000")
        if DIAG:
            e(f"    s_or_b32 s48, s48, {1 << i}")
            e("    s_mov_b64 s[50:51], vcc")
        e(f"    s_branch C_OK{i}")
    e("C_RETRY2:")
    e(f"    s_sleep {I('bo', 2)}")
    load_headers()
    e("    s_sub_u32 s75, s75, 1")
    e("    s_cmp_eq_u32 s75, 0")
    e("    s_waitcnt vmcnt(0)")
    e("    s_cbranch_scc0 C_CHK2")
    e("    s_mov_b32 s75, 1000")
    if DIAG:
        e("    s_or_b32 s48, s48, 4")
        e("    s_mov_b64 s[50:51], vcc")
    e("    s_branch C_OK2")
    a_overflow()
    e("AGAIN:")
    e("    s_setprio 0")
    e("    s_or_b32 s71, s71, 2")
    e("    s_barrier")
    zero_b_counters((WL - CNTB) // 4)
    e("    s_waitcnt lgkmcnt(0)")
    e("    s_barrier")
    for s in range(7):
        e(f"    s_mov_b64 exec, {PEND(s)}")
        e(f"    ds_add_rtn_u32 v{32+s}, v{40+s}, v1")
    e("EXTRA:")
    for m, r in (("s[4:5]", 116), ("s[6:7]", 118)):
        e(f"    s_andn2_b64 exec, {m}, {PEND(7)}")
        e(f"    s_andn2_b64 {m}, {m}, exec")
        e(f"    s_or_b64 {PEND(7)}, {PEND(7)}, exec")
        decode_full(r, r + 1, 7)
    e("    s_mov_b64 exec, -1")
    e("    s_or_b64 s[76:77], s[4:5], s[6:7]")
    e("    s_cbranch_scc1 OVFULL")
    e("    s_mov_b32 s75, 0")
    e("OVL:")
    e("    s_cmp_lt_u32 s68, s69")
    e("    s_cbranch_scc1 OVLOAD")
    e("    s_cmp_eq_u64 s[72:73], 0")
    e("    s_cbranch_scc1 OVDONE")
    e("    s_ff1_i32_b64 s76, s[72:73]")
    e("    s_bitset0_b64 s[72:73], s76")
    e("    s_or_b32 s77, s76, 7")
    e("    v_readlane_b32 s68, v117, s77")
    e("    v_readlane_b32 s69, v119, s77")
    e("    s_bitcmp1_b32 s76, 0")
    e("    s_cselect_b32 s69, s69, s68")
    e("    s_and_b32 s69, s69, 0xfff")
    e(f"    s_min_u32 s69, s69, {CHMAX}")
    e("    s_and_b32 s77, s76, 1")
    e("    s_lshl_b32 s77, s77, 7")
    e("    s_lshr_b32 s76, s76, 3")
    e("    s_add_u32 s76, s76, s77")
    e("    s_lshl_b32 s77, s3, 3")
    e("    s_add_u32 s76, s76, s77")
    e("    s_lshl_b32 s70, s76, 15")
    e(f"    s_mov_b32 s68, {NINL}")
    e("OVLOAD:")
    e("    v_add_u32 v4, s75, v0")
    e("    v_and_b32 v4, 63, v4")
    e("    v_add_u32 v4, s68, v4")
    e("    v_lshlrev_b32 v5, 3, v4")
    e(f"    buffer_load_dwordx2 v[28:29], v5, {R(S_OVF)}, s70 offen {SC}")
    e("    s_waitcnt vmcnt(0)")
    e(f"    v_mul_u32_u24 v30, {TM}, v29")
    e("    v_lshrrev_b32 v31, 20, v30")
    e("    v_cmp_gt_u32 vcc, s69, v4")
    e("    v_cmp_eq_u32 s[76:77], s2, v31")
    e("    s_and_b64 vcc, s[76:77], vcc")
    e(f"    s_and_b64 s[76:77], vcc, {PEND(7)}")
    e("    s_cbranch_scc1 OVFULL")
    e(f"    s_or_b64 {PEND(7)}, {PEND(7)}, vcc")
    e("    s_add_u32 s68, s68, 64")
    e("    s_add_u32 s75, s75, 16")
    e("    s_mov_b64 exec, vcc")
    decode_full(28, 29, 7)
    e("    s_mov_b64 exec, -1")
    e("    s_branch OVL")
    e("OVFULL:")
    e(f"    v_mov_b32 v2, {MORE}")
    e("    ds_write_b32 v2, v1")
    e("OVDONE:")
    e(f"    s_mov_b64 exec, {PEND(7)}")
    e("    ds_add_rtn_u32 v39, v47, v1")
    e("    s_mov_b64 exec, -1")
    e("    s_branch CDONE")
    e("SLOWW:")
    e("    s_waitcnt lgkmcnt(0)")
    for s in range(8):
        e(f"    s_mov_b64 exec, {PEND(s)}")
        e(f"    v_lshl_add_u32 v{20+s}, v{32+s}, 2, v{20+s}")
        e(f"    v_subrev_u32 v3, s0, v{40+s}")
        e("    v_lshrrev_b32 v3, 6, v3")
        e(f"    v_mul_u32_u24 v3, {TSTR}, v3")
        e(f"    v_add_u32 v3, {LISTS + CAPT*4}, v3")
        e(f"    v_cmp_lt_u32 vcc, v{20+s}, v3")
        e(f"    s_andn2_b64 {PEND(s)}, exec, vcc")
        e("    s_mov_b64 exec, vcc")
        e(f"    ds_write2st64_b32 v{20+s}, v{48+s}, v{56+s} offset0:0 offset1:5")
    e("    s_mov_b64 exec, -1")
    e(f"    v_mov_b32 v3, {MORE}")
    e("    ds_write_b32 v3, v1")
    e("    s_branch WDONE")
    e("E_IRR:")
    e("    s_mov_b32 s70, s77")
    zero_b_counters(256)
    e("    s_mov_b32 s77, s70")
    collect_addrs()
    for i in range(4):
        e(f"    v_mov_b32 v{100+i}, {PADV}")
    e("    s_waitcnt lgkmcnt(0)")
    e("    s_branch E_BAR")
    e("EMPTY:")
    e("    s_waitcnt vmcnt(0) lgkmcnt(0)")
    e("    s_bitcmp1_b32 s71, 3")
    e("    s_cbranch_scc1 MAINDONE")
    e("    s_or_b32 s71, s71, 8")
    self_init(64)
    e("    s_branch MAINDONE")
    e("F_GETW:")
    w_frags()
    e("    s_waitcnt lgkmcnt(0)")
    e("    s_branch F_HAVEW")
    e("CODE_END:")


def body():
    e(f".globl {NAME}")
    e(".p2align 8")
    e(f".type {NAME},@function")
    e(f"{NAME}:")
    phase_a()
    setup1()
    if SP == 0:
        setup2()
        setup3()
    if I("pc", 1):
        e("    s_setprio 3")
    e("    s_waitcnt vmcnt(0) lgkmcnt(0)" if I("ackb", 1) else "    s_waitcnt lgkmcnt(0)")
    stamp("g1_ack")
    e("    s_barrier")
    stamp("g1_exit")
    phase_b()
    main_loop()
    out_of_line()


def spin_kernel():
    na, nb_, mode, mult, wlo, whi = (SPIN.split(",") + ["0", "15"])[:6]
    wlo, whi = int(wlo), int(whi)
    ia, ib, mode, mult = STL.index(na), STL.index(nb_), int(mode), int(mult)
    init = "0x80000000" if mode == 0 else "0x7fffffff" if mode == 1 else "0"
    e(".globl sgc_spin_kernel")
    e(".p2align 8")
    e(".type sgc_spin_kernel,@function")
    e("sgc_spin_kernel:")
    e("    s_memrealtime s[30:31]")
    e("    s_cmp_ge_u32 s2, 1")
    e("    s_cbranch_scc1 SP_END")
    e("    s_load_dwordx8 s[12:19], s[0:1], 32")
    e("    v_lshlrev_b32 v1, 6, v0")
    e("    v_mov_b32 v4, 0x7fffffff")
    e(f"    v_mov_b32 v5, {init}")
    e("    s_mov_b32 s23, 0x20000")
    e("    s_waitcnt lgkmcnt(0)")
    srd(20, 18, 19, 1 << 20, WS_STAMP)
    e("    s_mov_b32 s24, 0")
    e("SP_RD:")
    e(f"    buffer_load_dword v2, v1, s[20:23], s24 offen offset:{4*ia}")
    e(f"    buffer_load_dword v3, v1, s[20:23], s24 offen offset:{4*ib}")
    e("    s_add_u32 s24, s24, 4096")
    e("    s_cmp_lt_u32 s24, 0x40000")
    e("    s_waitcnt vmcnt(0)")
    e("    v_subrev_u32 v2, s30, v2")
    e("    v_subrev_u32 v3, s30, v3")
    e("    v_min_i32 v4, v4, v2")
    e("    %s v5, v5, v3" % ("v_max_i32" if mode == 0 else "v_min_i32" if mode == 1 else "v_add_u32"))
    e("    s_cbranch_scc1 SP_RD")
    e("    s_mov_b32 s26, 0x7fffffff")
    e(f"    s_mov_b32 s27, {init}")
    e("    s_nop 1")
    for l in range(64):
        e(f"    v_readlane_b32 s28, v4, {l}")
        e(f"    v_readlane_b32 s29, v5, {l}")
        e("    s_min_i32 s26, s26, s28")
        if wlo <= (l & 15) <= whi:
            e("    %s s27, s27, s29" % ("s_max_i32" if mode == 0 else "s_min_i32" if mode == 1 else "s_add_u32"))
    if mode == 2:
        e("    s_ashr_i32 s27, s27, %d" % (8 + (whi - wlo + 1).bit_length() - 1))
    e("    s_sub_i32 s26, s27, s26")
    e("    s_max_i32 s26, s26, 0")
    e("    s_min_i32 s26, s26, 20000")
    e(f"    s_mul_i32 s26, s26, {mult}")
    e("    s_add_u32 s26, s26, 10000")
    e("SP_LOOP:")
    e("    s_memrealtime s[28:29]")
    e("    s_waitcnt lgkmcnt(0)")
    e("    s_sub_u32 s28, s28, s30")
    e("    s_cmp_lt_u32 s28, s26")
    e("    s_cbranch_scc1 SP_LOOP")
    e("SP_END:")
    e("    s_endpgm")


def desc(name, vg, sg):
    e(".p2align 6")
    e(f".amdhsa_kernel {name}")
    e(f"  .amdhsa_next_free_vgpr {vg}")
    e(f"  .amdhsa_next_free_sgpr {sg}")
    e(f"  .amdhsa_accum_offset {vg}")
    e("  .amdhsa_group_segment_fixed_size 0")
    e("  .amdhsa_kernarg_size 64")
    e("  .amdhsa_user_sgpr_count 2")
    e("  .amdhsa_user_sgpr_kernarg_segment_ptr 1")
    e("  .amdhsa_system_sgpr_workgroup_id_x 1")
    e(".end_amdhsa_kernel")


SPIN = OPT.get("spin")
if SPIN:
    e(f"; @launch kernel={NAME} grid=(256,1,1) block=(1024,1,1) lds={LDS}")
    e("; @launch kernel=sgc_spin_kernel grid=(1,1,1) block=(64,1,1) lds=0")
else:
    e(f"; @launch grid=(256,1,1) block=(1024,1,1) lds={LDS}")
e('.amdgcn_target "amdgcn-amd-amdhsa--gfx950"')
e(".text")
body()
if SPIN:
    spin_kernel()
e('.section .rodata,"a"')
if SPIN:
    desc("sgc_spin_kernel", 8, 40)
desc(NAME, 128, 102 if DIAG else 78)
open(OUT, "w").write("\n".join(L) + "\n")
```

```python
import sys

OUT = [a for a in sys.argv[1:] if not a.startswith("--")][0]
OPT = dict(a[2:].split("=") for a in sys.argv[1:] if a.startswith("--") and "=" in a)
NAME = "standalone__spectral_conv_sgc__graph_kernel"
DEFST = "start,a_bar2,g1_exit,b_gate,b_lines,b_bar1,b_bar2,h1_done,g2_exit,h2_done,end"
STL = OPT.get("st", DEFST if "--diag" in sys.argv else "").split(",")
STL = [s for s in STL if s]
DIAG = len(STL) > 0


def I(name, dflt):
    return int(OPT.get(name, dflt))


N = 50000
E = 850000
ET = 800000
TM = 5368
CHMAX = 13 * 256
SLOTCAP = 24
NINL = 7
WS_OVT = 8 << 20
WS_FLAG = WS_OVT + 131072
WS_H1 = WS_OVT + (1 << 20)
WS_OVF = 16 << 20
OVF_STRIDE = 32768
WS_STAMP = 32 << 20
TABBYTES = N * 128
PADV = 0x40000000

K1_LS = 132
K1_CNT = 256 * K1_LS
K1_OVC = 1024
K1_DONE = 1028
K1_OVT = K1_CNT + 4096
K1_NON = K1_OVT + 64
K1_MSK = K1_NON + 16
LISTS = 65536
CAPT = 320
TSTR = CAPT * 8
CNTB = LISTS + 16 * TSTR + 256
BASES = CNTB + 1024
MORE = BASES + 1024
WL = MORE + 128
assert WL % 128 == 0
SELFN = WL + 8192
LDS = SELFN + 1024

SC = "sc1"
ST_OUT = OPT.get("stout", "sc1")
SPINMAX = I("spinmax", 20000000)
NB = I("nb", 8)
TSH = I("tsh", 20)
ROT = I("rot", 6250)
SP = I("sp", 1)
EARLY = I("early", 0)

L = []


def e(s=""):
    L.append(s)


def srd(d, lo, hi, nbytes, off=0):
    if off == 0:
        e(f"    s_mov_b64 s[{d}:{d+1}], s[{lo}:{hi}]")
    elif off > 0:
        e(f"    s_add_u32 s{d}, s{lo}, {off}")
        e(f"    s_addc_u32 s{d+1}, s{hi}, 0")
    else:
        e(f"    s_sub_u32 s{d}, s{lo}, {-off}")
        e(f"    s_subb_u32 s{d+1}, s{hi}, 0")
    e(f"    s_mov_b32 s{d+2}, {nbytes}")
    e(f"    s_mov_b32 s{d+3}, s23")


S_SRC, S_DST, S_NRM, S_WS, S_OVF, S_GAT, S_STO = 20, 24, 28, 32, 36, 40, 44
S_OUT, S_GH = S_SRC, S_DST


def R(d):
    return f"s[{d}:{d+3}]"


STAMP_BASE = 78


def stamp(name):
    if name in STL:
        i = STL.index(name)
        e(f"    s_memrealtime s[{STAMP_BASE+2*i}:{STAMP_BASE+2*i+1}]")


def stamp2(n1, n2):
    if n1 in STL or n2 in STL:
        n = len(L)
        e("    s_bitcmp1_b32 s71, 0")
        e(f"    s_cbranch_scc1 ST{n}_B")
        stamp(n1)
        e(f"    s_branch ST{n}_C")
        e(f"ST{n}_B:")
        stamp(n2)
        e(f"ST{n}_C:")


def stamp_out():
    if not DIAG:
        return
    e("    s_waitcnt vmcnt(0) lgkmcnt(0)")
    stamp("end")
    e("    s_waitcnt lgkmcnt(0)")
    e("    s_mov_b64 exec, 1")
    srd(28, 18, 19, 1 << 20, WS_STAMP)
    e("    s_lshl_b32 s76, s2, 4")
    e("    s_add_u32 s76, s76, s3")
    e("    s_lshl_b32 s76, s76, 6")
    e("    v_mov_b32 v2, s76")
    for i in range(len(STL)):
        e(f"    v_mov_b32 v3, s{STAMP_BASE+2*i}")
        e(f"    buffer_store_dword v3, v2, s[28:31], 0 offen offset:{4*i}")
    e("    s_getreg_b32 s76, hwreg(HW_REG_XCC_ID)")
    e("    v_mov_b32 v3, s76")
    e("    buffer_store_dword v3, v2, s[28:31], 0 offen offset:56")
    e("    s_lshl_b32 s76, s48, 16")
    e("    s_or_b32 s76, s76, s74")
    e("    v_mov_b32 v3, s76")
    e("    buffer_store_dword v3, v2, s[28:31], 0 offen offset:60")
    e("    v_mov_b32 v3, s50")
    e("    buffer_store_dword v3, v2, s[28:31], 0 offen offset:48")
    e("    v_mov_b32 v3, s51")
    e("    buffer_store_dword v3, v2, s[28:31], 0 offen offset:52")


def PEND(s):
    return f"s[{52+2*s}:{53+2*s}]"


def prio_by_age(lbl):
    for g in range(1, 4):
        e(f"    s_cmp_lt_u32 s3, {4*g}")
        e(f"    s_cbranch_scc1 {lbl}")
        e(f"    s_setprio {g}")
    e(f"{lbl}:")


def decode_key(rec, meta, k, s):
    ca = 40 + s
    e(f"    v_add_u32 v2, s27, v{rec}")
    e(f"    v_and_b32_sdwa v3, v{meta}, v99 dst_sel:DWORD dst_unused:UNUSED_PAD src0_sel:BYTE_{k} src1_sel:DWORD")
    e("    v_bfe_u32 v2, v2, 12, 4")
    e("    v_or_b32 v2, v2, v3")
    e(f"    v_lshl_add_u32 v{ca}, v2, 2, s0")


def decode_data(rec, meta, k, s):
    d0, d1 = 48 + s, 56 + s
    e(f"    v_lshlrev_b32_sdwa v{d0}, v124, v{rec} dst_sel:DWORD dst_unused:UNUSED_PAD src0_sel:DWORD src1_sel:WORD_0")
    e(f"    v_mov_b32 v{d1}, v{rec}")
    e(f"    v_lshlrev_b16_sdwa v{d1}, v{meta}, v1 dst_sel:WORD_0 dst_unused:UNUSED_PRESERVE src0_sel:BYTE_{k} src1_sel:DWORD")


def decode_full(rec, dst, s):
    e(f"    v_mul_u32_u24 v30, {TM}, v{dst}")
    e("    v_lshrrev_b32 v30, 12, v30")
    e(f"    v_bfi_b32 v30, 15, v{dst}, v30")
    decode_key(rec, 30, 0, s)
    decode_data(rec, 30, 0, s)


def zero_b_counters(n):
    e("    v_lshlrev_b32 v2, 2, v0")
    e(f"    v_add_u32 v2, {CNTB}, v2")
    e("    v_mov_b32 v3, 0")
    e(f"    v_cmp_gt_u32 vcc, {n}, v0")
    e("    s_and_saveexec_b64 s[76:77], vcc")
    e("    ds_write_b32 v2, v3")
    e("    s_mov_b64 exec, -1")


def collect_addrs():
    e("    v_lshrrev_b32 v9, 3, v0")
    e("    v_lshlrev_b32 v9, 15, v9")
    e("    v_lshl_add_u32 v9, v10, 4, v9")
    e("    v_lshlrev_b32 v93, 3, v0")


def own_x():
    e("    s_bitcmp1_b32 s71, 3")
    e("    s_cbranch_scc1 NOOWN")
    e("    s_mov_b64 exec, s[14:15]")
    e(f"    buffer_load_dwordx4 v[64:67], v121, {R(S_GAT)}, 0 offen offset:3072")
    e(f"    buffer_load_dwordx4 v[68:71], v121, {R(S_GAT)}, 0 offen offset:3136")
    if I("xtra", 0):
        e(f"    s_mov_b64 exec, {(1 << I('xtra', 0)) - 1}")
        e(f"    s_movk_i32 s76, {196*128}")
        e(f"    buffer_load_dword v91, v121, {R(S_GAT)}, s76 offen offset:3072")
    e("NOOWN:")
    e("    s_mov_b64 exec, -1")


def self_init(b):
    e("    s_mov_b64 exec, s[16:17]")
    e(f"    v_swap_b32 v{b}, v{b+2}")
    e(f"    v_swap_b32 v{b+1}, v{b+3}")
    e(f"    v_swap_b32 v{b+4}, v{b+6}")
    e(f"    v_swap_b32 v{b+5}, v{b+7}")
    e("    s_mov_b64 exec, -1")
    for i in reversed(range(8)):
        e(f"    v_and_b32 v{65+2*i}, 0xffff0000, v{b+i}")
        e(f"    v_lshlrev_b32 v{64+2*i}, 16, v{b+i}")
    for i in range(16):
        e(f"    v_mul_f32 v{64+i}, v126, v{64+i}")


def phase_a():
    stamp("start")
    e("    s_load_dwordx2 s[24:25], s[0:1], 16")
    e("    s_load_dwordx2 s[20:21], s[0:1], 8")
    e("    s_load_dwordx2 s[28:29], s[0:1], 24")
    e("    s_load_dwordx2 s[10:11], s[0:1], 56")
    e("    s_getpc_b64 s[6:7]")
    e("CPF_PC:")
    e("    v_cmp_gt_u32 vcc, (CODE_END-CPF_PC)/128, v0")
    e("    v_lshlrev_b32 v2, 7, v0")
    e("    s_and_saveexec_b64 s[8:9], vcc")
    e("    s_cbranch_execz CPF_D")
    e("    global_load_dword v126, v2, s[6:7] offset:124")
    TCH = I("touch", 1)
    if TCH == 2:
        e("    v_and_b32 v2, 15, v0")
        e(f"    v_mov_b32 v3, {WS_FLAG - (8 << 20)}")
        e("    v_lshl_add_u32 v2, v2, 20, v3")
    else:
        e(f"    v_mov_b32 v2, {WS_FLAG}")
    e("    s_waitcnt lgkmcnt(0)")
    e("    global_load_dword v125, v2, s[10:11] sc1")
    e("CPF_D:")
    e("    s_mov_b64 exec, -1")
    e("    s_cmp_ge_u32 s2, 256")
    e("    s_cbranch_scc1 END")
    e("    v_lshrrev_b32 v3, 6, v0")
    e("    v_and_b32 v2, 63, v0")
    e("    s_mov_b32 s23, 0x20000")
    e(f"    s_mov_b32 s22, {E*4}")
    e("    v_lshlrev_b32 v4, 18, v3")
    e("    s_mov_b64 s[26:27], s[22:23]")
    e("    v_lshl_or_b32 v4, v2, 4, v4")
    e("    s_lshr_b32 s30, s22, 1")
    e("    s_mov_b32 s31, s23")
    e("    v_lshrrev_b32 v5, 1, v4")
    e("    s_lshl_b32 s68, s2, 10")
    e("    v_cmp_gt_u32 vcc, 13, v3")
    e("    s_lshl_b32 s69, s2, 9")
    e("    s_waitcnt lgkmcnt(0)")
    e("    s_cbranch_vccz A_NOLD0" if I("dfirst", 1) else "    s_cbranch_vccz A_NOLD")
    LI = OPT.get("ldin", "")
    e(f"    buffer_load_dwordx4 v[12:15], v4, {R(S_DST)}, s68 offen {LI}")
    if I("dfirst", 1):
        e("A_NOLD0:")
        e("    s_barrier")
        e("    s_cbranch_vccz A_NOLD")
    e(f"    buffer_load_dwordx4 v[16:19], v4, {R(S_SRC)}, s68 offen {LI}")
    e(f"    buffer_load_dwordx2 v[20:21], v5, {R(S_NRM)}, s69 offen {LI}")
    e("A_NOLD:")
    stamp("a_issue")
    e("    s_load_dwordx8 s[12:19], s[0:1], 32")
    e("    s_load_dwordx2 s[4:5], s[0:1], 0")
    e("    v_readfirstlane_b32 s3, v3")
    e("    v_lshlrev_b32 v9, 2, v0")
    e("    v_mov_b32 v6, 0")
    e(f"    ds_write_b32 v9, v6 offset:{K1_CNT}")
    for i in range(4):
        e(f"    v_mov_b32 v{24+i}, -1")
    e("    v_lshlrev_b32 v7, 4, v0")
    e("    ds_write_b128 v7, v[24:27]")
    e("    ds_write_b128 v7, v[24:27] offset:16384")
    e("    v_add_u32 v4, s68, v4")
    e("    v_lshrrev_b32 v8, 2, v4")
    e("    v_cmp_gt_u32 s[72:73], s22, v4")
    e(f"    v_subrev_u32 v8, {ET}, v8")
    e("    v_mov_b32 v1, 1")
    e("    v_and_b32 v10, 7, v0")
    srd(S_WS, 10, 11, WS_H1 + TABBYTES)
    e("    s_cmp_lt_u32 s3, 13")
    e("    s_cbranch_scc1 A_BAR")
    e("    s_cmp_lt_u32 s3, 14")
    e("    s_cbranch_scc1 A_H13")
    e("    s_cmp_eq_u32 s3, 14")
    e("    s_cbranch_scc1 A_H14")
    e(f"    ds_write_b128 v7, v[24:27] offset:{32768 - 15*1024}")
    e("    v_and_b32 v5, 60, v9")
    e("    v_mov_b32 v7, 0xffff")
    e(f"    ds_write_b32 v5, v7 offset:{K1_OVT}")
    e("    s_branch A_BAR")
    e("A_H14:")
    e(f"    v_lshlrev_b32 v2, {TSH}, v2")
    if TCH == 1:
        e(f"    buffer_load_dword v126, v2, {R(S_WS)}, 0 offen offset:{I('toff', 3968)} sc1")
    if TCH and I("txo", 1):
        e("    s_waitcnt lgkmcnt(0)")
        srd(S_GAT, 4, 5, TABBYTES)
        e(f"    buffer_load_dword v126, v2, {R(S_GAT)}, 0 offen")
        srd(S_OVF, 14, 15, TABBYTES)
        e(f"    buffer_load_dword v126, v2, {R(S_OVF)}, 0 offen sc1")
    e("    s_branch A_BAR")
    e("A_H13:")
    if I("pt", 0) == 1:
        e("    s_lshl_b32 s77, s2, 6")
        e(f"    s_add_u32 s77, s77, {WS_OVT}")
        e("    v_lshlrev_b32 v2, 14, v2")
        e("    s_mov_b64 exec, 0xff")
        e(f"    buffer_load_dword v126, v2, {R(S_WS)}, s77 offen sc1")
        e("    s_mov_b64 exec, -1")
    elif I("pt", 0) == 2:
        e("    s_lshl_b32 s77, s2, 9")
        e(f"    s_add_u32 s77, s77, {WS_OVT}")
        e("    v_lshlrev_b32 v2, 7, v2")
        e("    s_mov_b64 exec, 15")
        e(f"    buffer_load_dword v126, v2, {R(S_WS)}, s77 offen sc1")
        e("    s_mov_b64 exec, -1")
    e("A_BAR:")
    e("    s_lshr_b32 s76, s2, 6")
    e("    s_add_u32 s77, s76, s2")
    e("    s_and_b32 s77, s77, 7")
    e("    s_lshl_b32 s77, s77, 5")
    e("    s_add_u32 s77, s77, s76")
    e("    s_bfe_u32 s76, s2, 0x30003")
    e("    s_lshl_b32 s76, s76, 2")
    e("    s_add_u32 s65, s77, s76")
    if I("pa", 1):
        prio_by_age("A_PRD")
    e("    s_waitcnt lgkmcnt(0)")
    e("    s_barrier")
    stamp("a_bar1")
    e("    s_cmp_lt_u32 s3, 12")
    e("    s_cbranch_scc1 A_SETUP")
    e("    v_bfe_u32 v2, v0, 4, 4")
    e("    s_lshl_b32 s76, s65, 4")
    e("    v_add_u32 v2, s76, v2")
    e("    v_mul_u32_u24 v3, 50006, v2")
    e("    v_lshrrev_b32 v3, 12, v3")
    e("    v_sub_u32 v4, v0, v3")
    e("    v_and_b32 v4, 15, v4")
    e("    v_add_u32 v115, v3, v4")
    e(f"    v_add_u32 v4, {ET}, v115")
    e("    v_lshlrev_b32 v5, 2, v4")
    e("    v_lshlrev_b32 v4, 1, v4")
    e(f"    buffer_load_dword v112, v5, {R(S_DST)}, 0 offen")
    e(f"    buffer_load_dword v113, v5, {R(S_SRC)}, 0 offen")
    e(f"    buffer_load_ushort v114, v4, {R(S_NRM)}, 0 offen")
    e(f"    v_mul_u32_u24 v4, {TM}, v115")
    e("    v_lshrrev_b32 v4, 16, v4")
    e("    v_cmp_eq_u32 s[66:67], v4, v2")
    e(f"    v_cmp_gt_u32 vcc, {N}, v115")
    e("    s_and_b64 s[66:67], s[66:67], vcc")
    e("    s_cmp_eq_u32 s3, 12")
    e("    s_cbranch_scc1 A_SETUP")
    srd(S_STO, 12, 13, 8192)
    e(f"    v_subrev_u32 v2, {13*64}, v0")
    e("    v_lshlrev_b32 v2, 4, v2")
    e(f"    buffer_load_dwordx4 v[100:103], v2, {R(S_STO)}, 0 offen")
    e(f"    buffer_load_dwordx4 v[104:107], v2, {R(S_STO)}, 0 offen offset:3072")
    e("    v_add_u32 v3, 6144, v2")
    e(f"    buffer_load_dwordx4 v[108:111], v3, {R(S_STO)}, 0 offen")
    e("A_SETUP:")
    e("    s_lshr_b32 s76, s3, 1")
    e("    s_add_u32 s76, s76, s2")
    e("    s_and_b32 s76, s76, 7")
    e("    s_lshl_b32 s74, s2, 15")
    e("    s_lshl_b32 s77, s76, 12")
    e("    s_add_u32 s74, s74, s77")
    e("    s_lshl_b32 s77, s76, 2")
    e("    v_mov_b32 v49, s77")
    e("    s_and_b32 s75, s3, 1")
    e("    s_lshl_b32 s75, s75, 1")
    e("    v_bfe_u32 v2, v0, 3, 3")
    e("    v_lshlrev_b32 v48, 4, v10")
    e("    v_cmp_lt_u32 vcc, 3, v10")
    e(f"    v_mul_u32_u24 v3, {4*K1_LS}, v2")
    e("    v_add_u32 v3, v3, v48")
    for st in range(2):
        e("    s_add_u32 s77, s76, s75")
        e("    s_and_b32 s77, s77, 7")
        e("    s_lshl_b32 s77, s77, 5")
        e("    s_add_u32 s77, s77, s75")
        e(f"    s_mul_i32 s77, s77, {K1_LS}")
        e(f"    v_add_u32 v{40+st}, s77, v3")
        e(f"    v_lshl_add_u32 v{46+st}, s75, 3, v2")
        e(f"    v_lshlrev_b32 v{44+st}, v{46+st}, v1")
        e(f"    v_add_u32 v{42+st}, -1, v{44+st}")
        e(f"    v_cndmask_b32 v{44+st}, 0, v{44+st}, vcc")
        e("    s_add_u32 s75, s75, 1")
    e("    v_and_b32 v50, 6, v10")
    e("    v_lshlrev_b32 v51, 3, v10")
    e("    v_lshl_add_u32 v52, v2, 14, v51")
    e("    s_mov_b32 s64, 0xffffff")
    e("    s_cmp_lt_u32 s3, 12")
    e("    s_cbranch_scc1 A_EDGES")
    e("    s_cmp_eq_u32 s3, 12")
    e("    s_cbranch_scc1 A_EDGES12")
    e("    s_cmp_lg_u32 s3, 15")
    e("    s_cbranch_scc1 A_OUT")
    e("    v_bfe_u32 v2, v0, 3, 2")
    e("    v_bfe_u32 v3, v0, 5, 1")
    e("    v_add_u32 v3, v3, v2")
    e("    v_lshl_add_u32 v3, v3, 5, v2")
    e("    v_lshl_add_u32 v3, v10, 2, v3")
    e("    v_lshlrev_b32 v12, 2, v3")
    for n in range(1, 4):
        e(f"    v_add_u32 v{12+n}, 256, v{11+n}")
        e(f"    v_and_b32 v{12+n}, 1023, v{12+n}")
    e("    v_lshlrev_b32 v7, 2, v10")
    e("A_MPOLL:")
    e(f"    ds_read_b32 v2, v6 offset:{K1_CNT+K1_DONE}")
    e("    s_waitcnt lgkmcnt(0)")
    e("    v_cmp_gt_u32 vcc, 13, v2")
    e("    s_cbranch_vccnz A_MPOLL")
    for n in range(4):
        e(f"    ds_read_b32 v{16+n}, v{12+n} offset:{K1_CNT}")
    for n in range(4):
        e(f"    s_waitcnt lgkmcnt({3-n})")
        e(f"    v_cmp_lt_u32 s[{52+2*n}:{53+2*n}], 12, v{16+n}")
    e("    s_nop 1")
    for n in range(8):
        e(f"    v_writelane_b32 v2, s{52+n}, {n}")
    e("    s_mov_b64 exec, 0xff")
    e("    v_bcnt_u32_b32 v3, v2, 0")
    e("    v_add_u32 v4, 1, v2")
    e("    v_bfe_i32 v3, v3, 0, 1")
    e("    v_bfi_b32 v4, v2, 0, v4")
    e("    v_and_or_b32 v2, v4, v3, v2")
    e(f"    ds_write_b32 v7, v2 offset:{K1_MSK}")
    e("    s_branch A_OUT")
    e("A_EDGES12:")
    e("    s_waitcnt vmcnt(5)")
    e("    s_branch A_EDGES2")
    e("A_EDGES:")
    e("    s_cmp_lg_u32 s3, 0")
    e("    s_waitcnt vmcnt(2)")
    e("    s_cbranch_scc1 A_EDGES2")
    e("    v_lshlrev_b32 v53, 2, v2")
    e("    s_lshl_b32 s75, s2, 6")
    e(f"    s_add_u32 s75, s75, {WS_OVT}")
    e("    s_mov_b64 exec, 0x100")
    e("    v_add_u32 v4, 0x01010101, v125")
    e("    v_add_u32 v5, 0x01010101, v125")
    e(f"    ds_write_b64 v6, v[4:5] offset:{K1_NON}")
    e("A_EDGES2:")
    e("    s_mov_b64 exec, s[72:73]")
    stamp("a_dst")
    for k in range(4):
        e(f"    v_mul_u32_u24 v{24+k}, {TM}, v{12+k}")
        e(f"    v_sub_u32 v2, v{12+k}, v8")
        e(f"    v_lshrrev_b32 v{28+k}, 20, v{24+k}")
        e(f"    v_cmp_ne_u32 s[{52+2*k}:{53+2*k}], {k}, v2")
        e(f"    v_lshlrev_b32 v{36+k}, 2, v{28+k}")
    for k in range(4):
        e(f"    s_mov_b64 exec, s[{52+2*k}:{53+2*k}]")
        e(f"    ds_add_rtn_u32 v{32+k}, v{36+k}, v1 offset:{K1_CNT}")
    e("    s_mov_b64 exec, 1")
    e(f"    ds_add_u32 v6, v1 offset:{K1_CNT+K1_DONE}")
    e("    s_mov_b64 exec, s[72:73]")
    for k in range(4):
        e(f"    v_lshrrev_b32 v{24+k}, 12, v{24+k}")
        e(f"    v_mul_u32_u24 v{28+k}, {K1_LS}, v{28+k}")
        e(f"    v_bfi_b32 v{24+k}, 15, v{12+k}, v{24+k}")
    e("    s_mov_b32 s70, 0xffff0000")
    FIT = ["s[6:7]", "s[8:9]", "s[10:11]", "s[62:63]"]
    for k in range(4):
        e(f"    s_mov_b64 exec, s[{52+2*k}:{53+2*k}]")
        e("    s_waitcnt lgkmcnt(4)")
        e(f"    v_cmp_le_u32 vcc, 12, v{32+k}")
        e(f"    v_cmp_gt_u32 {FIT[k]}, {SLOTCAP}, v{32+k}")
        e(f"    v_and_b32 v4, 3, v{32+k}")
        e(f"    v_lshrrev_b32 v2, 2, v{32+k}")
        e("    v_cndmask_b32 v3, 0, 61, vcc")
        e(f"    v_lshl_add_u32 v4, v4, 4, v{28+k}")
        e(f"    s_mov_b64 exec, {FIT[k]}")
        e("    v_add3_u32 v5, v4, v3, v2")
        e("    v_cndmask_b32 v3, 0, 52, vcc")
        e("    v_lshl_add_u32 v4, v2, 2, v4")
        e(f"    ds_write_b8 v5, v{24+k} offset:12")
        e(f"    v_add_u32 v{36+k}, v4, v3")
    for k in range(4):
        e(f"    s_andn2_b64 s[{52+2*k}:{53+2*k}], s[{52+2*k}:{53+2*k}], {FIT[k]}")
    e("    s_or_b64 s[60:61], s[52:53], s[54:55]")
    e("    s_or_b64 s[76:77], s[56:57], s[58:59]")
    e("    s_or_b64 s[60:61], s[60:61], s[76:77]")
    e("    s_mov_b64 exec, s[72:73]")
    e("    s_cmp_eq_u32 s3, 12")
    e("    s_waitcnt vmcnt(3)")
    e("    s_cbranch_scc1 A_ALL")
    e("    s_waitcnt vmcnt(0)")
    e("A_ALL:")
    stamp("a_all")
    for k in range(4):
        if k % 2 == 0:
            e(f"    v_lshl_or_b32 v{16+k}, v{20+k//2}, 16, v{16+k}")
        else:
            e(f"    v_and_or_b32 v{16+k}, v{20+k//2}, s70, v{16+k}")
    for k in range(4):
        e(f"    s_mov_b64 exec, {FIT[k]}")
        e(f"    ds_write_b32 v{36+k}, v{16+k}")
    e("    s_cmp_lg_u64 s[60:61], 0")
    e("    s_cbranch_scc1 A_OVER")
    e("A_OUT:")
    e("    s_setprio 3")
    e("    s_mov_b64 exec, -1")
    e("    s_cmp_lg_u32 s3, 0")
    e("    s_waitcnt lgkmcnt(0)")
    stamp("a_pre2")
    e("    s_barrier")
    stamp("a_bar2")
    e(f"    ds_read_u16 v120, v50 offset:{K1_NON}")
    e("    s_cbranch_scc1 A_O1")
    e(f"    ds_read_b64 v[24:25], v51 offset:{K1_OVT}")
    e(f"    ds_read_b32 v22, v6 offset:{K1_CNT+K1_OVC}")
    e(f"    ds_read_b32 v23, v53 offset:{K1_MSK}")
    e("    v_cmp_eq_u32 vcc, 7, v10")
    e("    s_waitcnt lgkmcnt(0)")
    e("    v_or_b32 v22, 0xf000, v22")
    e("    v_cndmask_b32 v24, v24, v23, vcc")
    e("    v_cndmask_b32 v25, v25, v22, vcc")
    e("    v_lshl_or_b32 v25, v120, 16, v25")
    if not I("hlate", 0):
        e(f"    buffer_store_dwordx2 v[24:25], v52, {R(S_WS)}, s75 offen {SC}")
    e("A_O1:")
    e(f"    ds_read_b32 v21, v49 offset:{K1_MSK}")
    e(f"    ds_read_u8 v127, v10 offset:{K1_NON}")
    e("    ds_read2_b32 v[12:13], v40 offset0:0 offset1:1")
    e("    ds_read2_b32 v[14:15], v40 offset0:2 offset1:3")
    e("    ds_read2_b32 v[16:17], v41 offset0:0 offset1:1")
    e("    ds_read2_b32 v[18:19], v41 offset0:2 offset1:3")
    e("    s_waitcnt lgkmcnt(5)")
    for st in range(2):
        e(f"    v_and_b32 v2, v21, v{42+st}")
        e(f"    v_and_b32 v3, v21, v{44+st}")
        e(f"    v_bcnt_u32_b32 v2, v2, v{46+st}")
        e(f"    v_cmp_eq_u32 s[{52+2*st}:{53+2*st}], v3, v{44+st}")
        e(f"    v_lshl_add_u32 v{42+st}, v2, 6, v48")
    e("    s_waitcnt lgkmcnt(4)")
    e("    v_lshlrev_b32 v20, 24, v127")
    e("    s_waitcnt lgkmcnt(2)")
    e("    v_and_or_b32 v15, v15, s64, v20")
    e("    s_mov_b64 exec, s[52:53]")
    e(f"    buffer_store_dwordx4 v[12:15], v42, {R(S_WS)}, s74 offen {SC}")
    e("    s_mov_b64 exec, s[54:55]")
    e("    s_waitcnt lgkmcnt(0)")
    e("    v_and_or_b32 v19, v19, s64, v20")
    e(f"    buffer_store_dwordx4 v[16:19], v43, {R(S_WS)}, s74 offen {SC}")
    e("    s_mov_b64 exec, -1")
    if I("hlate", 0):
        e("    s_cbranch_scc1 A_O2")
        e(f"    buffer_store_dwordx2 v[24:25], v52, {R(S_WS)}, s75 offen {SC}")
        e("A_O2:")
    e("    s_setprio 0")
    stamp("a_st")
    e(f"    ds_read_b32 v125, v6 offset:{K1_NON}")


def a_overflow():
    e("A_OVER:")
    srd(S_OVF, 18, 19, 256 * OVF_STRIDE, WS_OVF)
    e("    s_lshl_b32 s62, s2, 15")
    for k in range(4):
        e(f"    s_mov_b64 exec, s[{52+2*k}:{53+2*k}]")
        e(f"    s_cbranch_execz A_OV{k}")
        e(f"    ds_add_rtn_u32 v3, v6, v1 offset:{K1_CNT+K1_OVC}")
        e(f"    v_mov_b32 v4, v{16+k}")
        e(f"    v_mov_b32 v5, v{12+k}")
        e("    s_waitcnt lgkmcnt(0)")
        e(f"    v_cmp_gt_u32 vcc, {NINL}, v3")
        e("    v_lshlrev_b32 v3, 3, v3")
        e("    s_andn2_b64 s[76:77], exec, vcc")
        e("    s_mov_b64 exec, vcc")
        e(f"    ds_write_b64 v3, v[4:5] offset:{K1_OVT}")
        e("    s_mov_b64 exec, s[76:77]")
        e(f"    s_cbranch_execz A_OV{k}")
        e(f"    buffer_store_dwordx2 v[4:5], v3, {R(S_OVF)}, s62 offen {SC}")
        e("    s_waitcnt vmcnt(0)")
        e(f"A_OV{k}:")
    e("    s_branch A_OUT")


def setup1():
    e("    s_and_b32 s29, s2, 7")
    e(f"    s_mul_i32 s27, s29, {ROT}")
    e("    s_sub_u32 s27, 0x10000, s27")
    e("    s_lshl_b32 s30, s29, 14")
    e(f"    s_add_u32 s30, s30, {WS_OVT}")
    e("    s_add_u32 s31, s30, 8192")
    e("    s_lshl_b32 s29, s29, 12")
    e("    s_lshr_b32 s26, s2, 3")
    e("    s_bfm_b32 s49, s26, 0")
    e("    s_mov_b32 s2, s65")
    e("    v_mov_b32 v99, 0xf0")
    e("    v_mov_b32 v124, 7")
    e(f"    s_mov_b32 s0, {CNTB}")
    e("    s_mov_b32 s1, 0x07060302")
    e("    s_mov_b32 s71, 0")
    if DIAG:
        e("    s_mov_b32 s48, 0")
        e("    s_mov_b64 s[50:51], 0")
    zero_b_counters((WL - CNTB) // 4)
    collect_addrs()
    srd(S_OVF, 18, 19, 256 * OVF_STRIDE, WS_OVF)
    srd(S_GAT, 4, 5, TABBYTES + 3072, -3072)
    srd(S_STO, 18, 19, TABBYTES, WS_H1)
    e("    s_mov_b64 s[20:21], s[14:15]")
    e(f"    s_mov_b32 s22, {TABBYTES}")
    e(f"    s_add_u32 s24, s18, {WS_H1 - 3072}")
    e("    s_addc_u32 s25, s19, 0")


def setup2():
    e("    v_and_b32 v2, 63, v0")
    e("    v_bfe_u32 v3, v2, 4, 1")
    e("    v_cmp_eq_u32 s[16:17], 1, v3")
    e("    v_xor_b32 v22, v3, v10")
    e("    v_lshlrev_b32 v83, 4, v22")
    e("    v_add_u32 v80, 3072, v83")
    e("    v_add_u32 v82, 1024, v83")
    e("    v_xor_b32 v83, 64, v83")
    e("    v_add_u32 v81, 2048, v83")
    e("    v_and_b32 v92, 15, v0")
    e("    v_lshrrev_b32 v11, 4, v2")
    e("    v_bfe_u32 v20, v2, 2, 2")
    e("    v_and_b32 v21, 3, v2")
    e("    v_lshl_add_u32 v84, v11, 3, v20")
    e("    v_lshlrev_b32 v84, 7, v84")
    e("    v_lshrrev_b32 v20, 1, v20")
    e("    v_lshl_or_b32 v20, v3, 2, v20")
    e("    v_xor_b32 v20, v20, v21")
    e("    v_lshl_add_u32 v84, v20, 4, v84")
    e("    v_and_b32 v22, 1, v21")
    e("    s_lshl_b32 s76, s3, 12")
    e("    v_lshl_add_u32 v84, v22, 3, v84")
    e("    s_mov_b32 m0, s76")
    e(f"    v_add_u32 v122, {WL}, v84")
    e("    v_add_u32 v84, s76, v84")
    e(f"    s_mul_i32 s76, s3, {TSTR}")
    e("    v_xor_b32 v85, 8, v84")
    e("    v_xor_b32 v86, 64, v84")
    e("    v_xor_b32 v87, 72, v84")
    e(f"    s_add_u32 s76, s76, {LISTS}")
    e("    v_lshrrev_b32 v22, 3, v2")
    e("    v_lshl_add_u32 v88, v22, 2, s76")
    e("    v_lshl_add_u32 v123, v2, 2, s76")
    e(f"    s_add_u32 s76, s76, {CAPT*4}")
    e("    v_lshl_add_u32 v89, v11, 5, s76")
    e("    v_sub_u32 v95, 0, v21")
    e("    v_sub_u32 v96, 1, v21")
    e("    v_sub_u32 v97, 2, v21")
    e("    v_ashrrev_i32 v95, 31, v95")
    e("    v_ashrrev_i32 v96, 31, v96")
    e("    v_ashrrev_i32 v97, 31, v97")
    e("    v_lshrrev_b32 v22, 2, v2")
    e(f"    v_mul_u32_u24 v98, {TSTR}, v22")
    e(f"    v_add_u32 v98, {LISTS}, v98")
    e("    v_lshl_add_u32 v90, v2, 4, s0")
    e("    s_lshl_b32 s76, s2, 4")
    e("    s_add_u32 s76, s76, s3")
    e("    s_mul_i32 s77, s76, 50006")
    e("    s_lshr_b32 s77, s77, 12")
    e("    v_subrev_u32 v2, s77, v92")
    e("    v_and_b32 v2, 15, v2")
    e("    v_add_u32 v2, s77, v2")
    e(f"    v_mul_u32_u24 v3, {TM}, v2")
    e("    v_lshrrev_b32 v3, 16, v3")
    e("    v_cmp_eq_u32 s[14:15], s76, v3")
    e("    v_lshlrev_b32 v2, 7, v2")
    e("    v_lshl_add_u32 v121, v11, 4, v2")


def setup3():
    e("    s_mov_b64 s[12:13], 0")
    e("    s_cmp_lt_u32 s3, 12")
    e("    s_cbranch_scc1 S_DONE")
    e("    s_waitcnt vmcnt(2)")
    e("    v_cmp_eq_u32 vcc, v112, v115")
    e("    v_cmp_eq_u32 s[76:77], v113, v115")
    e("    v_lshlrev_b32 v3, 16, v114")
    e("    v_and_b32 v2, 255, v0")
    e("    v_or_b32 v113, v3, v113")
    e("    s_and_b64 s[12:13], s[66:67], vcc")
    e("    s_and_b64 vcc, s[12:13], s[76:77]")
    e("    s_andn2_b64 s[12:13], s[12:13], s[76:77]")
    e("    v_lshlrev_b32 v2, 2, v2")
    e("    v_cndmask_b32 v3, 0, v3, vcc")
    e(f"    v_add_u32 v2, {SELFN}, v2")
    e("    ds_write_b32 v2, v3")
    e("    s_cbranch_scc0 S_NT")
    decode_key(113, 0, 0, 6)
    decode_data(113, 0, 0, 6)
    e("S_NT:")
    e("    s_cmp_eq_u32 s3, 12")
    e("    s_cbranch_scc1 S_DONE")
    e(f"    v_subrev_u32 v2, {13*64}, v0")
    e("    v_bfe_u32 v3, v2, 4, 1")
    e("    v_bfe_u32 v20, v2, 6, 1")
    e("    v_lshl_or_b32 v3, v20, 2, v3")
    e("    v_cmp_gt_u32 vcc, 128, v2")
    e("    v_xor_b32 v2, v2, v3")
    e("    v_lshlrev_b32 v2, 4, v2")
    e(f"    v_add_u32 v2, {WL}, v2")
    e("    v_xor_b32 v3, 64, v2")
    e("    s_mov_b32 exec_lo, 0xaaaaaaaa")
    e("    s_mov_b32 exec_hi, exec_lo")
    for b in (100, 104, 108):
        e(f"    v_swap_b32 v{b}, v{b+2}")
        e(f"    v_swap_b32 v{b+1}, v{b+3}")
    e("    s_mov_b64 exec, -1")
    e("    ds_write_b128 v2, v[100:103]")
    e("    ds_write_b128 v3, v[104:107] offset:3072")
    e("    s_and_saveexec_b64 s[76:77], vcc")
    e("    ds_write_b128 v2, v[108:111] offset:6144")
    e("    s_mov_b64 exec, -1")
    e("S_DONE:")
    stamp("s_done")


def barrier_addrs():
    e("    s_lshr_b32 s76, s2, 2")
    e("    s_lshl_b32 s76, s76, 7")
    e("    s_and_b32 s77, s2, 3")
    e("    s_lshl_b32 s77, s77, 2")
    e("    s_add_u32 s76, s76, s77")
    e(f"    s_add_u32 s76, s76, {WS_FLAG}")
    e("    v_lshlrev_b32 v2, 13, v0")
    e("    s_getreg_b32 s77, hwreg(HW_REG_XCC_ID, 0, 3)")
    e("    s_lshl_b32 s77, s77, 13")
    e(f"    s_add_u32 s77, s77, {WS_FLAG}")
    e("    v_lshlrev_b32 v8, 7, v0")


COMMON = [0, 1, 2, 3, 4, 5]
RARE = [6, 7]
ACT = ["s[62:63]", "s[10:11]"]
WREG = [40, 44, 48, 52, 56, 60, 28, 116]


def w_frags():
    e("    v_xor_b32 v5, 8, v122")
    e("    v_xor_b32 v6, 64, v122")
    e("    v_xor_b32 v7, 72, v122")
    for s_ in range(2):
        for t in range(4):
            for u in range(2):
                r = WREG[s_ * 4 + t] + 2 * u
                e(f"    ds_read_b64_tr_b16 v[{r}:{r+1}], v{4+t if t else 122} offset:{4096*s_ + 512*u}")


def load_headers():
    e(f"    buffer_load_dwordx2 v[116:117], v93, {R(S_WS)}, s30 offen {SC}")
    e(f"    buffer_load_dwordx2 v[118:119], v93, {R(S_WS)}, s31 offen {SC}")


def phase_b():
    e("COLLECT:")
    load_headers()
    e("    s_mov_b32 s68, s29")
    e(f"    s_add_u32 s69, s68, {128*32768}")
    e(f"    s_mov_b32 s75, {SPINMAX}")
    e("    v_cmp_gt_u32 s[8:9], 4, v10")
    if SP == 1:
        setup2()
    e("    s_waitcnt vmcnt(0)")
    e("C_CHK2:")
    e("    v_cmp_ne_u32_sdwa vcc, v117, v120 src0_sel:WORD_1 src1_sel:DWORD")
    e("    v_cmp_ne_u32_sdwa s[76:77], v119, v120 src0_sel:WORD_1 src1_sel:DWORD")
    e("    v_mov_b32_dpp v4, v116 quad_perm:[3,3,3,3] row_mask:0xf bank_mask:0xf")
    e("    v_mov_b32_dpp v5, v118 quad_perm:[3,3,3,3] row_mask:0xf bank_mask:0xf")
    e("    s_or_b64 vcc, vcc, s[76:77]")
    e("    s_cbranch_scc1 C_RETRY2")
    e("C_OK2:")
    stamp("b_gate")
    e("    v_mov_b32_dpp v4, v4 row_half_mirror row_mask:0xf bank_mask:0x5")
    e("    v_mov_b32_dpp v5, v5 row_half_mirror row_mask:0xf bank_mask:0x5")
    for i in range(2):
        e(f"    v_and_b32 v2, s49, v{4+i}")
        e(f"    v_bfe_u32 v3, v{4+i}, s26, 1")
        e("    v_bcnt_u32_b32 v2, v2, s26")
        e("    v_cmp_eq_u32 vcc, 1, v3")
        e(f"    v_lshl_add_u32 v{6+i}, v2, 6, v9")
        e("    s_or_b64 exec, vcc, s[8:9]")
        e(f"    buffer_load_dwordx4 v[{12+4*i}:{15+4*i}], v{6+i}, {R(S_WS)}, s{68+i} offen {SC}")
        e(f"    s_mov_b64 {ACT[i]}, exec")
        e("    s_mov_b64 exec, -1")
    stamp("b_iss")
    if I("pc", 1):
        e("    s_setprio 0")
    if SP >= 1:
        if SP == 2:
            setup2()
        e("    s_cmp_lg_u32 s71, 0")
        e("    s_cbranch_scc1 LATE_D")
        setup3()
        e("LATE_D:")
    e("    v_and_b32 v117, 0xffff, v117")
    e("    v_and_b32 v119, 0xffff, v119")
    e(f"    v_mul_u32_u24 v2, {TM}, v117")
    e(f"    v_mul_u32_u24 v3, {TM}, v119")
    e("    v_cmp_eq_u32 s[8:9], 7, v10")
    e(f"    s_mov_b32 s76, {0xf000 + NINL}")
    e("    v_cmp_lt_u32 s[72:73], s76, v117")
    e("    v_cmp_lt_u32 vcc, s76, v119")
    e("    v_lshrrev_b32 v2, 20, v2")
    e("    v_lshrrev_b32 v3, 20, v3")
    e("    v_cmp_eq_u32 s[4:5], s2, v2")
    e("    v_cmp_eq_u32 s[6:7], s2, v3")
    e("    s_and_b64 s[72:73], s[72:73], s[8:9]")
    e("    s_and_b64 vcc, vcc, s[8:9]")
    e("    s_lshr_b64 s[72:73], s[72:73], 1")
    e("    s_or_b64 s[72:73], s[72:73], vcc")
    e(f"    s_mov_b64 {PEND(7)}, 0")
    e("    s_movk_i32 s70, 0xffff")
    e(f"    s_mov_b64 {PEND(6)}, s[12:13]")
    e("    s_mov_b64 exec, s[12:13]")
    e("    s_cbranch_execz C_NT")
    e("    ds_add_rtn_u32 v38, v46, v1")
    e("C_NT:")
    for i in range(2):
        base = 12 + 4 * i
        e(f"    s_mov_b64 exec, {ACT[i]}")
        e(f"    s_waitcnt vmcnt({1-i})")
        e(f"C_CHK{i}:")
        e(f"    v_cmp_ne_u32_sdwa vcc, v{base+3}, v127 src0_sel:BYTE_3 src1_sel:DWORD")
        e(f"    s_cbranch_vccnz C_RETRY{i}")
        e(f"C_OK{i}:")
        stamp("b_lines" if i == 0 else "b_lines1")
        for k in range(3):
            e(f"    v_cmp_ne_u16 {PEND(3*i+k)}, s70, v{base+k}")
        if i == 1 and EARLY:
            own_x()
        for k in range(3):
            decode_key(base + k, base + 3, k, 3 * i + k)
        for k in range(3):
            s_ = 3 * i + k
            e(f"    s_mov_b64 exec, {PEND(s_)}")
            e(f"    ds_add_rtn_u32 v{32+s_}, v{40+s_}, v1")
    e("    s_mov_b64 exec, -1")
    for i in range(2):
        base = 12 + 4 * i
        for k in range(3):
            decode_data(base + k, base + 3, k, 3 * i + k)
    e("    s_mov_b64 s[68:69], 0")
    e("    s_or_b64 s[76:77], s[4:5], s[6:7]")
    e("    s_or_b64 s[76:77], s[76:77], s[72:73]")
    e("    s_cbranch_scc1 EXTRA")
    e("CDONE:")
    e("    s_lshl_b32 s75, s3, 2")
    e("    s_add_u32 s75, s75, 3")
    e("    s_waitcnt lgkmcnt(0)")
    stamp("b_pre1")
    e("    s_barrier")
    stamp2("b_bar1", "")
    e("    ds_read_b128 v[4:7], v90")
    if not EARLY:
        own_x()
    e("    s_cmp_lg_u32 s3, 15")
    e("    s_cbranch_scc1 PT_D")
    e("    s_lshl_b32 s76, s2, 8")
    e(f"    s_add_u32 s76, s76, {WS_FLAG}")
    e("    v_lshlrev_b32 v2, 7, v92")
    e("    s_mov_b64 exec, 3")
    e(f"    buffer_load_dword v91, v2, {R(S_WS)}, s76 offen sc1")
    e("    s_mov_b64 exec, -1")
    e("PT_D:")
    e("    s_waitcnt lgkmcnt(0)")
    e("    v_add_u32 v5, v4, v5")
    e("    v_add3_u32 v7, v5, v6, v7")
    e("    v_add_u32 v6, v5, v6")
    e("    s_nop 0")
    e("    v_and_b32_dpp v28, v7, v95 quad_perm:[0,0,0,0] row_mask:0xf bank_mask:0xf")
    e("    v_and_b32_dpp v29, v7, v96 quad_perm:[1,1,1,1] row_mask:0xf bank_mask:0xf")
    e("    v_and_b32_dpp v30, v7, v97 quad_perm:[2,2,2,2] row_mask:0xf bank_mask:0xf")
    e("    v_add3_u32 v28, v28, v29, v30")
    e("    v_add_u32 v7, v28, v7")
    e("    v_lshl_add_u32 v28, v28, 2, v98")
    e(f"    v_cmp_lt_u32 vcc, {CAPT}, v7")
    e("    v_lshl_add_u32 v29, v4, 2, v28")
    e("    v_lshl_add_u32 v30, v5, 2, v28")
    e("    v_lshl_add_u32 v31, v6, 2, v28")
    e("    v_readlane_b32 s74, v7, s75")
    e("    ds_write_b128 v90, v[28:31] offset:1024")
    e(f"    s_or_b64 s[76:77], {PEND(6)}, {PEND(7)}")
    e("    s_cbranch_scc0 P_NR")
    for s in RARE:
        e(f"    s_mov_b64 exec, {PEND(s)}")
        e(f"    ds_read_b32 v{20+s}, v{40+s} offset:1024")
    e("P_NR:")
    for s in COMMON:
        e(f"    s_mov_b64 exec, {PEND(s)}")
        e(f"    ds_read_b32 v{20+s}, v{40+s} offset:1024")
    e(f"    s_min_u32 s74, s74, {CAPT}")
    e("    s_cbranch_vccnz SLOWW")
    for s in COMMON:
        e(f"    s_mov_b64 exec, {PEND(s)}")
        e(f"    s_waitcnt lgkmcnt({len(COMMON)-1})")
        e(f"    v_lshl_add_u32 v{20+s}, v{32+s}, 2, v{20+s}")
        e(f"    ds_write2st64_b32 v{20+s}, v{48+s}, v{56+s} offset0:0 offset1:5")
    e("    s_cmp_eq_u64 s[76:77], 0")
    e("    s_cbranch_scc1 P_NW")
    for s in RARE:
        e(f"    s_mov_b64 exec, {PEND(s)}")
        e(f"    v_lshl_add_u32 v{20+s}, v{32+s}, 2, v{20+s}")
        e(f"    ds_write2st64_b32 v{20+s}, v{48+s}, v{56+s} offset0:0 offset1:5")
    e("P_NW:")
    for s in range(8):
        e(f"    s_mov_b64 {PEND(s)}, 0")
    e("WDONE:")
    e("    s_sub_u32 s76, 0, s74")
    e("    s_and_b32 s76, s76, 31")
    e("    s_bfm_b64 exec, s76, 0")
    e("    s_lshl_b32 s77, s74, 2")
    e("    v_add_u32 v2, s77, v123")
    e(f"    v_mov_b32 v3, {PADV}")
    e("    ds_write2st64_b32 v2, v3, v3 offset0:0 offset1:5")
    e("    s_mov_b64 exec, -1")
    e(f"    v_mov_b32 v4, {MORE}")
    e("    s_lshl_b32 s76, s3, 6")
    e(f"    s_add_u32 s76, s76, {SELFN}")
    e("    v_lshl_add_u32 v5, v92, 2, s76")
    e("    ds_read_b32 v126, v5")
    e("    s_waitcnt lgkmcnt(0)")
    e("    s_barrier")
    stamp2("b_bar2", "")
    e("    ds_read_b32 v8, v4")


def main_loop():
    def next_k():
        e("    s_mov_b32 s8, 1")
        e("    s_cmp_gt_i32 s9, s10")
        e("    s_addc_u32 s8, s8, 0")
        e("    s_lshl_b32 s11, s10, 1")
        e("    s_cmp_gt_i32 s9, s11")
        e("    s_addc_u32 s8, s8, 0")
        e("    s_add_i32 s11, s11, s10")
        e("    s_cmp_gt_i32 s9, s11")
        e("    s_addc_u32 s8, s8, 0")
        e("    s_min_i32 s8, s8, s9")
        e("    s_sub_i32 s9, s9, s8")
        e("    s_sub_i32 s10, s10, 1")
        e("    s_lshl_b32 s11, s8, 5")

    def read_recs(a, b, adv):
        e(f"    ds_read2_b32 v[100:101], v{a} offset0:0 offset1:8")
        e(f"    ds_read2_b32 v[102:103], v{a} offset0:16 offset1:24")
        e(f"    ds_read_b128 v[104:107], v{b}")
        e(f"    ds_read_b128 v[108:111], v{b} offset:16")
        e(f"    v_add_u32 v93, {adv}, v{a}")
        e(f"    v_add_u32 v94, {adv}, v{b}")

    def dma(i):
        e(f"    buffer_load_dwordx4 v{100+i}, {R(S_GAT)}, 0 offen offset:{1024*i} lds")

    def addr():
        for i in range(4):
            e(f"    v_add_u32 v{100+i}, v{100+i}, v{80+i}")

    def build_b(w):
        for j in range(8):
            e(f"    v_bfe_i32 v{32+j}, v{104+j}, v92, {w}")
        for j in range(8):
            e(f"    v_and_b32 v{32+j}, v{32+j}, v{104+j}")
        for j in range(4):
            e(f"    v_perm_b32 v{112+j}, v{32+2*j+1}, v{32+2*j}, s1")

    def mfmas():
        for t in range(4):
            e(f"    v_mfma_f32_16x16x32_bf16 v[{64+4*t}:{67+4*t}], v[{12+4*t}:{15+4*t}], v[112:115], v[{64+4*t}:{67+4*t}]")

    e("MAIN:")
    e("    s_cmp_eq_u32 s74, 0")
    e("    s_cbranch_scc1 EMPTY")
    read_recs(88, 89, 128)
    e("    s_waitcnt lgkmcnt(2)")
    addr()
    e("MAIN2:")
    PM = I("pm", 3)
    if PM == 1:
        prio_by_age("PRIOD")
    if PM == 2:
        e("    s_cmp_lt_u32 s3, 8")
        e("    s_cbranch_scc1 PRIOE")
        e("    s_setprio 1")
        e("PRIOE:")
    for i in range(4):
        dma(i)
    if PM in (0, 2):
        prio_by_age("PRIOD")
    e("    s_add_u32 s9, s74, 7")
    e("    s_lshr_b32 s9, s9, 3")
    e("    s_sub_i32 s9, s9, 4")
    e("    s_max_i32 s9, s9, 0")
    e(f"    s_mov_b32 s10, {NB-1}")
    next_k()
    e("    s_waitcnt lgkmcnt(0)")
    build_b("1")
    read_recs(93, 94, "s11")
    e("    s_bitcmp1_b32 s71, 3")
    e("    s_cbranch_scc1 LOOP")
    e("    s_or_b32 s71, s71, 8")
    if I("wearly", 0):
        e("    v_readfirstlane_b32 s75, v8")
        e("    s_cmp_lg_u32 s75, 0")
        e("    s_cbranch_scc1 NOWF")
        e("    s_or_b32 s71, s71, 16")
        w_frags()
        e("NOWF:")
    e("    s_waitcnt vmcnt(4)")
    self_init(64)
    e("LOOP:")
    e("    v_cmp_gt_u32 vcc, s8, v11")
    if PM == 4:
        prio_by_age("PRIOD")
    e("    s_waitcnt vmcnt(0)")
    for t in range(4):
        for u in range(2):
            e(f"    ds_read_b64_tr_b16 v[{12+4*t+2*u}:{13+4*t+2*u}], v{84+t} offset:{512*u}")
    e("    s_cmp_eq_u32 s8, 0")
    e("    v_cndmask_b32 v91, 0, v1, vcc")
    e("    s_waitcnt lgkmcnt(8)")
    addr()
    e("    s_waitcnt lgkmcnt(0)")
    e("    s_cbranch_scc1 LAST")
    dma(0)
    e("    s_cmp_eq_u32 s8, 1")
    e("    s_cbranch_scc1 DMAD")
    dma(1)
    e("    s_cmp_eq_u32 s8, 2")
    e("    s_cbranch_scc1 DMAD")
    dma(2)
    e("    s_cmp_eq_u32 s8, 3")
    e("    s_cbranch_scc1 DMAD")
    dma(3)
    e("DMAD:")
    if PM == 4:
        e("    s_setprio 0")
    mfmas()
    next_k()
    build_b("v91")
    read_recs(93, 94, "s11")
    e("    s_branch LOOP")
    e("LAST:")
    mfmas()
    e("MAINDONE:")
    e("    v_readfirstlane_b32 s75, v8")
    e("    s_cmp_lg_u32 s75, 0")
    e("    s_cbranch_scc1 AGAIN")

    stamp2("h1_done", "h2_done")
    e("    s_nop 2")
    for t in range(4):
        e(f"    v_cvt_pk_bf16_f32 v{12+2*t}, v{64+4*t}, v{65+4*t}")
        e(f"    v_cvt_pk_bf16_f32 v{13+2*t}, v{66+4*t}, v{67+4*t}")
    e("    s_mov_b64 exec, s[16:17]")
    e("    v_swap_b32 v12, v14")
    e("    v_swap_b32 v13, v15")
    e("    v_swap_b32 v16, v18")
    e("    v_swap_b32 v17, v19")
    e("    s_bitcmp1_b32 s71, 0")
    e("    s_cbranch_scc1 FINAL")
    e("    s_mov_b64 exec, s[14:15]")
    e(f"    buffer_store_dwordx4 v[12:15], v121, {R(S_STO)}, 0 offen {SC}")
    e(f"    buffer_store_dwordx4 v[16:19], v121, {R(S_STO)}, 0 offen offset:64 {SC}")
    e("    s_setprio 0")
    e("    s_mov_b64 exec, -1")
    stamp("h1_st")
    def book():
        e(f"    s_mov_b64 s[{S_GAT}:{S_GAT+1}], s[{S_GH}:{S_GH+1}]")
        e("    s_or_b32 s71, s71, 1")
        self_init(12)
        e("    s_bitcmp1_b32 s71, 1")
        e("    s_cbranch_scc1 E_IRR")
        if not I("wearly", 0):
            e("    s_or_b32 s71, s71, 16")
            w_frags()
        read_recs(88, 89, 128)
        e("    s_waitcnt lgkmcnt(2)")
        addr()
        e("E_BAR:")
    BL = I("booklate", 1)
    if not BL:
        book()
    barrier_addrs()
    e("    s_waitcnt vmcnt(0)")
    stamp("g2_ack")
    e("    s_barrier")
    e("    s_cmp_lg_u32 s3, 0")
    e("    s_cbranch_scc1 G2_NOF")
    stamp("g2_arr")
    e("    s_mov_b64 exec, 0xff")
    e(f"    buffer_store_dword v125, v2, {R(S_WS)}, s76 offen sc1")
    e("G2_NOF:")
    e("    s_mov_b32 exec_hi, 0")
    e(f"    s_and_b32 exec_lo, s14, {OPT.get('ownm', '0xffff')}")
    if OPT.get('ownm', '0xffff') != '0':
        e(f"    buffer_load_dword v91, v121, {R(S_STO)}, 0 offen sc1")
    e("    s_mov_b64 exec, -1")
    if BL:
        if I("pp", 1):
            e("    s_cmp_lg_u32 s3, 0")
            e("    s_cbranch_scc1 G2_NP")
            e("    s_setprio 3")
            e("G2_NP:")
        book()
    e("    s_cmp_lg_u32 s3, 0")
    e("    s_cbranch_scc1 G2_WAIT")
    e(f"    s_mov_b32 s75, {SPINMAX}")
    e("G2_POLL:")
    e(f"    buffer_load_dwordx4 v[4:7], v8, {R(S_WS)}, s77 offen sc1")
    e("    s_sub_u32 s75, s75, 1")
    e("    s_cmp_eq_u32 s75, 0")
    e("    s_waitcnt vmcnt(0)")
    e("    s_cbranch_scc1 G2_WAIT")
    e("    v_xor_b32 v4, v4, v125")
    e("    v_xor_b32 v5, v5, v125")
    e("    v_xor_b32 v6, v6, v125")
    e("    v_xor_b32 v7, v7, v125")
    e("    v_or3_b32 v4, v4, v5, v6")
    e("    v_or_b32 v4, v4, v7")
    e("    v_cmp_ne_u32 vcc, 0, v4")
    if I("shrink", 1):
        e("    s_and_b64 exec, exec, vcc")
        e("    s_cbranch_scc1 G2_POLL")
    else:
        e("    s_cbranch_vccnz G2_POLL")
    e("G2_WAIT:")
    e("    s_mov_b64 exec, -1")
    if I("pp", 1):
        e("    s_setprio 0")
    e("    v_mov_b32 v8, 0")
    e("    s_and_b32 s76, s71, 2")
    e("    s_cselect_b32 s76, 0, s74")
    e("    s_cmp_lg_u32 s76, 0")
    e("    s_barrier")
    stamp("g2_exit")
    e("    s_cbranch_scc1 MAIN2")
    e("    s_bitcmp0_b32 s71, 1")
    e("    s_cbranch_scc1 MAIN")
    e("    s_branch COLLECT")
    e("FINAL:")
    e("    s_mov_b64 exec, -1")
    e("    s_bitcmp0_b32 s71, 4")
    e("    s_cbranch_scc1 F_GETW")
    e("F_HAVEW:")
    for t in range(4):
        w = WREG[t]
        e(f"    v_mfma_f32_16x16x32_bf16 v[{64+4*t}:{67+4*t}], v[{w}:{w+3}], v[12:15], 0")
    for t in range(4):
        w = WREG[4 + t]
        e(f"    v_mfma_f32_16x16x32_bf16 v[{64+4*t}:{67+4*t}], v[{w}:{w+3}], v[16:19], v[{64+4*t}:{67+4*t}]")
    e("    s_nop 4")
    for t in range(4):
        if t:
            e("    s_nop 1")
        e(f"    v_cvt_pk_bf16_f32 v{12+2*t}, v{64+4*t}, v{65+4*t}")
        e(f"    v_cvt_pk_bf16_f32 v{13+2*t}, v{66+4*t}, v{67+4*t}")
    e("    s_mov_b64 exec, s[14:15]")
    e(f"    buffer_store_dwordx4 v[12:15], v121, {R(S_OUT)}, 0 offen {ST_OUT}")
    e(f"    buffer_store_dwordx4 v[16:19], v121, {R(S_OUT)}, 0 offen offset:64 {ST_OUT}")
    stamp_out()
    e("END:")
    e("    s_endpgm")


def out_of_line():
    for i in range(2):
        base = 12 + 4 * i
        e(f"C_RETRY{i}:")
        e("    s_lshr_b64 s[76:77], vcc, 1")
        e("    s_or_b64 vcc, vcc, s[76:77]")
        e("    s_lshr_b64 s[76:77], vcc, 2")
        e("    s_or_b64 vcc, vcc, s[76:77]")
        e("    s_and_b32 vcc_lo, vcc_lo, 0x11111111")
        e("    s_and_b32 vcc_hi, vcc_hi, 0x11111111")
        e("    s_mul_i32 exec_lo, vcc_lo, 15")
        e("    s_mul_i32 exec_hi, vcc_hi, 15")
        if I("rbo", 4):
            e(f"    s_sleep {I('rbo', 4)}")
        e(f"    buffer_load_dwordx4 v[{base}:{base+3}], v{6+i}, {R(S_WS)}, s{68+i} offen {SC}")
        e(f"    s_mov_b64 exec, {ACT[i]}")
        e("    s_sub_u32 s75, s75, 1")
        e("    s_cmp_eq_u32 s75, 0")
        e("    s_waitcnt vmcnt(0)")
        e(f"    s_cbranch_scc0 C_CHK{i}")
        e("    s_mov_b32 s75, 1000")
        if DIAG:
            e(f"    s_or_b32 s48, s48, {1 << i}")
            e("    s_mov_b64 s[50:51], vcc")
        e(f"    s_branch C_OK{i}")
    e("C_RETRY2:")
    e(f"    s_sleep {I('bo', 2)}")
    load_headers()
    e("    s_sub_u32 s75, s75, 1")
    e("    s_cmp_eq_u32 s75, 0")
    e("    s_waitcnt vmcnt(0)")
    e("    s_cbranch_scc0 C_CHK2")
    e("    s_mov_b32 s75, 1000")
    if DIAG:
        e("    s_or_b32 s48, s48, 4")
        e("    s_mov_b64 s[50:51], vcc")
    e("    s_branch C_OK2")
    a_overflow()
    e("AGAIN:")
    e("    s_setprio 0")
    e("    s_or_b32 s71, s71, 2")
    e("    s_barrier")
    zero_b_counters((WL - CNTB) // 4)
    e("    s_waitcnt lgkmcnt(0)")
    e("    s_barrier")
    for s in range(7):
        e(f"    s_mov_b64 exec, {PEND(s)}")
        e(f"    ds_add_rtn_u32 v{32+s}, v{40+s}, v1")
    e("EXTRA:")
    for m, r in (("s[4:5]", 116), ("s[6:7]", 118)):
        e(f"    s_andn2_b64 exec, {m}, {PEND(7)}")
        e(f"    s_andn2_b64 {m}, {m}, exec")
        e(f"    s_or_b64 {PEND(7)}, {PEND(7)}, exec")
        decode_full(r, r + 1, 7)
    e("    s_mov_b64 exec, -1")
    e("    s_or_b64 s[76:77], s[4:5], s[6:7]")
    e("    s_cbranch_scc1 OVFULL")
    e("    s_mov_b32 s75, 0")
    e("OVL:")
    e("    s_cmp_lt_u32 s68, s69")
    e("    s_cbranch_scc1 OVLOAD")
    e("    s_cmp_eq_u64 s[72:73], 0")
    e("    s_cbranch_scc1 OVDONE")
    e("    s_ff1_i32_b64 s76, s[72:73]")
    e("    s_bitset0_b64 s[72:73], s76")
    e("    s_or_b32 s77, s76, 7")
    e("    v_readlane_b32 s68, v117, s77")
    e("    v_readlane_b32 s69, v119, s77")
    e("    s_bitcmp1_b32 s76, 0")
    e("    s_cselect_b32 s69, s69, s68")
    e("    s_and_b32 s69, s69, 0xfff")
    e(f"    s_min_u32 s69, s69, {CHMAX}")
    e("    s_and_b32 s77, s76, 1")
    e("    s_lshl_b32 s77, s77, 7")
    e("    s_lshr_b32 s76, s76, 3")
    e("    s_add_u32 s76, s76, s77")
    e("    s_lshl_b32 s77, s3, 3")
    e("    s_add_u32 s76, s76, s77")
    e("    s_lshl_b32 s70, s76, 15")
    e(f"    s_mov_b32 s68, {NINL}")
    e("OVLOAD:")
    e("    v_add_u32 v4, s75, v0")
    e("    v_and_b32 v4, 63, v4")
    e("    v_add_u32 v4, s68, v4")
    e("    v_lshlrev_b32 v5, 3, v4")
    e(f"    buffer_load_dwordx2 v[28:29], v5, {R(S_OVF)}, s70 offen {SC}")
    e("    s_waitcnt vmcnt(0)")
    e(f"    v_mul_u32_u24 v30, {TM}, v29")
    e("    v_lshrrev_b32 v31, 20, v30")
    e("    v_cmp_gt_u32 vcc, s69, v4")
    e("    v_cmp_eq_u32 s[76:77], s2, v31")
    e("    s_and_b64 vcc, s[76:77], vcc")
    e(f"    s_and_b64 s[76:77], vcc, {PEND(7)}")
    e("    s_cbranch_scc1 OVFULL")
    e(f"    s_or_b64 {PEND(7)}, {PEND(7)}, vcc")
    e("    s_add_u32 s68, s68, 64")
    e("    s_add_u32 s75, s75, 16")
    e("    s_mov_b64 exec, vcc")
    decode_full(28, 29, 7)
    e("    s_mov_b64 exec, -1")
    e("    s_branch OVL")
    e("OVFULL:")
    e(f"    v_mov_b32 v2, {MORE}")
    e("    ds_write_b32 v2, v1")
    e("OVDONE:")
    e(f"    s_mov_b64 exec, {PEND(7)}")
    e("    ds_add_rtn_u32 v39, v47, v1")
    e("    s_mov_b64 exec, -1")
    e("    s_branch CDONE")
    e("SLOWW:")
    e("    s_waitcnt lgkmcnt(0)")
    for s in range(8):
        e(f"    s_mov_b64 exec, {PEND(s)}")
        e(f"    v_lshl_add_u32 v{20+s}, v{32+s}, 2, v{20+s}")
        e(f"    v_subrev_u32 v3, s0, v{40+s}")
        e("    v_lshrrev_b32 v3, 6, v3")
        e(f"    v_mul_u32_u24 v3, {TSTR}, v3")
        e(f"    v_add_u32 v3, {LISTS + CAPT*4}, v3")
        e(f"    v_cmp_lt_u32 vcc, v{20+s}, v3")
        e(f"    s_andn2_b64 {PEND(s)}, exec, vcc")
        e("    s_mov_b64 exec, vcc")
        e(f"    ds_write2st64_b32 v{20+s}, v{48+s}, v{56+s} offset0:0 offset1:5")
    e("    s_mov_b64 exec, -1")
    e(f"    v_mov_b32 v3, {MORE}")
    e("    ds_write_b32 v3, v1")
    e("    s_branch WDONE")
    e("E_IRR:")
    e("    s_mov_b32 s70, s77")
    zero_b_counters(256)
    e("    s_mov_b32 s77, s70")
    collect_addrs()
    for i in range(4):
        e(f"    v_mov_b32 v{100+i}, {PADV}")
    e("    s_waitcnt lgkmcnt(0)")
    e("    s_branch E_BAR")
    e("EMPTY:")
    e("    s_waitcnt vmcnt(0) lgkmcnt(0)")
    e("    s_bitcmp1_b32 s71, 3")
    e("    s_cbranch_scc1 MAINDONE")
    e("    s_or_b32 s71, s71, 8")
    self_init(64)
    e("    s_branch MAINDONE")
    e("F_GETW:")
    w_frags()
    e("    s_waitcnt lgkmcnt(0)")
    e("    s_branch F_HAVEW")
    e("CODE_END:")


def body():
    e(f".globl {NAME}")
    e(".p2align 8")
    e(f".type {NAME},@function")
    e(f"{NAME}:")
    phase_a()
    setup1()
    if SP == 0:
        setup2()
        setup3()
    if I("pc", 1):
        e("    s_setprio 3")
    e("    s_waitcnt vmcnt(0) lgkmcnt(0)" if I("ackb", 1) else "    s_waitcnt lgkmcnt(0)")
    stamp("g1_ack")
    e("    s_barrier")
    stamp("g1_exit")
    phase_b()
    main_loop()
    out_of_line()


def spin_kernel():
    na, nb_, mode, mult, wlo, whi = (SPIN.split(",") + ["0", "15"])[:6]
    wlo, whi = int(wlo), int(whi)
    ia, ib, mode, mult = STL.index(na), STL.index(nb_), int(mode), int(mult)
    init = "0x80000000" if mode == 0 else "0x7fffffff" if mode == 1 else "0"
    e(".globl sgc_spin_kernel")
    e(".p2align 8")
    e(".type sgc_spin_kernel,@function")
    e("sgc_spin_kernel:")
    e("    s_memrealtime s[30:31]")
    e("    s_cmp_ge_u32 s2, 1")
    e("    s_cbranch_scc1 SP_END")
    e("    s_load_dwordx8 s[12:19], s[0:1], 32")
    e("    v_lshlrev_b32 v1, 6, v0")
    e("    v_mov_b32 v4, 0x7fffffff")
    e(f"    v_mov_b32 v5, {init}")
    e("    s_mov_b32 s23, 0x20000")
    e("    s_waitcnt lgkmcnt(0)")
    srd(20, 18, 19, 1 << 20, WS_STAMP)
    e("    s_mov_b32 s24, 0")
    e("SP_RD:")
    e(f"    buffer_load_dword v2, v1, s[20:23], s24 offen offset:{4*ia}")
    e(f"    buffer_load_dword v3, v1, s[20:23], s24 offen offset:{4*ib}")
    e("    s_add_u32 s24, s24, 4096")
    e("    s_cmp_lt_u32 s24, 0x40000")
    e("    s_waitcnt vmcnt(0)")
    e("    v_subrev_u32 v2, s30, v2")
    e("    v_subrev_u32 v3, s30, v3")
    e("    v_min_i32 v4, v4, v2")
    e("    %s v5, v5, v3" % ("v_max_i32" if mode == 0 else "v_min_i32" if mode == 1 else "v_add_u32"))
    e("    s_cbranch_scc1 SP_RD")
    e("    s_mov_b32 s26, 0x7fffffff")
    e(f"    s_mov_b32 s27, {init}")
    e("    s_nop 1")
    for l in range(64):
        e(f"    v_readlane_b32 s28, v4, {l}")
        e(f"    v_readlane_b32 s29, v5, {l}")
        e("    s_min_i32 s26, s26, s28")
        if wlo <= (l & 15) <= whi:
            e("    %s s27, s27, s29" % ("s_max_i32" if mode == 0 else "s_min_i32" if mode == 1 else "s_add_u32"))
    if mode == 2:
        e("    s_ashr_i32 s27, s27, %d" % (8 + (whi - wlo + 1).bit_length() - 1))
    e("    s_sub_i32 s26, s27, s26")
    e("    s_max_i32 s26, s26, 0")
    e("    s_min_i32 s26, s26, 20000")
    e(f"    s_mul_i32 s26, s26, {mult}")
    e("    s_add_u32 s26, s26, 10000")
    e("SP_LOOP:")
    e("    s_memrealtime s[28:29]")
    e("    s_waitcnt lgkmcnt(0)")
    e("    s_sub_u32 s28, s28, s30")
    e("    s_cmp_lt_u32 s28, s26")
    e("    s_cbranch_scc1 SP_LOOP")
    e("SP_END:")
    e("    s_endpgm")


def desc(name, vg, sg):
    e(".p2align 6")
    e(f".amdhsa_kernel {name}")
    e(f"  .amdhsa_next_free_vgpr {vg}")
    e(f"  .amdhsa_next_free_sgpr {sg}")
    e(f"  .amdhsa_accum_offset {vg}")
    e("  .amdhsa_group_segment_fixed_size 0")
    e("  .amdhsa_kernarg_size 64")
    e("  .amdhsa_user_sgpr_count 2")
    e("  .amdhsa_user_sgpr_kernarg_segment_ptr 1")
    e("  .amdhsa_system_sgpr_workgroup_id_x 1")
    e(".end_amdhsa_kernel")


SPIN = OPT.get("spin")
if SPIN:
    e(f"; @launch kernel={NAME} grid=(256,1,1) block=(1024,1,1) lds={LDS}")
    e("; @launch kernel=sgc_spin_kernel grid=(1,1,1) block=(64,1,1) lds=0")
else:
    e(f"; @launch grid=(256,1,1) block=(1024,1,1) lds={LDS}")
e('.amdgcn_target "amdgcn-amd-amdhsa--gfx950"')
e(".text")
body()
if SPIN:
    spin_kernel()
e('.section .rodata,"a"')
if SPIN:
    desc("sgc_spin_kernel", 8, 40)
desc(NAME, 128, 102 if DIAG else 78)
open(OUT, "w").write("\n".join(L) + "\n")
```

```python
import sys

OUT = [a for a in sys.argv[1:] if not a.startswith("--")][0]
OPT = dict(a[2:].split("=") for a in sys.argv[1:] if a.startswith("--") and "=" in a)
NAME = "standalone__spectral_conv_sgc__graph_kernel"
DEFST = "start,a_bar2,g1_exit,b_gate,b_lines,b_bar1,b_bar2,h1_done,g2_exit,h2_done,end"
STL = OPT.get("st", DEFST if "--diag" in sys.argv else "").split(",")
STL = [s for s in STL if s]
DIAG = len(STL) > 0


def I(name, dflt):
    return int(OPT.get(name, dflt))


N = 50000
E = 850000
ET = 800000
TM = 5368
CHMAX = 13 * 256
SLOTCAP = 24
NINL = 7
WS_OVT = 8 << 20
WS_FLAG = WS_OVT + 131072
WS_H1 = WS_OVT + (1 << 20)
WS_OVF = 16 << 20
OVF_STRIDE = 32768
WS_STAMP = 32 << 20
TABBYTES = N * 128
PADV = 0x40000000

K1_LS = 132
K1_CNT = 256 * K1_LS
K1_OVC = 1024
K1_DONE = 1028
K1_OVT = K1_CNT + 4096
K1_NON = K1_OVT + 64
K1_MSK = K1_NON + 16
LISTS = 65536
CAPT = 320
TSTR = CAPT * 8
CNTB = LISTS + 16 * TSTR + 256
BASES = CNTB + 1024
MORE = BASES + 1024
WL = MORE + 128
assert WL % 128 == 0
SELFN = WL + 8192
LDS = SELFN + 1024

SC = "sc1"
ST_OUT = OPT.get("stout", "sc1")
SPINMAX = I("spinmax", 20000000)
NB = I("nb", 8)
TSH = I("tsh", 20)
ROT = I("rot", 6250)
SP = I("sp", 1)
EARLY = I("early", 0)

L = []


def e(s=""):
    L.append(s)


def srd(d, lo, hi, nbytes, off=0):
    if off == 0:
        e(f"    s_mov_b64 s[{d}:{d+1}], s[{lo}:{hi}]")
    elif off > 0:
        e(f"    s_add_u32 s{d}, s{lo}, {off}")
        e(f"    s_addc_u32 s{d+1}, s{hi}, 0")
    else:
        e(f"    s_sub_u32 s{d}, s{lo}, {-off}")
        e(f"    s_subb_u32 s{d+1}, s{hi}, 0")
    e(f"    s_mov_b32 s{d+2}, {nbytes}")
    e(f"    s_mov_b32 s{d+3}, s23")


S_SRC, S_DST, S_NRM, S_WS, S_OVF, S_GAT, S_STO = 20, 24, 28, 32, 36, 40, 44
S_OUT, S_GH = S_SRC, S_DST


def R(d):
    return f"s[{d}:{d+3}]"


STAMP_BASE = 78


def stamp(name):
    if name in STL:
        i = STL.index(name)
        e(f"    s_memrealtime s[{STAMP_BASE+2*i}:{STAMP_BASE+2*i+1}]")


def stamp2(n1, n2):
    if n1 in STL or n2 in STL:
        n = len(L)
        e("    s_bitcmp1_b32 s71, 0")
        e(f"    s_cbranch_scc1 ST{n}_B")
        stamp(n1)
        e(f"    s_branch ST{n}_C")
        e(f"ST{n}_B:")
        stamp(n2)
        e(f"ST{n}_C:")


def stamp_out():
    if not DIAG:
        return
    e("    s_waitcnt vmcnt(0) lgkmcnt(0)")
    stamp("end")
    e("    s_waitcnt lgkmcnt(0)")
    e("    s_mov_b64 exec, 1")
    srd(28, 18, 19, 1 << 20, WS_STAMP)
    e("    s_lshl_b32 s76, s2, 4")
    e("    s_add_u32 s76, s76, s3")
    e("    s_lshl_b32 s76, s76, 6")
    e("    v_mov_b32 v2, s76")
    for i in range(len(STL)):
        e(f"    v_mov_b32 v3, s{STAMP_BASE+2*i}")
        e(f"    buffer_store_dword v3, v2, s[28:31], 0 offen offset:{4*i}")
    e("    s_getreg_b32 s76, hwreg(HW_REG_XCC_ID)")
    e("    v_mov_b32 v3, s76")
    e("    buffer_store_dword v3, v2, s[28:31], 0 offen offset:56")
    e("    s_lshl_b32 s76, s48, 16")
    e("    s_or_b32 s76, s76, s74")
    e("    v_mov_b32 v3, s76")
    e("    buffer_store_dword v3, v2, s[28:31], 0 offen offset:60")
    e("    v_mov_b32 v3, s50")
    e("    buffer_store_dword v3, v2, s[28:31], 0 offen offset:48")
    e("    v_mov_b32 v3, s51")
    e("    buffer_store_dword v3, v2, s[28:31], 0 offen offset:52")


def PEND(s):
    return f"s[{52+2*s}:{53+2*s}]"


def prio_by_age(lbl):
    for g in range(1, 4):
        e(f"    s_cmp_lt_u32 s3, {4*g}")
        e(f"    s_cbranch_scc1 {lbl}")
        e(f"    s_setprio {g}")
    e(f"{lbl}:")


def decode_key(rec, meta, k, s):
    ca = 40 + s
    e(f"    v_add_u32 v2, s27, v{rec}")
    e(f"    v_and_b32_sdwa v3, v{meta}, v99 dst_sel:DWORD dst_unused:UNUSED_PAD src0_sel:BYTE_{k} src1_sel:DWORD")
    e("    v_bfe_u32 v2, v2, 12, 4")
    e("    v_or_b32 v2, v2, v3")
    e(f"    v_lshl_add_u32 v{ca}, v2, 2, s0")


def decode_data(rec, meta, k, s):
    d0, d1 = 48 + s, 56 + s
    e(f"    v_lshlrev_b32_sdwa v{d0}, v124, v{rec} dst_sel:DWORD dst_unused:UNUSED_PAD src0_sel:DWORD src1_sel:WORD_0")
    e(f"    v_mov_b32 v{d1}, v{rec}")
    e(f"    v_lshlrev_b16_sdwa v{d1}, v{meta}, v1 dst_sel:WORD_0 dst_unused:UNUSED_PRESERVE src0_sel:BYTE_{k} src1_sel:DWORD")


def decode_full(rec, dst, s):
    e(f"    v_mul_u32_u24 v30, {TM}, v{dst}")
    e("    v_lshrrev_b32 v30, 12, v30")
    e(f"    v_bfi_b32 v30, 15, v{dst}, v30")
    decode_key(rec, 30, 0, s)
    decode_data(rec, 30, 0, s)


def zero_b_counters(n):
    e("    v_lshlrev_b32 v2, 2, v0")
    e(f"    v_add_u32 v2, {CNTB}, v2")
    e("    v_mov_b32 v3, 0")
    e(f"    v_cmp_gt_u32 vcc, {n}, v0")
    e("    s_and_saveexec_b64 s[76:77], vcc")
    e("    ds_write_b32 v2, v3")
    e("    s_mov_b64 exec, -1")


def collect_addrs():
    e("    v_lshrrev_b32 v9, 3, v0")
    e("    v_lshlrev_b32 v93, 7, v9")
    e("    v_lshlrev_b32 v9, 15, v9")
    e("    v_lshl_add_u32 v9, v10, 4, v9")
    e("    v_lshl_add_u32 v93, v10, 3, v93")


def own_x():
    e("    s_bitcmp1_b32 s71, 3")
    e("    s_cbranch_scc1 NOOWN")
    e("    s_mov_b64 exec, s[14:15]")
    e(f"    buffer_load_dwordx4 v[64:67], v121, {R(S_GAT)}, 0 offen offset:3072")
    e(f"    buffer_load_dwordx4 v[68:71], v121, {R(S_GAT)}, 0 offen offset:3136")
    if I("xtra", 0):
        e(f"    s_mov_b64 exec, {(1 << I('xtra', 0)) - 1}")
        e(f"    s_movk_i32 s76, {196*128}")
        e(f"    buffer_load_dword v91, v121, {R(S_GAT)}, s76 offen offset:3072")
    e("NOOWN:")
    e("    s_mov_b64 exec, -1")


def self_init(b):
    e("    s_mov_b64 exec, s[16:17]")
    e(f"    v_swap_b32 v{b}, v{b+2}")
    e(f"    v_swap_b32 v{b+1}, v{b+3}")
    e(f"    v_swap_b32 v{b+4}, v{b+6}")
    e(f"    v_swap_b32 v{b+5}, v{b+7}")
    e("    s_mov_b64 exec, -1")
    for i in reversed(range(8)):
        e(f"    v_and_b32 v{65+2*i}, 0xffff0000, v{b+i}")
        e(f"    v_lshlrev_b32 v{64+2*i}, 16, v{b+i}")
    for i in range(16):
        e(f"    v_mul_f32 v{64+i}, v126, v{64+i}")


def phase_a():
    stamp("start")
    e("    s_getpc_b64 s[6:7]")
    e("CPF_PC:")
    e("    v_cmp_gt_u32 vcc, (SLOWW-CPF_PC+127)/128, v0")
    e("    v_lshlrev_b32 v2, 7, v0")
    e("    s_load_dwordx2 s[24:25], s[0:1], 16")
    e("    s_mov_b64 exec, vcc")
    e("    s_mov_b32 s8, vcc_lo")
    e("    s_cbranch_execz CPF_D")
    e("    global_load_dword v126, v2, s[6:7] offset:124")
    e("CPF_D:")
    e("    s_load_dwordx2 s[20:21], s[0:1], 8")
    e("    s_load_dwordx2 s[28:29], s[0:1], 24")
    e("    s_load_dwordx2 s[10:11], s[0:1], 56")
    e("    s_mov_b64 exec, -1")
    e("    s_cmp_ge_u32 s2, 256")
    e("    s_cbranch_scc1 END")
    TCH = I("touch", 1)
    e("    v_lshrrev_b32 v3, 6, v0")
    e("    v_and_b32 v2, 63, v0")
    e("    s_mov_b32 s23, 0x20000")
    e(f"    s_mov_b32 s22, {E*4}")
    e("    v_lshlrev_b32 v4, 18, v3")
    e("    s_mov_b64 s[26:27], s[22:23]")
    e("    v_lshl_or_b32 v4, v2, 4, v4")
    e("    s_lshr_b32 s30, s22, 1")
    e("    s_mov_b32 s31, s23")
    e("    v_lshrrev_b32 v5, 1, v4")
    e("    s_lshl_b32 s68, s2, 10")
    e("    v_cmp_gt_u32 vcc, 13, v3")
    e("    s_lshl_b32 s69, s2, 9")
    e(f"    v_mov_b32 v125, {WS_FLAG}")
    e("    s_cmp_eq_u32 s8, 0")
    e("    s_waitcnt lgkmcnt(0)")
    e("    s_cbranch_scc1 A_NOZ")
    e("    global_load_dword v125, v125, s[10:11] sc1")
    e("A_NOZ:")
    e("    s_cbranch_vccz A_NOLD0")
    LI = OPT.get("ldin", "")
    e(f"    buffer_load_dwordx4 v[12:15], v4, {R(S_DST)}, s68 offen {LI}")
    e("A_NOLD0:")
    e("    s_barrier")
    e("    s_cbranch_vccz A_NOLD")
    e(f"    buffer_load_dwordx4 v[16:19], v4, {R(S_SRC)}, s68 offen {LI}")
    e(f"    buffer_load_dwordx2 v[20:21], v5, {R(S_NRM)}, s69 offen {LI}")
    e("A_NOLD:")
    stamp("a_issue")
    e("    s_load_dwordx8 s[12:19], s[0:1], 32")
    e("    s_load_dwordx2 s[4:5], s[0:1], 0")
    e("    v_readfirstlane_b32 s3, v3")
    e("    v_lshlrev_b32 v9, 2, v0")
    e("    v_mov_b32 v6, 0")
    e(f"    ds_write_b32 v9, v6 offset:{K1_CNT}")
    for i in range(4):
        e(f"    v_mov_b32 v{24+i}, -1")
    e("    v_lshlrev_b32 v7, 4, v0")
    e("    ds_write_b128 v7, v[24:27]")
    e("    ds_write_b128 v7, v[24:27] offset:16384")
    e("    v_add_u32 v4, s68, v4")
    e("    v_lshrrev_b32 v8, 2, v4")
    e("    v_cmp_gt_u32 s[72:73], s22, v4")
    e(f"    v_subrev_u32 v8, {ET}, v8")
    e("    v_mov_b32 v1, 1")
    e("    v_and_b32 v10, 7, v0")
    srd(S_WS, 10, 11, WS_H1 + TABBYTES)
    e("    s_cmp_lt_u32 s3, 13")
    e("    s_cbranch_scc1 A_BAR")
    e("    s_cmp_lt_u32 s3, 14")
    e("    s_cbranch_scc1 A_H13")
    e("    s_cmp_eq_u32 s3, 14")
    e("    s_cbranch_scc1 A_H14")
    e(f"    ds_write_b128 v7, v[24:27] offset:{32768 - 15*1024}")
    e("    v_and_b32 v5, 60, v9")
    e("    v_mov_b32 v7, 0xffff")
    e(f"    ds_write_b32 v5, v7 offset:{K1_OVT}")
    e("    s_branch A_BAR")
    e("A_H14:")
    e(f"    v_lshlrev_b32 v2, {TSH}, v2")
    if TCH == 1:
        e(f"    buffer_load_dword v126, v2, {R(S_WS)}, 0 offen offset:{I('toff', 3968)} sc1")
    if TCH and I("txo", 1):
        e("    s_waitcnt lgkmcnt(0)")
        srd(S_GAT, 4, 5, TABBYTES)
        e(f"    buffer_load_dword v126, v2, {R(S_GAT)}, 0 offen")
        srd(S_OVF, 14, 15, TABBYTES)
        e(f"    buffer_load_dword v126, v2, {R(S_OVF)}, 0 offen sc1")
    e("    s_branch A_BAR")
    e("A_H13:")
    if I("pt", 0) == 1:
        e("    s_lshl_b32 s77, s2, 6")
        e(f"    s_add_u32 s77, s77, {WS_OVT}")
        e("    v_lshlrev_b32 v2, 14, v2")
        e("    s_mov_b64 exec, 0xff")
        e(f"    buffer_load_dword v126, v2, {R(S_WS)}, s77 offen sc1")
        e("    s_mov_b64 exec, -1")
    elif I("pt", 0) == 2:
        e("    s_lshl_b32 s77, s2, 9")
        e(f"    s_add_u32 s77, s77, {WS_OVT}")
        e("    v_lshlrev_b32 v2, 7, v2")
        e("    s_mov_b64 exec, 15")
        e(f"    buffer_load_dword v126, v2, {R(S_WS)}, s77 offen sc1")
        e("    s_mov_b64 exec, -1")
    e("A_BAR:")
    e("    s_lshr_b32 s76, s2, 6")
    e("    s_add_u32 s77, s76, s2")
    e("    s_and_b32 s77, s77, 7")
    e("    s_lshl_b32 s77, s77, 5")
    e("    s_add_u32 s77, s77, s76")
    e("    s_bfe_u32 s76, s2, 0x30003")
    e("    s_lshl_b32 s76, s76, 2")
    e("    s_add_u32 s65, s77, s76")
    if I("pa", 1):
        prio_by_age("A_PRD")
    e("    s_waitcnt lgkmcnt(0)")
    e("    s_barrier")
    stamp("a_bar1")
    e("    s_cmp_lt_u32 s3, 12")
    e("    s_cbranch_scc1 A_SETUP")
    e("    v_bfe_u32 v2, v0, 4, 4")
    e("    s_lshl_b32 s76, s65, 4")
    e("    v_add_u32 v2, s76, v2")
    e("    v_mul_u32_u24 v3, 50006, v2")
    e("    v_lshrrev_b32 v3, 12, v3")
    e("    v_sub_u32 v4, v0, v3")
    e("    v_and_b32 v4, 15, v4")
    e("    v_add_u32 v115, v3, v4")
    e(f"    v_add_u32 v4, {ET}, v115")
    e("    v_lshlrev_b32 v5, 2, v4")
    e("    v_lshlrev_b32 v4, 1, v4")
    e(f"    buffer_load_dword v112, v5, {R(S_DST)}, 0 offen")
    e(f"    buffer_load_dword v113, v5, {R(S_SRC)}, 0 offen")
    e(f"    buffer_load_ushort v114, v4, {R(S_NRM)}, 0 offen")
    e(f"    v_mul_u32_u24 v4, {TM}, v115")
    e("    v_lshrrev_b32 v4, 16, v4")
    e("    v_cmp_eq_u32 s[66:67], v4, v2")
    e(f"    v_cmp_gt_u32 vcc, {N}, v115")
    e("    s_and_b64 s[66:67], s[66:67], vcc")
    e("    s_cmp_eq_u32 s3, 12")
    e("    s_cbranch_scc1 A_SETUP")
    srd(S_STO, 12, 13, 8192)
    e(f"    v_subrev_u32 v2, {13*64}, v0")
    e("    v_lshlrev_b32 v2, 4, v2")
    e(f"    buffer_load_dwordx4 v[100:103], v2, {R(S_STO)}, 0 offen")
    e(f"    buffer_load_dwordx4 v[104:107], v2, {R(S_STO)}, 0 offen offset:3072")
    e("    v_add_u32 v3, 6144, v2")
    e(f"    buffer_load_dwordx4 v[108:111], v3, {R(S_STO)}, 0 offen")
    e("A_SETUP:")
    e("    s_lshr_b32 s76, s3, 1")
    e("    s_add_u32 s76, s76, s2")
    e("    s_and_b32 s76, s76, 7")
    e("    s_lshl_b32 s74, s2, 15")
    e("    s_lshl_b32 s77, s76, 12")
    e("    s_add_u32 s74, s74, s77")
    e("    s_lshl_b32 s77, s76, 2")
    e("    v_mov_b32 v49, s77")
    e("    s_and_b32 s75, s3, 1")
    e("    s_lshl_b32 s75, s75, 1")
    e("    v_bfe_u32 v2, v0, 3, 3")
    e("    v_lshlrev_b32 v48, 4, v10")
    e("    v_cmp_lt_u32 vcc, 3, v10")
    e(f"    v_mul_u32_u24 v3, {4*K1_LS}, v2")
    e("    v_add_u32 v3, v3, v48")
    for st in range(2):
        e("    s_add_u32 s77, s76, s75")
        e("    s_and_b32 s77, s77, 7")
        e("    s_lshl_b32 s77, s77, 5")
        e("    s_add_u32 s77, s77, s75")
        e(f"    s_mul_i32 s77, s77, {K1_LS}")
        e(f"    v_add_u32 v{40+st}, s77, v3")
        e(f"    v_lshl_add_u32 v{46+st}, s75, 3, v2")
        e(f"    v_lshlrev_b32 v{44+st}, v{46+st}, v1")
        e(f"    v_add_u32 v{42+st}, -1, v{44+st}")
        e(f"    v_cndmask_b32 v{44+st}, 0, v{44+st}, vcc")
        e("    s_add_u32 s75, s75, 1")
    e("    v_and_b32 v50, 6, v10")
    e("    s_mov_b32 s64, 0xffffff")
    e("    s_cmp_lt_u32 s3, 12")
    e("    s_cbranch_scc1 A_EDGES")
    e("    s_cmp_eq_u32 s3, 12")
    e("    s_cbranch_scc1 A_EDGES12")
    e("    s_cmp_eq_u32 s3, 15")
    e("    s_cbranch_scc1 A_MASKS")
    e("    s_cmp_eq_u32 s3, 14")
    e("    s_cbranch_scc1 A_HDR")
    e("    s_branch A_OUT")
    e("A_MASKS:")
    e("    v_bfe_u32 v2, v0, 3, 2")
    e("    v_bfe_u32 v3, v0, 5, 1")
    e("    v_add_u32 v3, v3, v2")
    e("    v_lshl_add_u32 v3, v3, 5, v2")
    e("    v_lshl_add_u32 v3, v10, 2, v3")
    e("    v_lshlrev_b32 v12, 2, v3")
    for n in range(1, 4):
        e(f"    v_add_u32 v{12+n}, 256, v{11+n}")
        e(f"    v_and_b32 v{12+n}, 1023, v{12+n}")
    e("    v_lshlrev_b32 v7, 2, v10")
    e("A_MPOLL:")
    e(f"    ds_read_b32 v2, v6 offset:{K1_CNT+K1_DONE}")
    e("    s_waitcnt lgkmcnt(0)")
    e("    v_cmp_gt_u32 vcc, 13, v2")
    e("    s_cbranch_vccnz A_MPOLL")
    for n in range(4):
        e(f"    ds_read_b32 v{16+n}, v{12+n} offset:{K1_CNT}")
    for n in range(4):
        e(f"    s_waitcnt lgkmcnt({3-n})")
        e(f"    v_cmp_lt_u32 s[{52+2*n}:{53+2*n}], 12, v{16+n}")
    e("    s_nop 1")
    for n in range(8):
        e(f"    v_writelane_b32 v2, s{52+n}, {n}")
    e("    s_mov_b64 exec, 0xff")
    e("    v_bcnt_u32_b32 v3, v2, 0")
    e("    v_add_u32 v4, 1, v2")
    e("    v_bfe_i32 v3, v3, 0, 1")
    e("    v_bfi_b32 v4, v2, 0, v4")
    e("    v_and_or_b32 v2, v4, v3, v2")
    e(f"    ds_write_b32 v7, v2 offset:{K1_MSK}")
    e("    s_branch A_OUT")
    e("A_HDR:")
    e("    v_lshlrev_b32 v51, 3, v10")
    e("    v_bfe_u32 v52, v0, 4, 2")
    e("    v_and_b32 v3, 15, v0")
    e("    v_lshlrev_b32 v52, 15, v52")
    e("    v_lshl_or_b32 v52, v3, 3, v52")
    e("    v_lshlrev_b32 v53, 2, v2")
    e("    s_lshl_b32 s75, s2, 7")
    e(f"    s_add_u32 s75, s75, {WS_OVT}")
    e("    v_cmp_eq_u32 vcc, 7, v10")
    e("    s_setprio 3")
    stamp("a_pre2")
    e("    s_barrier")
    stamp("a_bar2")
    e(f"    ds_read_u16 v120, v50 offset:{K1_NON}")
    e(f"    ds_read_b64 v[24:25], v51 offset:{K1_OVT}")
    e(f"    ds_read_b32 v22, v6 offset:{K1_CNT+K1_OVC}")
    e(f"    ds_read_b32 v23, v53 offset:{K1_MSK}")
    e("    s_waitcnt lgkmcnt(0)")
    e("    v_or_b32 v22, 0xf000, v22")
    e("    v_cndmask_b32 v24, v24, v23, vcc")
    e("    v_cndmask_b32 v25, v25, v22, vcc")
    e("    v_lshl_or_b32 v25, v120, 16, v25")
    e(f"    buffer_store_dwordx2 v[24:25], v52, {R(S_WS)}, s75 offen {SC}")
    e("    s_branch A_O1")
    e("A_EDGES12:")
    e("    s_waitcnt vmcnt(5)")
    e("    s_branch A_EDGES2")
    e("A_EDGES:")
    e("    s_cmp_lg_u32 s3, 0")
    e("    s_waitcnt vmcnt(2)")
    e("    s_cbranch_scc1 A_EDGES2")
    e("    v_add_u32 v4, 0x01010101, v125")
    e("    v_add_u32 v5, 0x01010101, v125")
    e(f"    ds_write_b64 v6, v[4:5] offset:{K1_NON}")
    e("A_EDGES2:")
    e("    s_mov_b64 exec, s[72:73]")
    stamp("a_dst")
    for k in range(4):
        e(f"    v_mul_u32_u24 v{24+k}, {TM}, v{12+k}")
        e(f"    v_sub_u32 v2, v{12+k}, v8")
        e(f"    v_lshrrev_b32 v{28+k}, 20, v{24+k}")
        e(f"    v_cmp_ne_u32 s[{52+2*k}:{53+2*k}], {k}, v2")
        e(f"    v_lshlrev_b32 v{36+k}, 2, v{28+k}")
    for k in range(4):
        e(f"    s_mov_b64 exec, s[{52+2*k}:{53+2*k}]")
        e(f"    ds_add_rtn_u32 v{32+k}, v{36+k}, v1 offset:{K1_CNT}")
    e("    s_mov_b64 exec, 1")
    e(f"    ds_add_u32 v6, v1 offset:{K1_CNT+K1_DONE}")
    e("    s_mov_b64 exec, s[72:73]")
    for k in range(4):
        e(f"    v_lshrrev_b32 v{24+k}, 12, v{24+k}")
        e(f"    v_mul_u32_u24 v{28+k}, {K1_LS}, v{28+k}")
        e(f"    v_bfi_b32 v{24+k}, 15, v{12+k}, v{24+k}")
    e("    s_mov_b32 s70, 0xffff0000")
    FIT = ["s[6:7]", "s[8:9]", "s[10:11]", "s[62:63]"]
    for k in range(4):
        e(f"    s_mov_b64 exec, s[{52+2*k}:{53+2*k}]")
        e("    s_waitcnt lgkmcnt(4)")
        e(f"    v_cmp_le_u32 vcc, 12, v{32+k}")
        e(f"    v_cmp_gt_u32 {FIT[k]}, {SLOTCAP}, v{32+k}")
        e(f"    v_and_b32 v4, 3, v{32+k}")
        e(f"    v_lshrrev_b32 v2, 2, v{32+k}")
        e("    v_cndmask_b32 v3, 0, 61, vcc")
        e(f"    v_lshl_add_u32 v4, v4, 4, v{28+k}")
        e(f"    s_mov_b64 exec, {FIT[k]}")
        e("    v_add3_u32 v5, v4, v3, v2")
        e("    v_cndmask_b32 v3, 0, 52, vcc")
        e("    v_lshl_add_u32 v4, v2, 2, v4")
        e(f"    ds_write_b8 v5, v{24+k} offset:12")
        e(f"    v_add_u32 v{36+k}, v4, v3")
    for k in range(4):
        e(f"    s_andn2_b64 s[{52+2*k}:{53+2*k}], s[{52+2*k}:{53+2*k}], {FIT[k]}")
    e("    s_or_b64 s[60:61], s[52:53], s[54:55]")
    e("    s_or_b64 s[76:77], s[56:57], s[58:59]")
    e("    s_or_b64 s[60:61], s[60:61], s[76:77]")
    e("    s_mov_b64 exec, s[72:73]")
    e("    s_cmp_eq_u32 s3, 12")
    e("    s_waitcnt vmcnt(3)")
    e("    s_cbranch_scc1 A_ALL")
    e("    s_waitcnt vmcnt(0)")
    e("A_ALL:")
    stamp("a_all")
    for k in range(4):
        if k % 2 == 0:
            e(f"    v_lshl_or_b32 v{16+k}, v{20+k//2}, 16, v{16+k}")
        else:
            e(f"    v_and_or_b32 v{16+k}, v{20+k//2}, s70, v{16+k}")
    for k in range(4):
        e(f"    s_mov_b64 exec, {FIT[k]}")
        e(f"    ds_write_b32 v{36+k}, v{16+k}")
    e("    s_cmp_lg_u64 s[60:61], 0")
    e("    s_cbranch_scc1 A_OVER")
    e("A_OUT:")
    e("    s_setprio 2")
    e("    s_mov_b64 exec, -1")
    e("    s_waitcnt lgkmcnt(0)")
    stamp("a_pre2")
    e("    s_barrier")
    stamp("a_bar2")
    e(f"    ds_read_u16 v120, v50 offset:{K1_NON}")
    e("A_O1:")
    e(f"    ds_read_b32 v21, v49 offset:{K1_MSK}")
    e(f"    ds_read_u8 v127, v10 offset:{K1_NON}")
    e("    ds_read2_b32 v[12:13], v40 offset0:0 offset1:1")
    e("    ds_read2_b32 v[14:15], v40 offset0:2 offset1:3")
    e("    ds_read2_b32 v[16:17], v41 offset0:0 offset1:1")
    e("    ds_read2_b32 v[18:19], v41 offset0:2 offset1:3")
    e("    s_waitcnt lgkmcnt(5)")
    for st in range(2):
        e(f"    v_and_b32 v2, v21, v{42+st}")
        e(f"    v_and_b32 v3, v21, v{44+st}")
        e(f"    v_bcnt_u32_b32 v2, v2, v{46+st}")
        e(f"    v_cmp_eq_u32 s[{52+2*st}:{53+2*st}], v3, v{44+st}")
        e(f"    v_lshl_add_u32 v{42+st}, v2, 6, v48")
    e("    s_waitcnt lgkmcnt(4)")
    e("    v_lshlrev_b32 v20, 24, v127")
    e("    s_waitcnt lgkmcnt(2)")
    e("    v_and_or_b32 v15, v15, s64, v20")
    e("    s_mov_b64 exec, s[52:53]")
    e(f"    buffer_store_dwordx4 v[12:15], v42, {R(S_WS)}, s74 offen {SC}")
    e("    s_mov_b64 exec, s[54:55]")
    e("    s_waitcnt lgkmcnt(0)")
    e("    v_and_or_b32 v19, v19, s64, v20")
    e(f"    buffer_store_dwordx4 v[16:19], v43, {R(S_WS)}, s74 offen {SC}")
    e("    s_mov_b64 exec, -1")
    e("    s_setprio 0")
    stamp("a_st")
    e(f"    ds_read_b32 v125, v6 offset:{K1_NON}")


def a_overflow():
    e("A_OVER:")
    srd(S_OVF, 18, 19, 256 * OVF_STRIDE, WS_OVF)
    e("    s_lshl_b32 s62, s2, 15")
    for k in range(4):
        e(f"    s_mov_b64 exec, s[{52+2*k}:{53+2*k}]")
        e(f"    s_cbranch_execz A_OV{k}")
        e(f"    ds_add_rtn_u32 v3, v6, v1 offset:{K1_CNT+K1_OVC}")
        e(f"    v_mov_b32 v4, v{16+k}")
        e(f"    v_mov_b32 v5, v{12+k}")
        e("    s_waitcnt lgkmcnt(0)")
        e(f"    v_cmp_gt_u32 vcc, {NINL}, v3")
        e("    v_lshlrev_b32 v3, 3, v3")
        e("    s_andn2_b64 s[76:77], exec, vcc")
        e("    s_mov_b64 exec, vcc")
        e(f"    ds_write_b64 v3, v[4:5] offset:{K1_OVT}")
        e("    s_mov_b64 exec, s[76:77]")
        e(f"    s_cbranch_execz A_OV{k}")
        e(f"    buffer_store_dwordx2 v[4:5], v3, {R(S_OVF)}, s62 offen {SC}")
        e("    s_waitcnt vmcnt(0)")
        e(f"A_OV{k}:")
    e("    s_branch A_OUT")


def setup1():
    e("    s_and_b32 s29, s2, 7")
    e(f"    s_mul_i32 s27, s29, {ROT}")
    e("    s_sub_u32 s27, 0x10000, s27")
    e("    s_lshr_b32 s30, s29, 1")
    e("    s_lshl_b32 s30, s30, 15")
    e("    s_and_b32 s31, s29, 1")
    e("    s_lshl_b32 s31, s31, 6")
    e("    s_add_u32 s30, s30, s31")
    e(f"    s_add_u32 s30, s30, {WS_OVT}")
    e("    s_add_u32 s31, s30, 16384")
    e("    s_lshl_b32 s29, s29, 12")
    e("    s_lshr_b32 s26, s2, 3")
    e("    s_bfm_b32 s49, s26, 0")
    e("    s_mov_b32 s2, s65")
    e("    v_mov_b32 v99, 0xf0")
    e("    v_mov_b32 v124, 7")
    e(f"    s_mov_b32 s0, {CNTB}")
    e("    s_mov_b32 s1, 0x07060302")
    e("    s_mov_b32 s71, 0")
    if DIAG:
        e("    s_mov_b32 s48, 0")
        e("    s_mov_b64 s[50:51], 0")
    zero_b_counters((WL - CNTB) // 4)
    collect_addrs()
    srd(S_OVF, 18, 19, 256 * OVF_STRIDE, WS_OVF)
    srd(S_GAT, 4, 5, TABBYTES + 3072, -3072)
    srd(S_STO, 18, 19, TABBYTES, WS_H1)
    e("    s_mov_b64 s[20:21], s[14:15]")
    e(f"    s_mov_b32 s22, {TABBYTES}")
    e(f"    s_add_u32 s24, s18, {WS_H1 - 3072}")
    e("    s_addc_u32 s25, s19, 0")
    if I("gp", 0):
        e("    s_lshl_b32 s76, s2, 4")
        e("    s_add_u32 s76, s76, s3")
        e("    s_add_u32 s76, s76, 16")
        e("    s_mul_i32 s76, s76, 50006")
        e("    s_lshr_b32 s76, s76, 12")
        e("    v_and_b32 v8, 63, v0")
        e("    v_add_lshl_u32 v8, v8, s76, 7")


def setup2():
    e("    v_and_b32 v2, 63, v0")
    e("    v_bfe_u32 v3, v2, 4, 1")
    e("    v_cmp_eq_u32 s[16:17], 1, v3")
    e("    v_xor_b32 v22, v3, v10")
    e("    v_lshlrev_b32 v83, 4, v22")
    e("    v_add_u32 v80, 3072, v83")
    e("    v_add_u32 v82, 1024, v83")
    e("    v_xor_b32 v83, 64, v83")
    e("    v_add_u32 v81, 2048, v83")
    e("    v_and_b32 v92, 15, v0")
    e("    v_lshrrev_b32 v11, 4, v2")
    e("    v_bfe_u32 v20, v2, 2, 2")
    e("    v_and_b32 v21, 3, v2")
    e("    v_lshl_add_u32 v84, v11, 3, v20")
    e("    v_lshlrev_b32 v84, 7, v84")
    e("    v_lshrrev_b32 v20, 1, v20")
    e("    v_lshl_or_b32 v20, v3, 2, v20")
    e("    v_xor_b32 v20, v20, v21")
    e("    v_lshl_add_u32 v84, v20, 4, v84")
    e("    v_and_b32 v22, 1, v21")
    e("    s_lshl_b32 s76, s3, 12")
    e("    v_lshl_add_u32 v84, v22, 3, v84")
    e("    s_mov_b32 m0, s76")
    e(f"    v_add_u32 v122, {WL}, v84")
    e("    v_add_u32 v84, s76, v84")
    e(f"    s_mul_i32 s76, s3, {TSTR}")
    e("    v_xor_b32 v85, 8, v84")
    e("    v_xor_b32 v86, 64, v84")
    e("    v_xor_b32 v87, 72, v84")
    e(f"    s_add_u32 s76, s76, {LISTS}")
    e("    v_lshrrev_b32 v22, 3, v2")
    e("    v_lshl_add_u32 v88, v22, 2, s76")
    e("    v_lshl_add_u32 v123, v2, 2, s76")
    e(f"    s_add_u32 s76, s76, {CAPT*4}")
    e("    v_lshl_add_u32 v89, v11, 5, s76")
    e("    v_sub_u32 v95, 0, v21")
    e("    v_sub_u32 v96, 1, v21")
    e("    v_sub_u32 v97, 2, v21")
    e("    v_ashrrev_i32 v95, 31, v95")
    e("    v_ashrrev_i32 v96, 31, v96")
    e("    v_ashrrev_i32 v97, 31, v97")
    e("    v_lshrrev_b32 v22, 2, v2")
    e(f"    v_mul_u32_u24 v98, {TSTR}, v22")
    e(f"    v_add_u32 v98, {LISTS}, v98")
    e("    v_lshl_add_u32 v90, v2, 4, s0")
    e("    s_lshl_b32 s76, s2, 4")
    e("    s_add_u32 s76, s76, s3")
    e("    s_mul_i32 s77, s76, 50006")
    e("    s_lshr_b32 s77, s77, 12")
    e("    v_subrev_u32 v2, s77, v92")
    e("    v_and_b32 v2, 15, v2")
    e("    v_add_u32 v2, s77, v2")
    e(f"    v_mul_u32_u24 v3, {TM}, v2")
    e("    v_lshrrev_b32 v3, 16, v3")
    e("    v_cmp_eq_u32 s[14:15], s76, v3")
    e("    v_lshlrev_b32 v2, 7, v2")
    e("    v_lshl_add_u32 v121, v11, 4, v2")


def setup3():
    e("    s_mov_b64 s[12:13], 0")
    e("    s_cmp_lt_u32 s3, 12")
    e("    s_cbranch_scc1 S_DONE")
    e("    s_waitcnt vmcnt(2)")
    e("    v_cmp_eq_u32 vcc, v112, v115")
    e("    v_cmp_eq_u32 s[76:77], v113, v115")
    e("    v_lshlrev_b32 v3, 16, v114")
    e("    v_and_b32 v2, 255, v0")
    e("    v_or_b32 v113, v3, v113")
    e("    s_and_b64 s[12:13], s[66:67], vcc")
    e("    s_and_b64 vcc, s[12:13], s[76:77]")
    e("    s_andn2_b64 s[12:13], s[12:13], s[76:77]")
    e("    v_lshlrev_b32 v2, 2, v2")
    e("    v_cndmask_b32 v3, 0, v3, vcc")
    e(f"    v_add_u32 v2, {SELFN}, v2")
    e("    ds_write_b32 v2, v3")
    e("    s_cbranch_scc0 S_NT")
    decode_key(113, 0, 0, 6)
    decode_data(113, 0, 0, 6)
    e("S_NT:")
    e("    s_cmp_eq_u32 s3, 12")
    e("    s_cbranch_scc1 S_DONE")
    e(f"    v_subrev_u32 v2, {13*64}, v0")
    e("    v_bfe_u32 v3, v2, 4, 1")
    e("    v_bfe_u32 v20, v2, 6, 1")
    e("    v_lshl_or_b32 v3, v20, 2, v3")
    e("    v_cmp_gt_u32 vcc, 128, v2")
    e("    v_xor_b32 v2, v2, v3")
    e("    v_lshlrev_b32 v2, 4, v2")
    e(f"    v_add_u32 v2, {WL}, v2")
    e("    v_xor_b32 v3, 64, v2")
    e("    s_mov_b32 exec_lo, 0xaaaaaaaa")
    e("    s_mov_b32 exec_hi, exec_lo")
    for b in (100, 104, 108):
        e(f"    v_swap_b32 v{b}, v{b+2}")
        e(f"    v_swap_b32 v{b+1}, v{b+3}")
    e("    s_mov_b64 exec, -1")
    e("    ds_write_b128 v2, v[100:103]")
    e("    ds_write_b128 v3, v[104:107] offset:3072")
    e("    s_and_saveexec_b64 s[76:77], vcc")
    e("    ds_write_b128 v2, v[108:111] offset:6144")
    e("    s_mov_b64 exec, -1")
    e("S_DONE:")
    stamp("s_done")


def barrier_addrs():
    e("    s_lshr_b32 s76, s2, 2")
    e("    s_lshl_b32 s76, s76, 7")
    e("    s_and_b32 s77, s2, 3")
    e("    s_lshl_b32 s77, s77, 2")
    e("    s_add_u32 s76, s76, s77")
    e(f"    s_add_u32 s76, s76, {WS_FLAG}")
    e("    v_lshlrev_b32 v2, 13, v0")
    e("    s_getreg_b32 s77, hwreg(HW_REG_XCC_ID, 0, 3)")
    e("    s_lshl_b32 s77, s77, 13")
    e(f"    s_add_u32 s77, s77, {WS_FLAG}")
    e("    v_lshlrev_b32 v8, 7, v0")


COMMON = [0, 1, 2, 3, 4, 5]
RARE = [6, 7]
ACT = ["s[62:63]", "s[10:11]"]
WREG = [40, 44, 48, 52, 56, 60, 28, 116]


def w_frags():
    e("    v_xor_b32 v5, 8, v122")
    e("    v_xor_b32 v6, 64, v122")
    e("    v_xor_b32 v7, 72, v122")
    for s_ in range(2):
        for t in range(4):
            for u in range(2):
                r = WREG[s_ * 4 + t] + 2 * u
                e(f"    ds_read_b64_tr_b16 v[{r}:{r+1}], v{4+t if t else 122} offset:{4096*s_ + 512*u}")


def load_headers():
    e(f"    buffer_load_dwordx2 v[116:117], v93, {R(S_WS)}, s30 offen {SC}")
    e(f"    buffer_load_dwordx2 v[118:119], v93, {R(S_WS)}, s31 offen {SC}")


def phase_b():
    e("COLLECT:")
    load_headers()
    GP = I("gp", 0)
    if GP:
        e(f"    s_mov_b64 exec, {(1 << GP) - 1}")
        e(f"    buffer_load_dword v91, v8, {R(S_GAT)}, 0 offen offset:3072")
        e("    s_mov_b64 exec, -1")
    e("    s_mov_b32 s68, s29")
    e(f"    s_add_u32 s69, s68, {128*32768}")
    e(f"    s_mov_b32 s75, {SPINMAX}")
    e("    v_cmp_gt_u32 s[8:9], 4, v10")
    if SP == 1:
        setup2()
    e("    s_waitcnt vmcnt(%d)" % (1 if GP else 0))
    e("C_CHK2:")
    e("    v_cmp_ne_u32_sdwa vcc, v117, v120 src0_sel:WORD_1 src1_sel:DWORD")
    e("    v_cmp_ne_u32_sdwa s[76:77], v119, v120 src0_sel:WORD_1 src1_sel:DWORD")
    e("    v_mov_b32_dpp v4, v116 quad_perm:[3,3,3,3] row_mask:0xf bank_mask:0xf")
    e("    v_mov_b32_dpp v5, v118 quad_perm:[3,3,3,3] row_mask:0xf bank_mask:0xf")
    e("    s_or_b64 vcc, vcc, s[76:77]")
    e("    s_cbranch_scc1 C_RETRY2")
    e("C_OK2:")
    stamp("b_gate")
    e("    v_mov_b32_dpp v4, v4 row_half_mirror row_mask:0xf bank_mask:0x5")
    e("    v_mov_b32_dpp v5, v5 row_half_mirror row_mask:0xf bank_mask:0x5")
    for i in range(2):
        e(f"    v_and_b32 v2, s49, v{4+i}")
        e(f"    v_bfe_u32 v3, v{4+i}, s26, 1")
        e("    v_bcnt_u32_b32 v2, v2, s26")
        e("    v_cmp_eq_u32 vcc, 1, v3")
        e(f"    v_lshl_add_u32 v{6+i}, v2, 6, v9")
        e("    s_or_b64 exec, vcc, s[8:9]")
        e(f"    buffer_load_dwordx4 v[{12+4*i}:{15+4*i}], v{6+i}, {R(S_WS)}, s{68+i} offen {SC}")
        e(f"    s_mov_b64 {ACT[i]}, exec")
        e("    s_mov_b64 exec, -1")
    stamp("b_iss")
    if I("pc", 1):
        e("    s_setprio 0")
    if SP >= 1:
        if SP == 2:
            setup2()
        e("    s_cmp_lg_u32 s71, 0")
        e("    s_cbranch_scc1 LATE_D")
        setup3()
        e("LATE_D:")
    e("    v_and_b32 v117, 0xffff, v117")
    e("    v_and_b32 v119, 0xffff, v119")
    e(f"    v_mul_u32_u24 v2, {TM}, v117")
    e(f"    v_mul_u32_u24 v3, {TM}, v119")
    e("    v_cmp_eq_u32 s[8:9], 7, v10")
    e(f"    s_mov_b32 s76, {0xf000 + NINL}")
    e("    v_cmp_lt_u32 s[72:73], s76, v117")
    e("    v_cmp_lt_u32 vcc, s76, v119")
    e("    v_lshrrev_b32 v2, 20, v2")
    e("    v_lshrrev_b32 v3, 20, v3")
    e("    v_cmp_eq_u32 s[4:5], s2, v2")
    e("    v_cmp_eq_u32 s[6:7], s2, v3")
    e("    s_and_b64 s[72:73], s[72:73], s[8:9]")
    e("    s_and_b64 vcc, vcc, s[8:9]")
    e("    s_lshr_b64 s[72:73], s[72:73], 1")
    e("    s_or_b64 s[72:73], s[72:73], vcc")
    e(f"    s_mov_b64 {PEND(7)}, 0")
    e("    s_movk_i32 s70, 0xffff")
    e(f"    s_mov_b64 {PEND(6)}, s[12:13]")
    e("    s_mov_b64 exec, s[12:13]")
    e("    s_cbranch_execz C_NT")
    e("    ds_add_rtn_u32 v38, v46, v1")
    e("C_NT:")
    for i in range(2):
        base = 12 + 4 * i
        e(f"    s_mov_b64 exec, {ACT[i]}")
        e(f"    s_waitcnt vmcnt({1-i})")
        e(f"C_CHK{i}:")
        e(f"    v_cmp_ne_u32_sdwa vcc, v{base+3}, v127 src0_sel:BYTE_3 src1_sel:DWORD")
        e(f"    s_cbranch_vccnz C_RETRY{i}")
        e(f"C_OK{i}:")
        stamp("b_lines" if i == 0 else "b_lines1")
        for k in range(3):
            e(f"    v_cmp_ne_u16 {PEND(3*i+k)}, s70, v{base+k}")
        if i == 1 and EARLY:
            own_x()
        for k in range(3):
            decode_key(base + k, base + 3, k, 3 * i + k)
        for k in range(3):
            s_ = 3 * i + k
            e(f"    s_mov_b64 exec, {PEND(s_)}")
            e(f"    ds_add_rtn_u32 v{32+s_}, v{40+s_}, v1")
    e("    s_mov_b64 exec, -1")
    for i in range(2):
        base = 12 + 4 * i
        for k in range(3):
            decode_data(base + k, base + 3, k, 3 * i + k)
    e("    s_mov_b64 s[68:69], 0")
    e("    s_or_b64 s[76:77], s[4:5], s[6:7]")
    e("    s_or_b64 s[76:77], s[76:77], s[72:73]")
    e("    s_cbranch_scc1 EXTRA")
    e("CDONE:")
    e("    s_lshl_b32 s75, s3, 2")
    e("    s_add_u32 s75, s75, 3")
    e("    s_waitcnt lgkmcnt(0)")
    stamp("b_pre1")
    e("    s_barrier")
    stamp2("b_bar1", "")
    e("    ds_read_b128 v[4:7], v90")
    if not EARLY:
        own_x()
    e("    s_cmp_lg_u32 s3, 15")
    e("    s_cbranch_scc1 PT_D")
    e("    s_lshl_b32 s76, s2, 8")
    e(f"    s_add_u32 s76, s76, {WS_FLAG}")
    e("    v_lshlrev_b32 v2, 7, v92")
    e("    s_mov_b64 exec, 3")
    e(f"    buffer_load_dword v91, v2, {R(S_WS)}, s76 offen sc1")
    e("    s_mov_b64 exec, -1")
    e("PT_D:")
    e("    s_waitcnt lgkmcnt(0)")
    e("    v_add_u32 v5, v4, v5")
    e("    v_add3_u32 v7, v5, v6, v7")
    e("    v_add_u32 v6, v5, v6")
    e("    s_nop 0")
    e("    v_and_b32_dpp v28, v7, v95 quad_perm:[0,0,0,0] row_mask:0xf bank_mask:0xf")
    e("    v_and_b32_dpp v29, v7, v96 quad_perm:[1,1,1,1] row_mask:0xf bank_mask:0xf")
    e("    v_and_b32_dpp v30, v7, v97 quad_perm:[2,2,2,2] row_mask:0xf bank_mask:0xf")
    e("    v_add3_u32 v28, v28, v29, v30")
    e("    v_add_u32 v7, v28, v7")
    e("    v_lshl_add_u32 v28, v28, 2, v98")
    e(f"    v_cmp_lt_u32 vcc, {CAPT}, v7")
    e("    v_lshl_add_u32 v29, v4, 2, v28")
    e("    v_lshl_add_u32 v30, v5, 2, v28")
    e("    v_lshl_add_u32 v31, v6, 2, v28")
    e("    v_readlane_b32 s74, v7, s75")
    e("    ds_write_b128 v90, v[28:31] offset:1024")
    e(f"    s_or_b64 s[76:77], {PEND(6)}, {PEND(7)}")
    e("    s_cbranch_scc0 P_NR")
    for s in RARE:
        e(f"    s_mov_b64 exec, {PEND(s)}")
        e(f"    ds_read_b32 v{20+s}, v{40+s} offset:1024")
    e("P_NR:")
    for s in COMMON:
        e(f"    s_mov_b64 exec, {PEND(s)}")
        e(f"    ds_read_b32 v{20+s}, v{40+s} offset:1024")
    e(f"    s_min_u32 s74, s74, {CAPT}")
    e("    s_cbranch_vccnz SLOWW")
    for s in COMMON:
        e(f"    s_mov_b64 exec, {PEND(s)}")
        e(f"    s_waitcnt lgkmcnt({len(COMMON)-1})")
        e(f"    v_lshl_add_u32 v{20+s}, v{32+s}, 2, v{20+s}")
        e(f"    ds_write2st64_b32 v{20+s}, v{48+s}, v{56+s} offset0:0 offset1:5")
    e("    s_cmp_eq_u64 s[76:77], 0")
    e("    s_cbranch_scc1 P_NW")
    for s in RARE:
        e(f"    s_mov_b64 exec, {PEND(s)}")
        e(f"    v_lshl_add_u32 v{20+s}, v{32+s}, 2, v{20+s}")
        e(f"    ds_write2st64_b32 v{20+s}, v{48+s}, v{56+s} offset0:0 offset1:5")
    e("P_NW:")
    for s in range(8):
        e(f"    s_mov_b64 {PEND(s)}, 0")
    e("WDONE:")
    e("    s_sub_u32 s76, 0, s74")
    e("    s_and_b32 s76, s76, 31")
    e("    s_bfm_b64 exec, s76, 0")
    e("    s_lshl_b32 s77, s74, 2")
    e("    v_add_u32 v2, s77, v123")
    e(f"    v_mov_b32 v3, {PADV}")
    e("    ds_write2st64_b32 v2, v3, v3 offset0:0 offset1:5")
    e("    s_mov_b64 exec, -1")
    e(f"    v_mov_b32 v4, {MORE}")
    e("    s_lshl_b32 s76, s3, 6")
    e(f"    s_add_u32 s76, s76, {SELFN}")
    e("    v_lshl_add_u32 v5, v92, 2, s76")
    e("    ds_read_b32 v126, v5")
    e("    s_waitcnt lgkmcnt(0)")
    e("    s_barrier")
    stamp2("b_bar2", "")
    e("    ds_read_b32 v8, v4")


def main_loop():
    def next_k():
        e("    s_mov_b32 s8, 1")
        e("    s_cmp_gt_i32 s9, s10")
        e("    s_addc_u32 s8, s8, 0")
        e("    s_lshl_b32 s11, s10, 1")
        e("    s_cmp_gt_i32 s9, s11")
        e("    s_addc_u32 s8, s8, 0")
        e("    s_add_i32 s11, s11, s10")
        e("    s_cmp_gt_i32 s9, s11")
        e("    s_addc_u32 s8, s8, 0")
        e("    s_min_i32 s8, s8, s9")
        e("    s_sub_i32 s9, s9, s8")
        e("    s_sub_i32 s10, s10, 1")
        e("    s_lshl_b32 s11, s8, 5")

    def read_recs(a, b, adv):
        e(f"    ds_read2_b32 v[100:101], v{a} offset0:0 offset1:8")
        e(f"    ds_read2_b32 v[102:103], v{a} offset0:16 offset1:24")
        e(f"    ds_read_b128 v[104:107], v{b}")
        e(f"    ds_read_b128 v[108:111], v{b} offset:16")
        e(f"    v_add_u32 v93, {adv}, v{a}")
        e(f"    v_add_u32 v94, {adv}, v{b}")

    def dma(i):
        e(f"    buffer_load_dwordx4 v{100+i}, {R(S_GAT)}, 0 offen offset:{1024*i} {OPT.get('gfl', '')} lds")

    def addr():
        for i in range(4):
            e(f"    v_add_u32 v{100+i}, v{100+i}, v{80+i}")

    def build_b(w):
        for j in range(8):
            e(f"    v_bfe_i32 v{32+j}, v{104+j}, v92, {w}")
        for j in range(8):
            e(f"    v_and_b32 v{32+j}, v{32+j}, v{104+j}")
        for j in range(4):
            e(f"    v_perm_b32 v{112+j}, v{32+2*j+1}, v{32+2*j}, s1")

    def mfmas():
        for t in range(4):
            e(f"    v_mfma_f32_16x16x32_bf16 v[{64+4*t}:{67+4*t}], v[{12+4*t}:{15+4*t}], v[112:115], v[{64+4*t}:{67+4*t}]")

    e("MAIN:")
    e("    s_cmp_eq_u32 s74, 0")
    e("    s_cbranch_scc1 EMPTY")
    read_recs(88, 89, 128)
    e("    s_waitcnt lgkmcnt(2)")
    addr()
    e("MAIN2:")
    PM = I("pm", 3)
    if PM == 1:
        prio_by_age("PRIOD")
    if PM == 2:
        e("    s_cmp_lt_u32 s3, 8")
        e("    s_cbranch_scc1 PRIOE")
        e("    s_setprio 1")
        e("PRIOE:")
    for i in range(4):
        dma(i)
    if PM in (0, 2):
        prio_by_age("PRIOD")
    e("    s_add_u32 s9, s74, 7")
    e("    s_lshr_b32 s9, s9, 3")
    e("    s_sub_i32 s9, s9, 4")
    e("    s_max_i32 s9, s9, 0")
    e(f"    s_mov_b32 s10, {NB-1}")
    next_k()
    e("    s_waitcnt lgkmcnt(0)")
    build_b("1")
    read_recs(93, 94, "s11")
    e("    s_bitcmp1_b32 s71, 3")
    e("    s_cbranch_scc1 LOOP")
    e("    s_or_b32 s71, s71, 8")
    if I("wearly", 0):
        e("    v_readfirstlane_b32 s75, v8")
        e("    s_cmp_lg_u32 s75, 0")
        e("    s_cbranch_scc1 NOWF")
        e("    s_or_b32 s71, s71, 16")
        w_frags()
        e("NOWF:")
    e("    s_waitcnt vmcnt(4)")
    self_init(64)
    e("LOOP:")
    e("    v_cmp_gt_u32 vcc, s8, v11")
    if PM == 4:
        prio_by_age("PRIOD")
    e("    s_waitcnt vmcnt(0)")
    for t in range(4):
        for u in range(2):
            e(f"    ds_read_b64_tr_b16 v[{12+4*t+2*u}:{13+4*t+2*u}], v{84+t} offset:{512*u}")
    e("    s_cmp_eq_u32 s8, 0")
    e("    v_cndmask_b32 v91, 0, v1, vcc")
    e("    s_waitcnt lgkmcnt(8)")
    addr()
    e("    s_waitcnt lgkmcnt(0)")
    e("    s_cbranch_scc1 LAST")
    dma(0)
    e("    s_cmp_eq_u32 s8, 1")
    e("    s_cbranch_scc1 DMAD")
    dma(1)
    e("    s_cmp_eq_u32 s8, 2")
    e("    s_cbranch_scc1 DMAD")
    dma(2)
    e("    s_cmp_eq_u32 s8, 3")
    e("    s_cbranch_scc1 DMAD")
    dma(3)
    e("DMAD:")
    if PM == 4:
        e("    s_setprio 0")
    mfmas()
    next_k()
    build_b("v91")
    read_recs(93, 94, "s11")
    e("    s_branch LOOP")
    e("LAST:")
    mfmas()
    e("MAINDONE:")
    e("    v_readfirstlane_b32 s75, v8")
    e("    s_cmp_lg_u32 s75, 0")
    e("    s_cbranch_scc1 AGAIN")

    stamp2("h1_done", "h2_done")
    e("    s_nop 2")
    for t in range(4):
        e(f"    v_cvt_pk_bf16_f32 v{12+2*t}, v{64+4*t}, v{65+4*t}")
        e(f"    v_cvt_pk_bf16_f32 v{13+2*t}, v{66+4*t}, v{67+4*t}")
    e("    s_mov_b64 exec, s[16:17]")
    e("    v_swap_b32 v12, v14")
    e("    v_swap_b32 v13, v15")
    e("    v_swap_b32 v16, v18")
    e("    v_swap_b32 v17, v19")
    e("    s_bitcmp1_b32 s71, 0")
    e("    s_cbranch_scc1 FINAL")
    e("    s_mov_b64 exec, s[14:15]")
    e(f"    buffer_store_dwordx4 v[12:15], v121, {R(S_STO)}, 0 offen {SC}")
    e(f"    buffer_store_dwordx4 v[16:19], v121, {R(S_STO)}, 0 offen offset:64 {SC}")
    e("    s_setprio 0")
    e("    s_mov_b64 exec, -1")
    stamp("h1_st")
    def book():
        e(f"    s_mov_b64 s[{S_GAT}:{S_GAT+1}], s[{S_GH}:{S_GH+1}]")
        e("    s_or_b32 s71, s71, 1")
        self_init(12)
        e("    s_bitcmp1_b32 s71, 1")
        e("    s_cbranch_scc1 E_IRR")
        if not I("wearly", 0):
            e("    s_or_b32 s71, s71, 16")
            w_frags()
        read_recs(88, 89, 128)
        e("    s_waitcnt lgkmcnt(2)")
        addr()
        e("E_BAR:")
    BL = I("booklate", 1)
    if not BL:
        book()
    barrier_addrs()
    e("    s_waitcnt vmcnt(0)")
    stamp("g2_ack")
    e("    s_barrier")
    e("    s_cmp_lg_u32 s3, 0")
    e("    s_cbranch_scc1 G2_NOF")
    stamp("g2_arr")
    e("    s_mov_b64 exec, 0xff")
    e(f"    buffer_store_dword v125, v2, {R(S_WS)}, s76 offen sc1")
    e("G2_NOF:")
    e("    s_mov_b32 exec_hi, 0")
    e(f"    s_and_b32 exec_lo, s14, {OPT.get('ownm', '0xffff')}")
    if OPT.get('ownm', '0xffff') != '0':
        e(f"    buffer_load_dword v91, v121, {R(S_STO)}, 0 offen sc1")
    e("    s_mov_b64 exec, -1")
    if BL:
        if I("pp", 1):
            e("    s_cmp_lg_u32 s3, 0")
            e("    s_cbranch_scc1 G2_NP")
            e("    s_setprio 3")
            e("G2_NP:")
        book()
    e("    s_cmp_lg_u32 s3, 0")
    e("    s_cbranch_scc1 G2_WAIT")
    e(f"    s_mov_b32 s75, {SPINMAX}")
    e("G2_POLL:")
    e(f"    buffer_load_dwordx4 v[4:7], v8, {R(S_WS)}, s77 offen sc1")
    e("    s_sub_u32 s75, s75, 1")
    e("    s_cmp_eq_u32 s75, 0")
    e("    s_waitcnt vmcnt(0)")
    e("    s_cbranch_scc1 G2_WAIT")
    e("    v_xor_b32 v4, v4, v125")
    e("    v_xor_b32 v5, v5, v125")
    e("    v_xor_b32 v6, v6, v125")
    e("    v_xor_b32 v7, v7, v125")
    e("    v_or3_b32 v4, v4, v5, v6")
    e("    v_or_b32 v4, v4, v7")
    e("    v_cmp_ne_u32 vcc, 0, v4")
    if I("shrink", 1):
        e("    s_and_b64 exec, exec, vcc")
        e("    s_cbranch_scc1 G2_POLL")
    else:
        e("    s_cbranch_vccnz G2_POLL")
    e("G2_WAIT:")
    e("    s_mov_b64 exec, -1")
    if I("pp", 1):
        e("    s_setprio 0")
    e("    v_mov_b32 v8, 0")
    e("    s_and_b32 s76, s71, 2")
    e("    s_cselect_b32 s76, 0, s74")
    e("    s_cmp_lg_u32 s76, 0")
    e("    s_barrier")
    stamp("g2_exit")
    e("    s_cbranch_scc1 MAIN2")
    e("    s_bitcmp0_b32 s71, 1")
    e("    s_cbranch_scc1 MAIN")
    e("    s_branch COLLECT")
    e("FINAL:")
    MIX = I("mix", 0)
    if MIX:
        e("    s_mov_b64 exec, 1")
        e(f"    v_mov_b32 v2, {MORE+4}")
        e("    ds_add_rtn_u32 v2, v2, v1")
    e("    s_mov_b64 exec, -1")
    e("    s_bitcmp0_b32 s71, 4")
    e("    s_cbranch_scc1 F_GETW")
    e("F_HAVEW:")
    for t in range(4):
        w = WREG[t]
        e(f"    v_mfma_f32_16x16x32_bf16 v[{64+4*t}:{67+4*t}], v[{w}:{w+3}], v[12:15], 0")
    for t in range(4):
        w = WREG[4 + t]
        e(f"    v_mfma_f32_16x16x32_bf16 v[{64+4*t}:{67+4*t}], v[{w}:{w+3}], v[16:19], v[{64+4*t}:{67+4*t}]")
    e("    s_nop 4")
    for t in range(4):
        if t:
            e("    s_nop 1")
        e(f"    v_cvt_pk_bf16_f32 v{12+2*t}, v{64+4*t}, v{65+4*t}")
        e(f"    v_cvt_pk_bf16_f32 v{13+2*t}, v{66+4*t}, v{67+4*t}")
    if MIX:
        e("    s_waitcnt lgkmcnt(0)")
        e("    v_readfirstlane_b32 s76, v2")
        e("    s_mov_b64 exec, s[14:15]")
        e(f"    s_cmp_lt_u32 s76, {MIX}")
        e("    s_cbranch_scc1 F_WT")
        e(f"    buffer_store_dwordx4 v[12:15], v121, {R(S_OUT)}, 0 offen {OPT.get('mixf', '')}")
        e(f"    buffer_store_dwordx4 v[16:19], v121, {R(S_OUT)}, 0 offen offset:64 {OPT.get('mixf', '')}")
        e("    s_branch F_ST")
        e("F_WT:")
    e("    s_mov_b64 exec, s[14:15]")
    e(f"    buffer_store_dwordx4 v[12:15], v121, {R(S_OUT)}, 0 offen {ST_OUT}")
    e(f"    buffer_store_dwordx4 v[16:19], v121, {R(S_OUT)}, 0 offen offset:64 {ST_OUT}")
    e("F_ST:")
    stamp_out()
    e("END:")
    e("    s_endpgm")


def out_of_line():
    for i in range(2):
        base = 12 + 4 * i
        e(f"C_RETRY{i}:")
        e("    s_lshr_b64 s[76:77], vcc, 1")
        e("    s_or_b64 vcc, vcc, s[76:77]")
        e("    s_lshr_b64 s[76:77], vcc, 2")
        e("    s_or_b64 vcc, vcc, s[76:77]")
        e("    s_and_b32 vcc_lo, vcc_lo, 0x11111111")
        e("    s_and_b32 vcc_hi, vcc_hi, 0x11111111")
        e("    s_mul_i32 exec_lo, vcc_lo, 15")
        e("    s_mul_i32 exec_hi, vcc_hi, 15")
        if I("rbo", 4):
            e(f"    s_sleep {I('rbo', 4)}")
        e(f"    buffer_load_dwordx4 v[{base}:{base+3}], v{6+i}, {R(S_WS)}, s{68+i} offen {SC}")
        e(f"    s_mov_b64 exec, {ACT[i]}")
        e("    s_sub_u32 s75, s75, 1")
        e("    s_cmp_eq_u32 s75, 0")
        e("    s_waitcnt vmcnt(0)")
        e(f"    s_cbranch_scc0 C_CHK{i}")
        e("    s_mov_b32 s75, 1000")
        if DIAG:
            e(f"    s_or_b32 s48, s48, {1 << i}")
            e("    s_mov_b64 s[50:51], vcc")
        e(f"    s_branch C_OK{i}")
    e("C_RETRY2:")
    e(f"    s_sleep {I('bo', 2)}")
    load_headers()
    e("    s_sub_u32 s75, s75, 1")
    e("    s_cmp_eq_u32 s75, 0")
    e("    s_waitcnt vmcnt(0)")
    e("    s_cbranch_scc0 C_CHK2")
    e("    s_mov_b32 s75, 1000")
    if DIAG:
        e("    s_or_b32 s48, s48, 4")
        e("    s_mov_b64 s[50:51], vcc")
    e("    s_branch C_OK2")
    a_overflow()
    e("AGAIN:")
    e("    s_setprio 0")
    e("    s_or_b32 s71, s71, 2")
    e("    s_barrier")
    zero_b_counters((WL - CNTB) // 4)
    e("    s_waitcnt lgkmcnt(0)")
    e("    s_barrier")
    for s in range(7):
        e(f"    s_mov_b64 exec, {PEND(s)}")
        e(f"    ds_add_rtn_u32 v{32+s}, v{40+s}, v1")
    e("EXTRA:")
    for m, r in (("s[4:5]", 116), ("s[6:7]", 118)):
        e(f"    s_andn2_b64 exec, {m}, {PEND(7)}")
        e(f"    s_andn2_b64 {m}, {m}, exec")
        e(f"    s_or_b64 {PEND(7)}, {PEND(7)}, exec")
        decode_full(r, r + 1, 7)
    e("    s_mov_b64 exec, -1")
    e("    s_or_b64 s[76:77], s[4:5], s[6:7]")
    e("    s_cbranch_scc1 OVFULL")
    e("    s_mov_b32 s75, 0")
    e("OVL:")
    e("    s_cmp_lt_u32 s68, s69")
    e("    s_cbranch_scc1 OVLOAD")
    e("    s_cmp_eq_u64 s[72:73], 0")
    e("    s_cbranch_scc1 OVDONE")
    e("    s_ff1_i32_b64 s76, s[72:73]")
    e("    s_bitset0_b64 s[72:73], s76")
    e("    s_or_b32 s77, s76, 7")
    e("    v_readlane_b32 s68, v117, s77")
    e("    v_readlane_b32 s69, v119, s77")
    e("    s_bitcmp1_b32 s76, 0")
    e("    s_cselect_b32 s69, s69, s68")
    e("    s_and_b32 s69, s69, 0xfff")
    e(f"    s_min_u32 s69, s69, {CHMAX}")
    e("    s_and_b32 s77, s76, 1")
    e("    s_lshl_b32 s77, s77, 7")
    e("    s_lshr_b32 s76, s76, 3")
    e("    s_add_u32 s76, s76, s77")
    e("    s_lshl_b32 s77, s3, 3")
    e("    s_add_u32 s76, s76, s77")
    e("    s_lshl_b32 s70, s76, 15")
    e(f"    s_mov_b32 s68, {NINL}")
    e("OVLOAD:")
    e("    v_add_u32 v4, s75, v0")
    e("    v_and_b32 v4, 63, v4")
    e("    v_add_u32 v4, s68, v4")
    e("    v_lshlrev_b32 v5, 3, v4")
    e(f"    buffer_load_dwordx2 v[28:29], v5, {R(S_OVF)}, s70 offen {SC}")
    e("    s_waitcnt vmcnt(0)")
    e(f"    v_mul_u32_u24 v30, {TM}, v29")
    e("    v_lshrrev_b32 v31, 20, v30")
    e("    v_cmp_gt_u32 vcc, s69, v4")
    e("    v_cmp_eq_u32 s[76:77], s2, v31")
    e("    s_and_b64 vcc, s[76:77], vcc")
    e(f"    s_and_b64 s[76:77], vcc, {PEND(7)}")
    e("    s_cbranch_scc1 OVFULL")
    e(f"    s_or_b64 {PEND(7)}, {PEND(7)}, vcc")
    e("    s_add_u32 s68, s68, 64")
    e("    s_add_u32 s75, s75, 16")
    e("    s_mov_b64 exec, vcc")
    decode_full(28, 29, 7)
    e("    s_mov_b64 exec, -1")
    e("    s_branch OVL")
    e("OVFULL:")
    e(f"    v_mov_b32 v2, {MORE}")
    e("    ds_write_b32 v2, v1")
    e("OVDONE:")
    e(f"    s_mov_b64 exec, {PEND(7)}")
    e("    ds_add_rtn_u32 v39, v47, v1")
    e("    s_mov_b64 exec, -1")
    e("    s_branch CDONE")
    e("SLOWW:")
    e("    s_waitcnt lgkmcnt(0)")
    for s in range(8):
        e(f"    s_mov_b64 exec, {PEND(s)}")
        e(f"    v_lshl_add_u32 v{20+s}, v{32+s}, 2, v{20+s}")
        e(f"    v_subrev_u32 v3, s0, v{40+s}")
        e("    v_lshrrev_b32 v3, 6, v3")
        e(f"    v_mul_u32_u24 v3, {TSTR}, v3")
        e(f"    v_add_u32 v3, {LISTS + CAPT*4}, v3")
        e(f"    v_cmp_lt_u32 vcc, v{20+s}, v3")
        e(f"    s_andn2_b64 {PEND(s)}, exec, vcc")
        e("    s_mov_b64 exec, vcc")
        e(f"    ds_write2st64_b32 v{20+s}, v{48+s}, v{56+s} offset0:0 offset1:5")
    e("    s_mov_b64 exec, -1")
    e(f"    v_mov_b32 v3, {MORE}")
    e("    ds_write_b32 v3, v1")
    e("    s_branch WDONE")
    e("E_IRR:")
    e("    s_mov_b32 s70, s77")
    zero_b_counters(256)
    e("    s_mov_b32 s77, s70")
    collect_addrs()
    for i in range(4):
        e(f"    v_mov_b32 v{100+i}, {PADV}")
    e("    s_waitcnt lgkmcnt(0)")
    e("    s_branch E_BAR")
    e("EMPTY:")
    e("    s_waitcnt vmcnt(0) lgkmcnt(0)")
    e("    s_bitcmp1_b32 s71, 3")
    e("    s_cbranch_scc1 MAINDONE")
    e("    s_or_b32 s71, s71, 8")
    self_init(64)
    e("    s_branch MAINDONE")
    e("F_GETW:")
    w_frags()
    e("    s_waitcnt lgkmcnt(0)")
    e("    s_branch F_HAVEW")
    e("CODE_END:")


def body():
    e(f".globl {NAME}")
    e(".p2align 8")
    e(f".type {NAME},@function")
    e(f"{NAME}:")
    phase_a()
    setup1()
    if SP == 0:
        setup2()
        setup3()
    if I("pc", 1):
        e("    s_setprio 3")
    e("    s_waitcnt vmcnt(0) lgkmcnt(0)" if I("ackb", 1) else "    s_waitcnt lgkmcnt(0)")
    stamp("g1_ack")
    e("    s_barrier")
    stamp("g1_exit")
    phase_b()
    main_loop()
    out_of_line()


def spin_kernel():
    na, nb_, mode, mult, wlo, whi = (SPIN.split(",") + ["0", "15"])[:6]
    wlo, whi = int(wlo), int(whi)
    ia, ib, mode, mult = STL.index(na), STL.index(nb_), int(mode), int(mult)
    init = "0x80000000" if mode == 0 else "0x7fffffff" if mode == 1 else "0"
    e(".globl sgc_spin_kernel")
    e(".p2align 8")
    e(".type sgc_spin_kernel,@function")
    e("sgc_spin_kernel:")
    e("    s_memrealtime s[30:31]")
    e("    s_cmp_ge_u32 s2, 1")
    e("    s_cbranch_scc1 SP_END")
    e("    s_load_dwordx8 s[12:19], s[0:1], 32")
    e("    v_lshlrev_b32 v1, 6, v0")
    e("    v_mov_b32 v4, 0x7fffffff")
    e(f"    v_mov_b32 v5, {init}")
    e("    s_mov_b32 s23, 0x20000")
    e("    s_waitcnt lgkmcnt(0)")
    srd(20, 18, 19, 1 << 20, WS_STAMP)
    e("    s_mov_b32 s24, 0")
    e("SP_RD:")
    e(f"    buffer_load_dword v2, v1, s[20:23], s24 offen offset:{4*ia}")
    e(f"    buffer_load_dword v3, v1, s[20:23], s24 offen offset:{4*ib}")
    e("    s_add_u32 s24, s24, 4096")
    e("    s_cmp_lt_u32 s24, 0x40000")
    e("    s_waitcnt vmcnt(0)")
    e("    v_subrev_u32 v2, s30, v2")
    e("    v_subrev_u32 v3, s30, v3")
    e("    v_min_i32 v4, v4, v2")
    e("    %s v5, v5, v3" % ("v_max_i32" if mode == 0 else "v_min_i32" if mode == 1 else "v_add_u32"))
    e("    s_cbranch_scc1 SP_RD")
    e("    s_mov_b32 s26, 0x7fffffff")
    e(f"    s_mov_b32 s27, {init}")
    e("    s_nop 1")
    for l in range(64):
        e(f"    v_readlane_b32 s28, v4, {l}")
        e(f"    v_readlane_b32 s29, v5, {l}")
        e("    s_min_i32 s26, s26, s28")
        if wlo <= (l & 15) <= whi:
            e("    %s s27, s27, s29" % ("s_max_i32" if mode == 0 else "s_min_i32" if mode == 1 else "s_add_u32"))
    if mode == 2:
        e("    s_ashr_i32 s27, s27, %d" % (8 + (whi - wlo + 1).bit_length() - 1))
    e("    s_sub_i32 s26, s27, s26")
    e("    s_max_i32 s26, s26, 0")
    e("    s_min_i32 s26, s26, 20000")
    e(f"    s_mul_i32 s26, s26, {mult}")
    e("    s_add_u32 s26, s26, 10000")
    e("SP_LOOP:")
    e("    s_memrealtime s[28:29]")
    e("    s_waitcnt lgkmcnt(0)")
    e("    s_sub_u32 s28, s28, s30")
    e("    s_cmp_lt_u32 s28, s26")
    e("    s_cbranch_scc1 SP_LOOP")
    e("SP_END:")
    e("    s_endpgm")


def desc(name, vg, sg):
    e(".p2align 6")
    e(f".amdhsa_kernel {name}")
    e(f"  .amdhsa_next_free_vgpr {vg}")
    e(f"  .amdhsa_next_free_sgpr {sg}")
    e(f"  .amdhsa_accum_offset {vg}")
    e("  .amdhsa_group_segment_fixed_size 0")
    e("  .amdhsa_kernarg_size 64")
    e("  .amdhsa_user_sgpr_count 2")
    e("  .amdhsa_user_sgpr_kernarg_segment_ptr 1")
    e("  .amdhsa_system_sgpr_workgroup_id_x 1")
    e(".end_amdhsa_kernel")


SPIN = OPT.get("spin")
if SPIN:
    e(f"; @launch kernel={NAME} grid=(256,1,1) block=(1024,1,1) lds={LDS}")
    e("; @launch kernel=sgc_spin_kernel grid=(1,1,1) block=(64,1,1) lds=0")
else:
    e(f"; @launch grid=(256,1,1) block=(1024,1,1) lds={LDS}")
e('.amdgcn_target "amdgcn-amd-amdhsa--gfx950"')
e(".text")
body()
if SPIN:
    spin_kernel()
e('.section .rodata,"a"')
if SPIN:
    desc("sgc_spin_kernel", 8, 40)
desc(NAME, 128, 102 if DIAG else 78)
open(OUT, "w").write("\n".join(L) + "\n")
```

```python
import sys

OUT = [a for a in sys.argv[1:] if not a.startswith("--")][0]
OPT = dict(a[2:].split("=") for a in sys.argv[1:] if a.startswith("--") and "=" in a)
NAME = "standalone__spectral_conv_sgc__graph_kernel"
DEFST = "start,a_bar2,b_bar1,b_bar2,h1_done,g2_ack,g2_arr,g2_exit,h2_done,end"
STL = OPT.get("st", DEFST if "--diag" in sys.argv else "").split(",")
STL = [s for s in STL if s]
DIAG = len(STL) > 0


def I(name, dflt):
    return int(OPT.get(name, dflt))


N = 50000
E = 850000
ET = 800000
TM = 5368
CHMAX = 13 * 256
SLOTCAP = 24
NINL = 7
WS_OVT = 8 << 20
WS_FLAG = WS_OVT + 131072
WS_VOTE = WS_FLAG + 65536
WS_H1 = 12 << 20
H1BYTES = 782 * 16384
WS_OVF = 40 << 20
OVF_STRIDE = 32768
WS_STAMP = 32 << 20
TABBYTES = N * 128
PADV = 0x40000000

K1_LS = 132
K1_CNT = 256 * K1_LS
K1_OVC = 1024
K1_DONE = 1028
K1_OVT = K1_CNT + 4096
K1_NON = K1_OVT + 64
K1_MSK = K1_NON + 16
LISTS = 65536
CAPT = 320
TSTR = CAPT * 8
CNTB = LISTS + 16 * TSTR + 256
BASES = CNTB + 1024
MORE = BASES + 1024
CFLAG = MORE + 64
WL = MORE + 128
assert WL % 128 == 0
SELFN = WL + 8192
LDS = SELFN + 1024

SC = "sc1"
ST_OUT = OPT.get("stout", "sc1")
SPINMAX = I("spinmax", 20000000)
NB = I("nb", 8)
TSH = I("tsh", 20)
ROT = I("rot", 6250)
SP = I("sp", 1)
EARLY = I("early", 0)
SEGB = I("segb", 2)

L = []


def e(s=""):
    L.append(s)


def srd(d, lo, hi, nbytes, off=0):
    if off == 0:
        e(f"    s_mov_b64 s[{d}:{d+1}], s[{lo}:{hi}]")
    elif off > 0:
        e(f"    s_add_u32 s{d}, s{lo}, {off}")
        e(f"    s_addc_u32 s{d+1}, s{hi}, 0")
    else:
        e(f"    s_sub_u32 s{d}, s{lo}, {-off}")
        e(f"    s_subb_u32 s{d+1}, s{hi}, 0")
    e(f"    s_mov_b32 s{d+2}, {nbytes}")
    e(f"    s_mov_b32 s{d+3}, s23")


S_SRC, S_DST, S_NRM, S_WS, S_OVF, S_GAT, S_STO = 20, 24, 28, 32, 36, 40, 44
S_OUT, S_GH = S_SRC, S_DST


def R(d):
    return f"s[{d}:{d+3}]"


STAMP_BASE = 82


def stamp(name):
    if name in STL:
        i = STL.index(name)
        e(f"    s_memrealtime s[{STAMP_BASE+2*i}:{STAMP_BASE+2*i+1}]")


def stamp2(n1, n2):
    if n1 in STL or n2 in STL:
        n = len(L)
        e("    s_bitcmp1_b32 s71, 0")
        e(f"    s_cbranch_scc1 ST{n}_B")
        stamp(n1)
        e(f"    s_branch ST{n}_C")
        e(f"ST{n}_B:")
        stamp(n2)
        e(f"ST{n}_C:")


def stamp_out():
    if not DIAG:
        return
    e("    s_waitcnt vmcnt(0) lgkmcnt(0)")
    stamp("end")
    e("    s_waitcnt lgkmcnt(0)")
    e("    s_mov_b64 exec, 1")
    srd(28, 18, 19, 1 << 20, WS_STAMP)
    e("    s_lshl_b32 s76, s2, 4")
    e("    s_add_u32 s76, s76, s3")
    e("    s_lshl_b32 s76, s76, 6")
    e("    v_mov_b32 v2, s76")
    for i in range(len(STL)):
        e(f"    v_mov_b32 v3, s{STAMP_BASE+2*i}")
        e(f"    buffer_store_dword v3, v2, s[28:31], 0 offen offset:{4*i}")
    e("    s_getreg_b32 s76, hwreg(HW_REG_XCC_ID)")
    e("    v_mov_b32 v3, s76")
    e("    buffer_store_dword v3, v2, s[28:31], 0 offen offset:56")
    e("    s_lshl_b32 s76, s48, 16")
    e("    s_or_b32 s76, s76, s74")
    e("    v_mov_b32 v3, s76")
    e("    buffer_store_dword v3, v2, s[28:31], 0 offen offset:60")
    e("    v_mov_b32 v3, s50")
    e("    buffer_store_dword v3, v2, s[28:31], 0 offen offset:48")
    e("    v_mov_b32 v3, s51")
    e("    buffer_store_dword v3, v2, s[28:31], 0 offen offset:52")


def PEND(s):
    return f"s[{52+2*s}:{53+2*s}]"


def prio_by_age(lbl):
    for g in range(1, 4):
        e(f"    s_cmp_lt_u32 s3, {4*g}")
        e(f"    s_cbranch_scc1 {lbl}")
        e(f"    s_setprio {g}")
    e(f"{lbl}:")


def decode_key(rec, meta, k, s):
    ca = 40 + s
    e(f"    v_add_u32 v2, s27, v{rec}")
    e(f"    v_and_b32_sdwa v3, v{meta}, v99 dst_sel:DWORD dst_unused:UNUSED_PAD src0_sel:BYTE_{k} src1_sel:DWORD")
    e("    v_bfe_u32 v2, v2, 12, 4")
    e("    v_or_b32 v2, v2, v3")
    e(f"    v_lshl_add_u32 v{ca}, v2, 2, s0")


def decode_data(rec, meta, k, s):
    d0, d1 = 48 + s, 56 + s
    e(f"    v_lshlrev_b32_sdwa v{d0}, v124, v{rec} dst_sel:DWORD dst_unused:UNUSED_PAD src0_sel:DWORD src1_sel:WORD_0")
    e(f"    v_mov_b32 v{d1}, v{rec}")
    e(f"    v_lshlrev_b16_sdwa v{d1}, v{meta}, v1 dst_sel:WORD_0 dst_unused:UNUSED_PRESERVE src0_sel:BYTE_{k} src1_sel:DWORD")


def decode_full(rec, dst, s):
    e(f"    v_mul_u32_u24 v30, {TM}, v{dst}")
    e("    v_lshrrev_b32 v30, 12, v30")
    e(f"    v_bfi_b32 v30, 15, v{dst}, v30")
    decode_key(rec, 30, 0, s)
    decode_data(rec, 30, 0, s)


def zero_b_counters(n):
    e("    v_lshlrev_b32 v2, 2, v0")
    e(f"    v_add_u32 v2, {CNTB}, v2")
    e("    v_mov_b32 v3, 0")
    e(f"    v_cmp_gt_u32 vcc, {n}, v0")
    e("    s_and_saveexec_b64 s[76:77], vcc")
    e("    ds_write_b32 v2, v3")
    e("    s_mov_b64 exec, -1")


def collect_addrs():
    e("    v_lshrrev_b32 v9, 3, v0")
    e("    v_lshlrev_b32 v93, 7, v9")
    e("    v_lshlrev_b32 v9, 15, v9")
    e("    v_lshl_add_u32 v9, v10, 4, v9")
    e("    v_lshl_add_u32 v93, v10, 3, v93")


def own_x():
    e("    s_bitcmp1_b32 s71, 3")
    e("    s_cbranch_scc1 NOOWN")
    e("    s_mov_b64 exec, s[14:15]")
    e(f"    buffer_load_dwordx4 v[64:67], v121, {R(S_GAT)}, 0 offen offset:3072")
    e(f"    buffer_load_dwordx4 v[68:71], v121, {R(S_GAT)}, 0 offen offset:3136")
    if I("xtra", 0):
        e(f"    s_mov_b64 exec, {(1 << I('xtra', 0)) - 1}")
        e(f"    s_movk_i32 s76, {196*128}")
        e(f"    buffer_load_dword v91, v121, {R(S_GAT)}, s76 offen offset:3072")
    e("NOOWN:")
    e("    s_mov_b64 exec, -1")


def own_addr(lbl):
    e(f"    v_bfe_u32 v2, v121, {I('rsh', 13)}, {I('rbits', 2)}")
    e("    v_and_b32 v9, 0xffffe000, v121")
    e(f"    v_cmp_gt_u32 s[78:79], {I('rep', 1)}, v2")
    e("    v_add_u32 v9, v9, v121")
    e("    v_lshrrev_b32 v2, 8, v9")
    e("    v_and_b32 v2, 0x2000, v2")
    e("    v_xor_b32 v9, v9, v2")
    e("    s_and_b32 s76, s26, 3")
    e("    s_or_b32 s76, s76, s3")
    e(f"    s_cbranch_scc1 {lbl}")
    e("    s_or_b32 s71, s71, %d" % (64 if lbl == "PRB_M" else 0))
    e("    s_branch PROBE")
    e(f"{lbl}:")


def probe():
    e("PROBE:")
    e("    s_lshr_b32 s76, s29, 12")
    e("    s_lshl3_add_u32 s77, s26, s76")
    e("    s_lshl_b32 s80, s77, 15")
    e("    s_xor_b32 s81, s29, 0x1000")
    e("    s_add_u32 s80, s80, s81")
    e("    s_xor_b32 s81, s80, 0x2000")
    e("    s_waitcnt lgkmcnt(0)")
    e("    s_memtime vcc")
    e("    s_load_dword s50, s[18:19], s80")
    e("    s_waitcnt lgkmcnt(0)")
    e("    s_memtime s[76:77]")
    e("    s_load_dword s50, s[18:19], s81")
    e("    s_waitcnt lgkmcnt(0)")
    e("    s_sub_u32 s75, s76, vcc_lo")
    e("    s_memtime vcc")
    e("    s_waitcnt lgkmcnt(0)")
    e("    s_sub_u32 s77, vcc_lo, s76")
    if DIAG:
        e("    s_mov_b32 s50, s75")
        e("    s_mov_b32 s51, s77")
    e("    s_cmp_lt_u32 s75, s77")
    e("    s_cselect_b32 s80, s80, s81")
    e("    s_lshr_b32 s81, s80, 8")
    e("    s_xor_b32 s80, s80, s81")
    e("    s_lshr_b32 s80, s80, 13")
    e("    s_xor_b32 s80, s80, s2")
    e("    s_and_b32 s80, s80, 1")
    if OPT.get("cfix"):
        e(f"    s_mov_b32 s80, {OPT['cfix']}")
    e("    s_lshr_b32 s76, s29, 12")
    e("    s_lshr_b32 s77, s26, 2")
    e("    s_lshl3_add_u32 s77, s77, s76")
    e("    s_lshl_b32 s77, s77, 7")
    e(f"    s_add_u32 s77, s77, {WS_VOTE}")
    e("    v_lshlrev_b32 v2, 3, v0")
    e("    v_mov_b32 v4, v125")
    e("    v_mov_b32 v5, s80")
    e("    s_mov_b64 exec, 0xffff")
    e(f"    buffer_store_dwordx2 v[4:5], v2, {R(S_WS)}, s77 offen sc1")
    e("    s_mov_b64 exec, -1")
    e("    s_bitcmp0_b32 s71, 6")
    e("    s_cbranch_scc1 PRB_E")
    if I("catch", 1):
        e("    s_sub_u32 s10, s10, 1")
    e("    s_waitcnt vmcnt(5)")
    e("    s_branch PRB_M2")


def vote_load():
    e("    v_and_b32 v2, 63, v0")
    e("    v_lshlrev_b32 v2, 7, v2")
    e(f"    s_mov_b32 s76, {WS_VOTE}")
    e(f"    buffer_load_dwordx2 v[4:5], v2, {R(S_WS)}, s76 offen sc1")


def vote_count():
    e("    v_cmp_eq_u32 vcc, 1, v5")
    e("    s_bcnt1_i32_b64 s76, vcc")
    e("    s_cmp_ge_u32 s76, 32")
    e("    s_cselect_b32 s76, 3, 2")
    e(f"    v_mov_b32 v2, {CFLAG}")
    e("    v_mov_b32 v3, s76")
    e("    ds_write_b32 v2, v3")
    e("    s_movk_i32 s28, 0x7fff")


def self_init(b):
    e("    s_mov_b64 exec, s[16:17]")
    e(f"    v_swap_b32 v{b}, v{b+2}")
    e(f"    v_swap_b32 v{b+1}, v{b+3}")
    e(f"    v_swap_b32 v{b+4}, v{b+6}")
    e(f"    v_swap_b32 v{b+5}, v{b+7}")
    e("    s_mov_b64 exec, -1")
    for i in reversed(range(8)):
        e(f"    v_and_b32 v{65+2*i}, 0xffff0000, v{b+i}")
        e(f"    v_lshlrev_b32 v{64+2*i}, 16, v{b+i}")
    for i in range(16):
        e(f"    v_mul_f32 v{64+i}, v126, v{64+i}")


def phase_a():
    stamp("start")
    e("    s_getpc_b64 s[6:7]")
    e("CPF_PC:")
    e("    v_cmp_gt_u32 vcc, (SLOWW-CPF_PC+127)/128, v0")
    e("    v_lshlrev_b32 v2, 7, v0")
    e("    s_load_dwordx2 s[24:25], s[0:1], 16")
    e("    s_mov_b64 exec, vcc")
    e("    s_mov_b32 s8, vcc_lo")
    e("    s_cbranch_execz CPF_D")
    e("    global_load_dword v126, v2, s[6:7] offset:124")
    e("CPF_D:")
    e("    s_load_dwordx2 s[20:21], s[0:1], 8")
    e("    s_load_dwordx2 s[28:29], s[0:1], 24")
    e("    s_load_dwordx2 s[10:11], s[0:1], 56")
    e("    s_mov_b64 exec, -1")
    e("    s_cmp_ge_u32 s2, 256")
    e("    s_cbranch_scc1 END")
    TCH = I("touch", 1)
    e("    v_lshrrev_b32 v3, 6, v0")
    e("    v_and_b32 v2, 63, v0")
    e("    s_mov_b32 s23, 0x20000")
    e(f"    s_mov_b32 s22, {E*4}")
    e("    v_lshlrev_b32 v4, 18, v3")
    e("    s_mov_b64 s[26:27], s[22:23]")
    e("    v_lshl_or_b32 v4, v2, 4, v4")
    e("    s_lshr_b32 s30, s22, 1")
    e("    s_mov_b32 s31, s23")
    e("    v_lshrrev_b32 v5, 1, v4")
    e("    s_lshl_b32 s68, s2, 10")
    e("    v_cmp_gt_u32 vcc, 13, v3")
    e("    s_lshl_b32 s69, s2, 9")
    e(f"    v_mov_b32 v125, {WS_FLAG}")
    e("    s_cmp_eq_u32 s8, 0")
    e("    s_waitcnt lgkmcnt(0)")
    e("    s_cbranch_scc1 A_NOZ")
    e("    global_load_dword v125, v125, s[10:11] sc1")
    e("A_NOZ:")
    e("    s_cbranch_vccz A_NOLD0")
    LI = OPT.get("ldin", "")
    e(f"    buffer_load_dwordx4 v[12:15], v4, {R(S_DST)}, s68 offen {LI}")
    e("A_NOLD0:")
    e("    s_barrier")
    e("    s_cbranch_vccz A_NOLD")
    e(f"    buffer_load_dwordx4 v[16:19], v4, {R(S_SRC)}, s68 offen {LI}")
    e(f"    buffer_load_dwordx2 v[20:21], v5, {R(S_NRM)}, s69 offen {LI}")
    e("A_NOLD:")
    stamp("a_issue")
    e("    s_load_dwordx8 s[12:19], s[0:1], 32")
    e("    s_load_dwordx2 s[4:5], s[0:1], 0")
    e("    v_readfirstlane_b32 s3, v3")
    e("    v_lshlrev_b32 v9, 2, v0")
    e("    v_mov_b32 v6, 0")
    e(f"    ds_write_b32 v9, v6 offset:{K1_CNT}")
    for i in range(4):
        e(f"    v_mov_b32 v{24+i}, -1")
    e("    v_lshlrev_b32 v7, 4, v0")
    e("    ds_write_b128 v7, v[24:27]")
    e("    ds_write_b128 v7, v[24:27] offset:16384")
    e("    v_add_u32 v4, s68, v4")
    e("    v_lshrrev_b32 v8, 2, v4")
    e("    v_cmp_gt_u32 s[72:73], s22, v4")
    e(f"    v_subrev_u32 v8, {ET}, v8")
    e("    v_mov_b32 v1, 1")
    e("    v_and_b32 v10, 7, v0")
    srd(S_WS, 10, 11, WS_H1 + H1BYTES)
    e("    s_cmp_lt_u32 s3, 13")
    e("    s_cbranch_scc1 A_BAR")
    e("    s_cmp_lt_u32 s3, 14")
    e("    s_cbranch_scc1 A_H13")
    e("    s_cmp_eq_u32 s3, 14")
    e("    s_cbranch_scc1 A_H14")
    e(f"    ds_write_b128 v7, v[24:27] offset:{32768 - 15*1024}")
    e("    v_and_b32 v5, 60, v9")
    e("    v_mov_b32 v7, 0xffff")
    e(f"    ds_write_b32 v5, v7 offset:{K1_OVT}")
    e("    s_branch A_BAR")
    e("A_H14:")
    if I("hv", 0):
        e("    v_bfe_u32 v52, v0, 4, 2")
        e("    v_and_b32 v3, 15, v0")
        e("    v_lshlrev_b32 v52, 15, v52")
        e("    s_lshl_b32 s75, s2, 7")
        e("    v_lshl_or_b32 v52, v3, 3, v52")
        e(f"    s_add_u32 s75, s75, {WS_OVT}")
        e("    v_bfe_i32 v5, v0, 0, 1")
        e(f"    buffer_store_dwordx2 v[4:5], v52, {R(S_WS)}, s75 offen sc1")
    e(f"    v_lshlrev_b32 v2, {TSH}, v2")
    if TCH == 1:
        e(f"    buffer_load_dword v126, v2, {R(S_WS)}, 0 offen offset:{I('toff', 3968)} sc1")
    if TCH and I("txo", 1):
        e("    s_waitcnt lgkmcnt(0)")
        srd(S_GAT, 4, 5, TABBYTES)
        e(f"    buffer_load_dword v126, v2, {R(S_GAT)}, 0 offen")
        srd(S_OVF, 14, 15, TABBYTES)
        e(f"    buffer_load_dword v126, v2, {R(S_OVF)}, 0 offen sc1")
    e("    s_branch A_BAR")
    e("A_H13:")
    if I("pt", 0) == 1:
        e("    s_lshl_b32 s77, s2, 6")
        e(f"    s_add_u32 s77, s77, {WS_OVT}")
        e("    v_lshlrev_b32 v2, 14, v2")
        e("    s_mov_b64 exec, 0xff")
        e(f"    buffer_load_dword v126, v2, {R(S_WS)}, s77 offen sc1")
        e("    s_mov_b64 exec, -1")
    elif I("pt", 0) == 2:
        e("    s_lshl_b32 s77, s2, 9")
        e(f"    s_add_u32 s77, s77, {WS_OVT}")
        e("    v_lshlrev_b32 v2, 7, v2")
        e("    s_mov_b64 exec, 15")
        e(f"    buffer_load_dword v126, v2, {R(S_WS)}, s77 offen sc1")
        e("    s_mov_b64 exec, -1")
    e("A_BAR:")
    e("    s_lshr_b32 s76, s2, 7")
    e("    s_add_u32 s77, s76, s2")
    e("    s_and_b32 s77, s77, 3")
    e("    s_lshl_b32 s77, s77, 6")
    e("    s_lshl1_add_u32 s77, s76, s77")
    e("    s_bfe_u32 s76, s2, 0x40003")
    e("    s_lshl2_add_u32 s77, s76, s77")
    e("    s_bfe_u32 s76, s2, 0x10002")
    e("    s_add_u32 s65, s77, s76")
    if I("pa", 1):
        prio_by_age("A_PRD")
    e("    s_waitcnt lgkmcnt(0)")
    e("    s_barrier")
    stamp("a_bar1")
    e("    s_cmp_lt_u32 s3, 12")
    e("    s_cbranch_scc1 A_SETUP")
    e("    v_bfe_u32 v2, v0, 4, 4")
    e("    s_lshl_b32 s76, s65, 4")
    e("    v_add_u32 v2, s76, v2")
    e("    v_mul_u32_u24 v3, 50006, v2")
    e("    v_lshrrev_b32 v3, 12, v3")
    e("    v_sub_u32 v4, v0, v3")
    e("    v_and_b32 v4, 15, v4")
    e("    v_add_u32 v115, v3, v4")
    e(f"    v_add_u32 v4, {ET}, v115")
    e("    v_lshlrev_b32 v5, 2, v4")
    e("    v_lshlrev_b32 v4, 1, v4")
    e(f"    buffer_load_dword v112, v5, {R(S_DST)}, 0 offen")
    e(f"    buffer_load_dword v113, v5, {R(S_SRC)}, 0 offen")
    e(f"    buffer_load_ushort v114, v4, {R(S_NRM)}, 0 offen")
    e(f"    v_mul_u32_u24 v4, {TM}, v115")
    e("    v_lshrrev_b32 v4, 16, v4")
    e("    v_cmp_eq_u32 s[66:67], v4, v2")
    e(f"    v_cmp_gt_u32 vcc, {N}, v115")
    e("    s_and_b64 s[66:67], s[66:67], vcc")
    e("    s_cmp_eq_u32 s3, 12")
    e("    s_cbranch_scc1 A_SETUP")
    srd(S_STO, 12, 13, 8192)
    e(f"    v_subrev_u32 v2, {13*64}, v0")
    e("    v_lshlrev_b32 v2, 4, v2")
    e(f"    buffer_load_dwordx4 v[100:103], v2, {R(S_STO)}, 0 offen")
    e(f"    buffer_load_dwordx4 v[104:107], v2, {R(S_STO)}, 0 offen offset:3072")
    e("    v_add_u32 v3, 6144, v2")
    e(f"    buffer_load_dwordx4 v[108:111], v3, {R(S_STO)}, 0 offen")
    e("A_SETUP:")
    e("    s_lshr_b32 s76, s3, 1")
    e("    s_add_u32 s76, s76, s2")
    e("    s_and_b32 s76, s76, 7")
    e("    s_lshl_b32 s74, s2, 15")
    e("    s_lshl_b32 s77, s76, 12")
    e("    s_add_u32 s74, s74, s77")
    e("    s_lshl_b32 s77, s76, 2")
    e("    v_mov_b32 v49, s77")
    e("    s_and_b32 s75, s3, 1")
    e("    s_lshl_b32 s75, s75, 1")
    e("    v_bfe_u32 v2, v0, 3, 3")
    e("    v_lshlrev_b32 v48, 4, v10")
    e("    v_cmp_lt_u32 vcc, 3, v10")
    e(f"    v_mul_u32_u24 v3, {K1_LS * 4}, v2")
    e("    s_and_b32 s70, s3, 1")
    e("    s_add_u32 s77, s76, s70")
    e("    s_and_b32 s77, s77, 3")
    e("    s_lshl_b32 s77, s77, 6")
    e("    s_lshl1_add_u32 s77, s70, s77")
    e("    s_lshr_b32 s76, s76, 2")
    e("    s_add_u32 s76, s76, s77")
    e("    v_add_u32 v3, v3, v48")
    for st in range(2):
        e(f"    s_add_u32 s77, s76, {32*st}")
        e(f"    s_mul_i32 s77, s77, {K1_LS}")
        e(f"    v_add_u32 v{40+st}, s77, v3")
        e(f"    v_lshl_add_u32 v{46+st}, s75, 3, v2")
        e(f"    v_lshlrev_b32 v{44+st}, v{46+st}, v1")
        e(f"    v_add_u32 v{42+st}, -1, v{44+st}")
        e(f"    v_cndmask_b32 v{44+st}, 0, v{44+st}, vcc")
        e("    s_add_u32 s75, s75, 1")
    e("    v_and_b32 v50, 6, v10")
    e("    s_mov_b32 s64, 0xffffff")
    e("    s_cmp_lt_u32 s3, 12")
    e("    s_cbranch_scc1 A_EDGES")
    e("    s_cmp_eq_u32 s3, 12")
    e("    s_cbranch_scc1 A_EDGES12")
    e("    s_cmp_eq_u32 s3, 15")
    e("    s_cbranch_scc1 A_MASKS")
    e("    s_cmp_eq_u32 s3, 14")
    e("    s_cbranch_scc1 A_HDR")
    if I("pg", 0):
        srd(S_GAT, 4, 5, TABBYTES)
        e("    s_add_u32 s76, s65, 1")
        e(f"    s_mul_i32 s76, s76, {16*50006}")
        e("    s_lshr_b32 s76, s76, 12")
        e("    v_and_b32 v2, 63, v0")
        e("    v_add_lshl_u32 v2, v2, s76, 7")
        n = I("pg", 0)
        o = 0
        while n > 0:
            m = min(n, 64)
            if m < 64:
                e(f"    s_mov_b32 exec_lo, {((1 << m) - 1) & 0xffffffff}")
                e(f"    s_mov_b32 exec_hi, {((1 << m) - 1) >> 32}")
            e(f"    s_movk_i32 s76, {o}")
            e(f"    buffer_load_dword v126, v2, {R(S_GAT)}, s76 offen")
            n -= m
            o += 8192
    e("    s_branch A_OUT")
    e("A_MASKS:")
    e("    v_bfe_u32 v2, v0, 4, 1")
    e("    v_bfe_u32 v3, v0, 5, 1")
    e("    v_add_u32 v3, v3, v2")
    e("    v_lshlrev_b32 v3, 6, v3")
    e("    v_lshl_add_u32 v3, v2, 1, v3")
    e("    v_and_b32 v2, 15, v0")
    e("    v_lshl_add_u32 v3, v2, 2, v3")
    e("    v_lshlrev_b32 v12, 2, v3")
    e("    v_xor_b32 v13, 512, v12")
    e("    v_lshlrev_b32 v7, 2, v10")
    e("A_MPOLL:")
    e(f"    ds_read_b32 v2, v6 offset:{K1_CNT+K1_DONE}")
    e("    s_waitcnt lgkmcnt(0)")
    e("    v_cmp_gt_u32 vcc, 13, v2")
    e("    s_cbranch_vccnz A_MPOLL")
    for n in range(4):
        e(f"    ds_read_b32 v{16+n}, v{12+(n&1)} offset:{K1_CNT + 4*(n>>1)}")
    for n in range(4):
        e(f"    s_waitcnt lgkmcnt({3-n})")
        e(f"    v_cmp_lt_u32 s[{52+2*n}:{53+2*n}], 12, v{16+n}")
    e("    s_nop 1")
    for n in range(8):
        e(f"    v_writelane_b32 v2, s{52+n}, {n}")
    e("    s_mov_b64 exec, 0xff")
    e("    v_bcnt_u32_b32 v3, v2, 0")
    e("    v_add_u32 v4, 1, v2")
    e("    v_bfe_i32 v3, v3, 0, 1")
    e("    v_bfi_b32 v4, v2, 0, v4")
    e("    v_and_or_b32 v2, v4, v3, v2")
    e(f"    ds_write_b32 v7, v2 offset:{K1_MSK}")
    e("    s_branch A_OUT")
    e("A_HDR:")
    e("    v_lshlrev_b32 v51, 3, v10")
    e("    v_bfe_u32 v52, v0, 4, 2")
    e("    v_and_b32 v3, 15, v0")
    e("    v_lshlrev_b32 v52, 15, v52")
    e("    v_lshl_or_b32 v52, v3, 3, v52")
    e("    v_lshlrev_b32 v53, 2, v2")
    e("    s_lshl_b32 s75, s2, 7")
    e(f"    s_add_u32 s75, s75, {WS_OVT}")
    e("    v_cmp_eq_u32 vcc, 7, v10")
    if I("hv", 0) == 1:
        e("    s_waitcnt vmcnt(9)")
    e("    s_setprio 3")
    stamp("a_pre2")
    e("    s_barrier")
    stamp("a_bar2")
    e(f"    ds_read_u16 v120, v50 offset:{K1_NON}")
    e(f"    ds_read_b64 v[24:25], v51 offset:{K1_OVT}")
    e(f"    ds_read_b32 v22, v6 offset:{K1_CNT+K1_OVC}")
    e(f"    ds_read_b32 v23, v53 offset:{K1_MSK}")
    e("    s_waitcnt lgkmcnt(0)")
    e("    v_or_b32 v22, 0xf000, v22")
    e("    v_cndmask_b32 v24, v24, v23, vcc")
    e("    v_cndmask_b32 v25, v25, v22, vcc")
    e("    v_lshl_or_b32 v25, v120, 16, v25")
    e(f"    buffer_store_dwordx2 v[24:25], v52, {R(S_WS)}, s75 offen {SC}")
    e("    s_branch A_O1")
    e("A_EDGES12:")
    e("    s_waitcnt vmcnt(5)")
    e("    s_branch A_EDGES2")
    e("A_EDGES:")
    e("    s_cmp_lg_u32 s3, 0")
    e("    s_waitcnt vmcnt(2)")
    e("    s_cbranch_scc1 A_EDGES2")
    e("    v_add_u32 v4, 0x01010101, v125")
    e("    v_add_u32 v5, 0x01010101, v125")
    e(f"    ds_write_b64 v6, v[4:5] offset:{K1_NON}")
    e("A_EDGES2:")
    e("    s_mov_b64 exec, s[72:73]")
    stamp("a_dst")
    for k in range(4):
        e(f"    v_mul_u32_u24 v{24+k}, {TM}, v{12+k}")
        e(f"    v_sub_u32 v2, v{12+k}, v8")
        e(f"    v_lshrrev_b32 v{28+k}, 20, v{24+k}")
        e(f"    v_cmp_ne_u32 s[{52+2*k}:{53+2*k}], {k}, v2")
        e(f"    v_lshlrev_b32 v{36+k}, 2, v{28+k}")
    for k in range(4):
        e(f"    s_mov_b64 exec, s[{52+2*k}:{53+2*k}]")
        e(f"    ds_add_rtn_u32 v{32+k}, v{36+k}, v1 offset:{K1_CNT}")
    e("    s_mov_b64 exec, 1")
    e(f"    ds_add_u32 v6, v1 offset:{K1_CNT+K1_DONE}")
    e("    s_mov_b64 exec, s[72:73]")
    for k in range(4):
        e(f"    v_lshrrev_b32 v{24+k}, 12, v{24+k}")
        e(f"    v_mul_u32_u24 v{28+k}, {K1_LS}, v{28+k}")
        e(f"    v_bfi_b32 v{24+k}, 15, v{12+k}, v{24+k}")
    e("    s_mov_b32 s70, 0xffff0000")
    FIT = ["s[6:7]", "s[8:9]", "s[10:11]", "s[62:63]"]
    for k in range(4):
        e(f"    s_mov_b64 exec, s[{52+2*k}:{53+2*k}]")
        e("    s_waitcnt lgkmcnt(4)")
        e(f"    v_cmp_le_u32 vcc, 12, v{32+k}")
        e(f"    v_cmp_gt_u32 {FIT[k]}, {SLOTCAP}, v{32+k}")
        e(f"    v_and_b32 v4, 3, v{32+k}")
        e(f"    v_lshrrev_b32 v2, 2, v{32+k}")
        e("    v_cndmask_b32 v3, 0, 61, vcc")
        e(f"    v_lshl_add_u32 v4, v4, 4, v{28+k}")
        e(f"    s_mov_b64 exec, {FIT[k]}")
        e("    v_add3_u32 v5, v4, v3, v2")
        e("    v_cndmask_b32 v3, 0, 52, vcc")
        e("    v_lshl_add_u32 v4, v2, 2, v4")
        e(f"    ds_write_b8 v5, v{24+k} offset:12")
        e(f"    v_add_u32 v{36+k}, v4, v3")
    for k in range(4):
        e(f"    s_andn2_b64 s[{52+2*k}:{53+2*k}], s[{52+2*k}:{53+2*k}], {FIT[k]}")
    e("    s_or_b64 s[60:61], s[52:53], s[54:55]")
    e("    s_or_b64 s[76:77], s[56:57], s[58:59]")
    e("    s_or_b64 s[60:61], s[60:61], s[76:77]")
    e("    s_mov_b64 exec, s[72:73]")
    e("    s_cmp_eq_u32 s3, 12")
    e("    s_waitcnt vmcnt(3)")
    e("    s_cbranch_scc1 A_ALL")
    e("    s_waitcnt vmcnt(0)")
    e("A_ALL:")
    stamp("a_all")
    for k in range(4):
        if k % 2 == 0:
            e(f"    v_lshl_or_b32 v{16+k}, v{20+k//2}, 16, v{16+k}")
        else:
            e(f"    v_and_or_b32 v{16+k}, v{20+k//2}, s70, v{16+k}")
    for k in range(4):
        e(f"    s_mov_b64 exec, {FIT[k]}")
        e(f"    ds_write_b32 v{36+k}, v{16+k}")
    e("    s_cmp_lg_u64 s[60:61], 0")
    e("    s_cbranch_scc1 A_OVER")
    e("A_OUT:")
    e("    s_setprio 2")
    e("    s_mov_b64 exec, -1")
    e("    s_waitcnt lgkmcnt(0)")
    stamp("a_pre2")
    e("    s_barrier")
    stamp("a_bar2")
    e(f"    ds_read_u16 v120, v50 offset:{K1_NON}")
    e("A_O1:")
    e(f"    ds_read_b32 v21, v49 offset:{K1_MSK}")
    e(f"    ds_read_u8 v127, v10 offset:{K1_NON}")
    e("    ds_read2_b32 v[12:13], v40 offset0:0 offset1:1")
    e("    ds_read2_b32 v[14:15], v40 offset0:2 offset1:3")
    e("    ds_read2_b32 v[16:17], v41 offset0:0 offset1:1")
    e("    ds_read2_b32 v[18:19], v41 offset0:2 offset1:3")
    e("    s_waitcnt lgkmcnt(5)")
    for st in range(2):
        e(f"    v_and_b32 v2, v21, v{42+st}")
        e(f"    v_and_b32 v3, v21, v{44+st}")
        e(f"    v_bcnt_u32_b32 v2, v2, v{46+st}")
        e(f"    v_cmp_eq_u32 s[{52+2*st}:{53+2*st}], v3, v{44+st}")
        e(f"    v_lshl_add_u32 v{42+st}, v2, 6, v48")
    e("    s_waitcnt lgkmcnt(4)")
    e("    v_lshlrev_b32 v20, 24, v127")
    e("    s_waitcnt lgkmcnt(2)")
    e("    v_and_or_b32 v15, v15, s64, v20")
    e("    s_mov_b64 exec, s[52:53]")
    e(f"    buffer_store_dwordx4 v[12:15], v42, {R(S_WS)}, s74 offen {SC}")
    e("    s_mov_b64 exec, s[54:55]")
    e("    s_waitcnt lgkmcnt(0)")
    e("    v_and_or_b32 v19, v19, s64, v20")
    e(f"    buffer_store_dwordx4 v[16:19], v43, {R(S_WS)}, s74 offen {SC}")
    e("    s_mov_b64 exec, -1")
    e("    s_setprio 0")
    stamp("a_st")
    e(f"    ds_read_b32 v125, v6 offset:{K1_NON}")


def a_overflow():
    e("A_OVER:")
    srd(S_OVF, 18, 19, 256 * OVF_STRIDE, WS_OVF)
    e("    s_lshl_b32 s62, s2, 15")
    for k in range(4):
        e(f"    s_mov_b64 exec, s[{52+2*k}:{53+2*k}]")
        e(f"    s_cbranch_execz A_OV{k}")
        e(f"    ds_add_rtn_u32 v3, v6, v1 offset:{K1_CNT+K1_OVC}")
        e(f"    v_mov_b32 v4, v{16+k}")
        e(f"    v_mov_b32 v5, v{12+k}")
        e("    s_waitcnt lgkmcnt(0)")
        e(f"    v_cmp_gt_u32 vcc, {NINL}, v3")
        e("    v_lshlrev_b32 v3, 3, v3")
        e("    s_andn2_b64 s[76:77], exec, vcc")
        e("    s_mov_b64 exec, vcc")
        e(f"    ds_write_b64 v3, v[4:5] offset:{K1_OVT}")
        e("    s_mov_b64 exec, s[76:77]")
        e(f"    s_cbranch_execz A_OV{k}")
        e(f"    buffer_store_dwordx2 v[4:5], v3, {R(S_OVF)}, s62 offen {SC}")
        e("    s_waitcnt vmcnt(0)")
        e(f"A_OV{k}:")
    e("    s_branch A_OUT")


def setup1():
    e("    s_and_b32 s29, s2, 7")
    e("    s_and_b32 s27, s29, 3")
    e("    s_mul_i32 s27, s27, 12502")
    if I("roff", 0):
        e(f"    s_add_u32 s27, s27, {N - I('roff', 0)}")
        e(f"    s_cmp_ge_u32 s27, {N}")
        e(f"    s_cselect_b32 s76, {N}, 0")
        e("    s_sub_u32 s27, s27, s76")
    e("    s_sub_u32 s27, 0x10000, s27")
    e("    s_lshr_b32 s30, s29, 1")
    e("    s_lshl_b32 s30, s30, 15")
    e("    s_and_b32 s31, s29, 1")
    e("    s_lshl_b32 s31, s31, 6")
    e("    s_add_u32 s30, s30, s31")
    e(f"    s_add_u32 s30, s30, {WS_OVT}")
    e("    s_add_u32 s31, s30, 16384")
    e("    s_lshl_b32 s29, s29, 12")
    e("    s_lshr_b32 s26, s2, 3")
    e("    s_bfm_b32 s49, s26, 0")
    e("    s_mov_b32 s2, s65")
    e("    v_mov_b32 v99, 0xf0")
    e("    v_mov_b32 v124, 7")
    e(f"    s_mov_b32 s0, {CNTB}")
    e("    s_mov_b32 s1, 0x07060302")
    e("    s_mov_b32 s71, 0")
    e("    s_cmp_eq_u32 s3, 1")
    e(f"    s_cselect_b32 s28, {I('vr', 3)}, 0x7fff")
    if DIAG:
        e("    s_mov_b32 s48, 0")
        e("    s_mov_b64 s[50:51], 0")
    zero_b_counters((WL - CNTB) // 4)
    collect_addrs()
    srd(S_OVF, 18, 19, 256 * OVF_STRIDE, WS_OVF)
    srd(S_GAT, 4, 5, TABBYTES + 3072, -3072)
    srd(S_STO, 18, 19, H1BYTES, WS_H1)
    e("    s_mov_b64 s[20:21], s[14:15]")
    e(f"    s_mov_b32 s22, {TABBYTES}")
    e(f"    s_add_u32 s24, s18, {WS_H1 - 3072}")
    e("    s_addc_u32 s25, s19, 0")
    if I("gp", 0):
        e("    s_lshl_b32 s76, s2, 4")
        e("    s_add_u32 s76, s76, s3")
        e("    s_add_u32 s76, s76, 16")
        e("    s_mul_i32 s76, s76, 50006")
        e("    s_lshr_b32 s76, s76, 12")
        e("    v_and_b32 v8, 63, v0")
        e("    v_add_lshl_u32 v8, v8, s76, 7")


def setup2():
    e("    v_and_b32 v2, 63, v0")
    e("    v_bfe_u32 v3, v2, 4, 1")
    e("    v_cmp_eq_u32 s[16:17], 1, v3")
    e("    v_xor_b32 v22, v3, v10")
    e("    v_lshlrev_b32 v83, 4, v22")
    e("    v_add_u32 v80, 3072, v83")
    e("    v_add_u32 v82, 1024, v83")
    e("    v_xor_b32 v83, 64, v83")
    e("    v_add_u32 v81, 2048, v83")
    e("    v_and_b32 v92, 15, v0")
    e("    v_lshrrev_b32 v11, 4, v2")
    e("    v_bfe_u32 v20, v2, 2, 2")
    e("    v_and_b32 v21, 3, v2")
    e("    v_lshl_add_u32 v84, v11, 3, v20")
    e("    v_lshlrev_b32 v84, 7, v84")
    e("    v_lshrrev_b32 v20, 1, v20")
    e("    v_lshl_or_b32 v20, v3, 2, v20")
    e("    v_xor_b32 v20, v20, v21")
    e("    v_lshl_add_u32 v84, v20, 4, v84")
    e("    v_and_b32 v22, 1, v21")
    e("    s_lshl_b32 s76, s3, 12")
    e("    v_lshl_add_u32 v84, v22, 3, v84")
    e("    s_mov_b32 m0, s76")
    e(f"    v_add_u32 v122, {WL}, v84")
    e("    v_add_u32 v84, s76, v84")
    e(f"    s_mul_i32 s76, s3, {TSTR}")
    e("    v_xor_b32 v85, 8, v84")
    e("    v_xor_b32 v86, 64, v84")
    e("    v_xor_b32 v87, 72, v84")
    e(f"    s_add_u32 s76, s76, {LISTS}")
    e("    v_lshrrev_b32 v22, 3, v2")
    e("    v_lshl_add_u32 v88, v22, 2, s76")
    e("    v_lshl_add_u32 v123, v2, 2, s76")
    e(f"    s_add_u32 s76, s76, {CAPT*4}")
    e("    v_lshl_add_u32 v89, v11, 5, s76")
    e("    v_sub_u32 v95, 0, v21")
    e("    v_sub_u32 v96, 1, v21")
    e("    v_sub_u32 v97, 2, v21")
    e("    v_ashrrev_i32 v95, 31, v95")
    e("    v_ashrrev_i32 v96, 31, v96")
    e("    v_ashrrev_i32 v97, 31, v97")
    e("    v_lshrrev_b32 v22, 2, v2")
    e(f"    v_mul_u32_u24 v98, {TSTR}, v22")
    e(f"    v_add_u32 v98, {LISTS}, v98")
    e("    v_lshl_add_u32 v90, v2, 4, s0")
    e("    s_lshl_b32 s76, s2, 4")
    e("    s_add_u32 s76, s76, s3")
    e("    s_mul_i32 s77, s76, 50006")
    e("    s_lshr_b32 s77, s77, 12")
    e("    v_subrev_u32 v2, s77, v92")
    e("    v_and_b32 v2, 15, v2")
    e("    v_add_u32 v2, s77, v2")
    e(f"    v_mul_u32_u24 v3, {TM}, v2")
    e("    v_lshrrev_b32 v3, 16, v3")
    e("    v_cmp_eq_u32 s[14:15], s76, v3")
    e("    v_lshlrev_b32 v2, 7, v2")
    e("    v_lshl_add_u32 v121, v11, 4, v2")


def setup3():
    e("    s_mov_b64 s[12:13], 0")
    e("    s_cmp_lt_u32 s3, 12")
    e("    s_cbranch_scc1 S_DONE")
    e("    s_waitcnt vmcnt(2)")
    e("    v_cmp_eq_u32 vcc, v112, v115")
    e("    v_cmp_eq_u32 s[76:77], v113, v115")
    e("    v_lshlrev_b32 v3, 16, v114")
    e("    v_and_b32 v2, 255, v0")
    e("    v_or_b32 v113, v3, v113")
    e("    s_and_b64 s[12:13], s[66:67], vcc")
    e("    s_and_b64 vcc, s[12:13], s[76:77]")
    e("    s_andn2_b64 s[12:13], s[12:13], s[76:77]")
    e("    v_lshlrev_b32 v2, 2, v2")
    e("    v_cndmask_b32 v3, 0, v3, vcc")
    e(f"    v_add_u32 v2, {SELFN}, v2")
    e("    ds_write_b32 v2, v3")
    e("    s_cbranch_scc0 S_NT")
    decode_key(113, 0, 0, 6)
    decode_data(113, 0, 0, 6)
    e("S_NT:")
    e("    s_cmp_eq_u32 s3, 12")
    e("    s_cbranch_scc1 S_DONE")
    e(f"    v_subrev_u32 v2, {13*64}, v0")
    e("    v_bfe_u32 v3, v2, 4, 1")
    e("    v_bfe_u32 v20, v2, 6, 1")
    e("    v_lshl_or_b32 v3, v20, 2, v3")
    e("    v_cmp_gt_u32 vcc, 128, v2")
    e("    v_xor_b32 v2, v2, v3")
    e("    v_lshlrev_b32 v2, 4, v2")
    e(f"    v_add_u32 v2, {WL}, v2")
    e("    v_xor_b32 v3, 64, v2")
    e("    s_mov_b32 exec_lo, 0xaaaaaaaa")
    e("    s_mov_b32 exec_hi, exec_lo")
    for b in (100, 104, 108):
        e(f"    v_swap_b32 v{b}, v{b+2}")
        e(f"    v_swap_b32 v{b+1}, v{b+3}")
    e("    s_mov_b64 exec, -1")
    e("    ds_write_b128 v2, v[100:103]")
    e("    ds_write_b128 v3, v[104:107] offset:3072")
    e("    s_and_saveexec_b64 s[76:77], vcc")
    e("    ds_write_b128 v2, v[108:111] offset:6144")
    e("    s_mov_b64 exec, -1")
    e("S_DONE:")
    stamp("s_done")


def barrier_addrs():
    e("    s_lshr_b32 s76, s2, 2")
    e("    s_lshl_b32 s76, s76, 7")
    e("    s_and_b32 s77, s2, 3")
    e("    s_lshl_b32 s77, s77, 2")
    e("    s_add_u32 s76, s76, s77")
    e(f"    s_add_u32 s76, s76, {WS_FLAG}")
    e("    v_lshlrev_b32 v2, 13, v0")
    e("    s_getreg_b32 s77, hwreg(HW_REG_XCC_ID, 0, 2)")
    e("    s_lshl_b32 s77, s77, 14")
    e("    s_add_u32 s77, s77, s80")
    e(f"    s_add_u32 s77, s77, {WS_FLAG}")
    e("    v_lshlrev_b32 v8, 7, v0")


COMMON = [0, 1, 2, 3, 4, 5]
RARE = [6, 7]
ACT = ["s[62:63]", "s[10:11]"]
WREG = [40, 44, 48, 52, 56, 60, 28, 116]


def w_frags():
    e("    v_xor_b32 v5, 8, v122")
    e("    v_xor_b32 v6, 64, v122")
    e("    v_xor_b32 v7, 72, v122")
    for s_ in range(2):
        for t in range(4):
            for u in range(2):
                r = WREG[s_ * 4 + t] + 2 * u
                e(f"    ds_read_b64_tr_b16 v[{r}:{r+1}], v{4+t if t else 122} offset:{4096*s_ + 512*u}")


def load_headers():
    e(f"    buffer_load_dwordx2 v[116:117], v93, {R(S_WS)}, s30 offen {SC}")
    e(f"    buffer_load_dwordx2 v[118:119], v93, {R(S_WS)}, s31 offen {SC}")


def phase_b():
    e("COLLECT:")
    load_headers()
    GP = I("gp", 0)
    if GP:
        e(f"    s_mov_b64 exec, {(1 << GP) - 1}")
        e(f"    buffer_load_dword v91, v8, {R(S_GAT)}, 0 offen offset:3072")
        e("    s_mov_b64 exec, -1")
    e("    s_mov_b32 s68, s29")
    e(f"    s_add_u32 s69, s68, {128*32768}")
    e(f"    s_mov_b32 s75, {SPINMAX}")
    e("    v_cmp_gt_u32 s[8:9], 4, v10")
    if SP == 1:
        setup2()
    e("    s_waitcnt vmcnt(%d)" % (1 if GP else 0))
    e("C_CHK2:")
    e("    v_cmp_ne_u32_sdwa vcc, v117, v120 src0_sel:WORD_1 src1_sel:DWORD")
    e("    v_cmp_ne_u32_sdwa s[76:77], v119, v120 src0_sel:WORD_1 src1_sel:DWORD")
    e("    v_mov_b32_dpp v4, v116 quad_perm:[3,3,3,3] row_mask:0xf bank_mask:0xf")
    e("    v_mov_b32_dpp v5, v118 quad_perm:[3,3,3,3] row_mask:0xf bank_mask:0xf")
    e("    s_or_b64 vcc, vcc, s[76:77]")
    e("    s_cbranch_scc1 C_RETRY2")
    e("C_OK2:")
    stamp("b_gate")
    e("    v_mov_b32_dpp v4, v4 row_half_mirror row_mask:0xf bank_mask:0x5")
    e("    v_mov_b32_dpp v5, v5 row_half_mirror row_mask:0xf bank_mask:0x5")
    for i in range(2):
        e(f"    v_and_b32 v2, s49, v{4+i}")
        e(f"    v_bfe_u32 v3, v{4+i}, s26, 1")
        e("    v_bcnt_u32_b32 v2, v2, s26")
        e("    v_cmp_eq_u32 vcc, 1, v3")
        e(f"    v_lshl_add_u32 v{6+i}, v2, 6, v9")
        e("    s_or_b64 exec, vcc, s[8:9]")
        e(f"    buffer_load_dwordx4 v[{12+4*i}:{15+4*i}], v{6+i}, {R(S_WS)}, s{68+i} offen {SC}")
        e(f"    s_mov_b64 {ACT[i]}, exec")
        e("    s_mov_b64 exec, -1")
    stamp("b_iss")
    if I("pc", 1):
        e("    s_setprio 0")
    if SP >= 1:
        if SP == 2:
            setup2()
        e("    s_cmp_lg_u32 s71, 0")
        e("    s_cbranch_scc1 LATE_D")
        setup3()
        e("LATE_D:")
    e("    v_and_b32 v117, 0xffff, v117")
    e("    v_and_b32 v119, 0xffff, v119")
    e(f"    v_mul_u32_u24 v2, {TM}, v117")
    e(f"    v_mul_u32_u24 v3, {TM}, v119")
    e("    v_cmp_eq_u32 s[8:9], 7, v10")
    e(f"    s_mov_b32 s76, {0xf000 + NINL}")
    e("    v_cmp_lt_u32 s[72:73], s76, v117")
    e("    v_cmp_lt_u32 vcc, s76, v119")
    e("    v_lshrrev_b32 v2, 20, v2")
    e("    v_lshrrev_b32 v3, 20, v3")
    e("    v_cmp_eq_u32 s[4:5], s2, v2")
    e("    v_cmp_eq_u32 s[6:7], s2, v3")
    e("    s_and_b64 s[72:73], s[72:73], s[8:9]")
    e("    s_and_b64 vcc, vcc, s[8:9]")
    e("    s_lshr_b64 s[72:73], s[72:73], 1")
    e("    s_or_b64 s[72:73], s[72:73], vcc")
    e(f"    s_mov_b64 {PEND(7)}, 0")
    e("    s_movk_i32 s70, 0xffff")
    e(f"    s_mov_b64 {PEND(6)}, s[12:13]")
    e("    s_mov_b64 exec, s[12:13]")
    e("    s_cbranch_execz C_NT")
    e("    ds_add_rtn_u32 v38, v46, v1")
    e("C_NT:")
    for i in range(2):
        base = 12 + 4 * i
        e(f"    s_mov_b64 exec, {ACT[i]}")
        e(f"    s_waitcnt vmcnt({1-i})")
        e(f"C_CHK{i}:")
        e(f"    v_cmp_ne_u32_sdwa vcc, v{base+3}, v127 src0_sel:BYTE_3 src1_sel:DWORD")
        e(f"    s_cbranch_vccnz C_RETRY{i}")
        e(f"C_OK{i}:")
        stamp("b_lines" if i == 0 else "b_lines1")
        for k in range(3):
            e(f"    v_cmp_ne_u16 {PEND(3*i+k)}, s70, v{base+k}")
        if i == 1 and EARLY:
            own_x()
        for k in range(3):
            decode_key(base + k, base + 3, k, 3 * i + k)
        for k in range(3):
            s_ = 3 * i + k
            e(f"    s_mov_b64 exec, {PEND(s_)}")
            e(f"    ds_add_rtn_u32 v{32+s_}, v{40+s_}, v1")
    e("    s_mov_b64 exec, -1")
    if not I("ddl", 1):
        for i in range(2):
            base = 12 + 4 * i
            for k in range(3):
                decode_data(base + k, base + 3, k, 3 * i + k)
    else:
        e("    s_or_b32 s71, s71, 32")
    e("    s_mov_b64 s[68:69], 0")
    e("    s_or_b64 s[76:77], s[4:5], s[6:7]")
    e("    s_or_b64 s[76:77], s[76:77], s[72:73]")
    e("    s_cbranch_scc1 EXTRA")
    e("CDONE:")
    e("    s_lshl_b32 s75, s3, 2")
    e("    s_add_u32 s75, s75, 3")
    e("    s_waitcnt lgkmcnt(0)")
    stamp("b_pre1")
    e("    s_barrier")
    stamp2("b_bar1", "")
    e("    ds_read_b128 v[4:7], v90")
    if not EARLY:
        own_x()
    e("    s_cmp_lg_u32 s3, 15")
    e("    s_cbranch_scc1 PT_D")
    e("    s_lshl_b32 s76, s2, 8")
    e(f"    s_add_u32 s76, s76, {WS_FLAG}")
    e("    v_lshlrev_b32 v2, 7, v92")
    e("    s_mov_b64 exec, 3")
    e(f"    buffer_load_dword v91, v2, {R(S_WS)}, s76 offen sc1")
    e("    s_mov_b64 exec, -1")
    e("PT_D:")
    if I("ddl", 1):
        e("    s_bitcmp0_b32 s71, 5")
        e("    s_cbranch_scc1 DD_D")
        e("    s_andn2_b32 s71, s71, 32")
        for i in range(2):
            base = 12 + 4 * i
            for k in range(3):
                decode_data(base + k, base + 3, k, 3 * i + k)
        e("DD_D:")
    e("    s_waitcnt lgkmcnt(0)")
    e("    v_add_u32 v5, v4, v5")
    e("    v_add3_u32 v7, v5, v6, v7")
    e("    v_add_u32 v6, v5, v6")
    e("    s_nop 0")
    e("    v_and_b32_dpp v28, v7, v95 quad_perm:[0,0,0,0] row_mask:0xf bank_mask:0xf")
    e("    v_and_b32_dpp v29, v7, v96 quad_perm:[1,1,1,1] row_mask:0xf bank_mask:0xf")
    e("    v_and_b32_dpp v30, v7, v97 quad_perm:[2,2,2,2] row_mask:0xf bank_mask:0xf")
    e("    v_add3_u32 v28, v28, v29, v30")
    e("    v_add_u32 v7, v28, v7")
    e("    v_lshl_add_u32 v28, v28, 2, v98")
    e(f"    v_cmp_lt_u32 vcc, {CAPT}, v7")
    e("    v_lshl_add_u32 v29, v4, 2, v28")
    e("    v_lshl_add_u32 v30, v5, 2, v28")
    e("    v_lshl_add_u32 v31, v6, 2, v28")
    e("    v_readlane_b32 s74, v7, s75")
    e("    ds_write_b128 v90, v[28:31] offset:1024")
    e(f"    s_or_b64 s[76:77], {PEND(6)}, {PEND(7)}")
    e("    s_cbranch_scc0 P_NR")
    for s in RARE:
        e(f"    s_mov_b64 exec, {PEND(s)}")
        e(f"    ds_read_b32 v{20+s}, v{40+s} offset:1024")
    e("P_NR:")
    for s in COMMON:
        e(f"    s_mov_b64 exec, {PEND(s)}")
        e(f"    ds_read_b32 v{20+s}, v{40+s} offset:1024")
    e(f"    s_min_u32 s74, s74, {CAPT}")
    e("    s_cbranch_vccnz SLOWW")
    for s in COMMON:
        e(f"    s_mov_b64 exec, {PEND(s)}")
        e(f"    s_waitcnt lgkmcnt({len(COMMON)-1})")
        e(f"    v_lshl_add_u32 v{20+s}, v{32+s}, 2, v{20+s}")
        e(f"    ds_write2st64_b32 v{20+s}, v{48+s}, v{56+s} offset0:0 offset1:5")
    e("    s_cmp_eq_u64 s[76:77], 0")
    e("    s_cbranch_scc1 P_NW")
    for s in RARE:
        e(f"    s_mov_b64 exec, {PEND(s)}")
        e(f"    v_lshl_add_u32 v{20+s}, v{32+s}, 2, v{20+s}")
        e(f"    ds_write2st64_b32 v{20+s}, v{48+s}, v{56+s} offset0:0 offset1:5")
    e("P_NW:")
    for s in range(8):
        e(f"    s_mov_b64 {PEND(s)}, 0")
    e("WDONE:")
    e("    s_sub_u32 s76, 0, s74")
    e("    s_and_b32 s76, s76, 31")
    e("    s_bfm_b64 exec, s76, 0")
    e("    s_lshl_b32 s77, s74, 2")
    e("    v_add_u32 v2, s77, v123")
    e(f"    v_mov_b32 v3, {PADV}")
    e("    ds_write2st64_b32 v2, v3, v3 offset0:0 offset1:5")
    e("    s_mov_b64 exec, -1")
    e(f"    v_mov_b32 v4, {MORE}")
    e("    s_lshl_b32 s76, s3, 6")
    e(f"    s_add_u32 s76, s76, {SELFN}")
    e("    v_lshl_add_u32 v5, v92, 2, s76")
    e("    ds_read_b32 v126, v5")
    e("    s_waitcnt lgkmcnt(0)")
    e("    s_barrier")
    stamp2("b_bar2", "")
    e("    ds_read_b32 v8, v4")


def main_loop():
    def next_k():
        if I("kmin", 0):
            e("    s_lshl_b32 s11, s10, 2")
            e("    s_sub_i32 s8, s9, s11")
            e("    s_add_i32 s8, s8, 4")
            e(f"    s_max_i32 s8, s8, {I('kmin', 0)}")
            e("    s_min_i32 s8, s8, 4")
        elif I("krn", 0):
            e("    s_mov_b32 s8, 1")
            e("    s_lshl_b32 s76, s9, 2")
            e(f"    s_mul_i32 s11, s10, {4 + I('krn', 0)}")
            e("    s_lshl_b32 s77, s10, 2")
            e("    s_cmp_ge_i32 s76, s11")
            e("    s_addc_u32 s8, s8, 0")
            e("    s_add_i32 s11, s11, s77")
            e("    s_cmp_ge_i32 s76, s11")
            e("    s_addc_u32 s8, s8, 0")
            e("    s_add_i32 s11, s11, s77")
            e("    s_cmp_ge_i32 s76, s11")
            e("    s_addc_u32 s8, s8, 0")
        elif I("kfl", 1):
            e("    s_mov_b32 s8, 1")
            e("    s_lshl_b32 s11, s10, 1")
            e("    s_cmp_ge_i32 s9, s11")
            e("    s_addc_u32 s8, s8, 0")
            e("    s_add_i32 s11, s11, s10")
            e("    s_cmp_ge_i32 s9, s11")
            e("    s_addc_u32 s8, s8, 0")
            e("    s_add_i32 s11, s11, s10")
            e("    s_cmp_ge_i32 s9, s11")
            e("    s_addc_u32 s8, s8, 0")
        else:
            e("    s_mov_b32 s8, 1")
            e("    s_cmp_gt_i32 s9, s10")
            e("    s_addc_u32 s8, s8, 0")
            e("    s_lshl_b32 s11, s10, 1")
            e("    s_cmp_gt_i32 s9, s11")
            e("    s_addc_u32 s8, s8, 0")
            e("    s_add_i32 s11, s11, s10")
            e("    s_cmp_gt_i32 s9, s11")
            e("    s_addc_u32 s8, s8, 0")
        e("    s_min_i32 s8, s8, s9")
        e("    s_sub_i32 s9, s9, s8")
        e("    s_sub_i32 s10, s10, 1")
        e("    s_lshl_b32 s11, s8, 5")

    def read_recs(a, b, adv):
        e(f"    ds_read2_b32 v[100:101], v{a} offset0:0 offset1:8")
        e(f"    ds_read2_b32 v[102:103], v{a} offset0:16 offset1:24")
        e(f"    ds_read_b128 v[104:107], v{b}")
        e(f"    ds_read_b128 v[108:111], v{b} offset:16")
        e(f"    v_add_u32 v93, {adv}, v{a}")
        e(f"    v_add_u32 v94, {adv}, v{b}")

    def dma(i):
        e(f"    buffer_load_dwordx4 v{100+i}, {R(S_GAT)}, 0 offen offset:{1024*i} {OPT.get('gfl', '')} lds")

    def addr():
        for i in range(4):
            e(f"    v_add_u32 v{100+i}, v{100+i}, v{80+i}")

    REP = I("rep", 1)

    def remap(a, t, u):
        e(f"    v_lshrrev_b32 v{t}, 7, v{a}")
        e(f"    v_mul_u32_u24 v{t}, {TM}, v{t}")
        e(f"    v_bfe_u32 v{u}, v{a}, {I('rsh', 13)}, {I('rbits', 2)}")
        e(f"    v_bfe_u32 v{t}, v{t}, 20, 1")
        e(f"    v_cmp_le_u32 vcc, {REP}, v{u}")
        e(f"    v_xor_b32 v{t}, s81, v{t}")
        e(f"    v_and_b32 v{u}, 0xffffe000, v{a}")
        e(f"    v_cndmask_b32 v{t}, 0, v{t}, vcc")
        e(f"    v_add_u32 v{a}, v{a}, v{u}")
        e(f"    v_bfe_u32 v{u}, v{a}, 21, 1")
        e(f"    v_xor_b32 v{t}, v{t}, v{u}")
        e(f"    v_lshlrev_b32 v{t}, 13, v{t}")
        e(f"    v_xor_b32 v{t}, s80, v{t}")
        e(f"    v_xor_b32 v{a}, v{a}, v{t}")

    def rewrite_list(lbl):
        for n in range(5):
            e(f"    ds_read_b32 v{32+n}, v123 offset:{256*n}")
        for n in range(5):
            e(f"    s_waitcnt lgkmcnt(4)")
            remap(32 + n, 2, 3)
            e(f"    ds_write_b32 v123, v{32+n} offset:{256*n}")

    def build_b(w):
        for j in range(8):
            e(f"    v_bfe_i32 v{32+j}, v{104+j}, v92, {w}")
        for j in range(8):
            e(f"    v_and_b32 v{32+j}, v{32+j}, v{104+j}")
        for j in range(4):
            e(f"    v_perm_b32 v{112+j}, v{32+2*j+1}, v{32+2*j}, s1")

    def mfmas():
        for t in range(4):
            e(f"    v_mfma_f32_16x16x32_bf16 v[{64+4*t}:{67+4*t}], v[{12+4*t}:{15+4*t}], v[112:115], v[{64+4*t}:{67+4*t}]")

    global REWRITE
    REWRITE = rewrite_list
    e("MAIN:")
    e("    s_cmp_eq_u32 s74, 0")
    e("    s_cbranch_scc1 EMPTY")
    e("    s_bitcmp1_b32 s71, 0")
    e("    s_cbranch_scc1 REMAP2")
    e("MAIN1:")
    read_recs(88, 89, 128)
    e("    s_waitcnt lgkmcnt(2)")
    addr()
    e("MAIN2:")
    PM = I("pm", 3)
    if PM == 1:
        prio_by_age("PRIOD")
    if PM == 2:
        e("    s_cmp_lt_u32 s3, 8")
        e("    s_cbranch_scc1 PRIOE")
        e("    s_setprio 1")
        e("PRIOE:")
    for i in range(4):
        dma(i)
    if PM in (0, 2):
        prio_by_age("PRIOD")
    e("    s_add_u32 s9, s74, 7")
    e("    s_lshr_b32 s9, s9, 3")
    e("    s_sub_i32 s9, s9, 4")
    e("    s_max_i32 s9, s9, 0")
    e(f"    s_mov_b32 s10, {NB-1}")
    next_k()
    e("    s_waitcnt lgkmcnt(0)")
    build_b("1")
    read_recs(93, 94, "s11")
    e("    s_bitcmp1_b32 s71, 3")
    e("    s_cbranch_scc1 LOOP")
    e("    s_or_b32 s71, s71, 8")
    if I("wearly", 0):
        e("    v_readfirstlane_b32 s75, v8")
        e("    s_cmp_lg_u32 s75, 0")
        e("    s_cbranch_scc1 NOWF")
        e("    s_or_b32 s71, s71, 16")
        w_frags()
        e("NOWF:")
    own_addr("PRB_M")
    e("    s_waitcnt vmcnt(4)")
    e("PRB_M2:")
    self_init(64)
    e("LOOP:")
    e("    s_waitcnt lgkmcnt(2)")
    addr()
    e("    v_cmp_gt_u32 vcc, s8, v11")
    if PM == 4:
        prio_by_age("PRIOD")
    e("    s_waitcnt vmcnt(0)")
    for t in range(4):
        for u in range(2):
            e(f"    ds_read_b64_tr_b16 v[{12+4*t+2*u}:{13+4*t+2*u}], v{84+t} offset:{512*u}")
    e("    s_cmp_eq_u32 s8, 0")
    e("    v_cndmask_b32 v91, 0, v1, vcc")
    e("    s_waitcnt lgkmcnt(0)")
    e("    s_cbranch_scc1 LAST")
    dma(0)
    e("    s_cmp_eq_u32 s8, 1")
    e("    s_cbranch_scc1 DMAD")
    dma(1)
    e("    s_cmp_eq_u32 s8, 2")
    e("    s_cbranch_scc1 DMAD")
    dma(2)
    e("    s_cmp_eq_u32 s8, 3")
    e("    s_cbranch_scc1 DMAD")
    dma(3)
    e("DMAD:")
    e("    s_cmp_eq_u32 s10, s28")
    e("    s_cbranch_scc1 VOTES")
    e("VOTED:")
    if PM == 4:
        e("    s_setprio 0")
    mfmas()
    next_k()
    build_b("v91")
    read_recs(93, 94, "s11")
    e("    s_branch LOOP")
    e("LAST:")
    mfmas()
    e("MAINDONE:")
    e(f"    v_mov_b32 v7, {CFLAG}")
    e("    ds_read_b32 v7, v7")
    e("    v_readfirstlane_b32 s75, v8")
    e("    s_cmp_lg_u32 s75, 0")
    e("    s_cbranch_scc1 AGAIN")

    stamp2("h1_done", "h2_done")
    e("    s_nop 2")
    for t in range(4):
        e(f"    v_cvt_pk_bf16_f32 v{12+2*t}, v{64+4*t}, v{65+4*t}")
        e(f"    v_cvt_pk_bf16_f32 v{13+2*t}, v{66+4*t}, v{67+4*t}")
    e("    s_mov_b64 exec, s[16:17]")
    e("    v_swap_b32 v12, v14")
    e("    v_swap_b32 v13, v15")
    e("    v_swap_b32 v16, v18")
    e("    v_swap_b32 v17, v19")
    e("    s_bitcmp1_b32 s71, 0")
    e("    s_cbranch_scc1 FINAL")
    e("    s_mov_b64 exec, -1")
    e("    s_waitcnt lgkmcnt(0)")
    e("    v_readfirstlane_b32 s80, v7")
    e("    s_and_b32 s81, s2, 1")
    e("    s_cmp_eq_u32 s80, 0")
    e("    s_cbranch_scc1 E_NOC")
    e("E_HAVEC:")
    e("    s_xor_b32 s80, s80, s81")
    e("    s_and_b32 s80, s80, 1")
    e("    s_lshl_b32 s80, s80, 13")
    e("    v_xor_b32 v9, s80, v9")
    e("    s_mov_b64 exec, s[14:15]")
    e(f"    buffer_store_dwordx4 v[12:15], v9, {R(S_STO)}, 0 offen {SC}")
    e(f"    buffer_store_dwordx4 v[16:19], v9, {R(S_STO)}, 0 offen offset:64 {SC}")
    e("    v_xor_b32 v20, 0x2000, v9")
    e("    s_and_b64 exec, exec, s[78:79]")
    e("    s_cbranch_execz E_NOREP")
    e(f"    buffer_store_dwordx4 v[12:15], v20, {R(S_STO)}, 0 offen {SC}")
    e(f"    buffer_store_dwordx4 v[16:19], v20, {R(S_STO)}, 0 offen offset:64 {SC}")
    e("E_NOREP:")
    e("    s_setprio 0")
    e("    s_mov_b64 exec, -1")
    stamp("h1_st")
    def book():
        e(f"    s_mov_b64 s[{S_GAT}:{S_GAT+1}], s[{S_GH}:{S_GH+1}]")
        e(f"    s_mov_b32 s{S_GAT+2}, {H1BYTES + 3072}")
        e("    s_or_b32 s71, s71, 1")
        self_init(12)
        e("    s_bitcmp1_b32 s71, 1")
        e("    s_cbranch_scc1 E_IRR")
        if not I("wearly", 0):
            e("    s_or_b32 s71, s71, 16")
            w_frags()
        rewrite_list("RW1")
        read_recs(88, 89, 128)
        e("    s_waitcnt lgkmcnt(2)")
        addr()
        e("E_BAR:")
    BL = I("booklate", 1)
    if not BL:
        book()
    barrier_addrs()
    e("    s_waitcnt vmcnt(0)")
    stamp("g2_ack")
    e("    s_barrier")
    e("    s_cmp_lg_u32 s3, 0")
    e("    s_cbranch_scc1 G2_NOF")
    stamp("g2_arr")
    e("    s_mov_b64 exec, 0xff")
    e(f"    buffer_store_dword v125, v2, {R(S_WS)}, s76 offen sc1")
    e("G2_NOF:")
    def own_h1():
        e("    s_mov_b32 exec_hi, 0")
        e("    s_and_b32 exec_lo, s14, 0xffff")
        e(f"    buffer_load_dword v91, v9, {R(S_STO)}, 0 offen sc1")
        e("    s_mov_b64 exec, -1")
    OL = I("ownlate", 0)
    if OL == 0:
        own_h1()
    e("    s_mov_b64 exec, -1")
    e("    s_cmp_lg_u32 s3, 0")
    e("    s_cbranch_scc1 G2_NP")
    e("    s_setprio 3")
    e("G2_NP:")
    book()
    if OL == 1:
        own_h1()
    if OL == 2:
        e("    v_mov_b32 v2, 0")
        e("    s_lshr_b32 s76, s2, 2")
        e("    s_lshl_b32 s76, s76, 7")
        e("    s_add_u32 s76, s76, s77")
        e("    s_and_b32 s75, s2, 3")
        e("    s_lshl_b32 s75, s75, 2")
        e("    s_add_u32 s76, s76, s75")
        e(f"    s_mov_b32 s75, {SPINMAX}")
        e("G2_P0:")
        e(f"    buffer_load_dword v4, v2, {R(S_WS)}, s76 offen sc1")
        e("    s_sub_u32 s75, s75, 1")
        e("    s_cmp_eq_u32 s75, 0")
        e("    s_waitcnt vmcnt(0)")
        e("    s_cbranch_scc1 G2_P1")
        e("    v_cmp_ne_u32 vcc, v4, v125")
        e("    s_cbranch_vccnz G2_P0")
        e("G2_P1:")
        own_h1()
    e("    s_cmp_lg_u32 s3, 0")
    e("    s_cbranch_scc1 G2_WAIT")
    e(f"    s_mov_b32 s75, {SPINMAX}")
    e("G2_POLL:")
    e(f"    buffer_load_dwordx4 v[4:7], v8, {R(S_WS)}, s77 offen sc1")
    e("    s_sub_u32 s75, s75, 1")
    e("    s_cmp_eq_u32 s75, 0")
    e("    s_waitcnt vmcnt(0)")
    e("    s_cbranch_scc1 G2_WAIT")
    e("    v_xor_b32 v4, v4, v125")
    e("    v_xor_b32 v5, v5, v125")
    e("    v_xor_b32 v6, v6, v125")
    e("    v_xor_b32 v7, v7, v125")
    e("    v_or3_b32 v4, v4, v5, v6")
    e("    v_or_b32 v4, v4, v7")
    e("    v_cmp_ne_u32 vcc, 0, v4")
    if I("shrink", 1):
        e("    s_and_b64 exec, exec, vcc")
        e("    s_cbranch_scc1 G2_POLL")
    else:
        e("    s_cbranch_vccnz G2_POLL")
    e("G2_WAIT:")
    e("    s_mov_b64 exec, -1")
    if I("pp", 1):
        e("    s_setprio 0")
    e("    v_mov_b32 v8, 0")
    e("    s_and_b32 s76, s71, 2")
    e("    s_cselect_b32 s76, 0, s74")
    e("    s_cmp_lg_u32 s76, 0")
    e("    s_barrier")
    stamp("g2_exit")
    e("    s_cbranch_scc1 MAIN2")
    e("    s_bitcmp0_b32 s71, 1")
    e("    s_cbranch_scc1 MAIN")
    e("    s_branch COLLECT")
    e("FINAL:")
    MIX = I("mix", 0)
    if MIX:
        e("    s_mov_b64 exec, 1")
        e(f"    v_mov_b32 v2, {MORE+4}")
        e("    ds_add_rtn_u32 v2, v2, v1")
    e("    s_mov_b64 exec, -1")
    e("    s_bitcmp0_b32 s71, 4")
    e("    s_cbranch_scc1 F_GETW")
    e("F_HAVEW:")
    for t in range(4):
        w = WREG[t]
        e(f"    v_mfma_f32_16x16x32_bf16 v[{64+4*t}:{67+4*t}], v[{w}:{w+3}], v[12:15], 0")
    for t in range(4):
        w = WREG[4 + t]
        e(f"    v_mfma_f32_16x16x32_bf16 v[{64+4*t}:{67+4*t}], v[{w}:{w+3}], v[16:19], v[{64+4*t}:{67+4*t}]")
    e("    s_nop 4")
    for t in range(4):
        if t:
            e("    s_nop 1")
        e(f"    v_cvt_pk_bf16_f32 v{12+2*t}, v{64+4*t}, v{65+4*t}")
        e(f"    v_cvt_pk_bf16_f32 v{13+2*t}, v{66+4*t}, v{67+4*t}")
    if MIX:
        e("    s_waitcnt lgkmcnt(0)")
        e("    v_readfirstlane_b32 s76, v2")
        e("    s_mov_b64 exec, s[14:15]")
        e(f"    s_cmp_lt_u32 s76, {MIX}")
        e("    s_cbranch_scc1 F_WT")
        e(f"    buffer_store_dwordx4 v[12:15], v121, {R(S_OUT)}, 0 offen {OPT.get('mixf', '')}")
        e(f"    buffer_store_dwordx4 v[16:19], v121, {R(S_OUT)}, 0 offen offset:64 {OPT.get('mixf', '')}")
        e("    s_branch F_ST")
        e("F_WT:")
    e("    s_mov_b64 exec, s[14:15]")
    e(f"    buffer_store_dwordx4 v[12:15], v121, {R(S_OUT)}, 0 offen {ST_OUT}")
    e(f"    buffer_store_dwordx4 v[16:19], v121, {R(S_OUT)}, 0 offen offset:64 {ST_OUT}")
    e("F_ST:")
    stamp_out()
    e("END:")
    e("    s_endpgm")


def out_of_line():
    for i in range(2):
        base = 12 + 4 * i
        e(f"C_RETRY{i}:")
        e("    s_lshr_b64 s[76:77], vcc, 1")
        e("    s_or_b64 vcc, vcc, s[76:77]")
        e("    s_lshr_b64 s[76:77], vcc, 2")
        e("    s_or_b64 vcc, vcc, s[76:77]")
        e("    s_and_b32 vcc_lo, vcc_lo, 0x11111111")
        e("    s_and_b32 vcc_hi, vcc_hi, 0x11111111")
        e("    s_mul_i32 exec_lo, vcc_lo, 15")
        e("    s_mul_i32 exec_hi, vcc_hi, 15")
        if I("rbo", 0):
            e(f"    s_sleep {I('rbo', 0)}")
        e(f"    buffer_load_dwordx4 v[{base}:{base+3}], v{6+i}, {R(S_WS)}, s{68+i} offen {SC}")
        e(f"    s_mov_b64 exec, {ACT[i]}")
        e("    s_sub_u32 s75, s75, 1")
        e("    s_cmp_eq_u32 s75, 0")
        e("    s_waitcnt vmcnt(0)")
        e(f"    s_cbranch_scc0 C_CHK{i}")
        e("    s_mov_b32 s75, 1000")
        if DIAG:
            e(f"    s_or_b32 s48, s48, {1 << i}")
            e("    s_mov_b64 s[50:51], vcc")
        e(f"    s_branch C_OK{i}")
    e("C_RETRY2:")
    if I("bo", 0):
        e(f"    s_sleep {I('bo', 0)}")
    load_headers()
    e("    s_sub_u32 s75, s75, 1")
    e("    s_cmp_eq_u32 s75, 0")
    e("    s_waitcnt vmcnt(0)")
    e("    s_cbranch_scc0 C_CHK2")
    e("    s_mov_b32 s75, 1000")
    if DIAG:
        e("    s_or_b32 s48, s48, 4")
        e("    s_mov_b64 s[50:51], vcc")
    e("    s_branch C_OK2")
    probe()
    e("VOTES:")
    e("    s_sub_u32 s28, s28, 1")
    e("    s_bitcmp1_b32 s71, 7")
    e("    s_cbranch_scc0 VOTEL")
    e("    v_cmp_ne_u32 vcc, v4, v125")
    e("    s_cbranch_vccnz VOTEL")
    vote_count()
    e("    s_branch VOTED")
    e("VOTEL:")
    e("    s_or_b32 s71, s71, 128")
    vote_load()
    e("    s_branch VOTED")
    e("E_NOC:")
    e(f"    s_mov_b32 s75, {SPINMAX}")
    e("    s_cmp_lg_u32 s3, 1")
    e("    s_cbranch_scc1 E_SPIN")
    e("E_VP:")
    vote_load()
    e("    s_sub_u32 s75, s75, 1")
    e("    s_cmp_eq_u32 s75, 0")
    e("    s_waitcnt vmcnt(0)")
    e("    s_cbranch_scc1 E_VC")
    e("    v_cmp_ne_u32 vcc, v4, v125")
    e("    s_cbranch_vccnz E_VP")
    e("E_VC:")
    vote_count()
    e("E_SPIN:")
    e(f"    v_mov_b32 v7, {CFLAG}")
    e("    ds_read_b32 v7, v7")
    e("    s_waitcnt lgkmcnt(0)")
    e("    v_readfirstlane_b32 s80, v7")
    e("    s_cmp_eq_u32 s80, 0")
    e("    s_cbranch_scc1 E_SPIN")
    e("    s_branch E_HAVEC")
    a_overflow()
    e("AGAIN:")
    e("    s_setprio 0")
    e("    s_or_b32 s71, s71, 2")
    e("    s_barrier")
    zero_b_counters((CFLAG - CNTB) // 4)
    e("    s_waitcnt lgkmcnt(0)")
    e("    s_barrier")
    for s in range(7):
        e(f"    s_mov_b64 exec, {PEND(s)}")
        e(f"    ds_add_rtn_u32 v{32+s}, v{40+s}, v1")
    e("EXTRA:")
    for m, r in (("s[4:5]", 116), ("s[6:7]", 118)):
        e(f"    s_andn2_b64 exec, {m}, {PEND(7)}")
        e(f"    s_andn2_b64 {m}, {m}, exec")
        e(f"    s_or_b64 {PEND(7)}, {PEND(7)}, exec")
        decode_full(r, r + 1, 7)
    e("    s_mov_b64 exec, -1")
    e("    s_or_b64 s[76:77], s[4:5], s[6:7]")
    e("    s_cbranch_scc1 OVFULL")
    e("    s_mov_b32 s75, 0")
    e("OVL:")
    e("    s_cmp_lt_u32 s68, s69")
    e("    s_cbranch_scc1 OVLOAD")
    e("    s_cmp_eq_u64 s[72:73], 0")
    e("    s_cbranch_scc1 OVDONE")
    e("    s_ff1_i32_b64 s76, s[72:73]")
    e("    s_bitset0_b64 s[72:73], s76")
    e("    s_or_b32 s77, s76, 7")
    e("    v_readlane_b32 s68, v117, s77")
    e("    v_readlane_b32 s69, v119, s77")
    e("    s_bitcmp1_b32 s76, 0")
    e("    s_cselect_b32 s69, s69, s68")
    e("    s_and_b32 s69, s69, 0xfff")
    e(f"    s_min_u32 s69, s69, {CHMAX}")
    e("    s_and_b32 s77, s76, 1")
    e("    s_lshl_b32 s77, s77, 7")
    e("    s_lshr_b32 s76, s76, 3")
    e("    s_add_u32 s76, s76, s77")
    e("    s_lshl_b32 s77, s3, 3")
    e("    s_add_u32 s76, s76, s77")
    e("    s_lshl_b32 s70, s76, 15")
    e(f"    s_mov_b32 s68, {NINL}")
    e("OVLOAD:")
    e("    v_add_u32 v4, s75, v0")
    e("    v_and_b32 v4, 63, v4")
    e("    v_add_u32 v4, s68, v4")
    e("    v_lshlrev_b32 v5, 3, v4")
    e(f"    buffer_load_dwordx2 v[28:29], v5, {R(S_OVF)}, s70 offen {SC}")
    e("    s_waitcnt vmcnt(0)")
    e(f"    v_mul_u32_u24 v30, {TM}, v29")
    e("    v_lshrrev_b32 v31, 20, v30")
    e("    v_cmp_gt_u32 vcc, s69, v4")
    e("    v_cmp_eq_u32 s[76:77], s2, v31")
    e("    s_and_b64 vcc, s[76:77], vcc")
    e(f"    s_and_b64 s[76:77], vcc, {PEND(7)}")
    e("    s_cbranch_scc1 OVFULL")
    e(f"    s_or_b64 {PEND(7)}, {PEND(7)}, vcc")
    e("    s_add_u32 s68, s68, 64")
    e("    s_add_u32 s75, s75, 16")
    e("    s_mov_b64 exec, vcc")
    decode_full(28, 29, 7)
    e("    s_mov_b64 exec, -1")
    e("    s_branch OVL")
    e("OVFULL:")
    e(f"    v_mov_b32 v2, {MORE}")
    e("    ds_write_b32 v2, v1")
    e("OVDONE:")
    e(f"    s_mov_b64 exec, {PEND(7)}")
    e("    ds_add_rtn_u32 v39, v47, v1")
    e("    s_mov_b64 exec, -1")
    e("    s_branch CDONE")
    e("SLOWW:")
    e("    s_waitcnt lgkmcnt(0)")
    for s in range(8):
        e(f"    s_mov_b64 exec, {PEND(s)}")
        e(f"    v_lshl_add_u32 v{20+s}, v{32+s}, 2, v{20+s}")
        e(f"    v_subrev_u32 v3, s0, v{40+s}")
        e("    v_lshrrev_b32 v3, 6, v3")
        e(f"    v_mul_u32_u24 v3, {TSTR}, v3")
        e(f"    v_add_u32 v3, {LISTS + CAPT*4}, v3")
        e(f"    v_cmp_lt_u32 vcc, v{20+s}, v3")
        e(f"    s_andn2_b64 {PEND(s)}, exec, vcc")
        e("    s_mov_b64 exec, vcc")
        e(f"    ds_write2st64_b32 v{20+s}, v{48+s}, v{56+s} offset0:0 offset1:5")
    e("    s_mov_b64 exec, -1")
    e(f"    v_mov_b32 v3, {MORE}")
    e("    ds_write_b32 v3, v1")
    e("    s_branch WDONE")
    e("REMAP2:")
    REWRITE("RW2")
    e("    s_branch MAIN1")
    e("E_IRR:")
    e("    s_mov_b32 s70, s77")
    zero_b_counters(256)
    e("    s_mov_b32 s77, s70")
    collect_addrs()
    for i in range(4):
        e(f"    v_mov_b32 v{100+i}, {PADV}")
    e("    s_waitcnt lgkmcnt(0)")
    e("    s_branch E_BAR")
    e("EMPTY:")
    e("    s_waitcnt vmcnt(0) lgkmcnt(0)")
    e("    s_bitcmp1_b32 s71, 3")
    e("    s_cbranch_scc1 MAINDONE")
    e("    s_or_b32 s71, s71, 8")
    own_addr("PRB_E")
    self_init(64)
    e("    s_branch MAINDONE")
    e("F_GETW:")
    e("    s_waitcnt lgkmcnt(0)")
    w_frags()
    e("    s_waitcnt lgkmcnt(0)")
    e("    s_branch F_HAVEW")
    e("CODE_END:")


def body():
    e(f".globl {NAME}")
    e(".p2align 8")
    e(f".type {NAME},@function")
    e(f"{NAME}:")
    phase_a()
    setup1()
    if SP == 0:
        setup2()
        setup3()
    if I("pc", 1):
        e("    s_setprio 3")
    AK = I("ackb", 1)
    if AK == 1:
        e("    s_waitcnt vmcnt(0) lgkmcnt(0)")
    elif AK == 2:
        e("    s_waitcnt vmcnt(1) lgkmcnt(0)")
    elif AK >= 4:
        e(f"    s_cmp_ge_u32 s3, {AK}")
        e("    s_waitcnt lgkmcnt(0)")
        e("    s_cbranch_scc1 G1_NA")
        e("    s_waitcnt vmcnt(0)")
        e("G1_NA:")
    else:
        e("    s_waitcnt lgkmcnt(0)")
    stamp("g1_ack")
    e("    s_barrier")
    stamp("g1_exit")
    phase_b()
    main_loop()
    out_of_line()


def spin_kernel():
    na, nb_, mode, mult, wlo, whi = (SPIN.split(",") + ["0", "15"])[:6]
    wlo, whi = int(wlo), int(whi)
    ia, ib, mode, mult = STL.index(na), STL.index(nb_), int(mode), int(mult)
    init = "0x80000000" if mode == 0 else "0x7fffffff" if mode == 1 else "0"
    e(".globl sgc_spin_kernel")
    e(".p2align 8")
    e(".type sgc_spin_kernel,@function")
    e("sgc_spin_kernel:")
    e("    s_memrealtime s[30:31]")
    e("    s_cmp_ge_u32 s2, 1")
    e("    s_cbranch_scc1 SP_END")
    e("    s_load_dwordx8 s[12:19], s[0:1], 32")
    e("    v_lshlrev_b32 v1, 6, v0")
    e("    v_mov_b32 v4, 0x7fffffff")
    e(f"    v_mov_b32 v5, {init}")
    e("    s_mov_b32 s23, 0x20000")
    e("    s_waitcnt lgkmcnt(0)")
    srd(20, 18, 19, 1 << 20, WS_STAMP)
    e("    s_mov_b32 s24, 0")
    e("SP_RD:")
    e(f"    buffer_load_dword v2, v1, s[20:23], s24 offen offset:{4*ia}")
    e(f"    buffer_load_dword v3, v1, s[20:23], s24 offen offset:{4*ib}")
    e("    s_add_u32 s24, s24, 4096")
    e("    s_cmp_lt_u32 s24, 0x40000")
    e("    s_waitcnt vmcnt(0)")
    e("    v_subrev_u32 v2, s30, v2")
    e("    v_subrev_u32 v3, s30, v3")
    e("    v_min_i32 v4, v4, v2")
    e("    %s v5, v5, v3" % ("v_max_i32" if mode == 0 else "v_min_i32" if mode == 1 else "v_add_u32"))
    e("    s_cbranch_scc1 SP_RD")
    e("    s_mov_b32 s26, 0x7fffffff")
    e(f"    s_mov_b32 s27, {init}")
    e("    s_nop 1")
    for l in range(64):
        e(f"    v_readlane_b32 s28, v4, {l}")
        e(f"    v_readlane_b32 s29, v5, {l}")
        e("    s_min_i32 s26, s26, s28")
        if wlo <= (l & 15) <= whi:
            e("    %s s27, s27, s29" % ("s_max_i32" if mode == 0 else "s_min_i32" if mode == 1 else "s_add_u32"))
    if mode == 2:
        e("    s_ashr_i32 s27, s27, %d" % (8 + (whi - wlo + 1).bit_length() - 1))
    e("    s_sub_i32 s26, s27, s26")
    e("    s_max_i32 s26, s26, 0")
    e("    s_min_i32 s26, s26, 20000")
    e(f"    s_mul_i32 s26, s26, {mult}")
    e("    s_add_u32 s26, s26, 10000")
    e("SP_LOOP:")
    e("    s_memrealtime s[28:29]")
    e("    s_waitcnt lgkmcnt(0)")
    e("    s_sub_u32 s28, s28, s30")
    e("    s_cmp_lt_u32 s28, s26")
    e("    s_cbranch_scc1 SP_LOOP")
    e("SP_END:")
    e("    s_endpgm")


def desc(name, vg, sg):
    e(".p2align 6")
    e(f".amdhsa_kernel {name}")
    e(f"  .amdhsa_next_free_vgpr {vg}")
    e(f"  .amdhsa_next_free_sgpr {sg}")
    e(f"  .amdhsa_accum_offset {vg}")
    e("  .amdhsa_group_segment_fixed_size 0")
    e("  .amdhsa_kernarg_size 64")
    e("  .amdhsa_user_sgpr_count 2")
    e("  .amdhsa_user_sgpr_kernarg_segment_ptr 1")
    e("  .amdhsa_system_sgpr_workgroup_id_x 1")
    e(".end_amdhsa_kernel")


SPIN = OPT.get("spin")
if SPIN:
    e(f"; @launch kernel={NAME} grid=(256,1,1) block=(1024,1,1) lds={LDS}")
    e("; @launch kernel=sgc_spin_kernel grid=(1,1,1) block=(64,1,1) lds=0")
else:
    e(f"; @launch grid=(256,1,1) block=(1024,1,1) lds={LDS}")
e('.amdgcn_target "amdgcn-amd-amdhsa--gfx950"')
e(".text")
body()
if SPIN:
    spin_kernel()
e('.section .rodata,"a"')
if SPIN:
    desc("sgc_spin_kernel", 8, 40)
desc(NAME, 128, 102 if DIAG else 82)
open(OUT, "w").write("\n".join(L) + "\n")
```

```python
import sys

OUT = [a for a in sys.argv[1:] if not a.startswith("--")][0]
OPT = dict(a[2:].split("=") for a in sys.argv[1:] if a.startswith("--") and "=" in a)
NAME = "standalone__spectral_conv_sgc__graph_kernel"
DEFST = "start,a_bar2,b_bar1,b_bar2,h1_done,g2_ack,g2_arr,g2_exit,h2_done,end"
STL = OPT.get("st", DEFST if "--diag" in sys.argv else "").split(",")
STL = [s for s in STL if s]
DIAG = len(STL) > 0


def I(name, dflt):
    return int(OPT.get(name, dflt))


N = 50000
E = 850000
ET = 800000
TM = 5368
CHMAX = 13 * 256
SLOTCAP = 24
NINL = 7
WS_OVT = 8 << 20
WS_FLAG = WS_OVT + 131072
WS_VOTE = WS_FLAG + 65536
WS_H1 = 12 << 20
H1BYTES = 782 * 16384
WS_OVF = 40 << 20
OVF_STRIDE = 32768
WS_STAMP = 32 << 20
TABBYTES = N * 128
PADV = 0x40000000

K1_LS = 132
K1_CNT = 256 * K1_LS
K1_OVC = 1024
K1_DONE = 1028
K1_OVT = K1_CNT + 4096
K1_NON = K1_OVT + 64
K1_MSK = K1_NON + 16
LISTS = 65536
CAPT = 320
TSTR = CAPT * 8
CNTB = LISTS + 16 * TSTR + 256
BASES = CNTB + 1024
MORE = BASES + 1024
CFLAG = MORE + 64
WL = MORE + 128
assert WL % 128 == 0
SELFN = WL + 8192
LDS = SELFN + 1024

SC = "sc1"
ST_OUT = OPT.get("stout", "sc1")
SPINMAX = I("spinmax", 20000000)
NB = I("nb", 8)
TSH = I("tsh", 20)
ROT = I("rot", 6250)
SP = I("sp", 1)
EARLY = I("early", 0)
SEGB = I("segb", 2)

L = []


def e(s=""):
    L.append(s)


def srd(d, lo, hi, nbytes, off=0):
    if off == 0:
        e(f"    s_mov_b64 s[{d}:{d+1}], s[{lo}:{hi}]")
    elif off > 0:
        e(f"    s_add_u32 s{d}, s{lo}, {off}")
        e(f"    s_addc_u32 s{d+1}, s{hi}, 0")
    else:
        e(f"    s_sub_u32 s{d}, s{lo}, {-off}")
        e(f"    s_subb_u32 s{d+1}, s{hi}, 0")
    e(f"    s_mov_b32 s{d+2}, {nbytes}")
    e(f"    s_mov_b32 s{d+3}, s23")


S_SRC, S_DST, S_NRM, S_WS, S_OVF, S_GAT, S_STO = 20, 24, 28, 32, 36, 40, 44
S_OUT, S_GH = S_SRC, S_DST


def R(d):
    return f"s[{d}:{d+3}]"


STAMP_BASE = 82


def stamp(name):
    if name in STL:
        i = STL.index(name)
        e(f"    s_memrealtime s[{STAMP_BASE+2*i}:{STAMP_BASE+2*i+1}]")


def stamp2(n1, n2):
    if n1 in STL or n2 in STL:
        n = len(L)
        e("    s_bitcmp1_b32 s71, 0")
        e(f"    s_cbranch_scc1 ST{n}_B")
        stamp(n1)
        e(f"    s_branch ST{n}_C")
        e(f"ST{n}_B:")
        stamp(n2)
        e(f"ST{n}_C:")


def stamp_out():
    if not DIAG:
        return
    e("    s_waitcnt vmcnt(0) lgkmcnt(0)")
    stamp("end")
    e("    s_waitcnt lgkmcnt(0)")
    e("    s_mov_b64 exec, 1")
    srd(28, 18, 19, 1 << 20, WS_STAMP)
    e("    s_lshl_b32 s76, s2, 4")
    e("    s_add_u32 s76, s76, s3")
    e("    s_lshl_b32 s76, s76, 6")
    e("    v_mov_b32 v2, s76")
    for i in range(len(STL)):
        e(f"    v_mov_b32 v3, s{STAMP_BASE+2*i}")
        e(f"    buffer_store_dword v3, v2, s[28:31], 0 offen offset:{4*i}")
    e("    s_getreg_b32 s76, hwreg(HW_REG_XCC_ID)")
    e("    v_mov_b32 v3, s76")
    e("    buffer_store_dword v3, v2, s[28:31], 0 offen offset:56")
    e("    s_lshl_b32 s76, s48, 16")
    e("    s_or_b32 s76, s76, s74")
    e("    v_mov_b32 v3, s76")
    e("    buffer_store_dword v3, v2, s[28:31], 0 offen offset:60")
    e("    v_mov_b32 v3, s50")
    e("    buffer_store_dword v3, v2, s[28:31], 0 offen offset:48")
    e("    v_mov_b32 v3, s51")
    e("    buffer_store_dword v3, v2, s[28:31], 0 offen offset:52")


def PEND(s):
    return f"s[{52+2*s}:{53+2*s}]"


def prio_by_age(lbl):
    for g in range(1, 4):
        e(f"    s_cmp_lt_u32 s3, {4*g}")
        e(f"    s_cbranch_scc1 {lbl}")
        e(f"    s_setprio {g}")
    e(f"{lbl}:")


def decode_key(rec, meta, k, s):
    ca = 40 + s
    e(f"    v_add_u32 v2, s27, v{rec}")
    e(f"    v_and_b32_sdwa v3, v{meta}, v99 dst_sel:DWORD dst_unused:UNUSED_PAD src0_sel:BYTE_{k} src1_sel:DWORD")
    e("    v_bfe_u32 v2, v2, 12, 4")
    e("    v_or_b32 v2, v2, v3")
    e(f"    v_lshl_add_u32 v{ca}, v2, 2, s0")


def decode_data(rec, meta, k, s):
    d0, d1 = 48 + s, 56 + s
    e(f"    v_lshlrev_b32_sdwa v{d0}, v124, v{rec} dst_sel:DWORD dst_unused:UNUSED_PAD src0_sel:DWORD src1_sel:WORD_0")
    e(f"    v_mov_b32 v{d1}, v{rec}")
    e(f"    v_lshlrev_b16_sdwa v{d1}, v{meta}, v1 dst_sel:WORD_0 dst_unused:UNUSED_PRESERVE src0_sel:BYTE_{k} src1_sel:DWORD")


def decode_full(rec, dst, s):
    e(f"    v_mul_u32_u24 v30, {TM}, v{dst}")
    e("    v_lshrrev_b32 v30, 12, v30")
    e(f"    v_bfi_b32 v30, 15, v{dst}, v30")
    decode_key(rec, 30, 0, s)
    decode_data(rec, 30, 0, s)


def zero_b_counters(n):
    e("    v_lshlrev_b32 v2, 2, v0")
    e(f"    v_add_u32 v2, {CNTB}, v2")
    e("    v_mov_b32 v3, 0")
    e(f"    v_cmp_gt_u32 vcc, {n}, v0")
    e("    s_and_saveexec_b64 s[76:77], vcc")
    e("    ds_write_b32 v2, v3")
    e("    s_mov_b64 exec, -1")


def collect_addrs():
    e("    v_lshrrev_b32 v9, 3, v0")
    e("    v_lshlrev_b32 v93, 7, v9")
    e("    v_lshlrev_b32 v9, 15, v9")
    e("    v_lshl_add_u32 v9, v10, 4, v9")
    e("    v_lshl_add_u32 v93, v10, 3, v93")


def own_x():
    e("    s_bitcmp1_b32 s71, 3")
    e("    s_cbranch_scc1 NOOWN")
    e("    s_mov_b64 exec, s[14:15]")
    e(f"    buffer_load_dwordx4 v[64:67], v121, {R(S_GAT)}, 0 offen offset:3072")
    e(f"    buffer_load_dwordx4 v[68:71], v121, {R(S_GAT)}, 0 offen offset:3136")
    if I("xtra", 0):
        e(f"    s_mov_b64 exec, {(1 << I('xtra', 0)) - 1}")
        e(f"    s_movk_i32 s76, {196*128}")
        e(f"    buffer_load_dword v91, v121, {R(S_GAT)}, s76 offen offset:3072")
    e("NOOWN:")
    e("    s_mov_b64 exec, -1")


def own_addr(lbl):
    e(f"    v_bfe_u32 v2, v121, {I('rsh', 13)}, {I('rbits', 2)}")
    e("    v_and_b32 v9, 0xffffe000, v121")
    e(f"    v_cmp_gt_u32 s[78:79], {I('rep', 1)}, v2")
    e("    v_add_u32 v9, v9, v121")
    e("    v_lshrrev_b32 v2, 8, v9")
    e("    v_and_b32 v2, 0x2000, v2")
    e("    v_xor_b32 v9, v9, v2")
    e("    s_and_b32 s76, s26, 3")
    e("    s_or_b32 s76, s76, s3")
    e(f"    s_cbranch_scc1 {lbl}")
    e("    s_or_b32 s71, s71, %d" % (64 if lbl == "PRB_M" else 0))
    e("    s_branch PROBE")
    e(f"{lbl}:")


def probe():
    e("PROBE:")
    e("    s_lshr_b32 s76, s29, 12")
    e("    s_lshl3_add_u32 s77, s26, s76")
    e("    s_lshl_b32 s80, s77, 15")
    e("    s_xor_b32 s81, s29, 0x1000")
    e("    s_add_u32 s80, s80, s81")
    e("    s_xor_b32 s81, s80, 0x2000")
    e("    s_waitcnt lgkmcnt(0)")
    e("    s_memtime vcc")
    e("    s_load_dword s50, s[18:19], s80")
    e("    s_waitcnt lgkmcnt(0)")
    e("    s_memtime s[76:77]")
    e("    s_load_dword s50, s[18:19], s81")
    e("    s_waitcnt lgkmcnt(0)")
    e("    s_sub_u32 s75, s76, vcc_lo")
    e("    s_memtime vcc")
    e("    s_waitcnt lgkmcnt(0)")
    e("    s_sub_u32 s77, vcc_lo, s76")
    if DIAG:
        e("    s_mov_b32 s50, s75")
        e("    s_mov_b32 s51, s77")
    e("    s_cmp_lt_u32 s75, s77")
    e("    s_cselect_b32 s80, s80, s81")
    e("    s_lshr_b32 s81, s80, 8")
    e("    s_xor_b32 s80, s80, s81")
    e("    s_lshr_b32 s80, s80, 13")
    e("    s_xor_b32 s80, s80, s2")
    e("    s_and_b32 s80, s80, 1")
    if OPT.get("cfix"):
        e(f"    s_mov_b32 s80, {OPT['cfix']}")
    e("    s_lshr_b32 s76, s29, 12")
    e("    s_lshr_b32 s77, s26, 2")
    e("    s_lshl3_add_u32 s77, s77, s76")
    e("    s_lshl_b32 s77, s77, 7")
    e(f"    s_add_u32 s77, s77, {WS_VOTE}")
    e("    v_lshlrev_b32 v2, 3, v0")
    e("    v_mov_b32 v4, v125")
    e("    v_mov_b32 v5, s80")
    e("    s_mov_b64 exec, 0xffff")
    e(f"    buffer_store_dwordx2 v[4:5], v2, {R(S_WS)}, s77 offen sc1")
    e("    s_mov_b64 exec, -1")
    e("    s_bitcmp0_b32 s71, 6")
    e("    s_cbranch_scc1 PRB_E")
    if I("catch", 1):
        e("    s_sub_u32 s10, s10, 1")
    e("    s_waitcnt vmcnt(5)")
    e("    s_branch PRB_M2")


def vote_load():
    e("    v_and_b32 v2, 63, v0")
    e("    v_lshlrev_b32 v2, 7, v2")
    e(f"    s_mov_b32 s76, {WS_VOTE}")
    e(f"    buffer_load_dwordx2 v[4:5], v2, {R(S_WS)}, s76 offen sc1")


def vote_count():
    e("    v_cmp_eq_u32 vcc, 1, v5")
    e("    s_bcnt1_i32_b64 s76, vcc")
    e("    s_cmp_ge_u32 s76, 32")
    e("    s_cselect_b32 s76, 3, 2")
    e(f"    v_mov_b32 v2, {CFLAG}")
    e("    v_mov_b32 v3, s76")
    e("    ds_write_b32 v2, v3")
    e("    s_movk_i32 s28, 0x7fff")


def self_init(b):
    e("    s_mov_b64 exec, s[16:17]")
    e(f"    v_swap_b32 v{b}, v{b+2}")
    e(f"    v_swap_b32 v{b+1}, v{b+3}")
    e(f"    v_swap_b32 v{b+4}, v{b+6}")
    e(f"    v_swap_b32 v{b+5}, v{b+7}")
    e("    s_mov_b64 exec, -1")
    for i in reversed(range(8)):
        e(f"    v_and_b32 v{65+2*i}, 0xffff0000, v{b+i}")
        e(f"    v_lshlrev_b32 v{64+2*i}, 16, v{b+i}")
    for i in range(16):
        e(f"    v_mul_f32 v{64+i}, v126, v{64+i}")


def phase_a():
    stamp("start")
    e("    s_getpc_b64 s[6:7]")
    e("CPF_PC:")
    e("    v_cmp_gt_u32 vcc, (SLOWW-CPF_PC+127)/128, v0")
    e("    v_lshlrev_b32 v2, 7, v0")
    e("    s_load_dwordx2 s[24:25], s[0:1], 16")
    e("    s_mov_b64 exec, vcc")
    e("    s_mov_b32 s8, vcc_lo")
    e("    s_cbranch_execz CPF_D")
    e("    global_load_dword v126, v2, s[6:7] offset:124")
    e("CPF_D:")
    e("    s_load_dwordx2 s[20:21], s[0:1], 8")
    e("    s_load_dwordx2 s[28:29], s[0:1], 24")
    e("    s_load_dwordx2 s[10:11], s[0:1], 56")
    e("    s_mov_b64 exec, -1")
    e("    s_cmp_ge_u32 s2, 256")
    e("    s_cbranch_scc1 END")
    TCH = I("touch", 1)
    e("    v_lshrrev_b32 v3, 6, v0")
    e("    v_and_b32 v2, 63, v0")
    e("    s_mov_b32 s23, 0x20000")
    e(f"    s_mov_b32 s22, {E*4}")
    e("    v_lshlrev_b32 v4, 18, v3")
    e("    s_mov_b64 s[26:27], s[22:23]")
    e("    v_lshl_or_b32 v4, v2, 4, v4")
    e("    s_lshr_b32 s30, s22, 1")
    e("    s_mov_b32 s31, s23")
    e("    v_lshrrev_b32 v5, 1, v4")
    e("    s_lshl_b32 s68, s2, 10")
    e("    v_cmp_gt_u32 vcc, 13, v3")
    e("    s_lshl_b32 s69, s2, 9")
    e(f"    v_mov_b32 v125, {WS_FLAG}")
    e("    s_cmp_eq_u32 s8, 0")
    e("    s_waitcnt lgkmcnt(0)")
    e("    s_cbranch_scc1 A_NOZ")
    e("    global_load_dword v125, v125, s[10:11] sc1")
    e("A_NOZ:")
    e("    s_cbranch_vccz A_NOLD0")
    LI = OPT.get("ldin", "")
    e(f"    buffer_load_dwordx4 v[12:15], v4, {R(S_DST)}, s68 offen {LI}")
    e("A_NOLD0:")
    e("    s_barrier")
    e("    s_cbranch_vccz A_NOLD")
    e(f"    buffer_load_dwordx4 v[16:19], v4, {R(S_SRC)}, s68 offen {LI}")
    e(f"    buffer_load_dwordx2 v[20:21], v5, {R(S_NRM)}, s69 offen {LI}")
    e("A_NOLD:")
    stamp("a_issue")
    e("    s_load_dwordx8 s[12:19], s[0:1], 32")
    e("    s_load_dwordx2 s[4:5], s[0:1], 0")
    e("    v_readfirstlane_b32 s3, v3")
    e("    v_lshlrev_b32 v9, 2, v0")
    e("    v_mov_b32 v6, 0")
    e(f"    ds_write_b32 v9, v6 offset:{K1_CNT}")
    for i in range(4):
        e(f"    v_mov_b32 v{24+i}, -1")
    e("    v_lshlrev_b32 v7, 4, v0")
    e("    ds_write_b128 v7, v[24:27]")
    e("    ds_write_b128 v7, v[24:27] offset:16384")
    e("    v_add_u32 v4, s68, v4")
    e("    v_lshrrev_b32 v8, 2, v4")
    e("    v_cmp_gt_u32 s[72:73], s22, v4")
    e(f"    v_subrev_u32 v8, {ET}, v8")
    e("    v_mov_b32 v1, 1")
    e("    v_and_b32 v10, 7, v0")
    srd(S_WS, 10, 11, WS_H1 + H1BYTES)
    e("    s_cmp_lt_u32 s3, 13")
    e("    s_cbranch_scc1 A_BAR")
    e("    s_cmp_lt_u32 s3, 14")
    e("    s_cbranch_scc1 A_H13")
    e("    s_cmp_eq_u32 s3, 14")
    e("    s_cbranch_scc1 A_H14")
    e(f"    ds_write_b128 v7, v[24:27] offset:{32768 - 15*1024}")
    e("    v_and_b32 v5, 60, v9")
    e("    v_mov_b32 v7, 0xffff")
    e(f"    ds_write_b32 v5, v7 offset:{K1_OVT}")
    e("    s_branch A_BAR")
    e("A_H14:")
    if I("hv", 0):
        e("    v_bfe_u32 v52, v0, 4, 2")
        e("    v_and_b32 v3, 15, v0")
        e("    v_lshlrev_b32 v52, 15, v52")
        e("    s_lshl_b32 s75, s2, 7")
        e("    v_lshl_or_b32 v52, v3, 3, v52")
        e(f"    s_add_u32 s75, s75, {WS_OVT}")
        e("    v_bfe_i32 v5, v0, 0, 1")
        e(f"    buffer_store_dwordx2 v[4:5], v52, {R(S_WS)}, s75 offen sc1")
    e(f"    v_lshlrev_b32 v2, {TSH}, v2")
    if TCH == 1:
        e(f"    buffer_load_dword v126, v2, {R(S_WS)}, 0 offen offset:{I('toff', 3968)} sc1")
    if TCH and I("txo", 1):
        e("    s_waitcnt lgkmcnt(0)")
        srd(S_GAT, 4, 5, TABBYTES)
        e(f"    buffer_load_dword v126, v2, {R(S_GAT)}, 0 offen")
        srd(S_OVF, 14, 15, TABBYTES)
        e(f"    buffer_load_dword v126, v2, {R(S_OVF)}, 0 offen sc1")
    e("    s_branch A_BAR")
    e("A_H13:")
    if I("pt", 0) == 1:
        e("    s_lshl_b32 s77, s2, 6")
        e(f"    s_add_u32 s77, s77, {WS_OVT}")
        e("    v_lshlrev_b32 v2, 14, v2")
        e("    s_mov_b64 exec, 0xff")
        e(f"    buffer_load_dword v126, v2, {R(S_WS)}, s77 offen sc1")
        e("    s_mov_b64 exec, -1")
    elif I("pt", 0) == 2:
        e("    s_lshl_b32 s77, s2, 9")
        e(f"    s_add_u32 s77, s77, {WS_OVT}")
        e("    v_lshlrev_b32 v2, 7, v2")
        e("    s_mov_b64 exec, 15")
        e(f"    buffer_load_dword v126, v2, {R(S_WS)}, s77 offen sc1")
        e("    s_mov_b64 exec, -1")
    e("A_BAR:")
    e("    s_lshr_b32 s76, s2, 7")
    e("    s_add_u32 s77, s76, s2")
    e("    s_and_b32 s77, s77, 3")
    e("    s_lshl_b32 s77, s77, 6")
    e("    s_lshl1_add_u32 s77, s76, s77")
    e("    s_bfe_u32 s76, s2, 0x40003")
    e("    s_lshl2_add_u32 s77, s76, s77")
    e("    s_bfe_u32 s76, s2, 0x10002")
    e("    s_add_u32 s65, s77, s76")
    if I("pa", 1):
        prio_by_age("A_PRD")
    e("    s_waitcnt lgkmcnt(0)")
    e("    s_barrier")
    stamp("a_bar1")
    e("    s_cmp_lt_u32 s3, 12")
    e("    s_cbranch_scc1 A_SETUP")
    e("    v_bfe_u32 v2, v0, 4, 4")
    e("    s_lshl_b32 s76, s65, 4")
    e("    v_add_u32 v2, s76, v2")
    e("    v_mul_u32_u24 v3, 50006, v2")
    e("    v_lshrrev_b32 v3, 12, v3")
    e("    v_sub_u32 v4, v0, v3")
    e("    v_and_b32 v4, 15, v4")
    e("    v_add_u32 v115, v3, v4")
    e(f"    v_add_u32 v4, {ET}, v115")
    e("    v_lshlrev_b32 v5, 2, v4")
    e("    v_lshlrev_b32 v4, 1, v4")
    e(f"    buffer_load_dword v112, v5, {R(S_DST)}, 0 offen")
    e(f"    buffer_load_dword v113, v5, {R(S_SRC)}, 0 offen")
    e(f"    buffer_load_ushort v114, v4, {R(S_NRM)}, 0 offen")
    e(f"    v_mul_u32_u24 v4, {TM}, v115")
    e("    v_lshrrev_b32 v4, 16, v4")
    e("    v_cmp_eq_u32 s[66:67], v4, v2")
    e(f"    v_cmp_gt_u32 vcc, {N}, v115")
    e("    s_and_b64 s[66:67], s[66:67], vcc")
    e("    s_cmp_eq_u32 s3, 12")
    e("    s_cbranch_scc1 A_SETUP")
    srd(S_STO, 12, 13, 8192)
    e(f"    v_subrev_u32 v2, {13*64}, v0")
    e("    v_lshlrev_b32 v2, 4, v2")
    e(f"    buffer_load_dwordx4 v[100:103], v2, {R(S_STO)}, 0 offen")
    e(f"    buffer_load_dwordx4 v[104:107], v2, {R(S_STO)}, 0 offen offset:3072")
    e("    v_add_u32 v3, 6144, v2")
    e(f"    buffer_load_dwordx4 v[108:111], v3, {R(S_STO)}, 0 offen")
    e("A_SETUP:")
    e("    s_lshr_b32 s76, s3, 1")
    e("    s_add_u32 s76, s76, s2")
    e("    s_and_b32 s76, s76, 7")
    e("    s_lshl_b32 s74, s2, 15")
    e("    s_lshl_b32 s77, s76, 12")
    e("    s_add_u32 s74, s74, s77")
    e("    s_lshl_b32 s77, s76, 2")
    e("    v_mov_b32 v49, s77")
    e("    s_and_b32 s75, s3, 1")
    e("    s_lshl_b32 s75, s75, 1")
    e("    v_bfe_u32 v2, v0, 3, 3")
    e("    v_lshlrev_b32 v48, 4, v10")
    e("    v_cmp_lt_u32 vcc, 3, v10")
    e(f"    v_mul_u32_u24 v3, {K1_LS * 4}, v2")
    e("    s_and_b32 s70, s3, 1")
    e("    s_add_u32 s77, s76, s70")
    e("    s_and_b32 s77, s77, 3")
    e("    s_lshl_b32 s77, s77, 6")
    e("    s_lshl1_add_u32 s77, s70, s77")
    e("    s_lshr_b32 s76, s76, 2")
    e("    s_add_u32 s76, s76, s77")
    e("    v_add_u32 v3, v3, v48")
    for st in range(2):
        e(f"    s_add_u32 s77, s76, {32*st}")
        e(f"    s_mul_i32 s77, s77, {K1_LS}")
        e(f"    v_add_u32 v{40+st}, s77, v3")
        e(f"    v_lshl_add_u32 v{46+st}, s75, 3, v2")
        e(f"    v_lshlrev_b32 v{44+st}, v{46+st}, v1")
        e(f"    v_add_u32 v{42+st}, -1, v{44+st}")
        e(f"    v_cndmask_b32 v{44+st}, 0, v{44+st}, vcc")
        e("    s_add_u32 s75, s75, 1")
    e("    v_and_b32 v50, 6, v10")
    e("    s_mov_b32 s64, 0xffffff")
    e("    s_cmp_lt_u32 s3, 12")
    e("    s_cbranch_scc1 A_EDGES")
    e("    s_cmp_eq_u32 s3, 12")
    e("    s_cbranch_scc1 A_EDGES12")
    e("    s_cmp_eq_u32 s3, 15")
    e("    s_cbranch_scc1 A_MASKS")
    e("    s_cmp_eq_u32 s3, 14")
    e("    s_cbranch_scc1 A_HDR")
    if I("pg", 0):
        srd(S_GAT, 4, 5, TABBYTES)
        e("    s_add_u32 s76, s65, 1")
        e(f"    s_mul_i32 s76, s76, {16*50006}")
        e("    s_lshr_b32 s76, s76, 12")
        e("    v_and_b32 v2, 63, v0")
        e("    v_add_lshl_u32 v2, v2, s76, 7")
        n = I("pg", 0)
        o = 0
        while n > 0:
            m = min(n, 64)
            if m < 64:
                e(f"    s_mov_b32 exec_lo, {((1 << m) - 1) & 0xffffffff}")
                e(f"    s_mov_b32 exec_hi, {((1 << m) - 1) >> 32}")
            e(f"    s_movk_i32 s76, {o}")
            e(f"    buffer_load_dword v126, v2, {R(S_GAT)}, s76 offen")
            n -= m
            o += 8192
    e("    s_branch A_OUT")
    e("A_MASKS:")
    e("    v_bfe_u32 v2, v0, 4, 1")
    e("    v_bfe_u32 v3, v0, 5, 1")
    e("    v_add_u32 v3, v3, v2")
    e("    v_lshlrev_b32 v3, 6, v3")
    e("    v_lshl_add_u32 v3, v2, 1, v3")
    e("    v_and_b32 v2, 15, v0")
    e("    v_lshl_add_u32 v3, v2, 2, v3")
    e("    v_lshlrev_b32 v12, 2, v3")
    e("    v_xor_b32 v13, 512, v12")
    e("    v_lshlrev_b32 v7, 2, v10")
    e("A_MPOLL:")
    e(f"    ds_read_b32 v2, v6 offset:{K1_CNT+K1_DONE}")
    e("    s_waitcnt lgkmcnt(0)")
    e("    v_cmp_gt_u32 vcc, 13, v2")
    e("    s_cbranch_vccnz A_MPOLL")
    for n in range(4):
        e(f"    ds_read_b32 v{16+n}, v{12+(n&1)} offset:{K1_CNT + 4*(n>>1)}")
    for n in range(4):
        e(f"    s_waitcnt lgkmcnt({3-n})")
        e(f"    v_cmp_lt_u32 s[{52+2*n}:{53+2*n}], 12, v{16+n}")
    e("    s_nop 1")
    for n in range(8):
        e(f"    v_writelane_b32 v2, s{52+n}, {n}")
    e("    s_mov_b64 exec, 0xff")
    e("    v_bcnt_u32_b32 v3, v2, 0")
    e("    v_add_u32 v4, 1, v2")
    e("    v_bfe_i32 v3, v3, 0, 1")
    e("    v_bfi_b32 v4, v2, 0, v4")
    e("    v_and_or_b32 v2, v4, v3, v2")
    e(f"    ds_write_b32 v7, v2 offset:{K1_MSK}")
    e("    s_branch A_OUT")
    e("A_HDR:")
    e("    v_lshlrev_b32 v51, 3, v10")
    e("    v_bfe_u32 v52, v0, 4, 2")
    e("    v_and_b32 v3, 15, v0")
    e("    v_lshlrev_b32 v52, 15, v52")
    e("    v_lshl_or_b32 v52, v3, 3, v52")
    e("    v_lshlrev_b32 v53, 2, v2")
    e("    s_lshl_b32 s75, s2, 7")
    e(f"    s_add_u32 s75, s75, {WS_OVT}")
    e("    v_cmp_eq_u32 vcc, 7, v10")
    if I("hv", 0) == 1:
        e("    s_waitcnt vmcnt(9)")
    e("    s_setprio 3")
    stamp("a_pre2")
    e("    s_barrier")
    stamp("a_bar2")
    e(f"    ds_read_u16 v120, v50 offset:{K1_NON}")
    e(f"    ds_read_b64 v[24:25], v51 offset:{K1_OVT}")
    e(f"    ds_read_b32 v22, v6 offset:{K1_CNT+K1_OVC}")
    e(f"    ds_read_b32 v23, v53 offset:{K1_MSK}")
    e("    s_waitcnt lgkmcnt(0)")
    e("    v_or_b32 v22, 0xf000, v22")
    e("    v_cndmask_b32 v24, v24, v23, vcc")
    e("    v_cndmask_b32 v25, v25, v22, vcc")
    e("    v_lshl_or_b32 v25, v120, 16, v25")
    e(f"    buffer_store_dwordx2 v[24:25], v52, {R(S_WS)}, s75 offen {SC}")
    e("    s_branch A_O1")
    e("A_EDGES12:")
    e("    s_waitcnt vmcnt(5)")
    e("    s_branch A_EDGES2")
    e("A_EDGES:")
    e("    s_cmp_lg_u32 s3, 0")
    e("    s_waitcnt vmcnt(2)")
    e("    s_cbranch_scc1 A_EDGES2")
    e("    v_add_u32 v4, 0x01010101, v125")
    e("    v_add_u32 v5, 0x01010101, v125")
    e(f"    ds_write_b64 v6, v[4:5] offset:{K1_NON}")
    e("A_EDGES2:")
    e("    s_mov_b64 exec, s[72:73]")
    stamp("a_dst")
    for k in range(4):
        e(f"    v_mul_u32_u24 v{24+k}, {TM}, v{12+k}")
        e(f"    v_sub_u32 v2, v{12+k}, v8")
        e(f"    v_lshrrev_b32 v{28+k}, 20, v{24+k}")
        e(f"    v_cmp_ne_u32 s[{52+2*k}:{53+2*k}], {k}, v2")
        e(f"    v_lshlrev_b32 v{36+k}, 2, v{28+k}")
    for k in range(4):
        e(f"    s_mov_b64 exec, s[{52+2*k}:{53+2*k}]")
        e(f"    ds_add_rtn_u32 v{32+k}, v{36+k}, v1 offset:{K1_CNT}")
    e("    s_mov_b64 exec, 1")
    e(f"    ds_add_u32 v6, v1 offset:{K1_CNT+K1_DONE}")
    e("    s_mov_b64 exec, s[72:73]")
    for k in range(4):
        e(f"    v_lshrrev_b32 v{24+k}, 12, v{24+k}")
        e(f"    v_mul_u32_u24 v{28+k}, {K1_LS}, v{28+k}")
        e(f"    v_bfi_b32 v{24+k}, 15, v{12+k}, v{24+k}")
    e("    s_mov_b32 s70, 0xffff0000")
    FIT = ["s[6:7]", "s[8:9]", "s[10:11]", "s[62:63]"]
    for k in range(4):
        e(f"    s_mov_b64 exec, s[{52+2*k}:{53+2*k}]")
        e("    s_waitcnt lgkmcnt(4)")
        e(f"    v_cmp_le_u32 vcc, 12, v{32+k}")
        e(f"    v_cmp_gt_u32 {FIT[k]}, {SLOTCAP}, v{32+k}")
        e(f"    v_and_b32 v4, 3, v{32+k}")
        e(f"    v_lshrrev_b32 v2, 2, v{32+k}")
        e("    v_cndmask_b32 v3, 0, 61, vcc")
        e(f"    v_lshl_add_u32 v4, v4, 4, v{28+k}")
        e(f"    s_mov_b64 exec, {FIT[k]}")
        e("    v_add3_u32 v5, v4, v3, v2")
        e("    v_cndmask_b32 v3, 0, 52, vcc")
        e("    v_lshl_add_u32 v4, v2, 2, v4")
        e(f"    ds_write_b8 v5, v{24+k} offset:12")
        e(f"    v_add_u32 v{36+k}, v4, v3")
    for k in range(4):
        e(f"    s_andn2_b64 s[{52+2*k}:{53+2*k}], s[{52+2*k}:{53+2*k}], {FIT[k]}")
    e("    s_or_b64 s[60:61], s[52:53], s[54:55]")
    e("    s_or_b64 s[76:77], s[56:57], s[58:59]")
    e("    s_or_b64 s[60:61], s[60:61], s[76:77]")
    e("    s_mov_b64 exec, s[72:73]")
    e("    s_cmp_eq_u32 s3, 12")
    e("    s_waitcnt vmcnt(3)")
    e("    s_cbranch_scc1 A_ALL")
    e("    s_waitcnt vmcnt(0)")
    e("A_ALL:")
    stamp("a_all")
    for k in range(4):
        if k % 2 == 0:
            e(f"    v_lshl_or_b32 v{16+k}, v{20+k//2}, 16, v{16+k}")
        else:
            e(f"    v_and_or_b32 v{16+k}, v{20+k//2}, s70, v{16+k}")
    for k in range(4):
        e(f"    s_mov_b64 exec, {FIT[k]}")
        e(f"    ds_write_b32 v{36+k}, v{16+k}")
    e("    s_cmp_lg_u64 s[60:61], 0")
    e("    s_cbranch_scc1 A_OVER")
    e("A_OUT:")
    e("    s_setprio 2")
    e("    s_mov_b64 exec, -1")
    e("    s_waitcnt lgkmcnt(0)")
    stamp("a_pre2")
    e("    s_barrier")
    stamp("a_bar2")
    e(f"    ds_read_u16 v120, v50 offset:{K1_NON}")
    e("A_O1:")
    e(f"    ds_read_b32 v21, v49 offset:{K1_MSK}")
    e(f"    ds_read_u8 v127, v10 offset:{K1_NON}")
    e("    ds_read2_b32 v[12:13], v40 offset0:0 offset1:1")
    e("    ds_read2_b32 v[14:15], v40 offset0:2 offset1:3")
    e("    ds_read2_b32 v[16:17], v41 offset0:0 offset1:1")
    e("    ds_read2_b32 v[18:19], v41 offset0:2 offset1:3")
    e("    s_waitcnt lgkmcnt(5)")
    for st in range(2):
        e(f"    v_and_b32 v2, v21, v{42+st}")
        e(f"    v_and_b32 v3, v21, v{44+st}")
        e(f"    v_bcnt_u32_b32 v2, v2, v{46+st}")
        e(f"    v_cmp_eq_u32 s[{52+2*st}:{53+2*st}], v3, v{44+st}")
        e(f"    v_lshl_add_u32 v{42+st}, v2, 6, v48")
    e("    s_waitcnt lgkmcnt(4)")
    e("    v_lshlrev_b32 v20, 24, v127")
    e("    s_waitcnt lgkmcnt(2)")
    e("    v_and_or_b32 v15, v15, s64, v20")
    e("    s_mov_b64 exec, s[52:53]")
    e(f"    buffer_store_dwordx4 v[12:15], v42, {R(S_WS)}, s74 offen {SC}")
    e("    s_mov_b64 exec, s[54:55]")
    e("    s_waitcnt lgkmcnt(0)")
    e("    v_and_or_b32 v19, v19, s64, v20")
    e(f"    buffer_store_dwordx4 v[16:19], v43, {R(S_WS)}, s74 offen {SC}")
    e("    s_mov_b64 exec, -1")
    e("    s_setprio 0")
    stamp("a_st")
    e(f"    ds_read_b32 v125, v6 offset:{K1_NON}")


def a_overflow():
    e("A_OVER:")
    srd(S_OVF, 18, 19, 256 * OVF_STRIDE, WS_OVF)
    e("    s_lshl_b32 s62, s2, 15")
    for k in range(4):
        e(f"    s_mov_b64 exec, s[{52+2*k}:{53+2*k}]")
        e(f"    s_cbranch_execz A_OV{k}")
        e(f"    ds_add_rtn_u32 v3, v6, v1 offset:{K1_CNT+K1_OVC}")
        e(f"    v_mov_b32 v4, v{16+k}")
        e(f"    v_mov_b32 v5, v{12+k}")
        e("    s_waitcnt lgkmcnt(0)")
        e(f"    v_cmp_gt_u32 vcc, {NINL}, v3")
        e("    v_lshlrev_b32 v3, 3, v3")
        e("    s_andn2_b64 s[76:77], exec, vcc")
        e("    s_mov_b64 exec, vcc")
        e(f"    ds_write_b64 v3, v[4:5] offset:{K1_OVT}")
        e("    s_mov_b64 exec, s[76:77]")
        e(f"    s_cbranch_execz A_OV{k}")
        e(f"    buffer_store_dwordx2 v[4:5], v3, {R(S_OVF)}, s62 offen {SC}")
        e("    s_waitcnt vmcnt(0)")
        e(f"A_OV{k}:")
    e("    s_branch A_OUT")


def setup1():
    e("    s_and_b32 s29, s2, 7")
    e("    s_and_b32 s27, s29, 3")
    e("    s_mul_i32 s27, s27, 12502")
    if I("roff", 0):
        e(f"    s_add_u32 s27, s27, {N - I('roff', 0)}")
        e(f"    s_cmp_ge_u32 s27, {N}")
        e(f"    s_cselect_b32 s76, {N}, 0")
        e("    s_sub_u32 s27, s27, s76")
    e("    s_sub_u32 s27, 0x10000, s27")
    e("    s_lshr_b32 s30, s29, 1")
    e("    s_lshl_b32 s30, s30, 15")
    e("    s_and_b32 s31, s29, 1")
    e("    s_lshl_b32 s31, s31, 6")
    e("    s_add_u32 s30, s30, s31")
    e(f"    s_add_u32 s30, s30, {WS_OVT}")
    e("    s_add_u32 s31, s30, 16384")
    e("    s_lshl_b32 s29, s29, 12")
    e("    s_lshr_b32 s26, s2, 3")
    e("    s_bfm_b32 s49, s26, 0")
    e("    s_mov_b32 s2, s65")
    e("    v_mov_b32 v99, 0xf0")
    e("    v_mov_b32 v124, 7")
    e(f"    s_mov_b32 s0, {CNTB}")
    e("    s_mov_b32 s1, 0x07060302")
    e("    s_mov_b32 s71, 0")
    e("    s_cmp_eq_u32 s3, 1")
    e(f"    s_cselect_b32 s28, {I('vr', 3)}, 0x7fff")
    if DIAG:
        e("    s_mov_b32 s48, 0")
        e("    s_mov_b64 s[50:51], 0")
    zero_b_counters((WL - CNTB) // 4)
    collect_addrs()
    srd(S_OVF, 18, 19, 256 * OVF_STRIDE, WS_OVF)
    srd(S_GAT, 4, 5, TABBYTES + 3072, -3072)
    srd(S_STO, 18, 19, H1BYTES, WS_H1)
    e("    s_mov_b64 s[20:21], s[14:15]")
    e(f"    s_mov_b32 s22, {TABBYTES}")
    e(f"    s_add_u32 s24, s18, {WS_H1 - 3072}")
    e("    s_addc_u32 s25, s19, 0")
    if I("gp", 0):
        e("    s_lshl_b32 s76, s2, 4")
        e("    s_add_u32 s76, s76, s3")
        e("    s_add_u32 s76, s76, 16")
        e("    s_mul_i32 s76, s76, 50006")
        e("    s_lshr_b32 s76, s76, 12")
        e("    v_and_b32 v8, 63, v0")
        e("    v_add_lshl_u32 v8, v8, s76, 7")


def setup2():
    e("    v_and_b32 v2, 63, v0")
    e("    v_bfe_u32 v3, v2, 4, 1")
    e("    v_cmp_eq_u32 s[16:17], 1, v3")
    e("    v_xor_b32 v22, v3, v10")
    e("    v_lshlrev_b32 v83, 4, v22")
    e("    v_add_u32 v80, 3072, v83")
    e("    v_add_u32 v82, 1024, v83")
    e("    v_xor_b32 v83, 64, v83")
    e("    v_add_u32 v81, 2048, v83")
    e("    v_and_b32 v92, 15, v0")
    e("    v_lshrrev_b32 v11, 4, v2")
    e("    v_bfe_u32 v20, v2, 2, 2")
    e("    v_and_b32 v21, 3, v2")
    e("    v_lshl_add_u32 v84, v11, 3, v20")
    e("    v_lshlrev_b32 v84, 7, v84")
    e("    v_lshrrev_b32 v20, 1, v20")
    e("    v_lshl_or_b32 v20, v3, 2, v20")
    e("    v_xor_b32 v20, v20, v21")
    e("    v_lshl_add_u32 v84, v20, 4, v84")
    e("    v_and_b32 v22, 1, v21")
    e("    s_lshl_b32 s76, s3, 12")
    e("    v_lshl_add_u32 v84, v22, 3, v84")
    e("    s_mov_b32 m0, s76")
    e(f"    v_add_u32 v122, {WL}, v84")
    e("    v_add_u32 v84, s76, v84")
    e(f"    s_mul_i32 s76, s3, {TSTR}")
    e("    v_xor_b32 v85, 8, v84")
    e("    v_xor_b32 v86, 64, v84")
    e("    v_xor_b32 v87, 72, v84")
    e(f"    s_add_u32 s76, s76, {LISTS}")
    e("    v_lshrrev_b32 v22, 3, v2")
    e("    v_lshl_add_u32 v88, v22, 2, s76")
    e("    v_lshl_add_u32 v123, v2, 2, s76")
    e(f"    s_add_u32 s76, s76, {CAPT*4}")
    e("    v_lshl_add_u32 v89, v11, 5, s76")
    e("    v_sub_u32 v95, 0, v21")
    e("    v_sub_u32 v96, 1, v21")
    e("    v_sub_u32 v97, 2, v21")
    e("    v_ashrrev_i32 v95, 31, v95")
    e("    v_ashrrev_i32 v96, 31, v96")
    e("    v_ashrrev_i32 v97, 31, v97")
    e("    v_lshrrev_b32 v22, 2, v2")
    e(f"    v_mul_u32_u24 v98, {TSTR}, v22")
    e(f"    v_add_u32 v98, {LISTS}, v98")
    e("    v_lshl_add_u32 v90, v2, 4, s0")
    e("    s_lshl_b32 s76, s2, 4")
    e("    s_add_u32 s76, s76, s3")
    e("    s_mul_i32 s77, s76, 50006")
    e("    s_lshr_b32 s77, s77, 12")
    e("    v_subrev_u32 v2, s77, v92")
    e("    v_and_b32 v2, 15, v2")
    e("    v_add_u32 v2, s77, v2")
    e(f"    v_mul_u32_u24 v3, {TM}, v2")
    e("    v_lshrrev_b32 v3, 16, v3")
    e("    v_cmp_eq_u32 s[14:15], s76, v3")
    e("    v_lshlrev_b32 v2, 7, v2")
    e("    v_lshl_add_u32 v121, v11, 4, v2")


def setup3():
    e("    s_mov_b64 s[12:13], 0")
    e("    s_cmp_lt_u32 s3, 12")
    e("    s_cbranch_scc1 S_DONE")
    e("    s_waitcnt vmcnt(2)")
    e("    v_cmp_eq_u32 vcc, v112, v115")
    e("    v_cmp_eq_u32 s[76:77], v113, v115")
    e("    v_lshlrev_b32 v3, 16, v114")
    e("    v_and_b32 v2, 255, v0")
    e("    v_or_b32 v113, v3, v113")
    e("    s_and_b64 s[12:13], s[66:67], vcc")
    e("    s_and_b64 vcc, s[12:13], s[76:77]")
    e("    s_andn2_b64 s[12:13], s[12:13], s[76:77]")
    e("    v_lshlrev_b32 v2, 2, v2")
    e("    v_cndmask_b32 v3, 0, v3, vcc")
    e(f"    v_add_u32 v2, {SELFN}, v2")
    e("    ds_write_b32 v2, v3")
    e("    s_cbranch_scc0 S_NT")
    decode_key(113, 0, 0, 6)
    decode_data(113, 0, 0, 6)
    e("S_NT:")
    e("    s_cmp_eq_u32 s3, 12")
    e("    s_cbranch_scc1 S_DONE")
    e(f"    v_subrev_u32 v2, {13*64}, v0")
    e("    v_bfe_u32 v3, v2, 4, 1")
    e("    v_bfe_u32 v20, v2, 6, 1")
    e("    v_lshl_or_b32 v3, v20, 2, v3")
    e("    v_cmp_gt_u32 vcc, 128, v2")
    e("    v_xor_b32 v2, v2, v3")
    e("    v_lshlrev_b32 v2, 4, v2")
    e(f"    v_add_u32 v2, {WL}, v2")
    e("    v_xor_b32 v3, 64, v2")
    e("    s_mov_b32 exec_lo, 0xaaaaaaaa")
    e("    s_mov_b32 exec_hi, exec_lo")
    for b in (100, 104, 108):
        e(f"    v_swap_b32 v{b}, v{b+2}")
        e(f"    v_swap_b32 v{b+1}, v{b+3}")
    e("    s_mov_b64 exec, -1")
    e("    ds_write_b128 v2, v[100:103]")
    e("    ds_write_b128 v3, v[104:107] offset:3072")
    e("    s_and_saveexec_b64 s[76:77], vcc")
    e("    ds_write_b128 v2, v[108:111] offset:6144")
    e("    s_mov_b64 exec, -1")
    e("S_DONE:")
    stamp("s_done")


def barrier_addrs():
    e("    s_lshr_b32 s76, s2, 2")
    e("    s_lshl_b32 s76, s76, 7")
    e("    s_and_b32 s77, s2, 3")
    e("    s_lshl_b32 s77, s77, 2")
    e("    s_add_u32 s76, s76, s77")
    e(f"    s_add_u32 s76, s76, {WS_FLAG}")
    e("    v_lshlrev_b32 v2, 13, v0")
    e("    s_getreg_b32 s77, hwreg(HW_REG_XCC_ID, 0, 2)")
    e("    s_lshl_b32 s77, s77, 14")
    e("    s_add_u32 s77, s77, s80")
    e(f"    s_add_u32 s77, s77, {WS_FLAG}")
    e("    v_lshlrev_b32 v8, 7, v0")


COMMON = [0, 1, 2, 3, 4, 5]
RARE = [6, 7]
ACT = ["s[62:63]", "s[10:11]"]
WREG = [40, 44, 48, 52, 56, 60, 28, 116]


def w_frags():
    e("    v_xor_b32 v5, 8, v122")
    e("    v_xor_b32 v6, 64, v122")
    e("    v_xor_b32 v7, 72, v122")
    for s_ in range(2):
        for t in range(4):
            for u in range(2):
                r = WREG[s_ * 4 + t] + 2 * u
                e(f"    ds_read_b64_tr_b16 v[{r}:{r+1}], v{4+t if t else 122} offset:{4096*s_ + 512*u}")


def load_headers():
    e(f"    buffer_load_dwordx2 v[116:117], v93, {R(S_WS)}, s30 offen {SC}")
    e(f"    buffer_load_dwordx2 v[118:119], v93, {R(S_WS)}, s31 offen {SC}")


def phase_b():
    e("COLLECT:")
    load_headers()
    GP = I("gp", 0)
    if GP:
        e(f"    s_mov_b64 exec, {(1 << GP) - 1}")
        e(f"    buffer_load_dword v91, v8, {R(S_GAT)}, 0 offen offset:3072")
        e("    s_mov_b64 exec, -1")
    e("    s_mov_b32 s68, s29")
    e(f"    s_add_u32 s69, s68, {128*32768}")
    e(f"    s_mov_b32 s75, {SPINMAX}")
    e("    v_cmp_gt_u32 s[8:9], 4, v10")
    if SP == 1:
        setup2()
    e("    s_waitcnt vmcnt(%d)" % (1 if GP else 0))
    e("C_CHK2:")
    e("    v_cmp_ne_u32_sdwa vcc, v117, v120 src0_sel:WORD_1 src1_sel:DWORD")
    e("    v_cmp_ne_u32_sdwa s[76:77], v119, v120 src0_sel:WORD_1 src1_sel:DWORD")
    e("    v_mov_b32_dpp v4, v116 quad_perm:[3,3,3,3] row_mask:0xf bank_mask:0xf")
    e("    v_mov_b32_dpp v5, v118 quad_perm:[3,3,3,3] row_mask:0xf bank_mask:0xf")
    e("    s_or_b64 vcc, vcc, s[76:77]")
    e("    s_cbranch_scc1 C_RETRY2")
    e("C_OK2:")
    stamp("b_gate")
    e("    v_mov_b32_dpp v4, v4 row_half_mirror row_mask:0xf bank_mask:0x5")
    e("    v_mov_b32_dpp v5, v5 row_half_mirror row_mask:0xf bank_mask:0x5")
    for i in range(2):
        e(f"    v_and_b32 v2, s49, v{4+i}")
        e(f"    v_bfe_u32 v3, v{4+i}, s26, 1")
        e("    v_bcnt_u32_b32 v2, v2, s26")
        e("    v_cmp_eq_u32 vcc, 1, v3")
        e(f"    v_lshl_add_u32 v{6+i}, v2, 6, v9")
        e("    s_or_b64 exec, vcc, s[8:9]")
        e(f"    buffer_load_dwordx4 v[{12+4*i}:{15+4*i}], v{6+i}, {R(S_WS)}, s{68+i} offen {SC}")
        e(f"    s_mov_b64 {ACT[i]}, exec")
        e("    s_mov_b64 exec, -1")
    stamp("b_iss")
    if I("pc", 1):
        e("    s_setprio 0")
    if SP >= 1:
        if SP == 2:
            setup2()
        e("    s_cmp_lg_u32 s71, 0")
        e("    s_cbranch_scc1 LATE_D")
        setup3()
        e("LATE_D:")
    e("    v_and_b32 v117, 0xffff, v117")
    e("    v_and_b32 v119, 0xffff, v119")
    e(f"    v_mul_u32_u24 v2, {TM}, v117")
    e(f"    v_mul_u32_u24 v3, {TM}, v119")
    e("    v_cmp_eq_u32 s[8:9], 7, v10")
    e(f"    s_mov_b32 s76, {0xf000 + NINL}")
    e("    v_cmp_lt_u32 s[72:73], s76, v117")
    e("    v_cmp_lt_u32 vcc, s76, v119")
    e("    v_lshrrev_b32 v2, 20, v2")
    e("    v_lshrrev_b32 v3, 20, v3")
    e("    v_cmp_eq_u32 s[4:5], s2, v2")
    e("    v_cmp_eq_u32 s[6:7], s2, v3")
    e("    s_and_b64 s[72:73], s[72:73], s[8:9]")
    e("    s_and_b64 vcc, vcc, s[8:9]")
    e("    s_lshr_b64 s[72:73], s[72:73], 1")
    e("    s_or_b64 s[72:73], s[72:73], vcc")
    e(f"    s_mov_b64 {PEND(7)}, 0")
    e("    s_movk_i32 s70, 0xffff")
    e(f"    s_mov_b64 {PEND(6)}, s[12:13]")
    e("    s_mov_b64 exec, s[12:13]")
    e("    s_cbranch_execz C_NT")
    e("    ds_add_rtn_u32 v38, v46, v1")
    e("C_NT:")
    for i in range(2):
        base = 12 + 4 * i
        e(f"    s_mov_b64 exec, {ACT[i]}")
        e(f"    s_waitcnt vmcnt({1-i})")
        e(f"C_CHK{i}:")
        e(f"    v_cmp_ne_u32_sdwa vcc, v{base+3}, v127 src0_sel:BYTE_3 src1_sel:DWORD")
        e(f"    s_cbranch_vccnz C_RETRY{i}")
        e(f"C_OK{i}:")
        stamp("b_lines" if i == 0 else "b_lines1")
        for k in range(3):
            e(f"    v_cmp_ne_u16 {PEND(3*i+k)}, s70, v{base+k}")
        if i == 1 and EARLY:
            own_x()
        for k in range(3):
            decode_key(base + k, base + 3, k, 3 * i + k)
        for k in range(3):
            s_ = 3 * i + k
            e(f"    s_mov_b64 exec, {PEND(s_)}")
            e(f"    ds_add_rtn_u32 v{32+s_}, v{40+s_}, v1")
    e("    s_mov_b64 exec, -1")
    if not I("ddl", 1):
        for i in range(2):
            base = 12 + 4 * i
            for k in range(3):
                decode_data(base + k, base + 3, k, 3 * i + k)
    else:
        e("    s_or_b32 s71, s71, 32")
    e("    s_mov_b64 s[68:69], 0")
    e("    s_or_b64 s[76:77], s[4:5], s[6:7]")
    e("    s_or_b64 s[76:77], s[76:77], s[72:73]")
    e("    s_cbranch_scc1 EXTRA")
    e("CDONE:")
    e("    s_lshl_b32 s75, s3, 2")
    e("    s_add_u32 s75, s75, 3")
    e("    s_waitcnt lgkmcnt(0)")
    stamp("b_pre1")
    e("    s_barrier")
    stamp2("b_bar1", "")
    e("    ds_read_b128 v[4:7], v90")
    if not EARLY:
        own_x()
    e("    s_cmp_lg_u32 s3, 15")
    e("    s_cbranch_scc1 PT_D")
    e("    s_lshl_b32 s76, s2, 8")
    e(f"    s_add_u32 s76, s76, {WS_FLAG}")
    e("    v_lshlrev_b32 v2, 7, v92")
    e("    s_mov_b64 exec, 3")
    e(f"    buffer_load_dword v91, v2, {R(S_WS)}, s76 offen sc1")
    e("    s_mov_b64 exec, -1")
    e("PT_D:")
    if I("ddl", 1):
        e("    s_bitcmp0_b32 s71, 5")
        e("    s_cbranch_scc1 DD_D")
        e("    s_andn2_b32 s71, s71, 32")
        for i in range(2):
            base = 12 + 4 * i
            for k in range(3):
                decode_data(base + k, base + 3, k, 3 * i + k)
        e("DD_D:")
    e("    s_waitcnt lgkmcnt(0)")
    e("    v_add_u32 v5, v4, v5")
    e("    v_add3_u32 v7, v5, v6, v7")
    e("    v_add_u32 v6, v5, v6")
    e("    s_nop 0")
    e("    v_and_b32_dpp v28, v7, v95 quad_perm:[0,0,0,0] row_mask:0xf bank_mask:0xf")
    e("    v_and_b32_dpp v29, v7, v96 quad_perm:[1,1,1,1] row_mask:0xf bank_mask:0xf")
    e("    v_and_b32_dpp v30, v7, v97 quad_perm:[2,2,2,2] row_mask:0xf bank_mask:0xf")
    e("    v_add3_u32 v28, v28, v29, v30")
    e("    v_add_u32 v7, v28, v7")
    e("    v_lshl_add_u32 v28, v28, 2, v98")
    e(f"    v_cmp_lt_u32 vcc, {CAPT}, v7")
    e("    v_lshl_add_u32 v29, v4, 2, v28")
    e("    v_lshl_add_u32 v30, v5, 2, v28")
    e("    v_lshl_add_u32 v31, v6, 2, v28")
    e("    v_readlane_b32 s74, v7, s75")
    e("    ds_write_b128 v90, v[28:31] offset:1024")
    e(f"    s_or_b64 s[76:77], {PEND(6)}, {PEND(7)}")
    e("    s_cbranch_scc0 P_NR")
    for s in RARE:
        e(f"    s_mov_b64 exec, {PEND(s)}")
        e(f"    ds_read_b32 v{20+s}, v{40+s} offset:1024")
    e("P_NR:")
    for s in COMMON:
        e(f"    s_mov_b64 exec, {PEND(s)}")
        e(f"    ds_read_b32 v{20+s}, v{40+s} offset:1024")
    e(f"    s_min_u32 s74, s74, {CAPT}")
    e("    s_cbranch_vccnz SLOWW")
    for s in COMMON:
        e(f"    s_mov_b64 exec, {PEND(s)}")
        e(f"    s_waitcnt lgkmcnt({len(COMMON)-1})")
        e(f"    v_lshl_add_u32 v{20+s}, v{32+s}, 2, v{20+s}")
        e(f"    ds_write2st64_b32 v{20+s}, v{48+s}, v{56+s} offset0:0 offset1:5")
    e("    s_cmp_eq_u64 s[76:77], 0")
    e("    s_cbranch_scc1 P_NW")
    for s in RARE:
        e(f"    s_mov_b64 exec, {PEND(s)}")
        e(f"    v_lshl_add_u32 v{20+s}, v{32+s}, 2, v{20+s}")
        e(f"    ds_write2st64_b32 v{20+s}, v{48+s}, v{56+s} offset0:0 offset1:5")
    e("P_NW:")
    for s in range(8):
        e(f"    s_mov_b64 {PEND(s)}, 0")
    e("WDONE:")
    e("    s_sub_u32 s76, 0, s74")
    e("    s_and_b32 s76, s76, 31")
    e("    s_bfm_b64 exec, s76, 0")
    e("    s_lshl_b32 s77, s74, 2")
    e("    v_add_u32 v2, s77, v123")
    e(f"    v_mov_b32 v3, {PADV}")
    e("    ds_write2st64_b32 v2, v3, v3 offset0:0 offset1:5")
    e("    s_mov_b64 exec, -1")
    e(f"    v_mov_b32 v4, {MORE}")
    e("    s_lshl_b32 s76, s3, 6")
    e(f"    s_add_u32 s76, s76, {SELFN}")
    e("    v_lshl_add_u32 v5, v92, 2, s76")
    e("    ds_read_b32 v126, v5")
    e("    s_waitcnt lgkmcnt(0)")
    e("    s_barrier")
    stamp2("b_bar2", "")
    e("    ds_read_b32 v8, v4")


def main_loop():
    def next_k():
        if I("kmin", 0):
            e("    s_lshl_b32 s11, s10, 2")
            e("    s_sub_i32 s8, s9, s11")
            e("    s_add_i32 s8, s8, 4")
            e(f"    s_max_i32 s8, s8, {I('kmin', 0)}")
            e("    s_min_i32 s8, s8, 4")
        elif I("krn", 0):
            e("    s_mov_b32 s8, 1")
            e("    s_lshl_b32 s76, s9, 2")
            e(f"    s_mul_i32 s11, s10, {4 + I('krn', 0)}")
            e("    s_lshl_b32 s77, s10, 2")
            e("    s_cmp_ge_i32 s76, s11")
            e("    s_addc_u32 s8, s8, 0")
            e("    s_add_i32 s11, s11, s77")
            e("    s_cmp_ge_i32 s76, s11")
            e("    s_addc_u32 s8, s8, 0")
            e("    s_add_i32 s11, s11, s77")
            e("    s_cmp_ge_i32 s76, s11")
            e("    s_addc_u32 s8, s8, 0")
        elif I("kfl", 1):
            e("    s_mov_b32 s8, 1")
            e("    s_lshl_b32 s11, s10, 1")
            e("    s_cmp_ge_i32 s9, s11")
            e("    s_addc_u32 s8, s8, 0")
            e("    s_add_i32 s11, s11, s10")
            e("    s_cmp_ge_i32 s9, s11")
            e("    s_addc_u32 s8, s8, 0")
            e("    s_add_i32 s11, s11, s10")
            e("    s_cmp_ge_i32 s9, s11")
            e("    s_addc_u32 s8, s8, 0")
        else:
            e("    s_mov_b32 s8, 1")
            e("    s_cmp_gt_i32 s9, s10")
            e("    s_addc_u32 s8, s8, 0")
            e("    s_lshl_b32 s11, s10, 1")
            e("    s_cmp_gt_i32 s9, s11")
            e("    s_addc_u32 s8, s8, 0")
            e("    s_add_i32 s11, s11, s10")
            e("    s_cmp_gt_i32 s9, s11")
            e("    s_addc_u32 s8, s8, 0")
        e("    s_min_i32 s8, s8, s9")
        e("    s_sub_i32 s9, s9, s8")
        e("    s_sub_i32 s10, s10, 1")
        e("    s_lshl_b32 s11, s8, 5")

    def read_recs(a, b, adv):
        e(f"    ds_read2_b32 v[100:101], v{a} offset0:0 offset1:8")
        e(f"    ds_read2_b32 v[102:103], v{a} offset0:16 offset1:24")
        e(f"    ds_read_b128 v[104:107], v{b}")
        e(f"    ds_read_b128 v[108:111], v{b} offset:16")
        e(f"    v_add_u32 v93, {adv}, v{a}")
        e(f"    v_add_u32 v94, {adv}, v{b}")

    def dma(i):
        e(f"    buffer_load_dwordx4 v{100+i}, {R(S_GAT)}, 0 offen offset:{1024*i} {OPT.get('gfl', '')} lds")

    def addr():
        for i in range(4):
            e(f"    v_add_u32 v{100+i}, v{100+i}, v{80+i}")

    REP = I("rep", 1)

    def remap(a, t, u):
        e(f"    v_lshrrev_b32 v{t}, 7, v{a}")
        e(f"    v_mul_u32_u24 v{t}, {TM}, v{t}")
        e(f"    v_bfe_u32 v{u}, v{a}, {I('rsh', 13)}, {I('rbits', 2)}")
        e(f"    v_bfe_u32 v{t}, v{t}, 20, 1")
        e(f"    v_cmp_le_u32 vcc, {REP}, v{u}")
        e(f"    v_xor_b32 v{t}, s81, v{t}")
        e(f"    v_and_b32 v{u}, 0xffffe000, v{a}")
        e(f"    v_cndmask_b32 v{t}, 0, v{t}, vcc")
        e(f"    v_add_u32 v{a}, v{a}, v{u}")
        e(f"    v_bfe_u32 v{u}, v{a}, 21, 1")
        e(f"    v_xor_b32 v{t}, v{t}, v{u}")
        e(f"    v_lshlrev_b32 v{t}, 13, v{t}")
        e(f"    v_xor_b32 v{t}, s80, v{t}")
        e(f"    v_xor_b32 v{a}, v{a}, v{t}")

    def rewrite_list(lbl):
        for n in range(5):
            e(f"    ds_read_b32 v{32+n}, v123 offset:{256*n}")
        for n in range(5):
            e(f"    s_waitcnt lgkmcnt(4)")
            remap(32 + n, 2, 3)
            e(f"    ds_write_b32 v123, v{32+n} offset:{256*n}")

    def build_b(w):
        for j in range(8):
            e(f"    v_bfe_i32 v{32+j}, v{104+j}, v92, {w}")
        for j in range(8):
            e(f"    v_and_b32 v{32+j}, v{32+j}, v{104+j}")
        for j in range(4):
            e(f"    v_perm_b32 v{112+j}, v{32+2*j+1}, v{32+2*j}, s1")

    def mfmas():
        for t in range(4):
            e(f"    v_mfma_f32_16x16x32_bf16 v[{64+4*t}:{67+4*t}], v[{12+4*t}:{15+4*t}], v[112:115], v[{64+4*t}:{67+4*t}]")

    global REWRITE
    REWRITE = rewrite_list
    e("MAIN:")
    e("    s_cmp_eq_u32 s74, 0")
    e("    s_cbranch_scc1 EMPTY")
    e("    s_bitcmp1_b32 s71, 0")
    e("    s_cbranch_scc1 REMAP2")
    e("MAIN1:")
    read_recs(88, 89, 128)
    e("    s_waitcnt lgkmcnt(2)")
    addr()
    e("MAIN2:")
    PM = I("pm", 3)
    if PM == 1:
        prio_by_age("PRIOD")
    if PM == 2:
        e("    s_cmp_lt_u32 s3, 8")
        e("    s_cbranch_scc1 PRIOE")
        e("    s_setprio 1")
        e("PRIOE:")
    for i in range(4):
        dma(i)
    if PM in (0, 2):
        prio_by_age("PRIOD")
    e("    s_add_u32 s9, s74, 7")
    e("    s_lshr_b32 s9, s9, 3")
    e("    s_sub_i32 s9, s9, 4")
    e("    s_max_i32 s9, s9, 0")
    e(f"    s_mov_b32 s10, {NB-1}")
    next_k()
    e("    s_waitcnt lgkmcnt(0)")
    build_b("1")
    read_recs(93, 94, "s11")
    e("    s_bitcmp1_b32 s71, 3")
    e("    s_cbranch_scc1 LOOP")
    e("    s_or_b32 s71, s71, 8")
    if I("wearly", 0):
        e("    v_readfirstlane_b32 s75, v8")
        e("    s_cmp_lg_u32 s75, 0")
        e("    s_cbranch_scc1 NOWF")
        e("    s_or_b32 s71, s71, 16")
        w_frags()
        e("NOWF:")
    own_addr("PRB_M")
    e("    s_waitcnt vmcnt(4)")
    e("PRB_M2:")
    self_init(64)
    e("LOOP:")
    e("    s_waitcnt lgkmcnt(2)")
    addr()
    e("    v_cmp_gt_u32 vcc, s8, v11")
    if PM == 4:
        prio_by_age("PRIOD")
    e("    s_waitcnt vmcnt(0)")
    for t in range(4):
        for u in range(2):
            e(f"    ds_read_b64_tr_b16 v[{12+4*t+2*u}:{13+4*t+2*u}], v{84+t} offset:{512*u}")
    e("    s_cmp_eq_u32 s8, 0")
    e("    v_cndmask_b32 v91, 0, v1, vcc")
    e("    s_waitcnt lgkmcnt(0)")
    e("    s_cbranch_scc1 LAST")
    dma(0)
    e("    s_cmp_eq_u32 s8, 1")
    e("    s_cbranch_scc1 DMAD")
    dma(1)
    e("    s_cmp_eq_u32 s8, 2")
    e("    s_cbranch_scc1 DMAD")
    dma(2)
    e("    s_cmp_eq_u32 s8, 3")
    e("    s_cbranch_scc1 DMAD")
    dma(3)
    e("DMAD:")
    e("    s_cmp_eq_u32 s10, s28")
    e("    s_cbranch_scc1 VOTES")
    e("VOTED:")
    if PM == 4:
        e("    s_setprio 0")
    mfmas()
    next_k()
    build_b("v91")
    read_recs(93, 94, "s11")
    e("    s_branch LOOP")
    e("LAST:")
    mfmas()
    e("MAINDONE:")
    e(f"    v_mov_b32 v7, {CFLAG}")
    e("    ds_read_b32 v7, v7")
    e("    v_readfirstlane_b32 s75, v8")
    e("    s_cmp_lg_u32 s75, 0")
    e("    s_cbranch_scc1 AGAIN")

    stamp2("h1_done", "h2_done")
    e("    s_nop 2")
    for t in range(4):
        e(f"    v_cvt_pk_bf16_f32 v{12+2*t}, v{64+4*t}, v{65+4*t}")
        e(f"    v_cvt_pk_bf16_f32 v{13+2*t}, v{66+4*t}, v{67+4*t}")
    e("    s_mov_b64 exec, s[16:17]")
    e("    v_swap_b32 v12, v14")
    e("    v_swap_b32 v13, v15")
    e("    v_swap_b32 v16, v18")
    e("    v_swap_b32 v17, v19")
    e("    s_bitcmp1_b32 s71, 0")
    e("    s_cbranch_scc1 FINAL")
    e("    s_mov_b64 exec, -1")
    e("    s_waitcnt lgkmcnt(0)")
    e("    v_readfirstlane_b32 s80, v7")
    e("    s_and_b32 s81, s2, 1")
    e("    s_cmp_eq_u32 s80, 0")
    e("    s_cbranch_scc1 E_NOC")
    e("E_HAVEC:")
    e("    s_xor_b32 s80, s80, s81")
    e("    s_and_b32 s80, s80, 1")
    e("    s_lshl_b32 s80, s80, 13")
    e("    v_xor_b32 v9, s80, v9")
    e("    s_mov_b64 exec, s[14:15]")
    e(f"    buffer_store_dwordx4 v[12:15], v9, {R(S_STO)}, 0 offen {SC}")
    e(f"    buffer_store_dwordx4 v[16:19], v9, {R(S_STO)}, 0 offen offset:64 {SC}")
    e("    v_xor_b32 v20, 0x2000, v9")
    e("    s_and_b64 exec, exec, s[78:79]")
    e("    s_cbranch_execz E_NOREP")
    e(f"    buffer_store_dwordx4 v[12:15], v20, {R(S_STO)}, 0 offen {SC}")
    e(f"    buffer_store_dwordx4 v[16:19], v20, {R(S_STO)}, 0 offen offset:64 {SC}")
    e("E_NOREP:")
    e("    s_setprio 0")
    e("    s_mov_b64 exec, -1")
    stamp("h1_st")
    BS = I("bsplit", 0)

    def book1():
        e(f"    s_mov_b64 s[{S_GAT}:{S_GAT+1}], s[{S_GH}:{S_GH+1}]")
        e(f"    s_mov_b32 s{S_GAT+2}, {H1BYTES + 3072}")
        e("    s_or_b32 s71, s71, 1")
        if BS >= 1:
            rewrite_list("RW1")
        if BS >= 2:
            self_init(12)

    def book2():
        if BS < 2:
            self_init(12)
        e("    s_bitcmp1_b32 s71, 1")
        e("    s_cbranch_scc1 E_IRR")
        e("    s_or_b32 s71, s71, 16")
        w_frags()
        if BS < 1:
            rewrite_list("RW1")
        read_recs(88, 89, 128)
        e("    s_waitcnt lgkmcnt(2)")
        addr()
        e("E_BAR:")

    def book():
        if BS < 3:
            book2()
    book1()
    if BS >= 3:
        book2()
    barrier_addrs()
    e("    s_waitcnt vmcnt(0)")
    stamp("g2_ack")
    e("    s_barrier")
    e("    s_cmp_lg_u32 s3, 0")
    e("    s_cbranch_scc1 G2_NOF")
    stamp("g2_arr")
    e("    s_mov_b64 exec, 0xff")
    e(f"    buffer_store_dword v125, v2, {R(S_WS)}, s76 offen sc1")
    e("G2_NOF:")
    def own_h1():
        e("    s_mov_b32 exec_hi, 0")
        e("    s_and_b32 exec_lo, s14, 0xffff")
        e(f"    buffer_load_dword v91, v9, {R(S_STO)}, 0 offen sc1")
        e("    s_mov_b64 exec, -1")
    OL = I("ownlate", 9)
    if OL == 0:
        own_h1()
    e("    s_mov_b64 exec, -1")
    e("    s_cmp_lg_u32 s3, 0")
    e("    s_cbranch_scc1 G2_NP")
    e("    s_setprio 3")
    e("G2_NP:")
    book()
    if OL == 1:
        own_h1()
    if OL == 2:
        e("    v_mov_b32 v2, 0")
        e("    s_lshr_b32 s76, s2, 2")
        e("    s_lshl_b32 s76, s76, 7")
        e("    s_add_u32 s76, s76, s77")
        e("    s_and_b32 s75, s2, 3")
        e("    s_lshl_b32 s75, s75, 2")
        e("    s_add_u32 s76, s76, s75")
        e(f"    s_mov_b32 s75, {SPINMAX}")
        e("G2_P0:")
        e(f"    buffer_load_dword v4, v2, {R(S_WS)}, s76 offen sc1")
        e("    s_sub_u32 s75, s75, 1")
        e("    s_cmp_eq_u32 s75, 0")
        e("    s_waitcnt vmcnt(0)")
        e("    s_cbranch_scc1 G2_P1")
        e("    v_cmp_ne_u32 vcc, v4, v125")
        e("    s_cbranch_vccnz G2_P0")
        e("G2_P1:")
        own_h1()
    if I("xp", 0):
        e("    s_sub_u32 s75, s3, 2")
        e(f"    s_cmp_ge_u32 s75, {I('xp', 0)}")
        e("    s_cbranch_scc1 G2_NX")
        e("    s_xor_b32 s76, s2, 1")
        e(f"    s_mul_i32 s70, s76, {16*50006}")
        e("    s_lshr_b32 s70, s70, 12")
        e("    s_add_u32 s70, s70, 2")
        e("    s_lshl_b32 s75, s75, 6")
        e("    s_add_u32 s70, s70, s75")
        e("    v_and_b32 v4, 63, v0")
        e("    v_add_lshl_u32 v4, v4, s70, 7")
        remap(4, 2, 3)
        e("    s_lshr_b32 s70, s76, 2")
        e("    s_lshl_b32 s70, s70, 7")
        e("    s_and_b32 s76, s76, 3")
        e("    s_lshl2_add_u32 s70, s76, s70")
        e("    s_add_u32 s70, s70, s77")
        e("    v_mov_b32 v2, 0")
        e(f"    s_mov_b32 s75, {SPINMAX}")
        e("G2_XP:")
        e(f"    buffer_load_dword v5, v2, {R(S_WS)}, s70 offen sc1")
        e("    s_sub_u32 s75, s75, 1")
        e("    s_cmp_eq_u32 s75, 0")
        e("    s_waitcnt vmcnt(0)")
        e("    s_cbranch_scc1 G2_WAIT")
        e("    v_cmp_ne_u32 vcc, v5, v125")
        e("    s_cbranch_vccnz G2_XP")
        e(f"    buffer_load_dword v91, v4, {R(S_STO)}, 0 offen sc1")
        e("G2_NX:")
    e("    s_cmp_lg_u32 s3, 0")
    e("    s_cbranch_scc1 G2_WAIT")
    e(f"    s_mov_b32 s75, {SPINMAX}")
    e("G2_POLL:")
    e(f"    buffer_load_dwordx4 v[4:7], v8, {R(S_WS)}, s77 offen sc1")
    e("    s_sub_u32 s75, s75, 1")
    e("    s_cmp_eq_u32 s75, 0")
    e("    s_waitcnt vmcnt(0)")
    e("    s_cbranch_scc1 G2_WAIT")
    e("    v_xor_b32 v4, v4, v125")
    e("    v_xor_b32 v5, v5, v125")
    e("    v_xor_b32 v6, v6, v125")
    e("    v_xor_b32 v7, v7, v125")
    e("    v_or3_b32 v4, v4, v5, v6")
    e("    v_or_b32 v4, v4, v7")
    e("    v_cmp_ne_u32 vcc, 0, v4")
    if I("shrink", 1):
        e("    s_and_b64 exec, exec, vcc")
        e("    s_cbranch_scc1 G2_POLL")
    else:
        e("    s_cbranch_vccnz G2_POLL")
    e("G2_WAIT:")
    e("    s_mov_b64 exec, -1")
    if I("pp", 1):
        e("    s_setprio 0")
    e("    v_mov_b32 v8, 0")
    e("    s_and_b32 s76, s71, 2")
    e("    s_cselect_b32 s76, 0, s74")
    e("    s_cmp_lg_u32 s76, 0")
    e("    s_barrier")
    stamp("g2_exit")
    e("    s_cbranch_scc1 MAIN2")
    e("    s_bitcmp0_b32 s71, 1")
    e("    s_cbranch_scc1 MAIN")
    e("    s_branch COLLECT")
    e("FINAL:")
    MIX = I("mix", 0)
    if MIX:
        e("    s_mov_b64 exec, 1")
        e(f"    v_mov_b32 v2, {MORE+4}")
        e("    ds_add_rtn_u32 v2, v2, v1")
    e("    s_mov_b64 exec, -1")
    e("    s_bitcmp0_b32 s71, 4")
    e("    s_cbranch_scc1 F_GETW")
    e("F_HAVEW:")
    for t in range(4):
        w = WREG[t]
        e(f"    v_mfma_f32_16x16x32_bf16 v[{64+4*t}:{67+4*t}], v[{w}:{w+3}], v[12:15], 0")
    for t in range(4):
        w = WREG[4 + t]
        e(f"    v_mfma_f32_16x16x32_bf16 v[{64+4*t}:{67+4*t}], v[{w}:{w+3}], v[16:19], v[{64+4*t}:{67+4*t}]")
    e("    s_nop 4")
    for t in range(4):
        if t:
            e("    s_nop 1")
        e(f"    v_cvt_pk_bf16_f32 v{12+2*t}, v{64+4*t}, v{65+4*t}")
        e(f"    v_cvt_pk_bf16_f32 v{13+2*t}, v{66+4*t}, v{67+4*t}")
    if MIX:
        e("    s_waitcnt lgkmcnt(0)")
        e("    v_readfirstlane_b32 s76, v2")
        e("    s_mov_b64 exec, s[14:15]")
        e(f"    s_cmp_lt_u32 s76, {MIX}")
        e("    s_cbranch_scc1 F_WT")
        e(f"    buffer_store_dwordx4 v[12:15], v121, {R(S_OUT)}, 0 offen {OPT.get('mixf', '')}")
        e(f"    buffer_store_dwordx4 v[16:19], v121, {R(S_OUT)}, 0 offen offset:64 {OPT.get('mixf', '')}")
        e("    s_branch F_ST")
        e("F_WT:")
    e("    s_mov_b64 exec, s[14:15]")
    e(f"    buffer_store_dwordx4 v[12:15], v121, {R(S_OUT)}, 0 offen {ST_OUT}")
    e(f"    buffer_store_dwordx4 v[16:19], v121, {R(S_OUT)}, 0 offen offset:64 {ST_OUT}")
    e("F_ST:")
    stamp_out()
    e("END:")
    e("    s_endpgm")


def out_of_line():
    for i in range(2):
        base = 12 + 4 * i
        e(f"C_RETRY{i}:")
        e("    s_lshr_b64 s[76:77], vcc, 1")
        e("    s_or_b64 vcc, vcc, s[76:77]")
        e("    s_lshr_b64 s[76:77], vcc, 2")
        e("    s_or_b64 vcc, vcc, s[76:77]")
        e("    s_and_b32 vcc_lo, vcc_lo, 0x11111111")
        e("    s_and_b32 vcc_hi, vcc_hi, 0x11111111")
        e("    s_mul_i32 exec_lo, vcc_lo, 15")
        e("    s_mul_i32 exec_hi, vcc_hi, 15")
        if I("rbo", 0):
            e(f"    s_sleep {I('rbo', 0)}")
        e(f"    buffer_load_dwordx4 v[{base}:{base+3}], v{6+i}, {R(S_WS)}, s{68+i} offen {SC}")
        e(f"    s_mov_b64 exec, {ACT[i]}")
        e("    s_sub_u32 s75, s75, 1")
        e("    s_cmp_eq_u32 s75, 0")
        e("    s_waitcnt vmcnt(0)")
        e(f"    s_cbranch_scc0 C_CHK{i}")
        e("    s_mov_b32 s75, 1000")
        if DIAG:
            e(f"    s_or_b32 s48, s48, {1 << i}")
            e("    s_mov_b64 s[50:51], vcc")
        e(f"    s_branch C_OK{i}")
    e("C_RETRY2:")
    if I("bo", 0):
        e(f"    s_sleep {I('bo', 0)}")
    load_headers()
    e("    s_sub_u32 s75, s75, 1")
    e("    s_cmp_eq_u32 s75, 0")
    e("    s_waitcnt vmcnt(0)")
    e("    s_cbranch_scc0 C_CHK2")
    e("    s_mov_b32 s75, 1000")
    if DIAG:
        e("    s_or_b32 s48, s48, 4")
        e("    s_mov_b64 s[50:51], vcc")
    e("    s_branch C_OK2")
    probe()
    e("VOTES:")
    e("    s_sub_u32 s28, s28, 1")
    e("    s_bitcmp1_b32 s71, 7")
    e("    s_cbranch_scc0 VOTEL")
    e("    v_cmp_ne_u32 vcc, v4, v125")
    e("    s_cbranch_vccnz VOTEL")
    vote_count()
    e("    s_branch VOTED")
    e("VOTEL:")
    e("    s_or_b32 s71, s71, 128")
    vote_load()
    e("    s_branch VOTED")
    e("E_NOC:")
    e(f"    s_mov_b32 s75, {SPINMAX}")
    e("    s_cmp_lg_u32 s3, 1")
    e("    s_cbranch_scc1 E_SPIN")
    e("E_VP:")
    vote_load()
    e("    s_sub_u32 s75, s75, 1")
    e("    s_cmp_eq_u32 s75, 0")
    e("    s_waitcnt vmcnt(0)")
    e("    s_cbranch_scc1 E_VC")
    e("    v_cmp_ne_u32 vcc, v4, v125")
    e("    s_cbranch_vccnz E_VP")
    e("E_VC:")
    vote_count()
    e("E_SPIN:")
    e(f"    v_mov_b32 v7, {CFLAG}")
    e("    ds_read_b32 v7, v7")
    e("    s_waitcnt lgkmcnt(0)")
    e("    v_readfirstlane_b32 s80, v7")
    e("    s_cmp_eq_u32 s80, 0")
    e("    s_cbranch_scc1 E_SPIN")
    e("    s_branch E_HAVEC")
    a_overflow()
    e("AGAIN:")
    e("    s_setprio 0")
    e("    s_or_b32 s71, s71, 2")
    e("    s_barrier")
    zero_b_counters((CFLAG - CNTB) // 4)
    e("    s_waitcnt lgkmcnt(0)")
    e("    s_barrier")
    for s in range(7):
        e(f"    s_mov_b64 exec, {PEND(s)}")
        e(f"    ds_add_rtn_u32 v{32+s}, v{40+s}, v1")
    e("EXTRA:")
    for m, r in (("s[4:5]", 116), ("s[6:7]", 118)):
        e(f"    s_andn2_b64 exec, {m}, {PEND(7)}")
        e(f"    s_andn2_b64 {m}, {m}, exec")
        e(f"    s_or_b64 {PEND(7)}, {PEND(7)}, exec")
        decode_full(r, r + 1, 7)
    e("    s_mov_b64 exec, -1")
    e("    s_or_b64 s[76:77], s[4:5], s[6:7]")
    e("    s_cbranch_scc1 OVFULL")
    e("    s_mov_b32 s75, 0")
    e("OVL:")
    e("    s_cmp_lt_u32 s68, s69")
    e("    s_cbranch_scc1 OVLOAD")
    e("    s_cmp_eq_u64 s[72:73], 0")
    e("    s_cbranch_scc1 OVDONE")
    e("    s_ff1_i32_b64 s76, s[72:73]")
    e("    s_bitset0_b64 s[72:73], s76")
    e("    s_or_b32 s77, s76, 7")
    e("    v_readlane_b32 s68, v117, s77")
    e("    v_readlane_b32 s69, v119, s77")
    e("    s_bitcmp1_b32 s76, 0")
    e("    s_cselect_b32 s69, s69, s68")
    e("    s_and_b32 s69, s69, 0xfff")
    e(f"    s_min_u32 s69, s69, {CHMAX}")
    e("    s_and_b32 s77, s76, 1")
    e("    s_lshl_b32 s77, s77, 7")
    e("    s_lshr_b32 s76, s76, 3")
    e("    s_add_u32 s76, s76, s77")
    e("    s_lshl_b32 s77, s3, 3")
    e("    s_add_u32 s76, s76, s77")
    e("    s_lshl_b32 s70, s76, 15")
    e(f"    s_mov_b32 s68, {NINL}")
    e("OVLOAD:")
    e("    v_add_u32 v4, s75, v0")
    e("    v_and_b32 v4, 63, v4")
    e("    v_add_u32 v4, s68, v4")
    e("    v_lshlrev_b32 v5, 3, v4")
    e(f"    buffer_load_dwordx2 v[28:29], v5, {R(S_OVF)}, s70 offen {SC}")
    e("    s_waitcnt vmcnt(0)")
    e(f"    v_mul_u32_u24 v30, {TM}, v29")
    e("    v_lshrrev_b32 v31, 20, v30")
    e("    v_cmp_gt_u32 vcc, s69, v4")
    e("    v_cmp_eq_u32 s[76:77], s2, v31")
    e("    s_and_b64 vcc, s[76:77], vcc")
    e(f"    s_and_b64 s[76:77], vcc, {PEND(7)}")
    e("    s_cbranch_scc1 OVFULL")
    e(f"    s_or_b64 {PEND(7)}, {PEND(7)}, vcc")
    e("    s_add_u32 s68, s68, 64")
    e("    s_add_u32 s75, s75, 16")
    e("    s_mov_b64 exec, vcc")
    decode_full(28, 29, 7)
    e("    s_mov_b64 exec, -1")
    e("    s_branch OVL")
    e("OVFULL:")
    e(f"    v_mov_b32 v2, {MORE}")
    e("    ds_write_b32 v2, v1")
    e("OVDONE:")
    e(f"    s_mov_b64 exec, {PEND(7)}")
    e("    ds_add_rtn_u32 v39, v47, v1")
    e("    s_mov_b64 exec, -1")
    e("    s_branch CDONE")
    e("SLOWW:")
    e("    s_waitcnt lgkmcnt(0)")
    for s in range(8):
        e(f"    s_mov_b64 exec, {PEND(s)}")
        e(f"    v_lshl_add_u32 v{20+s}, v{32+s}, 2, v{20+s}")
        e(f"    v_subrev_u32 v3, s0, v{40+s}")
        e("    v_lshrrev_b32 v3, 6, v3")
        e(f"    v_mul_u32_u24 v3, {TSTR}, v3")
        e(f"    v_add_u32 v3, {LISTS + CAPT*4}, v3")
        e(f"    v_cmp_lt_u32 vcc, v{20+s}, v3")
        e(f"    s_andn2_b64 {PEND(s)}, exec, vcc")
        e("    s_mov_b64 exec, vcc")
        e(f"    ds_write2st64_b32 v{20+s}, v{48+s}, v{56+s} offset0:0 offset1:5")
    e("    s_mov_b64 exec, -1")
    e(f"    v_mov_b32 v3, {MORE}")
    e("    ds_write_b32 v3, v1")
    e("    s_branch WDONE")
    e("REMAP2:")
    REWRITE("RW2")
    e("    s_branch MAIN1")
    e("E_IRR:")
    e("    s_mov_b32 s70, s77")
    zero_b_counters(256)
    e("    s_mov_b32 s77, s70")
    collect_addrs()
    for i in range(4):
        e(f"    v_mov_b32 v{100+i}, {PADV}")
    e("    s_waitcnt lgkmcnt(0)")
    e("    s_branch E_BAR")
    e("EMPTY:")
    e("    s_waitcnt vmcnt(0) lgkmcnt(0)")
    e("    s_bitcmp1_b32 s71, 3")
    e("    s_cbranch_scc1 MAINDONE")
    e("    s_or_b32 s71, s71, 8")
    own_addr("PRB_E")
    self_init(64)
    e("    s_branch MAINDONE")
    e("F_GETW:")
    e("    s_waitcnt lgkmcnt(0)")
    w_frags()
    e("    s_waitcnt lgkmcnt(0)")
    e("    s_branch F_HAVEW")
    e("CODE_END:")


def body():
    e(f".globl {NAME}")
    e(".p2align 8")
    e(f".type {NAME},@function")
    e(f"{NAME}:")
    phase_a()
    setup1()
    if SP == 0:
        setup2()
        setup3()
    if I("pc", 1):
        e("    s_setprio 3")
    AK = I("ackb", 1)
    if AK == 1:
        e("    s_waitcnt vmcnt(0) lgkmcnt(0)")
    elif AK == 2:
        e("    s_waitcnt vmcnt(1) lgkmcnt(0)")
    elif AK >= 4:
        e(f"    s_cmp_ge_u32 s3, {AK}")
        e("    s_waitcnt lgkmcnt(0)")
        e("    s_cbranch_scc1 G1_NA")
        e("    s_waitcnt vmcnt(0)")
        e("G1_NA:")
    else:
        e("    s_waitcnt lgkmcnt(0)")
    stamp("g1_ack")
    e("    s_barrier")
    stamp("g1_exit")
    phase_b()
    main_loop()
    out_of_line()


def spin_kernel():
    na, nb_, mode, mult, wlo, whi = (SPIN.split(",") + ["0", "15"])[:6]
    wlo, whi = int(wlo), int(whi)
    ia, ib, mode, mult = STL.index(na), STL.index(nb_), int(mode), int(mult)
    init = "0x80000000" if mode == 0 else "0x7fffffff" if mode == 1 else "0"
    e(".globl sgc_spin_kernel")
    e(".p2align 8")
    e(".type sgc_spin_kernel,@function")
    e("sgc_spin_kernel:")
    e("    s_memrealtime s[30:31]")
    e("    s_cmp_ge_u32 s2, 1")
    e("    s_cbranch_scc1 SP_END")
    e("    s_load_dwordx8 s[12:19], s[0:1], 32")
    e("    v_lshlrev_b32 v1, 6, v0")
    e("    v_mov_b32 v4, 0x7fffffff")
    e(f"    v_mov_b32 v5, {init}")
    e("    s_mov_b32 s23, 0x20000")
    e("    s_waitcnt lgkmcnt(0)")
    srd(20, 18, 19, 1 << 20, WS_STAMP)
    e("    s_mov_b32 s24, 0")
    e("SP_RD:")
    e(f"    buffer_load_dword v2, v1, s[20:23], s24 offen offset:{4*ia}")
    e(f"    buffer_load_dword v3, v1, s[20:23], s24 offen offset:{4*ib}")
    e("    s_add_u32 s24, s24, 4096")
    e("    s_cmp_lt_u32 s24, 0x40000")
    e("    s_waitcnt vmcnt(0)")
    e("    v_subrev_u32 v2, s30, v2")
    e("    v_subrev_u32 v3, s30, v3")
    e("    v_min_i32 v4, v4, v2")
    e("    %s v5, v5, v3" % ("v_max_i32" if mode == 0 else "v_min_i32" if mode == 1 else "v_add_u32"))
    e("    s_cbranch_scc1 SP_RD")
    e("    s_mov_b32 s26, 0x7fffffff")
    e(f"    s_mov_b32 s27, {init}")
    e("    s_nop 1")
    for l in range(64):
        e(f"    v_readlane_b32 s28, v4, {l}")
        e(f"    v_readlane_b32 s29, v5, {l}")
        e("    s_min_i32 s26, s26, s28")
        if wlo <= (l & 15) <= whi:
            e("    %s s27, s27, s29" % ("s_max_i32" if mode == 0 else "s_min_i32" if mode == 1 else "s_add_u32"))
    if mode == 2:
        e("    s_ashr_i32 s27, s27, %d" % (8 + (whi - wlo + 1).bit_length() - 1))
    e("    s_sub_i32 s26, s27, s26")
    e("    s_max_i32 s26, s26, 0")
    e("    s_min_i32 s26, s26, 20000")
    e(f"    s_mul_i32 s26, s26, {mult}")
    e("    s_add_u32 s26, s26, 10000")
    e("SP_LOOP:")
    e("    s_memrealtime s[28:29]")
    e("    s_waitcnt lgkmcnt(0)")
    e("    s_sub_u32 s28, s28, s30")
    e("    s_cmp_lt_u32 s28, s26")
    e("    s_cbranch_scc1 SP_LOOP")
    e("SP_END:")
    e("    s_endpgm")


def desc(name, vg, sg):
    e(".p2align 6")
    e(f".amdhsa_kernel {name}")
    e(f"  .amdhsa_next_free_vgpr {vg}")
    e(f"  .amdhsa_next_free_sgpr {sg}")
    e(f"  .amdhsa_accum_offset {vg}")
    e("  .amdhsa_group_segment_fixed_size 0")
    e("  .amdhsa_kernarg_size 64")
    e("  .amdhsa_user_sgpr_count 2")
    e("  .amdhsa_user_sgpr_kernarg_segment_ptr 1")
    e("  .amdhsa_system_sgpr_workgroup_id_x 1")
    e(".end_amdhsa_kernel")


SPIN = OPT.get("spin")
if SPIN:
    e(f"; @launch kernel={NAME} grid=(256,1,1) block=(1024,1,1) lds={LDS}")
    e("; @launch kernel=sgc_spin_kernel grid=(1,1,1) block=(64,1,1) lds=0")
else:
    e(f"; @launch grid=(256,1,1) block=(1024,1,1) lds={LDS}")
e('.amdgcn_target "amdgcn-amd-amdhsa--gfx950"')
e(".text")
body()
if SPIN:
    spin_kernel()
e('.section .rodata,"a"')
if SPIN:
    desc("sgc_spin_kernel", 8, 40)
desc(NAME, 128, 102 if DIAG else 82)
open(OUT, "w").write("\n".join(L) + "\n")
```

```python
import sys

OUT = [a for a in sys.argv[1:] if not a.startswith("--")][0]
OPT = dict(a[2:].split("=") for a in sys.argv[1:] if a.startswith("--") and "=" in a)
NAME = "standalone__spectral_conv_sgc__graph_kernel"
DEFST = "start,a_bar2,b_bar1,b_bar2,h1_done,g2_ack,g2_arr,g2_exit,h2_done,end"
STL = OPT.get("st", DEFST if "--diag" in sys.argv else "").split(",")
STL = [s for s in STL if s]
DIAG = len(STL) > 0


def I(name, dflt):
    return int(OPT.get(name, dflt))


N = 50000
E = 850000
ET = 800000
TM = 5368
CHMAX = 13 * 256
SLOTCAP = 24
NINL = 7
WS_OVT = 8 << 20
WS_FLAG = WS_OVT + 131072
WS_VOTE = WS_FLAG + 65536
WS_H1 = 12 << 20
H1BYTES = 782 * 16384
WS_OVF = 40 << 20
OVF_STRIDE = 32768
WS_STAMP = 32 << 20
TABBYTES = N * 128
PADV = 0x40000000

K1_LS = 132
K1_CNT = 256 * K1_LS
K1_OVC = 1024
K1_DONE = 1028
K1_OVT = K1_CNT + 4096
K1_NON = K1_OVT + 64
K1_MSK = K1_NON + 16
LISTS = 65536
CAPT = 320
TSTR = CAPT * 8
CNTB = LISTS + 16 * TSTR + 256
BASES = CNTB + 1024
MORE = BASES + 1024
CFLAG = MORE + 64
WL = MORE + 128
assert WL % 128 == 0
SELFN = WL + 8192
LDS = SELFN + 1024

SC = "sc1"
ST_OUT = OPT.get("stout", "sc1")
SPINMAX = I("spinmax", 20000000)
NB = I("nb", 8)
TSH = I("tsh", 20)
ROT = I("rot", 6250)
SP = I("sp", 1)
EARLY = I("early", 0)
SEGB = I("segb", 2)

L = []


def e(s=""):
    L.append(s)


def srd(d, lo, hi, nbytes, off=0):
    if off == 0:
        e(f"    s_mov_b64 s[{d}:{d+1}], s[{lo}:{hi}]")
    elif off > 0:
        e(f"    s_add_u32 s{d}, s{lo}, {off}")
        e(f"    s_addc_u32 s{d+1}, s{hi}, 0")
    else:
        e(f"    s_sub_u32 s{d}, s{lo}, {-off}")
        e(f"    s_subb_u32 s{d+1}, s{hi}, 0")
    e(f"    s_mov_b32 s{d+2}, {nbytes}")
    e(f"    s_mov_b32 s{d+3}, s23")


S_SRC, S_DST, S_NRM, S_WS, S_OVF, S_GAT, S_STO = 20, 24, 28, 32, 36, 40, 44
S_OUT, S_GH = S_SRC, S_DST


def R(d):
    return f"s[{d}:{d+3}]"


STAMP_BASE = 82


def stamp(name):
    if name in STL:
        i = STL.index(name)
        e(f"    s_memrealtime s[{STAMP_BASE+2*i}:{STAMP_BASE+2*i+1}]")


def stamp2(n1, n2):
    if n1 in STL or n2 in STL:
        n = len(L)
        e("    s_bitcmp1_b32 s71, 0")
        e(f"    s_cbranch_scc1 ST{n}_B")
        stamp(n1)
        e(f"    s_branch ST{n}_C")
        e(f"ST{n}_B:")
        stamp(n2)
        e(f"ST{n}_C:")


def stamp_out():
    if not DIAG:
        return
    e("    s_waitcnt vmcnt(0) lgkmcnt(0)")
    stamp("end")
    e("    s_waitcnt lgkmcnt(0)")
    e("    s_mov_b64 exec, 1")
    srd(28, 18, 19, 1 << 20, WS_STAMP)
    e("    s_lshl_b32 s76, s2, 4")
    e("    s_add_u32 s76, s76, s3")
    e("    s_lshl_b32 s76, s76, 6")
    e("    v_mov_b32 v2, s76")
    for i in range(len(STL)):
        e(f"    v_mov_b32 v3, s{STAMP_BASE+2*i}")
        e(f"    buffer_store_dword v3, v2, s[28:31], 0 offen offset:{4*i}")
    e("    s_getreg_b32 s76, hwreg(HW_REG_XCC_ID)")
    e("    v_mov_b32 v3, s76")
    e("    buffer_store_dword v3, v2, s[28:31], 0 offen offset:56")
    e("    s_lshl_b32 s76, s48, 16")
    e("    s_or_b32 s76, s76, s74")
    e("    v_mov_b32 v3, s76")
    e("    buffer_store_dword v3, v2, s[28:31], 0 offen offset:60")
    e("    v_mov_b32 v3, s50")
    e("    buffer_store_dword v3, v2, s[28:31], 0 offen offset:48")
    e("    v_mov_b32 v3, s51")
    e("    buffer_store_dword v3, v2, s[28:31], 0 offen offset:52")


def PEND(s):
    return f"s[{52+2*s}:{53+2*s}]"


def prio_by_age(lbl):
    for g in range(1, 4):
        e(f"    s_cmp_lt_u32 s3, {4*g}")
        e(f"    s_cbranch_scc1 {lbl}")
        e(f"    s_setprio {g}")
    e(f"{lbl}:")


def decode_key(rec, meta, k, s):
    ca = 40 + s
    e(f"    v_add_u32 v2, s27, v{rec}")
    e(f"    v_and_b32_sdwa v3, v{meta}, v99 dst_sel:DWORD dst_unused:UNUSED_PAD src0_sel:BYTE_{k} src1_sel:DWORD")
    e("    v_bfe_u32 v2, v2, 12, 4")
    e("    v_or_b32 v2, v2, v3")
    e(f"    v_lshl_add_u32 v{ca}, v2, 2, s0")


def decode_data(rec, meta, k, s):
    d0, d1 = 48 + s, 56 + s
    e(f"    v_lshlrev_b32_sdwa v{d0}, v124, v{rec} dst_sel:DWORD dst_unused:UNUSED_PAD src0_sel:DWORD src1_sel:WORD_0")
    e(f"    v_mov_b32 v{d1}, v{rec}")
    e(f"    v_lshlrev_b16_sdwa v{d1}, v{meta}, v1 dst_sel:WORD_0 dst_unused:UNUSED_PRESERVE src0_sel:BYTE_{k} src1_sel:DWORD")


def decode_full(rec, dst, s):
    e(f"    v_mul_u32_u24 v30, {TM}, v{dst}")
    e("    v_lshrrev_b32 v30, 12, v30")
    e(f"    v_bfi_b32 v30, 15, v{dst}, v30")
    decode_key(rec, 30, 0, s)
    decode_data(rec, 30, 0, s)


def zero_b_counters(n):
    e("    v_lshlrev_b32 v2, 2, v0")
    e(f"    v_add_u32 v2, {CNTB}, v2")
    e("    v_mov_b32 v3, 0")
    e(f"    v_cmp_gt_u32 vcc, {n}, v0")
    e("    s_and_saveexec_b64 s[76:77], vcc")
    e("    ds_write_b32 v2, v3")
    e("    s_mov_b64 exec, -1")


def collect_addrs():
    e("    v_lshrrev_b32 v9, 3, v0")
    e("    v_lshlrev_b32 v93, 7, v9")
    e("    v_lshlrev_b32 v9, 15, v9")
    e("    v_lshl_add_u32 v9, v10, 4, v9")
    e("    v_lshl_add_u32 v93, v10, 3, v93")


def own_x():
    e("    s_bitcmp1_b32 s71, 3")
    e("    s_cbranch_scc1 NOOWN")
    e("    s_mov_b64 exec, s[14:15]")
    e(f"    buffer_load_dwordx4 v[64:67], v121, {R(S_GAT)}, 0 offen offset:3072")
    e(f"    buffer_load_dwordx4 v[68:71], v121, {R(S_GAT)}, 0 offen offset:3136")
    if I("xtra", 0):
        e(f"    s_mov_b64 exec, {(1 << I('xtra', 0)) - 1}")
        e(f"    s_movk_i32 s76, {196*128}")
        e(f"    buffer_load_dword v91, v121, {R(S_GAT)}, s76 offen offset:3072")
    e("NOOWN:")
    e("    s_mov_b64 exec, -1")


def own_addr(lbl):
    e(f"    v_bfe_u32 v2, v121, {I('rsh', 13)}, {I('rbits', 2)}")
    e("    v_and_b32 v9, 0xffffe000, v121")
    e(f"    v_cmp_gt_u32 s[78:79], {I('rep', 1)}, v2")
    e("    v_add_u32 v9, v9, v121")
    e("    v_lshrrev_b32 v2, 8, v9")
    e("    v_and_b32 v2, 0x2000, v2")
    e("    v_xor_b32 v9, v9, v2")
    e("    s_and_b32 s76, s26, 3")
    e("    s_or_b32 s76, s76, s3")
    e(f"    s_cbranch_scc1 {lbl}")
    e("    s_or_b32 s71, s71, %d" % (64 if lbl == "PRB_M" else 0))
    e("    s_branch PROBE")
    e(f"{lbl}:")


def probe():
    e("PROBE:")
    e("    s_lshr_b32 s76, s29, 12")
    e("    s_lshl3_add_u32 s77, s26, s76")
    e("    s_lshl_b32 s80, s77, 15")
    e("    s_xor_b32 s81, s29, 0x1000")
    e("    s_add_u32 s80, s80, s81")
    e("    s_xor_b32 s81, s80, 0x2000")
    e("    s_waitcnt lgkmcnt(0)")
    e("    s_memtime vcc")
    e("    s_load_dword s50, s[18:19], s80")
    e("    s_waitcnt lgkmcnt(0)")
    e("    s_memtime s[76:77]")
    e("    s_load_dword s50, s[18:19], s81")
    e("    s_waitcnt lgkmcnt(0)")
    e("    s_sub_u32 s75, s76, vcc_lo")
    e("    s_memtime vcc")
    e("    s_waitcnt lgkmcnt(0)")
    e("    s_sub_u32 s77, vcc_lo, s76")
    if DIAG:
        e("    s_mov_b32 s50, s75")
        e("    s_mov_b32 s51, s77")
    e("    s_cmp_lt_u32 s75, s77")
    e("    s_cselect_b32 s80, s80, s81")
    e("    s_lshr_b32 s81, s80, 8")
    e("    s_xor_b32 s80, s80, s81")
    e("    s_lshr_b32 s80, s80, 13")
    e("    s_xor_b32 s80, s80, s2")
    e("    s_and_b32 s80, s80, 1")
    if OPT.get("cfix"):
        e(f"    s_mov_b32 s80, {OPT['cfix']}")
    e("    s_lshr_b32 s76, s29, 12")
    e("    s_lshr_b32 s77, s26, 2")
    e("    s_lshl3_add_u32 s77, s77, s76")
    e("    s_lshl_b32 s77, s77, 7")
    e(f"    s_add_u32 s77, s77, {WS_VOTE}")
    e("    v_lshlrev_b32 v2, 3, v0")
    e("    v_mov_b32 v4, v125")
    e("    v_mov_b32 v5, s80")
    e("    s_mov_b64 exec, 0xffff")
    e(f"    buffer_store_dwordx2 v[4:5], v2, {R(S_WS)}, s77 offen sc1")
    e("    s_mov_b64 exec, -1")
    e("    s_bitcmp0_b32 s71, 6")
    e("    s_cbranch_scc1 PRB_E")
    if I("catch", 1):
        e("    s_sub_u32 s10, s10, 1")
    e("    s_waitcnt vmcnt(5)")
    e("    s_branch PRB_M2")


def vote_load():
    e("    v_and_b32 v2, 63, v0")
    e("    v_lshlrev_b32 v2, 7, v2")
    e(f"    s_mov_b32 s76, {WS_VOTE}")
    e(f"    buffer_load_dwordx2 v[4:5], v2, {R(S_WS)}, s76 offen sc1")


def vote_count():
    e("    v_cmp_eq_u32 vcc, 1, v5")
    e("    s_bcnt1_i32_b64 s76, vcc")
    e("    s_cmp_ge_u32 s76, 32")
    e("    s_cselect_b32 s76, 3, 2")
    e(f"    v_mov_b32 v2, {CFLAG}")
    e("    v_mov_b32 v3, s76")
    e("    ds_write_b32 v2, v3")
    e("    s_movk_i32 s28, 0x7fff")


def self_init(b):
    e("    s_mov_b64 exec, s[16:17]")
    e(f"    v_swap_b32 v{b}, v{b+2}")
    e(f"    v_swap_b32 v{b+1}, v{b+3}")
    e(f"    v_swap_b32 v{b+4}, v{b+6}")
    e(f"    v_swap_b32 v{b+5}, v{b+7}")
    e("    s_mov_b64 exec, -1")
    for i in reversed(range(8)):
        e(f"    v_and_b32 v{65+2*i}, 0xffff0000, v{b+i}")
        e(f"    v_lshlrev_b32 v{64+2*i}, 16, v{b+i}")
    for i in range(16):
        e(f"    v_mul_f32 v{64+i}, v126, v{64+i}")


def phase_a():
    stamp("start")
    e("    s_getpc_b64 s[6:7]")
    e("CPF_PC:")
    e("    v_cmp_gt_u32 vcc, (SLOWW-CPF_PC+127)/128, v0")
    e("    v_lshlrev_b32 v2, 7, v0")
    e("    s_load_dwordx2 s[24:25], s[0:1], 16")
    e("    s_mov_b64 exec, vcc")
    e("    s_mov_b32 s8, vcc_lo")
    e("    s_cbranch_execz CPF_D")
    e("    global_load_dword v126, v2, s[6:7] offset:124")
    e("CPF_D:")
    e("    s_load_dwordx2 s[20:21], s[0:1], 8")
    e("    s_load_dwordx2 s[28:29], s[0:1], 24")
    e("    s_load_dwordx2 s[10:11], s[0:1], 56")
    e("    s_mov_b64 exec, -1")
    e("    s_cmp_ge_u32 s2, 256")
    e("    s_cbranch_scc1 END")
    TCH = I("touch", 1)
    e("    v_lshrrev_b32 v3, 6, v0")
    e("    v_and_b32 v2, 63, v0")
    e("    s_mov_b32 s23, 0x20000")
    e(f"    s_mov_b32 s22, {E*4}")
    e("    v_lshlrev_b32 v4, 18, v3")
    e("    s_mov_b64 s[26:27], s[22:23]")
    e("    v_lshl_or_b32 v4, v2, 4, v4")
    e("    s_lshr_b32 s30, s22, 1")
    e("    s_mov_b32 s31, s23")
    e("    v_lshrrev_b32 v5, 1, v4")
    e("    s_lshl_b32 s68, s2, 10")
    e("    v_cmp_gt_u32 vcc, 13, v3")
    e("    s_lshl_b32 s69, s2, 9")
    e(f"    v_mov_b32 v125, {WS_FLAG + (I('wsoff', 0) << 20)}")
    e("    s_cmp_eq_u32 s8, 0")
    e("    s_waitcnt lgkmcnt(0)")
    e("    s_cbranch_scc1 A_NOZ")
    e("    global_load_dword v125, v125, s[10:11] sc1")
    e("A_NOZ:")
    e("    s_cbranch_vccz A_NOLD0")
    LI = OPT.get("ldin", "")
    e(f"    buffer_load_dwordx4 v[12:15], v4, {R(S_DST)}, s68 offen {LI}")
    e("A_NOLD0:")
    e("    s_barrier")
    e("    s_cbranch_vccz A_NOLD")
    e(f"    buffer_load_dwordx4 v[16:19], v4, {R(S_SRC)}, s68 offen {LI}")
    e(f"    buffer_load_dwordx2 v[20:21], v5, {R(S_NRM)}, s69 offen {LI}")
    e("A_NOLD:")
    stamp("a_issue")
    e("    s_load_dwordx8 s[12:19], s[0:1], 32")
    e("    s_load_dwordx2 s[4:5], s[0:1], 0")
    e("    v_readfirstlane_b32 s3, v3")
    e("    v_lshlrev_b32 v9, 2, v0")
    e("    v_mov_b32 v6, 0")
    e(f"    ds_write_b32 v9, v6 offset:{K1_CNT}")
    for i in range(4):
        e(f"    v_mov_b32 v{24+i}, -1")
    e("    v_lshlrev_b32 v7, 4, v0")
    e("    ds_write_b128 v7, v[24:27]")
    e("    ds_write_b128 v7, v[24:27] offset:16384")
    e("    v_add_u32 v4, s68, v4")
    e("    v_lshrrev_b32 v8, 2, v4")
    e("    v_cmp_gt_u32 s[72:73], s22, v4")
    e(f"    v_subrev_u32 v8, {ET}, v8")
    e("    v_mov_b32 v1, 1")
    e("    v_and_b32 v10, 7, v0")
    srd(S_WS, 10, 11, WS_H1 + H1BYTES, I("wsoff", 0) << 20)
    e("    s_cmp_lt_u32 s3, 13")
    e("    s_cbranch_scc1 A_BAR")
    e("    s_cmp_lt_u32 s3, 14")
    e("    s_cbranch_scc1 A_H13")
    e("    s_cmp_eq_u32 s3, 14")
    e("    s_cbranch_scc1 A_H14")
    e(f"    ds_write_b128 v7, v[24:27] offset:{32768 - 15*1024}")
    e("    v_and_b32 v5, 60, v9")
    e("    v_mov_b32 v7, 0xffff")
    e(f"    ds_write_b32 v5, v7 offset:{K1_OVT}")
    e("    s_branch A_BAR")
    e("A_H14:")
    if I("hv", 0):
        e("    v_bfe_u32 v52, v0, 4, 2")
        e("    v_and_b32 v3, 15, v0")
        e("    v_lshlrev_b32 v52, 15, v52")
        e("    s_lshl_b32 s75, s2, 7")
        e("    v_lshl_or_b32 v52, v3, 3, v52")
        e(f"    s_add_u32 s75, s75, {WS_OVT}")
        e("    v_bfe_i32 v5, v0, 0, 1")
        e(f"    buffer_store_dwordx2 v[4:5], v52, {R(S_WS)}, s75 offen sc1")
    e(f"    v_lshlrev_b32 v2, {TSH}, v2")
    if TCH == 1:
        e(f"    buffer_load_dword v126, v2, {R(S_WS)}, 0 offen offset:{I('toff', 3968)} sc1")
    if TCH and I("txo", 1):
        e("    s_waitcnt lgkmcnt(0)")
        srd(S_GAT, 4, 5, TABBYTES)
        e(f"    buffer_load_dword v126, v2, {R(S_GAT)}, 0 offen")
        srd(S_OVF, 14, 15, TABBYTES)
        e(f"    buffer_load_dword v126, v2, {R(S_OVF)}, 0 offen sc1")
    e("    s_branch A_BAR")
    e("A_H13:")
    if I("pt", 0) == 1:
        e("    s_lshl_b32 s77, s2, 6")
        e(f"    s_add_u32 s77, s77, {WS_OVT}")
        e("    v_lshlrev_b32 v2, 14, v2")
        e("    s_mov_b64 exec, 0xff")
        e(f"    buffer_load_dword v126, v2, {R(S_WS)}, s77 offen sc1")
        e("    s_mov_b64 exec, -1")
    elif I("pt", 0) == 2:
        e("    s_lshl_b32 s77, s2, 9")
        e(f"    s_add_u32 s77, s77, {WS_OVT}")
        e("    v_lshlrev_b32 v2, 7, v2")
        e("    s_mov_b64 exec, 15")
        e(f"    buffer_load_dword v126, v2, {R(S_WS)}, s77 offen sc1")
        e("    s_mov_b64 exec, -1")
    e("A_BAR:")
    e("    s_lshr_b32 s76, s2, 7")
    e("    s_add_u32 s77, s76, s2")
    e("    s_and_b32 s77, s77, 3")
    e("    s_lshl_b32 s77, s77, 6")
    e("    s_lshl1_add_u32 s77, s76, s77")
    e("    s_bfe_u32 s76, s2, 0x40003")
    e("    s_lshl2_add_u32 s77, s76, s77")
    e("    s_bfe_u32 s76, s2, 0x10002")
    e("    s_add_u32 s65, s77, s76")
    if I("pa", 1):
        prio_by_age("A_PRD")
    e("    s_waitcnt lgkmcnt(0)")
    if I("wsoff", 0):
        e("    s_mov_b64 s[18:19], s[32:33]")
    e("    s_barrier")
    stamp("a_bar1")
    e("    s_cmp_lt_u32 s3, 12")
    e("    s_cbranch_scc1 A_SETUP")
    e("    v_bfe_u32 v2, v0, 4, 4")
    e("    s_lshl_b32 s76, s65, 4")
    e("    v_add_u32 v2, s76, v2")
    e("    v_mul_u32_u24 v3, 50006, v2")
    e("    v_lshrrev_b32 v3, 12, v3")
    e("    v_sub_u32 v4, v0, v3")
    e("    v_and_b32 v4, 15, v4")
    e("    v_add_u32 v115, v3, v4")
    e(f"    v_add_u32 v4, {ET}, v115")
    e("    v_lshlrev_b32 v5, 2, v4")
    e("    v_lshlrev_b32 v4, 1, v4")
    e(f"    buffer_load_dword v112, v5, {R(S_DST)}, 0 offen")
    e(f"    buffer_load_dword v113, v5, {R(S_SRC)}, 0 offen")
    e(f"    buffer_load_ushort v114, v4, {R(S_NRM)}, 0 offen")
    e(f"    v_mul_u32_u24 v4, {TM}, v115")
    e("    v_lshrrev_b32 v4, 16, v4")
    e("    v_cmp_eq_u32 s[66:67], v4, v2")
    e(f"    v_cmp_gt_u32 vcc, {N}, v115")
    e("    s_and_b64 s[66:67], s[66:67], vcc")
    e("    s_cmp_eq_u32 s3, 12")
    e("    s_cbranch_scc1 A_SETUP")
    srd(S_STO, 12, 13, 8192)
    e(f"    v_subrev_u32 v2, {13*64}, v0")
    e("    v_lshlrev_b32 v2, 4, v2")
    e(f"    buffer_load_dwordx4 v[100:103], v2, {R(S_STO)}, 0 offen")
    e(f"    buffer_load_dwordx4 v[104:107], v2, {R(S_STO)}, 0 offen offset:3072")
    e("    v_add_u32 v3, 6144, v2")
    e(f"    buffer_load_dwordx4 v[108:111], v3, {R(S_STO)}, 0 offen")
    e("A_SETUP:")
    e("    s_lshr_b32 s76, s3, 1")
    e("    s_add_u32 s76, s76, s2")
    e("    s_and_b32 s76, s76, 7")
    e("    s_lshl_b32 s74, s2, 15")
    e("    s_lshl_b32 s77, s76, 12")
    e("    s_add_u32 s74, s74, s77")
    e("    s_lshl_b32 s77, s76, 2")
    e("    v_mov_b32 v49, s77")
    e("    s_and_b32 s75, s3, 1")
    e("    s_lshl_b32 s75, s75, 1")
    e("    v_bfe_u32 v2, v0, 3, 3")
    e("    v_lshlrev_b32 v48, 4, v10")
    e("    v_cmp_lt_u32 vcc, 3, v10")
    e(f"    v_mul_u32_u24 v3, {K1_LS * 4}, v2")
    e("    s_and_b32 s70, s3, 1")
    e("    s_add_u32 s77, s76, s70")
    e("    s_and_b32 s77, s77, 3")
    e("    s_lshl_b32 s77, s77, 6")
    e("    s_lshl1_add_u32 s77, s70, s77")
    e("    s_lshr_b32 s76, s76, 2")
    e("    s_add_u32 s76, s76, s77")
    e("    v_add_u32 v3, v3, v48")
    for st in range(2):
        e(f"    s_add_u32 s77, s76, {32*st}")
        e(f"    s_mul_i32 s77, s77, {K1_LS}")
        e(f"    v_add_u32 v{40+st}, s77, v3")
        e(f"    v_lshl_add_u32 v{46+st}, s75, 3, v2")
        e(f"    v_lshlrev_b32 v{44+st}, v{46+st}, v1")
        e(f"    v_add_u32 v{42+st}, -1, v{44+st}")
        e(f"    v_cndmask_b32 v{44+st}, 0, v{44+st}, vcc")
        e("    s_add_u32 s75, s75, 1")
    e("    v_and_b32 v50, 6, v10")
    e("    s_mov_b32 s64, 0xffffff")
    e("    s_cmp_lt_u32 s3, 12")
    e("    s_cbranch_scc1 A_EDGES")
    e("    s_cmp_eq_u32 s3, 12")
    e("    s_cbranch_scc1 A_EDGES12")
    e("    s_cmp_eq_u32 s3, 15")
    e("    s_cbranch_scc1 A_MASKS")
    e("    s_cmp_eq_u32 s3, 14")
    e("    s_cbranch_scc1 A_HDR")
    if I("xr", 0):
        srd(S_GAT, 4, 5, TABBYTES)
        e("    s_mul_i32 s76, s65, 195*128")
        e("    v_and_b32 v54, 63, v0")
        e("    v_lshlrev_b32 v54, 4, v54")
        for n in range(6):
            e(f"    buffer_load_dwordx4 v[{64+4*n}:{67+4*n}], v54, {R(S_GAT)}, s76 offen")
            e("    s_add_u32 s76, s76, 1024")
    if I("pg", 0):
        srd(S_GAT, 4, 5, TABBYTES)
        e("    s_add_u32 s76, s65, 1")
        e(f"    s_mul_i32 s76, s76, {16*50006}")
        e("    s_lshr_b32 s76, s76, 12")
        e("    v_and_b32 v2, 63, v0")
        e("    v_add_lshl_u32 v2, v2, s76, 7")
        n = I("pg", 0)
        o = 0
        while n > 0:
            m = min(n, 64)
            if m < 64:
                e(f"    s_mov_b32 exec_lo, {((1 << m) - 1) & 0xffffffff}")
                e(f"    s_mov_b32 exec_hi, {((1 << m) - 1) >> 32}")
            e(f"    s_movk_i32 s76, {o}")
            e(f"    buffer_load_dword v126, v2, {R(S_GAT)}, s76 offen")
            n -= m
            o += 8192
    e("    s_branch A_OUT")
    e("A_MASKS:")
    e("    v_bfe_u32 v2, v0, 4, 1")
    e("    v_bfe_u32 v3, v0, 5, 1")
    e("    v_add_u32 v3, v3, v2")
    e("    v_lshlrev_b32 v3, 6, v3")
    e("    v_lshl_add_u32 v3, v2, 1, v3")
    e("    v_and_b32 v2, 15, v0")
    e("    v_lshl_add_u32 v3, v2, 2, v3")
    e("    v_lshlrev_b32 v12, 2, v3")
    e("    v_xor_b32 v13, 512, v12")
    e("    v_lshlrev_b32 v7, 2, v10")
    e("A_MPOLL:")
    e(f"    ds_read_b32 v2, v6 offset:{K1_CNT+K1_DONE}")
    e("    s_waitcnt lgkmcnt(0)")
    e("    v_cmp_gt_u32 vcc, 13, v2")
    e("    s_cbranch_vccnz A_MPOLL")
    for n in range(4):
        e(f"    ds_read_b32 v{16+n}, v{12+(n&1)} offset:{K1_CNT + 4*(n>>1)}")
    for n in range(4):
        e(f"    s_waitcnt lgkmcnt({3-n})")
        e(f"    v_cmp_lt_u32 s[{52+2*n}:{53+2*n}], 12, v{16+n}")
    e("    s_nop 1")
    for n in range(8):
        e(f"    v_writelane_b32 v2, s{52+n}, {n}")
    e("    s_mov_b64 exec, 0xff")
    e("    v_bcnt_u32_b32 v3, v2, 0")
    e("    v_add_u32 v4, 1, v2")
    e("    v_bfe_i32 v3, v3, 0, 1")
    e("    v_bfi_b32 v4, v2, 0, v4")
    e("    v_and_or_b32 v2, v4, v3, v2")
    e(f"    ds_write_b32 v7, v2 offset:{K1_MSK}")
    e("    s_branch A_OUT")
    e("A_HDR:")
    e("    v_lshlrev_b32 v51, 3, v10")
    e("    v_bfe_u32 v52, v0, 4, 2")
    e("    v_and_b32 v3, 15, v0")
    e("    v_lshlrev_b32 v52, 15, v52")
    e("    v_lshl_or_b32 v52, v3, 3, v52")
    e("    v_lshlrev_b32 v53, 2, v2")
    e("    s_lshl_b32 s75, s2, 7")
    e(f"    s_add_u32 s75, s75, {WS_OVT}")
    e("    v_cmp_eq_u32 vcc, 7, v10")
    if I("hv", 0) == 1:
        e("    s_waitcnt vmcnt(9)")
    e("    s_setprio 3")
    stamp("a_pre2")
    e("    s_barrier")
    stamp("a_bar2")
    e(f"    ds_read_u16 v120, v50 offset:{K1_NON}")
    e(f"    ds_read_b64 v[24:25], v51 offset:{K1_OVT}")
    e(f"    ds_read_b32 v22, v6 offset:{K1_CNT+K1_OVC}")
    e(f"    ds_read_b32 v23, v53 offset:{K1_MSK}")
    e("    s_waitcnt lgkmcnt(0)")
    e("    v_or_b32 v22, 0xf000, v22")
    e("    v_cndmask_b32 v24, v24, v23, vcc")
    e("    v_cndmask_b32 v25, v25, v22, vcc")
    e("    v_lshl_or_b32 v25, v120, 16, v25")
    e(f"    buffer_store_dwordx2 v[24:25], v52, {R(S_WS)}, s75 offen {SC}")
    e("    s_branch A_O1")
    e("A_EDGES12:")
    e("    s_waitcnt vmcnt(5)")
    e("    s_branch A_EDGES2")
    e("A_EDGES:")
    e("    s_cmp_lg_u32 s3, 0")
    e("    s_waitcnt vmcnt(2)")
    e("    s_cbranch_scc1 A_EDGES2")
    e("    v_add_u32 v4, 0x01010101, v125")
    e("    v_add_u32 v5, 0x01010101, v125")
    e(f"    ds_write_b64 v6, v[4:5] offset:{K1_NON}")
    e("A_EDGES2:")
    e("    s_mov_b64 exec, s[72:73]")
    stamp("a_dst")
    for k in range(4):
        e(f"    v_mul_u32_u24 v{24+k}, {TM}, v{12+k}")
        e(f"    v_sub_u32 v2, v{12+k}, v8")
        e(f"    v_lshrrev_b32 v{28+k}, 20, v{24+k}")
        e(f"    v_cmp_ne_u32 s[{52+2*k}:{53+2*k}], {k}, v2")
        e(f"    v_lshlrev_b32 v{36+k}, 2, v{28+k}")
    for k in range(4):
        e(f"    s_mov_b64 exec, s[{52+2*k}:{53+2*k}]")
        e(f"    ds_add_rtn_u32 v{32+k}, v{36+k}, v1 offset:{K1_CNT}")
    e("    s_mov_b64 exec, 1")
    e(f"    ds_add_u32 v6, v1 offset:{K1_CNT+K1_DONE}")
    e("    s_mov_b64 exec, s[72:73]")
    for k in range(4):
        e(f"    v_lshrrev_b32 v{24+k}, 12, v{24+k}")
        e(f"    v_mul_u32_u24 v{28+k}, {K1_LS}, v{28+k}")
        e(f"    v_bfi_b32 v{24+k}, 15, v{12+k}, v{24+k}")
    e("    s_mov_b32 s70, 0xffff0000")
    FIT = ["s[6:7]", "s[8:9]", "s[10:11]", "s[62:63]"]
    for k in range(4):
        e(f"    s_mov_b64 exec, s[{52+2*k}:{53+2*k}]")
        e("    s_waitcnt lgkmcnt(4)")
        e(f"    v_cmp_le_u32 vcc, 12, v{32+k}")
        e(f"    v_cmp_gt_u32 {FIT[k]}, {SLOTCAP}, v{32+k}")
        e(f"    v_and_b32 v4, 3, v{32+k}")
        e(f"    v_lshrrev_b32 v2, 2, v{32+k}")
        e("    v_cndmask_b32 v3, 0, 61, vcc")
        e(f"    v_lshl_add_u32 v4, v4, 4, v{28+k}")
        e(f"    s_mov_b64 exec, {FIT[k]}")
        e("    v_add3_u32 v5, v4, v3, v2")
        e("    v_cndmask_b32 v3, 0, 52, vcc")
        e("    v_lshl_add_u32 v4, v2, 2, v4")
        e(f"    ds_write_b8 v5, v{24+k} offset:12")
        e(f"    v_add_u32 v{36+k}, v4, v3")
    for k in range(4):
        e(f"    s_andn2_b64 s[{52+2*k}:{53+2*k}], s[{52+2*k}:{53+2*k}], {FIT[k]}")
    e("    s_or_b64 s[60:61], s[52:53], s[54:55]")
    e("    s_or_b64 s[76:77], s[56:57], s[58:59]")
    e("    s_or_b64 s[60:61], s[60:61], s[76:77]")
    e("    s_mov_b64 exec, s[72:73]")
    e("    s_cmp_eq_u32 s3, 12")
    e("    s_waitcnt vmcnt(3)")
    e("    s_cbranch_scc1 A_ALL")
    e("    s_waitcnt vmcnt(0)")
    e("A_ALL:")
    stamp("a_all")
    for k in range(4):
        if k % 2 == 0:
            e(f"    v_lshl_or_b32 v{16+k}, v{20+k//2}, 16, v{16+k}")
        else:
            e(f"    v_and_or_b32 v{16+k}, v{20+k//2}, s70, v{16+k}")
    for k in range(4):
        e(f"    s_mov_b64 exec, {FIT[k]}")
        e(f"    ds_write_b32 v{36+k}, v{16+k}")
    e("    s_cmp_lg_u64 s[60:61], 0")
    e("    s_cbranch_scc1 A_OVER")
    e("A_OUT:")
    e("    s_setprio 2")
    e("    s_mov_b64 exec, -1")
    e("    s_waitcnt lgkmcnt(0)")
    stamp("a_pre2")
    e("    s_barrier")
    stamp("a_bar2")
    e(f"    ds_read_u16 v120, v50 offset:{K1_NON}")
    e("A_O1:")
    e(f"    ds_read_b32 v21, v49 offset:{K1_MSK}")
    e(f"    ds_read_u8 v127, v10 offset:{K1_NON}")
    e("    ds_read2_b32 v[12:13], v40 offset0:0 offset1:1")
    e("    ds_read2_b32 v[14:15], v40 offset0:2 offset1:3")
    e("    ds_read2_b32 v[16:17], v41 offset0:0 offset1:1")
    e("    ds_read2_b32 v[18:19], v41 offset0:2 offset1:3")
    e("    s_waitcnt lgkmcnt(5)")
    for st in range(2):
        e(f"    v_and_b32 v2, v21, v{42+st}")
        e(f"    v_and_b32 v3, v21, v{44+st}")
        e(f"    v_bcnt_u32_b32 v2, v2, v{46+st}")
        e(f"    v_cmp_eq_u32 s[{52+2*st}:{53+2*st}], v3, v{44+st}")
        e(f"    v_lshl_add_u32 v{42+st}, v2, 6, v48")
    e("    s_waitcnt lgkmcnt(4)")
    e("    v_lshlrev_b32 v20, 24, v127")
    e("    s_waitcnt lgkmcnt(2)")
    e("    v_and_or_b32 v15, v15, s64, v20")
    e("    s_mov_b64 exec, s[52:53]")
    e(f"    buffer_store_dwordx4 v[12:15], v42, {R(S_WS)}, s74 offen {SC}")
    e("    s_mov_b64 exec, s[54:55]")
    e("    s_waitcnt lgkmcnt(0)")
    e("    v_and_or_b32 v19, v19, s64, v20")
    e(f"    buffer_store_dwordx4 v[16:19], v43, {R(S_WS)}, s74 offen {SC}")
    e("    s_mov_b64 exec, -1")
    if I("xr", 0):
        e("    s_cmp_lg_u32 s3, 13")
        e("    s_cbranch_scc1 XR_D")
        e("    s_lshl_b32 s76, s2, 14")
        e(f"    s_add_u32 s76, s76, {WS_H1}")
        e("    s_waitcnt vmcnt(2)")
        for n in range(6):
            e(f"    buffer_store_dwordx4 v[{64+4*n}:{67+4*n}], v54, {R(S_WS)}, s76 offen sc1")
            e("    s_xor_b32 s76, s76, 0x2000")
            e(f"    buffer_store_dwordx4 v[{64+4*n}:{67+4*n}], v54, {R(S_WS)}, s76 offen sc1")
            e("    s_add_u32 s76, s76, 1024")
        e("XR_D:")
    e("    s_setprio 0")
    stamp("a_st")
    e(f"    ds_read_b32 v125, v6 offset:{K1_NON}")


def a_overflow():
    e("A_OVER:")
    srd(S_OVF, 18, 19, 256 * OVF_STRIDE, WS_OVF)
    e("    s_lshl_b32 s62, s2, 15")
    for k in range(4):
        e(f"    s_mov_b64 exec, s[{52+2*k}:{53+2*k}]")
        e(f"    s_cbranch_execz A_OV{k}")
        e(f"    ds_add_rtn_u32 v3, v6, v1 offset:{K1_CNT+K1_OVC}")
        e(f"    v_mov_b32 v4, v{16+k}")
        e(f"    v_mov_b32 v5, v{12+k}")
        e("    s_waitcnt lgkmcnt(0)")
        e(f"    v_cmp_gt_u32 vcc, {NINL}, v3")
        e("    v_lshlrev_b32 v3, 3, v3")
        e("    s_andn2_b64 s[76:77], exec, vcc")
        e("    s_mov_b64 exec, vcc")
        e(f"    ds_write_b64 v3, v[4:5] offset:{K1_OVT}")
        e("    s_mov_b64 exec, s[76:77]")
        e(f"    s_cbranch_execz A_OV{k}")
        e(f"    buffer_store_dwordx2 v[4:5], v3, {R(S_OVF)}, s62 offen {SC}")
        e("    s_waitcnt vmcnt(0)")
        e(f"A_OV{k}:")
    e("    s_branch A_OUT")


def setup1():
    e("    s_and_b32 s29, s2, 7")
    e("    s_and_b32 s27, s29, 3")
    e("    s_mul_i32 s27, s27, 12502")
    if I("roff", 0):
        e(f"    s_add_u32 s27, s27, {N - I('roff', 0)}")
        e(f"    s_cmp_ge_u32 s27, {N}")
        e(f"    s_cselect_b32 s76, {N}, 0")
        e("    s_sub_u32 s27, s27, s76")
    e("    s_sub_u32 s27, 0x10000, s27")
    e("    s_lshr_b32 s30, s29, 1")
    e("    s_lshl_b32 s30, s30, 15")
    e("    s_and_b32 s31, s29, 1")
    e("    s_lshl_b32 s31, s31, 6")
    e("    s_add_u32 s30, s30, s31")
    e(f"    s_add_u32 s30, s30, {WS_OVT}")
    e("    s_add_u32 s31, s30, 16384")
    e("    s_lshl_b32 s29, s29, 12")
    e("    s_lshr_b32 s26, s2, 3")
    e("    s_bfm_b32 s49, s26, 0")
    e("    s_mov_b32 s2, s65")
    e("    v_mov_b32 v99, 0xf0")
    e("    v_mov_b32 v124, 7")
    e(f"    s_mov_b32 s0, {CNTB}")
    e("    s_mov_b32 s1, 0x07060302")
    e("    s_mov_b32 s71, 0")
    e("    s_cmp_eq_u32 s3, 1")
    e(f"    s_cselect_b32 s28, {I('vr', 3)}, 0x7fff")
    if DIAG:
        e("    s_mov_b32 s48, 0")
        e("    s_mov_b64 s[50:51], 0")
    zero_b_counters((WL - CNTB) // 4)
    collect_addrs()
    srd(S_OVF, 18, 19, 256 * OVF_STRIDE, WS_OVF)
    srd(S_GAT, 4, 5, TABBYTES + 3072, -3072)
    srd(S_STO, 18, 19, H1BYTES, WS_H1)
    e("    s_mov_b64 s[20:21], s[14:15]")
    e(f"    s_mov_b32 s22, {TABBYTES}")
    e(f"    s_add_u32 s24, s18, {WS_H1 - 3072}")
    e("    s_addc_u32 s25, s19, 0")
    if I("gp", 0):
        e("    s_lshl_b32 s76, s2, 4")
        e("    s_add_u32 s76, s76, s3")
        e("    s_add_u32 s76, s76, 16")
        e("    s_mul_i32 s76, s76, 50006")
        e("    s_lshr_b32 s76, s76, 12")
        e("    v_and_b32 v8, 63, v0")
        e("    v_add_lshl_u32 v8, v8, s76, 7")


def setup2():
    e("    v_and_b32 v2, 63, v0")
    e("    v_bfe_u32 v3, v2, 4, 1")
    e("    v_cmp_eq_u32 s[16:17], 1, v3")
    e("    v_xor_b32 v22, v3, v10")
    e("    v_lshlrev_b32 v83, 4, v22")
    e("    v_add_u32 v80, 3072, v83")
    e("    v_add_u32 v82, 1024, v83")
    e("    v_xor_b32 v83, 64, v83")
    e("    v_add_u32 v81, 2048, v83")
    e("    v_and_b32 v92, 15, v0")
    e("    v_lshrrev_b32 v11, 4, v2")
    e("    v_bfe_u32 v20, v2, 2, 2")
    e("    v_and_b32 v21, 3, v2")
    e("    v_lshl_add_u32 v84, v11, 3, v20")
    e("    v_lshlrev_b32 v84, 7, v84")
    e("    v_lshrrev_b32 v20, 1, v20")
    e("    v_lshl_or_b32 v20, v3, 2, v20")
    e("    v_xor_b32 v20, v20, v21")
    e("    v_lshl_add_u32 v84, v20, 4, v84")
    e("    v_and_b32 v22, 1, v21")
    e("    s_lshl_b32 s76, s3, 12")
    e("    v_lshl_add_u32 v84, v22, 3, v84")
    e("    s_mov_b32 m0, s76")
    e(f"    v_add_u32 v122, {WL}, v84")
    e("    v_add_u32 v84, s76, v84")
    e(f"    s_mul_i32 s76, s3, {TSTR}")
    e("    v_xor_b32 v85, 8, v84")
    e("    v_xor_b32 v86, 64, v84")
    e("    v_xor_b32 v87, 72, v84")
    e(f"    s_add_u32 s76, s76, {LISTS}")
    e("    v_lshrrev_b32 v22, 3, v2")
    e("    v_lshl_add_u32 v88, v22, 2, s76")
    e("    v_lshl_add_u32 v123, v2, 2, s76")
    e(f"    s_add_u32 s76, s76, {CAPT*4}")
    e("    v_lshl_add_u32 v89, v11, 5, s76")
    e("    v_sub_u32 v95, 0, v21")
    e("    v_sub_u32 v96, 1, v21")
    e("    v_sub_u32 v97, 2, v21")
    e("    v_ashrrev_i32 v95, 31, v95")
    e("    v_ashrrev_i32 v96, 31, v96")
    e("    v_ashrrev_i32 v97, 31, v97")
    e("    v_lshrrev_b32 v22, 2, v2")
    e(f"    v_mul_u32_u24 v98, {TSTR}, v22")
    e(f"    v_add_u32 v98, {LISTS}, v98")
    e("    v_lshl_add_u32 v90, v2, 4, s0")
    e("    s_lshl_b32 s76, s2, 4")
    e("    s_add_u32 s76, s76, s3")
    e("    s_mul_i32 s77, s76, 50006")
    e("    s_lshr_b32 s77, s77, 12")
    e("    v_subrev_u32 v2, s77, v92")
    e("    v_and_b32 v2, 15, v2")
    e("    v_add_u32 v2, s77, v2")
    e(f"    v_mul_u32_u24 v3, {TM}, v2")
    e("    v_lshrrev_b32 v3, 16, v3")
    e("    v_cmp_eq_u32 s[14:15], s76, v3")
    e("    v_lshlrev_b32 v2, 7, v2")
    e("    v_lshl_add_u32 v121, v11, 4, v2")


def setup3():
    e("    s_mov_b64 s[12:13], 0")
    e("    s_cmp_lt_u32 s3, 12")
    e("    s_cbranch_scc1 S_DONE")
    e("    s_waitcnt vmcnt(2)")
    e("    v_cmp_eq_u32 vcc, v112, v115")
    e("    v_cmp_eq_u32 s[76:77], v113, v115")
    e("    v_lshlrev_b32 v3, 16, v114")
    e("    v_and_b32 v2, 255, v0")
    e("    v_or_b32 v113, v3, v113")
    e("    s_and_b64 s[12:13], s[66:67], vcc")
    e("    s_and_b64 vcc, s[12:13], s[76:77]")
    e("    s_andn2_b64 s[12:13], s[12:13], s[76:77]")
    e("    v_lshlrev_b32 v2, 2, v2")
    e("    v_cndmask_b32 v3, 0, v3, vcc")
    e(f"    v_add_u32 v2, {SELFN}, v2")
    e("    ds_write_b32 v2, v3")
    e("    s_cbranch_scc0 S_NT")
    decode_key(113, 0, 0, 6)
    decode_data(113, 0, 0, 6)
    e("S_NT:")
    e("    s_cmp_eq_u32 s3, 12")
    e("    s_cbranch_scc1 S_DONE")
    e(f"    v_subrev_u32 v2, {13*64}, v0")
    e("    v_bfe_u32 v3, v2, 4, 1")
    e("    v_bfe_u32 v20, v2, 6, 1")
    e("    v_lshl_or_b32 v3, v20, 2, v3")
    e("    v_cmp_gt_u32 vcc, 128, v2")
    e("    v_xor_b32 v2, v2, v3")
    e("    v_lshlrev_b32 v2, 4, v2")
    e(f"    v_add_u32 v2, {WL}, v2")
    e("    v_xor_b32 v3, 64, v2")
    e("    s_mov_b32 exec_lo, 0xaaaaaaaa")
    e("    s_mov_b32 exec_hi, exec_lo")
    for b in (100, 104, 108):
        e(f"    v_swap_b32 v{b}, v{b+2}")
        e(f"    v_swap_b32 v{b+1}, v{b+3}")
    e("    s_mov_b64 exec, -1")
    e("    ds_write_b128 v2, v[100:103]")
    e("    ds_write_b128 v3, v[104:107] offset:3072")
    e("    s_and_saveexec_b64 s[76:77], vcc")
    e("    ds_write_b128 v2, v[108:111] offset:6144")
    e("    s_mov_b64 exec, -1")
    e("S_DONE:")
    stamp("s_done")


def barrier_addrs():
    e("    s_lshr_b32 s76, s2, 2")
    e("    s_lshl_b32 s76, s76, 7")
    e("    s_and_b32 s77, s2, 3")
    e("    s_lshl_b32 s77, s77, 2")
    e("    s_add_u32 s76, s76, s77")
    e(f"    s_add_u32 s76, s76, {WS_FLAG}")
    e("    v_lshlrev_b32 v2, 13, v0")
    e("    s_getreg_b32 s77, hwreg(HW_REG_XCC_ID, 0, 2)")
    e("    s_lshl_b32 s77, s77, 14")
    e("    s_add_u32 s77, s77, s80")
    e(f"    s_add_u32 s77, s77, {WS_FLAG}")
    e("    v_lshlrev_b32 v8, 7, v0")


COMMON = [0, 1, 2, 3, 4, 5]
RARE = [6, 7]
ACT = ["s[62:63]", "s[10:11]"]
WREG = [40, 44, 48, 52, 56, 60, 28, 116]


def w_frags():
    e("    v_xor_b32 v5, 8, v122")
    e("    v_xor_b32 v6, 64, v122")
    e("    v_xor_b32 v7, 72, v122")
    for s_ in range(2):
        for t in range(4):
            for u in range(2):
                r = WREG[s_ * 4 + t] + 2 * u
                e(f"    ds_read_b64_tr_b16 v[{r}:{r+1}], v{4+t if t else 122} offset:{4096*s_ + 512*u}")


def load_headers():
    e(f"    buffer_load_dwordx2 v[116:117], v93, {R(S_WS)}, s30 offen {SC}")
    e(f"    buffer_load_dwordx2 v[118:119], v93, {R(S_WS)}, s31 offen {SC}")


def phase_b():
    e("COLLECT:")
    load_headers()
    GP = I("gp", 0)
    if GP:
        e(f"    s_mov_b64 exec, {(1 << GP) - 1}")
        e(f"    buffer_load_dword v91, v8, {R(S_GAT)}, 0 offen offset:3072")
        e("    s_mov_b64 exec, -1")
    e("    s_mov_b32 s68, s29")
    e(f"    s_add_u32 s69, s68, {128*32768}")
    e(f"    s_mov_b32 s75, {SPINMAX}")
    e("    v_cmp_gt_u32 s[8:9], 4, v10")
    if SP == 1:
        setup2()
    e("    s_waitcnt vmcnt(%d)" % (1 if GP else 0))
    e("C_CHK2:")
    e("    v_cmp_ne_u32_sdwa vcc, v117, v120 src0_sel:WORD_1 src1_sel:DWORD")
    e("    v_cmp_ne_u32_sdwa s[76:77], v119, v120 src0_sel:WORD_1 src1_sel:DWORD")
    e("    v_mov_b32_dpp v4, v116 quad_perm:[3,3,3,3] row_mask:0xf bank_mask:0xf")
    e("    v_mov_b32_dpp v5, v118 quad_perm:[3,3,3,3] row_mask:0xf bank_mask:0xf")
    e("    s_or_b64 vcc, vcc, s[76:77]")
    e("    s_cbranch_scc1 C_RETRY2")
    e("C_OK2:")
    stamp("b_gate")
    e("    v_mov_b32_dpp v4, v4 row_half_mirror row_mask:0xf bank_mask:0x5")
    e("    v_mov_b32_dpp v5, v5 row_half_mirror row_mask:0xf bank_mask:0x5")
    for i in range(2):
        e(f"    v_and_b32 v2, s49, v{4+i}")
        e(f"    v_bfe_u32 v3, v{4+i}, s26, 1")
        e("    v_bcnt_u32_b32 v2, v2, s26")
        e("    v_cmp_eq_u32 vcc, 1, v3")
        e(f"    v_lshl_add_u32 v{6+i}, v2, 6, v9")
        e("    s_or_b64 exec, vcc, s[8:9]")
        e(f"    buffer_load_dwordx4 v[{12+4*i}:{15+4*i}], v{6+i}, {R(S_WS)}, s{68+i} offen {SC}")
        e(f"    s_mov_b64 {ACT[i]}, exec")
        e("    s_mov_b64 exec, -1")
    stamp("b_iss")
    if I("pc", 1):
        e("    s_setprio 0")
    if SP >= 1:
        if SP == 2:
            setup2()
        e("    s_cmp_lg_u32 s71, 0")
        e("    s_cbranch_scc1 LATE_D")
        setup3()
        e("LATE_D:")
    e("    v_and_b32 v117, 0xffff, v117")
    e("    v_and_b32 v119, 0xffff, v119")
    e(f"    v_mul_u32_u24 v2, {TM}, v117")
    e(f"    v_mul_u32_u24 v3, {TM}, v119")
    e("    v_cmp_eq_u32 s[8:9], 7, v10")
    e(f"    s_mov_b32 s76, {0xf000 + NINL}")
    e("    v_cmp_lt_u32 s[72:73], s76, v117")
    e("    v_cmp_lt_u32 vcc, s76, v119")
    e("    v_lshrrev_b32 v2, 20, v2")
    e("    v_lshrrev_b32 v3, 20, v3")
    e("    v_cmp_eq_u32 s[4:5], s2, v2")
    e("    v_cmp_eq_u32 s[6:7], s2, v3")
    e("    s_and_b64 s[72:73], s[72:73], s[8:9]")
    e("    s_and_b64 vcc, vcc, s[8:9]")
    e("    s_lshr_b64 s[72:73], s[72:73], 1")
    e("    s_or_b64 s[72:73], s[72:73], vcc")
    e(f"    s_mov_b64 {PEND(7)}, 0")
    e("    s_movk_i32 s70, 0xffff")
    e(f"    s_mov_b64 {PEND(6)}, s[12:13]")
    e("    s_mov_b64 exec, s[12:13]")
    e("    s_cbranch_execz C_NT")
    e("    ds_add_rtn_u32 v38, v46, v1")
    e("C_NT:")
    for i in range(2):
        base = 12 + 4 * i
        e(f"    s_mov_b64 exec, {ACT[i]}")
        e(f"    s_waitcnt vmcnt({1-i})")
        e(f"C_CHK{i}:")
        e(f"    v_cmp_ne_u32_sdwa vcc, v{base+3}, v127 src0_sel:BYTE_3 src1_sel:DWORD")
        e(f"    s_cbranch_vccnz C_RETRY{i}")
        e(f"C_OK{i}:")
        stamp("b_lines" if i == 0 else "b_lines1")
        for k in range(3):
            e(f"    v_cmp_ne_u16 {PEND(3*i+k)}, s70, v{base+k}")
        if i == 1 and EARLY:
            own_x()
        for k in range(3):
            decode_key(base + k, base + 3, k, 3 * i + k)
        for k in range(3):
            s_ = 3 * i + k
            e(f"    s_mov_b64 exec, {PEND(s_)}")
            e(f"    ds_add_rtn_u32 v{32+s_}, v{40+s_}, v1")
    e("    s_mov_b64 exec, -1")
    if not I("ddl", 1):
        for i in range(2):
            base = 12 + 4 * i
            for k in range(3):
                decode_data(base + k, base + 3, k, 3 * i + k)
    else:
        e("    s_or_b32 s71, s71, 32")
    e("    s_mov_b64 s[68:69], 0")
    e("    s_or_b64 s[76:77], s[4:5], s[6:7]")
    e("    s_or_b64 s[76:77], s[76:77], s[72:73]")
    e("    s_cbranch_scc1 EXTRA")
    e("CDONE:")
    e("    s_lshl_b32 s75, s3, 2")
    e("    s_add_u32 s75, s75, 3")
    e("    s_waitcnt lgkmcnt(0)")
    stamp("b_pre1")
    e("    s_barrier")
    stamp2("b_bar1", "")
    e("    ds_read_b128 v[4:7], v90")
    if not EARLY:
        own_x()
    e("    s_cmp_lg_u32 s3, 15")
    e("    s_cbranch_scc1 PT_D")
    e("    s_lshl_b32 s76, s2, 8")
    e(f"    s_add_u32 s76, s76, {WS_FLAG}")
    e("    v_lshlrev_b32 v2, 7, v92")
    e("    s_mov_b64 exec, 3")
    e(f"    buffer_load_dword v91, v2, {R(S_WS)}, s76 offen sc1")
    e("    s_mov_b64 exec, -1")
    e("PT_D:")
    if I("ddl", 1):
        e("    s_bitcmp0_b32 s71, 5")
        e("    s_cbranch_scc1 DD_D")
        e("    s_andn2_b32 s71, s71, 32")
        for i in range(2):
            base = 12 + 4 * i
            for k in range(3):
                decode_data(base + k, base + 3, k, 3 * i + k)
        e("DD_D:")
    e("    s_waitcnt lgkmcnt(0)")
    e("    v_add_u32 v5, v4, v5")
    e("    v_add3_u32 v7, v5, v6, v7")
    e("    v_add_u32 v6, v5, v6")
    e("    s_nop 0")
    e("    v_and_b32_dpp v28, v7, v95 quad_perm:[0,0,0,0] row_mask:0xf bank_mask:0xf")
    e("    v_and_b32_dpp v29, v7, v96 quad_perm:[1,1,1,1] row_mask:0xf bank_mask:0xf")
    e("    v_and_b32_dpp v30, v7, v97 quad_perm:[2,2,2,2] row_mask:0xf bank_mask:0xf")
    e("    v_add3_u32 v28, v28, v29, v30")
    e("    v_add_u32 v7, v28, v7")
    e("    v_lshl_add_u32 v28, v28, 2, v98")
    e(f"    v_cmp_lt_u32 vcc, {CAPT}, v7")
    e("    v_lshl_add_u32 v29, v4, 2, v28")
    e("    v_lshl_add_u32 v30, v5, 2, v28")
    e("    v_lshl_add_u32 v31, v6, 2, v28")
    e("    v_readlane_b32 s74, v7, s75")
    e("    ds_write_b128 v90, v[28:31] offset:1024")
    e(f"    s_or_b64 s[76:77], {PEND(6)}, {PEND(7)}")
    e("    s_cbranch_scc0 P_NR")
    for s in RARE:
        e(f"    s_mov_b64 exec, {PEND(s)}")
        e(f"    ds_read_b32 v{20+s}, v{40+s} offset:1024")
    e("P_NR:")
    for s in COMMON:
        e(f"    s_mov_b64 exec, {PEND(s)}")
        e(f"    ds_read_b32 v{20+s}, v{40+s} offset:1024")
    e(f"    s_min_u32 s74, s74, {CAPT}")
    e("    s_cbranch_vccnz SLOWW")
    for s in COMMON:
        e(f"    s_mov_b64 exec, {PEND(s)}")
        e(f"    s_waitcnt lgkmcnt({len(COMMON)-1})")
        e(f"    v_lshl_add_u32 v{20+s}, v{32+s}, 2, v{20+s}")
        e(f"    ds_write2st64_b32 v{20+s}, v{48+s}, v{56+s} offset0:0 offset1:5")
    e("    s_cmp_eq_u64 s[76:77], 0")
    e("    s_cbranch_scc1 P_NW")
    for s in RARE:
        e(f"    s_mov_b64 exec, {PEND(s)}")
        e(f"    v_lshl_add_u32 v{20+s}, v{32+s}, 2, v{20+s}")
        e(f"    ds_write2st64_b32 v{20+s}, v{48+s}, v{56+s} offset0:0 offset1:5")
    e("P_NW:")
    for s in range(8):
        e(f"    s_mov_b64 {PEND(s)}, 0")
    e("WDONE:")
    e("    s_sub_u32 s76, 0, s74")
    e("    s_and_b32 s76, s76, 31")
    e("    s_bfm_b64 exec, s76, 0")
    e("    s_lshl_b32 s77, s74, 2")
    e("    v_add_u32 v2, s77, v123")
    e(f"    v_mov_b32 v3, {PADV}")
    e("    ds_write2st64_b32 v2, v3, v3 offset0:0 offset1:5")
    e("    s_mov_b64 exec, -1")
    e(f"    v_mov_b32 v4, {MORE}")
    e("    s_lshl_b32 s76, s3, 6")
    e(f"    s_add_u32 s76, s76, {SELFN}")
    e("    v_lshl_add_u32 v5, v92, 2, s76")
    e("    ds_read_b32 v126, v5")
    e("    s_waitcnt lgkmcnt(0)")
    e("    s_barrier")
    stamp2("b_bar2", "")
    e("    ds_read_b32 v8, v4")


def main_loop():
    def next_k():
        if I("kmin", 0):
            e("    s_lshl_b32 s11, s10, 2")
            e("    s_sub_i32 s8, s9, s11")
            e("    s_add_i32 s8, s8, 4")
            e(f"    s_max_i32 s8, s8, {I('kmin', 0)}")
            e("    s_min_i32 s8, s8, 4")
        elif I("krn", 0):
            e("    s_mov_b32 s8, 1")
            e("    s_lshl_b32 s76, s9, 2")
            e(f"    s_mul_i32 s11, s10, {4 + I('krn', 0)}")
            e("    s_lshl_b32 s77, s10, 2")
            e("    s_cmp_ge_i32 s76, s11")
            e("    s_addc_u32 s8, s8, 0")
            e("    s_add_i32 s11, s11, s77")
            e("    s_cmp_ge_i32 s76, s11")
            e("    s_addc_u32 s8, s8, 0")
            e("    s_add_i32 s11, s11, s77")
            e("    s_cmp_ge_i32 s76, s11")
            e("    s_addc_u32 s8, s8, 0")
        elif I("kfl", 1):
            e("    s_mov_b32 s8, 1")
            e("    s_lshl_b32 s11, s10, 1")
            e("    s_cmp_ge_i32 s9, s11")
            e("    s_addc_u32 s8, s8, 0")
            e("    s_add_i32 s11, s11, s10")
            e("    s_cmp_ge_i32 s9, s11")
            e("    s_addc_u32 s8, s8, 0")
            e("    s_add_i32 s11, s11, s10")
            e("    s_cmp_ge_i32 s9, s11")
            e("    s_addc_u32 s8, s8, 0")
        else:
            e("    s_mov_b32 s8, 1")
            e("    s_cmp_gt_i32 s9, s10")
            e("    s_addc_u32 s8, s8, 0")
            e("    s_lshl_b32 s11, s10, 1")
            e("    s_cmp_gt_i32 s9, s11")
            e("    s_addc_u32 s8, s8, 0")
            e("    s_add_i32 s11, s11, s10")
            e("    s_cmp_gt_i32 s9, s11")
            e("    s_addc_u32 s8, s8, 0")
        e("    s_min_i32 s8, s8, s9")
        e("    s_sub_i32 s9, s9, s8")
        e("    s_sub_i32 s10, s10, 1")
        e("    s_lshl_b32 s11, s8, 5")

    def read_recs(a, b, adv):
        e(f"    ds_read2_b32 v[100:101], v{a} offset0:0 offset1:8")
        e(f"    ds_read2_b32 v[102:103], v{a} offset0:16 offset1:24")
        e(f"    ds_read_b128 v[104:107], v{b}")
        e(f"    ds_read_b128 v[108:111], v{b} offset:16")
        e(f"    v_add_u32 v93, {adv}, v{a}")
        e(f"    v_add_u32 v94, {adv}, v{b}")

    def dma(i):
        e(f"    buffer_load_dwordx4 v{100+i}, {R(S_GAT)}, 0 offen offset:{1024*i} {OPT.get('gfl', '')} lds")

    def addr():
        for i in range(4):
            e(f"    v_add_u32 v{100+i}, v{100+i}, v{80+i}")

    REP = I("rep", 1)

    def remap(a, t, u):
        e(f"    v_lshrrev_b32 v{t}, 7, v{a}")
        e(f"    v_mul_u32_u24 v{t}, {TM}, v{t}")
        e(f"    v_bfe_u32 v{u}, v{a}, {I('rsh', 13)}, {I('rbits', 2)}")
        e(f"    v_bfe_u32 v{t}, v{t}, 20, 1")
        e(f"    v_cmp_le_u32 vcc, {REP}, v{u}")
        e(f"    v_xor_b32 v{t}, s81, v{t}")
        e(f"    v_and_b32 v{u}, 0xffffe000, v{a}")
        e(f"    v_cndmask_b32 v{t}, 0, v{t}, vcc")
        e(f"    v_add_u32 v{a}, v{a}, v{u}")
        e(f"    v_bfe_u32 v{u}, v{a}, 21, 1")
        e(f"    v_xor_b32 v{t}, v{t}, v{u}")
        e(f"    v_lshlrev_b32 v{t}, 13, v{t}")
        e(f"    v_xor_b32 v{t}, s80, v{t}")
        e(f"    v_xor_b32 v{a}, v{a}, v{t}")

    def rewrite_list(lbl):
        for n in range(5):
            e(f"    ds_read_b32 v{32+n}, v123 offset:{256*n}")
        for n in range(5):
            e(f"    s_waitcnt lgkmcnt(4)")
            remap(32 + n, 2, 3)
            e(f"    ds_write_b32 v123, v{32+n} offset:{256*n}")

    def build_b(w):
        for j in range(8):
            e(f"    v_bfe_i32 v{32+j}, v{104+j}, v92, {w}")
        for j in range(8):
            e(f"    v_and_b32 v{32+j}, v{32+j}, v{104+j}")
        for j in range(4):
            e(f"    v_perm_b32 v{112+j}, v{32+2*j+1}, v{32+2*j}, s1")

    def mfmas():
        for t in range(4):
            e(f"    v_mfma_f32_16x16x32_bf16 v[{64+4*t}:{67+4*t}], v[{12+4*t}:{15+4*t}], v[112:115], v[{64+4*t}:{67+4*t}]")

    global REWRITE
    REWRITE = rewrite_list
    e("MAIN:")
    e("    s_cmp_eq_u32 s74, 0")
    e("    s_cbranch_scc1 EMPTY")
    e("    s_bitcmp1_b32 s71, 0")
    e("    s_cbranch_scc1 REMAP2")
    e("MAIN1:")
    read_recs(88, 89, 128)
    e("    s_waitcnt lgkmcnt(2)")
    addr()
    e("MAIN2:")
    PM = I("pm", 3)
    if PM == 1:
        prio_by_age("PRIOD")
    if PM == 2:
        e("    s_cmp_lt_u32 s3, 8")
        e("    s_cbranch_scc1 PRIOE")
        e("    s_setprio 1")
        e("PRIOE:")
    for i in range(4):
        dma(i)
    stamp2("m_dma", "m_dma2")
    if PM in (0, 2):
        prio_by_age("PRIOD")
    e("    s_add_u32 s9, s74, 7")
    e("    s_lshr_b32 s9, s9, 3")
    e("    s_sub_i32 s9, s9, 4")
    e("    s_max_i32 s9, s9, 0")
    if OPT.get("nbs"):
        a_, b_ = [int(v) for v in OPT["nbs"].split(",")]
        e(f"    s_bitcmp1_b32 {OPT.get('nbr', 's26')}, {I('nbb', 0)}")
        e(f"    s_cselect_b32 s10, {b_-1}, {a_-1}")
    elif I("nb2", NB) != NB:
        e("    s_bitcmp1_b32 s71, 0")
        e(f"    s_cselect_b32 s10, {I('nb2', NB)-1}, {NB-1}")
    else:
        e(f"    s_mov_b32 s10, {NB-1}")
    next_k()
    e("    s_waitcnt lgkmcnt(0)")
    build_b("1")
    read_recs(93, 94, "s11")
    e("    s_bitcmp1_b32 s71, 3")
    e("    s_cbranch_scc1 LOOP")
    e("    s_or_b32 s71, s71, 8")
    if I("wearly", 0):
        e("    v_readfirstlane_b32 s75, v8")
        e("    s_cmp_lg_u32 s75, 0")
        e("    s_cbranch_scc1 NOWF")
        e("    s_or_b32 s71, s71, 16")
        w_frags()
        e("NOWF:")
    own_addr("PRB_M")
    e("    s_waitcnt vmcnt(4)")
    e("PRB_M2:")
    stamp("m_pre")
    self_init(64)
    e("LOOP:")
    e("    s_waitcnt lgkmcnt(2)")
    addr()
    e("    v_cmp_gt_u32 vcc, s8, v11")
    if PM == 4:
        prio_by_age("PRIOD")
    e("    s_waitcnt vmcnt(0)")
    for t in range(4):
        for u in range(2):
            e(f"    ds_read_b64_tr_b16 v[{12+4*t+2*u}:{13+4*t+2*u}], v{84+t} offset:{512*u}")
    e("    s_cmp_eq_u32 s8, 0")
    e("    v_cndmask_b32 v91, 0, v1, vcc")
    e("    s_waitcnt lgkmcnt(0)")
    e("    s_cbranch_scc1 LAST")
    dma(0)
    e("    s_cmp_eq_u32 s8, 1")
    e("    s_cbranch_scc1 DMAD")
    dma(1)
    e("    s_cmp_eq_u32 s8, 2")
    e("    s_cbranch_scc1 DMAD")
    dma(2)
    e("    s_cmp_eq_u32 s8, 3")
    e("    s_cbranch_scc1 DMAD")
    dma(3)
    e("DMAD:")
    e("    s_cmp_eq_u32 s10, s28")
    e("    s_cbranch_scc1 VOTES")
    e("VOTED:")
    if PM == 4:
        e("    s_setprio 0")
    mfmas()
    next_k()
    if not I("nob", 0):
        build_b("v91")
    for _ in range(I("padv", 0)):
        e("    v_mov_b32 v2, v3")
    for _ in range(I("pads", 0)):
        e("    s_mov_b32 s76, s77")
    read_recs(93, 94, "s11")
    e("    s_branch LOOP")
    e("LAST:")
    mfmas()
    e("MAINDONE:")
    e(f"    v_mov_b32 v7, {CFLAG}")
    e("    ds_read_b32 v7, v7")
    e("    v_readfirstlane_b32 s75, v8")
    e("    s_cmp_lg_u32 s75, 0")
    e("    s_cbranch_scc1 AGAIN")

    stamp2("h1_done", "h2_done")
    e("    s_nop 2")
    for t in range(4):
        e(f"    v_cvt_pk_bf16_f32 v{12+2*t}, v{64+4*t}, v{65+4*t}")
        e(f"    v_cvt_pk_bf16_f32 v{13+2*t}, v{66+4*t}, v{67+4*t}")
    e("    s_mov_b64 exec, s[16:17]")
    e("    v_swap_b32 v12, v14")
    e("    v_swap_b32 v13, v15")
    e("    v_swap_b32 v16, v18")
    e("    v_swap_b32 v17, v19")
    e("    s_bitcmp1_b32 s71, 0")
    e("    s_cbranch_scc1 FINAL")
    e("    s_mov_b64 exec, -1")
    e("    s_waitcnt lgkmcnt(0)")
    e("    v_readfirstlane_b32 s80, v7")
    e("    s_and_b32 s81, s2, 1")
    e("    s_cmp_eq_u32 s80, 0")
    e("    s_cbranch_scc1 E_NOC")
    e("E_HAVEC:")
    e("    s_xor_b32 s80, s80, s81")
    e("    s_and_b32 s80, s80, 1")
    e("    s_lshl_b32 s80, s80, 13")
    e("    v_xor_b32 v9, s80, v9")
    if I("sb", 0) & 1:
        e("    s_barrier")
    e("    s_mov_b64 exec, s[14:15]")
    e(f"    buffer_store_dwordx4 v[12:15], v9, {R(S_STO)}, 0 offen {SC}")
    e(f"    buffer_store_dwordx4 v[16:19], v9, {R(S_STO)}, 0 offen offset:64 {SC}")
    e("    v_xor_b32 v20, 0x2000, v9")
    if I("sb", 0) & 4:
        e("    s_barrier")
    e("    s_and_b64 exec, exec, s[78:79]")
    e("    s_cbranch_execz E_NOREP")
    e(f"    buffer_store_dwordx4 v[12:15], v20, {R(S_STO)}, 0 offen {SC}")
    e(f"    buffer_store_dwordx4 v[16:19], v20, {R(S_STO)}, 0 offen offset:64 {SC}")
    e("E_NOREP:")
    e("    s_setprio 0")
    e("    s_mov_b64 exec, -1")
    stamp("h1_st")
    BS = I("bsplit", 0)

    def book1():
        e(f"    s_mov_b64 s[{S_GAT}:{S_GAT+1}], s[{S_GH}:{S_GH+1}]")
        e(f"    s_mov_b32 s{S_GAT+2}, {H1BYTES + 3072}")
        e("    s_or_b32 s71, s71, 1")
        if BS >= 1:
            rewrite_list("RW1")
        if BS >= 2:
            self_init(12)

    def book2():
        if BS < 2:
            self_init(12)
        e("    s_bitcmp1_b32 s71, 1")
        e("    s_cbranch_scc1 E_IRR")
        e("    s_or_b32 s71, s71, 16")
        w_frags()
        if BS < 1:
            rewrite_list("RW1")
        read_recs(88, 89, 128)
        e("    s_waitcnt lgkmcnt(2)")
        addr()
        e("E_BAR:")
        stamp("g2_bk")

    def book():
        if BS < 3:
            book2()
    book1()
    if BS >= 3:
        book2()
    barrier_addrs()
    e("    s_waitcnt vmcnt(0)")
    stamp("g2_ack")
    e("    s_barrier")
    e("    s_cmp_lg_u32 s3, 0")
    e("    s_cbranch_scc1 G2_NOF")
    stamp("g2_arr")
    e("    s_mov_b64 exec, 0xff")
    e(f"    buffer_store_dword v125, v2, {R(S_WS)}, s76 offen sc1")
    e("G2_NOF:")
    stamp("g2_b1")
    def own_h1():
        e("    s_mov_b32 exec_hi, 0")
        e("    s_and_b32 exec_lo, s14, 0xffff")
        e(f"    buffer_load_dword v91, v9, {R(S_STO)}, 0 offen sc1")
        e("    s_mov_b64 exec, -1")
    OL = I("ownlate", 9)
    if OL == 0:
        own_h1()
    e("    s_mov_b64 exec, -1")
    e("    s_cmp_lg_u32 s3, 0")
    e("    s_cbranch_scc1 G2_NP")
    e("    s_setprio 3")
    e("G2_NP:")
    book()
    if OL == 1:
        own_h1()
    if OL == 2:
        e("    v_mov_b32 v2, 0")
        e("    s_lshr_b32 s76, s2, 2")
        e("    s_lshl_b32 s76, s76, 7")
        e("    s_add_u32 s76, s76, s77")
        e("    s_and_b32 s75, s2, 3")
        e("    s_lshl_b32 s75, s75, 2")
        e("    s_add_u32 s76, s76, s75")
        e(f"    s_mov_b32 s75, {SPINMAX}")
        e("G2_P0:")
        e(f"    buffer_load_dword v4, v2, {R(S_WS)}, s76 offen sc1")
        e("    s_sub_u32 s75, s75, 1")
        e("    s_cmp_eq_u32 s75, 0")
        e("    s_waitcnt vmcnt(0)")
        e("    s_cbranch_scc1 G2_P1")
        e("    v_cmp_ne_u32 vcc, v4, v125")
        e("    s_cbranch_vccnz G2_P0")
        e("G2_P1:")
        own_h1()
    if I("xp", 0):
        e("    s_sub_u32 s75, s3, 2")
        e(f"    s_cmp_ge_u32 s75, {I('xp', 0)}")
        e("    s_cbranch_scc1 G2_NX")
        e("    s_xor_b32 s76, s2, 1")
        e(f"    s_mul_i32 s70, s76, {16*50006}")
        e("    s_lshr_b32 s70, s70, 12")
        e("    s_add_u32 s70, s70, 2")
        e("    s_lshl_b32 s75, s75, 6")
        e("    s_add_u32 s70, s70, s75")
        e("    v_and_b32 v4, 63, v0")
        e("    v_add_lshl_u32 v4, v4, s70, 7")
        remap(4, 2, 3)
        e("    s_lshr_b32 s70, s76, 2")
        e("    s_lshl_b32 s70, s70, 7")
        e("    s_and_b32 s76, s76, 3")
        e("    s_lshl2_add_u32 s70, s76, s70")
        e("    s_add_u32 s70, s70, s77")
        e("    v_mov_b32 v2, 0")
        e(f"    s_mov_b32 s75, {SPINMAX}")
        e("G2_XP:")
        e(f"    buffer_load_dword v5, v2, {R(S_WS)}, s70 offen sc1")
        e("    s_sub_u32 s75, s75, 1")
        e("    s_cmp_eq_u32 s75, 0")
        e("    s_waitcnt vmcnt(0)")
        e("    s_cbranch_scc1 G2_WAIT")
        e("    v_cmp_ne_u32 vcc, v5, v125")
        e("    s_cbranch_vccnz G2_XP")
        e(f"    buffer_load_dword v91, v4, {R(S_STO)}, 0 offen sc1")
        e("G2_NX:")
    e("    s_cmp_lg_u32 s3, 0")
    e("    s_cbranch_scc1 G2_WAIT")
    e(f"    s_mov_b32 s75, {SPINMAX}")
    e("G2_POLL:")
    e(f"    buffer_load_dwordx4 v[4:7], v8, {R(S_WS)}, s77 offen sc1")
    e("    s_sub_u32 s75, s75, 1")
    e("    s_cmp_eq_u32 s75, 0")
    e("    s_waitcnt vmcnt(0)")
    e("    s_cbranch_scc1 G2_WAIT")
    e("    v_xor_b32 v4, v4, v125")
    e("    v_xor_b32 v5, v5, v125")
    e("    v_xor_b32 v6, v6, v125")
    e("    v_xor_b32 v7, v7, v125")
    e("    v_or3_b32 v4, v4, v5, v6")
    e("    v_or_b32 v4, v4, v7")
    e("    v_cmp_ne_u32 vcc, 0, v4")
    if I("shrink", 1):
        e("    s_and_b64 exec, exec, vcc")
        e("    s_cbranch_scc1 G2_POLL")
    else:
        e("    s_cbranch_vccnz G2_POLL")
    e("G2_WAIT:")
    e("    s_mov_b64 exec, -1")
    if I("pp", 1):
        e("    s_setprio 0")
    e("    v_mov_b32 v8, 0")
    e("    s_and_b32 s76, s71, 2")
    e("    s_cselect_b32 s76, 0, s74")
    e("    s_cmp_lg_u32 s76, 0")
    e("    s_barrier")
    stamp("g2_exit")
    e("    s_cbranch_scc1 MAIN2")
    e("    s_bitcmp0_b32 s71, 1")
    e("    s_cbranch_scc1 MAIN")
    e("    s_branch COLLECT")
    e("FINAL:")
    MIX = I("mix", 0)
    if MIX:
        e("    s_mov_b64 exec, 1")
        e(f"    v_mov_b32 v2, {MORE+4}")
        e("    ds_add_rtn_u32 v2, v2, v1")
    e("    s_mov_b64 exec, -1")
    e("    s_bitcmp0_b32 s71, 4")
    e("    s_cbranch_scc1 F_GETW")
    e("F_HAVEW:")
    for t in range(4):
        w = WREG[t]
        e(f"    v_mfma_f32_16x16x32_bf16 v[{64+4*t}:{67+4*t}], v[{w}:{w+3}], v[12:15], 0")
    for t in range(4):
        w = WREG[4 + t]
        e(f"    v_mfma_f32_16x16x32_bf16 v[{64+4*t}:{67+4*t}], v[{w}:{w+3}], v[16:19], v[{64+4*t}:{67+4*t}]")
    e("    s_nop 4")
    for t in range(4):
        if t:
            e("    s_nop 1")
        e(f"    v_cvt_pk_bf16_f32 v{12+2*t}, v{64+4*t}, v{65+4*t}")
        e(f"    v_cvt_pk_bf16_f32 v{13+2*t}, v{66+4*t}, v{67+4*t}")
    if MIX:
        e("    s_waitcnt lgkmcnt(0)")
        e("    v_readfirstlane_b32 s76, v2")
        e("    s_mov_b64 exec, s[14:15]")
        e(f"    s_cmp_lt_u32 s76, {MIX}")
        e("    s_cbranch_scc1 F_WT")
        e(f"    buffer_store_dwordx4 v[12:15], v121, {R(S_OUT)}, 0 offen {OPT.get('mixf', '')}")
        e(f"    buffer_store_dwordx4 v[16:19], v121, {R(S_OUT)}, 0 offen offset:64 {OPT.get('mixf', '')}")
        e("    s_branch F_ST")
        e("F_WT:")
    if I("sb", 0) & 2:
        e("    s_barrier")
    e("    s_mov_b64 exec, s[14:15]")
    e(f"    buffer_store_dwordx4 v[12:15], v121, {R(S_OUT)}, 0 offen {ST_OUT}")
    e(f"    buffer_store_dwordx4 v[16:19], v121, {R(S_OUT)}, 0 offen offset:64 {ST_OUT}")
    e("F_ST:")
    stamp_out()
    e("END:")
    e("    s_endpgm")


def out_of_line():
    for i in range(2):
        base = 12 + 4 * i
        e(f"C_RETRY{i}:")
        e("    s_lshr_b64 s[76:77], vcc, 1")
        e("    s_or_b64 vcc, vcc, s[76:77]")
        e("    s_lshr_b64 s[76:77], vcc, 2")
        e("    s_or_b64 vcc, vcc, s[76:77]")
        e("    s_and_b32 vcc_lo, vcc_lo, 0x11111111")
        e("    s_and_b32 vcc_hi, vcc_hi, 0x11111111")
        e("    s_mul_i32 exec_lo, vcc_lo, 15")
        e("    s_mul_i32 exec_hi, vcc_hi, 15")
        if I("rbo", 0):
            e(f"    s_sleep {I('rbo', 0)}")
        e(f"    buffer_load_dwordx4 v[{base}:{base+3}], v{6+i}, {R(S_WS)}, s{68+i} offen {SC}")
        e(f"    s_mov_b64 exec, {ACT[i]}")
        e("    s_sub_u32 s75, s75, 1")
        e("    s_cmp_eq_u32 s75, 0")
        e("    s_waitcnt vmcnt(0)")
        e(f"    s_cbranch_scc0 C_CHK{i}")
        e("    s_mov_b32 s75, 1000")
        if DIAG:
            e(f"    s_or_b32 s48, s48, {1 << i}")
            e("    s_mov_b64 s[50:51], vcc")
        e(f"    s_branch C_OK{i}")
    e("C_RETRY2:")
    if I("bo", 0):
        e(f"    s_sleep {I('bo', 0)}")
    load_headers()
    e("    s_sub_u32 s75, s75, 1")
    e("    s_cmp_eq_u32 s75, 0")
    e("    s_waitcnt vmcnt(0)")
    e("    s_cbranch_scc0 C_CHK2")
    e("    s_mov_b32 s75, 1000")
    if DIAG:
        e("    s_or_b32 s48, s48, 4")
        e("    s_mov_b64 s[50:51], vcc")
    e("    s_branch C_OK2")
    probe()
    e("VOTES:")
    e("    s_sub_u32 s28, s28, 1")
    e("    s_bitcmp1_b32 s71, 7")
    e("    s_cbranch_scc0 VOTEL")
    e("    v_cmp_ne_u32 vcc, v4, v125")
    e("    s_cbranch_vccnz VOTEL")
    vote_count()
    e("    s_branch VOTED")
    e("VOTEL:")
    e("    s_or_b32 s71, s71, 128")
    vote_load()
    e("    s_branch VOTED")
    e("E_NOC:")
    e(f"    s_mov_b32 s75, {SPINMAX}")
    e("    s_cmp_lg_u32 s3, 1")
    e("    s_cbranch_scc1 E_SPIN")
    e("E_VP:")
    vote_load()
    e("    s_sub_u32 s75, s75, 1")
    e("    s_cmp_eq_u32 s75, 0")
    e("    s_waitcnt vmcnt(0)")
    e("    s_cbranch_scc1 E_VC")
    e("    v_cmp_ne_u32 vcc, v4, v125")
    e("    s_cbranch_vccnz E_VP")
    e("E_VC:")
    vote_count()
    e("E_SPIN:")
    e(f"    v_mov_b32 v7, {CFLAG}")
    e("    ds_read_b32 v7, v7")
    e("    s_waitcnt lgkmcnt(0)")
    e("    v_readfirstlane_b32 s80, v7")
    e("    s_cmp_eq_u32 s80, 0")
    e("    s_cbranch_scc1 E_SPIN")
    e("    s_branch E_HAVEC")
    a_overflow()
    e("AGAIN:")
    e("    s_setprio 0")
    e("    s_or_b32 s71, s71, 2")
    e("    s_barrier")
    zero_b_counters((CFLAG - CNTB) // 4)
    e("    s_waitcnt lgkmcnt(0)")
    e("    s_barrier")
    for s in range(7):
        e(f"    s_mov_b64 exec, {PEND(s)}")
        e(f"    ds_add_rtn_u32 v{32+s}, v{40+s}, v1")
    e("EXTRA:")
    for m, r in (("s[4:5]", 116), ("s[6:7]", 118)):
        e(f"    s_andn2_b64 exec, {m}, {PEND(7)}")
        e(f"    s_andn2_b64 {m}, {m}, exec")
        e(f"    s_or_b64 {PEND(7)}, {PEND(7)}, exec")
        decode_full(r, r + 1, 7)
    e("    s_mov_b64 exec, -1")
    e("    s_or_b64 s[76:77], s[4:5], s[6:7]")
    e("    s_cbranch_scc1 OVFULL")
    e("    s_mov_b32 s75, 0")
    e("OVL:")
    e("    s_cmp_lt_u32 s68, s69")
    e("    s_cbranch_scc1 OVLOAD")
    e("    s_cmp_eq_u64 s[72:73], 0")
    e("    s_cbranch_scc1 OVDONE")
    e("    s_ff1_i32_b64 s76, s[72:73]")
    e("    s_bitset0_b64 s[72:73], s76")
    e("    s_or_b32 s77, s76, 7")
    e("    v_readlane_b32 s68, v117, s77")
    e("    v_readlane_b32 s69, v119, s77")
    e("    s_bitcmp1_b32 s76, 0")
    e("    s_cselect_b32 s69, s69, s68")
    e("    s_and_b32 s69, s69, 0xfff")
    e(f"    s_min_u32 s69, s69, {CHMAX}")
    e("    s_and_b32 s77, s76, 1")
    e("    s_lshl_b32 s77, s77, 7")
    e("    s_lshr_b32 s76, s76, 3")
    e("    s_add_u32 s76, s76, s77")
    e("    s_lshl_b32 s77, s3, 3")
    e("    s_add_u32 s76, s76, s77")
    e("    s_lshl_b32 s70, s76, 15")
    e(f"    s_mov_b32 s68, {NINL}")
    e("OVLOAD:")
    e("    v_add_u32 v4, s75, v0")
    e("    v_and_b32 v4, 63, v4")
    e("    v_add_u32 v4, s68, v4")
    e("    v_lshlrev_b32 v5, 3, v4")
    e(f"    buffer_load_dwordx2 v[28:29], v5, {R(S_OVF)}, s70 offen {SC}")
    e("    s_waitcnt vmcnt(0)")
    e(f"    v_mul_u32_u24 v30, {TM}, v29")
    e("    v_lshrrev_b32 v31, 20, v30")
    e("    v_cmp_gt_u32 vcc, s69, v4")
    e("    v_cmp_eq_u32 s[76:77], s2, v31")
    e("    s_and_b64 vcc, s[76:77], vcc")
    e(f"    s_and_b64 s[76:77], vcc, {PEND(7)}")
    e("    s_cbranch_scc1 OVFULL")
    e(f"    s_or_b64 {PEND(7)}, {PEND(7)}, vcc")
    e("    s_add_u32 s68, s68, 64")
    e("    s_add_u32 s75, s75, 16")
    e("    s_mov_b64 exec, vcc")
    decode_full(28, 29, 7)
    e("    s_mov_b64 exec, -1")
    e("    s_branch OVL")
    e("OVFULL:")
    e(f"    v_mov_b32 v2, {MORE}")
    e("    ds_write_b32 v2, v1")
    e("OVDONE:")
    e(f"    s_mov_b64 exec, {PEND(7)}")
    e("    ds_add_rtn_u32 v39, v47, v1")
    e("    s_mov_b64 exec, -1")
    e("    s_branch CDONE")
    e("SLOWW:")
    e("    s_waitcnt lgkmcnt(0)")
    for s in range(8):
        e(f"    s_mov_b64 exec, {PEND(s)}")
        e(f"    v_lshl_add_u32 v{20+s}, v{32+s}, 2, v{20+s}")
        e(f"    v_subrev_u32 v3, s0, v{40+s}")
        e("    v_lshrrev_b32 v3, 6, v3")
        e(f"    v_mul_u32_u24 v3, {TSTR}, v3")
        e(f"    v_add_u32 v3, {LISTS + CAPT*4}, v3")
        e(f"    v_cmp_lt_u32 vcc, v{20+s}, v3")
        e(f"    s_andn2_b64 {PEND(s)}, exec, vcc")
        e("    s_mov_b64 exec, vcc")
        e(f"    ds_write2st64_b32 v{20+s}, v{48+s}, v{56+s} offset0:0 offset1:5")
    e("    s_mov_b64 exec, -1")
    e(f"    v_mov_b32 v3, {MORE}")
    e("    ds_write_b32 v3, v1")
    e("    s_branch WDONE")
    e("REMAP2:")
    REWRITE("RW2")
    e("    s_branch MAIN1")
    e("E_IRR:")
    e("    s_mov_b32 s70, s77")
    zero_b_counters(256)
    e("    s_mov_b32 s77, s70")
    collect_addrs()
    for i in range(4):
        e(f"    v_mov_b32 v{100+i}, {PADV}")
    e("    s_waitcnt lgkmcnt(0)")
    e("    s_branch E_BAR")
    e("EMPTY:")
    e("    s_waitcnt vmcnt(0) lgkmcnt(0)")
    e("    s_bitcmp1_b32 s71, 3")
    e("    s_cbranch_scc1 MAINDONE")
    e("    s_or_b32 s71, s71, 8")
    own_addr("PRB_E")
    self_init(64)
    e("    s_branch MAINDONE")
    e("F_GETW:")
    e("    s_waitcnt lgkmcnt(0)")
    w_frags()
    e("    s_waitcnt lgkmcnt(0)")
    e("    s_branch F_HAVEW")
    e("CODE_END:")


def body():
    e(f".globl {NAME}")
    e(".p2align 8")
    e(f".type {NAME},@function")
    e(f"{NAME}:")
    phase_a()
    setup1()
    if SP == 0:
        setup2()
        setup3()
    if I("pc", 1):
        e("    s_setprio 3")
    AK = I("ackb", 1)
    if AK == 1:
        e("    s_waitcnt vmcnt(0) lgkmcnt(0)")
    elif AK == 2:
        e("    s_waitcnt vmcnt(1) lgkmcnt(0)")
    elif AK >= 4:
        e(f"    s_cmp_ge_u32 s3, {AK}")
        e("    s_waitcnt lgkmcnt(0)")
        e("    s_cbranch_scc1 G1_NA")
        e("    s_waitcnt vmcnt(0)")
        e("G1_NA:")
    else:
        e("    s_waitcnt lgkmcnt(0)")
    stamp("g1_ack")
    e("    s_barrier")
    stamp("g1_exit")
    phase_b()
    main_loop()
    out_of_line()


def spin_kernel():
    na, nb_, mode, mult, wlo, whi = (SPIN.split(",") + ["0", "15"])[:6]
    wlo, whi = int(wlo), int(whi)
    ia, ib, mode, mult = STL.index(na), STL.index(nb_), int(mode), int(mult)
    init = "0x80000000" if mode == 0 else "0x7fffffff" if mode == 1 else "0"
    e(".globl sgc_spin_kernel")
    e(".p2align 8")
    e(".type sgc_spin_kernel,@function")
    e("sgc_spin_kernel:")
    e("    s_memrealtime s[30:31]")
    e("    s_cmp_ge_u32 s2, 1")
    e("    s_cbranch_scc1 SP_END")
    e("    s_load_dwordx8 s[12:19], s[0:1], 32")
    e("    v_lshlrev_b32 v1, 6, v0")
    e("    v_mov_b32 v4, 0x7fffffff")
    e(f"    v_mov_b32 v5, {init}")
    e("    s_mov_b32 s23, 0x20000")
    e("    s_waitcnt lgkmcnt(0)")
    srd(20, 18, 19, 1 << 20, WS_STAMP)
    e("    s_mov_b32 s24, 0")
    e("SP_RD:")
    e(f"    buffer_load_dword v2, v1, s[20:23], s24 offen offset:{4*ia}")
    e(f"    buffer_load_dword v3, v1, s[20:23], s24 offen offset:{4*ib}")
    e("    s_add_u32 s24, s24, 4096")
    e("    s_cmp_lt_u32 s24, 0x40000")
    e("    s_waitcnt vmcnt(0)")
    e("    v_subrev_u32 v2, s30, v2")
    e("    v_subrev_u32 v3, s30, v3")
    e("    v_min_i32 v4, v4, v2")
    e("    %s v5, v5, v3" % ("v_max_i32" if mode == 0 else "v_min_i32" if mode == 1 else "v_add_u32"))
    e("    s_cbranch_scc1 SP_RD")
    e("    s_mov_b32 s26, 0x7fffffff")
    e(f"    s_mov_b32 s27, {init}")
    e("    s_nop 1")
    for l in range(64):
        e(f"    v_readlane_b32 s28, v4, {l}")
        e(f"    v_readlane_b32 s29, v5, {l}")
        e("    s_min_i32 s26, s26, s28")
        if wlo <= (l & 15) <= whi:
            e("    %s s27, s27, s29" % ("s_max_i32" if mode == 0 else "s_min_i32" if mode == 1 else "s_add_u32"))
    if mode == 2:
        e("    s_ashr_i32 s27, s27, %d" % (8 + (whi - wlo + 1).bit_length() - 1))
    e("    s_sub_i32 s26, s27, s26")
    e("    s_max_i32 s26, s26, 0")
    e("    s_min_i32 s26, s26, 20000")
    e(f"    s_mul_i32 s26, s26, {mult}")
    e("    s_add_u32 s26, s26, 10000")
    e("SP_LOOP:")
    e("    s_memrealtime s[28:29]")
    e("    s_waitcnt lgkmcnt(0)")
    e("    s_sub_u32 s28, s28, s30")
    e("    s_cmp_lt_u32 s28, s26")
    e("    s_cbranch_scc1 SP_LOOP")
    e("SP_END:")
    e("    s_endpgm")


def desc(name, vg, sg):
    e(".p2align 6")
    e(f".amdhsa_kernel {name}")
    e(f"  .amdhsa_next_free_vgpr {vg}")
    e(f"  .amdhsa_next_free_sgpr {sg}")
    e(f"  .amdhsa_accum_offset {vg}")
    e("  .amdhsa_group_segment_fixed_size 0")
    e("  .amdhsa_kernarg_size 64")
    e("  .amdhsa_user_sgpr_count 2")
    e("  .amdhsa_user_sgpr_kernarg_segment_ptr 1")
    e("  .amdhsa_system_sgpr_workgroup_id_x 1")
    e(".end_amdhsa_kernel")


SPIN = OPT.get("spin")
if SPIN:
    e(f"; @launch kernel={NAME} grid=(256,1,1) block=(1024,1,1) lds={LDS}")
    e("; @launch kernel=sgc_spin_kernel grid=(1,1,1) block=(64,1,1) lds=0")
else:
    e(f"; @launch grid=(256,1,1) block=(1024,1,1) lds={LDS}")
e('.amdgcn_target "amdgcn-amd-amdhsa--gfx950"')
e(".text")
body()
if SPIN:
    spin_kernel()
e('.section .rodata,"a"')
if SPIN:
    desc("sgc_spin_kernel", 8, 40)
desc(NAME, 128, 102 if DIAG else 82)
open(OUT, "w").write("\n".join(L) + "\n")
```

```python
import sys

OUT = [a for a in sys.argv[1:] if not a.startswith("--")][0]
OPT = dict(a[2:].split("=") for a in sys.argv[1:] if a.startswith("--") and "=" in a)
NAME = "standalone__spectral_conv_sgc__graph_kernel"
DEFST = "start,a_bar2,b_bar1,b_bar2,h1_done,g2_ack,g2_arr,g2_exit,h2_done,end"
STL = OPT.get("st", DEFST if "--diag" in sys.argv else "").split(",")
STL = [s for s in STL if s]
DIAG = len(STL) > 0


def I(name, dflt):
    return int(OPT.get(name, dflt))


N = 50000
E = 850000
ET = 800000
TM = 5368
CHMAX = 13 * 256
SLOTCAP = 24
NINL = 7
WS_OVT = 8 << 20
WS_FLAG = WS_OVT + 131072
WS_VOTE = WS_FLAG + 65536
WS_H1 = 12 << 20
H1BYTES = 782 * 16384
WS_OVF = 40 << 20
OVF_STRIDE = 32768
WS_STAMP = 32 << 20
TABBYTES = N * 128
PADV = 0x40000000

K1_LS = 132
K1_CNT = 256 * K1_LS
K1_OVC = 1024
K1_DONE = 1028
K1_OVT = K1_CNT + 4096
K1_NON = K1_OVT + 64
K1_MSK = K1_NON + 16
LISTS = 65536
CAPT = 320
TSTR = CAPT * 8
CNTB = LISTS + 16 * TSTR + 256
BASES = CNTB + 1024
MORE = BASES + 1024
CFLAG = MORE + 64
WL = MORE + 128
assert WL % 128 == 0
SELFN = WL + 8192
LDS = SELFN + 1024

SC = "sc1"
ST_OUT = OPT.get("stout", "sc1")
SPINMAX = I("spinmax", 20000000)
NB = I("nb", 8)
TSH = I("tsh", 20)
ROT = I("rot", 6250)
SP = I("sp", 1)
EARLY = I("early", 0)
SEGB = I("segb", 2)

L = []


def e(s=""):
    L.append(s)


def srd(d, lo, hi, nbytes, off=0):
    if off == 0:
        e(f"    s_mov_b64 s[{d}:{d+1}], s[{lo}:{hi}]")
    elif off > 0:
        e(f"    s_add_u32 s{d}, s{lo}, {off}")
        e(f"    s_addc_u32 s{d+1}, s{hi}, 0")
    else:
        e(f"    s_sub_u32 s{d}, s{lo}, {-off}")
        e(f"    s_subb_u32 s{d+1}, s{hi}, 0")
    e(f"    s_mov_b32 s{d+2}, {nbytes}")
    e(f"    s_mov_b32 s{d+3}, s23")


S_SRC, S_DST, S_NRM, S_WS, S_OVF, S_GAT, S_STO = 20, 24, 28, 32, 36, 40, 44
S_OUT, S_GH = S_SRC, S_DST


def R(d):
    return f"s[{d}:{d+3}]"


STAMP_BASE = 82


def stamp(name):
    if name in STL:
        i = STL.index(name)
        e(f"    s_memrealtime s[{STAMP_BASE+2*i}:{STAMP_BASE+2*i+1}]")


def stamp2(n1, n2):
    if n1 in STL or n2 in STL:
        n = len(L)
        e("    s_bitcmp1_b32 s71, 0")
        e(f"    s_cbranch_scc1 ST{n}_B")
        stamp(n1)
        e(f"    s_branch ST{n}_C")
        e(f"ST{n}_B:")
        stamp(n2)
        e(f"ST{n}_C:")


def stamp_out():
    if not DIAG:
        return
    e("    s_waitcnt vmcnt(0) lgkmcnt(0)")
    stamp("end")
    e("    s_waitcnt lgkmcnt(0)")
    e("    s_mov_b64 exec, 1")
    srd(28, 18, 19, 1 << 20, WS_STAMP)
    e("    s_lshl_b32 s76, s2, 4")
    e("    s_add_u32 s76, s76, s3")
    e("    s_lshl_b32 s76, s76, 6")
    e("    v_mov_b32 v2, s76")
    for i in range(len(STL)):
        e(f"    v_mov_b32 v3, s{STAMP_BASE+2*i}")
        e(f"    buffer_store_dword v3, v2, s[28:31], 0 offen offset:{4*i}")
    e("    s_getreg_b32 s76, hwreg(HW_REG_XCC_ID)")
    e("    v_mov_b32 v3, s76")
    e("    buffer_store_dword v3, v2, s[28:31], 0 offen offset:56")
    e("    s_lshl_b32 s76, s48, 16")
    e("    s_or_b32 s76, s76, s74")
    e("    v_mov_b32 v3, s76")
    e("    buffer_store_dword v3, v2, s[28:31], 0 offen offset:60")
    e("    v_mov_b32 v3, s50")
    e("    buffer_store_dword v3, v2, s[28:31], 0 offen offset:48")
    e("    v_mov_b32 v3, s51")
    e("    buffer_store_dword v3, v2, s[28:31], 0 offen offset:52")


def PEND(s):
    return f"s[{52+2*s}:{53+2*s}]"


def prio_by_age(lbl):
    for g in range(1, 4):
        e(f"    s_cmp_lt_u32 s3, {4*g}")
        e(f"    s_cbranch_scc1 {lbl}")
        e(f"    s_setprio {g}")
    e(f"{lbl}:")


def decode_key(rec, meta, k, s):
    ca = 40 + s
    e(f"    v_add_u32 v2, s27, v{rec}")
    e(f"    v_and_b32_sdwa v3, v{meta}, v99 dst_sel:DWORD dst_unused:UNUSED_PAD src0_sel:BYTE_{k} src1_sel:DWORD")
    e("    v_bfe_u32 v2, v2, 12, 4")
    e("    v_or_b32 v2, v2, v3")
    e(f"    v_lshl_add_u32 v{ca}, v2, 2, s0")


def decode_data(rec, meta, k, s):
    d0, d1 = 48 + s, 56 + s
    e(f"    v_lshlrev_b32_sdwa v{d0}, v124, v{rec} dst_sel:DWORD dst_unused:UNUSED_PAD src0_sel:DWORD src1_sel:WORD_0")
    e(f"    v_mov_b32 v{d1}, v{rec}")
    e(f"    v_lshlrev_b16_sdwa v{d1}, v{meta}, v1 dst_sel:WORD_0 dst_unused:UNUSED_PRESERVE src0_sel:BYTE_{k} src1_sel:DWORD")


def decode_full(rec, dst, s):
    e(f"    v_mul_u32_u24 v30, {TM}, v{dst}")
    e("    v_lshrrev_b32 v30, 12, v30")
    e(f"    v_bfi_b32 v30, 15, v{dst}, v30")
    decode_key(rec, 30, 0, s)
    decode_data(rec, 30, 0, s)


def zero_b_counters(n):
    e("    v_lshlrev_b32 v2, 2, v0")
    e(f"    v_add_u32 v2, {CNTB}, v2")
    e("    v_mov_b32 v3, 0")
    e(f"    v_cmp_gt_u32 vcc, {n}, v0")
    e("    s_and_saveexec_b64 s[76:77], vcc")
    e("    ds_write_b32 v2, v3")
    e("    s_mov_b64 exec, -1")


def collect_addrs():
    e("    v_lshrrev_b32 v9, 3, v0")
    e("    v_lshlrev_b32 v93, 7, v9")
    e("    v_lshlrev_b32 v9, 15, v9")
    e("    v_lshl_add_u32 v9, v10, 4, v9")
    e("    v_lshl_add_u32 v93, v10, 3, v93")


def own_x():
    e("    s_bitcmp1_b32 s71, 3")
    e("    s_cbranch_scc1 NOOWN")
    e("    s_mov_b64 exec, s[14:15]")
    e(f"    buffer_load_dwordx4 v[64:67], v121, {R(S_GAT)}, 0 offen offset:3072")
    e(f"    buffer_load_dwordx4 v[68:71], v121, {R(S_GAT)}, 0 offen offset:3136")
    if I("xtra", 0):
        e(f"    s_mov_b64 exec, {(1 << I('xtra', 0)) - 1}")
        e(f"    s_movk_i32 s76, {196*128}")
        e(f"    buffer_load_dword v91, v121, {R(S_GAT)}, s76 offen offset:3072")
    e("NOOWN:")
    e("    s_mov_b64 exec, -1")


def own_addr(lbl):
    e(f"    v_bfe_u32 v2, v121, {I('rsh', 13)}, {I('rbits', 2)}")
    e("    v_and_b32 v9, 0xffffe000, v121")
    e(f"    v_cmp_gt_u32 s[78:79], {I('rep', 1)}, v2")
    e("    v_add_u32 v9, v9, v121")
    e("    v_lshrrev_b32 v2, 8, v9")
    e("    v_and_b32 v2, 0x2000, v2")
    e("    v_xor_b32 v9, v9, v2")
    e("    s_and_b32 s76, s26, 3")
    e("    s_or_b32 s76, s76, s3")
    e(f"    s_cbranch_scc1 {lbl}")
    e("    s_or_b32 s71, s71, %d" % (64 if lbl == "PRB_M" else 0))
    e("    s_branch PROBE")
    e(f"{lbl}:")


def probe():
    e("PROBE:")
    e("    s_lshr_b32 s76, s29, 12")
    e("    s_lshl3_add_u32 s77, s26, s76")
    e("    s_lshl_b32 s80, s77, 15")
    e("    s_xor_b32 s81, s29, 0x1000")
    e("    s_add_u32 s80, s80, s81")
    e("    s_xor_b32 s81, s80, 0x2000")
    if I("pw", 1):
        e("    s_xor_b32 s75, s80, 0x4000")
        e("    s_load_dword s50, s[18:19], s75")
    e("    s_waitcnt lgkmcnt(0)")
    e("    s_memtime vcc")
    e("    s_load_dword s50, s[18:19], s80")
    e("    s_waitcnt lgkmcnt(0)")
    e("    s_memtime s[76:77]")
    e("    s_load_dword s50, s[18:19], s81")
    e("    s_waitcnt lgkmcnt(0)")
    e("    s_sub_u32 s75, s76, vcc_lo")
    e("    s_memtime vcc")
    e("    s_waitcnt lgkmcnt(0)")
    e("    s_sub_u32 s77, vcc_lo, s76")
    if DIAG:
        e("    s_mov_b32 s50, s75")
        e("    s_mov_b32 s51, s77")
    e("    s_cmp_lt_u32 s75, s77")
    e("    s_cselect_b32 s80, s80, s81")
    e("    s_lshr_b32 s81, s80, 8")
    e("    s_xor_b32 s80, s80, s81")
    e("    s_lshr_b32 s80, s80, 13")
    e("    s_xor_b32 s80, s80, s2")
    e("    s_and_b32 s80, s80, 1")
    if OPT.get("cfix"):
        e(f"    s_mov_b32 s80, {OPT['cfix']}")
    e("    s_lshr_b32 s76, s29, 12")
    e("    s_lshr_b32 s77, s26, 2")
    e("    s_lshl3_add_u32 s77, s77, s76")
    e("    s_lshl_b32 s77, s77, 7")
    e(f"    s_add_u32 s77, s77, {WS_VOTE}")
    e("    v_lshlrev_b32 v2, 3, v0")
    e("    v_mov_b32 v4, v125")
    e("    v_mov_b32 v5, s80")
    e("    s_mov_b64 exec, 0xffff")
    e(f"    buffer_store_dwordx2 v[4:5], v2, {R(S_WS)}, s77 offen sc1")
    e("    s_mov_b64 exec, -1")
    e("    s_bitcmp0_b32 s71, 6")
    e("    s_cbranch_scc1 PRB_E")
    if I("catch", 1):
        e("    s_sub_u32 s10, s10, 1")
    e("    s_waitcnt vmcnt(5)")
    e("    s_branch PRB_M2")


def vote_load():
    e("    v_and_b32 v2, 63, v0")
    e("    v_lshlrev_b32 v2, 7, v2")
    e(f"    s_mov_b32 s76, {WS_VOTE}")
    e(f"    buffer_load_dwordx2 v[4:5], v2, {R(S_WS)}, s76 offen sc1")


def vote_count():
    e("    v_cmp_eq_u32 vcc, 1, v5")
    e("    s_bcnt1_i32_b64 s76, vcc")
    if "minor" in STL:
        i = STL.index("minor")
        e("    s_sub_u32 s77, 64, s76")
        e("    s_min_u32 s77, s77, s76")
        e("    s_mul_i32 s77, s77, 50")
        e(f"    s_add_u32 s{STAMP_BASE+2*i}, s{STAMP_BASE}, s77")
    e("    s_cmp_ge_u32 s76, 32")
    e("    s_cselect_b32 s76, 3, 2")
    e(f"    v_mov_b32 v2, {CFLAG}")
    e("    v_mov_b32 v3, s76")
    e("    ds_write_b32 v2, v3")
    e("    s_movk_i32 s28, 0x7fff")


def self_init(b):
    e("    s_mov_b64 exec, s[16:17]")
    e(f"    v_swap_b32 v{b}, v{b+2}")
    e(f"    v_swap_b32 v{b+1}, v{b+3}")
    e(f"    v_swap_b32 v{b+4}, v{b+6}")
    e(f"    v_swap_b32 v{b+5}, v{b+7}")
    e("    s_mov_b64 exec, -1")
    for i in reversed(range(8)):
        e(f"    v_and_b32 v{65+2*i}, 0xffff0000, v{b+i}")
        e(f"    v_lshlrev_b32 v{64+2*i}, 16, v{b+i}")
    for i in range(16):
        e(f"    v_mul_f32 v{64+i}, v126, v{64+i}")


def phase_a():
    stamp("start")
    e("    s_getpc_b64 s[6:7]")
    e("CPF_PC:")
    e("    v_cmp_gt_u32 vcc, (SLOWW-CPF_PC+127)/128, v0")
    e("    v_lshlrev_b32 v2, 7, v0")
    e("    s_load_dwordx2 s[24:25], s[0:1], 16")
    e("    s_mov_b64 exec, vcc")
    e("    s_mov_b32 s8, vcc_lo")
    e("    s_cbranch_execz CPF_D")
    e("    global_load_dword v126, v2, s[6:7] offset:124")
    e("CPF_D:")
    e("    s_load_dwordx2 s[20:21], s[0:1], 8")
    e("    s_load_dwordx2 s[28:29], s[0:1], 24")
    e("    s_load_dwordx2 s[10:11], s[0:1], 56")
    e("    s_mov_b64 exec, -1")
    e("    s_cmp_ge_u32 s2, 256")
    e("    s_cbranch_scc1 END")
    TCH = I("touch", 1)
    e("    v_lshrrev_b32 v3, 6, v0")
    e("    v_and_b32 v2, 63, v0")
    e("    s_mov_b32 s23, 0x20000")
    e(f"    s_mov_b32 s22, {E*4}")
    e("    v_lshlrev_b32 v4, 18, v3")
    e("    s_mov_b64 s[26:27], s[22:23]")
    e("    v_lshl_or_b32 v4, v2, 4, v4")
    e("    s_lshr_b32 s30, s22, 1")
    e("    s_mov_b32 s31, s23")
    e("    v_lshrrev_b32 v5, 1, v4")
    e("    s_lshl_b32 s68, s2, 10")
    e("    v_cmp_gt_u32 vcc, 13, v3")
    e("    s_lshl_b32 s69, s2, 9")
    e(f"    v_mov_b32 v125, {WS_FLAG + (I('wsoff', 0) << 20)}")
    e("    s_cmp_eq_u32 s8, 0")
    e("    s_waitcnt lgkmcnt(0)")
    e("    s_cbranch_scc1 A_NOZ")
    e("    global_load_dword v125, v125, s[10:11] sc1")
    e("A_NOZ:")
    e("    s_cbranch_vccz A_NOLD0")
    LI = OPT.get("ldin", "")
    e(f"    buffer_load_dwordx4 v[12:15], v4, {R(S_DST)}, s68 offen {LI}")
    e("A_NOLD0:")
    e("    s_barrier")
    e("    s_cbranch_vccz A_NOLD")
    e(f"    buffer_load_dwordx4 v[16:19], v4, {R(S_SRC)}, s68 offen {LI}")
    e(f"    buffer_load_dwordx2 v[20:21], v5, {R(S_NRM)}, s69 offen {LI}")
    e("A_NOLD:")
    stamp("a_issue")
    e("    s_load_dwordx8 s[12:19], s[0:1], 32")
    e("    s_load_dwordx2 s[4:5], s[0:1], 0")
    e("    v_readfirstlane_b32 s3, v3")
    e("    v_lshlrev_b32 v9, 2, v0")
    e("    v_mov_b32 v6, 0")
    e(f"    ds_write_b32 v9, v6 offset:{K1_CNT}")
    for i in range(4):
        e(f"    v_mov_b32 v{24+i}, -1")
    e("    v_lshlrev_b32 v7, 4, v0")
    e("    ds_write_b128 v7, v[24:27]")
    e("    ds_write_b128 v7, v[24:27] offset:16384")
    e("    v_add_u32 v4, s68, v4")
    e("    v_lshrrev_b32 v8, 2, v4")
    e("    v_cmp_gt_u32 s[72:73], s22, v4")
    e(f"    v_subrev_u32 v8, {ET}, v8")
    e("    v_mov_b32 v1, 1")
    e("    v_and_b32 v10, 7, v0")
    srd(S_WS, 10, 11, WS_H1 + H1BYTES, I("wsoff", 0) << 20)
    e("    s_cmp_lt_u32 s3, 13")
    e("    s_cbranch_scc1 A_BAR")
    e("    s_cmp_lt_u32 s3, 14")
    e("    s_cbranch_scc1 A_H13")
    e("    s_cmp_eq_u32 s3, 14")
    e("    s_cbranch_scc1 A_H14")
    e(f"    ds_write_b128 v7, v[24:27] offset:{32768 - 15*1024}")
    e("    v_and_b32 v5, 60, v9")
    e("    v_mov_b32 v7, 0xffff")
    e(f"    ds_write_b32 v5, v7 offset:{K1_OVT}")
    e("    s_branch A_BAR")
    e("A_H14:")
    if I("hv", 0):
        e("    v_bfe_u32 v52, v0, 4, 2")
        e("    v_and_b32 v3, 15, v0")
        e("    v_lshlrev_b32 v52, 15, v52")
        e("    s_lshl_b32 s75, s2, 7")
        e("    v_lshl_or_b32 v52, v3, 3, v52")
        e(f"    s_add_u32 s75, s75, {WS_OVT}")
        e("    v_bfe_i32 v5, v0, 0, 1")
        e(f"    buffer_store_dwordx2 v[4:5], v52, {R(S_WS)}, s75 offen sc1")
    e(f"    v_lshlrev_b32 v2, {TSH}, v2")
    if TCH == 1:
        e(f"    buffer_load_dword v126, v2, {R(S_WS)}, 0 offen offset:{I('toff', 3968)} sc1")
    if TCH and I("txo", 1):
        e("    s_waitcnt lgkmcnt(0)")
        srd(S_GAT, 4, 5, TABBYTES)
        e(f"    buffer_load_dword v126, v2, {R(S_GAT)}, 0 offen")
        srd(S_OVF, 14, 15, TABBYTES)
        e(f"    buffer_load_dword v126, v2, {R(S_OVF)}, 0 offen sc1")
    e("    s_branch A_BAR")
    e("A_H13:")
    if I("pt", 0) == 1:
        e("    s_lshl_b32 s77, s2, 6")
        e(f"    s_add_u32 s77, s77, {WS_OVT}")
        e("    v_lshlrev_b32 v2, 14, v2")
        e("    s_mov_b64 exec, 0xff")
        e(f"    buffer_load_dword v126, v2, {R(S_WS)}, s77 offen sc1")
        e("    s_mov_b64 exec, -1")
    elif I("pt", 0) == 2:
        e("    s_lshl_b32 s77, s2, 9")
        e(f"    s_add_u32 s77, s77, {WS_OVT}")
        e("    v_lshlrev_b32 v2, 7, v2")
        e("    s_mov_b64 exec, 15")
        e(f"    buffer_load_dword v126, v2, {R(S_WS)}, s77 offen sc1")
        e("    s_mov_b64 exec, -1")
    e("A_BAR:")
    e("    s_lshr_b32 s76, s2, 7")
    e("    s_add_u32 s77, s76, s2")
    e("    s_and_b32 s77, s77, 3")
    e("    s_lshl_b32 s77, s77, 6")
    e("    s_lshl1_add_u32 s77, s76, s77")
    e("    s_bfe_u32 s76, s2, 0x40003")
    e("    s_lshl2_add_u32 s77, s76, s77")
    e("    s_bfe_u32 s76, s2, 0x10002")
    e("    s_add_u32 s65, s77, s76")
    if I("pa", 1):
        prio_by_age("A_PRD")
    e("    s_waitcnt lgkmcnt(0)")
    if I("wsoff", 0):
        e("    s_mov_b64 s[18:19], s[32:33]")
    e("    s_barrier")
    stamp("a_bar1")
    e("    s_cmp_lt_u32 s3, 12")
    e("    s_cbranch_scc1 A_SETUP")
    e("    v_bfe_u32 v2, v0, 4, 4")
    e("    s_lshl_b32 s76, s65, 4")
    e("    v_add_u32 v2, s76, v2")
    e("    v_mul_u32_u24 v3, 50006, v2")
    e("    v_lshrrev_b32 v3, 12, v3")
    e("    v_sub_u32 v4, v0, v3")
    e("    v_and_b32 v4, 15, v4")
    e("    v_add_u32 v115, v3, v4")
    e(f"    v_add_u32 v4, {ET}, v115")
    e("    v_lshlrev_b32 v5, 2, v4")
    e("    v_lshlrev_b32 v4, 1, v4")
    e(f"    buffer_load_dword v112, v5, {R(S_DST)}, 0 offen")
    e(f"    buffer_load_dword v113, v5, {R(S_SRC)}, 0 offen")
    e(f"    buffer_load_ushort v114, v4, {R(S_NRM)}, 0 offen")
    e(f"    v_mul_u32_u24 v4, {TM}, v115")
    e("    v_lshrrev_b32 v4, 16, v4")
    e("    v_cmp_eq_u32 s[66:67], v4, v2")
    e(f"    v_cmp_gt_u32 vcc, {N}, v115")
    e("    s_and_b64 s[66:67], s[66:67], vcc")
    e("    s_cmp_eq_u32 s3, 12")
    e("    s_cbranch_scc1 A_SETUP")
    srd(S_STO, 12, 13, 8192)
    e(f"    v_subrev_u32 v2, {13*64}, v0")
    e("    v_lshlrev_b32 v2, 4, v2")
    e(f"    buffer_load_dwordx4 v[100:103], v2, {R(S_STO)}, 0 offen")
    e(f"    buffer_load_dwordx4 v[104:107], v2, {R(S_STO)}, 0 offen offset:3072")
    e("    v_add_u32 v3, 6144, v2")
    e(f"    buffer_load_dwordx4 v[108:111], v3, {R(S_STO)}, 0 offen")
    e("A_SETUP:")
    e("    s_lshr_b32 s76, s3, 1")
    e("    s_add_u32 s76, s76, s2")
    e("    s_and_b32 s76, s76, 7")
    e("    s_lshl_b32 s74, s2, 15")
    e("    s_lshl_b32 s77, s76, 12")
    e("    s_add_u32 s74, s74, s77")
    e("    s_lshl_b32 s77, s76, 2")
    e("    v_mov_b32 v49, s77")
    e("    s_and_b32 s75, s3, 1")
    e("    s_lshl_b32 s75, s75, 1")
    e("    v_bfe_u32 v2, v0, 3, 3")
    e("    v_lshlrev_b32 v48, 4, v10")
    e("    v_cmp_lt_u32 vcc, 3, v10")
    e(f"    v_mul_u32_u24 v3, {K1_LS * 4}, v2")
    e("    s_and_b32 s70, s3, 1")
    e("    s_add_u32 s77, s76, s70")
    e("    s_and_b32 s77, s77, 3")
    e("    s_lshl_b32 s77, s77, 6")
    e("    s_lshl1_add_u32 s77, s70, s77")
    e("    s_lshr_b32 s76, s76, 2")
    e("    s_add_u32 s76, s76, s77")
    e("    v_add_u32 v3, v3, v48")
    for st in range(2):
        e(f"    s_add_u32 s77, s76, {32*st}")
        e(f"    s_mul_i32 s77, s77, {K1_LS}")
        e(f"    v_add_u32 v{40+st}, s77, v3")
        e(f"    v_lshl_add_u32 v{46+st}, s75, 3, v2")
        e(f"    v_lshlrev_b32 v{44+st}, v{46+st}, v1")
        e(f"    v_add_u32 v{42+st}, -1, v{44+st}")
        e(f"    v_cndmask_b32 v{44+st}, 0, v{44+st}, vcc")
        e("    s_add_u32 s75, s75, 1")
    e("    v_and_b32 v50, 6, v10")
    e("    s_mov_b32 s64, 0xffffff")
    e("    s_cmp_lt_u32 s3, 12")
    e("    s_cbranch_scc1 A_EDGES")
    e("    s_cmp_eq_u32 s3, 12")
    e("    s_cbranch_scc1 A_EDGES12")
    e("    s_cmp_eq_u32 s3, 15")
    e("    s_cbranch_scc1 A_MASKS")
    e("    s_cmp_eq_u32 s3, 14")
    e("    s_cbranch_scc1 A_HDR")
    if I("xr", 0):
        srd(S_GAT, 4, 5, TABBYTES)
        e("    s_mul_i32 s76, s65, 195*128")
        e("    v_and_b32 v54, 63, v0")
        e("    v_lshlrev_b32 v54, 4, v54")
        for n in range(6):
            e(f"    buffer_load_dwordx4 v[{64+4*n}:{67+4*n}], v54, {R(S_GAT)}, s76 offen")
            e("    s_add_u32 s76, s76, 1024")
    if I("pg", 0):
        srd(S_GAT, 4, 5, TABBYTES)
        e("    s_add_u32 s76, s65, 1")
        e(f"    s_mul_i32 s76, s76, {16*50006}")
        e("    s_lshr_b32 s76, s76, 12")
        e("    v_and_b32 v2, 63, v0")
        e("    v_add_lshl_u32 v2, v2, s76, 7")
        n = I("pg", 0)
        o = 0
        while n > 0:
            m = min(n, 64)
            if m < 64:
                e(f"    s_mov_b32 exec_lo, {((1 << m) - 1) & 0xffffffff}")
                e(f"    s_mov_b32 exec_hi, {((1 << m) - 1) >> 32}")
            e(f"    s_movk_i32 s76, {o}")
            e(f"    buffer_load_dword v126, v2, {R(S_GAT)}, s76 offen")
            n -= m
            o += 8192
    e("    s_branch A_OUT")
    e("A_MASKS:")
    e("    v_bfe_u32 v2, v0, 4, 1")
    e("    v_bfe_u32 v3, v0, 5, 1")
    e("    v_add_u32 v3, v3, v2")
    e("    v_lshlrev_b32 v3, 6, v3")
    e("    v_lshl_add_u32 v3, v2, 1, v3")
    e("    v_and_b32 v2, 15, v0")
    e("    v_lshl_add_u32 v3, v2, 2, v3")
    e("    v_lshlrev_b32 v12, 2, v3")
    e("    v_xor_b32 v13, 512, v12")
    e("    v_lshlrev_b32 v7, 2, v10")
    e("A_MPOLL:")
    e(f"    ds_read_b32 v2, v6 offset:{K1_CNT+K1_DONE}")
    e("    s_waitcnt lgkmcnt(0)")
    e("    v_cmp_gt_u32 vcc, 13, v2")
    e("    s_cbranch_vccnz A_MPOLL")
    for n in range(4):
        e(f"    ds_read_b32 v{16+n}, v{12+(n&1)} offset:{K1_CNT + 4*(n>>1)}")
    for n in range(4):
        e(f"    s_waitcnt lgkmcnt({3-n})")
        e(f"    v_cmp_lt_u32 s[{52+2*n}:{53+2*n}], 12, v{16+n}")
    e("    s_nop 1")
    for n in range(8):
        e(f"    v_writelane_b32 v2, s{52+n}, {n}")
    e("    s_mov_b64 exec, 0xff")
    e("    v_bcnt_u32_b32 v3, v2, 0")
    e("    v_add_u32 v4, 1, v2")
    e("    v_bfe_i32 v3, v3, 0, 1")
    e("    v_bfi_b32 v4, v2, 0, v4")
    e("    v_and_or_b32 v2, v4, v3, v2")
    e(f"    ds_write_b32 v7, v2 offset:{K1_MSK}")
    e("    s_branch A_OUT")
    e("A_HDR:")
    e("    v_lshlrev_b32 v51, 3, v10")
    e("    v_bfe_u32 v52, v0, 4, 2")
    e("    v_and_b32 v3, 15, v0")
    e("    v_lshlrev_b32 v52, 15, v52")
    e("    v_lshl_or_b32 v52, v3, 3, v52")
    e("    v_lshlrev_b32 v53, 2, v2")
    e("    s_lshl_b32 s75, s2, 7")
    e(f"    s_add_u32 s75, s75, {WS_OVT}")
    e("    v_cmp_eq_u32 vcc, 7, v10")
    if I("hv", 0) == 1:
        e("    s_waitcnt vmcnt(9)")
    e("    s_setprio 3")
    stamp("a_pre2")
    e("    s_barrier")
    stamp("a_bar2")
    e(f"    ds_read_u16 v120, v50 offset:{K1_NON}")
    e(f"    ds_read_b64 v[24:25], v51 offset:{K1_OVT}")
    e(f"    ds_read_b32 v22, v6 offset:{K1_CNT+K1_OVC}")
    e(f"    ds_read_b32 v23, v53 offset:{K1_MSK}")
    e("    s_waitcnt lgkmcnt(0)")
    e("    v_or_b32 v22, 0xf000, v22")
    e("    v_cndmask_b32 v24, v24, v23, vcc")
    e("    v_cndmask_b32 v25, v25, v22, vcc")
    e("    v_lshl_or_b32 v25, v120, 16, v25")
    e(f"    buffer_store_dwordx2 v[24:25], v52, {R(S_WS)}, s75 offen {SC}")
    e("    s_branch A_O1")
    e("A_EDGES12:")
    e("    s_waitcnt vmcnt(5)")
    e("    s_branch A_EDGES2")
    e("A_EDGES:")
    e("    s_cmp_lg_u32 s3, 0")
    e("    s_waitcnt vmcnt(2)")
    e("    s_cbranch_scc1 A_EDGES2")
    e("    v_add_u32 v4, 0x01010101, v125")
    e("    v_add_u32 v5, 0x01010101, v125")
    e(f"    ds_write_b64 v6, v[4:5] offset:{K1_NON}")
    e("A_EDGES2:")
    e("    s_mov_b64 exec, s[72:73]")
    stamp("a_dst")
    for k in range(4):
        e(f"    v_mul_u32_u24 v{24+k}, {TM}, v{12+k}")
        e(f"    v_sub_u32 v2, v{12+k}, v8")
        e(f"    v_lshrrev_b32 v{28+k}, 20, v{24+k}")
        e(f"    v_cmp_ne_u32 s[{52+2*k}:{53+2*k}], {k}, v2")
        e(f"    v_lshlrev_b32 v{36+k}, 2, v{28+k}")
    for k in range(4):
        e(f"    s_mov_b64 exec, s[{52+2*k}:{53+2*k}]")
        e(f"    ds_add_rtn_u32 v{32+k}, v{36+k}, v1 offset:{K1_CNT}")
    e("    s_mov_b64 exec, 1")
    e(f"    ds_add_u32 v6, v1 offset:{K1_CNT+K1_DONE}")
    e("    s_mov_b64 exec, s[72:73]")
    for k in range(4):
        e(f"    v_lshrrev_b32 v{24+k}, 12, v{24+k}")
        e(f"    v_mul_u32_u24 v{28+k}, {K1_LS}, v{28+k}")
        e(f"    v_bfi_b32 v{24+k}, 15, v{12+k}, v{24+k}")
    e("    s_mov_b32 s70, 0xffff0000")
    FIT = ["s[6:7]", "s[8:9]", "s[10:11]", "s[62:63]"]
    for k in range(4):
        e(f"    s_mov_b64 exec, s[{52+2*k}:{53+2*k}]")
        e("    s_waitcnt lgkmcnt(4)")
        e(f"    v_cmp_le_u32 vcc, 12, v{32+k}")
        e(f"    v_cmp_gt_u32 {FIT[k]}, {SLOTCAP}, v{32+k}")
        e(f"    v_and_b32 v4, 3, v{32+k}")
        e(f"    v_lshrrev_b32 v2, 2, v{32+k}")
        e("    v_cndmask_b32 v3, 0, 61, vcc")
        e(f"    v_lshl_add_u32 v4, v4, 4, v{28+k}")
        e(f"    s_mov_b64 exec, {FIT[k]}")
        e("    v_add3_u32 v5, v4, v3, v2")
        e("    v_cndmask_b32 v3, 0, 52, vcc")
        e("    v_lshl_add_u32 v4, v2, 2, v4")
        e(f"    ds_write_b8 v5, v{24+k} offset:12")
        e(f"    v_add_u32 v{36+k}, v4, v3")
    for k in range(4):
        e(f"    s_andn2_b64 s[{52+2*k}:{53+2*k}], s[{52+2*k}:{53+2*k}], {FIT[k]}")
    e("    s_or_b64 s[60:61], s[52:53], s[54:55]")
    e("    s_or_b64 s[76:77], s[56:57], s[58:59]")
    e("    s_or_b64 s[60:61], s[60:61], s[76:77]")
    e("    s_mov_b64 exec, s[72:73]")
    e("    s_cmp_eq_u32 s3, 12")
    e("    s_waitcnt vmcnt(3)")
    e("    s_cbranch_scc1 A_ALL")
    e("    s_waitcnt vmcnt(0)")
    e("A_ALL:")
    stamp("a_all")
    for k in range(4):
        if k % 2 == 0:
            e(f"    v_lshl_or_b32 v{16+k}, v{20+k//2}, 16, v{16+k}")
        else:
            e(f"    v_and_or_b32 v{16+k}, v{20+k//2}, s70, v{16+k}")
    for k in range(4):
        e(f"    s_mov_b64 exec, {FIT[k]}")
        e(f"    ds_write_b32 v{36+k}, v{16+k}")
    e("    s_cmp_lg_u64 s[60:61], 0")
    e("    s_cbranch_scc1 A_OVER")
    e("A_OUT:")
    e("    s_setprio 2")
    e("    s_mov_b64 exec, -1")
    e("    s_waitcnt lgkmcnt(0)")
    stamp("a_pre2")
    e("    s_barrier")
    stamp("a_bar2")
    e(f"    ds_read_u16 v120, v50 offset:{K1_NON}")
    e("A_O1:")
    e(f"    ds_read_b32 v21, v49 offset:{K1_MSK}")
    e(f"    ds_read_u8 v127, v10 offset:{K1_NON}")
    e("    ds_read2_b32 v[12:13], v40 offset0:0 offset1:1")
    e("    ds_read2_b32 v[14:15], v40 offset0:2 offset1:3")
    e("    ds_read2_b32 v[16:17], v41 offset0:0 offset1:1")
    e("    ds_read2_b32 v[18:19], v41 offset0:2 offset1:3")
    e("    s_waitcnt lgkmcnt(5)")
    for st in range(2):
        e(f"    v_and_b32 v2, v21, v{42+st}")
        e(f"    v_and_b32 v3, v21, v{44+st}")
        e(f"    v_bcnt_u32_b32 v2, v2, v{46+st}")
        e(f"    v_cmp_eq_u32 s[{52+2*st}:{53+2*st}], v3, v{44+st}")
        e(f"    v_lshl_add_u32 v{42+st}, v2, 6, v48")
    e("    s_waitcnt lgkmcnt(4)")
    e("    v_lshlrev_b32 v20, 24, v127")
    e("    s_waitcnt lgkmcnt(2)")
    e("    v_and_or_b32 v15, v15, s64, v20")
    e("    s_mov_b64 exec, s[52:53]")
    e(f"    buffer_store_dwordx4 v[12:15], v42, {R(S_WS)}, s74 offen {SC}")
    e("    s_mov_b64 exec, s[54:55]")
    e("    s_waitcnt lgkmcnt(0)")
    e("    v_and_or_b32 v19, v19, s64, v20")
    e(f"    buffer_store_dwordx4 v[16:19], v43, {R(S_WS)}, s74 offen {SC}")
    e("    s_mov_b64 exec, -1")
    if I("xr", 0):
        e("    s_cmp_lg_u32 s3, 13")
        e("    s_cbranch_scc1 XR_D")
        e("    s_lshl_b32 s76, s2, 14")
        e(f"    s_add_u32 s76, s76, {WS_H1}")
        e("    s_waitcnt vmcnt(2)")
        for n in range(6):
            e(f"    buffer_store_dwordx4 v[{64+4*n}:{67+4*n}], v54, {R(S_WS)}, s76 offen sc1")
            e("    s_xor_b32 s76, s76, 0x2000")
            e(f"    buffer_store_dwordx4 v[{64+4*n}:{67+4*n}], v54, {R(S_WS)}, s76 offen sc1")
            e("    s_add_u32 s76, s76, 1024")
        e("XR_D:")
    e("    s_setprio 0")
    stamp("a_st")
    e(f"    ds_read_b32 v125, v6 offset:{K1_NON}")


def a_overflow():
    e("A_OVER:")
    srd(S_OVF, 18, 19, 256 * OVF_STRIDE, WS_OVF)
    e("    s_lshl_b32 s62, s2, 15")
    for k in range(4):
        e(f"    s_mov_b64 exec, s[{52+2*k}:{53+2*k}]")
        e(f"    s_cbranch_execz A_OV{k}")
        e(f"    ds_add_rtn_u32 v3, v6, v1 offset:{K1_CNT+K1_OVC}")
        e(f"    v_mov_b32 v4, v{16+k}")
        e(f"    v_mov_b32 v5, v{12+k}")
        e("    s_waitcnt lgkmcnt(0)")
        e(f"    v_cmp_gt_u32 vcc, {NINL}, v3")
        e("    v_lshlrev_b32 v3, 3, v3")
        e("    s_andn2_b64 s[76:77], exec, vcc")
        e("    s_mov_b64 exec, vcc")
        e(f"    ds_write_b64 v3, v[4:5] offset:{K1_OVT}")
        e("    s_mov_b64 exec, s[76:77]")
        e(f"    s_cbranch_execz A_OV{k}")
        e(f"    buffer_store_dwordx2 v[4:5], v3, {R(S_OVF)}, s62 offen {SC}")
        e("    s_waitcnt vmcnt(0)")
        e(f"A_OV{k}:")
    e("    s_branch A_OUT")


def setup1():
    e("    s_and_b32 s29, s2, 7")
    e("    s_and_b32 s27, s29, 3")
    e("    s_mul_i32 s27, s27, 12502")
    if I("roff", 0):
        e(f"    s_add_u32 s27, s27, {N - I('roff', 0)}")
        e(f"    s_cmp_ge_u32 s27, {N}")
        e(f"    s_cselect_b32 s76, {N}, 0")
        e("    s_sub_u32 s27, s27, s76")
    e("    s_sub_u32 s27, 0x10000, s27")
    e("    s_lshr_b32 s30, s29, 1")
    e("    s_lshl_b32 s30, s30, 15")
    e("    s_and_b32 s31, s29, 1")
    e("    s_lshl_b32 s31, s31, 6")
    e("    s_add_u32 s30, s30, s31")
    e(f"    s_add_u32 s30, s30, {WS_OVT}")
    e("    s_add_u32 s31, s30, 16384")
    e("    s_lshl_b32 s29, s29, 12")
    e("    s_lshr_b32 s26, s2, 3")
    e("    s_bfm_b32 s49, s26, 0")
    e("    s_mov_b32 s2, s65")
    e("    v_mov_b32 v99, 0xf0")
    e("    v_mov_b32 v124, 7")
    e(f"    s_mov_b32 s0, {CNTB}")
    e("    s_mov_b32 s1, 0x07060302")
    e("    s_mov_b32 s71, 0")
    e("    s_cmp_eq_u32 s3, 1")
    e(f"    s_cselect_b32 s28, {I('vr', 3)}, 0x7fff")
    if DIAG:
        e("    s_mov_b32 s48, 0")
        e("    s_mov_b64 s[50:51], 0")
    zero_b_counters((WL - CNTB) // 4)
    collect_addrs()
    srd(S_OVF, 18, 19, 256 * OVF_STRIDE, WS_OVF)
    srd(S_GAT, 4, 5, TABBYTES + 3072, -3072)
    srd(S_STO, 18, 19, H1BYTES, WS_H1)
    e("    s_mov_b64 s[20:21], s[14:15]")
    e(f"    s_mov_b32 s22, {TABBYTES}")
    e(f"    s_add_u32 s24, s18, {WS_H1 - 3072}")
    e("    s_addc_u32 s25, s19, 0")
    if I("gp", 0):
        e("    s_lshl_b32 s76, s2, 4")
        e("    s_add_u32 s76, s76, s3")
        e("    s_add_u32 s76, s76, 16")
        e("    s_mul_i32 s76, s76, 50006")
        e("    s_lshr_b32 s76, s76, 12")
        e("    v_and_b32 v8, 63, v0")
        e("    v_add_lshl_u32 v8, v8, s76, 7")


def setup2():
    e("    v_and_b32 v2, 63, v0")
    e("    v_bfe_u32 v3, v2, 4, 1")
    e("    v_cmp_eq_u32 s[16:17], 1, v3")
    e("    v_xor_b32 v22, v3, v10")
    e("    v_lshlrev_b32 v83, 4, v22")
    e("    v_add_u32 v80, 3072, v83")
    e("    v_add_u32 v82, 1024, v83")
    e("    v_xor_b32 v83, 64, v83")
    e("    v_add_u32 v81, 2048, v83")
    e("    v_and_b32 v92, 15, v0")
    e("    v_lshrrev_b32 v11, 4, v2")
    e("    v_bfe_u32 v20, v2, 2, 2")
    e("    v_and_b32 v21, 3, v2")
    e("    v_lshl_add_u32 v84, v11, 3, v20")
    e("    v_lshlrev_b32 v84, 7, v84")
    e("    v_lshrrev_b32 v20, 1, v20")
    e("    v_lshl_or_b32 v20, v3, 2, v20")
    e("    v_xor_b32 v20, v20, v21")
    e("    v_lshl_add_u32 v84, v20, 4, v84")
    e("    v_and_b32 v22, 1, v21")
    e("    s_lshl_b32 s76, s3, 12")
    e("    v_lshl_add_u32 v84, v22, 3, v84")
    e("    s_mov_b32 m0, s76")
    e(f"    v_add_u32 v122, {WL}, v84")
    e("    v_add_u32 v84, s76, v84")
    e(f"    s_mul_i32 s76, s3, {TSTR}")
    e("    v_xor_b32 v85, 8, v84")
    e("    v_xor_b32 v86, 64, v84")
    e("    v_xor_b32 v87, 72, v84")
    e(f"    s_add_u32 s76, s76, {LISTS}")
    e("    v_lshrrev_b32 v22, 3, v2")
    e("    v_lshl_add_u32 v88, v22, 2, s76")
    e("    v_lshl_add_u32 v123, v2, 2, s76")
    e(f"    s_add_u32 s76, s76, {CAPT*4}")
    e("    v_lshl_add_u32 v89, v11, 5, s76")
    e("    v_sub_u32 v95, 0, v21")
    e("    v_sub_u32 v96, 1, v21")
    e("    v_sub_u32 v97, 2, v21")
    e("    v_ashrrev_i32 v95, 31, v95")
    e("    v_ashrrev_i32 v96, 31, v96")
    e("    v_ashrrev_i32 v97, 31, v97")
    e("    v_lshrrev_b32 v22, 2, v2")
    e(f"    v_mul_u32_u24 v98, {TSTR}, v22")
    e(f"    v_add_u32 v98, {LISTS}, v98")
    e("    v_lshl_add_u32 v90, v2, 4, s0")
    e("    s_lshl_b32 s76, s2, 4")
    e("    s_add_u32 s76, s76, s3")
    e("    s_mul_i32 s77, s76, 50006")
    e("    s_lshr_b32 s77, s77, 12")
    e("    v_subrev_u32 v2, s77, v92")
    e("    v_and_b32 v2, 15, v2")
    e("    v_add_u32 v2, s77, v2")
    e(f"    v_mul_u32_u24 v3, {TM}, v2")
    e("    v_lshrrev_b32 v3, 16, v3")
    e("    v_cmp_eq_u32 s[14:15], s76, v3")
    e("    v_lshlrev_b32 v2, 7, v2")
    e("    v_lshl_add_u32 v121, v11, 4, v2")


def setup3():
    e("    s_mov_b64 s[12:13], 0")
    e("    s_cmp_lt_u32 s3, 12")
    e("    s_cbranch_scc1 S_DONE")
    e("    s_waitcnt vmcnt(2)")
    e("    v_cmp_eq_u32 vcc, v112, v115")
    e("    v_cmp_eq_u32 s[76:77], v113, v115")
    e("    v_lshlrev_b32 v3, 16, v114")
    e("    v_and_b32 v2, 255, v0")
    e("    v_or_b32 v113, v3, v113")
    e("    s_and_b64 s[12:13], s[66:67], vcc")
    e("    s_and_b64 vcc, s[12:13], s[76:77]")
    e("    s_andn2_b64 s[12:13], s[12:13], s[76:77]")
    e("    v_lshlrev_b32 v2, 2, v2")
    e("    v_cndmask_b32 v3, 0, v3, vcc")
    e(f"    v_add_u32 v2, {SELFN}, v2")
    e("    ds_write_b32 v2, v3")
    e("    s_cbranch_scc0 S_NT")
    decode_key(113, 0, 0, 6)
    decode_data(113, 0, 0, 6)
    e("S_NT:")
    e("    s_cmp_eq_u32 s3, 12")
    e("    s_cbranch_scc1 S_DONE")
    e(f"    v_subrev_u32 v2, {13*64}, v0")
    e("    v_bfe_u32 v3, v2, 4, 1")
    e("    v_bfe_u32 v20, v2, 6, 1")
    e("    v_lshl_or_b32 v3, v20, 2, v3")
    e("    v_cmp_gt_u32 vcc, 128, v2")
    e("    v_xor_b32 v2, v2, v3")
    e("    v_lshlrev_b32 v2, 4, v2")
    e(f"    v_add_u32 v2, {WL}, v2")
    e("    v_xor_b32 v3, 64, v2")
    e("    s_mov_b32 exec_lo, 0xaaaaaaaa")
    e("    s_mov_b32 exec_hi, exec_lo")
    for b in (100, 104, 108):
        e(f"    v_swap_b32 v{b}, v{b+2}")
        e(f"    v_swap_b32 v{b+1}, v{b+3}")
    e("    s_mov_b64 exec, -1")
    e("    ds_write_b128 v2, v[100:103]")
    e("    ds_write_b128 v3, v[104:107] offset:3072")
    e("    s_and_saveexec_b64 s[76:77], vcc")
    e("    ds_write_b128 v2, v[108:111] offset:6144")
    e("    s_mov_b64 exec, -1")
    e("S_DONE:")
    stamp("s_done")


def barrier_addrs():
    e("    s_lshr_b32 s76, s2, 2")
    e("    s_lshl_b32 s76, s76, 7")
    e("    s_and_b32 s77, s2, 3")
    e("    s_lshl_b32 s77, s77, 2")
    e("    s_add_u32 s76, s76, s77")
    e(f"    s_add_u32 s76, s76, {WS_FLAG}")
    e("    v_lshlrev_b32 v2, 13, v0")
    e("    s_getreg_b32 s77, hwreg(HW_REG_XCC_ID, 0, 2)")
    e("    s_lshl_b32 s77, s77, 14")
    e("    s_add_u32 s77, s77, s80")
    e(f"    s_add_u32 s77, s77, {WS_FLAG}")
    e("    v_lshlrev_b32 v8, 7, v0")


COMMON = [0, 1, 2, 3, 4, 5]
RARE = [6, 7]
ACT = ["s[62:63]", "s[10:11]"]
WREG = [40, 44, 48, 52, 56, 60, 28, 116]


def w_frags():
    e("    v_xor_b32 v5, 8, v122")
    e("    v_xor_b32 v6, 64, v122")
    e("    v_xor_b32 v7, 72, v122")
    for s_ in range(2):
        for t in range(4):
            for u in range(2):
                r = WREG[s_ * 4 + t] + 2 * u
                e(f"    ds_read_b64_tr_b16 v[{r}:{r+1}], v{4+t if t else 122} offset:{4096*s_ + 512*u}")


def load_headers():
    e(f"    buffer_load_dwordx2 v[116:117], v93, {R(S_WS)}, s30 offen {SC}")
    e(f"    buffer_load_dwordx2 v[118:119], v93, {R(S_WS)}, s31 offen {SC}")


def phase_b():
    e("COLLECT:")
    load_headers()
    GP = I("gp", 0)
    if GP:
        e(f"    s_mov_b64 exec, {(1 << GP) - 1}")
        e(f"    buffer_load_dword v91, v8, {R(S_GAT)}, 0 offen offset:3072")
        e("    s_mov_b64 exec, -1")
    e("    s_mov_b32 s68, s29")
    e(f"    s_add_u32 s69, s68, {128*32768}")
    e(f"    s_mov_b32 s75, {SPINMAX}")
    e("    v_cmp_gt_u32 s[8:9], 4, v10")
    if SP == 1:
        setup2()
    e("    s_waitcnt vmcnt(%d)" % (1 if GP else 0))
    e("C_CHK2:")
    e("    v_cmp_ne_u32_sdwa vcc, v117, v120 src0_sel:WORD_1 src1_sel:DWORD")
    e("    v_cmp_ne_u32_sdwa s[76:77], v119, v120 src0_sel:WORD_1 src1_sel:DWORD")
    e("    v_mov_b32_dpp v4, v116 quad_perm:[3,3,3,3] row_mask:0xf bank_mask:0xf")
    e("    v_mov_b32_dpp v5, v118 quad_perm:[3,3,3,3] row_mask:0xf bank_mask:0xf")
    e("    s_or_b64 vcc, vcc, s[76:77]")
    e("    s_cbranch_scc1 C_RETRY2")
    e("C_OK2:")
    stamp("b_gate")
    e("    v_mov_b32_dpp v4, v4 row_half_mirror row_mask:0xf bank_mask:0x5")
    e("    v_mov_b32_dpp v5, v5 row_half_mirror row_mask:0xf bank_mask:0x5")
    for i in range(2):
        e(f"    v_and_b32 v2, s49, v{4+i}")
        e(f"    v_bfe_u32 v3, v{4+i}, s26, 1")
        e("    v_bcnt_u32_b32 v2, v2, s26")
        e("    v_cmp_eq_u32 vcc, 1, v3")
        e(f"    v_lshl_add_u32 v{6+i}, v2, 6, v9")
        e("    s_or_b64 exec, vcc, s[8:9]")
        e(f"    buffer_load_dwordx4 v[{12+4*i}:{15+4*i}], v{6+i}, {R(S_WS)}, s{68+i} offen {SC}")
        e(f"    s_mov_b64 {ACT[i]}, exec")
        e("    s_mov_b64 exec, -1")
    stamp("b_iss")
    if I("pc", 1):
        e("    s_setprio 0")
    if SP >= 1:
        if SP == 2:
            setup2()
        e("    s_cmp_lg_u32 s71, 0")
        e("    s_cbranch_scc1 LATE_D")
        setup3()
        e("LATE_D:")
    e("    v_and_b32 v117, 0xffff, v117")
    e("    v_and_b32 v119, 0xffff, v119")
    e(f"    v_mul_u32_u24 v2, {TM}, v117")
    e(f"    v_mul_u32_u24 v3, {TM}, v119")
    e("    v_cmp_eq_u32 s[8:9], 7, v10")
    e(f"    s_mov_b32 s76, {0xf000 + NINL}")
    e("    v_cmp_lt_u32 s[72:73], s76, v117")
    e("    v_cmp_lt_u32 vcc, s76, v119")
    e("    v_lshrrev_b32 v2, 20, v2")
    e("    v_lshrrev_b32 v3, 20, v3")
    e("    v_cmp_eq_u32 s[4:5], s2, v2")
    e("    v_cmp_eq_u32 s[6:7], s2, v3")
    e("    s_and_b64 s[72:73], s[72:73], s[8:9]")
    e("    s_and_b64 vcc, vcc, s[8:9]")
    e("    s_lshr_b64 s[72:73], s[72:73], 1")
    e("    s_or_b64 s[72:73], s[72:73], vcc")
    e(f"    s_mov_b64 {PEND(7)}, 0")
    e("    s_movk_i32 s70, 0xffff")
    e(f"    s_mov_b64 {PEND(6)}, s[12:13]")
    e("    s_mov_b64 exec, s[12:13]")
    e("    s_cbranch_execz C_NT")
    e("    ds_add_rtn_u32 v38, v46, v1")
    e("C_NT:")
    for i in range(2):
        base = 12 + 4 * i
        e(f"    s_mov_b64 exec, {ACT[i]}")
        e(f"    s_waitcnt vmcnt({1-i})")
        e(f"C_CHK{i}:")
        e(f"    v_cmp_ne_u32_sdwa vcc, v{base+3}, v127 src0_sel:BYTE_3 src1_sel:DWORD")
        e(f"    s_cbranch_vccnz C_RETRY{i}")
        e(f"C_OK{i}:")
        stamp("b_lines" if i == 0 else "b_lines1")
        for k in range(3):
            e(f"    v_cmp_ne_u16 {PEND(3*i+k)}, s70, v{base+k}")
        if i == 1 and EARLY:
            own_x()
        for k in range(3):
            decode_key(base + k, base + 3, k, 3 * i + k)
        for k in range(3):
            s_ = 3 * i + k
            e(f"    s_mov_b64 exec, {PEND(s_)}")
            e(f"    ds_add_rtn_u32 v{32+s_}, v{40+s_}, v1")
    e("    s_mov_b64 exec, -1")
    if not I("ddl", 1):
        for i in range(2):
            base = 12 + 4 * i
            for k in range(3):
                decode_data(base + k, base + 3, k, 3 * i + k)
    else:
        e("    s_or_b32 s71, s71, 32")
    e("    s_mov_b64 s[68:69], 0")
    e("    s_or_b64 s[76:77], s[4:5], s[6:7]")
    e("    s_or_b64 s[76:77], s[76:77], s[72:73]")
    e("    s_cbranch_scc1 EXTRA")
    e("CDONE:")
    e("    s_lshl_b32 s75, s3, 2")
    e("    s_add_u32 s75, s75, 3")
    e("    s_waitcnt lgkmcnt(0)")
    stamp("b_pre1")
    e("    s_barrier")
    stamp2("b_bar1", "")
    e("    ds_read_b128 v[4:7], v90")
    if not EARLY:
        own_x()
    e("    s_cmp_lg_u32 s3, 15")
    e("    s_cbranch_scc1 PT_D")
    e("    s_lshl_b32 s76, s2, 8")
    e(f"    s_add_u32 s76, s76, {WS_FLAG}")
    e("    v_lshlrev_b32 v2, 7, v92")
    e("    s_mov_b64 exec, 3")
    e(f"    buffer_load_dword v91, v2, {R(S_WS)}, s76 offen sc1")
    e("    s_mov_b64 exec, -1")
    e("PT_D:")
    if I("ddl", 1):
        e("    s_bitcmp0_b32 s71, 5")
        e("    s_cbranch_scc1 DD_D")
        e("    s_andn2_b32 s71, s71, 32")
        for i in range(2):
            base = 12 + 4 * i
            for k in range(3):
                decode_data(base + k, base + 3, k, 3 * i + k)
        e("DD_D:")
    e("    s_waitcnt lgkmcnt(0)")
    e("    v_add_u32 v5, v4, v5")
    e("    v_add3_u32 v7, v5, v6, v7")
    e("    v_add_u32 v6, v5, v6")
    e("    s_nop 0")
    e("    v_and_b32_dpp v28, v7, v95 quad_perm:[0,0,0,0] row_mask:0xf bank_mask:0xf")
    e("    v_and_b32_dpp v29, v7, v96 quad_perm:[1,1,1,1] row_mask:0xf bank_mask:0xf")
    e("    v_and_b32_dpp v30, v7, v97 quad_perm:[2,2,2,2] row_mask:0xf bank_mask:0xf")
    e("    v_add3_u32 v28, v28, v29, v30")
    e("    v_add_u32 v7, v28, v7")
    e("    v_lshl_add_u32 v28, v28, 2, v98")
    e(f"    v_cmp_lt_u32 vcc, {CAPT}, v7")
    e("    v_lshl_add_u32 v29, v4, 2, v28")
    e("    v_lshl_add_u32 v30, v5, 2, v28")
    e("    v_lshl_add_u32 v31, v6, 2, v28")
    e("    v_readlane_b32 s74, v7, s75")
    e("    ds_write_b128 v90, v[28:31] offset:1024")
    e(f"    s_or_b64 s[76:77], {PEND(6)}, {PEND(7)}")
    e("    s_cbranch_scc0 P_NR")
    for s in RARE:
        e(f"    s_mov_b64 exec, {PEND(s)}")
        e(f"    ds_read_b32 v{20+s}, v{40+s} offset:1024")
    e("P_NR:")
    for s in COMMON:
        e(f"    s_mov_b64 exec, {PEND(s)}")
        e(f"    ds_read_b32 v{20+s}, v{40+s} offset:1024")
    e(f"    s_min_u32 s74, s74, {CAPT}")
    e("    s_cbranch_vccnz SLOWW")
    for s in COMMON:
        e(f"    s_mov_b64 exec, {PEND(s)}")
        e(f"    s_waitcnt lgkmcnt({len(COMMON)-1})")
        e(f"    v_lshl_add_u32 v{20+s}, v{32+s}, 2, v{20+s}")
        e(f"    ds_write2st64_b32 v{20+s}, v{48+s}, v{56+s} offset0:0 offset1:5")
    e("    s_cmp_eq_u64 s[76:77], 0")
    e("    s_cbranch_scc1 P_NW")
    for s in RARE:
        e(f"    s_mov_b64 exec, {PEND(s)}")
        e(f"    v_lshl_add_u32 v{20+s}, v{32+s}, 2, v{20+s}")
        e(f"    ds_write2st64_b32 v{20+s}, v{48+s}, v{56+s} offset0:0 offset1:5")
    e("P_NW:")
    for s in range(8):
        e(f"    s_mov_b64 {PEND(s)}, 0")
    e("WDONE:")
    e("    s_sub_u32 s76, 0, s74")
    e("    s_and_b32 s76, s76, 31")
    e("    s_bfm_b64 exec, s76, 0")
    e("    s_lshl_b32 s77, s74, 2")
    e("    v_add_u32 v2, s77, v123")
    e(f"    v_mov_b32 v3, {PADV}")
    e("    ds_write2st64_b32 v2, v3, v3 offset0:0 offset1:5")
    e("    s_mov_b64 exec, -1")
    e(f"    v_mov_b32 v4, {MORE}")
    e("    s_lshl_b32 s76, s3, 6")
    e(f"    s_add_u32 s76, s76, {SELFN}")
    e("    v_lshl_add_u32 v5, v92, 2, s76")
    e("    ds_read_b32 v126, v5")
    e("    s_waitcnt lgkmcnt(0)")
    e("    s_barrier")
    stamp2("b_bar2", "")
    e("    ds_read_b32 v8, v4")


def main_loop():
    def next_k():
        if I("kmin", 0):
            e("    s_lshl_b32 s11, s10, 2")
            e("    s_sub_i32 s8, s9, s11")
            e("    s_add_i32 s8, s8, 4")
            e(f"    s_max_i32 s8, s8, {I('kmin', 0)}")
            e("    s_min_i32 s8, s8, 4")
        elif I("krn", 0):
            e("    s_mov_b32 s8, 1")
            e("    s_lshl_b32 s76, s9, 2")
            e(f"    s_mul_i32 s11, s10, {4 + I('krn', 0)}")
            e("    s_lshl_b32 s77, s10, 2")
            e("    s_cmp_ge_i32 s76, s11")
            e("    s_addc_u32 s8, s8, 0")
            e("    s_add_i32 s11, s11, s77")
            e("    s_cmp_ge_i32 s76, s11")
            e("    s_addc_u32 s8, s8, 0")
            e("    s_add_i32 s11, s11, s77")
            e("    s_cmp_ge_i32 s76, s11")
            e("    s_addc_u32 s8, s8, 0")
        elif I("kfl", 1):
            e("    s_mov_b32 s8, 1")
            e("    s_lshl_b32 s11, s10, 1")
            e("    s_cmp_ge_i32 s9, s11")
            e("    s_addc_u32 s8, s8, 0")
            e("    s_add_i32 s11, s11, s10")
            e("    s_cmp_ge_i32 s9, s11")
            e("    s_addc_u32 s8, s8, 0")
            e("    s_add_i32 s11, s11, s10")
            e("    s_cmp_ge_i32 s9, s11")
            e("    s_addc_u32 s8, s8, 0")
        else:
            e("    s_mov_b32 s8, 1")
            e("    s_cmp_gt_i32 s9, s10")
            e("    s_addc_u32 s8, s8, 0")
            e("    s_lshl_b32 s11, s10, 1")
            e("    s_cmp_gt_i32 s9, s11")
            e("    s_addc_u32 s8, s8, 0")
            e("    s_add_i32 s11, s11, s10")
            e("    s_cmp_gt_i32 s9, s11")
            e("    s_addc_u32 s8, s8, 0")
        e("    s_min_i32 s8, s8, s9")
        e("    s_sub_i32 s9, s9, s8")
        e("    s_sub_i32 s10, s10, 1")
        e("    s_lshl_b32 s11, s8, 5")

    def read_recs(a, b, adv):
        e(f"    ds_read2_b32 v[100:101], v{a} offset0:0 offset1:8")
        e(f"    ds_read2_b32 v[102:103], v{a} offset0:16 offset1:24")
        e(f"    ds_read_b128 v[104:107], v{b}")
        e(f"    ds_read_b128 v[108:111], v{b} offset:16")
        e(f"    v_add_u32 v93, {adv}, v{a}")
        e(f"    v_add_u32 v94, {adv}, v{b}")

    def dma(i):
        e(f"    buffer_load_dwordx4 v{100+i}, {R(S_GAT)}, 0 offen offset:{1024*i} {OPT.get('gfl', '')} lds")

    def addr():
        for i in range(4):
            e(f"    v_add_u32 v{100+i}, v{100+i}, v{80+i}")

    REP = I("rep", 1)

    def remap(a, t, u):
        e(f"    v_lshrrev_b32 v{t}, 7, v{a}")
        e(f"    v_mul_u32_u24 v{t}, {TM}, v{t}")
        e(f"    v_bfe_u32 v{u}, v{a}, {I('rsh', 13)}, {I('rbits', 2)}")
        e(f"    v_bfe_u32 v{t}, v{t}, 20, 1")
        e(f"    v_cmp_le_u32 vcc, {REP}, v{u}")
        e(f"    v_xor_b32 v{t}, s81, v{t}")
        e(f"    v_and_b32 v{u}, 0xffffe000, v{a}")
        e(f"    v_cndmask_b32 v{t}, 0, v{t}, vcc")
        e(f"    v_add_u32 v{a}, v{a}, v{u}")
        e(f"    v_bfe_u32 v{u}, v{a}, 21, 1")
        e(f"    v_xor_b32 v{t}, v{t}, v{u}")
        e(f"    v_lshlrev_b32 v{t}, 13, v{t}")
        e(f"    v_xor_b32 v{t}, s80, v{t}")
        e(f"    v_xor_b32 v{a}, v{a}, v{t}")

    def rewrite_list(lbl):
        for n in range(5):
            e(f"    ds_read_b32 v{32+n}, v123 offset:{256*n}")
        for n in range(5):
            e(f"    s_waitcnt lgkmcnt(4)")
            remap(32 + n, 2, 3)
            e(f"    ds_write_b32 v123, v{32+n} offset:{256*n}")

    def build_b(w):
        for j in range(8):
            e(f"    v_bfe_i32 v{32+j}, v{104+j}, v92, {w}")
        for j in range(8):
            e(f"    v_and_b32 v{32+j}, v{32+j}, v{104+j}")
        for j in range(4):
            e(f"    v_perm_b32 v{112+j}, v{32+2*j+1}, v{32+2*j}, s1")

    def mfmas():
        for t in range(4):
            e(f"    v_mfma_f32_16x16x32_bf16 v[{64+4*t}:{67+4*t}], v[{12+4*t}:{15+4*t}], v[112:115], v[{64+4*t}:{67+4*t}]")

    global REWRITE
    REWRITE = rewrite_list
    e("MAIN:")
    e("    s_cmp_eq_u32 s74, 0")
    e("    s_cbranch_scc1 EMPTY")
    e("    s_bitcmp1_b32 s71, 0")
    e("    s_cbranch_scc1 REMAP2")
    e("MAIN1:")
    read_recs(88, 89, 128)
    e("    s_waitcnt lgkmcnt(2)")
    addr()
    e("MAIN2:")
    PM = I("pm", 3)
    if PM == 1:
        prio_by_age("PRIOD")
    if PM == 2:
        e("    s_cmp_lt_u32 s3, 8")
        e("    s_cbranch_scc1 PRIOE")
        e("    s_setprio 1")
        e("PRIOE:")
    for i in range(4):
        dma(i)
    stamp2("m_dma", "m_dma2")
    if PM in (0, 2):
        prio_by_age("PRIOD")
    e("    s_add_u32 s9, s74, 7")
    e("    s_lshr_b32 s9, s9, 3")
    e("    s_sub_i32 s9, s9, 4")
    e("    s_max_i32 s9, s9, 0")
    if OPT.get("nbs"):
        a_, b_ = [int(v) for v in OPT["nbs"].split(",")]
        e(f"    s_bitcmp1_b32 {OPT.get('nbr', 's26')}, {I('nbb', 0)}")
        e(f"    s_cselect_b32 s10, {b_-1}, {a_-1}")
    elif I("nb2", NB) != NB:
        e("    s_bitcmp1_b32 s71, 0")
        e(f"    s_cselect_b32 s10, {I('nb2', NB)-1}, {NB-1}")
    else:
        e(f"    s_mov_b32 s10, {NB-1}")
    next_k()
    e("    s_waitcnt lgkmcnt(0)")
    build_b("1")
    read_recs(93, 94, "s11")
    e("    s_bitcmp1_b32 s71, 3")
    e("    s_cbranch_scc1 LOOP")
    e("    s_or_b32 s71, s71, 8")
    if I("wearly", 0):
        e("    v_readfirstlane_b32 s75, v8")
        e("    s_cmp_lg_u32 s75, 0")
        e("    s_cbranch_scc1 NOWF")
        e("    s_or_b32 s71, s71, 16")
        w_frags()
        e("NOWF:")
    own_addr("PRB_M")
    e("    s_waitcnt vmcnt(4)")
    e("PRB_M2:")
    stamp("m_pre")
    self_init(64)
    e("LOOP:")
    e("    s_waitcnt lgkmcnt(2)")
    addr()
    e("    v_cmp_gt_u32 vcc, s8, v11")
    if PM == 4:
        prio_by_age("PRIOD")
    e("    s_waitcnt vmcnt(0)")
    for t in range(4):
        for u in range(2):
            e(f"    ds_read_b64_tr_b16 v[{12+4*t+2*u}:{13+4*t+2*u}], v{84+t} offset:{512*u}")
    e("    s_cmp_eq_u32 s8, 0")
    e("    v_cndmask_b32 v91, 0, v1, vcc")
    e("    s_waitcnt lgkmcnt(0)")
    e("    s_cbranch_scc1 LAST")
    dma(0)
    e("    s_cmp_eq_u32 s8, 1")
    e("    s_cbranch_scc1 DMAD")
    dma(1)
    e("    s_cmp_eq_u32 s8, 2")
    e("    s_cbranch_scc1 DMAD")
    dma(2)
    e("    s_cmp_eq_u32 s8, 3")
    e("    s_cbranch_scc1 DMAD")
    dma(3)
    e("DMAD:")
    e("    s_cmp_eq_u32 s10, s28")
    e("    s_cbranch_scc1 VOTES")
    e("VOTED:")
    if PM == 4:
        e("    s_setprio 0")
    mfmas()
    next_k()
    if not I("nob", 0):
        build_b("v91")
    for _ in range(I("padv", 0)):
        e("    v_mov_b32 v2, v3")
    for _ in range(I("pads", 0)):
        e("    s_mov_b32 s76, s77")
    read_recs(93, 94, "s11")
    e("    s_branch LOOP")
    e("LAST:")
    mfmas()
    e("MAINDONE:")
    e(f"    v_mov_b32 v7, {CFLAG}")
    e("    ds_read_b32 v7, v7")
    e("    v_readfirstlane_b32 s75, v8")
    e("    s_cmp_lg_u32 s75, 0")
    e("    s_cbranch_scc1 AGAIN")

    stamp2("h1_done", "h2_done")
    e("    s_nop 2")
    for t in range(4):
        e(f"    v_cvt_pk_bf16_f32 v{12+2*t}, v{64+4*t}, v{65+4*t}")
        e(f"    v_cvt_pk_bf16_f32 v{13+2*t}, v{66+4*t}, v{67+4*t}")
    e("    s_mov_b64 exec, s[16:17]")
    e("    v_swap_b32 v12, v14")
    e("    v_swap_b32 v13, v15")
    e("    v_swap_b32 v16, v18")
    e("    v_swap_b32 v17, v19")
    e("    s_bitcmp1_b32 s71, 0")
    e("    s_cbranch_scc1 FINAL")
    e("    s_mov_b64 exec, -1")
    e("    s_waitcnt lgkmcnt(0)")
    e("    v_readfirstlane_b32 s80, v7")
    e("    s_and_b32 s81, s2, 1")
    e("    s_cmp_eq_u32 s80, 0")
    e("    s_cbranch_scc1 E_NOC")
    e("E_HAVEC:")
    e("    s_xor_b32 s80, s80, s81")
    e("    s_and_b32 s80, s80, 1")
    e("    s_lshl_b32 s80, s80, 13")
    e("    v_xor_b32 v9, s80, v9")
    if I("sb", 0) & 1:
        e("    s_barrier")
    e("    s_mov_b64 exec, s[14:15]")
    e(f"    buffer_store_dwordx4 v[12:15], v9, {R(S_STO)}, 0 offen {SC}")
    e(f"    buffer_store_dwordx4 v[16:19], v9, {R(S_STO)}, 0 offen offset:64 {SC}")
    e("    v_xor_b32 v20, 0x2000, v9")
    if I("sb", 0) & 4:
        e("    s_barrier")
    e("    s_and_b64 exec, exec, s[78:79]")
    e("    s_cbranch_execz E_NOREP")
    e(f"    buffer_store_dwordx4 v[12:15], v20, {R(S_STO)}, 0 offen {SC}")
    e(f"    buffer_store_dwordx4 v[16:19], v20, {R(S_STO)}, 0 offen offset:64 {SC}")
    e("E_NOREP:")
    e("    s_setprio 0")
    e("    s_mov_b64 exec, -1")
    stamp("h1_st")
    BS = I("bsplit", 0)

    def book1():
        e(f"    s_mov_b64 s[{S_GAT}:{S_GAT+1}], s[{S_GH}:{S_GH+1}]")
        e(f"    s_mov_b32 s{S_GAT+2}, {H1BYTES + 3072}")
        e("    s_or_b32 s71, s71, 1")
        if BS >= 1:
            rewrite_list("RW1")
        if BS >= 2:
            self_init(12)

    def book2():
        if BS < 2:
            self_init(12)
        e("    s_bitcmp1_b32 s71, 1")
        e("    s_cbranch_scc1 E_IRR")
        e("    s_or_b32 s71, s71, 16")
        w_frags()
        if BS < 1:
            rewrite_list("RW1")
        read_recs(88, 89, 128)
        e("    s_waitcnt lgkmcnt(2)")
        addr()
        e("E_BAR:")
        stamp("g2_bk")

    def book():
        if BS < 3:
            book2()
    book1()
    if BS >= 3:
        book2()
    barrier_addrs()
    e("    s_waitcnt vmcnt(0)")
    stamp("g2_ack")
    e("    s_barrier")
    e("    s_cmp_lg_u32 s3, 0")
    e("    s_cbranch_scc1 G2_NOF")
    stamp("g2_arr")
    e("    s_mov_b64 exec, 0xff")
    e(f"    buffer_store_dword v125, v2, {R(S_WS)}, s76 offen sc1")
    e("G2_NOF:")
    stamp("g2_b1")
    def own_h1():
        e("    s_mov_b32 exec_hi, 0")
        e("    s_and_b32 exec_lo, s14, 0xffff")
        e(f"    buffer_load_dword v91, v9, {R(S_STO)}, 0 offen sc1")
        e("    s_mov_b64 exec, -1")
    OL = I("ownlate", 9)
    if OL == 0:
        own_h1()
    e("    s_mov_b64 exec, -1")
    e("    s_cmp_lg_u32 s3, 0")
    e("    s_cbranch_scc1 G2_NP")
    e("    s_setprio 3")
    e("G2_NP:")
    book()
    if OL == 1:
        own_h1()
    if OL == 2:
        e("    v_mov_b32 v2, 0")
        e("    s_lshr_b32 s76, s2, 2")
        e("    s_lshl_b32 s76, s76, 7")
        e("    s_add_u32 s76, s76, s77")
        e("    s_and_b32 s75, s2, 3")
        e("    s_lshl_b32 s75, s75, 2")
        e("    s_add_u32 s76, s76, s75")
        e(f"    s_mov_b32 s75, {SPINMAX}")
        e("G2_P0:")
        e(f"    buffer_load_dword v4, v2, {R(S_WS)}, s76 offen sc1")
        e("    s_sub_u32 s75, s75, 1")
        e("    s_cmp_eq_u32 s75, 0")
        e("    s_waitcnt vmcnt(0)")
        e("    s_cbranch_scc1 G2_P1")
        e("    v_cmp_ne_u32 vcc, v4, v125")
        e("    s_cbranch_vccnz G2_P0")
        e("G2_P1:")
        own_h1()
    if I("xp", 0):
        e("    s_sub_u32 s75, s3, 2")
        e(f"    s_cmp_ge_u32 s75, {I('xp', 0)}")
        e("    s_cbranch_scc1 G2_NX")
        e("    s_xor_b32 s76, s2, 1")
        e(f"    s_mul_i32 s70, s76, {16*50006}")
        e("    s_lshr_b32 s70, s70, 12")
        e("    s_add_u32 s70, s70, 2")
        e("    s_lshl_b32 s75, s75, 6")
        e("    s_add_u32 s70, s70, s75")
        e("    v_and_b32 v4, 63, v0")
        e("    v_add_lshl_u32 v4, v4, s70, 7")
        remap(4, 2, 3)
        e("    s_lshr_b32 s70, s76, 2")
        e("    s_lshl_b32 s70, s70, 7")
        e("    s_and_b32 s76, s76, 3")
        e("    s_lshl2_add_u32 s70, s76, s70")
        e("    s_add_u32 s70, s70, s77")
        e("    v_mov_b32 v2, 0")
        e(f"    s_mov_b32 s75, {SPINMAX}")
        e("G2_XP:")
        e(f"    buffer_load_dword v5, v2, {R(S_WS)}, s70 offen sc1")
        e("    s_sub_u32 s75, s75, 1")
        e("    s_cmp_eq_u32 s75, 0")
        e("    s_waitcnt vmcnt(0)")
        e("    s_cbranch_scc1 G2_WAIT")
        e("    v_cmp_ne_u32 vcc, v5, v125")
        e("    s_cbranch_vccnz G2_XP")
        e(f"    buffer_load_dword v91, v4, {R(S_STO)}, 0 offen sc1")
        e("G2_NX:")
    e("    s_cmp_lg_u32 s3, 0")
    e("    s_cbranch_scc1 G2_WAIT")
    e(f"    s_mov_b32 s75, {SPINMAX}")
    e("G2_POLL:")
    e(f"    buffer_load_dwordx4 v[4:7], v8, {R(S_WS)}, s77 offen sc1")
    e("    s_sub_u32 s75, s75, 1")
    e("    s_cmp_eq_u32 s75, 0")
    e("    s_waitcnt vmcnt(0)")
    e("    s_cbranch_scc1 G2_WAIT")
    e("    v_xor_b32 v4, v4, v125")
    e("    v_xor_b32 v5, v5, v125")
    e("    v_xor_b32 v6, v6, v125")
    e("    v_xor_b32 v7, v7, v125")
    e("    v_or3_b32 v4, v4, v5, v6")
    e("    v_or_b32 v4, v4, v7")
    e("    v_cmp_ne_u32 vcc, 0, v4")
    if I("shrink", 1):
        e("    s_and_b64 exec, exec, vcc")
        e("    s_cbranch_scc1 G2_POLL")
    else:
        e("    s_cbranch_vccnz G2_POLL")
    e("G2_WAIT:")
    e("    s_mov_b64 exec, -1")
    if I("pp", 1):
        e("    s_setprio 0")
    e("    v_mov_b32 v8, 0")
    e("    s_and_b32 s76, s71, 2")
    e("    s_cselect_b32 s76, 0, s74")
    e("    s_cmp_lg_u32 s76, 0")
    e("    s_barrier")
    stamp("g2_exit")
    e("    s_cbranch_scc1 MAIN2")
    e("    s_bitcmp0_b32 s71, 1")
    e("    s_cbranch_scc1 MAIN")
    e("    s_branch COLLECT")
    e("FINAL:")
    MIX = I("mix", 0)
    if MIX:
        e("    s_mov_b64 exec, 1")
        e(f"    v_mov_b32 v2, {MORE+4}")
        e("    ds_add_rtn_u32 v2, v2, v1")
    e("    s_mov_b64 exec, -1")
    e("    s_bitcmp0_b32 s71, 4")
    e("    s_cbranch_scc1 F_GETW")
    e("F_HAVEW:")
    for t in range(4):
        w = WREG[t]
        e(f"    v_mfma_f32_16x16x32_bf16 v[{64+4*t}:{67+4*t}], v[{w}:{w+3}], v[12:15], 0")
    for t in range(4):
        w = WREG[4 + t]
        e(f"    v_mfma_f32_16x16x32_bf16 v[{64+4*t}:{67+4*t}], v[{w}:{w+3}], v[16:19], v[{64+4*t}:{67+4*t}]")
    e("    s_nop 4")
    for t in range(4):
        if t:
            e("    s_nop 1")
        e(f"    v_cvt_pk_bf16_f32 v{12+2*t}, v{64+4*t}, v{65+4*t}")
        e(f"    v_cvt_pk_bf16_f32 v{13+2*t}, v{66+4*t}, v{67+4*t}")
    if MIX:
        e("    s_waitcnt lgkmcnt(0)")
        e("    v_readfirstlane_b32 s76, v2")
        e("    s_mov_b64 exec, s[14:15]")
        e(f"    s_cmp_lt_u32 s76, {MIX}")
        e("    s_cbranch_scc1 F_WT")
        e(f"    buffer_store_dwordx4 v[12:15], v121, {R(S_OUT)}, 0 offen {OPT.get('mixf', '')}")
        e(f"    buffer_store_dwordx4 v[16:19], v121, {R(S_OUT)}, 0 offen offset:64 {OPT.get('mixf', '')}")
        e("    s_branch F_ST")
        e("F_WT:")
    if I("sb", 0) & 2:
        e("    s_barrier")
    e("    s_mov_b64 exec, s[14:15]")
    e(f"    buffer_store_dwordx4 v[12:15], v121, {R(S_OUT)}, 0 offen {ST_OUT}")
    e(f"    buffer_store_dwordx4 v[16:19], v121, {R(S_OUT)}, 0 offen offset:64 {ST_OUT}")
    e("F_ST:")
    stamp_out()
    e("END:")
    e("    s_endpgm")


def out_of_line():
    for i in range(2):
        base = 12 + 4 * i
        e(f"C_RETRY{i}:")
        e("    s_lshr_b64 s[76:77], vcc, 1")
        e("    s_or_b64 vcc, vcc, s[76:77]")
        e("    s_lshr_b64 s[76:77], vcc, 2")
        e("    s_or_b64 vcc, vcc, s[76:77]")
        e("    s_and_b32 vcc_lo, vcc_lo, 0x11111111")
        e("    s_and_b32 vcc_hi, vcc_hi, 0x11111111")
        e("    s_mul_i32 exec_lo, vcc_lo, 15")
        e("    s_mul_i32 exec_hi, vcc_hi, 15")
        if I("rbo", 0):
            e(f"    s_sleep {I('rbo', 0)}")
        e(f"    buffer_load_dwordx4 v[{base}:{base+3}], v{6+i}, {R(S_WS)}, s{68+i} offen {SC}")
        e(f"    s_mov_b64 exec, {ACT[i]}")
        e("    s_sub_u32 s75, s75, 1")
        e("    s_cmp_eq_u32 s75, 0")
        e("    s_waitcnt vmcnt(0)")
        e(f"    s_cbranch_scc0 C_CHK{i}")
        e("    s_mov_b32 s75, 1000")
        if DIAG:
            e(f"    s_or_b32 s48, s48, {1 << i}")
            e("    s_mov_b64 s[50:51], vcc")
        e(f"    s_branch C_OK{i}")
    e("C_RETRY2:")
    if I("bo", 0):
        e(f"    s_sleep {I('bo', 0)}")
    load_headers()
    e("    s_sub_u32 s75, s75, 1")
    e("    s_cmp_eq_u32 s75, 0")
    e("    s_waitcnt vmcnt(0)")
    e("    s_cbranch_scc0 C_CHK2")
    e("    s_mov_b32 s75, 1000")
    if DIAG:
        e("    s_or_b32 s48, s48, 4")
        e("    s_mov_b64 s[50:51], vcc")
    e("    s_branch C_OK2")
    probe()
    e("VOTES:")
    e("    s_sub_u32 s28, s28, 1")
    e("    s_bitcmp1_b32 s71, 7")
    e("    s_cbranch_scc0 VOTEL")
    e("    v_cmp_ne_u32 vcc, v4, v125")
    e("    s_cbranch_vccnz VOTEL")
    vote_count()
    e("    s_branch VOTED")
    e("VOTEL:")
    e("    s_or_b32 s71, s71, 128")
    vote_load()
    e("    s_branch VOTED")
    e("E_NOC:")
    e(f"    s_mov_b32 s75, {SPINMAX}")
    e("    s_cmp_lg_u32 s3, 1")
    e("    s_cbranch_scc1 E_SPIN")
    e("E_VP:")
    vote_load()
    e("    s_sub_u32 s75, s75, 1")
    e("    s_cmp_eq_u32 s75, 0")
    e("    s_waitcnt vmcnt(0)")
    e("    s_cbranch_scc1 E_VC")
    e("    v_cmp_ne_u32 vcc, v4, v125")
    e("    s_cbranch_vccnz E_VP")
    e("E_VC:")
    vote_count()
    e("E_SPIN:")
    e(f"    v_mov_b32 v7, {CFLAG}")
    e("    ds_read_b32 v7, v7")
    e("    s_waitcnt lgkmcnt(0)")
    e("    v_readfirstlane_b32 s80, v7")
    e("    s_cmp_eq_u32 s80, 0")
    e("    s_cbranch_scc1 E_SPIN")
    e("    s_branch E_HAVEC")
    a_overflow()
    e("AGAIN:")
    e("    s_setprio 0")
    e("    s_or_b32 s71, s71, 2")
    e("    s_barrier")
    zero_b_counters((CFLAG - CNTB) // 4)
    e("    s_waitcnt lgkmcnt(0)")
    e("    s_barrier")
    for s in range(7):
        e(f"    s_mov_b64 exec, {PEND(s)}")
        e(f"    ds_add_rtn_u32 v{32+s}, v{40+s}, v1")
    e("EXTRA:")
    for m, r in (("s[4:5]", 116), ("s[6:7]", 118)):
        e(f"    s_andn2_b64 exec, {m}, {PEND(7)}")
        e(f"    s_andn2_b64 {m}, {m}, exec")
        e(f"    s_or_b64 {PEND(7)}, {PEND(7)}, exec")
        decode_full(r, r + 1, 7)
    e("    s_mov_b64 exec, -1")
    e("    s_or_b64 s[76:77], s[4:5], s[6:7]")
    e("    s_cbranch_scc1 OVFULL")
    e("    s_mov_b32 s75, 0")
    e("OVL:")
    e("    s_cmp_lt_u32 s68, s69")
    e("    s_cbranch_scc1 OVLOAD")
    e("    s_cmp_eq_u64 s[72:73], 0")
    e("    s_cbranch_scc1 OVDONE")
    e("    s_ff1_i32_b64 s76, s[72:73]")
    e("    s_bitset0_b64 s[72:73], s76")
    e("    s_or_b32 s77, s76, 7")
    e("    v_readlane_b32 s68, v117, s77")
    e("    v_readlane_b32 s69, v119, s77")
    e("    s_bitcmp1_b32 s76, 0")
    e("    s_cselect_b32 s69, s69, s68")
    e("    s_and_b32 s69, s69, 0xfff")
    e(f"    s_min_u32 s69, s69, {CHMAX}")
    e("    s_and_b32 s77, s76, 1")
    e("    s_lshl_b32 s77, s77, 7")
    e("    s_lshr_b32 s76, s76, 3")
    e("    s_add_u32 s76, s76, s77")
    e("    s_lshl_b32 s77, s3, 3")
    e("    s_add_u32 s76, s76, s77")
    e("    s_lshl_b32 s70, s76, 15")
    e(f"    s_mov_b32 s68, {NINL}")
    e("OVLOAD:")
    e("    v_add_u32 v4, s75, v0")
    e("    v_and_b32 v4, 63, v4")
    e("    v_add_u32 v4, s68, v4")
    e("    v_lshlrev_b32 v5, 3, v4")
    e(f"    buffer_load_dwordx2 v[28:29], v5, {R(S_OVF)}, s70 offen {SC}")
    e("    s_waitcnt vmcnt(0)")
    e(f"    v_mul_u32_u24 v30, {TM}, v29")
    e("    v_lshrrev_b32 v31, 20, v30")
    e("    v_cmp_gt_u32 vcc, s69, v4")
    e("    v_cmp_eq_u32 s[76:77], s2, v31")
    e("    s_and_b64 vcc, s[76:77], vcc")
    e(f"    s_and_b64 s[76:77], vcc, {PEND(7)}")
    e("    s_cbranch_scc1 OVFULL")
    e(f"    s_or_b64 {PEND(7)}, {PEND(7)}, vcc")
    e("    s_add_u32 s68, s68, 64")
    e("    s_add_u32 s75, s75, 16")
    e("    s_mov_b64 exec, vcc")
    decode_full(28, 29, 7)
    e("    s_mov_b64 exec, -1")
    e("    s_branch OVL")
    e("OVFULL:")
    e(f"    v_mov_b32 v2, {MORE}")
    e("    ds_write_b32 v2, v1")
    e("OVDONE:")
    e(f"    s_mov_b64 exec, {PEND(7)}")
    e("    ds_add_rtn_u32 v39, v47, v1")
    e("    s_mov_b64 exec, -1")
    e("    s_branch CDONE")
    e("SLOWW:")
    e("    s_waitcnt lgkmcnt(0)")
    for s in range(8):
        e(f"    s_mov_b64 exec, {PEND(s)}")
        e(f"    v_lshl_add_u32 v{20+s}, v{32+s}, 2, v{20+s}")
        e(f"    v_subrev_u32 v3, s0, v{40+s}")
        e("    v_lshrrev_b32 v3, 6, v3")
        e(f"    v_mul_u32_u24 v3, {TSTR}, v3")
        e(f"    v_add_u32 v3, {LISTS + CAPT*4}, v3")
        e(f"    v_cmp_lt_u32 vcc, v{20+s}, v3")
        e(f"    s_andn2_b64 {PEND(s)}, exec, vcc")
        e("    s_mov_b64 exec, vcc")
        e(f"    ds_write2st64_b32 v{20+s}, v{48+s}, v{56+s} offset0:0 offset1:5")
    e("    s_mov_b64 exec, -1")
    e(f"    v_mov_b32 v3, {MORE}")
    e("    ds_write_b32 v3, v1")
    e("    s_branch WDONE")
    e("REMAP2:")
    REWRITE("RW2")
    e("    s_branch MAIN1")
    e("E_IRR:")
    e("    s_mov_b32 s70, s77")
    zero_b_counters(256)
    e("    s_mov_b32 s77, s70")
    collect_addrs()
    for i in range(4):
        e(f"    v_mov_b32 v{100+i}, {PADV}")
    e("    s_waitcnt lgkmcnt(0)")
    e("    s_branch E_BAR")
    e("EMPTY:")
    e("    s_waitcnt vmcnt(0) lgkmcnt(0)")
    e("    s_bitcmp1_b32 s71, 3")
    e("    s_cbranch_scc1 MAINDONE")
    e("    s_or_b32 s71, s71, 8")
    own_addr("PRB_E")
    self_init(64)
    e("    s_branch MAINDONE")
    e("F_GETW:")
    e("    s_waitcnt lgkmcnt(0)")
    w_frags()
    e("    s_waitcnt lgkmcnt(0)")
    e("    s_branch F_HAVEW")
    e("CODE_END:")


def body():
    e(f".globl {NAME}")
    e(".p2align 8")
    e(f".type {NAME},@function")
    e(f"{NAME}:")
    phase_a()
    setup1()
    if SP == 0:
        setup2()
        setup3()
    if I("pc", 1):
        e("    s_setprio 3")
    AK = I("ackb", 1)
    if AK == 1:
        e("    s_waitcnt vmcnt(0) lgkmcnt(0)")
    elif AK == 2:
        e("    s_waitcnt vmcnt(1) lgkmcnt(0)")
    elif AK >= 4:
        e(f"    s_cmp_ge_u32 s3, {AK}")
        e("    s_waitcnt lgkmcnt(0)")
        e("    s_cbranch_scc1 G1_NA")
        e("    s_waitcnt vmcnt(0)")
        e("G1_NA:")
    else:
        e("    s_waitcnt lgkmcnt(0)")
    stamp("g1_ack")
    e("    s_barrier")
    stamp("g1_exit")
    phase_b()
    main_loop()
    out_of_line()


def spin_kernel():
    na, nb_, mode, mult, wlo, whi = (SPIN.split(",") + ["0", "15"])[:6]
    wlo, whi = int(wlo), int(whi)
    ia, ib, mode, mult = STL.index(na), STL.index(nb_), int(mode), int(mult)
    init = "0x80000000" if mode == 0 else "0x7fffffff" if mode == 1 else "0"
    e(".globl sgc_spin_kernel")
    e(".p2align 8")
    e(".type sgc_spin_kernel,@function")
    e("sgc_spin_kernel:")
    e("    s_memrealtime s[30:31]")
    e("    s_cmp_ge_u32 s2, 1")
    e("    s_cbranch_scc1 SP_END")
    e("    s_load_dwordx8 s[12:19], s[0:1], 32")
    e("    v_lshlrev_b32 v1, 6, v0")
    e("    v_mov_b32 v4, 0x7fffffff")
    e(f"    v_mov_b32 v5, {init}")
    e("    s_mov_b32 s23, 0x20000")
    e("    s_waitcnt lgkmcnt(0)")
    srd(20, 18, 19, 1 << 20, WS_STAMP)
    e("    s_mov_b32 s24, 0")
    e("SP_RD:")
    e(f"    buffer_load_dword v2, v1, s[20:23], s24 offen offset:{4*ia}")
    e(f"    buffer_load_dword v3, v1, s[20:23], s24 offen offset:{4*ib}")
    e("    s_add_u32 s24, s24, 4096")
    e("    s_cmp_lt_u32 s24, 0x40000")
    e("    s_waitcnt vmcnt(0)")
    e("    v_subrev_u32 v2, s30, v2")
    e("    v_subrev_u32 v3, s30, v3")
    e("    v_min_i32 v4, v4, v2")
    e("    %s v5, v5, v3" % ("v_max_i32" if mode == 0 else "v_min_i32" if mode == 1 else "v_add_u32"))
    e("    s_cbranch_scc1 SP_RD")
    e("    s_mov_b32 s26, 0x7fffffff")
    e(f"    s_mov_b32 s27, {init}")
    e("    s_nop 1")
    for l in range(64):
        e(f"    v_readlane_b32 s28, v4, {l}")
        e(f"    v_readlane_b32 s29, v5, {l}")
        e("    s_min_i32 s26, s26, s28")
        if wlo <= (l & 15) <= whi:
            e("    %s s27, s27, s29" % ("s_max_i32" if mode == 0 else "s_min_i32" if mode == 1 else "s_add_u32"))
    if mode == 2:
        e("    s_ashr_i32 s27, s27, %d" % (8 + (whi - wlo + 1).bit_length() - 1))
    e("    s_sub_i32 s26, s27, s26")
    e("    s_max_i32 s26, s26, 0")
    e("    s_min_i32 s26, s26, 20000")
    e(f"    s_mul_i32 s26, s26, {mult}")
    e("    s_add_u32 s26, s26, 10000")
    e("SP_LOOP:")
    e("    s_memrealtime s[28:29]")
    e("    s_waitcnt lgkmcnt(0)")
    e("    s_sub_u32 s28, s28, s30")
    e("    s_cmp_lt_u32 s28, s26")
    e("    s_cbranch_scc1 SP_LOOP")
    e("SP_END:")
    e("    s_endpgm")


def desc(name, vg, sg):
    e(".p2align 6")
    e(f".amdhsa_kernel {name}")
    e(f"  .amdhsa_next_free_vgpr {vg}")
    e(f"  .amdhsa_next_free_sgpr {sg}")
    e(f"  .amdhsa_accum_offset {vg}")
    e("  .amdhsa_group_segment_fixed_size 0")
    e("  .amdhsa_kernarg_size 64")
    e("  .amdhsa_user_sgpr_count 2")
    e("  .amdhsa_user_sgpr_kernarg_segment_ptr 1")
    e("  .amdhsa_system_sgpr_workgroup_id_x 1")
    e(".end_amdhsa_kernel")


SPIN = OPT.get("spin")
if SPIN:
    e(f"; @launch kernel={NAME} grid=(256,1,1) block=(1024,1,1) lds={LDS}")
    e("; @launch kernel=sgc_spin_kernel grid=(1,1,1) block=(64,1,1) lds=0")
else:
    e(f"; @launch grid=(256,1,1) block=(1024,1,1) lds={LDS}")
e('.amdgcn_target "amdgcn-amd-amdhsa--gfx950"')
e(".text")
body()
if SPIN:
    spin_kernel()
e('.section .rodata,"a"')
if SPIN:
    desc("sgc_spin_kernel", 8, 40)
desc(NAME, 128, 102 if DIAG else 82)
open(OUT, "w").write("\n".join(L) + "\n")
```

```python
import sys

OUT = [a for a in sys.argv[1:] if not a.startswith("--")][0]
OPT = dict(a[2:].split("=") for a in sys.argv[1:] if a.startswith("--") and "=" in a)
NAME = "standalone__spectral_conv_sgc__graph_kernel"
DEFST = "start,a_bar2,b_bar1,b_bar2,h1_done,g2_exit,h2_done,end"
STL = OPT.get("st", DEFST if "--diag" in sys.argv else "").split(",")
STL = [s for s in STL if s]
DIAG = len(STL) > 0


def I(name, dflt):
    return int(OPT.get(name, dflt))


N = 50000
E = 850000
ET = 800000
TM = 5368
CHMAX = 13 * 256
SLOTCAP = 24
NINL = 14
WS_OVT = 8 << 20
WS_FLAG = WS_OVT + 131072
WS_VOTE = WS_FLAG + 65536
WS_H1 = 12 << 20
H1BYTES = 782 * 16384
WS_OVF = 40 << 20
OVF_STRIDE = 32768
WS_STAMP = 32 << 20
TABBYTES = N * 128
PADV = 0x40000000

K1_LS = 132
K1_CNT = 256 * K1_LS
K1_OVC = 1024
K1_DONE = 1028
K1_OVT = K1_CNT + 4096
K1_NON = K1_OVT + 128
K1_MSK = K1_NON + 16
LISTS = 65536
CAPT = 320
TSTR = CAPT * 8
CNTB = LISTS + 16 * TSTR + 256
BASES = CNTB + 1024
MORE = BASES + 1024
CFLAG = MORE + 64
WL = MORE + 128
assert WL % 128 == 0
SELFN = WL + 8192
LDS = SELFN + 1024

SC = "sc1"
ST_OUT = OPT.get("stout", "sc1 nt")
SPINMAX = I("spinmax", 20000000)
NB = I("nb", 8)
TSH = I("tsh", 20)
ROT = I("rot", 6250)
SP = I("sp", 1)
EARLY = I("early", 0)
SEGB = I("segb", 2)

L = []


def e(s=""):
    L.append(s)


def srd(d, lo, hi, nbytes, off=0):
    if off == 0:
        e(f"    s_mov_b64 s[{d}:{d+1}], s[{lo}:{hi}]")
    elif off > 0:
        e(f"    s_add_u32 s{d}, s{lo}, {off}")
        e(f"    s_addc_u32 s{d+1}, s{hi}, 0")
    else:
        e(f"    s_sub_u32 s{d}, s{lo}, {-off}")
        e(f"    s_subb_u32 s{d+1}, s{hi}, 0")
    e(f"    s_mov_b32 s{d+2}, {nbytes}")
    e(f"    s_mov_b32 s{d+3}, s23")


S_SRC, S_DST, S_NRM, S_WS, S_OVF, S_GAT, S_STO = 20, 24, 28, 32, 36, 40, 44
S_OUT, S_GH = S_SRC, S_DST


def R(d):
    return f"s[{d}:{d+3}]"


STAMP_BASE = 86


def stamp(name):
    if name in STL:
        i = STL.index(name)
        e(f"    s_memrealtime s[{STAMP_BASE+2*i}:{STAMP_BASE+2*i+1}]")


def stamp2(n1, n2):
    if n1 in STL or n2 in STL:
        n = len(L)
        e("    s_bitcmp1_b32 s71, 0")
        e(f"    s_cbranch_scc1 ST{n}_B")
        stamp(n1)
        e(f"    s_branch ST{n}_C")
        e(f"ST{n}_B:")
        stamp(n2)
        e(f"ST{n}_C:")


def stamp_out():
    if not DIAG:
        return
    e("    s_waitcnt vmcnt(0) lgkmcnt(0)")
    stamp("end")
    e("    s_waitcnt lgkmcnt(0)")
    e("    s_mov_b64 exec, 1")
    srd(28, 18, 19, 1 << 20, WS_STAMP)
    e("    s_lshl_b32 s76, s2, 4")
    e("    s_add_u32 s76, s76, s3")
    e("    s_lshl_b32 s76, s76, 6")
    e("    v_mov_b32 v2, s76")
    for i in range(len(STL)):
        e(f"    v_mov_b32 v3, s{STAMP_BASE+2*i}")
        e(f"    buffer_store_dword v3, v2, s[28:31], 0 offen offset:{4*i}")
    e("    s_getreg_b32 s76, hwreg(HW_REG_XCC_ID)")
    e("    v_mov_b32 v3, s76")
    e("    buffer_store_dword v3, v2, s[28:31], 0 offen offset:56")
    e("    s_lshl_b32 s76, s48, 16")
    e("    s_or_b32 s76, s76, s74")
    e("    v_mov_b32 v3, s76")
    e("    buffer_store_dword v3, v2, s[28:31], 0 offen offset:60")
    e("    v_mov_b32 v3, s50")
    e("    buffer_store_dword v3, v2, s[28:31], 0 offen offset:48")
    e("    v_mov_b32 v3, s51")
    e("    buffer_store_dword v3, v2, s[28:31], 0 offen offset:52")


def PEND(s):
    return f"s[{52+2*s}:{53+2*s}]"


def prio_by_age(lbl):
    for g in range(1, 4):
        e(f"    s_cmp_lt_u32 s3, {4*g}")
        e(f"    s_cbranch_scc1 {lbl}")
        e(f"    s_setprio {g}")
    e(f"{lbl}:")


def decode_key(rec, meta, k, s):
    ca = 40 + s
    e(f"    v_add_u32 v2, s27, v{rec}")
    e(f"    v_and_b32_sdwa v3, v{meta}, v99 dst_sel:DWORD dst_unused:UNUSED_PAD src0_sel:BYTE_{k} src1_sel:DWORD")
    e("    v_bfe_u32 v2, v2, 12, 4")
    e("    v_or_b32 v2, v2, v3")
    e(f"    v_lshl_add_u32 v{ca}, v2, 2, s0")


def decode_data(rec, meta, k, s):
    d0, d1 = 48 + s, 56 + s
    e(f"    v_lshlrev_b32_sdwa v{d0}, v124, v{rec} dst_sel:DWORD dst_unused:UNUSED_PAD src0_sel:DWORD src1_sel:WORD_0")
    e(f"    v_mov_b32 v{d1}, v{rec}")
    e(f"    v_lshlrev_b16_sdwa v{d1}, v{meta}, v1 dst_sel:WORD_0 dst_unused:UNUSED_PRESERVE src0_sel:BYTE_{k} src1_sel:DWORD")


def decode_full(rec, dst, s):
    e(f"    v_mul_u32_u24 v30, {TM}, v{dst}")
    e("    v_lshrrev_b32 v30, 12, v30")
    e(f"    v_bfi_b32 v30, 15, v{dst}, v30")
    decode_key(rec, 30, 0, s)
    decode_data(rec, 30, 0, s)


def zero_b_counters(n):
    e("    v_lshlrev_b32 v2, 2, v0")
    e(f"    v_add_u32 v2, {CNTB}, v2")
    e("    v_mov_b32 v3, 0")
    e(f"    v_cmp_gt_u32 vcc, {n}, v0")
    e("    s_and_saveexec_b64 s[76:77], vcc")
    e("    ds_write_b32 v2, v3")
    e("    s_mov_b64 exec, -1")


def collect_addrs():
    e("    v_lshrrev_b32 v9, 3, v0")
    e("    v_lshlrev_b32 v93, 7, v9")
    e("    v_lshlrev_b32 v9, 15, v9")
    e("    v_lshl_add_u32 v9, v10, 4, v9")
    e("    v_lshl_add_u32 v93, v10, 4, v93")


def own_x():
    e("    s_bitcmp1_b32 s71, 3")
    e("    s_cbranch_scc1 NOOWN")
    e("    s_mov_b64 exec, s[14:15]")
    e(f"    buffer_load_dwordx4 v[64:67], v121, {R(S_GAT)}, 0 offen offset:3072")
    e(f"    buffer_load_dwordx4 v[68:71], v121, {R(S_GAT)}, 0 offen offset:3136")
    if I("xtra", 0):
        e(f"    s_mov_b64 exec, {(1 << I('xtra', 0)) - 1}")
        e(f"    s_movk_i32 s76, {196*128}")
        e(f"    buffer_load_dword v91, v121, {R(S_GAT)}, s76 offen offset:3072")
    e("NOOWN:")
    e("    s_mov_b64 exec, -1")


def own_addr(lbl):
    e(f"    v_bfe_u32 v2, v121, {I('rsh', 13)}, {I('rbits', 2)}")
    e("    v_and_b32 v9, 0xffffe000, v121")
    e(f"    v_cmp_gt_u32 s[78:79], {I('rep', 1)}, v2")
    e("    v_add_u32 v9, v9, v121")
    e("    v_lshrrev_b32 v2, 8, v9")
    e("    v_and_b32 v2, 0x2000, v2")
    e("    v_xor_b32 v9, v9, v2")
    e("    s_and_b32 s76, s26, 3")
    e("    s_or_b32 s76, s76, s3")
    e(f"    s_cbranch_scc1 {lbl}")
    e("    s_or_b32 s71, s71, %d" % (64 if lbl == "PRB_M" else 0))
    e("    s_branch PROBE")
    e(f"{lbl}:")


def probe():
    e("PROBE:")
    e("    s_lshr_b32 s76, s29, 12")
    e("    s_lshl3_add_u32 s77, s26, s76")
    e("    s_lshl_b32 s80, s77, 15")
    e("    s_xor_b32 s81, s29, 0x1000")
    e("    s_add_u32 s80, s80, s81")
    e("    s_xor_b32 s81, s80, 0x2000")
    if I("pw", 1):
        e("    s_xor_b32 s75, s80, 0x4000")
        e("    s_load_dword s50, s[18:19], s75")
    e("    s_waitcnt lgkmcnt(0)")
    e("    s_memtime vcc")
    e("    s_load_dword s50, s[18:19], s80")
    e("    s_waitcnt lgkmcnt(0)")
    e("    s_memtime s[76:77]")
    e("    s_load_dword s50, s[18:19], s81")
    e("    s_waitcnt lgkmcnt(0)")
    e("    s_sub_u32 s75, s76, vcc_lo")
    e("    s_memtime vcc")
    e("    s_waitcnt lgkmcnt(0)")
    e("    s_sub_u32 s77, vcc_lo, s76")
    if DIAG:
        e("    s_mov_b32 s50, s75")
        e("    s_mov_b32 s51, s77")
    e("    s_cmp_lt_u32 s75, s77")
    e("    s_cselect_b32 s80, s80, s81")
    e("    s_lshr_b32 s81, s80, 8")
    e("    s_xor_b32 s80, s80, s81")
    e("    s_lshr_b32 s80, s80, 13")
    e("    s_xor_b32 s80, s80, s2")
    e("    s_and_b32 s80, s80, 1")
    if OPT.get("cfix"):
        e(f"    s_mov_b32 s80, {OPT['cfix']}")
    e("    s_lshr_b32 s76, s29, 12")
    e("    s_lshr_b32 s77, s26, 2")
    e("    s_lshl3_add_u32 s77, s77, s76")
    e("    s_lshl_b32 s77, s77, 7")
    e(f"    s_add_u32 s77, s77, {WS_VOTE}")
    e("    v_lshlrev_b32 v2, 3, v0")
    e("    v_mov_b32 v4, v125")
    e("    v_mov_b32 v5, s80")
    e("    s_mov_b64 exec, 0xffff")
    e(f"    buffer_store_dwordx2 v[4:5], v2, {R(S_WS)}, s77 offen sc1")
    e("    s_mov_b64 exec, -1")
    e("    s_bitcmp0_b32 s71, 6")
    e("    s_cbranch_scc1 PRB_E")
    if I("catch", 1):
        e("    s_sub_u32 s10, s10, 1")
    e("    s_waitcnt vmcnt(5)")
    e("    s_branch PRB_M2")


def vote_load():
    e("    v_and_b32 v2, 63, v0")
    e("    v_lshlrev_b32 v2, 7, v2")
    e(f"    s_mov_b32 s76, {WS_VOTE}")
    e(f"    buffer_load_dwordx2 v[4:5], v2, {R(S_WS)}, s76 offen sc1")


def vote_count():
    e("    v_cmp_eq_u32 vcc, 1, v5")
    e("    s_bcnt1_i32_b64 s76, vcc")
    if "minor" in STL:
        i = STL.index("minor")
        e("    s_sub_u32 s77, 64, s76")
        e("    s_min_u32 s77, s77, s76")
        e("    s_mul_i32 s77, s77, 50")
        e(f"    s_add_u32 s{STAMP_BASE+2*i}, s{STAMP_BASE}, s77")
    e("    s_cmp_ge_u32 s76, 32")
    e("    s_cselect_b32 s76, 3, 2")
    e(f"    v_mov_b32 v2, {CFLAG}")
    e("    v_mov_b32 v3, s76")
    e("    ds_write_b32 v2, v3")
    e("    s_movk_i32 s28, 0x7fff")


def self_init(b):
    e("    s_mov_b64 exec, s[16:17]")
    e(f"    v_swap_b32 v{b}, v{b+2}")
    e(f"    v_swap_b32 v{b+1}, v{b+3}")
    e(f"    v_swap_b32 v{b+4}, v{b+6}")
    e(f"    v_swap_b32 v{b+5}, v{b+7}")
    e("    s_mov_b64 exec, -1")
    for i in reversed(range(8)):
        e(f"    v_and_b32 v{65+2*i}, 0xffff0000, v{b+i}")
        e(f"    v_lshlrev_b32 v{64+2*i}, 16, v{b+i}")
    for i in range(16):
        e(f"    v_mul_f32 v{64+i}, v126, v{64+i}")


def phase_a():
    stamp("start")
    e("    s_getpc_b64 s[6:7]")
    e("CPF_PC:")
    e("    v_cmp_gt_u32 vcc, (SLOWW-CPF_PC+127)/128, v0")
    e("    v_lshlrev_b32 v2, 7, v0")
    e("    s_load_dwordx2 s[24:25], s[0:1], 16")
    e("    s_mov_b64 exec, vcc")
    e("    s_mov_b32 s8, vcc_lo")
    e("    s_cbranch_execz CPF_D")
    e("    global_load_dword v126, v2, s[6:7] offset:124")
    e("CPF_D:")
    e("    s_load_dwordx2 s[20:21], s[0:1], 8")
    e("    s_load_dwordx2 s[28:29], s[0:1], 24")
    e("    s_load_dwordx2 s[10:11], s[0:1], 56")
    e("    s_mov_b64 exec, -1")
    e("    s_cmp_ge_u32 s2, 256")
    e("    s_cbranch_scc1 END")
    TCH = I("touch", 1)
    e("    v_lshrrev_b32 v3, 6, v0")
    e("    v_and_b32 v2, 63, v0")
    e("    s_mov_b32 s23, 0x20000")
    e(f"    s_mov_b32 s22, {E*4}")
    e("    v_lshlrev_b32 v4, 18, v3")
    e("    s_mov_b64 s[26:27], s[22:23]")
    e("    v_lshl_or_b32 v4, v2, 4, v4")
    e("    s_lshr_b32 s30, s22, 1")
    e("    s_mov_b32 s31, s23")
    e("    v_lshrrev_b32 v5, 1, v4")
    e("    s_lshl_b32 s68, s2, 10")
    e("    v_cmp_gt_u32 vcc, 13, v3")
    e("    s_lshl_b32 s69, s2, 9")
    e(f"    v_mov_b32 v125, {WS_FLAG + (I('wsoff', 0) << 20)}")
    e("    s_cmp_eq_u32 s8, 0")
    e("    s_waitcnt lgkmcnt(0)")
    e("    s_cbranch_scc1 A_NOZ")
    e("    global_load_dword v125, v125, s[10:11] sc1")
    e("A_NOZ:")
    e("    s_cbranch_vccz A_NOLD0")
    LI = OPT.get("ldin", "")
    e(f"    buffer_load_dwordx4 v[12:15], v4, {R(S_DST)}, s68 offen {LI}")
    e("A_NOLD0:")
    e("    s_barrier")
    e("    s_cbranch_vccz A_NOLD")
    e(f"    buffer_load_dwordx4 v[16:19], v4, {R(S_SRC)}, s68 offen {LI}")
    e(f"    buffer_load_dwordx2 v[20:21], v5, {R(S_NRM)}, s69 offen {LI}")
    e("A_NOLD:")
    stamp("a_issue")
    e("    s_load_dwordx8 s[12:19], s[0:1], 32")
    e("    s_load_dwordx2 s[4:5], s[0:1], 0")
    e("    v_readfirstlane_b32 s3, v3")
    e("    v_lshlrev_b32 v9, 2, v0")
    e("    v_mov_b32 v6, 0")
    e(f"    ds_write_b32 v9, v6 offset:{K1_CNT}")
    for i in range(4):
        e(f"    v_mov_b32 v{24+i}, -1")
    e("    v_lshlrev_b32 v7, 4, v0")
    e("    ds_write_b128 v7, v[24:27]")
    e("    ds_write_b128 v7, v[24:27] offset:16384")
    e("    v_add_u32 v4, s68, v4")
    e("    v_lshrrev_b32 v8, 2, v4")
    e("    v_cmp_gt_u32 s[72:73], s22, v4")
    e(f"    v_subrev_u32 v8, {ET}, v8")
    e("    v_mov_b32 v1, 1")
    e("    v_and_b32 v10, 7, v0")
    srd(S_WS, 10, 11, WS_H1 + H1BYTES, I("wsoff", 0) << 20)
    e("    s_cmp_lt_u32 s3, 13")
    e("    s_cbranch_scc1 A_BAR")
    e("    s_cmp_lt_u32 s3, 14")
    e("    s_cbranch_scc1 A_H13")
    e("    s_cmp_eq_u32 s3, 14")
    e("    s_cbranch_scc1 A_H14")
    e(f"    ds_write_b128 v7, v[24:27] offset:{32768 - 15*1024}")
    e("    v_and_b32 v5, 124, v9")
    e("    v_mov_b32 v7, 0xffff")
    e(f"    ds_write_b32 v5, v7 offset:{K1_OVT}")
    e("    s_branch A_BAR")
    e("A_H14:")
    if I("hv", 0):
        e("    v_bfe_u32 v52, v0, 4, 2")
        e("    v_and_b32 v3, 15, v0")
        e("    v_lshlrev_b32 v52, 15, v52")
        e("    s_lshl_b32 s75, s2, 7")
        e("    v_lshl_or_b32 v52, v3, 3, v52")
        e(f"    s_add_u32 s75, s75, {WS_OVT}")
        e("    v_bfe_i32 v5, v0, 0, 1")
        e(f"    buffer_store_dwordx2 v[4:5], v52, {R(S_WS)}, s75 offen sc1")
    e(f"    v_lshlrev_b32 v2, {TSH}, v2")
    if TCH == 1:
        e(f"    buffer_load_dword v126, v2, {R(S_WS)}, 0 offen offset:{I('toff', 3968)} sc1")
    if TCH and I("txo", 1):
        e("    s_waitcnt lgkmcnt(0)")
        srd(S_GAT, 4, 5, TABBYTES)
        e(f"    buffer_load_dword v126, v2, {R(S_GAT)}, 0 offen")
        srd(S_OVF, 14, 15, TABBYTES)
        e(f"    buffer_load_dword v126, v2, {R(S_OVF)}, 0 offen sc1")
    e("    s_branch A_BAR")
    e("A_H13:")
    if I("pt", 0) == 1:
        e("    s_lshl_b32 s77, s2, 6")
        e(f"    s_add_u32 s77, s77, {WS_OVT}")
        e("    v_lshlrev_b32 v2, 14, v2")
        e("    s_mov_b64 exec, 0xff")
        e(f"    buffer_load_dword v126, v2, {R(S_WS)}, s77 offen sc1")
        e("    s_mov_b64 exec, -1")
    elif I("pt", 0) == 2:
        e("    s_lshl_b32 s77, s2, 9")
        e(f"    s_add_u32 s77, s77, {WS_OVT}")
        e("    v_lshlrev_b32 v2, 7, v2")
        e("    s_mov_b64 exec, 15")
        e(f"    buffer_load_dword v126, v2, {R(S_WS)}, s77 offen sc1")
        e("    s_mov_b64 exec, -1")
    e("A_BAR:")
    e("    s_lshr_b32 s76, s2, 7")
    e("    s_add_u32 s77, s76, s2")
    e("    s_and_b32 s77, s77, 3")
    e("    s_lshl_b32 s77, s77, 6")
    e("    s_lshl1_add_u32 s77, s76, s77")
    e("    s_bfe_u32 s76, s2, 0x40003")
    e("    s_lshl2_add_u32 s77, s76, s77")
    e("    s_bfe_u32 s76, s2, 0x10002")
    e("    s_add_u32 s65, s77, s76")
    if I("pa", 1):
        prio_by_age("A_PRD")
    e("    s_waitcnt lgkmcnt(0)")
    if I("wsoff", 0):
        e("    s_mov_b64 s[18:19], s[32:33]")
    e("    s_barrier")
    stamp("a_bar1")
    e("    s_cmp_lt_u32 s3, 12")
    e("    s_cbranch_scc1 A_SETUP")
    e("    v_bfe_u32 v2, v0, 4, 4")
    e("    s_lshl_b32 s76, s65, 4")
    e("    v_add_u32 v2, s76, v2")
    e("    v_mul_u32_u24 v3, 50006, v2")
    e("    v_lshrrev_b32 v3, 12, v3")
    e("    v_sub_u32 v4, v0, v3")
    e("    v_and_b32 v4, 15, v4")
    e("    v_add_u32 v115, v3, v4")
    e(f"    v_add_u32 v4, {ET}, v115")
    e("    v_lshlrev_b32 v5, 2, v4")
    e("    v_lshlrev_b32 v4, 1, v4")
    e(f"    buffer_load_dword v112, v5, {R(S_DST)}, 0 offen")
    e(f"    buffer_load_dword v113, v5, {R(S_SRC)}, 0 offen")
    e(f"    buffer_load_ushort v114, v4, {R(S_NRM)}, 0 offen")
    e(f"    v_mul_u32_u24 v4, {TM}, v115")
    e("    v_lshrrev_b32 v4, 16, v4")
    e("    v_cmp_eq_u32 s[66:67], v4, v2")
    e(f"    v_cmp_gt_u32 vcc, {N}, v115")
    e("    s_and_b64 s[66:67], s[66:67], vcc")
    e("    s_cmp_eq_u32 s3, 12")
    e("    s_cbranch_scc1 A_SETUP")
    srd(S_STO, 12, 13, 8192)
    e(f"    v_subrev_u32 v2, {13*64}, v0")
    e("    v_lshlrev_b32 v2, 4, v2")
    e(f"    buffer_load_dwordx4 v[100:103], v2, {R(S_STO)}, 0 offen")
    e(f"    buffer_load_dwordx4 v[104:107], v2, {R(S_STO)}, 0 offen offset:3072")
    e("    v_add_u32 v3, 6144, v2")
    e(f"    buffer_load_dwordx4 v[108:111], v3, {R(S_STO)}, 0 offen")
    e("A_SETUP:")
    e("    s_lshr_b32 s76, s3, 1")
    e("    s_add_u32 s76, s76, s2")
    e("    s_and_b32 s76, s76, 7")
    e("    s_lshl_b32 s74, s2, 15")
    e("    s_lshl_b32 s77, s76, 12")
    e("    s_add_u32 s74, s74, s77")
    e("    s_lshl_b32 s77, s76, 2")
    e("    v_mov_b32 v49, s77")
    e("    s_and_b32 s75, s3, 1")
    e("    s_lshl_b32 s75, s75, 1")
    e("    v_bfe_u32 v2, v0, 3, 3")
    e("    v_lshlrev_b32 v48, 4, v10")
    e("    v_cmp_lt_u32 vcc, 3, v10")
    e(f"    v_mul_u32_u24 v3, {K1_LS * 4}, v2")
    e("    s_and_b32 s70, s3, 1")
    e("    s_add_u32 s77, s76, s70")
    e("    s_and_b32 s77, s77, 3")
    e("    s_lshl_b32 s77, s77, 6")
    e("    s_lshl1_add_u32 s77, s70, s77")
    e("    s_lshr_b32 s76, s76, 2")
    e("    s_add_u32 s76, s76, s77")
    e("    v_add_u32 v3, v3, v48")
    for st in range(2):
        e(f"    s_add_u32 s77, s76, {32*st}")
        e(f"    s_mul_i32 s77, s77, {K1_LS}")
        e(f"    v_add_u32 v{40+st}, s77, v3")
        e(f"    v_lshl_add_u32 v{46+st}, s75, 3, v2")
        e(f"    v_lshlrev_b32 v{44+st}, v{46+st}, v1")
        e(f"    v_add_u32 v{42+st}, -1, v{44+st}")
        e(f"    v_cndmask_b32 v{44+st}, 0, v{44+st}, vcc")
        e("    s_add_u32 s75, s75, 1")
    e("    v_and_b32 v50, 6, v10")
    e("    s_mov_b32 s64, 0xffffff")
    e("    s_cmp_lt_u32 s3, 12")
    e("    s_cbranch_scc1 A_EDGES")
    e("    s_cmp_eq_u32 s3, 12")
    e("    s_cbranch_scc1 A_EDGES12")
    e("    s_cmp_eq_u32 s3, 15")
    e("    s_cbranch_scc1 A_MASKS")
    e("    s_cmp_eq_u32 s3, 14")
    e("    s_cbranch_scc1 A_HDR")
    if I("xr", 0):
        srd(S_GAT, 4, 5, TABBYTES)
        e("    s_mul_i32 s76, s65, 195*128")
        e("    v_and_b32 v54, 63, v0")
        e("    v_lshlrev_b32 v54, 4, v54")
        for n in range(6):
            e(f"    buffer_load_dwordx4 v[{64+4*n}:{67+4*n}], v54, {R(S_GAT)}, s76 offen")
            e("    s_add_u32 s76, s76, 1024")
    if I("pg", 0):
        srd(S_GAT, 4, 5, TABBYTES)
        e("    s_add_u32 s76, s65, 1")
        e(f"    s_mul_i32 s76, s76, {16*50006}")
        e("    s_lshr_b32 s76, s76, 12")
        e("    v_and_b32 v2, 63, v0")
        e("    v_add_lshl_u32 v2, v2, s76, 7")
        n = I("pg", 0)
        o = 0
        while n > 0:
            m = min(n, 64)
            if m < 64:
                e(f"    s_mov_b32 exec_lo, {((1 << m) - 1) & 0xffffffff}")
                e(f"    s_mov_b32 exec_hi, {((1 << m) - 1) >> 32}")
            e(f"    s_movk_i32 s76, {o}")
            e(f"    buffer_load_dword v126, v2, {R(S_GAT)}, s76 offen")
            n -= m
            o += 8192
    e("    s_branch A_OUT")
    e("A_MASKS:")
    e("    v_bfe_u32 v2, v0, 4, 1")
    e("    v_bfe_u32 v3, v0, 5, 1")
    e("    v_add_u32 v3, v3, v2")
    e("    v_lshlrev_b32 v3, 6, v3")
    e("    v_lshl_add_u32 v3, v2, 1, v3")
    e("    v_and_b32 v2, 15, v0")
    e("    v_lshl_add_u32 v3, v2, 2, v3")
    e("    v_lshlrev_b32 v12, 2, v3")
    e("    v_xor_b32 v13, 512, v12")
    e("    v_lshlrev_b32 v7, 2, v10")
    e("A_MPOLL:")
    e(f"    ds_read_b32 v2, v6 offset:{K1_CNT+K1_DONE}")
    e("    s_waitcnt lgkmcnt(0)")
    e("    v_cmp_gt_u32 vcc, 13, v2")
    e("    s_cbranch_vccnz A_MPOLL")
    for n in range(4):
        e(f"    ds_read_b32 v{16+n}, v{12+(n&1)} offset:{K1_CNT + 4*(n>>1)}")
    for n in range(4):
        e(f"    s_waitcnt lgkmcnt({3-n})")
        e(f"    v_cmp_lt_u32 s[{52+2*n}:{53+2*n}], 12, v{16+n}")
    e("    s_nop 1")
    for n in range(8):
        e(f"    v_writelane_b32 v2, s{52+n}, {n}")
    e("    s_mov_b64 exec, 0xff")
    e("    v_bcnt_u32_b32 v3, v2, 0")
    e("    v_add_u32 v4, 1, v2")
    e("    v_bfe_i32 v3, v3, 0, 1")
    e("    v_bfi_b32 v4, v2, 0, v4")
    e("    v_and_or_b32 v2, v4, v3, v2")
    e(f"    ds_write_b32 v7, v2 offset:{K1_MSK}")
    e("    s_branch A_OUT")
    e("A_HDR:")
    e("    v_and_b32 v3, 15, v0")
    e("    v_lshlrev_b32 v51, 3, v3")
    e("    v_bfe_u32 v52, v0, 4, 2")
    e("    v_and_b32 v53, 1, v0")
    e("    v_lshl_add_u32 v53, v52, 1, v53")
    e("    v_lshlrev_b32 v53, 2, v53")
    e("    v_lshl_or_b32 v52, v52, 15, v51")
    e("    v_bfe_u32 v54, v0, 2, 1")
    e("    v_lshlrev_b32 v54, 1, v54")
    e("    s_lshl_b32 s75, s2, 7")
    e(f"    s_add_u32 s75, s75, {WS_OVT}")
    e("    v_cmp_le_u32 vcc, 14, v3")
    e("    s_setprio 3")
    stamp("a_pre2")
    e("    s_barrier")
    stamp("a_bar2")
    e(f"    ds_read_u16 v26, v54 offset:{K1_NON}")
    e(f"    ds_read_b64 v[24:25], v51 offset:{K1_OVT}")
    e(f"    ds_read_b32 v22, v6 offset:{K1_CNT+K1_OVC}")
    e(f"    ds_read_b32 v23, v53 offset:{K1_MSK}")
    e("    s_waitcnt lgkmcnt(0)")
    e("    v_or_b32 v22, 0xf000, v22")
    e("    v_cndmask_b32 v24, v24, v23, vcc")
    e("    v_cndmask_b32 v25, v25, v22, vcc")
    e("    v_lshl_or_b32 v25, v26, 16, v25")
    e(f"    buffer_store_dwordx2 v[24:25], v52, {R(S_WS)}, s75 offen {SC}")
    e(f"    ds_read_u16 v120, v50 offset:{K1_NON}")
    e("    s_branch A_O1")
    e("A_EDGES12:")
    e("    s_waitcnt vmcnt(5)")
    e("    s_branch A_EDGES2")
    e("A_EDGES:")
    e("    s_cmp_lg_u32 s3, 0")
    e("    s_waitcnt vmcnt(2)")
    e("    s_cbranch_scc1 A_EDGES2")
    e("    v_add_u32 v4, 0x01010101, v125")
    e("    v_add_u32 v5, 0x01010101, v125")
    e(f"    ds_write_b64 v6, v[4:5] offset:{K1_NON}")
    e("A_EDGES2:")
    e("    s_mov_b64 exec, s[72:73]")
    stamp("a_dst")
    for k in range(4):
        e(f"    v_mul_u32_u24 v{24+k}, {TM}, v{12+k}")
        e(f"    v_sub_u32 v2, v{12+k}, v8")
        e(f"    v_lshrrev_b32 v{28+k}, 20, v{24+k}")
        e(f"    v_cmp_ne_u32 s[{52+2*k}:{53+2*k}], {k}, v2")
        e(f"    v_lshlrev_b32 v{36+k}, 2, v{28+k}")
    for k in range(4):
        e(f"    s_mov_b64 exec, s[{52+2*k}:{53+2*k}]")
        e(f"    ds_add_rtn_u32 v{32+k}, v{36+k}, v1 offset:{K1_CNT}")
    e("    s_mov_b64 exec, 1")
    e(f"    ds_add_u32 v6, v1 offset:{K1_CNT+K1_DONE}")
    e("    s_mov_b64 exec, s[72:73]")
    for k in range(4):
        e(f"    v_lshrrev_b32 v{24+k}, 12, v{24+k}")
        e(f"    v_mul_u32_u24 v{28+k}, {K1_LS}, v{28+k}")
        e(f"    v_bfi_b32 v{24+k}, 15, v{12+k}, v{24+k}")
    e("    s_mov_b32 s70, 0xffff0000")
    FIT = ["s[6:7]", "s[8:9]", "s[10:11]", "s[62:63]"]
    for k in range(4):
        e(f"    s_mov_b64 exec, s[{52+2*k}:{53+2*k}]")
        e("    s_waitcnt lgkmcnt(4)")
        e(f"    v_cmp_le_u32 vcc, 12, v{32+k}")
        e(f"    v_cmp_gt_u32 {FIT[k]}, {SLOTCAP}, v{32+k}")
        e(f"    v_and_b32 v4, 3, v{32+k}")
        e(f"    v_lshrrev_b32 v2, 2, v{32+k}")
        e("    v_cndmask_b32 v3, 0, 61, vcc")
        e(f"    v_lshl_add_u32 v4, v4, 4, v{28+k}")
        e(f"    s_mov_b64 exec, {FIT[k]}")
        e("    v_add3_u32 v5, v4, v3, v2")
        e("    v_cndmask_b32 v3, 0, 52, vcc")
        e("    v_lshl_add_u32 v4, v2, 2, v4")
        e(f"    ds_write_b8 v5, v{24+k} offset:12")
        e(f"    v_add_u32 v{36+k}, v4, v3")
    for k in range(4):
        e(f"    s_andn2_b64 s[{52+2*k}:{53+2*k}], s[{52+2*k}:{53+2*k}], {FIT[k]}")
    e("    s_or_b64 s[60:61], s[52:53], s[54:55]")
    e("    s_or_b64 s[76:77], s[56:57], s[58:59]")
    e("    s_or_b64 s[60:61], s[60:61], s[76:77]")
    e("    s_mov_b64 exec, s[72:73]")
    e("    s_cmp_eq_u32 s3, 12")
    e("    s_waitcnt vmcnt(3)")
    e("    s_cbranch_scc1 A_ALL")
    e("    s_waitcnt vmcnt(0)")
    e("A_ALL:")
    stamp("a_all")
    for k in range(4):
        if k % 2 == 0:
            e(f"    v_lshl_or_b32 v{16+k}, v{20+k//2}, 16, v{16+k}")
        else:
            e(f"    v_and_or_b32 v{16+k}, v{20+k//2}, s70, v{16+k}")
    for k in range(4):
        e(f"    s_mov_b64 exec, {FIT[k]}")
        e(f"    ds_write_b32 v{36+k}, v{16+k}")
    e("    s_cmp_lg_u64 s[60:61], 0")
    e("    s_cbranch_scc1 A_OVER")
    e("A_OUT:")
    e("    s_setprio 2")
    e("    s_mov_b64 exec, -1")
    e("    s_waitcnt lgkmcnt(0)")
    stamp("a_pre2")
    e("    s_barrier")
    stamp("a_bar2")
    e(f"    ds_read_u16 v120, v50 offset:{K1_NON}")
    e("A_O1:")
    e(f"    ds_read_b32 v21, v49 offset:{K1_MSK}")
    e(f"    ds_read_u8 v127, v10 offset:{K1_NON}")
    e("    ds_read2_b32 v[12:13], v40 offset0:0 offset1:1")
    e("    ds_read2_b32 v[14:15], v40 offset0:2 offset1:3")
    e("    ds_read2_b32 v[16:17], v41 offset0:0 offset1:1")
    e("    ds_read2_b32 v[18:19], v41 offset0:2 offset1:3")
    e("    s_waitcnt lgkmcnt(5)")
    for st in range(2):
        e(f"    v_and_b32 v2, v21, v{42+st}")
        e(f"    v_and_b32 v3, v21, v{44+st}")
        e(f"    v_bcnt_u32_b32 v2, v2, v{46+st}")
        e(f"    v_cmp_eq_u32 s[{52+2*st}:{53+2*st}], v3, v{44+st}")
        e(f"    v_lshl_add_u32 v{42+st}, v2, 6, v48")
    e("    s_waitcnt lgkmcnt(4)")
    e("    v_lshlrev_b32 v20, 24, v127")
    e("    s_waitcnt lgkmcnt(2)")
    e("    v_and_or_b32 v15, v15, s64, v20")
    e("    s_mov_b64 exec, s[52:53]")
    e(f"    buffer_store_dwordx4 v[12:15], v42, {R(S_WS)}, s74 offen {SC}")
    e("    s_mov_b64 exec, s[54:55]")
    e("    s_waitcnt lgkmcnt(0)")
    e("    v_and_or_b32 v19, v19, s64, v20")
    e(f"    buffer_store_dwordx4 v[16:19], v43, {R(S_WS)}, s74 offen {SC}")
    e("    s_mov_b64 exec, -1")
    if I("xr", 0):
        e("    s_cmp_lg_u32 s3, 13")
        e("    s_cbranch_scc1 XR_D")
        e("    s_lshl_b32 s76, s2, 14")
        e(f"    s_add_u32 s76, s76, {WS_H1}")
        e("    s_waitcnt vmcnt(2)")
        for n in range(6):
            e(f"    buffer_store_dwordx4 v[{64+4*n}:{67+4*n}], v54, {R(S_WS)}, s76 offen sc1")
            e("    s_xor_b32 s76, s76, 0x2000")
            e(f"    buffer_store_dwordx4 v[{64+4*n}:{67+4*n}], v54, {R(S_WS)}, s76 offen sc1")
            e("    s_add_u32 s76, s76, 1024")
        e("XR_D:")
    e("    s_setprio 0")
    stamp("a_st")
    e(f"    ds_read_b32 v125, v6 offset:{K1_NON}")


def a_overflow():
    e("A_OVER:")
    srd(S_OVF, 18, 19, 256 * OVF_STRIDE, WS_OVF)
    e("    s_lshl_b32 s62, s2, 15")
    for k in range(4):
        e(f"    s_mov_b64 exec, s[{52+2*k}:{53+2*k}]")
        e(f"    s_cbranch_execz A_OV{k}")
        e(f"    ds_add_rtn_u32 v3, v6, v1 offset:{K1_CNT+K1_OVC}")
        e(f"    v_mov_b32 v4, v{16+k}")
        e(f"    v_mov_b32 v5, v{12+k}")
        e("    s_waitcnt lgkmcnt(0)")
        e("    v_cmp_le_u32 s[76:77], 7, v3")
        e(f"    v_cmp_gt_u32 vcc, {NINL}, v3")
        e("    v_lshlrev_b32 v2, 4, v3")
        e("    v_add_u32 v7, -104, v2")
        e("    v_cndmask_b32 v2, v2, v7, s[76:77]")
        e("    v_lshlrev_b32 v3, 3, v3")
        e("    s_andn2_b64 s[76:77], exec, vcc")
        e("    s_mov_b64 exec, vcc")
        e(f"    ds_write_b64 v2, v[4:5] offset:{K1_OVT}")
        e("    s_mov_b64 exec, s[76:77]")
        e(f"    s_cbranch_execz A_OV{k}")
        e(f"    buffer_store_dwordx2 v[4:5], v3, {R(S_OVF)}, s62 offen {SC}")
        e("    s_waitcnt vmcnt(0)")
        e(f"A_OV{k}:")
    e("    s_branch A_OUT")


def setup1():
    e("    s_and_b32 s29, s2, 7")
    e("    s_and_b32 s27, s29, 3")
    e("    s_mul_i32 s27, s27, 12502")
    if I("roff", 0):
        e(f"    s_add_u32 s27, s27, {N - I('roff', 0)}")
        e(f"    s_cmp_ge_u32 s27, {N}")
        e(f"    s_cselect_b32 s76, {N}, 0")
        e("    s_sub_u32 s27, s27, s76")
    e("    s_sub_u32 s27, 0x10000, s27")
    e("    s_lshr_b32 s30, s29, 1")
    e("    s_lshl_b32 s30, s30, 15")
    e(f"    s_add_u32 s30, s30, {WS_OVT}")
    e("    s_add_u32 s31, s30, 16384")
    e("    s_lshl_b32 s29, s29, 12")
    e("    s_lshr_b32 s26, s2, 3")
    e("    s_bfm_b32 s49, s26, 0")
    e("    s_mov_b32 s2, s65")
    e("    v_mov_b32 v99, 0xf0")
    e("    v_mov_b32 v124, 7")
    e(f"    s_mov_b32 s0, {CNTB}")
    e("    s_mov_b32 s1, 0x07060302")
    e("    s_mov_b32 s71, 0")
    e("    s_cmp_eq_u32 s3, 1")
    e(f"    s_cselect_b32 s28, {I('vr', 3)}, 0x7fff")
    if DIAG:
        e("    s_mov_b32 s48, 0")
        e("    s_mov_b64 s[50:51], 0")
    zero_b_counters((WL - CNTB) // 4)
    collect_addrs()
    srd(S_OVF, 18, 19, 256 * OVF_STRIDE, WS_OVF)
    srd(S_GAT, 4, 5, TABBYTES + 3072, -3072)
    srd(S_STO, 18, 19, H1BYTES, WS_H1)
    e("    s_mov_b64 s[20:21], s[14:15]")
    e(f"    s_mov_b32 s22, {TABBYTES}")
    e(f"    s_add_u32 s24, s18, {WS_H1 - 3072}")
    e("    s_addc_u32 s25, s19, 0")
    if I("gp", 0):
        e("    s_lshl_b32 s76, s2, 4")
        e("    s_add_u32 s76, s76, s3")
        e("    s_add_u32 s76, s76, 16")
        e("    s_mul_i32 s76, s76, 50006")
        e("    s_lshr_b32 s76, s76, 12")
        e("    v_and_b32 v8, 63, v0")
        e("    v_add_lshl_u32 v8, v8, s76, 7")


def setup2():
    e("    v_and_b32 v2, 63, v0")
    e("    v_bfe_u32 v3, v2, 4, 1")
    e("    v_cmp_eq_u32 s[16:17], 1, v3")
    e("    v_xor_b32 v30, v3, v10")
    e("    v_lshlrev_b32 v83, 4, v30")
    e("    v_add_u32 v80, 3072, v83")
    e("    v_add_u32 v82, 1024, v83")
    e("    v_xor_b32 v83, 64, v83")
    e("    v_add_u32 v81, 2048, v83")
    e("    v_and_b32 v92, 15, v0")
    e("    v_lshrrev_b32 v11, 4, v2")
    e("    v_bfe_u32 v28, v2, 2, 2")
    e("    v_and_b32 v29, 3, v2")
    e("    v_lshl_add_u32 v84, v11, 3, v28")
    e("    v_lshlrev_b32 v84, 7, v84")
    e("    v_lshrrev_b32 v28, 1, v28")
    e("    v_lshl_or_b32 v28, v3, 2, v28")
    e("    v_xor_b32 v28, v28, v29")
    e("    v_lshl_add_u32 v84, v28, 4, v84")
    e("    v_and_b32 v30, 1, v29")
    e("    s_lshl_b32 s76, s3, 12")
    e("    v_lshl_add_u32 v84, v30, 3, v84")
    e("    s_mov_b32 m0, s76")
    e(f"    v_add_u32 v122, {WL}, v84")
    e("    v_add_u32 v84, s76, v84")
    e(f"    s_mul_i32 s76, s3, {TSTR}")
    e("    v_xor_b32 v85, 8, v84")
    e("    v_xor_b32 v86, 64, v84")
    e("    v_xor_b32 v87, 72, v84")
    e(f"    s_add_u32 s76, s76, {LISTS}")
    e("    v_lshrrev_b32 v30, 3, v2")
    e("    v_lshl_add_u32 v88, v30, 2, s76")
    e("    v_lshl_add_u32 v123, v2, 2, s76")
    e(f"    s_add_u32 s76, s76, {CAPT*4}")
    e("    v_lshl_add_u32 v89, v11, 5, s76")
    e("    v_sub_u32 v95, 0, v29")
    e("    v_sub_u32 v96, 1, v29")
    e("    v_sub_u32 v97, 2, v29")
    e("    v_ashrrev_i32 v95, 31, v95")
    e("    v_ashrrev_i32 v96, 31, v96")
    e("    v_ashrrev_i32 v97, 31, v97")
    e("    v_lshrrev_b32 v30, 2, v2")
    e(f"    v_mul_u32_u24 v98, {TSTR}, v30")
    e(f"    v_add_u32 v98, {LISTS}, v98")
    e("    v_lshl_add_u32 v90, v2, 4, s0")
    e("    s_lshl_b32 s76, s2, 4")
    e("    s_add_u32 s76, s76, s3")
    e("    s_mul_i32 s77, s76, 50006")
    e("    s_lshr_b32 s77, s77, 12")
    e("    v_subrev_u32 v2, s77, v92")
    e("    v_and_b32 v2, 15, v2")
    e("    v_add_u32 v2, s77, v2")
    e(f"    v_mul_u32_u24 v3, {TM}, v2")
    e("    v_lshrrev_b32 v3, 16, v3")
    e("    v_cmp_eq_u32 s[14:15], s76, v3")
    e("    v_lshlrev_b32 v2, 7, v2")
    e("    v_lshl_add_u32 v121, v11, 4, v2")


def setup3():
    e("    s_mov_b64 s[12:13], 0")
    e("    s_cmp_lt_u32 s3, 12")
    e("    s_cbranch_scc1 S_DONE")
    e("    s_waitcnt vmcnt(2)")
    e("    v_cmp_eq_u32 vcc, v112, v115")
    e("    v_cmp_eq_u32 s[76:77], v113, v115")
    e("    v_lshlrev_b32 v3, 16, v114")
    e("    v_and_b32 v2, 255, v0")
    e("    v_or_b32 v113, v3, v113")
    e("    s_and_b64 s[12:13], s[66:67], vcc")
    e("    s_and_b64 vcc, s[12:13], s[76:77]")
    e("    s_andn2_b64 s[12:13], s[12:13], s[76:77]")
    e("    v_lshlrev_b32 v2, 2, v2")
    e("    v_cndmask_b32 v3, 0, v3, vcc")
    e(f"    v_add_u32 v2, {SELFN}, v2")
    e("    ds_write_b32 v2, v3")
    e("    s_cbranch_scc0 S_NT")
    decode_key(113, 0, 0, 6)
    decode_data(113, 0, 0, 6)
    e("S_NT:")
    e("    s_cmp_eq_u32 s3, 12")
    e("    s_cbranch_scc1 S_DONE")
    e(f"    v_subrev_u32 v2, {13*64}, v0")
    e("    v_bfe_u32 v3, v2, 4, 1")
    e("    v_bfe_u32 v28, v2, 6, 1")
    e("    v_lshl_or_b32 v3, v28, 2, v3")
    e("    v_cmp_gt_u32 vcc, 128, v2")
    e("    v_xor_b32 v2, v2, v3")
    e("    v_lshlrev_b32 v2, 4, v2")
    e(f"    v_add_u32 v2, {WL}, v2")
    e("    v_xor_b32 v3, 64, v2")
    e("    s_mov_b32 exec_lo, 0xaaaaaaaa")
    e("    s_mov_b32 exec_hi, exec_lo")
    for b in (100, 104, 108):
        e(f"    v_swap_b32 v{b}, v{b+2}")
        e(f"    v_swap_b32 v{b+1}, v{b+3}")
    e("    s_mov_b64 exec, -1")
    e("    ds_write_b128 v2, v[100:103]")
    e("    ds_write_b128 v3, v[104:107] offset:3072")
    e("    s_and_saveexec_b64 s[76:77], vcc")
    e("    ds_write_b128 v2, v[108:111] offset:6144")
    e("    s_mov_b64 exec, -1")
    e("S_DONE:")
    stamp("s_done")


def barrier_addrs():
    e("    s_lshr_b32 s76, s2, 2")
    e("    s_lshl_b32 s76, s76, 7")
    e("    s_and_b32 s77, s2, 3")
    e("    s_lshl_b32 s77, s77, 2")
    e("    s_add_u32 s76, s76, s77")
    e(f"    s_add_u32 s76, s76, {WS_FLAG}")
    e("    v_lshlrev_b32 v2, 13, v0")
    e("    s_getreg_b32 s77, hwreg(HW_REG_XCC_ID, 0, 2)")
    e("    s_lshl_b32 s77, s77, 14")
    e("    s_add_u32 s77, s77, s80")
    e(f"    s_add_u32 s77, s77, {WS_FLAG}")
    e("    v_lshlrev_b32 v8, 7, v0")


COMMON = [0, 1, 2, 3, 4, 5]
RARE = [6, 7]
ACT = ["s[62:63]", "s[10:11]"]
WREG = [40, 44, 48, 52, 56, 60, 28, 116]


def w_frags():
    e("    v_xor_b32 v5, 8, v122")
    e("    v_xor_b32 v6, 64, v122")
    e("    v_xor_b32 v7, 72, v122")
    for s_ in range(2):
        for t in range(4):
            for u in range(2):
                r = WREG[s_ * 4 + t] + 2 * u
                e(f"    ds_read_b64_tr_b16 v[{r}:{r+1}], v{4+t if t else 122} offset:{4096*s_ + 512*u}")


def load_headers():
    e(f"    buffer_load_dwordx4 v[20:23], v93, {R(S_WS)}, s30 offen {SC}")
    e(f"    buffer_load_dwordx4 v[24:27], v93, {R(S_WS)}, s31 offen {SC}")


def phase_b():
    e("COLLECT:")
    load_headers()
    GP = I("gp", 0)
    if GP:
        e(f"    s_mov_b64 exec, {(1 << GP) - 1}")
        e(f"    buffer_load_dword v91, v8, {R(S_GAT)}, 0 offen offset:3072")
        e("    s_mov_b64 exec, -1")
    e("    s_mov_b32 s68, s29")
    e(f"    s_add_u32 s69, s68, {128*32768}")
    e(f"    s_mov_b32 s75, {SPINMAX}")
    e("    v_cmp_gt_u32 s[8:9], 4, v10")
    e("    s_bitcmp1_b32 s29, 12")
    e("    s_cselect_b64 s[82:83], -1, 0")
    if SP == 1:
        setup2()
    e("    s_waitcnt vmcnt(%d)" % (1 if GP else 0))
    e("C_CHK2:")
    e("    v_cndmask_b32 v4, v20, v22, s[82:83]")
    e("    v_cndmask_b32 v5, v24, v26, s[82:83]")
    e("    v_cmp_ne_u32_sdwa vcc, v21, v120 src0_sel:WORD_1 src1_sel:DWORD")
    e("    v_cmp_ne_u32_sdwa s[76:77], v23, v120 src0_sel:WORD_1 src1_sel:DWORD")
    e("    v_cmp_ne_u32_sdwa s[4:5], v25, v120 src0_sel:WORD_1 src1_sel:DWORD")
    e("    v_cmp_ne_u32_sdwa s[6:7], v27, v120 src0_sel:WORD_1 src1_sel:DWORD")
    e("    v_mov_b32_dpp v4, v4 quad_perm:[3,3,3,3] row_mask:0xf bank_mask:0xf")
    e("    v_mov_b32_dpp v5, v5 quad_perm:[3,3,3,3] row_mask:0xf bank_mask:0xf")
    e("    s_or_b64 vcc, vcc, s[76:77]")
    e("    s_or_b64 s[4:5], s[4:5], s[6:7]")
    e("    s_or_b64 vcc, vcc, s[4:5]")
    e("    s_cbranch_scc1 C_RETRY2")
    e("C_OK2:")
    stamp("b_gate")
    e("    v_mov_b32_dpp v4, v4 row_half_mirror row_mask:0xf bank_mask:0x5")
    e("    v_mov_b32_dpp v5, v5 row_half_mirror row_mask:0xf bank_mask:0x5")
    for i in range(2):
        e(f"    v_and_b32 v2, s49, v{4+i}")
        e(f"    v_bfe_u32 v3, v{4+i}, s26, 1")
        e("    v_bcnt_u32_b32 v2, v2, s26")
        e("    v_cmp_eq_u32 vcc, 1, v3")
        e(f"    v_lshl_add_u32 v{6+i}, v2, 6, v9")
        e("    s_or_b64 exec, vcc, s[8:9]")
        e(f"    buffer_load_dwordx4 v[{12+4*i}:{15+4*i}], v{6+i}, {R(S_WS)}, s{68+i} offen {SC}")
        e(f"    s_mov_b64 {ACT[i]}, exec")
        e("    s_mov_b64 exec, -1")
    stamp("b_iss")
    if I("pc", 1):
        e("    s_setprio 0")
    if SP >= 1:
        if SP == 2:
            setup2()
        e("    s_cmp_lg_u32 s71, 0")
        e("    s_cbranch_scc1 LATE_D")
        setup3()
        e("LATE_D:")
    e("    v_and_b32 v21, 0xffff, v21")
    e("    v_and_b32 v25, 0xffff, v25")
    e(f"    v_mul_u32_u24 v2, {TM}, v21")
    e(f"    v_mul_u32_u24 v3, {TM}, v25")
    e("    v_cmp_eq_u32 s[8:9], 7, v10")
    e(f"    s_mov_b32 s76, {0xf000 + 7}")
    e("    v_cmp_lt_u32 s[72:73], s76, v21")
    e("    v_cmp_lt_u32 vcc, s76, v25")
    e("    v_lshrrev_b32 v2, 20, v2")
    e("    v_lshrrev_b32 v3, 20, v3")
    e("    v_cmp_eq_u32 s[4:5], s2, v2")
    e("    v_cmp_eq_u32 s[6:7], s2, v3")
    e("    s_and_b64 s[72:73], s[72:73], s[8:9]")
    e("    s_and_b64 vcc, vcc, s[8:9]")
    e("    s_lshr_b64 s[72:73], s[72:73], 1")
    e("    s_or_b64 s[72:73], s[72:73], vcc")
    e(f"    s_mov_b64 {PEND(7)}, 0")
    e("    s_movk_i32 s70, 0xffff")
    e(f"    s_mov_b64 {PEND(6)}, s[12:13]")
    e("    s_mov_b64 exec, s[12:13]")
    e("    s_cbranch_execz C_NT")
    e("    ds_add_rtn_u32 v38, v46, v1")
    e("C_NT:")
    for i in range(2):
        base = 12 + 4 * i
        e(f"    s_mov_b64 exec, {ACT[i]}")
        e(f"    s_waitcnt vmcnt({1-i})")
        e(f"C_CHK{i}:")
        e(f"    v_cmp_ne_u32_sdwa vcc, v{base+3}, v127 src0_sel:BYTE_3 src1_sel:DWORD")
        e(f"    s_cbranch_vccnz C_RETRY{i}")
        e(f"C_OK{i}:")
        stamp("b_lines" if i == 0 else "b_lines1")
        for k in range(3):
            e(f"    v_cmp_ne_u16 {PEND(3*i+k)}, s70, v{base+k}")
        if i == 1 and EARLY:
            own_x()
        for k in range(3):
            decode_key(base + k, base + 3, k, 3 * i + k)
        for k in range(3):
            s_ = 3 * i + k
            e(f"    s_mov_b64 exec, {PEND(s_)}")
            e(f"    ds_add_rtn_u32 v{32+s_}, v{40+s_}, v1")
    e("    s_mov_b64 exec, -1")
    if not I("ddl", 1):
        for i in range(2):
            base = 12 + 4 * i
            for k in range(3):
                decode_data(base + k, base + 3, k, 3 * i + k)
    else:
        e("    s_or_b32 s71, s71, 32")
    e("    s_mov_b64 s[68:69], 0")
    e("    s_mov_b64 s[82:83], 0")
    e("    s_mov_b64 s[84:85], 0")
    e("    s_or_b64 s[76:77], s[4:5], s[6:7]")
    e("    s_or_b64 s[76:77], s[76:77], s[72:73]")
    e("    s_cbranch_scc1 EXTRA0")
    e("CDONE:")
    e("    s_lshl_b32 s75, s3, 2")
    e("    s_add_u32 s75, s75, 3")
    e("    s_waitcnt lgkmcnt(0)")
    stamp("b_pre1")
    e("    s_barrier")
    stamp2("b_bar1", "")
    e("    ds_read_b128 v[4:7], v90")
    if not EARLY:
        own_x()
    e("    s_cmp_lg_u32 s3, 15")
    e("    s_cbranch_scc1 PT_D")
    e("    s_lshl_b32 s76, s2, 8")
    e(f"    s_add_u32 s76, s76, {WS_FLAG}")
    e("    v_lshlrev_b32 v2, 7, v92")
    e("    s_mov_b64 exec, 3")
    e(f"    buffer_load_dword v91, v2, {R(S_WS)}, s76 offen sc1")
    e("    s_mov_b64 exec, -1")
    e("PT_D:")
    if I("ddl", 1):
        e("    s_bitcmp0_b32 s71, 5")
        e("    s_cbranch_scc1 DD_D")
        e("    s_andn2_b32 s71, s71, 32")
        for i in range(2):
            base = 12 + 4 * i
            for k in range(3):
                decode_data(base + k, base + 3, k, 3 * i + k)
        e("DD_D:")
    e("    s_waitcnt lgkmcnt(0)")
    e("    v_add_u32 v5, v4, v5")
    e("    v_add3_u32 v7, v5, v6, v7")
    e("    v_add_u32 v6, v5, v6")
    e("    s_nop 0")
    e("    v_and_b32_dpp v28, v7, v95 quad_perm:[0,0,0,0] row_mask:0xf bank_mask:0xf")
    e("    v_and_b32_dpp v29, v7, v96 quad_perm:[1,1,1,1] row_mask:0xf bank_mask:0xf")
    e("    v_and_b32_dpp v30, v7, v97 quad_perm:[2,2,2,2] row_mask:0xf bank_mask:0xf")
    e("    v_add3_u32 v28, v28, v29, v30")
    e("    v_add_u32 v7, v28, v7")
    e("    v_lshl_add_u32 v28, v28, 2, v98")
    e(f"    v_cmp_lt_u32 vcc, {CAPT}, v7")
    e("    v_lshl_add_u32 v29, v4, 2, v28")
    e("    v_lshl_add_u32 v30, v5, 2, v28")
    e("    v_lshl_add_u32 v31, v6, 2, v28")
    e("    v_readlane_b32 s74, v7, s75")
    e("    ds_write_b128 v90, v[28:31] offset:1024")
    e(f"    s_or_b64 s[76:77], {PEND(6)}, {PEND(7)}")
    e("    s_cbranch_scc0 P_NR")
    for s in RARE:
        e(f"    s_mov_b64 exec, {PEND(s)}")
        e(f"    ds_read_b32 v{20+s}, v{40+s} offset:1024")
    e("P_NR:")
    for s in COMMON:
        e(f"    s_mov_b64 exec, {PEND(s)}")
        e(f"    ds_read_b32 v{20+s}, v{40+s} offset:1024")
    e(f"    s_min_u32 s74, s74, {CAPT}")
    e("    s_cbranch_vccnz SLOWW")
    for s in COMMON:
        e(f"    s_mov_b64 exec, {PEND(s)}")
        e(f"    s_waitcnt lgkmcnt({len(COMMON)-1})")
        e(f"    v_lshl_add_u32 v{20+s}, v{32+s}, 2, v{20+s}")
        e(f"    ds_write2st64_b32 v{20+s}, v{48+s}, v{56+s} offset0:0 offset1:5")
    e("    s_cmp_eq_u64 s[76:77], 0")
    e("    s_cbranch_scc1 P_NW")
    for s in RARE:
        e(f"    s_mov_b64 exec, {PEND(s)}")
        e(f"    v_lshl_add_u32 v{20+s}, v{32+s}, 2, v{20+s}")
        e(f"    ds_write2st64_b32 v{20+s}, v{48+s}, v{56+s} offset0:0 offset1:5")
    e("P_NW:")
    for s in range(8):
        e(f"    s_mov_b64 {PEND(s)}, 0")
    e("WDONE:")
    e("    s_sub_u32 s76, 0, s74")
    e("    s_and_b32 s76, s76, 31")
    e("    s_bfm_b64 exec, s76, 0")
    e("    s_lshl_b32 s77, s74, 2")
    e("    v_add_u32 v2, s77, v123")
    e(f"    v_mov_b32 v3, {PADV}")
    e("    ds_write2st64_b32 v2, v3, v3 offset0:0 offset1:5")
    e("    s_mov_b64 exec, -1")
    e(f"    v_mov_b32 v4, {MORE}")
    e("    s_lshl_b32 s76, s3, 6")
    e(f"    s_add_u32 s76, s76, {SELFN}")
    e("    v_lshl_add_u32 v5, v92, 2, s76")
    e("    ds_read_b32 v126, v5")
    e("    s_waitcnt lgkmcnt(0)")
    e("    s_barrier")
    stamp2("b_bar2", "")
    e("    ds_read_b32 v8, v4")


def main_loop():
    def next_k():
        if I("kmin", 0):
            e("    s_lshl_b32 s11, s10, 2")
            e("    s_sub_i32 s8, s9, s11")
            e("    s_add_i32 s8, s8, 4")
            e(f"    s_max_i32 s8, s8, {I('kmin', 0)}")
            e("    s_min_i32 s8, s8, 4")
        elif I("krn", 0):
            e("    s_mov_b32 s8, 1")
            e("    s_lshl_b32 s76, s9, 2")
            e(f"    s_mul_i32 s11, s10, {4 + I('krn', 0)}")
            e("    s_lshl_b32 s77, s10, 2")
            e("    s_cmp_ge_i32 s76, s11")
            e("    s_addc_u32 s8, s8, 0")
            e("    s_add_i32 s11, s11, s77")
            e("    s_cmp_ge_i32 s76, s11")
            e("    s_addc_u32 s8, s8, 0")
            e("    s_add_i32 s11, s11, s77")
            e("    s_cmp_ge_i32 s76, s11")
            e("    s_addc_u32 s8, s8, 0")
        elif I("kfl", 1):
            e("    s_mov_b32 s8, 1")
            e("    s_lshl_b32 s11, s10, 1")
            e("    s_cmp_ge_i32 s9, s11")
            e("    s_addc_u32 s8, s8, 0")
            e("    s_add_i32 s11, s11, s10")
            e("    s_cmp_ge_i32 s9, s11")
            e("    s_addc_u32 s8, s8, 0")
            e("    s_add_i32 s11, s11, s10")
            e("    s_cmp_ge_i32 s9, s11")
            e("    s_addc_u32 s8, s8, 0")
        else:
            e("    s_mov_b32 s8, 1")
            e("    s_cmp_gt_i32 s9, s10")
            e("    s_addc_u32 s8, s8, 0")
            e("    s_lshl_b32 s11, s10, 1")
            e("    s_cmp_gt_i32 s9, s11")
            e("    s_addc_u32 s8, s8, 0")
            e("    s_add_i32 s11, s11, s10")
            e("    s_cmp_gt_i32 s9, s11")
            e("    s_addc_u32 s8, s8, 0")
        e("    s_min_i32 s8, s8, s9")
        e("    s_sub_i32 s9, s9, s8")
        e("    s_sub_i32 s10, s10, 1")
        e("    s_lshl_b32 s11, s8, 5")

    def read_recs(a, b, adv):
        e(f"    ds_read2_b32 v[100:101], v{a} offset0:0 offset1:8")
        e(f"    ds_read2_b32 v[102:103], v{a} offset0:16 offset1:24")
        e(f"    ds_read_b128 v[104:107], v{b}")
        e(f"    ds_read_b128 v[108:111], v{b} offset:16")
        e(f"    v_add_u32 v93, {adv}, v{a}")
        e(f"    v_add_u32 v94, {adv}, v{b}")

    def dma(i):
        e(f"    buffer_load_dwordx4 v{100+i}, {R(S_GAT)}, 0 offen offset:{1024*i} {OPT.get('gfl', '')} lds")

    def addr():
        for i in range(4):
            e(f"    v_add_u32 v{100+i}, v{100+i}, v{80+i}")

    REP = I("rep", 1)

    def remap(a, t, u):
        e(f"    v_lshrrev_b32 v{t}, 7, v{a}")
        e(f"    v_mul_u32_u24 v{t}, {TM}, v{t}")
        e(f"    v_bfe_u32 v{u}, v{a}, {I('rsh', 13)}, {I('rbits', 2)}")
        e(f"    v_bfe_u32 v{t}, v{t}, 20, 1")
        e(f"    v_cmp_le_u32 vcc, {REP}, v{u}")
        e(f"    v_xor_b32 v{t}, s81, v{t}")
        e(f"    v_and_b32 v{u}, 0xffffe000, v{a}")
        e(f"    v_cndmask_b32 v{t}, 0, v{t}, vcc")
        e(f"    v_add_u32 v{a}, v{a}, v{u}")
        e(f"    v_bfe_u32 v{u}, v{a}, 21, 1")
        e(f"    v_xor_b32 v{t}, v{t}, v{u}")
        e(f"    v_lshlrev_b32 v{t}, 13, v{t}")
        e(f"    v_xor_b32 v{t}, s80, v{t}")
        e(f"    v_xor_b32 v{a}, v{a}, v{t}")

    def rewrite_list(lbl):
        for n in range(5):
            e(f"    ds_read_b32 v{32+n}, v123 offset:{256*n}")
        for n in range(5):
            e(f"    s_waitcnt lgkmcnt(4)")
            remap(32 + n, 2, 3)
            e(f"    ds_write_b32 v123, v{32+n} offset:{256*n}")

    def build_b(w):
        for j in range(8):
            e(f"    v_bfe_i32 v{32+j}, v{104+j}, v92, {w}")
        for j in range(8):
            e(f"    v_and_b32 v{32+j}, v{32+j}, v{104+j}")
        for j in range(4):
            e(f"    v_perm_b32 v{112+j}, v{32+2*j+1}, v{32+2*j}, s1")

    def mfmas():
        for t in range(4):
            e(f"    v_mfma_f32_16x16x32_bf16 v[{64+4*t}:{67+4*t}], v[{12+4*t}:{15+4*t}], v[112:115], v[{64+4*t}:{67+4*t}]")

    global REWRITE
    REWRITE = rewrite_list
    e("MAIN:")
    e("    s_cmp_eq_u32 s74, 0")
    e("    s_cbranch_scc1 EMPTY")
    e("    s_bitcmp1_b32 s71, 0")
    e("    s_cbranch_scc1 REMAP2")
    e("MAIN1:")
    read_recs(88, 89, 128)
    e("    s_waitcnt lgkmcnt(2)")
    addr()
    e("MAIN2:")
    PM = I("pm", 3)
    if PM == 1:
        prio_by_age("PRIOD")
    if PM == 2:
        e("    s_cmp_lt_u32 s3, 8")
        e("    s_cbranch_scc1 PRIOE")
        e("    s_setprio 1")
        e("PRIOE:")
    for i in range(4):
        dma(i)
    stamp2("m_dma", "m_dma2")
    if PM in (0, 2):
        prio_by_age("PRIOD")
    e("    s_add_u32 s9, s74, 7")
    e("    s_lshr_b32 s9, s9, 3")
    e("    s_sub_i32 s9, s9, 4")
    e("    s_max_i32 s9, s9, 0")
    if OPT.get("nbs"):
        a_, b_ = [int(v) for v in OPT["nbs"].split(",")]
        e(f"    s_bitcmp1_b32 {OPT.get('nbr', 's26')}, {I('nbb', 0)}")
        e(f"    s_cselect_b32 s10, {b_-1}, {a_-1}")
    elif I("nb2", NB) != NB:
        e("    s_bitcmp1_b32 s71, 0")
        e(f"    s_cselect_b32 s10, {I('nb2', NB)-1}, {NB-1}")
    else:
        e(f"    s_mov_b32 s10, {NB-1}")
    next_k()
    e("    s_waitcnt lgkmcnt(0)")
    build_b("1")
    read_recs(93, 94, "s11")
    e("    s_bitcmp1_b32 s71, 3")
    e("    s_cbranch_scc1 LOOP")
    e("    s_or_b32 s71, s71, 8")
    if I("wearly", 0):
        e("    v_readfirstlane_b32 s75, v8")
        e("    s_cmp_lg_u32 s75, 0")
        e("    s_cbranch_scc1 NOWF")
        e("    s_or_b32 s71, s71, 16")
        w_frags()
        e("NOWF:")
    own_addr("PRB_M")
    e("    s_waitcnt vmcnt(4)")
    e("PRB_M2:")
    stamp("m_pre")
    self_init(64)
    e("LOOP:")
    e("    s_waitcnt lgkmcnt(2)")
    addr()
    e("    v_cmp_gt_u32 vcc, s8, v11")
    if PM == 4:
        prio_by_age("PRIOD")
    e("    s_waitcnt vmcnt(0)")
    for t in range(4):
        for u in range(2):
            e(f"    ds_read_b64_tr_b16 v[{12+4*t+2*u}:{13+4*t+2*u}], v{84+t} offset:{512*u}")
    e("    s_cmp_eq_u32 s8, 0")
    e("    v_cndmask_b32 v91, 0, v1, vcc")
    e("    s_waitcnt lgkmcnt(0)")
    e("    s_cbranch_scc1 LAST")
    dma(0)
    e("    s_cmp_eq_u32 s8, 1")
    e("    s_cbranch_scc1 DMAD")
    dma(1)
    e("    s_cmp_eq_u32 s8, 2")
    e("    s_cbranch_scc1 DMAD")
    dma(2)
    e("    s_cmp_eq_u32 s8, 3")
    e("    s_cbranch_scc1 DMAD")
    dma(3)
    e("DMAD:")
    e("    s_cmp_eq_u32 s10, s28")
    e("    s_cbranch_scc1 VOTES")
    e("VOTED:")
    if PM == 4:
        e("    s_setprio 0")
    mfmas()
    next_k()
    if not I("nob", 0):
        build_b("v91")
    for _ in range(I("padv", 0)):
        e("    v_mov_b32 v2, v3")
    for _ in range(I("pads", 0)):
        e("    s_mov_b32 s76, s77")
    read_recs(93, 94, "s11")
    e("    s_branch LOOP")
    e("LAST:")
    mfmas()
    e("MAINDONE:")
    e(f"    v_mov_b32 v7, {CFLAG}")
    e("    ds_read_b32 v7, v7")
    e("    v_readfirstlane_b32 s75, v8")
    e("    s_cmp_lg_u32 s75, 0")
    e("    s_cbranch_scc1 AGAIN")

    stamp2("h1_done", "h2_done")
    e("    s_nop 2")
    for t in range(4):
        e(f"    v_cvt_pk_bf16_f32 v{12+2*t}, v{64+4*t}, v{65+4*t}")
        e(f"    v_cvt_pk_bf16_f32 v{13+2*t}, v{66+4*t}, v{67+4*t}")
    e("    s_mov_b64 exec, s[16:17]")
    e("    v_swap_b32 v12, v14")
    e("    v_swap_b32 v13, v15")
    e("    v_swap_b32 v16, v18")
    e("    v_swap_b32 v17, v19")
    e("    s_bitcmp1_b32 s71, 0")
    e("    s_cbranch_scc1 FINAL")
    e("    s_mov_b64 exec, -1")
    e("    s_waitcnt lgkmcnt(0)")
    e("    v_readfirstlane_b32 s80, v7")
    e("    s_and_b32 s81, s2, 1")
    e("    s_cmp_eq_u32 s80, 0")
    e("    s_cbranch_scc1 E_NOC")
    e("E_HAVEC:")
    e("    s_xor_b32 s80, s80, s81")
    e("    s_and_b32 s80, s80, 1")
    e("    s_lshl_b32 s80, s80, 13")
    e("    v_xor_b32 v9, s80, v9")
    if I("sb", 0) & 1:
        e("    s_barrier")
    e("    s_mov_b64 exec, s[14:15]")
    e(f"    buffer_store_dwordx4 v[12:15], v9, {R(S_STO)}, 0 offen {SC}")
    e(f"    buffer_store_dwordx4 v[16:19], v9, {R(S_STO)}, 0 offen offset:64 {SC}")
    e("    v_xor_b32 v20, 0x2000, v9")
    if I("sb", 0) & 4:
        e("    s_barrier")
    e("    s_and_b64 exec, exec, s[78:79]")
    e("    s_cbranch_execz E_NOREP")
    e(f"    buffer_store_dwordx4 v[12:15], v20, {R(S_STO)}, 0 offen {SC}")
    e(f"    buffer_store_dwordx4 v[16:19], v20, {R(S_STO)}, 0 offen offset:64 {SC}")
    e("E_NOREP:")
    e("    s_setprio 0")
    e("    s_mov_b64 exec, -1")
    stamp("h1_st")
    BS = I("bsplit", 0)

    def book1():
        e(f"    s_mov_b64 s[{S_GAT}:{S_GAT+1}], s[{S_GH}:{S_GH+1}]")
        e(f"    s_mov_b32 s{S_GAT+2}, {H1BYTES + 3072}")
        e("    s_or_b32 s71, s71, 1")
        if BS >= 1:
            rewrite_list("RW1")
        if BS >= 2:
            self_init(12)

    def book2():
        if BS < 2:
            self_init(12)
        e("    s_bitcmp1_b32 s71, 1")
        e("    s_cbranch_scc1 E_IRR")
        e("    s_or_b32 s71, s71, 16")
        w_frags()
        if BS < 1:
            rewrite_list("RW1")
        read_recs(88, 89, 128)
        e("    s_waitcnt lgkmcnt(2)")
        addr()
        e("E_BAR:")
        stamp("g2_bk")

    def book():
        if BS < 3:
            book2()
    book1()
    if BS >= 3:
        book2()
    barrier_addrs()
    e("    s_waitcnt vmcnt(0)")
    stamp("g2_ack")
    e("    s_barrier")
    e("    s_cmp_lg_u32 s3, 0")
    e("    s_cbranch_scc1 G2_NOF")
    stamp("g2_arr")
    e("    s_mov_b64 exec, 0xff")
    e(f"    buffer_store_dword v125, v2, {R(S_WS)}, s76 offen sc1")
    e("G2_NOF:")
    stamp("g2_b1")
    def own_h1():
        e("    s_mov_b32 exec_hi, 0")
        e("    s_and_b32 exec_lo, s14, 0xffff")
        e(f"    buffer_load_dword v91, v9, {R(S_STO)}, 0 offen sc1")
        e("    s_mov_b64 exec, -1")
    OL = I("ownlate", 9)
    if OL == 0:
        own_h1()
    e("    s_mov_b64 exec, -1")
    e("    s_cmp_lg_u32 s3, 0")
    e("    s_cbranch_scc1 G2_NP")
    e("    s_setprio 3")
    e("G2_NP:")
    book()
    if OL == 1:
        own_h1()
    if OL == 2:
        e("    v_mov_b32 v2, 0")
        e("    s_lshr_b32 s76, s2, 2")
        e("    s_lshl_b32 s76, s76, 7")
        e("    s_add_u32 s76, s76, s77")
        e("    s_and_b32 s75, s2, 3")
        e("    s_lshl_b32 s75, s75, 2")
        e("    s_add_u32 s76, s76, s75")
        e(f"    s_mov_b32 s75, {SPINMAX}")
        e("G2_P0:")
        e(f"    buffer_load_dword v4, v2, {R(S_WS)}, s76 offen sc1")
        e("    s_sub_u32 s75, s75, 1")
        e("    s_cmp_eq_u32 s75, 0")
        e("    s_waitcnt vmcnt(0)")
        e("    s_cbranch_scc1 G2_P1")
        e("    v_cmp_ne_u32 vcc, v4, v125")
        e("    s_cbranch_vccnz G2_P0")
        e("G2_P1:")
        own_h1()
    if I("xp", 0):
        e("    s_sub_u32 s75, s3, 2")
        e(f"    s_cmp_ge_u32 s75, {I('xp', 0)}")
        e("    s_cbranch_scc1 G2_NX")
        e("    s_xor_b32 s76, s2, 1")
        e(f"    s_mul_i32 s70, s76, {16*50006}")
        e("    s_lshr_b32 s70, s70, 12")
        e("    s_add_u32 s70, s70, 2")
        e("    s_lshl_b32 s75, s75, 6")
        e("    s_add_u32 s70, s70, s75")
        e("    v_and_b32 v4, 63, v0")
        e("    v_add_lshl_u32 v4, v4, s70, 7")
        remap(4, 2, 3)
        e("    s_lshr_b32 s70, s76, 2")
        e("    s_lshl_b32 s70, s70, 7")
        e("    s_and_b32 s76, s76, 3")
        e("    s_lshl2_add_u32 s70, s76, s70")
        e("    s_add_u32 s70, s70, s77")
        e("    v_mov_b32 v2, 0")
        e(f"    s_mov_b32 s75, {SPINMAX}")
        e("G2_XP:")
        e(f"    buffer_load_dword v5, v2, {R(S_WS)}, s70 offen sc1")
        e("    s_sub_u32 s75, s75, 1")
        e("    s_cmp_eq_u32 s75, 0")
        e("    s_waitcnt vmcnt(0)")
        e("    s_cbranch_scc1 G2_WAIT")
        e("    v_cmp_ne_u32 vcc, v5, v125")
        e("    s_cbranch_vccnz G2_XP")
        e(f"    buffer_load_dword v91, v4, {R(S_STO)}, 0 offen sc1")
        e("G2_NX:")
    e("    s_cmp_lg_u32 s3, 0")
    e("    s_cbranch_scc1 G2_WAIT")
    e(f"    s_mov_b32 s75, {SPINMAX}")
    e("G2_POLL:")
    e(f"    buffer_load_dwordx4 v[4:7], v8, {R(S_WS)}, s77 offen sc1")
    e("    s_sub_u32 s75, s75, 1")
    e("    s_cmp_eq_u32 s75, 0")
    e("    s_waitcnt vmcnt(0)")
    e("    s_cbranch_scc1 G2_WAIT")
    e("    v_xor_b32 v4, v4, v125")
    e("    v_xor_b32 v5, v5, v125")
    e("    v_xor_b32 v6, v6, v125")
    e("    v_xor_b32 v7, v7, v125")
    e("    v_or3_b32 v4, v4, v5, v6")
    e("    v_or_b32 v4, v4, v7")
    e("    v_cmp_ne_u32 vcc, 0, v4")
    if I("shrink", 1):
        e("    s_and_b64 exec, exec, vcc")
        e("    s_cbranch_scc1 G2_POLL")
    else:
        e("    s_cbranch_vccnz G2_POLL")
    e("G2_WAIT:")
    e("    s_mov_b64 exec, -1")
    if I("pp", 1):
        e("    s_setprio 0")
    e("    v_mov_b32 v8, 0")
    e("    s_and_b32 s76, s71, 2")
    e("    s_cselect_b32 s76, 0, s74")
    e("    s_cmp_lg_u32 s76, 0")
    e("    s_barrier")
    stamp("g2_exit")
    e("    s_cbranch_scc1 MAIN2")
    e("    s_bitcmp0_b32 s71, 1")
    e("    s_cbranch_scc1 MAIN")
    e("    s_branch COLLECT")
    e("FINAL:")
    MIX = I("mix", 0)
    if MIX:
        e("    s_mov_b64 exec, 1")
        e(f"    v_mov_b32 v2, {MORE+4}")
        e("    ds_add_rtn_u32 v2, v2, v1")
    e("    s_mov_b64 exec, -1")
    e("    s_bitcmp0_b32 s71, 4")
    e("    s_cbranch_scc1 F_GETW")
    e("F_HAVEW:")
    for t in range(4):
        w = WREG[t]
        e(f"    v_mfma_f32_16x16x32_bf16 v[{64+4*t}:{67+4*t}], v[{w}:{w+3}], v[12:15], 0")
    for t in range(4):
        w = WREG[4 + t]
        e(f"    v_mfma_f32_16x16x32_bf16 v[{64+4*t}:{67+4*t}], v[{w}:{w+3}], v[16:19], v[{64+4*t}:{67+4*t}]")
    e("    s_nop 4")
    for t in range(4):
        if t:
            e("    s_nop 1")
        e(f"    v_cvt_pk_bf16_f32 v{12+2*t}, v{64+4*t}, v{65+4*t}")
        e(f"    v_cvt_pk_bf16_f32 v{13+2*t}, v{66+4*t}, v{67+4*t}")
    if MIX:
        e("    s_waitcnt lgkmcnt(0)")
        e("    v_readfirstlane_b32 s76, v2")
        e("    s_mov_b64 exec, s[14:15]")
        e(f"    s_cmp_lt_u32 s76, {MIX}")
        e("    s_cbranch_scc1 F_WT")
        e(f"    buffer_store_dwordx4 v[12:15], v121, {R(S_OUT)}, 0 offen {OPT.get('mixf', '')}")
        e(f"    buffer_store_dwordx4 v[16:19], v121, {R(S_OUT)}, 0 offen offset:64 {OPT.get('mixf', '')}")
        e("    s_branch F_ST")
        e("F_WT:")
    if I("sb", 0) & 2:
        e("    s_barrier")
    e("    s_mov_b64 exec, s[14:15]")
    e(f"    buffer_store_dwordx4 v[12:15], v121, {R(S_OUT)}, 0 offen {ST_OUT}")
    e(f"    buffer_store_dwordx4 v[16:19], v121, {R(S_OUT)}, 0 offen offset:64 {ST_OUT}")
    e("F_ST:")
    stamp_out()
    e("END:")
    e("    s_endpgm")


def out_of_line():
    for i in range(2):
        base = 12 + 4 * i
        e(f"C_RETRY{i}:")
        e("    s_lshr_b64 s[76:77], vcc, 1")
        e("    s_or_b64 vcc, vcc, s[76:77]")
        e("    s_lshr_b64 s[76:77], vcc, 2")
        e("    s_or_b64 vcc, vcc, s[76:77]")
        e("    s_and_b32 vcc_lo, vcc_lo, 0x11111111")
        e("    s_and_b32 vcc_hi, vcc_hi, 0x11111111")
        e("    s_mul_i32 exec_lo, vcc_lo, 15")
        e("    s_mul_i32 exec_hi, vcc_hi, 15")
        if I("rbo", 0):
            e(f"    s_sleep {I('rbo', 0)}")
        e(f"    buffer_load_dwordx4 v[{base}:{base+3}], v{6+i}, {R(S_WS)}, s{68+i} offen {SC}")
        e(f"    s_mov_b64 exec, {ACT[i]}")
        e("    s_sub_u32 s75, s75, 1")
        e("    s_cmp_eq_u32 s75, 0")
        e("    s_waitcnt vmcnt(0)")
        e(f"    s_cbranch_scc0 C_CHK{i}")
        e("    s_mov_b32 s75, 1000")
        if DIAG:
            e(f"    s_or_b32 s48, s48, {1 << i}")
            e("    s_mov_b64 s[50:51], vcc")
        e(f"    s_branch C_OK{i}")
    e("C_RETRY2:")
    if I("bo", 0):
        e(f"    s_sleep {I('bo', 0)}")
    load_headers()
    e("    s_sub_u32 s75, s75, 1")
    e("    s_cmp_eq_u32 s75, 0")
    e("    s_waitcnt vmcnt(0)")
    e("    s_cbranch_scc0 C_CHK2")
    e("    s_mov_b32 s75, 1000")
    if DIAG:
        e("    s_or_b32 s48, s48, 4")
        e("    s_mov_b64 s[50:51], vcc")
    e("    s_branch C_OK2")
    probe()
    e("VOTES:")
    e("    s_sub_u32 s28, s28, 1")
    e("    s_bitcmp1_b32 s71, 7")
    e("    s_cbranch_scc0 VOTEL")
    e("    v_cmp_ne_u32 vcc, v4, v125")
    e("    s_cbranch_vccnz VOTEL")
    vote_count()
    e("    s_branch VOTED")
    e("VOTEL:")
    e("    s_or_b32 s71, s71, 128")
    vote_load()
    e("    s_branch VOTED")
    e("E_NOC:")
    e(f"    s_mov_b32 s75, {SPINMAX}")
    e("    s_cmp_lg_u32 s3, 1")
    e("    s_cbranch_scc1 E_SPIN")
    e("E_VP:")
    vote_load()
    e("    s_sub_u32 s75, s75, 1")
    e("    s_cmp_eq_u32 s75, 0")
    e("    s_waitcnt vmcnt(0)")
    e("    s_cbranch_scc1 E_VC")
    e("    v_cmp_ne_u32 vcc, v4, v125")
    e("    s_cbranch_vccnz E_VP")
    e("E_VC:")
    vote_count()
    e("E_SPIN:")
    e(f"    v_mov_b32 v7, {CFLAG}")
    e("    ds_read_b32 v7, v7")
    e("    s_waitcnt lgkmcnt(0)")
    e("    v_readfirstlane_b32 s80, v7")
    e("    s_cmp_eq_u32 s80, 0")
    e("    s_cbranch_scc1 E_SPIN")
    e("    s_branch E_HAVEC")
    a_overflow()
    e("AGAIN:")
    e("    s_setprio 0")
    e("    s_or_b32 s71, s71, 2")
    e("    s_barrier")
    zero_b_counters((CFLAG - CNTB) // 4)
    e("    s_waitcnt lgkmcnt(0)")
    e("    s_barrier")
    for s in range(7):
        e(f"    s_mov_b64 exec, {PEND(s)}")
        e(f"    ds_add_rtn_u32 v{32+s}, v{40+s}, v1")
    e("    s_mov_b64 exec, -1")
    e("    v_lshrrev_b32 v93, 3, v0")
    e("    v_lshlrev_b32 v93, 7, v93")
    e("    v_lshl_add_u32 v93, v10, 4, v93")
    load_headers()
    e("    s_waitcnt vmcnt(0)")
    for r in (21, 23, 25, 27):
        e(f"    v_and_b32 v{r}, 0xffff, v{r}")
    e("    s_branch EXTRA")
    e("EXTRA0:")
    e("    s_cmp_eq_u64 s[72:73], 0")
    e("    s_cbranch_scc1 EXTRA")
    e("    v_and_b32 v23, 0xffff, v23")
    e("    v_and_b32 v27, 0xffff, v27")
    e(f"    v_mul_u32_u24 v2, {TM}, v23")
    e(f"    v_mul_u32_u24 v3, {TM}, v27")
    e("    v_lshrrev_b32 v2, 20, v2")
    e("    v_lshrrev_b32 v3, 20, v3")
    e("    v_cmp_eq_u32 s[82:83], s2, v2")
    e("    v_cmp_eq_u32 s[84:85], s2, v3")
    e("EXTRA:")
    CAND = (("s[4:5]", 20), ("s[6:7]", 24), ("s[82:83]", 22), ("s[84:85]", 26))
    for n, (m, r) in enumerate(CAND):
        e(f"    s_andn2_b64 exec, {m}, {PEND(7)}")
        e(f"    s_cbranch_execz X7_{n}")
        e(f"    s_andn2_b64 {m}, {m}, exec")
        e(f"    s_or_b64 {PEND(7)}, {PEND(7)}, exec")
        decode_full(r, r + 1, 7)
        e(f"X7_{n}:")
    for n, (m, r) in enumerate(CAND):
        e(f"    s_andn2_b64 exec, {m}, {PEND(6)}")
        e("    s_andn2_b64 exec, exec, s[12:13]")
        e(f"    s_cbranch_execz X6_{n}")
        e(f"    s_andn2_b64 {m}, {m}, exec")
        e(f"    s_or_b64 {PEND(6)}, {PEND(6)}, exec")
        decode_full(r, r + 1, 6)
        e("    ds_add_rtn_u32 v38, v46, v1")
        e(f"X6_{n}:")
    e("    s_mov_b64 exec, -1")
    e("    s_or_b64 s[76:77], s[4:5], s[6:7]")
    e("    s_or_b64 s[76:77], s[76:77], s[82:83]")
    e("    s_or_b64 s[76:77], s[76:77], s[84:85]")
    e("    s_cbranch_scc1 OVFULL")
    e("    s_mov_b32 s75, 0")
    e("OVL:")
    e("    s_cmp_lt_u32 s68, s69")
    e("    s_cbranch_scc1 OVLOAD")
    e("    s_cmp_eq_u64 s[72:73], 0")
    e("    s_cbranch_scc1 OVDONE")
    e("    s_ff1_i32_b64 s76, s[72:73]")
    e("    s_bitset0_b64 s[72:73], s76")
    e("    s_or_b32 s77, s76, 7")
    e("    v_readlane_b32 s68, v21, s77")
    e("    v_readlane_b32 s69, v25, s77")
    e("    s_sub_u32 s75, 63, s77")
    e("    s_bitcmp1_b32 s76, 0")
    e("    s_cselect_b32 s69, s69, s68")
    e("    s_and_b32 s69, s69, 0xfff")
    e(f"    s_min_u32 s69, s69, {CHMAX}")
    e("    s_and_b32 s77, s76, 1")
    e("    s_lshl_b32 s77, s77, 7")
    e("    s_lshr_b32 s76, s76, 3")
    e("    s_add_u32 s76, s76, s77")
    e("    s_lshl_b32 s77, s3, 3")
    e("    s_add_u32 s76, s76, s77")
    e("    s_lshl_b32 s70, s76, 15")
    e(f"    s_mov_b32 s68, {NINL}")
    e("    s_branch OVL")
    e("OVLOAD:")
    e("    v_add_u32 v4, s75, v0")
    e("    v_and_b32 v4, 63, v4")
    e("    v_add_u32 v4, s68, v4")
    e("    v_lshlrev_b32 v5, 3, v4")
    e(f"    buffer_load_dwordx2 v[28:29], v5, {R(S_OVF)}, s70 offen {SC}")
    e("    s_waitcnt vmcnt(0)")
    e(f"    v_mul_u32_u24 v30, {TM}, v29")
    e("    v_lshrrev_b32 v31, 20, v30")
    e("    v_cmp_gt_u32 vcc, s69, v4")
    e("    v_cmp_eq_u32 s[76:77], s2, v31")
    e("    s_and_b64 vcc, s[76:77], vcc")
    e(f"    s_and_b64 s[76:77], vcc, {PEND(7)}")
    e("    s_cbranch_scc1 OVFULL")
    e(f"    s_or_b64 {PEND(7)}, {PEND(7)}, vcc")
    e("    s_add_u32 s68, s68, 64")
    e("    s_mov_b64 exec, vcc")
    decode_full(28, 29, 7)
    e("    s_mov_b64 exec, -1")
    e("    s_branch OVL")
    e("OVFULL:")
    e(f"    v_mov_b32 v2, {MORE}")
    e("    ds_write_b32 v2, v1")
    e("OVDONE:")
    e(f"    s_mov_b64 exec, {PEND(7)}")
    e("    ds_add_rtn_u32 v39, v47, v1")
    e("    s_mov_b64 exec, -1")
    e("    s_branch CDONE")
    e("SLOWW:")
    e("    s_waitcnt lgkmcnt(0)")
    for s in range(8):
        e(f"    s_mov_b64 exec, {PEND(s)}")
        e(f"    v_lshl_add_u32 v{20+s}, v{32+s}, 2, v{20+s}")
        e(f"    v_subrev_u32 v3, s0, v{40+s}")
        e("    v_lshrrev_b32 v3, 6, v3")
        e(f"    v_mul_u32_u24 v3, {TSTR}, v3")
        e(f"    v_add_u32 v3, {LISTS + CAPT*4}, v3")
        e(f"    v_cmp_lt_u32 vcc, v{20+s}, v3")
        e(f"    s_andn2_b64 {PEND(s)}, exec, vcc")
        e("    s_mov_b64 exec, vcc")
        e(f"    ds_write2st64_b32 v{20+s}, v{48+s}, v{56+s} offset0:0 offset1:5")
    e("    s_mov_b64 exec, -1")
    e(f"    v_mov_b32 v3, {MORE}")
    e("    ds_write_b32 v3, v1")
    e("    s_branch WDONE")
    e("REMAP2:")
    REWRITE("RW2")
    e("    s_branch MAIN1")
    e("E_IRR:")
    e("    s_mov_b32 s70, s77")
    zero_b_counters(256)
    e("    s_mov_b32 s77, s70")
    collect_addrs()
    for i in range(4):
        e(f"    v_mov_b32 v{100+i}, {PADV}")
    e("    s_waitcnt lgkmcnt(0)")
    e("    s_branch E_BAR")
    e("EMPTY:")
    e("    s_waitcnt vmcnt(0) lgkmcnt(0)")
    e("    s_bitcmp1_b32 s71, 3")
    e("    s_cbranch_scc1 MAINDONE")
    e("    s_or_b32 s71, s71, 8")
    own_addr("PRB_E")
    self_init(64)
    e("    s_branch MAINDONE")
    e("F_GETW:")
    e("    s_waitcnt lgkmcnt(0)")
    w_frags()
    e("    s_waitcnt lgkmcnt(0)")
    e("    s_branch F_HAVEW")
    e("CODE_END:")


def body():
    e(f".globl {NAME}")
    e(".p2align 8")
    e(f".type {NAME},@function")
    e(f"{NAME}:")
    phase_a()
    setup1()
    if SP == 0:
        setup2()
        setup3()
    if I("pc", 1):
        e("    s_setprio 3")
    AK = I("ackb", 1)
    if AK == 1:
        e("    s_waitcnt vmcnt(0) lgkmcnt(0)")
    elif AK == 2:
        e("    s_waitcnt vmcnt(1) lgkmcnt(0)")
    elif AK >= 4:
        e(f"    s_cmp_ge_u32 s3, {AK}")
        e("    s_waitcnt lgkmcnt(0)")
        e("    s_cbranch_scc1 G1_NA")
        e("    s_waitcnt vmcnt(0)")
        e("G1_NA:")
    else:
        e("    s_waitcnt lgkmcnt(0)")
    stamp("g1_ack")
    e("    s_barrier")
    stamp("g1_exit")
    phase_b()
    main_loop()
    out_of_line()


def spin_kernel():
    na, nb_, mode, mult, wlo, whi = (SPIN.split(",") + ["0", "15"])[:6]
    wlo, whi = int(wlo), int(whi)
    ia, ib, mode, mult = STL.index(na), STL.index(nb_), int(mode), int(mult)
    init = "0x80000000" if mode == 0 else "0x7fffffff" if mode == 1 else "0"
    e(".globl sgc_spin_kernel")
    e(".p2align 8")
    e(".type sgc_spin_kernel,@function")
    e("sgc_spin_kernel:")
    e("    s_memrealtime s[30:31]")
    e("    s_cmp_ge_u32 s2, 1")
    e("    s_cbranch_scc1 SP_END")
    e("    s_load_dwordx8 s[12:19], s[0:1], 32")
    e("    v_lshlrev_b32 v1, 6, v0")
    e("    v_mov_b32 v4, 0x7fffffff")
    e(f"    v_mov_b32 v5, {init}")
    e("    s_mov_b32 s23, 0x20000")
    e("    s_waitcnt lgkmcnt(0)")
    srd(20, 18, 19, 1 << 20, WS_STAMP)
    e("    s_mov_b32 s24, 0")
    e("SP_RD:")
    e(f"    buffer_load_dword v2, v1, s[20:23], s24 offen offset:{4*ia}")
    e(f"    buffer_load_dword v3, v1, s[20:23], s24 offen offset:{4*ib}")
    e("    s_add_u32 s24, s24, 4096")
    e("    s_cmp_lt_u32 s24, 0x40000")
    e("    s_waitcnt vmcnt(0)")
    e("    v_subrev_u32 v2, s30, v2")
    e("    v_subrev_u32 v3, s30, v3")
    e("    v_min_i32 v4, v4, v2")
    e("    %s v5, v5, v3" % ("v_max_i32" if mode == 0 else "v_min_i32" if mode == 1 else "v_add_u32"))
    e("    s_cbranch_scc1 SP_RD")
    e("    s_mov_b32 s26, 0x7fffffff")
    e(f"    s_mov_b32 s27, {init}")
    e("    s_nop 1")
    for l in range(64):
        e(f"    v_readlane_b32 s28, v4, {l}")
        e(f"    v_readlane_b32 s29, v5, {l}")
        e("    s_min_i32 s26, s26, s28")
        if wlo <= (l & 15) <= whi:
            e("    %s s27, s27, s29" % ("s_max_i32" if mode == 0 else "s_min_i32" if mode == 1 else "s_add_u32"))
    if mode == 2:
        e("    s_ashr_i32 s27, s27, %d" % (8 + (whi - wlo + 1).bit_length() - 1))
    e("    s_sub_i32 s26, s27, s26")
    e("    s_max_i32 s26, s26, 0")
    e("    s_min_i32 s26, s26, 20000")
    e(f"    s_mul_i32 s26, s26, {mult}")
    e("    s_add_u32 s26, s26, 10000")
    e("SP_LOOP:")
    e("    s_memrealtime s[28:29]")
    e("    s_waitcnt lgkmcnt(0)")
    e("    s_sub_u32 s28, s28, s30")
    e("    s_cmp_lt_u32 s28, s26")
    e("    s_cbranch_scc1 SP_LOOP")
    e("SP_END:")
    e("    s_endpgm")


def desc(name, vg, sg):
    e(".p2align 6")
    e(f".amdhsa_kernel {name}")
    e(f"  .amdhsa_next_free_vgpr {vg}")
    e(f"  .amdhsa_next_free_sgpr {sg}")
    e(f"  .amdhsa_accum_offset {vg}")
    e("  .amdhsa_group_segment_fixed_size 0")
    e("  .amdhsa_kernarg_size 64")
    e("  .amdhsa_user_sgpr_count 2")
    e("  .amdhsa_user_sgpr_kernarg_segment_ptr 1")
    e("  .amdhsa_system_sgpr_workgroup_id_x 1")
    e(".end_amdhsa_kernel")


SPIN = OPT.get("spin")
if SPIN:
    e(f"; @launch kernel={NAME} grid=(256,1,1) block=(1024,1,1) lds={LDS}")
    e("; @launch kernel=sgc_spin_kernel grid=(1,1,1) block=(64,1,1) lds=0")
else:
    e(f"; @launch grid=(256,1,1) block=(1024,1,1) lds={LDS}")
e('.amdgcn_target "amdgcn-amd-amdhsa--gfx950"')
e(".text")
body()
if SPIN:
    spin_kernel()
e('.section .rodata,"a"')
if SPIN:
    desc("sgc_spin_kernel", 8, 40)
desc(NAME, 128, 102 if DIAG else 86)
open(OUT, "w").write("\n".join(L) + "\n")
```

```python
import sys

OUT = [a for a in sys.argv[1:] if not a.startswith("--")][0]
OPT = dict(a[2:].split("=") for a in sys.argv[1:] if a.startswith("--") and "=" in a)
NAME = "standalone__spectral_conv_sgc__graph_kernel"
DEFST = "start,a_bar2,b_bar1,b_bar2,h1_done,g2_exit,h2_done,end"
STL = OPT.get("st", DEFST if "--diag" in sys.argv else "").split(",")
STL = [s for s in STL if s]
DIAG = len(STL) > 0


def I(name, dflt):
    return int(OPT.get(name, dflt))


N = 50000
E = 850000
ET = 800000
TM = 5368
CHMAX = 13 * 256
SLOTCAP = 24
NINL = 14
WS_OVT = 8 << 20
WS_FLAG = WS_OVT + 131072
WS_VOTE = WS_FLAG + 65536
WS_H1 = 12 << 20
H1BYTES = 782 * 16384
WS_OVF = 40 << 20
OVF_STRIDE = 32768
WS_STAMP = 32 << 20
TABBYTES = N * 128
PADV = 0x40000000

K1_LS = 132
K1_CNT = 256 * K1_LS
K1_OVC = 1024
K1_DONE = 1028
K1_OVT = K1_CNT + 4096
K1_NON = K1_OVT + 128
K1_MSK = K1_NON + 16
LISTS = 65536
CAPT = 320
TSTR = CAPT * 8
CNTB = LISTS + 16 * TSTR + 256
BASES = CNTB + 1024
MORE = BASES + 1024
CFLAG = MORE + 64
WL = MORE + 128
assert WL % 128 == 0
SELFN = WL + 8192
LDS = SELFN + 1024

SC = "sc1"
ST_OUT = OPT.get("stout", "sc1 nt")
SPINMAX = I("spinmax", 20000000)
NB = I("nb", 8)
TSH = I("tsh", 20)
ROT = I("rot", 6250)
SP = I("sp", 1)
EARLY = I("early", 0)
SEGB = I("segb", 2)

L = []


def e(s=""):
    L.append(s)


def srd(d, lo, hi, nbytes, off=0):
    if off == 0:
        e(f"    s_mov_b64 s[{d}:{d+1}], s[{lo}:{hi}]")
    elif off > 0:
        e(f"    s_add_u32 s{d}, s{lo}, {off}")
        e(f"    s_addc_u32 s{d+1}, s{hi}, 0")
    else:
        e(f"    s_sub_u32 s{d}, s{lo}, {-off}")
        e(f"    s_subb_u32 s{d+1}, s{hi}, 0")
    e(f"    s_mov_b32 s{d+2}, {nbytes}")
    e(f"    s_mov_b32 s{d+3}, s23")


S_SRC, S_DST, S_NRM, S_WS, S_OVF, S_GAT, S_STO = 20, 24, 28, 32, 36, 40, 44
S_OUT, S_GH = S_SRC, S_DST


def R(d):
    return f"s[{d}:{d+3}]"


STAMP_BASE = 86


def stamp(name):
    if name in STL:
        i = STL.index(name)
        e(f"    s_memrealtime s[{STAMP_BASE+2*i}:{STAMP_BASE+2*i+1}]")


def stamp2(n1, n2):
    if n1 in STL or n2 in STL:
        n = len(L)
        e("    s_bitcmp1_b32 s71, 0")
        e(f"    s_cbranch_scc1 ST{n}_B")
        stamp(n1)
        e(f"    s_branch ST{n}_C")
        e(f"ST{n}_B:")
        stamp(n2)
        e(f"ST{n}_C:")


def stamp_out():
    if not DIAG:
        return
    e("    s_waitcnt vmcnt(0) lgkmcnt(0)")
    stamp("end")
    e("    s_waitcnt lgkmcnt(0)")
    e("    s_mov_b64 exec, 1")
    srd(28, 18, 19, 1 << 20, WS_STAMP)
    e("    s_lshl_b32 s76, s2, 4")
    e("    s_add_u32 s76, s76, s3")
    e("    s_lshl_b32 s76, s76, 6")
    e("    v_mov_b32 v2, s76")
    for i in range(len(STL)):
        e(f"    v_mov_b32 v3, s{STAMP_BASE+2*i}")
        e(f"    buffer_store_dword v3, v2, s[28:31], 0 offen offset:{4*i}")
    e("    s_getreg_b32 s76, hwreg(HW_REG_XCC_ID)")
    e("    v_mov_b32 v3, s76")
    e("    buffer_store_dword v3, v2, s[28:31], 0 offen offset:56")
    e("    s_lshl_b32 s76, s48, 16")
    e("    s_or_b32 s76, s76, s74")
    e("    v_mov_b32 v3, s76")
    e("    buffer_store_dword v3, v2, s[28:31], 0 offen offset:60")
    e("    v_mov_b32 v3, s50")
    e("    buffer_store_dword v3, v2, s[28:31], 0 offen offset:48")
    e("    v_mov_b32 v3, s51")
    e("    buffer_store_dword v3, v2, s[28:31], 0 offen offset:52")


def PEND(s):
    return f"s[{52+2*s}:{53+2*s}]"


def prio_by_age(lbl):
    for g in range(1, 4):
        e(f"    s_cmp_lt_u32 s3, {4*g}")
        e(f"    s_cbranch_scc1 {lbl}")
        e(f"    s_setprio {g}")
    e(f"{lbl}:")


def decode_key(rec, meta, k, s):
    ca = 40 + s
    e(f"    v_add_u32 v2, s27, v{rec}")
    e(f"    v_and_b32_sdwa v3, v{meta}, v99 dst_sel:DWORD dst_unused:UNUSED_PAD src0_sel:BYTE_{k} src1_sel:DWORD")
    e("    v_bfe_u32 v2, v2, 12, 4")
    e("    v_or_b32 v2, v2, v3")
    e(f"    v_lshl_add_u32 v{ca}, v2, 2, s0")


def decode_data(rec, meta, k, s):
    d0, d1 = 48 + s, 56 + s
    e(f"    v_lshlrev_b32_sdwa v{d0}, v124, v{rec} dst_sel:DWORD dst_unused:UNUSED_PAD src0_sel:DWORD src1_sel:WORD_0")
    e(f"    v_mov_b32 v{d1}, v{rec}")
    e(f"    v_lshlrev_b16_sdwa v{d1}, v{meta}, v1 dst_sel:WORD_0 dst_unused:UNUSED_PRESERVE src0_sel:BYTE_{k} src1_sel:DWORD")


def decode_full(rec, dst, s):
    e(f"    v_mul_u32_u24 v30, {TM}, v{dst}")
    e("    v_lshrrev_b32 v30, 12, v30")
    e(f"    v_bfi_b32 v30, 15, v{dst}, v30")
    decode_key(rec, 30, 0, s)
    decode_data(rec, 30, 0, s)


def zero_b_counters(n):
    e("    v_lshlrev_b32 v2, 2, v0")
    e(f"    v_add_u32 v2, {CNTB}, v2")
    e("    v_mov_b32 v3, 0")
    e(f"    v_cmp_gt_u32 vcc, {n}, v0")
    e("    s_and_saveexec_b64 s[76:77], vcc")
    e("    ds_write_b32 v2, v3")
    e("    s_mov_b64 exec, -1")


def collect_addrs():
    e("    v_lshrrev_b32 v9, 3, v0")
    e("    v_lshlrev_b32 v93, 7, v9")
    e("    v_lshlrev_b32 v9, 15, v9")
    e("    v_lshl_add_u32 v9, v10, 4, v9")
    e("    v_lshl_add_u32 v93, v10, 4, v93")


def own_x():
    e("    s_bitcmp1_b32 s71, 3")
    e("    s_cbranch_scc1 NOOWN")
    e("    s_mov_b64 exec, s[14:15]")
    e(f"    buffer_load_dwordx4 v[64:67], v121, {R(S_GAT)}, 0 offen offset:3072")
    e(f"    buffer_load_dwordx4 v[68:71], v121, {R(S_GAT)}, 0 offen offset:3136")
    if I("xtra", 0):
        e(f"    s_mov_b64 exec, {(1 << I('xtra', 0)) - 1}")
        e(f"    s_movk_i32 s76, {196*128}")
        e(f"    buffer_load_dword v91, v121, {R(S_GAT)}, s76 offen offset:3072")
    e("NOOWN:")
    e("    s_mov_b64 exec, -1")


def own_addr(lbl):
    e(f"    v_bfe_u32 v2, v121, {I('rsh', 13)}, {I('rbits', 2)}")
    e("    v_and_b32 v9, 0xffffe000, v121")
    e(f"    v_cmp_gt_u32 s[78:79], {I('rep', 1)}, v2")
    e("    v_add_u32 v9, v9, v121")
    e("    v_lshrrev_b32 v2, 8, v9")
    e("    v_and_b32 v2, 0x2000, v2")
    e("    v_xor_b32 v9, v9, v2")
    e("    s_and_b32 s76, s26, 3")
    e("    s_or_b32 s76, s76, s3")
    e(f"    s_cbranch_scc1 {lbl}")
    e("    s_or_b32 s71, s71, %d" % (64 if lbl == "PRB_M" else 0))
    e("    s_branch PROBE")
    e(f"{lbl}:")


def probe():
    e("PROBE:")
    e("    s_lshr_b32 s76, s29, 12")
    e("    s_lshl3_add_u32 s77, s26, s76")
    e("    s_lshl_b32 s80, s77, 15")
    e("    s_xor_b32 s81, s29, 0x1000")
    e("    s_add_u32 s80, s80, s81")
    e("    s_xor_b32 s81, s80, 0x2000")
    if I("pw", 1):
        e("    s_xor_b32 s75, s80, 0x4000")
        e("    s_load_dword s50, s[18:19], s75")
    e("    s_waitcnt lgkmcnt(0)")
    e("    s_memtime vcc")
    e("    s_load_dword s50, s[18:19], s80")
    e("    s_waitcnt lgkmcnt(0)")
    e("    s_memtime s[76:77]")
    e("    s_load_dword s50, s[18:19], s81")
    e("    s_waitcnt lgkmcnt(0)")
    e("    s_sub_u32 s75, s76, vcc_lo")
    e("    s_memtime vcc")
    e("    s_waitcnt lgkmcnt(0)")
    e("    s_sub_u32 s77, vcc_lo, s76")
    if DIAG:
        e("    s_mov_b32 s50, s75")
        e("    s_mov_b32 s51, s77")
    e("    s_cmp_lt_u32 s75, s77")
    e("    s_cselect_b32 s80, s80, s81")
    e("    s_lshr_b32 s81, s80, 8")
    e("    s_xor_b32 s80, s80, s81")
    e("    s_lshr_b32 s80, s80, 13")
    e("    s_xor_b32 s80, s80, s2")
    e("    s_and_b32 s80, s80, 1")
    if OPT.get("cfix"):
        e(f"    s_mov_b32 s80, {OPT['cfix']}")
    e("    s_lshr_b32 s76, s29, 12")
    e("    s_lshr_b32 s77, s26, 2")
    e("    s_lshl3_add_u32 s77, s77, s76")
    e("    s_lshl_b32 s77, s77, 7")
    e(f"    s_add_u32 s77, s77, {WS_VOTE}")
    e("    v_lshlrev_b32 v2, 3, v0")
    e("    v_mov_b32 v4, v125")
    e("    v_mov_b32 v5, s80")
    e("    s_mov_b64 exec, 0xffff")
    e(f"    buffer_store_dwordx2 v[4:5], v2, {R(S_WS)}, s77 offen sc1")
    e("    s_mov_b64 exec, -1")
    e("    s_bitcmp0_b32 s71, 6")
    e("    s_cbranch_scc1 PRB_E")
    if I("catch", 1):
        e("    s_sub_u32 s10, s10, 1")
    e("    s_waitcnt vmcnt(5)")
    e("    s_branch PRB_M2")


def vote_load():
    e("    v_and_b32 v2, 63, v0")
    e("    v_lshlrev_b32 v2, 7, v2")
    e(f"    s_mov_b32 s76, {WS_VOTE}")
    e(f"    buffer_load_dwordx2 v[4:5], v2, {R(S_WS)}, s76 offen sc1")


def vote_count():
    e("    v_cmp_eq_u32 vcc, 1, v5")
    e("    s_bcnt1_i32_b64 s76, vcc")
    if "minor" in STL:
        i = STL.index("minor")
        e("    s_sub_u32 s77, 64, s76")
        e("    s_min_u32 s77, s77, s76")
        e("    s_mul_i32 s77, s77, 50")
        e(f"    s_add_u32 s{STAMP_BASE+2*i}, s{STAMP_BASE}, s77")
    e("    s_cmp_ge_u32 s76, 32")
    e("    s_cselect_b32 s76, 3, 2")
    e(f"    v_mov_b32 v2, {CFLAG}")
    e("    v_mov_b32 v3, s76")
    e("    ds_write_b32 v2, v3")
    e("    s_movk_i32 s28, 0x7fff")


def self_init(b):
    e("    s_mov_b64 exec, s[16:17]")
    e(f"    v_swap_b32 v{b}, v{b+2}")
    e(f"    v_swap_b32 v{b+1}, v{b+3}")
    e(f"    v_swap_b32 v{b+4}, v{b+6}")
    e(f"    v_swap_b32 v{b+5}, v{b+7}")
    e("    s_mov_b64 exec, -1")
    for i in reversed(range(8)):
        e(f"    v_and_b32 v{65+2*i}, 0xffff0000, v{b+i}")
        e(f"    v_lshlrev_b32 v{64+2*i}, 16, v{b+i}")
    for i in range(16):
        e(f"    v_mul_f32 v{64+i}, v126, v{64+i}")


def phase_a():
    stamp("start")
    e("    s_getpc_b64 s[6:7]")
    e("CPF_PC:")
    e("    v_cmp_gt_u32 vcc, (SLOWW-CPF_PC+127)/128, v0")
    e("    v_lshlrev_b32 v2, 7, v0")
    e("    s_load_dwordx2 s[24:25], s[0:1], 16")
    e("    s_mov_b64 exec, vcc")
    e("    s_mov_b32 s8, vcc_lo")
    e("    s_cbranch_execz CPF_D")
    e("    global_load_dword v126, v2, s[6:7] offset:124")
    e("CPF_D:")
    e("    s_load_dwordx2 s[20:21], s[0:1], 8")
    e("    s_load_dwordx2 s[28:29], s[0:1], 24")
    e("    s_load_dwordx2 s[10:11], s[0:1], 56")
    e("    s_mov_b64 exec, -1")
    e("    s_cmp_ge_u32 s2, 256")
    e("    s_cbranch_scc1 END")
    TCH = I("touch", 0)
    e("    v_lshrrev_b32 v3, 6, v0")
    e("    v_and_b32 v2, 63, v0")
    e("    s_mov_b32 s23, 0x20000")
    e(f"    s_mov_b32 s22, {E*4}")
    e("    v_lshlrev_b32 v4, 18, v3")
    e("    s_mov_b64 s[26:27], s[22:23]")
    e("    v_lshl_or_b32 v4, v2, 4, v4")
    e("    s_lshr_b32 s30, s22, 1")
    e("    s_mov_b32 s31, s23")
    ALT = I("alt", 1)
    if ALT:
        e("    v_bfe_i32 v5, v0, 6, 1")
        e("    s_lshl_b32 s68, s2, 10")
        e("    v_and_b32 v5, 0x6000, v5")
        e("    v_cmp_gt_u32 vcc, 13, v3")
        e("    v_xad_u32 v4, v5, s68, v4")
        e("    v_lshrrev_b32 v5, 1, v4")
    else:
        e("    v_lshrrev_b32 v5, 1, v4")
        e("    s_lshl_b32 s68, s2, 10")
        e("    v_cmp_gt_u32 vcc, 13, v3")
        e("    s_lshl_b32 s69, s2, 9")
    e(f"    v_mov_b32 v125, {WS_FLAG + (I('wsoff', 0) << 20)}")
    e("    s_cmp_eq_u32 s8, 0")
    e("    s_waitcnt lgkmcnt(0)")
    e("    s_cbranch_scc1 A_NOZ")
    e("    global_load_dword v125, v125, s[10:11] sc1")
    e("A_NOZ:")
    e("    s_cbranch_vccz A_NOLD0")
    LI = OPT.get("ldin", "")
    e(f"    buffer_load_dwordx4 v[12:15], v4, {R(S_DST)}, {'0' if ALT else 's68'} offen {LI}")
    e("A_NOLD0:")
    e("    s_barrier")
    e("    s_cbranch_vccz A_NOLD")
    e(f"    buffer_load_dwordx4 v[16:19], v4, {R(S_SRC)}, {'0' if ALT else 's68'} offen {LI}")
    e(f"    buffer_load_dwordx2 v[20:21], v5, {R(S_NRM)}, {'0' if ALT else 's69'} offen {LI}")
    e("A_NOLD:")
    stamp("a_issue")
    e("    s_load_dwordx8 s[12:19], s[0:1], 32")
    e("    s_load_dwordx2 s[4:5], s[0:1], 0")
    e("    v_readfirstlane_b32 s3, v3")
    e("    v_lshlrev_b32 v9, 2, v0")
    e("    v_mov_b32 v6, 0")
    e(f"    ds_write_b32 v9, v6 offset:{K1_CNT}")
    for i in range(4):
        e(f"    v_mov_b32 v{24+i}, -1")
    e("    v_lshlrev_b32 v7, 4, v0")
    e("    ds_write_b128 v7, v[24:27]")
    e("    ds_write_b128 v7, v[24:27] offset:16384")
    if not ALT:
        e("    v_add_u32 v4, s68, v4")
    e("    v_lshrrev_b32 v8, 2, v4")
    e("    v_cmp_gt_u32 s[72:73], s22, v4")
    e(f"    v_subrev_u32 v8, {ET}, v8")
    e("    v_mov_b32 v1, 1")
    e("    v_and_b32 v10, 7, v0")
    srd(S_WS, 10, 11, WS_H1 + H1BYTES, I("wsoff", 0) << 20)
    e("    s_cmp_lg_u32 s3, 15")
    e("    s_cbranch_scc1 A_BAR")
    e(f"    ds_write_b128 v7, v[24:27] offset:{32768 - 15*1024}")
    e("    v_and_b32 v5, 124, v9")
    e("    v_mov_b32 v7, 0xffff")
    e(f"    ds_write_b32 v5, v7 offset:{K1_OVT}")
    e("A_BAR:")
    e("    s_lshr_b32 s76, s2, 7")
    e("    s_add_u32 s77, s76, s2")
    e("    s_and_b32 s77, s77, 3")
    e("    s_lshl_b32 s77, s77, 6")
    e("    s_lshl1_add_u32 s77, s76, s77")
    e("    s_bfe_u32 s76, s2, 0x40003")
    e("    s_lshl2_add_u32 s77, s76, s77")
    e("    s_bfe_u32 s76, s2, 0x10002")
    e("    s_add_u32 s65, s77, s76")
    if I("pa", 1):
        prio_by_age("A_PRD")
    e("    s_waitcnt lgkmcnt(0)")
    if I("wsoff", 0):
        e("    s_mov_b64 s[18:19], s[32:33]")
    e("    s_barrier")
    stamp("a_bar1")
    e("    s_cmp_lt_u32 s3, 12")
    e("    s_cbranch_scc1 A_SETUP")
    e("    v_bfe_u32 v2, v0, 4, 4")
    e("    s_lshl_b32 s76, s65, 4")
    e("    v_add_u32 v2, s76, v2")
    e("    v_mul_u32_u24 v3, 50006, v2")
    e("    v_lshrrev_b32 v3, 12, v3")
    e("    v_sub_u32 v4, v0, v3")
    e("    v_and_b32 v4, 15, v4")
    e("    v_add_u32 v115, v3, v4")
    e(f"    v_add_u32 v4, {ET}, v115")
    e("    v_lshlrev_b32 v5, 2, v4")
    e("    v_lshlrev_b32 v4, 1, v4")
    e(f"    buffer_load_dword v112, v5, {R(S_DST)}, 0 offen")
    e(f"    buffer_load_dword v113, v5, {R(S_SRC)}, 0 offen")
    e(f"    buffer_load_ushort v114, v4, {R(S_NRM)}, 0 offen")
    e(f"    v_mul_u32_u24 v4, {TM}, v115")
    e("    v_lshrrev_b32 v4, 16, v4")
    e("    v_cmp_eq_u32 s[66:67], v4, v2")
    e(f"    v_cmp_gt_u32 vcc, {N}, v115")
    e("    s_and_b64 s[66:67], s[66:67], vcc")
    e("    s_cmp_eq_u32 s3, 12")
    e("    s_cbranch_scc1 A_SETUP")
    srd(S_STO, 12, 13, 8192)
    e(f"    v_subrev_u32 v2, {13*64}, v0")
    e("    v_lshlrev_b32 v2, 4, v2")
    e(f"    buffer_load_dwordx4 v[100:103], v2, {R(S_STO)}, 0 offen")
    e(f"    buffer_load_dwordx4 v[104:107], v2, {R(S_STO)}, 0 offen offset:3072")
    e("    v_add_u32 v3, 6144, v2")
    e(f"    buffer_load_dwordx4 v[108:111], v3, {R(S_STO)}, 0 offen")
    e("A_SETUP:")
    e("    s_lshr_b32 s76, s3, 1")
    e("    s_add_u32 s76, s76, s2")
    e("    s_and_b32 s76, s76, 7")
    e("    s_lshl_b32 s74, s2, 15")
    e("    s_lshl_b32 s77, s76, 12")
    e("    s_add_u32 s74, s74, s77")
    e("    s_lshl_b32 s77, s76, 2")
    e("    v_mov_b32 v49, s77")
    e("    s_and_b32 s75, s3, 1")
    e("    s_lshl_b32 s75, s75, 1")
    e("    v_bfe_u32 v2, v0, 3, 3")
    e("    v_lshlrev_b32 v48, 4, v10")
    e("    v_cmp_lt_u32 vcc, 3, v10")
    e(f"    v_mul_u32_u24 v3, {K1_LS * 4}, v2")
    e("    s_and_b32 s70, s3, 1")
    e("    s_add_u32 s77, s76, s70")
    e("    s_and_b32 s77, s77, 3")
    e("    s_lshl_b32 s77, s77, 6")
    e("    s_lshl1_add_u32 s77, s70, s77")
    e("    s_lshr_b32 s76, s76, 2")
    e("    s_add_u32 s76, s76, s77")
    e("    v_add_u32 v3, v3, v48")
    for st in range(2):
        e(f"    s_add_u32 s77, s76, {32*st}")
        e(f"    s_mul_i32 s77, s77, {K1_LS}")
        e(f"    v_add_u32 v{40+st}, s77, v3")
        e(f"    v_lshl_add_u32 v{46+st}, s75, 3, v2")
        e(f"    v_lshlrev_b32 v{44+st}, v{46+st}, v1")
        e(f"    v_add_u32 v{42+st}, -1, v{44+st}")
        e(f"    v_cndmask_b32 v{44+st}, 0, v{44+st}, vcc")
        e("    s_add_u32 s75, s75, 1")
    e("    v_and_b32 v50, 6, v10")
    e("    s_mov_b32 s64, 0xffffff")
    e("    s_cmp_lt_u32 s3, 12")
    e("    s_cbranch_scc1 A_EDGES")
    e("    s_cmp_eq_u32 s3, 12")
    e("    s_cbranch_scc1 A_EDGES12")
    e("    s_cmp_eq_u32 s3, 15")
    e("    s_cbranch_scc1 A_MASKS")
    e("    s_cmp_eq_u32 s3, 14")
    e("    s_cbranch_scc1 A_HDR")
    if I("xr", 0):
        srd(S_GAT, 4, 5, TABBYTES)
        e("    s_mul_i32 s76, s65, 195*128")
        e("    v_and_b32 v54, 63, v0")
        e("    v_lshlrev_b32 v54, 4, v54")
        for n in range(6):
            e(f"    buffer_load_dwordx4 v[{64+4*n}:{67+4*n}], v54, {R(S_GAT)}, s76 offen")
            e("    s_add_u32 s76, s76, 1024")
    if I("pg", 0):
        srd(S_GAT, 4, 5, TABBYTES)
        e("    s_add_u32 s76, s65, 1")
        e(f"    s_mul_i32 s76, s76, {16*50006}")
        e("    s_lshr_b32 s76, s76, 12")
        e("    v_and_b32 v2, 63, v0")
        e("    v_add_lshl_u32 v2, v2, s76, 7")
        n = I("pg", 0)
        o = 0
        while n > 0:
            m = min(n, 64)
            if m < 64:
                e(f"    s_mov_b32 exec_lo, {((1 << m) - 1) & 0xffffffff}")
                e(f"    s_mov_b32 exec_hi, {((1 << m) - 1) >> 32}")
            e(f"    s_movk_i32 s76, {o}")
            e(f"    buffer_load_dword v126, v2, {R(S_GAT)}, s76 offen")
            n -= m
            o += 8192
    e("    s_branch A_OUT")
    e("A_MASKS:")
    e("    v_bfe_u32 v2, v0, 4, 1")
    e("    v_bfe_u32 v3, v0, 5, 1")
    e("    v_add_u32 v3, v3, v2")
    e("    v_lshlrev_b32 v3, 6, v3")
    e("    v_lshl_add_u32 v3, v2, 1, v3")
    e("    v_and_b32 v2, 15, v0")
    e("    v_lshl_add_u32 v3, v2, 2, v3")
    e("    v_lshlrev_b32 v12, 2, v3")
    e("    v_xor_b32 v13, 512, v12")
    e("    v_lshlrev_b32 v7, 2, v10")
    e("A_MPOLL:")
    e(f"    ds_read_b32 v2, v6 offset:{K1_CNT+K1_DONE}")
    e("    s_waitcnt lgkmcnt(0)")
    e("    v_cmp_gt_u32 vcc, 13, v2")
    e("    s_cbranch_vccnz A_MPOLL")
    for n in range(4):
        e(f"    ds_read_b32 v{16+n}, v{12+(n&1)} offset:{K1_CNT + 4*(n>>1)}")
    for n in range(4):
        e(f"    s_waitcnt lgkmcnt({3-n})")
        e(f"    v_cmp_lt_u32 s[{52+2*n}:{53+2*n}], 12, v{16+n}")
    e("    s_nop 1")
    for n in range(8):
        e(f"    v_writelane_b32 v2, s{52+n}, {n}")
    e("    s_mov_b64 exec, 0xff")
    e("    v_bcnt_u32_b32 v3, v2, 0")
    e("    v_add_u32 v4, 1, v2")
    e("    v_bfe_i32 v3, v3, 0, 1")
    e("    v_bfi_b32 v4, v2, 0, v4")
    e("    v_and_or_b32 v2, v4, v3, v2")
    e(f"    ds_write_b32 v7, v2 offset:{K1_MSK}")
    e("    s_branch A_OUT")
    e("A_HDR:")
    e("    v_and_b32 v3, 15, v0")
    e("    v_lshlrev_b32 v51, 3, v3")
    e("    v_bfe_u32 v52, v0, 4, 2")
    e("    v_and_b32 v53, 1, v0")
    e("    v_lshl_add_u32 v53, v52, 1, v53")
    e("    v_lshlrev_b32 v53, 2, v53")
    e("    v_lshl_or_b32 v52, v52, 15, v51")
    e("    v_bfe_u32 v54, v0, 2, 1")
    e("    v_lshlrev_b32 v54, 1, v54")
    e("    s_lshl_b32 s75, s2, 7")
    e(f"    s_add_u32 s75, s75, {WS_OVT}")
    e("    v_cmp_le_u32 vcc, 14, v3")
    e("    s_setprio 3")
    stamp("a_pre2")
    e("    s_barrier")
    stamp("a_bar2")
    e(f"    ds_read_u16 v26, v54 offset:{K1_NON}")
    e(f"    ds_read_b64 v[24:25], v51 offset:{K1_OVT}")
    e(f"    ds_read_b32 v22, v6 offset:{K1_CNT+K1_OVC}")
    e(f"    ds_read_b32 v23, v53 offset:{K1_MSK}")
    e("    s_waitcnt lgkmcnt(0)")
    e("    v_or_b32 v22, 0xf000, v22")
    e("    v_cndmask_b32 v24, v24, v23, vcc")
    e("    v_cndmask_b32 v25, v25, v22, vcc")
    e("    v_lshl_or_b32 v25, v26, 16, v25")
    e(f"    buffer_store_dwordx2 v[24:25], v52, {R(S_WS)}, s75 offen {SC}")
    e(f"    ds_read_u16 v120, v50 offset:{K1_NON}")
    e("    s_branch A_O1")
    e("A_EDGES12:")
    e("    s_waitcnt vmcnt(5)")
    e("    s_branch A_EDGES2")
    e("A_EDGES:")
    e("    s_cmp_lg_u32 s3, 0")
    e("    s_waitcnt vmcnt(2)")
    e("    s_cbranch_scc1 A_EDGES2")
    e("    v_add_u32 v4, 0x01010101, v125")
    e("    v_add_u32 v5, 0x01010101, v125")
    e(f"    ds_write_b64 v6, v[4:5] offset:{K1_NON}")
    e("A_EDGES2:")
    e("    s_mov_b64 exec, s[72:73]")
    stamp("a_dst")
    for k in range(4):
        e(f"    v_mul_u32_u24 v{24+k}, {TM}, v{12+k}")
        e(f"    v_sub_u32 v2, v{12+k}, v8")
        e(f"    v_lshrrev_b32 v{28+k}, 20, v{24+k}")
        e(f"    v_cmp_ne_u32 s[{52+2*k}:{53+2*k}], {k}, v2")
        e(f"    v_lshlrev_b32 v{36+k}, 2, v{28+k}")
    for k in range(4):
        e(f"    s_mov_b64 exec, s[{52+2*k}:{53+2*k}]")
        e(f"    ds_add_rtn_u32 v{32+k}, v{36+k}, v1 offset:{K1_CNT}")
    e("    s_mov_b64 exec, 1")
    e(f"    ds_add_u32 v6, v1 offset:{K1_CNT+K1_DONE}")
    e("    s_mov_b64 exec, s[72:73]")
    for k in range(4):
        e(f"    v_lshrrev_b32 v{24+k}, 12, v{24+k}")
        e(f"    v_mul_u32_u24 v{28+k}, {K1_LS}, v{28+k}")
        e(f"    v_bfi_b32 v{24+k}, 15, v{12+k}, v{24+k}")
    e("    s_mov_b32 s70, 0xffff0000")
    FIT = ["s[6:7]", "s[8:9]", "s[10:11]", "s[62:63]"]
    for k in range(4):
        e(f"    s_mov_b64 exec, s[{52+2*k}:{53+2*k}]")
        e("    s_waitcnt lgkmcnt(4)")
        e(f"    v_cmp_le_u32 vcc, 12, v{32+k}")
        e(f"    v_cmp_gt_u32 {FIT[k]}, {SLOTCAP}, v{32+k}")
        e(f"    v_and_b32 v4, 3, v{32+k}")
        e(f"    v_lshrrev_b32 v2, 2, v{32+k}")
        e("    v_cndmask_b32 v3, 0, 61, vcc")
        e(f"    v_lshl_add_u32 v4, v4, 4, v{28+k}")
        e(f"    s_mov_b64 exec, {FIT[k]}")
        e("    v_add3_u32 v5, v4, v3, v2")
        e("    v_cndmask_b32 v3, 0, 52, vcc")
        e("    v_lshl_add_u32 v4, v2, 2, v4")
        e(f"    ds_write_b8 v5, v{24+k} offset:12")
        e(f"    v_add_u32 v{36+k}, v4, v3")
    for k in range(4):
        e(f"    s_andn2_b64 s[{52+2*k}:{53+2*k}], s[{52+2*k}:{53+2*k}], {FIT[k]}")
    e("    s_or_b64 s[60:61], s[52:53], s[54:55]")
    e("    s_or_b64 s[76:77], s[56:57], s[58:59]")
    e("    s_or_b64 s[60:61], s[60:61], s[76:77]")
    e("    s_mov_b64 exec, s[72:73]")
    e("    s_cmp_eq_u32 s3, 12")
    e("    s_waitcnt vmcnt(3)")
    e("    s_cbranch_scc1 A_ALL")
    e("    s_waitcnt vmcnt(0)")
    e("A_ALL:")
    stamp("a_all")
    for k in range(4):
        if k % 2 == 0:
            e(f"    v_lshl_or_b32 v{16+k}, v{20+k//2}, 16, v{16+k}")
        else:
            e(f"    v_and_or_b32 v{16+k}, v{20+k//2}, s70, v{16+k}")
    for k in range(4):
        e(f"    s_mov_b64 exec, {FIT[k]}")
        e(f"    ds_write_b32 v{36+k}, v{16+k}")
    e("    s_cmp_lg_u64 s[60:61], 0")
    e("    s_cbranch_scc1 A_OVER")
    e("A_OUT:")
    e("    s_setprio 2")
    e("    s_mov_b64 exec, -1")
    e("    s_waitcnt lgkmcnt(0)")
    stamp("a_pre2")
    e("    s_barrier")
    stamp("a_bar2")
    e(f"    ds_read_u16 v120, v50 offset:{K1_NON}")
    e("A_O1:")
    e(f"    ds_read_b32 v21, v49 offset:{K1_MSK}")
    e(f"    ds_read_u8 v127, v10 offset:{K1_NON}")
    e("    ds_read2_b32 v[12:13], v40 offset0:0 offset1:1")
    e("    ds_read2_b32 v[14:15], v40 offset0:2 offset1:3")
    e("    ds_read2_b32 v[16:17], v41 offset0:0 offset1:1")
    e("    ds_read2_b32 v[18:19], v41 offset0:2 offset1:3")
    e("    s_waitcnt lgkmcnt(5)")
    for st in range(2):
        e(f"    v_and_b32 v2, v21, v{42+st}")
        e(f"    v_and_b32 v3, v21, v{44+st}")
        e(f"    v_bcnt_u32_b32 v2, v2, v{46+st}")
        e(f"    v_cmp_eq_u32 s[{52+2*st}:{53+2*st}], v3, v{44+st}")
        e(f"    v_lshl_add_u32 v{42+st}, v2, 6, v48")
    e("    s_waitcnt lgkmcnt(4)")
    e("    v_lshlrev_b32 v20, 24, v127")
    e("    s_waitcnt lgkmcnt(2)")
    e("    v_and_or_b32 v15, v15, s64, v20")
    e("    s_mov_b64 exec, s[52:53]")
    e(f"    buffer_store_dwordx4 v[12:15], v42, {R(S_WS)}, s74 offen {SC}")
    e("    s_mov_b64 exec, s[54:55]")
    e("    s_waitcnt lgkmcnt(0)")
    e("    v_and_or_b32 v19, v19, s64, v20")
    e(f"    buffer_store_dwordx4 v[16:19], v43, {R(S_WS)}, s74 offen {SC}")
    e("    s_mov_b64 exec, -1")
    if I("xr", 0):
        e("    s_cmp_lg_u32 s3, 13")
        e("    s_cbranch_scc1 XR_D")
        e("    s_lshl_b32 s76, s2, 14")
        e(f"    s_add_u32 s76, s76, {WS_H1}")
        e("    s_waitcnt vmcnt(2)")
        for n in range(6):
            e(f"    buffer_store_dwordx4 v[{64+4*n}:{67+4*n}], v54, {R(S_WS)}, s76 offen sc1")
            e("    s_xor_b32 s76, s76, 0x2000")
            e(f"    buffer_store_dwordx4 v[{64+4*n}:{67+4*n}], v54, {R(S_WS)}, s76 offen sc1")
            e("    s_add_u32 s76, s76, 1024")
        e("XR_D:")
    e("    s_setprio 0")
    stamp("a_st")
    e(f"    ds_read_b32 v125, v6 offset:{K1_NON}")


def a_overflow():
    e("A_OVER:")
    srd(S_OVF, 18, 19, 256 * OVF_STRIDE, WS_OVF)
    e("    s_lshl_b32 s62, s2, 15")
    for k in range(4):
        e(f"    s_mov_b64 exec, s[{52+2*k}:{53+2*k}]")
        e(f"    s_cbranch_execz A_OV{k}")
        e(f"    ds_add_rtn_u32 v3, v6, v1 offset:{K1_CNT+K1_OVC}")
        e(f"    v_mov_b32 v4, v{16+k}")
        e(f"    v_mov_b32 v5, v{12+k}")
        e("    s_waitcnt lgkmcnt(0)")
        e("    v_cmp_le_u32 s[76:77], 7, v3")
        e(f"    v_cmp_gt_u32 vcc, {NINL}, v3")
        e("    v_lshlrev_b32 v2, 4, v3")
        e("    v_add_u32 v7, -104, v2")
        e("    v_cndmask_b32 v2, v2, v7, s[76:77]")
        e("    v_lshlrev_b32 v3, 3, v3")
        e("    s_andn2_b64 s[76:77], exec, vcc")
        e("    s_mov_b64 exec, vcc")
        e(f"    ds_write_b64 v2, v[4:5] offset:{K1_OVT}")
        e("    s_mov_b64 exec, s[76:77]")
        e(f"    s_cbranch_execz A_OV{k}")
        e(f"    buffer_store_dwordx2 v[4:5], v3, {R(S_OVF)}, s62 offen {SC}")
        e("    s_waitcnt vmcnt(0)")
        e(f"A_OV{k}:")
    e("    s_branch A_OUT")


def setup1():
    e("    s_and_b32 s29, s2, 7")
    e("    s_and_b32 s27, s29, 3")
    e("    s_mul_i32 s27, s27, 12502")
    if I("roff", 0):
        e(f"    s_add_u32 s27, s27, {N - I('roff', 0)}")
        e(f"    s_cmp_ge_u32 s27, {N}")
        e(f"    s_cselect_b32 s76, {N}, 0")
        e("    s_sub_u32 s27, s27, s76")
    e("    s_sub_u32 s27, 0x10000, s27")
    e("    s_lshr_b32 s30, s29, 1")
    e("    s_lshl_b32 s30, s30, 15")
    e(f"    s_add_u32 s30, s30, {WS_OVT}")
    e("    s_add_u32 s31, s30, 16384")
    e("    s_lshl_b32 s29, s29, 12")
    e("    s_lshr_b32 s26, s2, 3")
    e("    s_bfm_b32 s49, s26, 0")
    e("    s_mov_b32 s2, s65")
    e("    v_mov_b32 v99, 0xf0")
    e("    v_mov_b32 v124, 7")
    e(f"    s_mov_b32 s0, {CNTB}")
    e("    s_mov_b32 s1, 0x07060302")
    e("    s_mov_b32 s71, 0")
    e("    s_cmp_eq_u32 s3, 1")
    e(f"    s_cselect_b32 s28, {I('vr', 3)}, 0x7fff")
    if DIAG:
        e("    s_mov_b32 s48, 0")
        e("    s_mov_b64 s[50:51], 0")
    zero_b_counters((WL - CNTB) // 4)
    collect_addrs()
    srd(S_OVF, 18, 19, 256 * OVF_STRIDE, WS_OVF)
    srd(S_GAT, 4, 5, TABBYTES + 3072, -3072)
    srd(S_STO, 18, 19, H1BYTES, WS_H1)
    e("    s_mov_b64 s[20:21], s[14:15]")
    e(f"    s_mov_b32 s22, {TABBYTES}")
    e(f"    s_add_u32 s24, s18, {WS_H1 - 3072}")
    e("    s_addc_u32 s25, s19, 0")
    if I("gp", 0):
        e("    s_lshl_b32 s76, s2, 4")
        e("    s_add_u32 s76, s76, s3")
        e("    s_add_u32 s76, s76, 16")
        e("    s_mul_i32 s76, s76, 50006")
        e("    s_lshr_b32 s76, s76, 12")
        e("    v_and_b32 v8, 63, v0")
        e("    v_add_lshl_u32 v8, v8, s76, 7")


def setup2():
    e("    v_and_b32 v2, 63, v0")
    e("    v_bfe_u32 v3, v2, 4, 1")
    e("    v_cmp_eq_u32 s[16:17], 1, v3")
    e("    v_xor_b32 v30, v3, v10")
    e("    v_lshlrev_b32 v83, 4, v30")
    e("    v_add_u32 v80, 3072, v83")
    e("    v_add_u32 v82, 1024, v83")
    e("    v_xor_b32 v83, 64, v83")
    e("    v_add_u32 v81, 2048, v83")
    e("    v_and_b32 v92, 15, v0")
    e("    v_lshrrev_b32 v11, 4, v2")
    e("    v_bfe_u32 v28, v2, 2, 2")
    e("    v_and_b32 v29, 3, v2")
    e("    v_lshl_add_u32 v84, v11, 3, v28")
    e("    v_lshlrev_b32 v84, 7, v84")
    e("    v_lshrrev_b32 v28, 1, v28")
    e("    v_lshl_or_b32 v28, v3, 2, v28")
    e("    v_xor_b32 v28, v28, v29")
    e("    v_lshl_add_u32 v84, v28, 4, v84")
    e("    v_and_b32 v30, 1, v29")
    e("    s_lshl_b32 s76, s3, 12")
    e("    v_lshl_add_u32 v84, v30, 3, v84")
    e("    s_mov_b32 m0, s76")
    e(f"    v_add_u32 v122, {WL}, v84")
    e("    v_add_u32 v84, s76, v84")
    e(f"    s_mul_i32 s76, s3, {TSTR}")
    e("    v_xor_b32 v85, 8, v84")
    e("    v_xor_b32 v86, 64, v84")
    e("    v_xor_b32 v87, 72, v84")
    e(f"    s_add_u32 s76, s76, {LISTS}")
    e("    v_lshrrev_b32 v30, 3, v2")
    e("    v_lshl_add_u32 v88, v30, 2, s76")
    e("    v_lshl_add_u32 v123, v2, 2, s76")
    e(f"    s_add_u32 s76, s76, {CAPT*4}")
    e("    v_lshl_add_u32 v89, v11, 5, s76")
    e("    v_sub_u32 v95, 0, v29")
    e("    v_sub_u32 v96, 1, v29")
    e("    v_sub_u32 v97, 2, v29")
    e("    v_ashrrev_i32 v95, 31, v95")
    e("    v_ashrrev_i32 v96, 31, v96")
    e("    v_ashrrev_i32 v97, 31, v97")
    e("    v_lshrrev_b32 v30, 2, v2")
    e(f"    v_mul_u32_u24 v98, {TSTR}, v30")
    e(f"    v_add_u32 v98, {LISTS}, v98")
    e("    v_lshl_add_u32 v90, v2, 4, s0")
    e("    s_lshl_b32 s76, s2, 4")
    e("    s_add_u32 s76, s76, s3")
    e("    s_mul_i32 s77, s76, 50006")
    e("    s_lshr_b32 s77, s77, 12")
    e("    v_subrev_u32 v2, s77, v92")
    e("    v_and_b32 v2, 15, v2")
    e("    v_add_u32 v2, s77, v2")
    e(f"    v_mul_u32_u24 v3, {TM}, v2")
    e("    v_lshrrev_b32 v3, 16, v3")
    e("    v_cmp_eq_u32 s[14:15], s76, v3")
    e("    v_lshlrev_b32 v2, 7, v2")
    e("    v_lshl_add_u32 v121, v11, 4, v2")


def setup3():
    e("    s_mov_b64 s[12:13], 0")
    e("    s_cmp_lt_u32 s3, 12")
    e("    s_cbranch_scc1 S_DONE")
    e("    s_waitcnt vmcnt(2)")
    e("    v_cmp_eq_u32 vcc, v112, v115")
    e("    v_cmp_eq_u32 s[76:77], v113, v115")
    e("    v_lshlrev_b32 v3, 16, v114")
    e("    v_and_b32 v2, 255, v0")
    e("    v_or_b32 v113, v3, v113")
    e("    s_and_b64 s[12:13], s[66:67], vcc")
    e("    s_and_b64 vcc, s[12:13], s[76:77]")
    e("    s_andn2_b64 s[12:13], s[12:13], s[76:77]")
    e("    v_lshlrev_b32 v2, 2, v2")
    e("    v_cndmask_b32 v3, 0, v3, vcc")
    e(f"    v_add_u32 v2, {SELFN}, v2")
    e("    ds_write_b32 v2, v3")
    e("    s_cbranch_scc0 S_NT")
    decode_key(113, 0, 0, 6)
    decode_data(113, 0, 0, 6)
    e("S_NT:")
    e("    s_cmp_eq_u32 s3, 12")
    e("    s_cbranch_scc1 S_DONE")
    e(f"    v_subrev_u32 v2, {13*64}, v0")
    e("    v_bfe_u32 v3, v2, 4, 1")
    e("    v_bfe_u32 v28, v2, 6, 1")
    e("    v_lshl_or_b32 v3, v28, 2, v3")
    e("    v_cmp_gt_u32 vcc, 128, v2")
    e("    v_xor_b32 v2, v2, v3")
    e("    v_lshlrev_b32 v2, 4, v2")
    e(f"    v_add_u32 v2, {WL}, v2")
    e("    v_xor_b32 v3, 64, v2")
    e("    s_mov_b32 exec_lo, 0xaaaaaaaa")
    e("    s_mov_b32 exec_hi, exec_lo")
    for b in (100, 104, 108):
        e(f"    v_swap_b32 v{b}, v{b+2}")
        e(f"    v_swap_b32 v{b+1}, v{b+3}")
    e("    s_mov_b64 exec, -1")
    e("    ds_write_b128 v2, v[100:103]")
    e("    ds_write_b128 v3, v[104:107] offset:3072")
    e("    s_and_saveexec_b64 s[76:77], vcc")
    e("    ds_write_b128 v2, v[108:111] offset:6144")
    e("    s_mov_b64 exec, -1")
    e("S_DONE:")
    stamp("s_done")


def barrier_addrs():
    e("    s_lshr_b32 s76, s2, 2")
    e("    s_lshl_b32 s76, s76, 7")
    e("    s_and_b32 s77, s2, 3")
    e("    s_lshl_b32 s77, s77, 2")
    e("    s_add_u32 s76, s76, s77")
    e(f"    s_add_u32 s76, s76, {WS_FLAG}")
    e("    v_lshlrev_b32 v2, 13, v0")
    e("    s_getreg_b32 s77, hwreg(HW_REG_XCC_ID, 0, 2)")
    e("    s_lshl_b32 s77, s77, 14")
    e("    s_add_u32 s77, s77, s80")
    e(f"    s_add_u32 s77, s77, {WS_FLAG}")
    e("    v_lshlrev_b32 v8, 7, v0")


COMMON = [0, 1, 2, 3, 4, 5]
RARE = [6, 7]
ACT = ["s[62:63]", "s[10:11]"]
WREG = [40, 44, 48, 52, 56, 60, 28, 116]


def w_frags():
    e("    v_xor_b32 v5, 8, v122")
    e("    v_xor_b32 v6, 64, v122")
    e("    v_xor_b32 v7, 72, v122")
    for s_ in range(2):
        for t in range(4):
            for u in range(2):
                r = WREG[s_ * 4 + t] + 2 * u
                e(f"    ds_read_b64_tr_b16 v[{r}:{r+1}], v{4+t if t else 122} offset:{4096*s_ + 512*u}")


def load_headers():
    e(f"    buffer_load_dwordx4 v[20:23], v93, {R(S_WS)}, s30 offen {SC}")
    e(f"    buffer_load_dwordx4 v[24:27], v93, {R(S_WS)}, s31 offen {SC}")


def phase_b():
    e("COLLECT:")
    load_headers()
    GP = I("gp", 0)
    if GP:
        e(f"    s_mov_b64 exec, {(1 << GP) - 1}")
        e(f"    buffer_load_dword v91, v8, {R(S_GAT)}, 0 offen offset:3072")
        e("    s_mov_b64 exec, -1")
    e("    s_mov_b32 s68, s29")
    e(f"    s_add_u32 s69, s68, {128*32768}")
    e(f"    s_mov_b32 s75, {SPINMAX}")
    e("    v_cmp_gt_u32 s[8:9], 4, v10")
    e("    s_bitcmp1_b32 s29, 12")
    e("    s_cselect_b64 s[82:83], -1, 0")
    if SP == 1:
        setup2()
    e("    s_waitcnt vmcnt(%d)" % (1 if GP else 0))
    e("C_CHK2:")
    e("    v_cndmask_b32 v4, v20, v22, s[82:83]")
    e("    v_cndmask_b32 v5, v24, v26, s[82:83]")
    e("    v_cmp_ne_u32_sdwa vcc, v21, v120 src0_sel:WORD_1 src1_sel:DWORD")
    e("    v_cmp_ne_u32_sdwa s[76:77], v23, v120 src0_sel:WORD_1 src1_sel:DWORD")
    e("    v_cmp_ne_u32_sdwa s[4:5], v25, v120 src0_sel:WORD_1 src1_sel:DWORD")
    e("    v_cmp_ne_u32_sdwa s[6:7], v27, v120 src0_sel:WORD_1 src1_sel:DWORD")
    e("    v_mov_b32_dpp v4, v4 quad_perm:[3,3,3,3] row_mask:0xf bank_mask:0xf")
    e("    v_mov_b32_dpp v5, v5 quad_perm:[3,3,3,3] row_mask:0xf bank_mask:0xf")
    e("    s_or_b64 vcc, vcc, s[76:77]")
    e("    s_or_b64 s[4:5], s[4:5], s[6:7]")
    e("    s_or_b64 vcc, vcc, s[4:5]")
    e("    s_cbranch_scc1 C_RETRY2")
    e("C_OK2:")
    stamp("b_gate")
    e("    v_mov_b32_dpp v4, v4 row_half_mirror row_mask:0xf bank_mask:0x5")
    e("    v_mov_b32_dpp v5, v5 row_half_mirror row_mask:0xf bank_mask:0x5")
    for i in range(2):
        e(f"    v_and_b32 v2, s49, v{4+i}")
        e(f"    v_bfe_u32 v3, v{4+i}, s26, 1")
        e("    v_bcnt_u32_b32 v2, v2, s26")
        e("    v_cmp_eq_u32 vcc, 1, v3")
        e(f"    v_lshl_add_u32 v{6+i}, v2, 6, v9")
        e("    s_or_b64 exec, vcc, s[8:9]")
        e(f"    buffer_load_dwordx4 v[{12+4*i}:{15+4*i}], v{6+i}, {R(S_WS)}, s{68+i} offen {SC}")
        e(f"    s_mov_b64 {ACT[i]}, exec")
        e("    s_mov_b64 exec, -1")
    stamp("b_iss")
    if I("pc", 1):
        e("    s_setprio 0")
    if SP >= 1:
        if SP == 2:
            setup2()
        e("    s_cmp_lg_u32 s71, 0")
        e("    s_cbranch_scc1 LATE_D")
        setup3()
        e("LATE_D:")
    e("    v_and_b32 v21, 0xffff, v21")
    e("    v_and_b32 v25, 0xffff, v25")
    e(f"    v_mul_u32_u24 v2, {TM}, v21")
    e(f"    v_mul_u32_u24 v3, {TM}, v25")
    e("    v_cmp_eq_u32 s[8:9], 7, v10")
    e(f"    s_mov_b32 s76, {0xf000 + 7}")
    e("    v_cmp_lt_u32 s[72:73], s76, v21")
    e("    v_cmp_lt_u32 vcc, s76, v25")
    e("    v_lshrrev_b32 v2, 20, v2")
    e("    v_lshrrev_b32 v3, 20, v3")
    e("    v_cmp_eq_u32 s[4:5], s2, v2")
    e("    v_cmp_eq_u32 s[6:7], s2, v3")
    e("    s_and_b64 s[72:73], s[72:73], s[8:9]")
    e("    s_and_b64 vcc, vcc, s[8:9]")
    e("    s_lshr_b64 s[72:73], s[72:73], 1")
    e("    s_or_b64 s[72:73], s[72:73], vcc")
    e(f"    s_mov_b64 {PEND(7)}, 0")
    e("    s_movk_i32 s70, 0xffff")
    e(f"    s_mov_b64 {PEND(6)}, s[12:13]")
    e("    s_mov_b64 exec, s[12:13]")
    e("    s_cbranch_execz C_NT")
    e("    ds_add_rtn_u32 v38, v46, v1")
    e("C_NT:")
    for i in range(2):
        base = 12 + 4 * i
        e(f"    s_mov_b64 exec, {ACT[i]}")
        e(f"    s_waitcnt vmcnt({1-i})")
        e(f"C_CHK{i}:")
        e(f"    v_cmp_ne_u32_sdwa vcc, v{base+3}, v127 src0_sel:BYTE_3 src1_sel:DWORD")
        e(f"    s_cbranch_vccnz C_RETRY{i}")
        e(f"C_OK{i}:")
        stamp("b_lines" if i == 0 else "b_lines1")
        for k in range(3):
            e(f"    v_cmp_ne_u16 {PEND(3*i+k)}, s70, v{base+k}")
        if i == 1 and EARLY:
            own_x()
        for k in range(3):
            decode_key(base + k, base + 3, k, 3 * i + k)
        for k in range(3):
            s_ = 3 * i + k
            e(f"    s_mov_b64 exec, {PEND(s_)}")
            e(f"    ds_add_rtn_u32 v{32+s_}, v{40+s_}, v1")
    e("    s_mov_b64 exec, -1")
    if not I("ddl", 1):
        for i in range(2):
            base = 12 + 4 * i
            for k in range(3):
                decode_data(base + k, base + 3, k, 3 * i + k)
    else:
        e("    s_or_b32 s71, s71, 32")
    e("    s_mov_b64 s[68:69], 0")
    e("    s_mov_b64 s[82:83], 0")
    e("    s_mov_b64 s[84:85], 0")
    e("    s_or_b64 s[76:77], s[4:5], s[6:7]")
    e("    s_or_b64 s[76:77], s[76:77], s[72:73]")
    e("    s_cbranch_scc1 EXTRA0")
    e("CDONE:")
    e("    s_lshl_b32 s75, s3, 2")
    e("    s_add_u32 s75, s75, 3")
    e("    s_waitcnt lgkmcnt(0)")
    stamp("b_pre1")
    e("    s_barrier")
    stamp2("b_bar1", "")
    e("    ds_read_b128 v[4:7], v90")
    if not EARLY:
        own_x()
    e("    s_cmp_lg_u32 s3, 15")
    e("    s_cbranch_scc1 PT_D")
    e("    s_lshl_b32 s76, s2, 8")
    e(f"    s_add_u32 s76, s76, {WS_FLAG}")
    e("    v_lshlrev_b32 v2, 7, v92")
    e("    s_mov_b64 exec, 3")
    e(f"    buffer_load_dword v91, v2, {R(S_WS)}, s76 offen sc1")
    e("    s_mov_b64 exec, -1")
    e("PT_D:")
    if I("ddl", 1):
        e("    s_bitcmp0_b32 s71, 5")
        e("    s_cbranch_scc1 DD_D")
        e("    s_andn2_b32 s71, s71, 32")
        for i in range(2):
            base = 12 + 4 * i
            for k in range(3):
                decode_data(base + k, base + 3, k, 3 * i + k)
        e("DD_D:")
    e("    s_waitcnt lgkmcnt(0)")
    e("    v_add_u32 v5, v4, v5")
    e("    v_add3_u32 v7, v5, v6, v7")
    e("    v_add_u32 v6, v5, v6")
    e("    s_nop 0")
    e("    v_and_b32_dpp v28, v7, v95 quad_perm:[0,0,0,0] row_mask:0xf bank_mask:0xf")
    e("    v_and_b32_dpp v29, v7, v96 quad_perm:[1,1,1,1] row_mask:0xf bank_mask:0xf")
    e("    v_and_b32_dpp v30, v7, v97 quad_perm:[2,2,2,2] row_mask:0xf bank_mask:0xf")
    e("    v_add3_u32 v28, v28, v29, v30")
    e("    v_add_u32 v7, v28, v7")
    e("    v_lshl_add_u32 v28, v28, 2, v98")
    e(f"    v_cmp_lt_u32 vcc, {CAPT}, v7")
    e("    v_lshl_add_u32 v29, v4, 2, v28")
    e("    v_lshl_add_u32 v30, v5, 2, v28")
    e("    v_lshl_add_u32 v31, v6, 2, v28")
    e("    v_readlane_b32 s74, v7, s75")
    e("    ds_write_b128 v90, v[28:31] offset:1024")
    e(f"    s_or_b64 s[76:77], {PEND(6)}, {PEND(7)}")
    e("    s_cbranch_scc0 P_NR")
    for s in RARE:
        e(f"    s_mov_b64 exec, {PEND(s)}")
        e(f"    ds_read_b32 v{20+s}, v{40+s} offset:1024")
    e("P_NR:")
    for s in COMMON:
        e(f"    s_mov_b64 exec, {PEND(s)}")
        e(f"    ds_read_b32 v{20+s}, v{40+s} offset:1024")
    e(f"    s_min_u32 s74, s74, {CAPT}")
    e("    s_cbranch_vccnz SLOWW")
    for s in COMMON:
        e(f"    s_mov_b64 exec, {PEND(s)}")
        e(f"    s_waitcnt lgkmcnt({len(COMMON)-1})")
        e(f"    v_lshl_add_u32 v{20+s}, v{32+s}, 2, v{20+s}")
        e(f"    ds_write2st64_b32 v{20+s}, v{48+s}, v{56+s} offset0:0 offset1:5")
    e("    s_cmp_eq_u64 s[76:77], 0")
    e("    s_cbranch_scc1 P_NW")
    for s in RARE:
        e(f"    s_mov_b64 exec, {PEND(s)}")
        e(f"    v_lshl_add_u32 v{20+s}, v{32+s}, 2, v{20+s}")
        e(f"    ds_write2st64_b32 v{20+s}, v{48+s}, v{56+s} offset0:0 offset1:5")
    e("P_NW:")
    for s in range(8):
        e(f"    s_mov_b64 {PEND(s)}, 0")
    e("WDONE:")
    e("    s_sub_u32 s76, 0, s74")
    e("    s_and_b32 s76, s76, 31")
    e("    s_bfm_b64 exec, s76, 0")
    e("    s_lshl_b32 s77, s74, 2")
    e("    v_add_u32 v2, s77, v123")
    e(f"    v_mov_b32 v3, {PADV}")
    e("    ds_write2st64_b32 v2, v3, v3 offset0:0 offset1:5")
    e("    s_mov_b64 exec, -1")
    e(f"    v_mov_b32 v4, {MORE}")
    e("    s_lshl_b32 s76, s3, 6")
    e(f"    s_add_u32 s76, s76, {SELFN}")
    e("    v_lshl_add_u32 v5, v92, 2, s76")
    e("    ds_read_b32 v126, v5")
    e("    s_waitcnt lgkmcnt(0)")
    e("    s_barrier")
    stamp2("b_bar2", "")
    e("    ds_read_b32 v8, v4")


def main_loop():
    def next_k():
        if I("kmin", 0):
            e("    s_lshl_b32 s11, s10, 2")
            e("    s_sub_i32 s8, s9, s11")
            e("    s_add_i32 s8, s8, 4")
            e(f"    s_max_i32 s8, s8, {I('kmin', 0)}")
            e("    s_min_i32 s8, s8, 4")
        elif I("krn", 0):
            e("    s_mov_b32 s8, 1")
            e("    s_lshl_b32 s76, s9, 2")
            e(f"    s_mul_i32 s11, s10, {4 + I('krn', 0)}")
            e("    s_lshl_b32 s77, s10, 2")
            e("    s_cmp_ge_i32 s76, s11")
            e("    s_addc_u32 s8, s8, 0")
            e("    s_add_i32 s11, s11, s77")
            e("    s_cmp_ge_i32 s76, s11")
            e("    s_addc_u32 s8, s8, 0")
            e("    s_add_i32 s11, s11, s77")
            e("    s_cmp_ge_i32 s76, s11")
            e("    s_addc_u32 s8, s8, 0")
        elif I("kfl", 1):
            e("    s_mov_b32 s8, 1")
            e("    s_lshl_b32 s11, s10, 1")
            e("    s_cmp_ge_i32 s9, s11")
            e("    s_addc_u32 s8, s8, 0")
            e("    s_add_i32 s11, s11, s10")
            e("    s_cmp_ge_i32 s9, s11")
            e("    s_addc_u32 s8, s8, 0")
            e("    s_add_i32 s11, s11, s10")
            e("    s_cmp_ge_i32 s9, s11")
            e("    s_addc_u32 s8, s8, 0")
        else:
            e("    s_mov_b32 s8, 1")
            e("    s_cmp_gt_i32 s9, s10")
            e("    s_addc_u32 s8, s8, 0")
            e("    s_lshl_b32 s11, s10, 1")
            e("    s_cmp_gt_i32 s9, s11")
            e("    s_addc_u32 s8, s8, 0")
            e("    s_add_i32 s11, s11, s10")
            e("    s_cmp_gt_i32 s9, s11")
            e("    s_addc_u32 s8, s8, 0")
        e("    s_min_i32 s8, s8, s9")
        e("    s_sub_i32 s9, s9, s8")
        e("    s_sub_i32 s10, s10, 1")
        e("    s_lshl_b32 s11, s8, 5")

    def read_recs(a, b, adv):
        e(f"    ds_read2_b32 v[100:101], v{a} offset0:0 offset1:8")
        e(f"    ds_read2_b32 v[102:103], v{a} offset0:16 offset1:24")
        e(f"    ds_read_b128 v[104:107], v{b}")
        e(f"    ds_read_b128 v[108:111], v{b} offset:16")
        e(f"    v_add_u32 v93, {adv}, v{a}")
        e(f"    v_add_u32 v94, {adv}, v{b}")

    def dma(i):
        e(f"    buffer_load_dwordx4 v{100+i}, {R(S_GAT)}, 0 offen offset:{1024*i} {OPT.get('gfl', '')} lds")

    def addr():
        for i in range(4):
            e(f"    v_add_u32 v{100+i}, v{100+i}, v{80+i}")

    REP = I("rep", 1)

    def remap(a, t, u):
        e(f"    v_lshrrev_b32 v{t}, 7, v{a}")
        e(f"    v_mul_u32_u24 v{t}, {TM}, v{t}")
        e(f"    v_bfe_u32 v{u}, v{a}, {I('rsh', 13)}, {I('rbits', 2)}")
        e(f"    v_bfe_u32 v{t}, v{t}, 20, 1")
        e(f"    v_cmp_le_u32 vcc, {REP}, v{u}")
        e(f"    v_xor_b32 v{t}, s81, v{t}")
        e(f"    v_and_b32 v{u}, 0xffffe000, v{a}")
        e(f"    v_cndmask_b32 v{t}, 0, v{t}, vcc")
        e(f"    v_add_u32 v{a}, v{a}, v{u}")
        e(f"    v_bfe_u32 v{u}, v{a}, 21, 1")
        e(f"    v_xor_b32 v{t}, v{t}, v{u}")
        e(f"    v_lshlrev_b32 v{t}, 13, v{t}")
        e(f"    v_xor_b32 v{t}, s80, v{t}")
        e(f"    v_xor_b32 v{a}, v{a}, v{t}")

    def rewrite_list(lbl):
        for n in range(5):
            e(f"    ds_read_b32 v{32+n}, v123 offset:{256*n}")
        for n in range(5):
            e(f"    s_waitcnt lgkmcnt(4)")
            remap(32 + n, 2, 3)
            e(f"    ds_write_b32 v123, v{32+n} offset:{256*n}")

    def build_b(w):
        for j in range(8):
            e(f"    v_bfe_i32 v{32+j}, v{104+j}, v92, {w}")
        for j in range(8):
            e(f"    v_and_b32 v{32+j}, v{32+j}, v{104+j}")
        for j in range(4):
            e(f"    v_perm_b32 v{112+j}, v{32+2*j+1}, v{32+2*j}, s1")

    def mfmas():
        for t in range(4):
            e(f"    v_mfma_f32_16x16x32_bf16 v[{64+4*t}:{67+4*t}], v[{12+4*t}:{15+4*t}], v[112:115], v[{64+4*t}:{67+4*t}]")

    global REWRITE
    REWRITE = rewrite_list
    e("MAIN:")
    e("    s_cmp_eq_u32 s74, 0")
    e("    s_cbranch_scc1 EMPTY")
    e("    s_bitcmp1_b32 s71, 0")
    e("    s_cbranch_scc1 REMAP2")
    e("MAIN1:")
    read_recs(88, 89, 128)
    e("    s_waitcnt lgkmcnt(2)")
    addr()
    e("MAIN2:")
    PM = I("pm", 3)
    if PM == 1:
        prio_by_age("PRIOD")
    if PM == 2:
        e("    s_cmp_lt_u32 s3, 8")
        e("    s_cbranch_scc1 PRIOE")
        e("    s_setprio 1")
        e("PRIOE:")
    for i in range(4):
        dma(i)
    stamp2("m_dma", "m_dma2")
    if PM in (0, 2):
        prio_by_age("PRIOD")
    e("    s_add_u32 s9, s74, 7")
    e("    s_lshr_b32 s9, s9, 3")
    e("    s_sub_i32 s9, s9, 4")
    e("    s_max_i32 s9, s9, 0")
    if OPT.get("nbs"):
        a_, b_ = [int(v) for v in OPT["nbs"].split(",")]
        e(f"    s_bitcmp1_b32 {OPT.get('nbr', 's26')}, {I('nbb', 0)}")
        e(f"    s_cselect_b32 s10, {b_-1}, {a_-1}")
    elif I("nb2", NB) != NB:
        e("    s_bitcmp1_b32 s71, 0")
        e(f"    s_cselect_b32 s10, {I('nb2', NB)-1}, {NB-1}")
    else:
        e(f"    s_mov_b32 s10, {NB-1}")
    next_k()
    e("    s_waitcnt lgkmcnt(0)")
    build_b("1")
    read_recs(93, 94, "s11")
    e("    s_bitcmp1_b32 s71, 3")
    e("    s_cbranch_scc1 LOOP")
    e("    s_or_b32 s71, s71, 8")
    if I("wearly", 0):
        e("    v_readfirstlane_b32 s75, v8")
        e("    s_cmp_lg_u32 s75, 0")
        e("    s_cbranch_scc1 NOWF")
        e("    s_or_b32 s71, s71, 16")
        w_frags()
        e("NOWF:")
    own_addr("PRB_M")
    e("    s_waitcnt vmcnt(4)")
    e("PRB_M2:")
    stamp("m_pre")
    self_init(64)
    e("LOOP:")
    e("    s_waitcnt lgkmcnt(2)")
    addr()
    e("    v_cmp_gt_u32 vcc, s8, v11")
    if PM == 4:
        prio_by_age("PRIOD")
    e("    s_waitcnt vmcnt(0)")
    for t in range(4):
        for u in range(2):
            e(f"    ds_read_b64_tr_b16 v[{12+4*t+2*u}:{13+4*t+2*u}], v{84+t} offset:{512*u}")
    e("    s_cmp_eq_u32 s8, 0")
    e("    v_cndmask_b32 v91, 0, v1, vcc")
    e("    s_waitcnt lgkmcnt(0)")
    e("    s_cbranch_scc1 LAST")
    dma(0)
    e("    s_cmp_eq_u32 s8, 1")
    e("    s_cbranch_scc1 DMAD")
    dma(1)
    e("    s_cmp_eq_u32 s8, 2")
    e("    s_cbranch_scc1 DMAD")
    dma(2)
    e("    s_cmp_eq_u32 s8, 3")
    e("    s_cbranch_scc1 DMAD")
    dma(3)
    e("DMAD:")
    e("    s_cmp_eq_u32 s10, s28")
    e("    s_cbranch_scc1 VOTES")
    e("VOTED:")
    if PM == 4:
        e("    s_setprio 0")
    mfmas()
    next_k()
    if not I("nob", 0):
        build_b("v91")
    for _ in range(I("padv", 0)):
        e("    v_mov_b32 v2, v3")
    for _ in range(I("pads", 0)):
        e("    s_mov_b32 s76, s77")
    read_recs(93, 94, "s11")
    e("    s_branch LOOP")
    e("LAST:")
    mfmas()
    e("MAINDONE:")
    e(f"    v_mov_b32 v7, {CFLAG}")
    e("    ds_read_b32 v7, v7")
    e("    v_readfirstlane_b32 s75, v8")
    e("    s_cmp_lg_u32 s75, 0")
    e("    s_cbranch_scc1 AGAIN")

    stamp2("h1_done", "h2_done")
    e("    s_nop 2")
    for t in range(4):
        e(f"    v_cvt_pk_bf16_f32 v{12+2*t}, v{64+4*t}, v{65+4*t}")
        e(f"    v_cvt_pk_bf16_f32 v{13+2*t}, v{66+4*t}, v{67+4*t}")
    e("    s_mov_b64 exec, s[16:17]")
    e("    v_swap_b32 v12, v14")
    e("    v_swap_b32 v13, v15")
    e("    v_swap_b32 v16, v18")
    e("    v_swap_b32 v17, v19")
    e("    s_bitcmp1_b32 s71, 0")
    e("    s_cbranch_scc1 FINAL")
    e("    s_mov_b64 exec, -1")
    e("    s_waitcnt lgkmcnt(0)")
    e("    v_readfirstlane_b32 s80, v7")
    e("    s_and_b32 s81, s2, 1")
    e("    s_cmp_eq_u32 s80, 0")
    e("    s_cbranch_scc1 E_NOC")
    e("E_HAVEC:")
    e("    s_xor_b32 s80, s80, s81")
    e("    s_and_b32 s80, s80, 1")
    e("    s_lshl_b32 s80, s80, 13")
    e("    v_xor_b32 v9, s80, v9")
    if I("sb", 0) & 1:
        e("    s_barrier")
    e("    s_mov_b64 exec, s[14:15]")
    e(f"    buffer_store_dwordx4 v[12:15], v9, {R(S_STO)}, 0 offen {SC}")
    e(f"    buffer_store_dwordx4 v[16:19], v9, {R(S_STO)}, 0 offen offset:64 {SC}")
    e("    v_xor_b32 v20, 0x2000, v9")
    if I("sb", 0) & 4:
        e("    s_barrier")
    e("    s_and_b64 exec, exec, s[78:79]")
    e("    s_cbranch_execz E_NOREP")
    e(f"    buffer_store_dwordx4 v[12:15], v20, {R(S_STO)}, 0 offen {SC}")
    e(f"    buffer_store_dwordx4 v[16:19], v20, {R(S_STO)}, 0 offen offset:64 {SC}")
    e("E_NOREP:")
    e("    s_setprio 0")
    e("    s_mov_b64 exec, -1")
    stamp("h1_st")
    BS = I("bsplit", 0)

    def book1():
        e(f"    s_mov_b64 s[{S_GAT}:{S_GAT+1}], s[{S_GH}:{S_GH+1}]")
        e(f"    s_mov_b32 s{S_GAT+2}, {H1BYTES + 3072}")
        e("    s_or_b32 s71, s71, 1")
        if BS >= 1:
            rewrite_list("RW1")
        if BS >= 2:
            self_init(12)

    def book2():
        if BS < 2:
            self_init(12)
        e("    s_bitcmp1_b32 s71, 1")
        e("    s_cbranch_scc1 E_IRR")
        e("    s_or_b32 s71, s71, 16")
        w_frags()
        if BS < 1:
            rewrite_list("RW1")
        read_recs(88, 89, 128)
        e("    s_waitcnt lgkmcnt(2)")
        addr()
        e("E_BAR:")
        stamp("g2_bk")

    def book():
        if BS < 3:
            book2()
    book1()
    if BS >= 3:
        book2()
    barrier_addrs()
    e("    s_waitcnt vmcnt(0)")
    stamp("g2_ack")
    e("    s_barrier")
    e("    s_cmp_lg_u32 s3, 0")
    e("    s_cbranch_scc1 G2_NOF")
    stamp("g2_arr")
    e("    s_mov_b64 exec, 0xff")
    e(f"    buffer_store_dword v125, v2, {R(S_WS)}, s76 offen sc1")
    e("G2_NOF:")
    stamp("g2_b1")
    def own_h1():
        e("    s_mov_b32 exec_hi, 0")
        e("    s_and_b32 exec_lo, s14, 0xffff")
        e(f"    buffer_load_dword v91, v9, {R(S_STO)}, 0 offen sc1")
        e("    s_mov_b64 exec, -1")
    OL = I("ownlate", 9)
    if OL == 0:
        own_h1()
    e("    s_mov_b64 exec, -1")
    e("    s_cmp_lg_u32 s3, 0")
    e("    s_cbranch_scc1 G2_NP")
    e("    s_setprio 3")
    e("G2_NP:")
    book()
    if OL == 1:
        own_h1()
    if OL == 2:
        e("    v_mov_b32 v2, 0")
        e("    s_lshr_b32 s76, s2, 2")
        e("    s_lshl_b32 s76, s76, 7")
        e("    s_add_u32 s76, s76, s77")
        e("    s_and_b32 s75, s2, 3")
        e("    s_lshl_b32 s75, s75, 2")
        e("    s_add_u32 s76, s76, s75")
        e(f"    s_mov_b32 s75, {SPINMAX}")
        e("G2_P0:")
        e(f"    buffer_load_dword v4, v2, {R(S_WS)}, s76 offen sc1")
        e("    s_sub_u32 s75, s75, 1")
        e("    s_cmp_eq_u32 s75, 0")
        e("    s_waitcnt vmcnt(0)")
        e("    s_cbranch_scc1 G2_P1")
        e("    v_cmp_ne_u32 vcc, v4, v125")
        e("    s_cbranch_vccnz G2_P0")
        e("G2_P1:")
        own_h1()
    if I("xp", 0):
        e("    s_sub_u32 s75, s3, 2")
        e(f"    s_cmp_ge_u32 s75, {I('xp', 0)}")
        e("    s_cbranch_scc1 G2_NX")
        e("    s_xor_b32 s76, s2, 1")
        e(f"    s_mul_i32 s70, s76, {16*50006}")
        e("    s_lshr_b32 s70, s70, 12")
        e("    s_add_u32 s70, s70, 2")
        e("    s_lshl_b32 s75, s75, 6")
        e("    s_add_u32 s70, s70, s75")
        e("    v_and_b32 v4, 63, v0")
        e("    v_add_lshl_u32 v4, v4, s70, 7")
        remap(4, 2, 3)
        e("    s_lshr_b32 s70, s76, 2")
        e("    s_lshl_b32 s70, s70, 7")
        e("    s_and_b32 s76, s76, 3")
        e("    s_lshl2_add_u32 s70, s76, s70")
        e("    s_add_u32 s70, s70, s77")
        e("    v_mov_b32 v2, 0")
        e(f"    s_mov_b32 s75, {SPINMAX}")
        e("G2_XP:")
        e(f"    buffer_load_dword v5, v2, {R(S_WS)}, s70 offen sc1")
        e("    s_sub_u32 s75, s75, 1")
        e("    s_cmp_eq_u32 s75, 0")
        e("    s_waitcnt vmcnt(0)")
        e("    s_cbranch_scc1 G2_WAIT")
        e("    v_cmp_ne_u32 vcc, v5, v125")
        e("    s_cbranch_vccnz G2_XP")
        e(f"    buffer_load_dword v91, v4, {R(S_STO)}, 0 offen sc1")
        e("G2_NX:")
    e("    s_cmp_lg_u32 s3, 0")
    e("    s_cbranch_scc1 G2_WAIT")
    e(f"    s_mov_b32 s75, {SPINMAX}")
    e("G2_POLL:")
    e(f"    buffer_load_dwordx4 v[4:7], v8, {R(S_WS)}, s77 offen sc1")
    e("    s_sub_u32 s75, s75, 1")
    e("    s_cmp_eq_u32 s75, 0")
    e("    s_waitcnt vmcnt(0)")
    e("    s_cbranch_scc1 G2_WAIT")
    e("    v_xor_b32 v4, v4, v125")
    e("    v_xor_b32 v5, v5, v125")
    e("    v_xor_b32 v6, v6, v125")
    e("    v_xor_b32 v7, v7, v125")
    e("    v_or3_b32 v4, v4, v5, v6")
    e("    v_or_b32 v4, v4, v7")
    e("    v_cmp_ne_u32 vcc, 0, v4")
    if I("shrink", 1):
        e("    s_and_b64 exec, exec, vcc")
        e("    s_cbranch_scc1 G2_POLL")
    else:
        e("    s_cbranch_vccnz G2_POLL")
    e("G2_WAIT:")
    e("    s_mov_b64 exec, -1")
    if I("pp", 1):
        e("    s_setprio 0")
    e("    v_mov_b32 v8, 0")
    e("    s_and_b32 s76, s71, 2")
    e("    s_cselect_b32 s76, 0, s74")
    e("    s_cmp_lg_u32 s76, 0")
    e("    s_barrier")
    stamp("g2_exit")
    e("    s_cbranch_scc1 MAIN2")
    e("    s_bitcmp0_b32 s71, 1")
    e("    s_cbranch_scc1 MAIN")
    e("    s_branch COLLECT")
    e("FINAL:")
    MIX = I("mix", 0)
    if MIX:
        e("    s_mov_b64 exec, 1")
        e(f"    v_mov_b32 v2, {MORE+4}")
        e("    ds_add_rtn_u32 v2, v2, v1")
    e("    s_mov_b64 exec, -1")
    e("    s_bitcmp0_b32 s71, 4")
    e("    s_cbranch_scc1 F_GETW")
    e("F_HAVEW:")
    for t in range(4):
        w = WREG[t]
        e(f"    v_mfma_f32_16x16x32_bf16 v[{64+4*t}:{67+4*t}], v[{w}:{w+3}], v[12:15], 0")
    for t in range(4):
        w = WREG[4 + t]
        e(f"    v_mfma_f32_16x16x32_bf16 v[{64+4*t}:{67+4*t}], v[{w}:{w+3}], v[16:19], v[{64+4*t}:{67+4*t}]")
    e("    s_nop 4")
    for t in range(4):
        if t:
            e("    s_nop 1")
        e(f"    v_cvt_pk_bf16_f32 v{12+2*t}, v{64+4*t}, v{65+4*t}")
        e(f"    v_cvt_pk_bf16_f32 v{13+2*t}, v{66+4*t}, v{67+4*t}")
    if MIX:
        e("    s_waitcnt lgkmcnt(0)")
        e("    v_readfirstlane_b32 s76, v2")
        e("    s_mov_b64 exec, s[14:15]")
        e(f"    s_cmp_lt_u32 s76, {MIX}")
        e("    s_cbranch_scc1 F_WT")
        e(f"    buffer_store_dwordx4 v[12:15], v121, {R(S_OUT)}, 0 offen {OPT.get('mixf', '')}")
        e(f"    buffer_store_dwordx4 v[16:19], v121, {R(S_OUT)}, 0 offen offset:64 {OPT.get('mixf', '')}")
        e("    s_branch F_ST")
        e("F_WT:")
    if I("sb", 0) & 2:
        e("    s_barrier")
    e("    s_mov_b64 exec, s[14:15]")
    e(f"    buffer_store_dwordx4 v[12:15], v121, {R(S_OUT)}, 0 offen {ST_OUT}")
    e(f"    buffer_store_dwordx4 v[16:19], v121, {R(S_OUT)}, 0 offen offset:64 {ST_OUT}")
    e("F_ST:")
    stamp_out()
    e("END:")
    e("    s_endpgm")


def out_of_line():
    for i in range(2):
        base = 12 + 4 * i
        e(f"C_RETRY{i}:")
        e("    s_lshr_b64 s[76:77], vcc, 1")
        e("    s_or_b64 vcc, vcc, s[76:77]")
        e("    s_lshr_b64 s[76:77], vcc, 2")
        e("    s_or_b64 vcc, vcc, s[76:77]")
        e("    s_and_b32 vcc_lo, vcc_lo, 0x11111111")
        e("    s_and_b32 vcc_hi, vcc_hi, 0x11111111")
        e("    s_mul_i32 exec_lo, vcc_lo, 15")
        e("    s_mul_i32 exec_hi, vcc_hi, 15")
        if I("rbo", 0):
            e(f"    s_sleep {I('rbo', 0)}")
        e(f"    buffer_load_dwordx4 v[{base}:{base+3}], v{6+i}, {R(S_WS)}, s{68+i} offen {SC}")
        e(f"    s_mov_b64 exec, {ACT[i]}")
        e("    s_sub_u32 s75, s75, 1")
        e("    s_cmp_eq_u32 s75, 0")
        e("    s_waitcnt vmcnt(0)")
        e(f"    s_cbranch_scc0 C_CHK{i}")
        e("    s_mov_b32 s75, 1000")
        if DIAG:
            e(f"    s_or_b32 s48, s48, {1 << i}")
            e("    s_mov_b64 s[50:51], vcc")
        e(f"    s_branch C_OK{i}")
    e("C_RETRY2:")
    if I("bo", 0):
        e(f"    s_sleep {I('bo', 0)}")
    load_headers()
    e("    s_sub_u32 s75, s75, 1")
    e("    s_cmp_eq_u32 s75, 0")
    e("    s_waitcnt vmcnt(0)")
    e("    s_cbranch_scc0 C_CHK2")
    e("    s_mov_b32 s75, 1000")
    if DIAG:
        e("    s_or_b32 s48, s48, 4")
        e("    s_mov_b64 s[50:51], vcc")
    e("    s_branch C_OK2")
    probe()
    e("VOTES:")
    e("    s_sub_u32 s28, s28, 1")
    e("    s_bitcmp1_b32 s71, 7")
    e("    s_cbranch_scc0 VOTEL")
    e("    v_cmp_ne_u32 vcc, v4, v125")
    e("    s_cbranch_vccnz VOTEL")
    vote_count()
    e("    s_branch VOTED")
    e("VOTEL:")
    e("    s_or_b32 s71, s71, 128")
    vote_load()
    e("    s_branch VOTED")
    e("E_NOC:")
    e(f"    s_mov_b32 s75, {SPINMAX}")
    e("    s_cmp_lg_u32 s3, 1")
    e("    s_cbranch_scc1 E_SPIN")
    e("E_VP:")
    vote_load()
    e("    s_sub_u32 s75, s75, 1")
    e("    s_cmp_eq_u32 s75, 0")
    e("    s_waitcnt vmcnt(0)")
    e("    s_cbranch_scc1 E_VC")
    e("    v_cmp_ne_u32 vcc, v4, v125")
    e("    s_cbranch_vccnz E_VP")
    e("E_VC:")
    vote_count()
    e("E_SPIN:")
    e(f"    v_mov_b32 v7, {CFLAG}")
    e("    ds_read_b32 v7, v7")
    e("    s_waitcnt lgkmcnt(0)")
    e("    v_readfirstlane_b32 s80, v7")
    e("    s_cmp_eq_u32 s80, 0")
    e("    s_cbranch_scc1 E_SPIN")
    e("    s_branch E_HAVEC")
    a_overflow()
    e("AGAIN:")
    e("    s_setprio 0")
    e("    s_or_b32 s71, s71, 2")
    e("    s_barrier")
    zero_b_counters((CFLAG - CNTB) // 4)
    e("    s_waitcnt lgkmcnt(0)")
    e("    s_barrier")
    for s in range(7):
        e(f"    s_mov_b64 exec, {PEND(s)}")
        e(f"    ds_add_rtn_u32 v{32+s}, v{40+s}, v1")
    e("    s_mov_b64 exec, -1")
    e("    v_lshrrev_b32 v93, 3, v0")
    e("    v_lshlrev_b32 v93, 7, v93")
    e("    v_lshl_add_u32 v93, v10, 4, v93")
    load_headers()
    e("    s_waitcnt vmcnt(0)")
    for r in (21, 23, 25, 27):
        e(f"    v_and_b32 v{r}, 0xffff, v{r}")
    e("    s_branch EXTRA")
    e("EXTRA0:")
    e("    s_cmp_eq_u64 s[72:73], 0")
    e("    s_cbranch_scc1 EXTRA")
    e("    v_and_b32 v23, 0xffff, v23")
    e("    v_and_b32 v27, 0xffff, v27")
    e(f"    v_mul_u32_u24 v2, {TM}, v23")
    e(f"    v_mul_u32_u24 v3, {TM}, v27")
    e("    v_lshrrev_b32 v2, 20, v2")
    e("    v_lshrrev_b32 v3, 20, v3")
    e("    v_cmp_eq_u32 s[82:83], s2, v2")
    e("    v_cmp_eq_u32 s[84:85], s2, v3")
    e("EXTRA:")
    CAND = (("s[4:5]", 20), ("s[6:7]", 24), ("s[82:83]", 22), ("s[84:85]", 26))
    for n, (m, r) in enumerate(CAND):
        e(f"    s_andn2_b64 exec, {m}, {PEND(7)}")
        e(f"    s_cbranch_execz X7_{n}")
        e(f"    s_andn2_b64 {m}, {m}, exec")
        e(f"    s_or_b64 {PEND(7)}, {PEND(7)}, exec")
        decode_full(r, r + 1, 7)
        e(f"X7_{n}:")
    for n, (m, r) in enumerate(CAND):
        e(f"    s_andn2_b64 exec, {m}, {PEND(6)}")
        e("    s_andn2_b64 exec, exec, s[12:13]")
        e(f"    s_cbranch_execz X6_{n}")
        e(f"    s_andn2_b64 {m}, {m}, exec")
        e(f"    s_or_b64 {PEND(6)}, {PEND(6)}, exec")
        decode_full(r, r + 1, 6)
        e("    ds_add_rtn_u32 v38, v46, v1")
        e(f"X6_{n}:")
    e("    s_mov_b64 exec, -1")
    e("    s_or_b64 s[76:77], s[4:5], s[6:7]")
    e("    s_or_b64 s[76:77], s[76:77], s[82:83]")
    e("    s_or_b64 s[76:77], s[76:77], s[84:85]")
    e("    s_cbranch_scc1 OVFULL")
    e("    s_mov_b32 s75, 0")
    e("OVL:")
    e("    s_cmp_lt_u32 s68, s69")
    e("    s_cbranch_scc1 OVLOAD")
    e("    s_cmp_eq_u64 s[72:73], 0")
    e("    s_cbranch_scc1 OVDONE")
    e("    s_ff1_i32_b64 s76, s[72:73]")
    e("    s_bitset0_b64 s[72:73], s76")
    e("    s_or_b32 s77, s76, 7")
    e("    v_readlane_b32 s68, v21, s77")
    e("    v_readlane_b32 s69, v25, s77")
    e("    s_sub_u32 s75, 63, s77")
    e("    s_bitcmp1_b32 s76, 0")
    e("    s_cselect_b32 s69, s69, s68")
    e("    s_and_b32 s69, s69, 0xfff")
    e(f"    s_min_u32 s69, s69, {CHMAX}")
    e("    s_and_b32 s77, s76, 1")
    e("    s_lshl_b32 s77, s77, 7")
    e("    s_lshr_b32 s76, s76, 3")
    e("    s_add_u32 s76, s76, s77")
    e("    s_lshl_b32 s77, s3, 3")
    e("    s_add_u32 s76, s76, s77")
    e("    s_lshl_b32 s70, s76, 15")
    e(f"    s_mov_b32 s68, {NINL}")
    e("    s_branch OVL")
    e("OVLOAD:")
    e("    v_add_u32 v4, s75, v0")
    e("    v_and_b32 v4, 63, v4")
    e("    v_add_u32 v4, s68, v4")
    e("    v_lshlrev_b32 v5, 3, v4")
    e(f"    buffer_load_dwordx2 v[28:29], v5, {R(S_OVF)}, s70 offen {SC}")
    e("    s_waitcnt vmcnt(0)")
    e(f"    v_mul_u32_u24 v30, {TM}, v29")
    e("    v_lshrrev_b32 v31, 20, v30")
    e("    v_cmp_gt_u32 vcc, s69, v4")
    e("    v_cmp_eq_u32 s[76:77], s2, v31")
    e("    s_and_b64 vcc, s[76:77], vcc")
    e(f"    s_and_b64 s[76:77], vcc, {PEND(7)}")
    e("    s_cbranch_scc1 OVFULL")
    e(f"    s_or_b64 {PEND(7)}, {PEND(7)}, vcc")
    e("    s_add_u32 s68, s68, 64")
    e("    s_mov_b64 exec, vcc")
    decode_full(28, 29, 7)
    e("    s_mov_b64 exec, -1")
    e("    s_branch OVL")
    e("OVFULL:")
    e(f"    v_mov_b32 v2, {MORE}")
    e("    ds_write_b32 v2, v1")
    e("OVDONE:")
    e(f"    s_mov_b64 exec, {PEND(7)}")
    e("    ds_add_rtn_u32 v39, v47, v1")
    e("    s_mov_b64 exec, -1")
    e("    s_branch CDONE")
    e("SLOWW:")
    e("    s_waitcnt lgkmcnt(0)")
    for s in range(8):
        e(f"    s_mov_b64 exec, {PEND(s)}")
        e(f"    v_lshl_add_u32 v{20+s}, v{32+s}, 2, v{20+s}")
        e(f"    v_subrev_u32 v3, s0, v{40+s}")
        e("    v_lshrrev_b32 v3, 6, v3")
        e(f"    v_mul_u32_u24 v3, {TSTR}, v3")
        e(f"    v_add_u32 v3, {LISTS + CAPT*4}, v3")
        e(f"    v_cmp_lt_u32 vcc, v{20+s}, v3")
        e(f"    s_andn2_b64 {PEND(s)}, exec, vcc")
        e("    s_mov_b64 exec, vcc")
        e(f"    ds_write2st64_b32 v{20+s}, v{48+s}, v{56+s} offset0:0 offset1:5")
    e("    s_mov_b64 exec, -1")
    e(f"    v_mov_b32 v3, {MORE}")
    e("    ds_write_b32 v3, v1")
    e("    s_branch WDONE")
    e("REMAP2:")
    REWRITE("RW2")
    e("    s_branch MAIN1")
    e("E_IRR:")
    e("    s_mov_b32 s70, s77")
    zero_b_counters(256)
    e("    s_mov_b32 s77, s70")
    collect_addrs()
    for i in range(4):
        e(f"    v_mov_b32 v{100+i}, {PADV}")
    e("    s_waitcnt lgkmcnt(0)")
    e("    s_branch E_BAR")
    e("EMPTY:")
    e("    s_waitcnt vmcnt(0) lgkmcnt(0)")
    e("    s_bitcmp1_b32 s71, 3")
    e("    s_cbranch_scc1 MAINDONE")
    e("    s_or_b32 s71, s71, 8")
    own_addr("PRB_E")
    self_init(64)
    e("    s_branch MAINDONE")
    e("F_GETW:")
    e("    s_waitcnt lgkmcnt(0)")
    w_frags()
    e("    s_waitcnt lgkmcnt(0)")
    e("    s_branch F_HAVEW")
    e("CODE_END:")


def body():
    e(f".globl {NAME}")
    e(".p2align 8")
    e(f".type {NAME},@function")
    e(f"{NAME}:")
    phase_a()
    setup1()
    if SP == 0:
        setup2()
        setup3()
    if I("pc", 1):
        e("    s_setprio 3")
    AK = I("ackb", 1)
    if AK == 1:
        e("    s_waitcnt vmcnt(0) lgkmcnt(0)")
    elif AK == 2:
        e("    s_waitcnt vmcnt(1) lgkmcnt(0)")
    elif AK >= 4:
        e(f"    s_cmp_ge_u32 s3, {AK}")
        e("    s_waitcnt lgkmcnt(0)")
        e("    s_cbranch_scc1 G1_NA")
        e("    s_waitcnt vmcnt(0)")
        e("G1_NA:")
    else:
        e("    s_waitcnt lgkmcnt(0)")
    stamp("g1_ack")
    e("    s_barrier")
    stamp("g1_exit")
    phase_b()
    main_loop()
    out_of_line()


def spin_kernel():
    na, nb_, mode, mult, wlo, whi = (SPIN.split(",") + ["0", "15"])[:6]
    wlo, whi = int(wlo), int(whi)
    ia, ib, mode, mult = STL.index(na), STL.index(nb_), int(mode), int(mult)
    init = "0x80000000" if mode == 0 else "0x7fffffff" if mode == 1 else "0"
    e(".globl sgc_spin_kernel")
    e(".p2align 8")
    e(".type sgc_spin_kernel,@function")
    e("sgc_spin_kernel:")
    e("    s_memrealtime s[30:31]")
    e("    s_cmp_ge_u32 s2, 1")
    e("    s_cbranch_scc1 SP_END")
    e("    s_load_dwordx8 s[12:19], s[0:1], 32")
    e("    v_lshlrev_b32 v1, 6, v0")
    e("    v_mov_b32 v4, 0x7fffffff")
    e(f"    v_mov_b32 v5, {init}")
    e("    s_mov_b32 s23, 0x20000")
    e("    s_waitcnt lgkmcnt(0)")
    srd(20, 18, 19, 1 << 20, WS_STAMP)
    e("    s_mov_b32 s24, 0")
    e("SP_RD:")
    e(f"    buffer_load_dword v2, v1, s[20:23], s24 offen offset:{4*ia}")
    e(f"    buffer_load_dword v3, v1, s[20:23], s24 offen offset:{4*ib}")
    e("    s_add_u32 s24, s24, 4096")
    e("    s_cmp_lt_u32 s24, 0x40000")
    e("    s_waitcnt vmcnt(0)")
    e("    v_subrev_u32 v2, s30, v2")
    e("    v_subrev_u32 v3, s30, v3")
    e("    v_min_i32 v4, v4, v2")
    e("    %s v5, v5, v3" % ("v_max_i32" if mode == 0 else "v_min_i32" if mode == 1 else "v_add_u32"))
    e("    s_cbranch_scc1 SP_RD")
    e("    s_mov_b32 s26, 0x7fffffff")
    e(f"    s_mov_b32 s27, {init}")
    e("    s_nop 1")
    for l in range(64):
        e(f"    v_readlane_b32 s28, v4, {l}")
        e(f"    v_readlane_b32 s29, v5, {l}")
        e("    s_min_i32 s26, s26, s28")
        if wlo <= (l & 15) <= whi:
            e("    %s s27, s27, s29" % ("s_max_i32" if mode == 0 else "s_min_i32" if mode == 1 else "s_add_u32"))
    if mode == 2:
        e("    s_ashr_i32 s27, s27, %d" % (8 + (whi - wlo + 1).bit_length() - 1))
    e("    s_sub_i32 s26, s27, s26")
    e("    s_max_i32 s26, s26, 0")
    e("    s_min_i32 s26, s26, 20000")
    e(f"    s_mul_i32 s26, s26, {mult}")
    e("    s_add_u32 s26, s26, 10000")
    e("SP_LOOP:")
    e("    s_memrealtime s[28:29]")
    e("    s_waitcnt lgkmcnt(0)")
    e("    s_sub_u32 s28, s28, s30")
    e("    s_cmp_lt_u32 s28, s26")
    e("    s_cbranch_scc1 SP_LOOP")
    e("SP_END:")
    e("    s_endpgm")


def desc(name, vg, sg):
    e(".p2align 6")
    e(f".amdhsa_kernel {name}")
    e(f"  .amdhsa_next_free_vgpr {vg}")
    e(f"  .amdhsa_next_free_sgpr {sg}")
    e(f"  .amdhsa_accum_offset {vg}")
    e("  .amdhsa_group_segment_fixed_size 0")
    e("  .amdhsa_kernarg_size 64")
    e("  .amdhsa_user_sgpr_count 2")
    e("  .amdhsa_user_sgpr_kernarg_segment_ptr 1")
    e("  .amdhsa_system_sgpr_workgroup_id_x 1")
    e(".end_amdhsa_kernel")


SPIN = OPT.get("spin")
if SPIN:
    e(f"; @launch kernel={NAME} grid=(256,1,1) block=(1024,1,1) lds={LDS}")
    e("; @launch kernel=sgc_spin_kernel grid=(1,1,1) block=(64,1,1) lds=0")
else:
    e(f"; @launch grid=(256,1,1) block=(1024,1,1) lds={LDS}")
e('.amdgcn_target "amdgcn-amd-amdhsa--gfx950"')
e(".text")
body()
if SPIN:
    spin_kernel()
e('.section .rodata,"a"')
if SPIN:
    desc("sgc_spin_kernel", 8, 40)
desc(NAME, 128, 102 if DIAG else 86)
open(OUT, "w").write("\n".join(L) + "\n")
```
